```python
import torch

def _softmax(x, axis=-1):
    return torch.softmax(x, dim=axis)
def _gelu(x):
    return torch.nn.functional.gelu(x, approximate="tanh")
def _silu(x):
    return torch.nn.functional.silu(x)
def _sigmoid(x):
    return torch.sigmoid(x)
def _layernorm(x, axis=-1, eps=1e-5):
    m = x.mean(dim=axis, keepdim=True)
    v = x.var(dim=axis, keepdim=True, unbiased=False)
    return (x - m) / torch.sqrt(v + eps)
def _scatter_add(tgt, idx, src, axis=0):
    return tgt.clone().index_add_(axis, idx, src)
def _segment_sum(src, seg, n):
    out = torch.zeros((n,) + src.shape[1:], dtype=src.dtype)
    return out.index_add_(0, seg, src)
def _pad(x, pw):
    flat = tuple(v for pair in reversed(pw) for v in pair)
    return torch.nn.functional.pad(x, flat)

kernel_name = 'gated_mix__mha_block__ssm_conv_s4__prompt'

def setup_inputs():

    _w = (lambda a: (lambda t: t.to(torch.bfloat16) if t.is_floating_point() else t)(torch.as_tensor(a)))
    def _A_setup():
        B, S, D, H = 1, 2048, 448, 16
        return {
            "x": _w((lambda *s: torch.randn(*s, dtype=torch.bfloat16) * 0.05)(B, S, D)),
            "wqkv": _w((lambda *s: torch.randn(*s, dtype=torch.bfloat16) * 0.8)(D, 3 * D)),
            "wo": _w((lambda *s: torch.randn(*s, dtype=torch.bfloat16) * 0.05)(D, D)),
        }
    _A_in = _A_setup()

    def _B_setup():
        B, L, D, N = 1, 2048, 448, 256
        A_re = -(lambda _x: torch.exp(torch.as_tensor(_x)))((lambda *s: torch.randn(*s, dtype=torch.bfloat16) * 6.4)(D, N))
        A_im = torch.pi * (lambda *s: torch.randn(*s, dtype=torch.bfloat16) * 0.1)(D, N)
        B_re = (lambda *s: torch.randn(*s, dtype=torch.bfloat16) * 0.2)(D, N)
        B_im = (lambda *s: torch.randn(*s, dtype=torch.bfloat16) * 0.2)(D, N)
        C_re = (lambda *s: torch.randn(*s, dtype=torch.bfloat16) * 0.2)(D, N)
        C_im = (lambda *s: torch.randn(*s, dtype=torch.bfloat16) * 0.2)(D, N)
        log_dt = (lambda *s: torch.randn(*s, dtype=torch.bfloat16) * 0.1)(D) * 0.5 - 4.0
        Dskip = (lambda *s: torch.randn(*s, dtype=torch.bfloat16) * 0.1)(D)
        return {
            "u": _w((lambda *s: torch.randn(*s, dtype=torch.bfloat16) * 0.05)(B, L, D)),
            "A_re": _w(A_re),
            "A_im": _w(A_im),
            "B_re": _w(B_re),
            "B_im": _w(B_im),
            "C_re": _w(C_re),
            "C_im": _w(C_im),
            "log_dt": _w(log_dt),
            "Dskip": _w(Dskip),
        }
    _B_in = _B_setup()

    return {
        "A_x": _A_in["x"],
        "A_wqkv": _A_in["wqkv"],
        "A_wo": _A_in["wo"],
        "B_u": _B_in["u"],
        "B_A_re": _B_in["A_re"],
        "B_A_im": _B_in["A_im"],
        "B_B_re": _B_in["B_re"],
        "B_B_im": _B_in["B_im"],
        "B_C_re": _B_in["C_re"],
        "B_C_im": _B_in["C_im"],
        "B_log_dt": _B_in["log_dt"],
        "B_Dskip": _B_in["Dskip"],
        "gate_w": _w((lambda *s: torch.randn(*s, dtype=torch.bfloat16) * 0.05)(448) * 16.0),
    }

def reference(A_x, A_wqkv, A_wo, B_u, B_A_re, B_A_im, B_B_re, B_B_im, B_C_re, B_C_im, B_log_dt, B_Dskip, gate_w):
    def _A_ref(x, wqkv, wo):
        B, S, D = x.shape
        H = 16
        Dh = D // H
        qkv = (lambda x, *d: x.permute(*d))((x @ wqkv).reshape(B, S, 3, H, Dh), 2, 0, 3, 1, 4)
        q, k, v = qkv[0], qkv[1], qkv[2]
        scores = torch.einsum("bhqd,bhkd->bhqk", q, k) * (Dh ** -0.5)
        p = _softmax(scores, axis=-1)
        o = torch.einsum("bhqk,bhkd->bhqd", p, v)
        return (lambda x, *d: x.permute(*d))(o, 0, 2, 1, 3).reshape(B, S, D) @ wo

    def _B_ref(u, A_re, A_im, B_re, B_im, C_re, C_im, log_dt, Dskip):
        Bsz, L, D = u.shape
        dt = torch.exp(log_dt)[:, None]
        A = A_re + 1j * A_im
        Bc = B_re + 1j * B_im
        Cc = C_re + 1j * C_im
        logdA = dt * A
        dB = dt * Bc
        l = (lambda x, dt: x.to(dt))(torch.arange(L), A_re.dtype)
        P = torch.exp(logdA[:, :, None] * l[None, None, :])
        K = torch.einsum("dn,dnl,dn->dl", Cc, P, dB).real
        L2 = 2 * L
        Kp = _pad(K, ((0, 0), (0, L)))
        up = (lambda x, *d: x.permute(*d))(u, 0, 2, 1)
        up = _pad(up, ((0, 0), (0, 0), (0, L)))
        Kf = (lambda x, axes=(-2,-1): torch.fft.rfft2(x.float(), dim=axes))(Kp[:, None, :], axes=(-2, -1))
        Uf = (lambda x, axes=(-2,-1): torch.fft.rfft2(x.float(), dim=axes))(up[:, :, None, :], axes=(-2, -1))
        Yf = Uf * Kf[None, :, :, :]
        y = (lambda x, s, axes=(-2,-1): torch.fft.irfft2(x, s=s, dim=axes).to(torch.bfloat16))(Yf, (1, L2), axes=(-2, -1))[:, :, 0, :L]
        y = (lambda x, *d: x.permute(*d))(y, 0, 2, 1) + u * Dskip[None, None, :]
        return y

    x = A_x
    g = _sigmoid((x * gate_w).sum(-1, keepdims=True))
    a = _A_ref(x, A_wqkv, A_wo)
    b = _B_ref(x, B_A_re, B_A_im, B_B_re, B_B_im, B_C_re, B_C_im, B_log_dt, B_Dskip)
    return g * a + (1 - g) * b
```

```python
import struct

def f2u(x):
    return struct.unpack("<I", struct.pack("<f", x))[0]

def vr(b, n=1):
    return f"v{b}" if n == 1 else f"v[{b}:{b+n-1}]"

def sr(b, n=1):
    return f"s{b}" if n == 1 else f"s[{b}:{b+n-1}]"

class Asm:
    def __init__(self):
        self.lines = []
        self.nds = 0
        self.nvm = 0
    def __call__(self, s):
        for l in s.split("\n"):
            l = l.strip()
            if l:
                self.lines.append("    " + l)
    def label(self, l):
        self.lines.append(l + ":")
    def raw(self, s):
        self.lines.append(s)
    def comment(self, s):
        self.lines.append("    ; " + s)
    def ds(self, s):
        self(s)
        self.nds += 1
        return self.nds
    def vm(self, s):
        self(s)
        self.nvm += 1
        return self.nvm
    def wait_ds(self, tag):
        n = self.nds - tag
        assert n >= 0
        self(f"s_waitcnt lgkmcnt({min(n, 15)})")
    def wait_vm(self, tag):
        n = self.nvm - tag
        assert n >= 0
        self(f"s_waitcnt vmcnt({min(n, 63)})")
    def nop(self, n):
        while n > 0:
            k = min(n, 16)
            self(f"s_nop {k-1}")
            n -= k
    def srd(self, d, base, size, off=0):
        if off == 0:
            self(f"s_mov_b32 s{d}, s{base}")
            self(f"s_mov_b32 s{d+1}, s{base+1}")
        else:
            self(f"s_add_u32 s{d}, s{base}, {off}")
            self(f"s_addc_u32 s{d+1}, s{base+1}, 0")
        self(f"s_mov_b32 s{d+2}, {size}")
        self(f"s_mov_b32 s{d+3}, 0x00020000")
    def text(self):
        return "\n".join(self.lines) + "\n"

def kernel_header(name):
    return f""".text
.globl {name}
.p2align 8
.type {name},@function
{name}:
"""

def kernel_desc(name, vgpr, sgpr=102):
    acc = (vgpr + 3) // 4 * 4
    return f""".section .rodata,"a"
.p2align 6
.amdhsa_kernel {name}
  .amdhsa_next_free_vgpr {vgpr}
  .amdhsa_next_free_sgpr {sgpr}
  .amdhsa_accum_offset {acc}
  .amdhsa_group_segment_fixed_size 0
  .amdhsa_kernarg_size 128
  .amdhsa_user_sgpr_count 2
  .amdhsa_user_sgpr_kernarg_segment_ptr 1
  .amdhsa_system_sgpr_workgroup_id_x 1
.end_amdhsa_kernel
"""
```

```python
from dsl import *
import gen as G
from gen import QF, KF, VF, KC, XT, GO, WOF, OF, BT, WS_SIZE, X_BYTES

MF32 = "v_mfma_f32_32x32x16_bf16"
MF16 = "v_mfma_f32_16x16x32_bf16"

def gen_k2():
    ST = G.ST
    a = Asm()
    a("s_cmp_ge_u32 s2, 256")
    a("s_cbranch_scc1 K2_END")
    a("s_load_dwordx2 s[8:9], s[0:1], 120")
    a("s_load_dwordx2 s[10:11], s[0:1], 88")
    a("v_lshrrev_b32 v3, 6, v0")
    a("v_and_b32 v1, 63, v0")
    a("v_lshlrev_b32 v2, 4, v1")
    a("v_readfirstlane_b32 s24, v3")
    a("s_and_b32 s25, s2, 7")
    a("s_lshr_b32 s26, s2, 3")
    a("s_nop 1")
    a("s_cmp_ge_u32 s24, 4")
    a("s_cbranch_scc1 K2_CONV")
    Q, O, S, P, KB, VB, NM, MX, T2 = 16, 48, 112, 144, 160, 192, 224, 228, 232
    a("s_lshr_b32 s27, s26, 4")
    a("s_lshl_b32 s28, s25, 1")
    a("s_add_u32 s27, s27, s28")
    a("s_and_b32 s28, s26, 15")
    a("s_lshl_b32 s29, s27, 17")
    a("s_lshl_b32 s30, s24, 15")
    a("s_add_u32 s30, s30, s29")
    a(f"s_add_u32 s31, s30, {VF}")
    a(f"s_add_u32 s30, s30, {KF}")
    a("s_lshl_b32 s32, s28, 13")
    a("s_add_u32 s32, s32, s29")
    for t in range(4):
        a(f"s_xor_b32 s33, s24, {t}")
        a("s_lshl_b32 s33, s33, 11")
        a(f"s_add_u32 s{36+t}, s32, s33")
    a("s_waitcnt lgkmcnt(0)")
    a.srd(12, 8, 32768, "s30")
    a.srd(16, 8, 32768, "s31")
    a.srd(20, 8, WS_SIZE)
    def first_loads():
        for kt in range(4):
            so = "0" if kt < 2 else "s40"
            for f in range(2):
                r = a.vm(f"buffer_load_dwordx4 {vr(KB+8*kt+4*f,4)}, v2, s[12:15], {so} offen offset:{(kt&1)*2048+1024*f}")
            if kt == 0: tag = r
            if kt < 3:
                for f in range(2):
                    a.vm(f"buffer_load_dwordx4 {vr(VB+8*kt+4*f,4)}, v2, s[16:19], {so} offen offset:{(kt&1)*2048+1024*f}")
        return tag
    a("s_movk_i32 s40, 4096")
    for t in range(4):
        for f in range(2):
            a.vm(f"buffer_load_dwordx4 {vr(Q+8*t+4*f,4)}, v2, s[20:23], s{36+t} offen offset:{1024*f}")
    tagk0 = first_loads()
    def zero_acc():
        for r in range(64):
            a(f"v_mov_b32 v{O+r}, 0")
        for r in range(8):
            a(f"v_mov_b32 v{VB+24+r}, 0")
    zero_acc()
    for t in range(4):
        a(f"v_mov_b32 v{NM+t}, 0")
    a("s_mov_b32 s41, 0")
    a("s_mov_b32 s42, 0x07060302")
    for t in range(1, 4):
        a(f"s_xor_b32 s33, s24, {t}")
        a("s_mul_i32 s33, s33, 12288")
        a(f"s_add_u32 s33, s33, {(t-1)*4096}")
        a(f"v_add_u32 v{3+t}, s33, v2")
    a("s_mul_i32 s33, s24, 12288")
    a("v_add_u32 v7, s33, v2")
    a("v_or_b32 v8, 512, v7")
    a("v_lshrrev_b32 v9, 5, v1")
    a("s_mul_i32 s33, s27, 7")
    a("v_add_u32 v9, s33, v9")
    a("v_lshrrev_b32 v10, 1, v9")
    a("v_and_b32 v9, 1, v9")
    a("v_lshlrev_b32 v9, 3, v9")
    a("v_lshl_add_u32 v9, v10, 9, v9")
    a("v_bfe_u32 v10, v1, 2, 2")
    a("v_lshl_add_u32 v9, v10, 7, v9")
    a("v_bfe_u32 v10, v1, 4, 1")
    a("v_lshl_add_u32 v9, v10, 6, v9")
    a("v_and_b32 v10, 3, v1")
    a("v_lshl_add_u32 v9, v10, 4, v9")
    a("s_lshl_b32 s33, s28, 2")
    a("s_add_u32 s33, s33, s24")
    a("s_mul_i32 s43, s33, 28672")
    a(f"s_add_u32 s43, s43, {OF}")
    a.wait_vm(tagk0)
    a("s_mov_b32 exec_lo, 0")
    for t in range(4):
        a(f"v_mov_b32 v{Q+8*t+6}, 0")
        a(f"v_mov_b32 v{Q+8*t+7}, 0")
    a("s_mov_b32 exec_lo, -1")
    TT = [S, S + 16, T2, P]
    for t in range(4):
        a(f"{MF32} {vr(TT[t],16)}, {vr(KB,4)}, {vr(Q+8*t,4)}, 0")
        a(f"{MF32} {vr(TT[t],16)}, {vr(KB+4,4)}, {vr(Q+8*t+4,4)}, {vr(TT[t],16)}")
    a.nop(8)
    for tp in (0, 2):
        for i in range(8):
            for t in (tp, tp + 1):
                if i == 0:
                    a(f"v_max3_f32 v{MX+t}, v{TT[t]}, v{TT[t]+1}, v{TT[t]+2}")
                elif i < 7:
                    a(f"v_max3_f32 v{MX+t}, v{MX+t}, v{TT[t]+2*i+1}, v{TT[t]+2*i+2}")
                else:
                    a(f"v_max_f32 v{MX+t}, v{MX+t}, v{TT[t]+15}")
    a.label("K2_SETMAX")
    for t in range(4):
        a(f"v_mov_b32 v{T2+t}, v{MX+t}")
    for r in range(2):
        a(f"v_mov_b32 v{P+8+r}, 0")
    for t in range(4):
        a(f"v_permlane32_swap_b32 v{T2+t}, v{MX+t}")
    for t in range(4):
        a(f"v_max_f32 v{MX+t}, v{MX+t}, v{T2+t}")
    for t in range(4):
        a(f"v_sub_f32 v{NM+t}, v{NM+t}, v{MX+t}")
    for t in range(4):
        a(f"v_and_b32 v{T2+t}, 0xffff0000, v{NM+t}")
    for t in range(4):
        a(f"v_sub_f32 v{T2+t}, v{NM+t}, v{T2+t}")
    for t in range(4):
        a(f"v_and_b32 v{T2+4+t}, 0xffff0000, v{T2+t}")
    for t in range(4):
        a(f"v_sub_f32 v{T2+4+t}, v{T2+t}, v{T2+4+t}")
    a("s_mov_b32 exec_lo, 0")
    for t in range(4):
        a(f"v_perm_b32 v{Q+8*t+6}, v{T2+t}, v{NM+t}, s42")
        a(f"v_lshrrev_b32 v{Q+8*t+7}, 16, v{T2+4+t}")
    a("s_mov_b32 exec_lo, -1")
    a(f"{MF32} {vr(S,16)}, {vr(KB,4)}, {vr(Q,4)}, 0")
    a(f"{MF32} {vr(S,16)}, {vr(KB+4,4)}, {vr(Q+4,4)}, {vr(S,16)}")
    for r in range(2, 8):
        a(f"v_mov_b32 v{P+8+r}, 0")
    a("s_movk_i32 s44, 8192")
    a("s_movk_i32 s45, 6144")
    a("s_mov_b32 s46, 4")
    a.nop(2)
    a.label("K2_LOOP")
    for n in range(16):
        kt, t = n >> 2, n & 3
        n1 = (n + 1) & 15; kt1, t1 = n1 >> 2, n1 & 3
        n0 = (n - 1) & 15; kt0, t0 = n0 >> 2, n0 & 3
        sc = S + 16 * (n & 1); sn = S + 16 * (n1 & 1)
        pc = P + 8 * (n & 1); pp = P + 8 * (n0 & 1)
        mf = [f"{MF32} {vr(sn,16)}, {vr(KB+8*kt1,4)}, {vr(Q+8*t1,4)}, 0",
              f"{MF32} {vr(sn,16)}, {vr(KB+8*kt1+4,4)}, {vr(Q+8*t1+4,4)}, {vr(sn,16)}",
              f"{MF32} {vr(O+16*t0,16)}, {vr(VB+8*kt0,4)}, {vr(pp,4)}, {vr(O+16*t0,16)}",
              f"{MF32} {vr(O+16*t0,16)}, {vr(VB+8*kt0+4,4)}, {vr(pp+4,4)}, {vr(O+16*t0,16)}"]
        for m in range(4):
            if (m == 0 and t == 3) or (m == 2 and t == 1):
                a("s_waitcnt vmcnt(12)")
            a(mf[m])
            for e in range(4):
                a(f"v_exp_f32 v{sc+4*m+e}, v{sc+4*m+e}")
                if m == 1 and t == 2 and e in (0, 1):
                    a(f"buffer_load_dwordx4 {vr(KB+8*kt+4*e,4)}, v2, s[12:15], s44 offen offset:{1024*e}")
                if m == 1 and t == 2 and e == 2:
                    a("s_addk_i32 s44, 2048")
                if m == 3 and t == 0 and e in (0, 1):
                    a(f"buffer_load_dwordx4 {vr(VB+8*kt0+4*e,4)}, v2, s[16:19], s45 offen offset:{1024*e}")
                if m == 3 and t == 0 and e == 2:
                    a("s_addk_i32 s45, 2048")
                if n == 15 and m == 3 and e == 0:
                    a("s_sub_u32 s46, s46, 1")
                if n == 15 and m == 3 and e == 1:
                    a("s_cmp_lg_u32 s46, 0")
            for c in range(2):
                a(f"v_cvt_pk_bf16_f32 v{pc+2*m+c}, v{sc+4*m+2*c}, v{sc+4*m+2*c+1}")
    a("s_cbranch_scc1 K2_LOOP")
    a("s_nop 0")
    a(f"{MF32} {vr(O+48,16)}, {vr(VB+24,4)}, {vr(P+8,4)}, {vr(O+48,16)}")
    a(f"{MF32} {vr(O+48,16)}, {vr(VB+28,4)}, {vr(P+12,4)}, {vr(O+48,16)}")
    a("v_mov_b32 v3, 0x5f800000")
    a("s_mov_b32 exec_lo, 0")
    for t in range(3):
        a(f"v_cmp_nlt_f32 {sr(48+2*t,2)}, v{O+16*t+12}, v3")
    for t in range(1, 3):
        a(f"v_mov_b32 v{O+16*t+13}, v{NM+t}")
    a("s_mov_b32 exec_lo, -1")
    for t in range(1, 3):
        for q in range(4):
            a(f"ds_write_b128 v{3+t}, {vr(O+16*t+4*q,4)} offset:{1024*q}")
    a("s_mov_b32 exec_lo, 0")
    a(f"v_cmp_nlt_f32 vcc, v{O+48+12}, v3")
    a(f"v_mov_b32 v{O+48+13}, v{NM+3}")
    a("s_mov_b32 exec_lo, -1")
    a("s_or_b32 s49, s49, s51")
    a("s_or_b32 s49, s49, s53")
    a("s_or_b32 s49, s49, vcc_hi")
    a("s_andn2_b32 s49, s49, s41")
    a("s_cbranch_scc1 K2_FALLBACK")
    for q in range(4):
        a(f"ds_write_b128 v6, {vr(O+48+4*q,4)} offset:{1024*q}")
    a(f"v_mov_b32 v{T2}, v{O+12}")
    a(f"v_mov_b32 v{T2+1}, v{O+12}")
    a("s_waitcnt lgkmcnt(0)")
    a("s_barrier")
    LM = T2 + 2
    for s in range(3):
        a(f"ds_read_b64 {vr(LM+2*s,2)}, v8 offset:{4096*s+3072}")
    RB = O + 16
    for s in range(3):
        for q in range(4):
            a(f"ds_read_b128 {vr(RB+16*s+4*q,4)}, v7 offset:{4096*s+1024*q}")
    a(f"v_permlane32_swap_b32 v{T2}, v{T2+1}")
    a("s_waitcnt lgkmcnt(12)")
    a(f"v_min3_f32 v{MX}, v{NM}, v{LM+1}, v{LM+3}")
    a(f"v_min_f32 v{MX}, v{MX}, v{LM+5}")
    a(f"v_sub_f32 v{S}, v{MX}, v{NM}")
    for s in range(3):
        a(f"v_sub_f32 v{S+2+2*s}, v{MX}, v{LM+2*s+1}")
    for s in range(4):
        a(f"v_exp_f32 v{S+2*s}, v{S+2*s}")
    a(f"v_mul_f32 v{MX+1}, v{S}, v{T2+1}")
    for s in range(3):
        a(f"v_fmac_f32 v{MX+1}, v{S+2+2*s}, v{LM+2*s}")
    a(f"v_rcp_f32 v{MX+1}, v{MX+1}")
    a("s_nop 0")
    for s in range(4):
        a(f"v_mul_f32 v{S+2*s}, v{S+2*s}, v{MX+1}")
    for r in range(0, 16, 2):
        a(f"v_pk_mul_f32 {vr(O+r,2)}, {vr(O+r,2)}, {vr(S,2)} op_sel_hi:[1,0]")
    for s in range(3):
        a(f"s_waitcnt lgkmcnt({8-4*s})")
        for r in range(0, 16, 2):
            a(f"v_pk_fma_f32 {vr(O+r,2)}, {vr(RB+16*s+r,2)}, {vr(S+2+2*s,2)}, {vr(O+r,2)} op_sel_hi:[1,0,1]")
    for r in range(0, 16, 2):
        a(f"v_cvt_pk_bf16_f32 v{P+r//2}, v{O+r}, v{O+r+1}")
    for i in range(4):
        if i == 3: a("s_mov_b32 exec_hi, 0")
        a(f"buffer_store_dwordx2 {vr(P+2*i,2)}, v9, s[20:23], s43 offen offset:{512*i}{ST}")
    a("s_endpgm")
    a.label("K2_FALLBACK")
    a("s_mov_b32 s41, -1")
    for t in range(4):
        a(f"v_mov_b32 v{MX+t}, 0xff800000")
    a("s_mov_b32 s44, 0")
    a("s_waitcnt vmcnt(0) lgkmcnt(0)")
    a.label("K2_FBLOOP")
    for f in range(2):
        a(f"buffer_load_dwordx4 {vr(KB+4*f,4)}, v2, s[12:15], s44 offen offset:{1024*f}")
    a("s_waitcnt vmcnt(0)")
    for t in range(4):
        a(f"{MF32} {vr(O+16*t,16)}, {vr(KB,4)}, {vr(Q+8*t,4)}, 0")
        a(f"{MF32} {vr(O+16*t,16)}, {vr(KB+4,4)}, {vr(Q+8*t+4,4)}, {vr(O+16*t,16)}")
    a.nop(16)
    for i in range(8):
        for t in range(4):
            a(f"v_max3_f32 v{MX+t}, v{MX+t}, v{O+16*t+2*i}, v{O+16*t+2*i+1}")
    a("s_addk_i32 s44, 2048")
    a("s_cmp_lt_u32 s44, 32768")
    a("s_cbranch_scc1 K2_FBLOOP")
    first_loads()
    zero_acc()
    a("s_waitcnt vmcnt(0)")
    a("s_branch K2_SETMAX")

    a.label("K2_CONV")
    a("s_cmp_ge_u32 s26, 28")
    a("s_cbranch_scc1 K2_END")
    a("s_setprio 3")
    a("s_sub_u32 s24, s24, 4")
    a("s_lshr_b32 s27, s24, 1")
    a("s_lshl_b32 s28, s26, 1")
    a("s_add_u32 s27, s27, s28")
    a("s_lshl_b32 s28, s27, 3")
    a("s_add_u32 s28, s28, s25")
    a("s_mul_i32 s29, s25, 56")
    a("s_add_u32 s29, s29, s27")
    a("s_and_b32 s30, s24, 1")
    a("s_mul_i32 s31, s24, 13440")
    a("s_add_u32 s31, s31, 49152")
    a("s_lshl_b32 s32, s28, 11")
    a(f"s_add_u32 s32, s32, {KC}")
    a("s_lshl_b32 s33, s29, 4")
    a(f"s_add_u32 s33, s33, {XT}")
    a("s_lshl_b32 s34, s28, 1")
    a("s_and_b32 s34, s34, -4")
    a("v_mul_u32_u24 v3, 28672, v1")
    a("s_waitcnt lgkmcnt(0)")
    a("s_load_dword s35, s[10:11], s34")
    a.srd(20, 8, WS_SIZE)
    C0, C1, W0 = 16, 20, 24
    a(f"buffer_load_dwordx4 {vr(C0,4)}, v2, s[20:23], s32 offen")
    a(f"buffer_load_dwordx4 {vr(C1,4)}, v2, s[20:23], s32 offen offset:1024")
    for q in range(4):
        a(f"s_add_u32 m0, s31, {8320 + (80*q+16)*16}")
        a("s_nop 0")
        a("buffer_load_dwordx4 v3, s[20:23], s33 offen lds")
        if q < 3: a("s_addk_i32 s33, 7168")
    for i in range(4):
        a(f"v_mov_b32 v{W0+i}, 0")
    a("v_lshrrev_b32 v4, 4, v1")
    a("v_and_b32 v5, 15, v1")
    a("v_mul_u32_u24 v6, 1280, v4")
    a("v_lshl_add_u32 v6, v5, 4, v6")
    a("v_add_u32 v6, s31, v6")
    a(f"ds_write_b128 v6, {vr(W0,4)} offset:8320")
    a("v_and_b32 v6, 1, v1")
    a("v_lshlrev_b32 v6, 4, v6")
    a("v_bfe_u32 v7, v1, 1, 1")
    a("v_mul_u32_u24 v7, 4160, v7")
    a("v_add3_u32 v6, v6, v7, s31")
    a(f"ds_write_b128 v6, {vr(W0,4)} offset:4096")
    a("v_sub_u32 v6, 63, v1")
    a("v_lshlrev_b32 v6, 4, v6")
    a("v_add_u32 v6, s31, v6")
    a("v_add_u32 v7, 1, v5")
    a("v_lshrrev_b32 v7, 1, v7")
    a("v_lshlrev_b32 v8, 2, v4")
    a("v_sub_u32 v8, v8, v7")
    a("v_and_b32 v7, 1, v5")
    a("v_mul_u32_u24 v7, 1040, v7")
    a("v_sub_u32 v8, v8, v7")
    a(f"v_add_u32 v8, {1016 + 1040 - 48}, v8")
    a("v_lshlrev_b32 v8, 2, v8")
    a("v_add_u32 v8, s31, v8")
    for i in range(1, 4):
        a(f"v_subrev_u32 v{8+i}, {1024*i}, v8")
    a("s_lshl_b32 s36, s30, 1")
    a("s_add_u32 s37, s36, 2")
    a("v_add_u32 v7, s37, v4")
    a("v_and_b32 v12, 3, v7")
    a("v_mul_u32_u24 v12, 80, v12")
    a("v_lshrrev_b32 v7, 2, v7")
    a("v_add3_u32 v12, v12, v7, v5")
    a("v_lshlrev_b32 v12, 4, v12")
    a(f"s_add_u32 s37, s31, {8320 + (16 - 1 - 3) * 16}")
    a("v_add_u32 v12, s37, v12")
    a("v_lshrrev_b32 v7, 1, v4")
    a("v_add_u32 v7, s36, v7")
    a("v_mul_u32_u24 v13, 80, v7")
    a("v_add_u32 v13, v13, v5")
    a("v_lshlrev_b32 v13, 4, v13")
    a("v_and_b32 v7, 1, v4")
    a("v_lshl_add_u32 v13, v7, 3, v13")
    a(f"s_add_u32 s37, s31, {8320 + 256}")
    a("v_add_u32 v13, s37, v13")
    a("v_lshlrev_b32 v14, 6, v5")
    a("v_lshl_add_u32 v14, v4, 3, v14")
    a("s_lshl_b32 s38, s28, 12")
    a("s_lshl_b32 s37, s30, 5")
    a("s_add_u32 s38, s38, s37")
    a(f"s_add_u32 s38, s38, {BT}")
    a("s_mov_b32 s40, 0x01000100")
    a("s_mov_b32 s41, 0x03020302")
    a("s_mov_b32 s42, 0x01000302")
    a("s_mov_b32 s43, 0x07060100")
    a("s_mov_b32 s44, 0x05040100")
    a("v_and_b32 v7, 1, v1")
    a("v_cmp_eq_u32 vcc, 1, v7")
    a("v_mov_b32 v15, s42")
    a("v_mov_b32 v7, s41")
    a("v_cndmask_b32 v3, v15, v7, vcc")
    a("v_mov_b32 v7, s40")
    a("v_cndmask_b32 v15, v7, v15, vcc")
    ACC = 96
    for r in range(16):
        a(f"v_mov_b32 v{ACC+r}, 0")
    a("s_waitcnt vmcnt(4)")
    a(f"ds_write_b128 v6, {vr(C0,4)} offset:3072")
    w = W0 + 4
    a(f"v_perm_b32 v{w}, v{C0}, v{C1}, s44")
    for i in range(3):
        a(f"v_alignbit_b32 v{w+1+i}, v{C0+1+i}, v{C0+i}, 16")
    a(f"ds_write_b128 v6, {vr(w,4)} offset:{3072+4160}")
    w += 4
    a(f"v_perm_b32 v{w}, v{C1+1}, v{C1+1}, s41")
    a(f"v_perm_b32 v{w+1}, v{C1+1}, v{C1+1}, s40")
    a(f"v_perm_b32 v{w+2}, v{C1}, v{C1+1}, s43")
    a(f"v_perm_b32 v{w+3}, v{C1}, v{C1}, s41")
    a(f"ds_write_b128 v6, {vr(w,4)} offset:2048")
    a(f"v_mov_b32 v{w+4}, v{w}")
    a(f"v_perm_b32 v{w+5}, v{C1+1}, v{C1+1}, s42")
    a(f"v_mov_b32 v{w+6}, v{w+1}")
    a(f"v_mov_b32 v{w+7}, v{w+3}")
    a(f"ds_write_b128 v6, {vr(w+4,4)} offset:{2048+4160}")
    w += 8
    for sl in (2, 3):
        c = C1 + sl
        a(f"v_perm_b32 v{w}, v{c}, v{c}, s41")
        a(f"v_perm_b32 v{w+1}, v{c}, v{c}, v3")
        a(f"v_perm_b32 v{w+2}, v{c}, v{c}, s40")
        a(f"v_perm_b32 v{w+3}, v{c}, v{c}, s40")
        a(f"ds_write_b128 v6, {vr(w,4)} offset:{(3-sl)*1024}")
        a(f"v_mov_b32 v{w+4}, v{w}")
        a(f"v_mov_b32 v{w+5}, v{w}")
        a(f"v_perm_b32 v{w+6}, v{c}, v{c}, v15")
        a(f"v_mov_b32 v{w+7}, v{w+2}")
        a(f"ds_write_b128 v6, {vr(w+4,4)} offset:{(3-sl)*1024+4160}")
        w += 8
    a(f"v_lshrrev_b32 v7, 16, v{C0+3}")
    a("s_mov_b64 exec, 1")
    a(f"ds_write_b32 v6, v7 offset:{4160 + 4096 - 1008}")
    a("s_mov_b64 exec, -1")
    a("s_waitcnt vmcnt(0) lgkmcnt(0)")
    FB = 16
    def loadstep(uu, buf):
        for i in range(4):
            o = (3 - uu) * 16
            a(f"ds_read2_b32 {vr(FB+32*buf+4*i,2)}, v{8+i} offset0:{o} offset1:{o+1}")
            a(f"ds_read2_b32 {vr(FB+32*buf+4*i+2,2)}, v{8+i} offset0:{o+2} offset1:{o+3}")
            a(f"ds_read_b128 {vr(FB+32*buf+16+4*i,4)}, v12 offset:{256*i+(3-uu)*16}")
    loadstep(0, 0)
    a("s_mov_b32 s46, 4")
    a.label("K2_CLOOP")
    for uu in range(4):
        if uu == 3:
            for i in range(4):
                a(f"v_subrev_u32 v{8+i}, 256, v{8+i}")
            a("v_subrev_u32 v12, 64, v12")
        loadstep((uu + 1) & 3, (uu + 1) & 1)
        a("s_waitcnt lgkmcnt(12)")
        b = FB + 32 * (uu & 1)
        for tp in range(4):
            for i in range(4 - tp):
                t = i + tp
                a(f"{MF16} {vr(ACC+4*t,4)}, {vr(b+4*i,4)}, {vr(b+16+4*tp,4)}, {vr(ACC+4*t,4)}")
    a("s_sub_u32 s46, s46, 1")
    a("s_cmp_lg_u32 s46, 0")
    a("s_cbranch_scc1 K2_CLOOP")
    for t in range(4):
        a(f"ds_read_b64 {vr(80+2*t,2)}, v13 offset:{256*t}")
    a("s_and_b32 s33, s28, 1")
    a("s_lshl_b32 s33, s33, 4")
    a("s_lshr_b32 s35, s35, s33")
    a("s_lshl_b32 s35, s35, 16")
    a("s_waitcnt lgkmcnt(0)")
    for t in range(4):
        for i in range(2):
            a(f"v_lshlrev_b32 v{88+2*i}, 16, v{80+2*t+i}")
            a(f"v_and_b32 v{88+2*i+1}, 0xffff0000, v{80+2*t+i}")
        for r in range(4):
            a(f"v_fmac_f32 v{ACC+4*t+r}, s35, v{88+r}")
        for i in range(2):
            a(f"v_cvt_pk_bf16_f32 v{80+2*t+i}, v{ACC+4*t+2*i}, v{ACC+4*t+2*i+1}")
        a(f"buffer_store_dwordx2 {vr(80+2*t,2)}, v14, s[20:23], s38 offen offset:{1024*t}{ST}")
    a.label("K2_END")
    a("s_endpgm")
    return ("k2_kernel", 256, 512, 49152 + 4 * 13440, 256, a.text())

def gen_k3():
    a = Asm()
    a("s_cmp_ge_u32 s2, 224")
    a("s_cbranch_scc1 K3_END")
    a("s_load_dwordx2 s[8:9], s[0:1], 120")
    a("s_load_dwordx2 s[10:11], s[0:1], 104")
    a("v_lshrrev_b32 v3, 6, v0")
    a("v_and_b32 v1, 63, v0")
    a("v_lshlrev_b32 v2, 4, v1")
    a("v_readfirstlane_b32 s24, v3")
    a("v_add_u32 v3, 4096, v2")
    a("s_and_b32 s25, s2, 7")
    a("s_lshr_b32 s26, s2, 3")
    a("s_and_b32 s27, s26, 3")
    a("s_lshl_b32 s25, s25, 2")
    a("s_add_u32 s27, s27, s25")
    a("s_lshr_b32 s28, s26, 2")
    a("s_lshr_b32 s29, s24, 1")
    a("s_lshl_b32 s33, s27, 1")
    a("s_add_u32 s29, s29, s33")
    a("s_and_b32 s30, s24, 1")
    a("s_lshl_b32 s33, s28, 1")
    a("s_add_u32 s30, s30, s33")
    a("s_mul_i32 s33, s24, 7168")
    a(f"s_add_u32 s34, s33, {OF}")
    a(f"s_add_u32 s35, s33, {WOF}")
    a("s_mul_i32 s36, s29, 28672")
    a("s_add_u32 s36, s36, s34")
    a("s_xor_b32 s37, s29, 1")
    a("s_mul_i32 s37, s37, 28672")
    a("s_add_u32 s37, s37, s34")
    a("s_mul_i32 s38, s30, 28672")
    a("s_add_u32 s38, s38, s35")
    a("s_xor_b32 s39, s30, 1")
    a("s_mul_i32 s39, s39, 28672")
    a("s_add_u32 s39, s39, s35")
    a("s_waitcnt lgkmcnt(0)")
    a.srd(20, 8, WS_SIZE)
    F, ACC, BB, GG = 16, 128, 192, 200
    tags = []
    for i in range(7):
        for x in range(4):
            t = a.vm(f"buffer_load_dwordx4 {vr(F+16*i+4*x,4)}, v{2+(i>>2)}, s[20:23], s{36+x} offen offset:{1024*(i&3)}")
        tags.append(t)
    a("v_and_b32 v4, 31, v1")
    a("v_lshrrev_b32 v5, 5, v1")
    a("v_lshlrev_b32 v6, 12, v4")
    a("v_lshl_add_u32 v6, v5, 5, v6")
    a("s_lshl_b32 s33, s30, 17")
    a("s_lshl_b32 s34, s29, 6")
    a("s_add_u32 s33, s33, s34")
    a(f"s_add_u32 s33, s33, {BT}")
    for i in range(2):
        a.vm(f"buffer_load_dwordx4 {vr(BB+4*i,4)}, v6, s[20:23], s33 offen offset:{16*i}")
    a("v_lshlrev_b32 v7, 6, v5")
    a("s_lshl_b32 s34, s29, 7")
    a(f"s_add_u32 s34, s34, {GO}")
    for i in range(4):
        a.vm(f"buffer_load_dwordx4 {vr(GG+4*i,4)}, v7, s[20:23], s34 offen offset:{16*i}")
    a.srd(12, 10, X_BYTES)
    for t in range(1, 4):
        a(f"s_xor_b32 s33, s24, {t}")
        a("s_mul_i32 s33, s33, 12288")
        a(f"s_add_u32 s33, s33, {(t-1)*4096}")
        a(f"v_add_u32 v{7+t}, s33, v2")
    a("s_mul_i32 s33, s24, 12288")
    a("v_add_u32 v11, s33, v2")
    a("v_mul_u32_u24 v12, 14336, v5")
    a("v_lshl_add_u32 v12, v4, 1, v12")
    a("s_mul_i32 s40, s29, 28672")
    a("s_lshl_b32 s33, s30, 6")
    a("s_add_u32 s40, s40, s33")
    for i in range(1, 4):
        a(f"s_add_u32 s{40+i}, s40, {3584*i}")
    for i in range(7):
        a.wait_vm(tags[i])
        for t in (3, 2, 1, 0):
            sa, sb = t >> 1, t & 1
            c = "0" if i == 0 else vr(ACC + 16 * t, 16)
            a(f"{MF32} {vr(ACC+16*t,16)}, {vr(F+16*i+4*sa,4)}, {vr(F+16*i+8+4*sb,4)}, {c}")
    a.nop(9)
    for t in (3, 2, 1):
        for q in range(4):
            a(f"ds_write_b128 v{7+t}, {vr(ACC+16*t+4*q,4)} offset:{1024*q}")
    a("s_waitcnt vmcnt(0)")
    for i in range(8):
        a(f"v_lshlrev_b32 v{F+64+2*i}, 16, v{BB+i}")
        a(f"v_and_b32 v{F+64+2*i+1}, 0xffff0000, v{BB+i}")
    for r in range(0, 16, 2):
        a(f"v_pk_add_f32 {vr(ACC+r,2)}, {vr(ACC+r,2)}, {vr(F+64+r,2)} neg_lo:[0,1] neg_hi:[0,1]")
    a("s_waitcnt lgkmcnt(0)")
    a("s_barrier")
    for s in range(3):
        for q in range(4):
            a(f"ds_read_b128 {vr(F+16*s+4*q,4)}, v11 offset:{4096*s+1024*q}")
    for s in range(3):
        a(f"s_waitcnt lgkmcnt({8-4*s})")
        for r in range(0, 16, 2):
            a(f"v_pk_add_f32 {vr(ACC+r,2)}, {vr(ACC+r,2)}, {vr(F+16*s+r,2)}")
    for r in range(0, 16, 2):
        a(f"v_pk_fma_f32 {vr(ACC+r,2)}, {vr(ACC+r,2)}, {vr(GG+r,2)}, {vr(F+64+r,2)}")
    for r in range(0, 16, 2):
        a(f"v_cvt_pk_bf16_f32 v{F+r//2}, v{ACC+r}, v{ACC+r+1}")
    for r in range(16):
        op = "buffer_store_short_d16_hi" if r & 1 else "buffer_store_short"
        a(f"{op} v{F+r//2}, v12, s[12:15], s{40+(r>>2)} offen offset:{896*(r&3)}")
    a.label("K3_END")
    a("s_endpgm")
    return ("k3_kernel", 224, 256, 49152, 216, a.text())
```

```python
import sys, math
from dsl import *

NAME = "gated_mix__mha_block__ssm_conv_s4__prompt"
QF = 0x000000
KF = 0x200000
VF = 0x400000
KC = 0x600000
XT = 0x700000
GO = 0x8C0000
WOF = 0x8D0000
OF = 0x940000
BT = 0xB00000
WS_SIZE = 0xD00000
X_BYTES = 2048 * 896
W_BYTES = 448 * 2688
LOG2E = 1.4426950408889634
QSCALE = LOG2E * 28 ** -0.5
ST = ""

def cmul(a, d, x, y, phase):
    if phase == 0:
        a(f"v_pk_mul_f32 {vr(d,2)}, {vr(x,2)}, {vr(y,2)} op_sel_hi:[0,1]")
    else:
        a(f"v_pk_fma_f32 {vr(d,2)}, {vr(x,2)}, {vr(y,2)}, {vr(d,2)} op_sel:[1,1,0] op_sel_hi:[1,0,1] neg_lo:[1,0,0]")

def gen_k1():
    a = Asm()
    a("s_cmp_ge_u32 s2, 512")
    a("s_cbranch_scc1 K1_END")
    a("s_load_dwordx4 s[4:7], s[0:1], 0")
    a("s_load_dwordx2 s[8:9], s[0:1], 120")
    a("v_lshrrev_b32 v13, 6, v0")
    a("v_and_b32 v1, 63, v0")
    a("s_cmp_ge_u32 s2, 256")
    a("v_readfirstlane_b32 s24, v13")
    a("s_cbranch_scc1 K1_KG")
    a("s_and_b32 s31, s2, 7")
    a("s_lshr_b32 s32, s2, 3")
    a("s_lshr_b32 s33, s31, 1")
    a("s_lshl_b32 s33, s33, 2")
    a("s_and_b32 s34, s32, 3")
    a("s_add_u32 s25, s33, s34")
    a("s_and_b32 s33, s31, 1")
    a("s_lshl_b32 s33, s33, 3")
    a("s_lshr_b32 s34, s32, 2")
    a("s_add_u32 s26, s33, s34")
    a("s_cmp_eq_u32 s26, 15")
    a("s_cbranch_scc1 K1_WO")
    a("s_mul_i32 s33, s26, 3")
    a("s_min_u32 s34, s33, 25")
    a("s_sub_u32 s33, s33, 2")
    a("s_min_u32 s33, s33, 39")
    a("s_cmp_ge_u32 s26, 10")
    a("s_cselect_b32 s27, s33, s34")
    XR, ACC, WF, XF, SA = 16, 128, 176, 212, 244
    XL = 61440
    a("s_lshl_b32 s33, s25, 2")
    a("s_add_u32 s35, s33, s24")
    a("s_mul_i32 s33, s35, 28672")
    a("v_lshrrev_b32 v13, 3, v1")
    a("v_mul_u32_u24 v13, 896, v13")
    a("v_and_b32 v14, 7, v1")
    a("v_lshl_add_u32 v2, v14, 4, v13")
    a("v_add_u32 v2, s33, v2")
    a("s_mov_b32 s28, 7168")
    a("s_mov_b32 s29, 14336")
    a("s_mov_b32 s30, 21504")
    a("s_mul_i32 s33, s24, 192")
    a("s_lshl_b32 s34, s27, 6")
    for i in range(3):
        a(f"v_add_u32 v13, s33, v1")
        if i: a(f"v_add_u32 v13, {64*i}, v13")
        a("v_mul_u32_u24 v14, 43691, v13")
        a("v_lshrrev_b32 v14, 19, v14")
        a("v_mul_u32_u24 v15, 12, v14")
        a("v_sub_u32 v15, v13, v15")
        a("v_mul_u32_u24 v14, 2688, v14")
        a(f"v_lshl_add_u32 v{3+i}, v15, 4, v14")
        a(f"v_add_u32 v{3+i}, s34, v{3+i}")
        if i: a(f"v_subrev_u32 v{3+i}, {1024*i}, v{3+i}")
    a("s_mul_i32 s36, s24, 3072")
    a("s_mov_b32 s37, 0")
    a("s_waitcnt lgkmcnt(0)")
    a.srd(12, 4, X_BYTES)
    a.srd(16, 6, W_BYTES)
    a.srd(20, 8, WS_SIZE)
    tagx = {}; tagw = {}
    def load_x(s):
        for n in range(4):
            so = "0" if n == 0 else f"s{27+n}"
            tagx[s] = a.vm(f"buffer_load_dwordx4 {vr(XR+(4*s+n)*4,4)}, v2, s[12:15], {so} offen offset:{128*s}")
    def load_w(s):
        a(f"s_add_u32 m0, s36, {(s%5)*12288}")
        a("s_nop 0")
        for i in range(3):
            tagw[s] = a.vm(f"buffer_load_dwordx4 v{3+i}, s[16:19], s37 offen offset:{1024*i} lds")
        a("s_add_u32 s37, s37, 172032")
    for s in range(5):
        load_x(s); load_w(s)
    load_x(5); load_x(6)
    a("s_lshl_b32 s33, s24, 12")
    a(f"s_add_u32 s33, s33, {XL}")
    a("v_lshrrev_b32 v13, 4, v1")
    a("v_and_b32 v14, 7, v1")
    a("v_xor_b32 v13, v13, v14")
    a("v_lshrrev_b32 v14, 3, v1")
    a("v_lshlrev_b32 v14, 7, v14")
    a("v_lshl_add_u32 v6, v13, 4, v14")
    a("v_add_u32 v6, s33, v6")
    a("v_xor_b32 v7, 64, v6")
    a("v_and_b32 v13, 31, v1")
    a("v_bfe_u32 v14, v1, 1, 3")
    a("v_lshrrev_b32 v15, 5, v1")
    a("v_xor_b32 v14, v14, v15")
    a("v_lshlrev_b32 v13, 7, v13")
    a("v_lshl_add_u32 v8, v14, 4, v13")
    a("v_add_u32 v8, s33, v8")
    for ks in range(1, 4):
        a(f"v_xor_b32 v{8+ks}, {32*ks}, v8")
    a("v_bfe_u32 v13, v1, 2, 2")
    a("v_lshl_add_u32 v13, v15, 3, v13")
    a("v_mul_u32_u24 v13, 192, v13")
    a("v_bfe_u32 v14, v1, 4, 1")
    a("v_lshl_add_u32 v13, v14, 5, v13")
    a("v_and_b32 v14, 3, v1")
    a("v_lshl_add_u32 v12, v14, 3, v13")
    a("s_lshl_b32 s38, s35, 11")
    a("s_cmp_ge_u32 s26, 10")
    a("s_cbranch_scc1 K1_V")

    def gemm(vtype):
        nvm0, nds0 = a.nvm, a.nds
        tagtr = {}; tagxf = {}
        def setup(s):
            a.wait_vm(max(tagx[s], tagw[s]))
            for n in range(4):
                a.ds(f"ds_write_b128 v{6+(n&1)}, {vr(XR+(4*s+n)*4,4)} offset:{1024*n}")
            for ks in range(4):
                tagxf[s] = a.ds(f"ds_read_b128 {vr(XF+(s&1)*16+4*ks,4)}, v{8+ks}")
            a("s_barrier")
            if s in (2, 3):
                load_w(s + 3)
        def trload(u):
            s, ks = u >> 2, u & 3
            for t in range(3):
                for hr in range(2):
                    off = (s % 5) * 12288 + (16 * ks + 4 * hr) * 192 + 64 * t
                    tagtr[u] = a.ds(f"ds_read_b64_tr_b16 {vr(WF+(u%3)*12+4*t+2*hr,2)}, v12 offset:{off}")
        setup(0)
        trload(0); trload(1)
        for u in range(28):
            s, ks = u >> 2, u & 3
            if ks == 2 and s < 6:
                setup(s + 1)
            if u + 2 < 28:
                trload(u + 2)
            a.wait_ds(max(tagtr[u], tagxf[s]))
            for t in range(3):
                wf = vr(WF + (u % 3) * 12 + 4 * t, 4); xf = vr(XF + (s & 1) * 16 + 4 * ks, 4)
                c = "0" if u == 0 else vr(ACC + 16 * t, 16)
                if vtype:
                    a(f"v_mfma_f32_32x32x16_bf16 {vr(ACC+16*t,16)}, {xf}, {wf}, {c}")
                else:
                    a(f"v_mfma_f32_32x32x16_bf16 {vr(ACC+16*t,16)}, {wf}, {xf}, {c}")
        return nvm0, nds0

    saved = (a.nvm, a.nds, dict(tagw))
    a("s_lshl_b32 s33, s27, 3")
    a("v_add_u32 v13, s33, v15")
    a("v_and_b32 v14, 31, v1")
    a("v_lshlrev_b32 v14, 4, v14")
    a("v_lshl_add_u32 v14, v13, 8, v14")
    a("v_add_u32 v14, s38, v14")
    a("v_mul_u32_u24 v13, 9363, v13")
    a("s_mov_b32 s33, 129280")
    a("s_movk_i32 s34, -248")
    T1, T2 = WF, WF + 1
    for n in range(12):
        a(f"v_lshrrev_b32 v{T1}, 16, v13")
        a(f"v_xor_b32 v{T2}, v{T1}, v15")
        a(f"v_and_b32 v{T2}, 1, v{T2}")
        a(f"v_mad_u32_u24 v{SA+n}, v{T1}, s33, v14")
        a(f"v_mad_i32_i24 v{SA+n}, v{T2}, s34, v{SA+n}")
        if n < 11:
            a("v_add_u32 v13, 18726, v13")
            a("v_add_u32 v14, 512, v14")
    for t in range(3):
        a(f"s_add_u32 s33, s27, {t}")
        a("s_cmp_lt_u32 s33, 14")
        a(f"s_cselect_b32 s{40+2*t}, {hex(f2u(QSCALE))}, 1.0")
        a(f"s_mov_b32 s{41+2*t}, s{40+2*t}")
    gemm(False)
    for t in range(3):
        if t == 0: a.nop(10)
        for r in range(0, 16, 2):
            a(f"v_pk_mul_f32 {vr(ACC+16*t+r,2)}, {vr(ACC+16*t+r,2)}, {sr(40+2*t,2)}")
        for r in range(0, 16, 2):
            a(f"v_cvt_pk_bf16_f32 v{XR+8*t+r//2}, v{ACC+16*t+r}, v{ACC+16*t+r+1}")
        for i in range(4):
            a(f"buffer_store_dwordx2 {vr(XR+8*t+2*i,2)}, v{SA+4*t+i}, s[20:23], 0 offen{ST}")
    a("s_endpgm")
    a.label("K1_V")
    a.nvm, a.nds = saved[0], saved[1]; tagw.clear(); tagw.update(saved[2])
    a("s_sub_u32 s33, s27, 28")
    a("s_lshl_b32 s33, s33, 5")
    a("v_and_b32 v13, 31, v1")
    a("v_add_u32 v13, s33, v13")
    a(f"s_add_u32 s38, s38, {VF}")
    a("v_lshlrev_b32 v14, 9, v15")
    a("v_add_u32 v14, s38, v14")
    a(f"s_mov_b32 s33, {131072 - 28*16}")
    for t in range(3):
        a(f"v_mul_u32_u24 v{T1}, 2341, v13")
        a(f"v_lshrrev_b32 v{T1}, 16, v{T1}")
        a(f"v_lshl_add_u32 v{T2}, v13, 4, v14")
        a(f"v_mad_u32_u24 v{SA+t}, v{T1}, s33, v{T2}")
        if t < 2: a("v_add_u32 v13, 32, v13")
    gemm(True)
    for t in range(3):
        if t == 0: a.nop(10)
        for r in range(0, 16, 2):
            a(f"v_cvt_pk_bf16_f32 v{XR+8*t+r//2}, v{ACC+16*t+r}, v{ACC+16*t+r+1}")
        for f in range(2):
            a(f"buffer_store_dwordx4 {vr(XR+8*t+4*f,4)}, v{SA+t}, s[20:23], 0 offen offset:{1024*f}{ST}")
    a("s_endpgm")

    a.label("K1_WO")
    a("s_cmp_ge_u32 s25, 14")
    a("s_cbranch_scc1 K1_END")
    a("s_load_dwordx2 s[10:11], s[0:1], 16")
    a("s_mul_i32 s33, s25, 28672")
    a("s_mul_i32 s34, s24, 7168")
    a("s_add_u32 s33, s33, s34")
    a("v_lshlrev_b32 v2, 4, v1")
    a("v_add_u32 v3, 4096, v2")
    a("v_lshrrev_b32 v15, 5, v1")
    a("v_bfe_u32 v13, v1, 2, 2")
    a("v_lshl_add_u32 v13, v15, 3, v13")
    a("v_mul_u32_u24 v13, 896, v13")
    a("v_bfe_u32 v14, v1, 4, 1")
    a("v_lshl_add_u32 v13, v14, 5, v13")
    a("v_and_b32 v14, 3, v1")
    a("v_lshl_add_u32 v12, v14, 3, v13")
    a("s_lshr_b32 s35, s24, 1")
    a("s_and_b32 s36, s24, 1")
    a("s_mul_i32 s37, s35, 14336")
    a("s_mul_i32 s38, s36, 448")
    a("s_add_u32 s37, s37, s38")
    a("v_add_u32 v12, s37, v12")
    a("s_waitcnt lgkmcnt(0)")
    a.srd(12, 10, 448 * 896)
    a.srd(20, 8, WS_SIZE)
    a("s_mov_b32 m0, s34")
    a("s_nop 0")
    for i in range(4):
        a(f"buffer_load_dwordx4 v2, s[12:15], s33 offen offset:{1024*i} lds")
    a("s_add_u32 m0, s34, 4096")
    a("s_nop 0")
    for i in range(3):
        a(f"buffer_load_dwordx4 v3, s[12:15], s33 offen offset:{1024*i} lds")
    a("s_mul_i32 s38, s36, 200704")
    a("s_lshl_b32 s39, s25, 1")
    a("s_add_u32 s39, s39, s35")
    a("s_lshl_b32 s39, s39, 10")
    a("s_add_u32 s38, s38, s39")
    a(f"s_add_u32 s38, s38, {WOF}")
    a("s_waitcnt vmcnt(0)")
    a("s_barrier")
    for i in range(7):
        for hr in range(2):
            a(f"ds_read_b64_tr_b16 {vr(16+4*i+2*hr,2)}, v12 offset:{64*i+4*hr*896}")
    for i in range(7):
        a(f"s_waitcnt lgkmcnt({12-2*i})")
        a(f"buffer_store_dwordx4 {vr(16+4*i,4)}, v2, s[20:23], s38 offen{ST}")
        if i < 6: a("s_add_u32 s38, s38, 28672")
    a("s_endpgm")

    a.label("K1_KG")
    a("s_load_dwordx8 s[40:47], s[0:1], 32")
    a("s_load_dwordx4 s[48:51], s[0:1], 64")
    a("s_load_dwordx2 s[52:53], s[0:1], 80")
    a("s_load_dwordx2 s[54:55], s[0:1], 96")
    a("s_sub_u32 s25, s2, 256")
    a("s_lshr_b32 s33, s24, 1")
    a("s_lshl_b32 s26, s25, 1")
    a("s_add_u32 s26, s26, s33")
    a("s_min_u32 s26, s26, 447")
    a("s_and_b32 s27, s24, 1")
    a("s_lshl_b32 s33, s26, 9")
    a("s_lshl_b32 s34, s27, 8")
    a("s_add_u32 s33, s33, s34")
    a("v_lshlrev_b32 v13, 2, v1")
    a("v_add_u32 v13, s33, v13")
    a("s_lshl_b32 s34, s26, 1")
    a("s_and_b32 s34, s34, -4")
    a("s_waitcnt lgkmcnt(0)")
    a("s_load_dword s28, s[52:53], s34")
    for i in range(6):
        a(f"global_load_dword v{2+i}, v13, {sr(40+2*i,2)}")
    a.srd(20, 8, WS_SIZE)
    a("s_cmp_eq_u32 s27, 0")
    a("s_cbranch_scc1 K1_KG2")
    R = 16
    a.srd(12, 4, X_BYTES)
    a("s_mul_i32 s33, s25, 7168")
    a("s_add_u32 s34, s33, 3584")
    a("v_lshlrev_b32 v14, 4, v1")
    for r in range(8):
        a(f"buffer_load_dwordx4 {vr(R+4*r,4)}, v14, s[12:15], s{33+(r>>2)} offen offset:{896*(r&3)}")
    a("s_cmp_eq_u32 s24, 3")
    a("s_cbranch_scc1 K1_GATE")
    a("v_lshrrev_b32 v15, 3, v1")
    a("v_lshlrev_b32 v15, 17, v15")
    a("v_and_b32 v12, 7, v1")
    a("v_lshl_add_u32 v15, v12, 4, v15")
    a("s_lshr_b32 s35, s25, 2")
    a("s_lshl_b32 s35, s35, 11")
    a("s_and_b32 s36, s25, 3")
    a("s_lshl_b32 s36, s36, 7")
    a("s_add_u32 s35, s35, s36")
    a(f"s_add_u32 s35, s35, {KF + 1024 + 512 + 8}")
    a(f"s_add_u32 s36, s35, {8*131072}")
    a("v_mov_b32 v8, 0x3f803f80")
    a("v_mov_b32 v9, 0x3f80")
    a(f"buffer_store_dwordx2 v[8:9], v15, s[20:23], s35 offen{ST}")
    a(f"buffer_store_dwordx2 v[8:9], v15, s[20:23], s36 offen{ST}")
    for i in range(4):
        a(f"v_mov_b32 v{80+i}, 0x3f803f80")
    a("v_lshlrev_b32 v15, 17, v1")
    a("s_lshl_b32 s35, s25, 9")
    a(f"s_add_u32 s35, s35, {VF + 448}")
    a("s_mov_b64 exec, 0xffff")
    a(f"buffer_store_dwordx4 v[80:83], v15, s[20:23], s35 offen{ST}")
    a("s_mov_b32 exec_lo, -1")
    a("s_mov_b32 exec_hi, 0xffffff")
    a("s_mov_b32 s35, 0x05040100")
    a("s_mov_b32 s36, 0x07060302")
    a(f"s_add_u32 s33, s33, {XT}")
    a(f"s_add_u32 s34, s34, {XT}")
    a("s_waitcnt vmcnt(3)")
    U = 48
    for cc in range(8):
        i, e = cc >> 1, cc & 1
        for q in range(4):
            a(f"v_perm_b32 v{U+4*cc+q}, v{R+4*(2*q+1)+i}, v{R+4*(2*q)+i}, s{35+e}")
        a(f"buffer_store_dwordx4 {vr(U+4*cc,4)}, v14, s[20:23], s{33+(cc>>2)} offen offset:{896*(cc&3)}{ST}")
    a("s_mov_b64 exec, -1")
    a("s_branch K1_KG2")
    a.label("K1_GATE")
    a.srd(16, 54, 896)
    a("buffer_load_dwordx4 v[8:11], v14, s[16:19], 0 offen")
    for r in range(8):
        a(f"v_mov_b32 v{U+r}, 0")
    a("s_mov_b32 exec_hi, 0xffffff")
    a("s_waitcnt vmcnt(0)")
    for i in range(4):
        for r in range(8):
            a(f"v_dot2c_f32_bf16 v{U+r}, v{R+4*r+i}, v{8+i}")
    a("s_mov_b64 exec, -1")
    a.nop(3)
    for sh in ("row_shr:1", "row_shr:2", "row_shr:4", "row_shr:8"):
        for r in range(8):
            a(f"v_add_f32_dpp v{U+r}, v{U+r}, v{U+r} {sh} row_mask:0xf bank_mask:0xf bound_ctrl:0")
    for r in range(8):
        a(f"v_add_f32_dpp v{U+r}, v{U+r}, v{U+r} row_bcast:15 row_mask:0xa bank_mask:0xf")
    for r in range(8):
        a(f"v_add_f32_dpp v{U+r}, v{U+r}, v{U+r} row_bcast:31 row_mask:0xc bank_mask:0xf")
    for r in range(8):
        a(f"v_cvt_pk_bf16_f32 v{U+r}, v{U+r}, v{U+r}")
    for r in range(8):
        a(f"v_and_b32 v{U+r}, 0xffff0000, v{U+r}")
    for r in range(8):
        a(f"v_mul_f32 v{U+r}, {hex(f2u(-LOG2E))}, v{U+r}")
    for r in range(8):
        a(f"v_exp_f32 v{U+r}, v{U+r}")
    for r in range(8):
        a(f"v_add_f32 v{U+r}, 1.0, v{U+r}")
    for r in range(8):
        a(f"v_rcp_f32 v{U+r}, v{U+r}")
    for r in range(8):
        a(f"v_cvt_pk_bf16_f32 v{U+r}, v{U+r}, v{U+r}")
    for r in range(8):
        a(f"v_and_b32 v{U+r}, 0xffff0000, v{U+r}")
    a("v_mov_b32 v15, 0")
    a("s_lshl_b32 s35, s25, 5")
    a(f"s_add_u32 s35, s35, {GO}")
    a("s_mov_b32 exec_lo, 0")
    a("s_mov_b32 exec_hi, 0x80000000")
    a(f"buffer_store_dwordx4 {vr(U,4)}, v15, s[20:23], s35 offen{ST}")
    a(f"buffer_store_dwordx4 {vr(U+4,4)}, v15, s[20:23], s35 offen offset:16{ST}")
    a("s_mov_b64 exec, -1")
    a.label("K1_KG2")
    a("s_cmp_ge_u32 s25, 224")
    a("s_cbranch_scc1 K1_END")
    TS = 272; TW = 64 * TS
    YB, XB, KACC, FR, CT = 16, 80, 136, 152, 216
    Z1, Z256, TM = 224, 226, 228
    a(f"s_mul_i32 s29, s24, {TW}")
    a("s_mov_b32 m0, s29")
    a("v_mov_b32 v15, 0x3f80")
    a(f"ds_write_addtid_b32 v15 offset:{32*TS}")
    a("v_and_b32 v12, 31, v1")
    a(f"v_mul_u32_u24 v12, {TS}, v12")
    a("v_lshrrev_b32 v13, 5, v1")
    a("v_lshl_add_u32 v12, v13, 4, v12")
    a("v_add_u32 v240, s29, v12")
    for r in range(16):
        a(f"v_mov_b32 v{KACC+r}, 0")
    a("s_waitcnt lgkmcnt(0)")
    a("s_and_b32 s33, s26, 1")
    a("s_lshl_b32 s33, s33, 4")
    a("s_lshr_b32 s28, s28, s33")
    a("s_lshl_b32 s28, s28, 16")
    l2e_hi = LOG2E; import numpy as np
    hi = float(np.float32(LOG2E)); lo = float(np.float32(LOG2E - hi))
    a(f"v_mov_b32 v13, {hex(f2u(hi))}")
    a("v_mul_f32 v14, s28, v13")
    a("v_fma_f32 v13, s28, v13, -v14")
    a(f"v_mov_b32 v15, {hex(f2u(lo))}")
    a("v_fmac_f32 v13, s28, v15")
    a("v_exp_f32 v14, v14")
    a(f"v_mul_f32 v13, {hex(f2u(math.log(2)))}, v13")
    a("v_fmac_f32 v14, v14, v13")
    a("v_cvt_pk_bf16_f32 v14, v14, v14")
    a("v_and_b32 v14, 0xffff0000, v14")
    a(f"s_mov_b32 s34, {hex(f2u(LOG2E))}")
    a(f"s_mov_b32 s35, {hex(f2u(1/(2*math.pi)))}")
    a("s_mov_b32 s30, 2")
    a("s_waitcnt vmcnt(0)")
    a.label("K1_PASS")
    for i in range(6):
        a(f"v_and_b32 v{8+i}, 0xffff0000, v{2+i}")
    for i in range(6):
        a(f"v_lshlrev_b32 v{2+i}, 16, v{2+i}")
    r1 = [0, 0, 2, 4, 4, 4, 6, 8, 8]
    P = {}
    for r in range(9): P[(0, r)] = r; P[(1, r)] = 256 + r1[r]
    for i, e in enumerate((0, 4, 8)): P[(0, 9 + i)] = 512 + e; P[(1, 9 + i)] = 768 + e
    for i, e in enumerate((0, 8)):
        P[(0, 12 + i)] = 1024 + e; P[(1, 12 + i)] = 1280 + e; P[(0, 14 + i)] = 1536 + e; P[(1, 14 + i)] = 1792 + e
    plist = sorted(set(P.values()))
    assert len(plist) == 28
    xreg = {p: XB + 2 * i for i, p in enumerate(plist)}
    rows_of = {p: [8 * (r >> 2) + 4 * h + (r & 3) for (h, r), pp in P.items() if pp == p] for p in plist}
    yreg = {j: YB + 2 * j for j in range(1, 32)}
    a("v_pk_mul_f32 v[8:9], v[8:9], v[14:15] op_sel_hi:[1,0]")
    cmul(a, xreg[0], 12, 10, 0)
    a("v_pk_mul_f32 v[8:9], v[8:9], s[34:35]")
    cmul(a, xreg[0], 12, 10, 1)
    a(f"v_mul_f32 v{TM+2}, 0x41000000, v8")
    a(f"v_mul_f32 v{TM+3}, 0x41000000, v9")
    a(f"v_mul_f32 v{TM+4}, 0x43800000, v8")
    a(f"v_mul_f32 v{TM+5}, 0x43800000, v9")
    a(f"v_pk_mul_f32 {vr(xreg[0],2)}, {vr(xreg[0],2)}, v[14:15] op_sel_hi:[1,0]")
    anchors = [(8, Z1), (TM + 2, yreg[1]), (TM + 4, Z256)]
    for s_, d_ in anchors:
        a(f"v_fract_f32 v{s_+1}, v{s_+1}")
        a(f"v_exp_f32 v{s_}, v{s_}")
    for s_, d_ in anchors:
        a(f"v_cos_f32 v{d_}, v{s_+1}")
        a(f"v_sin_f32 v{d_+1}, v{s_+1}")
    a("s_nop 0")
    for s_, d_ in anchors:
        a(f"v_pk_mul_f32 {vr(d_,2)}, {vr(d_,2)}, {vr(s_,2)} op_sel_hi:[1,0]")
    ops = []
    ops += [(("Y", 2), ("Y", 1), ("Y", 1)), (("Y", 3), ("Y", 2), ("Y", 1)), (("Y", 4), ("Y", 2), ("Y", 2))]
    ops += [(("Y", 4 + k), ("Y", 4), ("Y", k)) for k in (4, 1, 2, 3)]
    ops += [(("Y", 8 + k), ("Y", 8), ("Y", k)) for k in (8, 1, 2, 3, 4, 5, 6, 7)]
    ops += [(("Y", 16 + k), ("Y", 16), ("Y", k)) for k in range(1, 16)]
    xo = [(("X", 8), ("X", 0), ("Y", 1))]
    xo += [(("X", e + 1), ("X", e), ("Z", 1)) for e in range(7)]
    for base, es in ((256, (0, 8, 4, 2, 6)), (512, (0, 8, 4)), (768, (0, 8, 4)), (1024, (0, 8)), (1280, (0, 8)), (1536, (0, 8)), (1792, (0, 8))):
        xo += [(("X", base + e), ("X", base - 256 + e), ("Z", 256)) for e in es]
    def reg(n):
        return {"Y": yreg, "X": xreg, "Z": {1: Z1, 256: Z256}}[n[0]][n[1]]
    done = {("Y", 1), ("X", 0), ("Z", 1), ("Z", 256)}
    allops = xo + ops
    users = {}
    def height(n, memo={}):
        if n in memo: return memo[n]
        h = 0
        for (d, x, y) in allops:
            if x == n or y == n: h = max(h, 1 + height(d))
        memo[n] = h
        return h
    pending = sorted(allops, key=lambda o: -height(o[0]))
    towrite = [("Y", 1), ("X", 0)]
    ct = [0]
    def emit_write(n):
        t = CT + (ct[0] % 8); ct[0] += 1
        r = reg(n)
        if n[0] == "Y":
            a(f"v_cvt_pk_bf16_f32 v{t}, v{r}, v{r+1}")
            a(f"ds_write_addtid_b32 v{t} offset:{(32+n[1])*TS}")
        else:
            a(f"v_cvt_pk_bf16_f32 v{t}, v{r}, -v{r+1}")
            for m in rows_of[n[1]]:
                a(f"ds_write_addtid_b32 v{t} offset:{m*TS}")
    while pending:
        batch = [o for o in pending if o[1] in done and o[2] in done][:4]
        for o in batch: pending.remove(o)
        for (d, x, y) in batch: cmul(a, reg(d), reg(x), reg(y), 0)
        w = towrite; towrite = []
        for n in w[:2]: emit_write(n)
        for (d, x, y) in batch: cmul(a, reg(d), reg(x), reg(y), 1)
        for n in w[2:]: emit_write(n)
        for (d, x, y) in batch:
            done.add(d); towrite.append(d)
    for n in towrite: emit_write(n)
    for ks in range(8):
        a(f"ds_read_b128 {vr(FR+8*ks,4)}, v240 offset:{32*ks}")
        a(f"ds_read_b128 {vr(FR+8*ks+4,4)}, v240 offset:{32*TS+32*ks}")
    for ks in range(8):
        a(f"s_waitcnt lgkmcnt({14-2*ks})")
        a(f"v_mfma_f32_32x32x16_bf16 {vr(KACC,16)}, {vr(FR+8*ks,4)}, {vr(FR+8*ks+4,4)}, {vr(KACC,16)}")
    a("s_sub_u32 s30, s30, 1")
    a("s_cmp_lg_u32 s30, 0")
    a("s_cbranch_scc1 K1_PASS")
    a("s_or_b32 s33, s24, 1")
    a(f"s_mul_i32 s33, s33, {TW}")
    a("v_lshlrev_b32 v13, 4, v1")
    a("v_add_u32 v12, s33, v13")
    a("s_cmp_eq_u32 s27, 0")
    a("s_cbranch_scc1 K1_EVEN")
    a.nop(8)
    for q in range(4):
        a(f"ds_write_b128 v12, {vr(KACC+4*q,4)} offset:{1024*q}")
    a("s_waitcnt lgkmcnt(0)")
    a("s_barrier")
    a("s_endpgm")
    a.label("K1_EVEN")
    a("s_lshl_b32 s33, s26, 11")
    a(f"s_add_u32 s33, s33, {KC}")
    a("s_barrier")
    for q in range(4):
        a(f"ds_read_b128 {vr(FR+4*q,4)}, v12 offset:{1024*q}")
    a("s_waitcnt lgkmcnt(0)")
    for r in range(0, 16, 2):
        a(f"v_pk_add_f32 {vr(KACC+r,2)}, {vr(KACC+r,2)}, {vr(FR+r,2)}")
    for i in range(4):
        a(f"v_cvt_pk_bf16_f32 v{CT+i}, v{KACC+7-2*i}, v{KACC+6-2*i}")
    for i in range(4):
        a(f"v_cvt_pk_bf16_f32 v{CT+4+i}, v{KACC+8+2*i}, v{KACC+9+2*i}")
    a(f"buffer_store_dwordx4 {vr(CT,4)}, v13, s[20:23], s33 offen{ST}")
    a(f"buffer_store_dwordx4 {vr(CT+4,4)}, v13, s[20:23], s33 offen offset:1024{ST}")
    a.label("K1_END")
    a("s_endpgm")
    return a.text()

HEADER = open("cdna_kernels/" + NAME + ".s.ref").read().split("; Override launch geometry")[0]

def build(kernels):
    out = HEADER
    for (name, grid, block, lds, vg, body) in kernels:
        out += f"; @launch kernel={name} grid=({grid},1,1) block=({block},1,1) lds={lds}\n"
    out += '.amdgcn_target "amdgcn-amd-amdhsa--gfx950"\n'
    for (name, grid, block, lds, vg, body) in kernels:
        out += kernel_header(name) + body
    for (name, grid, block, lds, vg, body) in kernels:
        out += kernel_desc(name, vg)
    return out

if __name__ == "__main__":
    ks = [("k1_kernel", 512, 256, 77824, 256, gen_k1())]
    try:
        from gen23 import gen_k2, gen_k3
        ks.append(gen_k2()); ks.append(gen_k3())
    except ImportError:
        pass
    dst = sys.argv[1] if len(sys.argv) > 1 else "cdna_kernels/" + NAME + ".s"
    open(dst, "w").write(build(ks))
```

```python
import struct

def f2u(x):
    return struct.unpack("<I", struct.pack("<f", x))[0]

def vr(b, n=1):
    return f"v{b}" if n == 1 else f"v[{b}:{b+n-1}]"

def sr(b, n=1):
    return f"s{b}" if n == 1 else f"s[{b}:{b+n-1}]"

class Asm:
    def __init__(self):
        self.lines = []
        self.nds = 0
        self.nvm = 0
    def __call__(self, s):
        for l in s.split("\n"):
            l = l.strip()
            if l:
                self.lines.append("    " + l)
    def label(self, l):
        self.lines.append(l + ":")
    def raw(self, s):
        self.lines.append(s)
    def comment(self, s):
        self.lines.append("    ; " + s)
    def ds(self, s):
        self(s)
        self.nds += 1
        return self.nds
    def vm(self, s):
        self(s)
        self.nvm += 1
        return self.nvm
    def wait_ds(self, tag):
        n = self.nds - tag
        assert n >= 0
        self(f"s_waitcnt lgkmcnt({min(n, 15)})")
    def wait_vm(self, tag):
        n = self.nvm - tag
        assert n >= 0
        self(f"s_waitcnt vmcnt({min(n, 63)})")
    def nop(self, n):
        while n > 0:
            k = min(n, 16)
            self(f"s_nop {k-1}")
            n -= k
    def srd(self, d, base, size, off=0):
        if off == 0:
            self(f"s_mov_b32 s{d}, s{base}")
            self(f"s_mov_b32 s{d+1}, s{base+1}")
        else:
            self(f"s_add_u32 s{d}, s{base}, {off}")
            self(f"s_addc_u32 s{d+1}, s{base+1}, 0")
        self(f"s_mov_b32 s{d+2}, {size}")
        self(f"s_mov_b32 s{d+3}, 0x00020000")
    def stamp(self, idx):
        import os
        if not os.environ.get("STAMP"): return
        self(f"s_memtime s[96:97]")
        self(f"s_memrealtime s[98:99]")
        self("s_waitcnt lgkmcnt(0)")
        self(f"v_writelane_b32 v254, s96, {2*idx}")
        self(f"v_writelane_b32 v254, s98, {2*idx+1}")
    def stamp_flush(self, ws_pair, wave_sgpr="s24", waves=4):
        import os
        if not os.environ.get("STAMP"): return
        self("s_mov_b32 exec_lo, -1")
        self("s_mov_b32 exec_hi, 0")
        self(f"s_mul_i32 s96, s2, {waves}")
        self(f"s_add_u32 s96, s96, {wave_sgpr}")
        self("s_lshl_b32 s96, s96, 7")
        self(f"s_add_u32 s96, s96, {0xD00000}")
        self(f"s_add_u32 s98, s{ws_pair}, s96")
        self(f"s_addc_u32 s99, s{ws_pair+1}, 0")
        self("v_mbcnt_lo_u32_b32 v0, -1, 0")
        self("v_lshlrev_b32 v0, 2, v0")
        self("global_store_dword v0, v254, s[98:99]")
    def text(self):
        return "\n".join(self.lines) + "\n"

def kernel_header(name):
    return f""".text
.globl {name}
.p2align 8
.type {name},@function
{name}:
"""

def kernel_desc(name, vgpr, sgpr=102):
    acc = (vgpr + 3) // 4 * 4
    return f""".section .rodata,"a"
.p2align 6
.amdhsa_kernel {name}
  .amdhsa_next_free_vgpr {vgpr}
  .amdhsa_next_free_sgpr {sgpr}
  .amdhsa_accum_offset {acc}
  .amdhsa_group_segment_fixed_size 0
  .amdhsa_kernarg_size 128
  .amdhsa_user_sgpr_count 2
  .amdhsa_user_sgpr_kernarg_segment_ptr 1
  .amdhsa_system_sgpr_workgroup_id_x 1
.end_amdhsa_kernel
"""
```

```python
import sys, math, os
import numpy as np
from dsl import *

NAME = "gated_mix__mha_block__ssm_conv_s4__prompt"
KTS = 28672; VTS = 32256; XTS = 7296
KF = 0x000000
VF = 0x200000
XT = 0x400000
GO = 0x5D0000
WOF = 0x5E0000
OF = 0x660000
BT = 0x860000
FL = 0xA40000
F_KV = FL
F_O = FL + 64 * 128
F_XT = FL + 192 * 128
F_G = FL + 256 * 128
F_B = FL + 320 * 128
F_WO = FL + 336 * 128
WS_SIZE = 0xA50000
X_BYTES = 2048 * 896
W_BYTES = 448 * 2688
LOG2E = 1.4426950408889634
QSCALE = LOG2E * 28 ** -0.5
MF32 = "v_mfma_f32_32x32x16_bf16"
MF16 = "v_mfma_f32_16x16x32_bf16"
SC = " sc1"
NON = 60
POLLMAX = 40000
EXP = os.environ.get("EXP", "")
DEPTH = int(os.environ.get("DEPTH", "3"))
SETK = int(os.environ.get("SETK", "1"))
P_X, P_W, P_WO, P_PAR, P_LDT, P_DSK, P_GW, P_OUT, P_DBG, P_WS = 64, 66, 68, 72, 84, 86, 88, 90, 92, 94
VZ = 255

def fin(a, idx):
    if not os.environ.get("STAMP"): return
    a("s_waitcnt vmcnt(0)")
    a.stamp(idx)
    a.stamp_flush(P_WS)

def cmul(a, d, x, y, phase):
    if phase == 0:
        a(f"v_pk_mul_f32 {vr(d,2)}, {vr(x,2)}, {vr(y,2)} op_sel_hi:[0,1]")
    else:
        a(f"v_pk_fma_f32 {vr(d,2)}, {vr(x,2)}, {vr(y,2)}, {vr(d,2)} op_sel:[1,1,0] op_sel_hi:[1,0,1] neg_lo:[1,0,0]")

uid = [0]
def nonce_issue(a, v):
    uid[0] += 1; u = uid[0]
    a("s_cmp_lg_u32 s24, 0")
    a(f"s_cbranch_scc1 NI{u}")
    a(f"global_load_dword v{v}, v{VZ}, {sr(P_DBG,2)}{os.environ.get('NSC', ' sc1')}")
    a.label(f"NI{u}")

def nonce_take(a, v):
    uid[0] += 1; u = uid[0]
    a("s_cmp_lg_u32 s24, 0")
    a(f"s_cbranch_scc1 ND{u}")
    a(f"s_mov_b32 s62, {POLLMAX}")
    a.label(f"NT{u}")
    a(f"v_readfirstlane_b32 s{NON}, v{v}")
    a("s_nop 1")
    a(f"s_cmp_lg_u32 s{NON}, 0")
    a(f"s_cbranch_scc1 ND{u}")
    a("s_sub_u32 s62, s62, 1")
    a(f"s_cbranch_scc1 ND{u}")
    a("s_sleep 8")
    a(f"global_load_dword v{v}, v{VZ}, {sr(P_DBG,2)} sc1")
    a("s_waitcnt vmcnt(0)")
    a(f"s_branch NT{u}")
    a.label(f"ND{u}")

def cnt_load(a, vd, soff):
    a(f"v_mov_b32 v{vd}, 0")
    a("s_mov_b64 exec, 1")
    t = a.vm(f"buffer_atomic_add v{vd}, v{VZ}, s[20:23], {soff} offen sc0 sc1")
    a("s_mov_b64 exec, -1")
    return t

def cnt_wait(a, vd, soff, target, sleep=1):
    uid[0] += 1; u = uid[0]
    a(f"s_mov_b32 s62, {POLLMAX}")
    a.label(f"FC{u}")
    a(f"v_readfirstlane_b32 s4, v{vd}")
    a("s_nop 1")
    a(f"s_cmp_eq_u32 s4, {target}")
    a(f"s_cbranch_scc1 FD{u}")
    a("s_sub_u32 s62, s62, 1")
    a(f"s_cbranch_scc1 FD{u}")
    a(f"s_sleep {sleep}")
    n0 = a.nvm
    cnt_load(a, vd, soff)
    a.nvm = n0
    a("s_waitcnt vmcnt(0)")
    a(f"s_branch FC{u}")
    a.label(f"FD{u}")

def cnt_add(a, vt, soff, va=None, mask="1"):
    a(f"v_mov_b32 v{vt}, 1")
    a(f"s_mov_b64 exec, {mask}")
    a.vm(f"buffer_atomic_add v{vt}, v{VZ if va is None else va}, s[20:23], {soff} offen sc1")
    a("s_mov_b64 exec, -1")

def late_load(a, vd, va):
    a("s_mov_b64 exec, 7")
    a(f"buffer_load_dword v{vd}, v{va}, s[20:23], 0 offen sc1")
    a("s_mov_b64 exec, -1")

def late_check(a, vd, va, vtgt):
    uid[0] += 1; u = uid[0]
    a(f"s_mov_b32 s62, {POLLMAX}")
    a.label(f"FC{u}")
    a(f"v_cmp_ne_u32 vcc, v{vd}, v{vtgt}")
    a("s_nop 1")
    a("s_and_b32 s4, vcc_lo, 7")
    a(f"s_cbranch_scc0 FD{u}")
    a("s_sub_u32 s62, s62, 1")
    a(f"s_cbranch_scc1 FD{u}")
    a("s_sleep 16")
    late_load(a, vd, va)
    a("s_waitcnt vmcnt(0)")
    a(f"s_branch FC{u}")
    a.label(f"FD{u}")

RAW = 244
XRW = 232

def gen_entry(a):
    a("s_cmp_ge_u32 s2, 512")
    a("s_cbranch_scc1 L_END")
    a.stamp(0)
    a("s_load_dwordx16 s[64:79], s[0:1], 0")
    a("s_load_dwordx16 s[80:95], s[0:1], 64")
    a("v_lshrrev_b32 v13, 6, v0")
    a("v_and_b32 v1, 63, v0")
    a("v_lshlrev_b32 v2, 4, v1")
    a(f"v_mov_b32 v{VZ}, 0")
    a("v_readfirstlane_b32 s24, v13")
    a("s_and_b32 s31, s2, 7")
    a("s_bfe_u32 s32, s2, 0x50003")
    a("s_cmp_ge_u32 s2, 256")
    a("s_cbranch_scc1 L_A")
    a("s_and_b32 s27, s24, 1")
    a("s_cmp_ge_u32 s32, 28")
    a("s_cbranch_scc1 L_C")
    a("s_setprio 3")
    a("s_lshl_b32 s39, s32, 1")
    a("s_lshr_b32 s34, s24, 1")
    a("s_add_u32 s26, s39, s34")
    a("s_lshl_b32 s26, s26, 3")
    a("s_add_u32 s26, s26, s31")
    a("s_lshl_b32 s33, s26, 9")
    a("s_lshl_b32 s34, s27, 8")
    a("s_add_u32 s33, s33, s34")
    a("v_lshlrev_b32 v3, 2, v1")
    a("v_add_u32 v13, s33, v3")
    a("s_lshl_b32 s34, s26, 1")
    a("s_and_b32 s34, s34, -4")
    a("s_add_u32 s45, s2, s24")
    a("v_lshlrev_b32 v4, 7, v1")
    a(f"s_mov_b32 s33, {FL}")
    a("s_waitcnt lgkmcnt(0)")
    a.srd(20, P_WS, WS_SIZE)
    a("s_cmp_lg_u32 s45, 0")
    a("s_cbranch_scc1 E_NOINIT")
    for i in range(6):
        a(f"buffer_store_dword v{VZ}, v4, s[20:23], s33 offen sc1")
        if i < 5: a("s_addk_i32 s33, 8192")
    a.label("E_NOINIT")
    for i in range(6):
        a(f"global_load_dword v{RAW+i}, v13, {sr(P_PAR+2*i,2)}")
    a(f"s_load_dword s28, {sr(P_LDT,2)}, s34")
    a(f"s_load_dword s38, {sr(P_DSK,2)}, s34")
    a("s_cmp_lg_u32 s45, 0")
    a("s_cbranch_scc1 L_B")
    a("v_mov_b32 v4, 1")
    a("s_waitcnt vmcnt(6)")
    a("s_mov_b64 exec, 1")
    a(f"global_store_dword v{VZ}, v4, {sr(P_DBG,2)} sc1")
    a("s_mov_b64 exec, -1")
    a("s_branch L_B")

def gen_A(a):
    a.label("L_A")
    if "noA" in EXP: a("s_endpgm")
    a("s_setprio 2")
    a("s_lshr_b32 s33, s31, 1")
    a("s_lshl_b32 s33, s33, 2")
    a("s_and_b32 s34, s32, 3")
    a("s_add_u32 s25, s33, s34")
    a("s_and_b32 s27, s31, 1")
    a("s_lshr_b32 s54, s32, 2")
    a("s_lshl_b32 s33, s27, 3")
    a("s_add_u32 s26, s33, s54")
    XR, ACC, QACC, WF, NV, PK, T = 16, 128, 160, 176, 248, 224, 240
    XL = 32768
    a("s_lshl_b32 s33, s25, 2")
    a("s_add_u32 s35, s33, s24")
    a("s_mul_i32 s33, s35, 28672")
    a("v_lshrrev_b32 v13, 3, v1")
    a("v_mul_u32_u24 v12, 896, v13")
    a("v_and_b32 v14, 7, v1")
    a("v_lshrrev_b32 v15, 4, v1")
    a("v_xor_b32 v15, v15, v14")
    a("v_lshl_add_u32 v3, v15, 4, v12")
    a("v_add_u32 v3, s33, v3")
    a("v_xor_b32 v246, 64, v3")
    a(f"v_add_u32 v244, {6144}, v246")
    a(f"v_add_u32 v245, {6144*2}, v3")
    a(f"v_add_u32 v246, {6144*3}, v246")
    a("s_mul_i32 s40, s24, 12288")
    a(f"s_add_u32 s40, s40, {XL}")
    a("s_lshl_b32 s33, s34, 1")
    a("s_add_u32 s28, s33, s54")
    a("s_sub_u32 s33, s28, 7")
    a("s_cmp_ge_u32 s28, 7")
    a("s_cselect_b32 s28, s33, s28")
    if "norot" in EXP: a("s_mov_b32 s28, 0")
    a("s_mov_b32 s30, s28")
    a("v_bfe_u32 v15, v1, 4, 1")
    a("v_lshlrev_b32 v15, 2, v15")
    a("v_xor_b32 v15, v15, v14")
    a("v_mul_u32_u24 v4, 2688, v13")
    a("v_lshl_add_u32 v4, v15, 4, v4")
    a("s_min_u32 s55, s54, 6")
    a("s_mul_i32 s33, s24, 43008")
    a("s_mul_i32 s34, s27, 896")
    a("s_add_u32 s33, s33, s34")
    a("s_lshl_b32 s34, s55, 7")
    a("s_add_u32 s33, s33, s34")
    a("s_add_u32 s33, s33, 896")
    a("v_add_u32 v4, s33, v4")
    a(f"v_add_u32 v5, {21504-1024}, v4")
    a("s_lshl_b32 s36, s24, 11")
    a("s_waitcnt lgkmcnt(0)")
    a.stamp(1)
    a.srd(12, P_X, X_BYTES)
    a.srd(16, P_W, W_BYTES)
    def adv(r):
        a(f"s_add_u32 s{r}, s{r}, 1")
        a(f"s_cmp_eq_u32 s{r}, 7")
        a(f"s_cselect_b32 s{r}, 0, s{r}")
    QD = int(os.environ.get("QD", "14"))
    L = []
    for s_ in range(7):
        L += [("x", s_, 0), ("x", s_, 1), ("x", s_, 2), ("x", s_, 3), ("w", s_, 0), ("w", s_, 1)]
    L += [("n", 0, 0)] + [("q", i, 0) for i in range(7)]
    tag = {}; tagxf = {}
    lp = [0]; lastbar = [-1]; xfree = [-1]; light = [False]
    def issue():
        if lp[0] >= len(L): return
        while light[0] and L[lp[0]][0] == "w": lp[0] += 1
        k, s_, n = L[lp[0]]
        need = {"x": s_ - 3, "q": 4 + (s_ >> 2)}.get(k, -1)
        if need > xfree[0]: return
        if k == "w" and s_ >= 4 and lastbar[0] < s_ - 2: return
        lp[0] += 1
        if k == "x":
            if n == 0:
                if s_: adv(28)
                a(f"s_add_u32 m0, s40, {(s_%3)*4096}")
                a("s_lshl_b32 s29, s28, 7")
                a("s_mul_i32 s37, s28, 172032")
            tag[(k, s_, n)] = a.vm(f"buffer_load_dwordx4 v{3 if n == 0 else 243+n}, s[12:15], s29 offen offset:{1024*n} lds")
        elif k == "w":
            if n == 0:
                a(f"s_add_u32 m0, s36, {(s_%4)*8192}")
                a("s_nop 0")
            tag[(k, s_, n)] = a.vm(f"buffer_load_dwordx4 v{4+n}, s[16:19], s37 offen offset:{1024*n} lds")
        elif k == "n":
            nonce_issue(a, NV)
        else:
            a(f"s_add_u32 m0, s40, {4096 + 1024*s_}")
            a("s_mul_i32 s39, s30, 172032")
            a.vm(f"buffer_load_dwordx4 v14, s[16:19], s39 offen lds")
            if s_ < 6: adv(30)
    LSL = int(os.environ.get("LSL", "24"))
    if LSL:
        a("s_cmp_lg_u32 s54, 7")
        a("s_cbranch_scc1 A_GO")
        a(f"s_sleep {LSL}")
        a.label("A_GO")
    for _ in range(QD): issue()
    if "stopA" in EXP: a.stamp(7)
    a.srd(20, P_WS, WS_SIZE)
    if "Aload" in EXP:
        a("s_waitcnt vmcnt(0)"); a("s_endpgm")
    a("v_and_b32 v13, 31, v1")
    a("v_bfe_u32 v14, v1, 1, 3")
    a("v_lshrrev_b32 v15, 5, v1")
    a("v_xor_b32 v14, v14, v15")
    a("v_lshlrev_b32 v13, 7, v13")
    a("v_lshl_add_u32 v8, v14, 4, v13")
    a("v_add_u32 v8, s40, v8")
    for ks in range(1, 4):
        a(f"v_xor_b32 v{8+ks}, {32*ks}, v8")
    a(f"v_bfe_u32 v{T}, v1, 2, 2")
    a(f"v_lshl_add_u32 v{T+1}, v15, 3, v{T}")
    a(f"v_bfe_u32 v{T+2}, v1, 4, 1")
    a(f"v_and_b32 v{T+3}, 3, v1")
    a(f"v_lshl_add_u32 v{PK}, v{T+2}, 2, v{T+3}")
    a(f"v_and_b32 v{PK+1}, 1, v1")
    a(f"v_bfe_u32 v{PK+2}, v1, 1, 1")
    a(f"v_lshl_add_u32 v{PK+1}, v{PK+1}, 1, v{PK+2}")
    a(f"v_lshl_add_u32 v{PK+1}, v{T+2}, 2, v{PK+1}")
    a(f"v_bfe_u32 v{T+3}, v1, 3, 1")
    a(f"v_lshlrev_b32 v{T+3}, 6, v{T+3}")
    a(f"v_lshl_add_u32 v{T+3}, v{T+1}, 7, v{T+3}")
    a("s_cmp_eq_u32 s27, 1")
    a("s_cselect_b64 vcc, -1, 0")
    a(f"v_cndmask_b32 v12, v{PK+1}, v{PK}, vcc")
    a(f"v_lshl_add_u32 v12, v12, 3, v{T+3}")
    a("v_xor_b32 v13, 64, v12")
    a(f"v_add_u32 v{PK+2}, 2, v{PK+1}")
    a(f"v_sub_u32 v{PK+3}, 7, v{PK+1}")
    a(f"v_cmp_gt_u32 vcc, 6, v{PK+1}")
    a("s_bitcmp1_b32 s26, 0")
    a("s_cselect_b64 s[4:5], -1, 0")
    a(f"v_cndmask_b32 v{PK+2}, v{PK+3}, v{PK+2}, vcc")
    a(f"v_cndmask_b32 v{PK+2}, v{PK+1}, v{PK+2}, s[4:5]")
    a(f"v_lshlrev_b32 v15, 6, v{T+1}")
    a(f"v_lshl_add_u32 v15, v{PK+2}, 3, v15")
    a(f"v_add_u32 v15, {XL + 4096}, v15")
    a("v_lshrrev_b32 v14, 2, v1")
    a("v_mul_u32_u24 v14, 2688, v14")
    a(f"v_and_b32 v{T}, 3, v1")
    a(f"v_lshl_add_u32 v14, v{T}, 4, v14")
    a("s_mul_i32 s33, s26, 56")
    a("s_and_b32 s33, s33, -16")
    a(f"s_mul_i32 s34, s24, {16*2688}")
    a("s_add_u32 s33, s33, s34")
    a("v_add_u32 v14, s33, v14")
    a("s_mul_i32 s33, s54, 2341")
    a("s_lshr_b32 s33, s33, 10")
    a(f"v_add_u32 v{PK}, s33, v1")
    a(f"v_mul_u32_u24 v{PK+1}, 28, v{PK}")
    a(f"v_lshrrev_b32 v{PK+1}, 6, v{PK+1}")
    a(f"v_cmp_ge_u32 s[56:57], s54, v{PK+1}")
    a(f"v_lshlrev_b32 v243, 9, v{PK}")
    a("s_lshr_b32 s42, s25, 2")
    a("s_lshl_b32 s42, s42, 7")
    a(f"s_add_u32 s42, s42, {F_KV}")
    a("s_and_b64 s[56:57], s[56:57], 15")
    a("s_cmp_eq_u32 s54, 7")
    a("s_cbranch_scc1 A_LIGHT")
    a("s_cmp_eq_u32 s27, 1")
    a("s_cbranch_scc1 A_V")

    def pass1(vtype):
        tagtr = {}
        NB = 6; TD = 3
        NIS = int(os.environ.get("NIS", "2"))
        def trload(u):
            s, ks = u >> 2, u & 3
            for t in range(2):
                for hr in range(2):
                    off = (s % 4) * 8192 + (16 * ks + 4 * hr) * 128
                    tagtr[u] = a.ds(f"ds_read_b64_tr_b16 {vr(WF+(u%NB)*8+4*t+2*hr,2)}, v{12+t} offset:{off}")
        pend = None
        for u in range(-4, 28):
            if u >= 0:
                a.wait_ds(max(tagtr[u], tagxf[u >> 2]))
                for t in range(2):
                    wf = vr(WF + (u % NB) * 8 + 4 * t, 4); xf = vr(XR + 4 * u, 4)
                    c = "0" if u == 0 else vr(ACC + 16 * t, 16)
                    if vtype:
                        a(f"{MF32} {vr(ACC+16*t,16)}, {xf}, {wf}, {c}")
                    else:
                        a(f"{MF32} {vr(ACC+16*t,16)}, {wf}, {xf}, {c}")
            if (u + TD) % 4 == 0 and (u + TD) // 4 < 7:
                sb = (u + TD) // 4
                a.wait_vm(tag[("w", sb, 1)])
                a("s_barrier")
                lastbar[0] = sb
                if sb in (0, 6): a.stamp(2 + sb // 6)
            if pend is not None:
                a.wait_ds(tagxf[pend]); xfree[0] = pend; pend = None
            if 0 <= u + TD < 28:
                trload(u + TD)
            if u % 4 == 0 and u // 4 + 1 < 7:
                s = u // 4 + 1
                a.wait_vm(tag[("x", s, 3)])
                for ks in range(4):
                    tagxf[s] = a.ds(f"ds_read_b128 {vr(XR+16*s+4*ks,4)}, v{8+ks} offset:{(s%3)*4096}")
                pend = s
            for _ in range(NIS): issue()
        assert lp[0] == len(L), lp
    saved = (a.nvm, a.nds, lp[0])
    a("v_mov_b32 v247, v2")
    a(f"s_mul_i32 s38, s35, {KTS}")
    a("s_lshl_b32 s33, s55, 12")
    a("s_add_u32 s38, s38, s33")
    a("s_add_u32 s41, s38, 1024")
    a("s_add_u32 s43, s38, 2048")
    a("s_add_u32 s44, s38, 3072")
    pass1(False)
    a("s_branch A_ST")
    a.label("A_V")
    a.nvm, a.nds, lp[0] = saved; lastbar[0] = -1; xfree[0] = -1
    a("v_lshrrev_b32 v247, 5, v1")
    a(f"v_mul_u32_u24 v247, {8064-512}, v247")
    a("v_add_u32 v247, v247, v2")
    a(f"s_mul_i32 s38, s35, {VTS}")
    a("s_mul_i32 s33, s55, 1152")
    a("s_add_u32 s38, s38, s33")
    a(f"s_add_u32 s38, s38, {VF}")
    a("s_add_u32 s41, s38, 16128")
    a("s_add_u32 s43, s38, 512")
    a("s_add_u32 s44, s41, 512")
    a(f"v_lshrrev_b32 v{T}, 1, v1")
    a(f"v_mul_u32_u24 v{T}, 8064, v{T}")
    a(f"v_and_b32 v{T+1}, 1, v1")
    a(f"v_lshl_add_u32 v{T}, v{T+1}, 4, v{T}")
    a(f"v_subrev_u32 v{T+1}, 1, v{T+1}")
    for i in range(4):
        a(f"v_and_b32 v{PK+i}, 0x3f803f80, v{T+1}")
    a("s_mov_b64 exec, 0xff")
    a(f"buffer_store_dwordx4 {vr(PK,4)}, v{T}, s[20:23], s38 offen offset:1024{SC}")
    a("s_mov_b64 exec, -1")
    pass1(True)
    a.label("A_ST")
    a.nop(11)
    for t in range(2):
        for r in range(0, 16, 2):
            a(f"v_cvt_pk_bf16_f32 v{PK+8*t+r//2}, v{ACC+16*t+r}, v{ACC+16*t+r+1}")
        for f in range(2):
            a(f"buffer_store_dwordx4 {vr(PK+8*t+4*f,4)}, v247, s[20:23], s{(38,41,43,44)[2*t+f]} offen{SC}")
    a("s_waitcnt vmcnt(4)")
    a("s_branch A_P2")
    a.label("A_LIGHT")
    a.nvm, a.nds, lp[0] = saved; xfree[0] = -1; light[0] = True
    for _ in range(6): issue()
    for s_ in range(7):
        a.wait_vm(tag[("x", s_, 3)])
        for ks in range(4):
            a.ds(f"ds_read_b128 {vr(XR+16*s_+4*ks,4)}, v{8+ks} offset:{(s_%3)*4096}")
        a("s_waitcnt lgkmcnt(0)")
        xfree[0] = s_
        for _ in range(6): issue()
    assert lp[0] == len(L)
    a("s_waitcnt vmcnt(0)")
    a.label("A_P2")
    a.stamp(4)
    a("s_barrier")
    tq = {}
    def trq(u):
        for hr in range(2):
            tq[u] = a.ds(f"ds_read_b64_tr_b16 {vr(WF+(u%8)*4+2*hr,2)}, v15 offset:{(u&3)*12288+(u>>2)*1024+256*hr}")
    for u in range(6): trq(u)
    nonce_take(a, NV)
    for u in range(28):
        if u + 6 < 28: trq(u + 6)
        a.wait_ds(tq[u])
        c = "0" if u == 0 else vr(QACC, 16)
        a(f"{MF32} {vr(QACC,16)}, {vr(WF+(u%8)*4,4)}, {vr(XR+4*u,4)}, {c}")
    a("s_waitcnt vmcnt(0)")
    a("s_barrier")
    a("s_cmp_eq_u32 s54, 7")
    a("s_cselect_b32 s33, 1, s24")
    a("s_cmp_lg_u32 s33, 0")
    a("s_cbranch_scc1 A_NOPUB")
    cnt_add(a, NV, "s42", 243, "s[56:57]")
    a.label("A_NOPUB")
    a.stamp(5)
    if "stopA" in EXP:
        fin(a, 6); a("s_endpgm")
    Q, O, S, P, KB, VB, NM, MX, T2 = 16, 48, 112, 144, 160, 192, 224, 228, 232
    VK0, VK1, VV0, VV1, C1, C2 = 10, 11, 12, 13, 252, 253
    a("s_mul_i32 s33, s26, 28")
    a("s_lshr_b32 s44, s33, 6")
    a("s_add_u32 s34, s33, 27")
    a("s_lshr_b32 s34, s34, 6")
    a("s_sub_u32 s34, s34, s44")
    a("s_lshl_b32 s34, s34, 3")
    a("s_add_u32 s58, s34, 8")
    a("v_lshrrev_b32 v4, 5, v1")
    a("s_lshl_b32 s34, s26, 9")
    a("s_lshl_b32 s36, s24, 7")
    a("s_add_u32 s34, s34, s36")
    a(f"s_add_u32 s53, s34, {F_KV}")
    a(f"s_mov_b32 s46, {hex(f2u(QSCALE))}")
    a("s_mov_b32 s47, s46")
    for r in range(0, 16, 2):
        a(f"v_pk_mul_f32 {vr(QACC+r,2)}, {vr(QACC+r,2)}, s[46:47]")
    for r in range(0, 16, 2):
        a(f"v_cvt_pk_bf16_f32 v{Q+r//2}, v{QACC+r}, v{QACC+r+1}")
    a("s_mov_b32 exec_lo, 0")
    a(f"v_mov_b32 v{Q+6}, 0")
    a(f"v_mov_b32 v{Q+7}, 0")
    a("s_mov_b32 exec_lo, -1")
    a("s_lshl_b32 s36, s24, 11")
    a("v_add_u32 v6, s36, v2")
    for f in range(2):
        a(f"ds_write_b128 v6, {vr(Q+4*f,4)} offset:{1024*f}")
    a("s_lshr_b32 s34, s26, 1")
    a("s_mul_i32 s34, s34, 3584")
    a("s_and_b32 s36, s26, 1")
    a("s_lshl_b32 s37, s36, 11")
    a("s_add_u32 s34, s34, s37")
    a(f"v_add_u32 v{VK0}, s34, v2")
    a(f"v_add_u32 v{VK1}, 1024, v{VK0}")
    a(f"s_mul_i32 s37, s36, {2048-8}")
    a("s_mov_b32 exec_lo, 0")
    a(f"v_subrev_u32 v{VK1}, s37, v{VK1}")
    a("s_mov_b32 exec_lo, -1")
    a("v_and_b32 v5, 31, v1")
    a("v_add_u32 v7, s33, v5")
    a("v_lshrrev_b32 v8, 6, v7")
    a("v_lshlrev_b32 v8, 7, v8")
    a(f"v_lshl_add_u32 v{VV0}, v7, 4, v8")
    a("s_mul_i32 s34, s44, 1152")
    a("s_add_u32 s34, s34, 1024")
    a("s_add_u32 s37, s34, 16")
    a("s_mov_b32 exec_lo, 0x10000000")
    a("s_mov_b32 exec_hi, 0x10000000")
    a(f"v_mov_b32 v{VV0}, s34")
    a("s_mov_b32 exec_lo, 0xe0000000")
    a("s_mov_b32 exec_hi, 0xe0000000")
    a(f"v_mov_b32 v{VV0}, s37")
    a("s_mov_b64 exec, -1")
    a("s_movk_i32 s34, 8064")
    a(f"v_mad_u32_u24 v{VV0}, v4, s34, v{VV0}")
    a(f"v_add_u32 v{VV1}, 16128, v{VV0}")
    a(f"s_mul_i32 s34, s24, {16*KTS}")
    a(f"s_mul_i32 s37, s24, {16*VTS}")
    a(f"s_add_u32 s37, s37, {VF}")
    a.srd(12, P_WS, 16 * KTS, "s34")
    a.srd(16, P_WS, 16 * VTS, "s37")
    a(f"v_mov_b32 v{C1}, 0x3f803f80")
    a(f"v_mov_b32 v{C2}, 0x3f80")
    a("s_waitcnt lgkmcnt(0)")
    a("s_barrier")
    for t in range(1, 4):
        a(f"v_xor_b32 v5, {2048*t}, v6")
        for f in range(2):
            a(f"ds_read_b128 {vr(Q+8*t+4*f,4)}, v5 offset:{1024*f}")
    def zero_acc():
        for r in range(64):
            a(f"v_mov_b32 v{O+r}, 0")
        for r in range(8):
            a(f"v_mov_b32 v{VB+24+r}, 0")
    cnt_load(a, NV + 2, "s53")
    zero_acc()
    for t in range(4):
        a(f"v_mov_b32 v{NM+t}, 0")
    a("s_mov_b32 s41, 0")
    a("s_mov_b32 s42, 0x07060302")
    a("s_min_u32 s33, s32, 27")
    a("s_and_b32 s34, s33, 3")
    a("s_lshl_b32 s47, s31, 2")
    a("s_add_u32 s47, s47, s34")
    a("s_lshr_b32 s48, s33, 2")
    a("s_lshr_b32 s49, s24, 1")
    a("s_lshl_b32 s33, s47, 1")
    a("s_add_u32 s49, s49, s33")
    a("s_and_b32 s50, s24, 1")
    a("s_lshl_b32 s33, s48, 1")
    a("s_add_u32 s50, s50, s33")
    a("v_bfe_u32 v5, v1, 2, 2")
    a("v_lshlrev_b32 v9, 7, v5")
    a("v_bfe_u32 v5, v1, 4, 1")
    a("v_lshl_add_u32 v9, v5, 6, v9")
    a("v_and_b32 v5, 3, v1")
    a("v_lshl_add_u32 v9, v5, 4, v9")
    a("v_lshl_add_u32 v9, v4, 9, v9")
    for t in range(1, 4):
        a(f"s_xor_b32 s33, s24, {t}")
        a("s_mul_i32 s33, s33, 12288")
        a(f"s_add_u32 s33, s33, {(t-1)*4096}")
        a(f"v_add_u32 v{3+t}, s33, v2")
    a("s_mul_i32 s33, s24, 12288")
    a("v_add_u32 v7, s33, v2")
    a("v_or_b32 v8, 512, v7")
    a("s_lshl_b32 s33, s35, 4")
    a("s_add_u32 s33, s33, s26")
    a("s_lshl_b32 s43, s33, 11")
    a(f"s_add_u32 s43, s43, {OF}")
    a("s_lshr_b32 s51, s35, 1")
    a("s_lshl_b32 s51, s51, 9")
    a("s_lshr_b32 s33, s26, 2")
    a("s_lshl_b32 s33, s33, 7")
    a("s_add_u32 s51, s51, s33")
    a(f"s_add_u32 s51, s51, {F_O}")
    a("s_lshl_b32 s33, s50, 7")
    a(f"s_add_u32 s33, s33, {F_B}")
    a("v_mov_b32 v14, s33")
    a("v_mov_b32 v15, 64")
    a("s_lshl_b32 s33, s49, 7")
    a(f"s_add_u32 s33, s33, {F_G}")
    a("v_writelane_b32 v14, s33, 1")
    a("v_writelane_b32 v15, 2, 1")
    a("s_lshl_b32 s33, s24, 7")
    a(f"s_add_u32 s33, s33, {F_WO}")
    a("v_writelane_b32 v14, s33, 2")
    a("v_writelane_b32 v15, 16, 2")
    a("s_waitcnt vmcnt(0) lgkmcnt(0)")
    cnt_wait(a, NV + 2, "s53", "s58")
    a.stamp(6)
    def first_loads():
        a("s_mov_b32 s44, 0")
        a("s_mov_b32 s45, 0")
        for kt in range(4):
            for f in range(2):
                r = a.vm(f"buffer_load_dwordx4 {vr(KB+8*kt+4*f,4)}, v{VK0+f}, s[12:15], s44 offen{SC}")
            a(f"s_addk_i32 s44, {KTS}")
            if kt == 0: tag = r
            if kt < 3:
                for f in range(2):
                    a.vm(f"buffer_load_dwordx4 {vr(VB+8*kt+4*f,4)}, v{VV0+f}, s[16:19], s45 offen{SC}")
                a(f"s_addk_i32 s45, {VTS}")
        return tag
    def patch(kb):
        a(f"v_mov_b32_dpp v{kb+6}, v{C1} quad_perm:[0,1,2,3] row_mask:0xc bank_mask:0xf")
        a(f"v_mov_b32_dpp v{kb+7}, v{C2} quad_perm:[0,1,2,3] row_mask:0xc bank_mask:0xf")
    tagk0 = first_loads()
    a.wait_vm(tagk0)
    a.stamp(7)
    TT = [S, S + 16, T2, P]
    patch(KB)
    a("s_nop 0")
    for t in range(4):
        a(f"{MF32} {vr(TT[t],16)}, {vr(KB,4)}, {vr(Q+8*t,4)}, 0")
        a(f"{MF32} {vr(TT[t],16)}, {vr(KB+4,4)}, {vr(Q+8*t+4,4)}, {vr(TT[t],16)}")
    a.nop(8)
    for tp in (0, 2):
        for i in range(8):
            for t in (tp, tp + 1):
                if i == 0:
                    a(f"v_max3_f32 v{MX+t}, v{TT[t]}, v{TT[t]+1}, v{TT[t]+2}")
                elif i < 7:
                    a(f"v_max3_f32 v{MX+t}, v{MX+t}, v{TT[t]+2*i+1}, v{TT[t]+2*i+2}")
                else:
                    a(f"v_max_f32 v{MX+t}, v{MX+t}, v{TT[t]+15}")
    a.label("A_SETMAX")
    for t in range(4):
        a(f"v_mov_b32 v{T2+t}, v{MX+t}")
    for r in range(2):
        a(f"v_mov_b32 v{P+8+r}, 0")
    for t in range(4):
        a(f"v_permlane32_swap_b32 v{T2+t}, v{MX+t}")
    for t in range(4):
        a(f"v_max_f32 v{MX+t}, v{MX+t}, v{T2+t}")
    for t in range(4):
        a(f"v_sub_f32 v{NM+t}, v{NM+t}, v{MX+t}")
    for t in range(4):
        a(f"v_and_b32 v{T2+t}, 0xffff0000, v{NM+t}")
    for t in range(4):
        a(f"v_sub_f32 v{T2+t}, v{NM+t}, v{T2+t}")
    for t in range(4):
        a(f"v_and_b32 v{T2+4+t}, 0xffff0000, v{T2+t}")
    for t in range(4):
        a(f"v_sub_f32 v{T2+4+t}, v{T2+t}, v{T2+4+t}")
    a("s_mov_b32 exec_lo, 0")
    for t in range(4):
        a(f"v_perm_b32 v{Q+8*t+6}, v{T2+t}, v{NM+t}, s42")
        a(f"v_lshrrev_b32 v{Q+8*t+7}, 16, v{T2+4+t}")
    a("s_mov_b32 exec_lo, -1")
    a(f"{MF32} {vr(S,16)}, {vr(KB,4)}, {vr(Q,4)}, 0")
    a(f"{MF32} {vr(S,16)}, {vr(KB+4,4)}, {vr(Q+4,4)}, {vr(S,16)}")
    for r in range(2, 8):
        a(f"v_mov_b32 v{P+8+r}, 0")
    a("s_mov_b32 s46, 4")
    a("s_setprio 0")
    a.nop(3)
    a.label("A_LOOP")
    for n in range(16):
        kt, t = n >> 2, n & 3
        n1 = (n + 1) & 15; kt1, t1 = n1 >> 2, n1 & 3
        n0 = (n - 1) & 15; kt0, t0 = n0 >> 2, n0 & 3
        sc = S + 16 * (n & 1); sn = S + 16 * (n1 & 1)
        pc = P + 8 * (n & 1); pp = P + 8 * (n0 & 1)
        mf = [f"{MF32} {vr(sn,16)}, {vr(KB+8*kt1,4)}, {vr(Q+8*t1,4)}, 0",
              f"{MF32} {vr(sn,16)}, {vr(KB+8*kt1+4,4)}, {vr(Q+8*t1+4,4)}, {vr(sn,16)}",
              f"{MF32} {vr(O+16*t0,16)}, {vr(VB+8*kt0,4)}, {vr(pp,4)}, {vr(O+16*t0,16)}",
              f"{MF32} {vr(O+16*t0,16)}, {vr(VB+8*kt0+4,4)}, {vr(pp+4,4)}, {vr(O+16*t0,16)}"]
        for m in range(4):
            if (m == 0 and t == 3) or (m == 2 and t == 1):
                a("s_waitcnt vmcnt(12)")
            a(mf[m])
            if m == 0 and t == 3:
                patch(KB + 8 * kt1)
            for e in range(4):
                a(f"v_exp_f32 v{sc+4*m+e}, v{sc+4*m+e}")
                if m == 1 and t == 2 and e in (0, 1):
                    a(f"buffer_load_dwordx4 {vr(KB+8*kt+4*e,4)}, v{VK0+e}, s[12:15], s44 offen{SC}")
                if m == 1 and t == 2 and e == 2:
                    a(f"s_addk_i32 s44, {KTS}")
                if m == 3 and t == 0 and e in (0, 1):
                    a(f"buffer_load_dwordx4 {vr(VB+8*kt0+4*e,4)}, v{VV0+e}, s[16:19], s45 offen{SC}")
                if m == 3 and t == 0 and e == 2:
                    a(f"s_addk_i32 s45, {VTS}")
                if n == 0 and m == 3 and e == 3:
                    a("s_cmp_lg_u32 s46, 1")
                    a("s_cbranch_scc1 A_NOFL")
                    late_load(a, 248, 14)
                    a.label("A_NOFL")
                if n == 15 and m == 3 and e == 0:
                    a("s_sub_u32 s46, s46, 1")
                if n == 15 and m == 3 and e == 1:
                    a("s_cmp_lg_u32 s46, 0")
            for c in range(2):
                a(f"v_cvt_pk_bf16_f32 v{pc+2*m+c}, v{sc+4*m+2*c}, v{sc+4*m+2*c+1}")
    a("s_cbranch_scc1 A_LOOP")
    a.stamp(8)
    a("s_nop 0")
    a(f"{MF32} {vr(O+48,16)}, {vr(VB+24,4)}, {vr(P+8,4)}, {vr(O+48,16)}")
    a(f"{MF32} {vr(O+48,16)}, {vr(VB+28,4)}, {vr(P+12,4)}, {vr(O+48,16)}")
    a("v_mov_b32 v3, 0x5f800000")
    a("s_mov_b32 exec_lo, 0")
    for t in range(3):
        a(f"v_cmp_nlt_f32 {sr(4+2*t,2)}, v{O+16*t+12}, v3")
    for t in range(1, 3):
        a(f"v_mov_b32 v{O+16*t+13}, v{NM+t}")
    a("s_mov_b32 exec_lo, -1")
    for t in range(1, 3):
        for q in range(4):
            a(f"ds_write_b128 v{3+t}, {vr(O+16*t+4*q,4)} offset:{1024*q}")
    a("s_mov_b32 exec_lo, 0")
    a(f"v_cmp_nlt_f32 vcc, v{O+48+12}, v3")
    a(f"v_mov_b32 v{O+48+13}, v{NM+3}")
    a("s_mov_b32 exec_lo, -1")
    a("s_or_b32 s5, s5, s7")
    a("s_or_b32 s5, s5, s9")
    a("s_or_b32 s5, s5, vcc_hi")
    a("s_andn2_b32 s5, s5, s41")
    a("s_cbranch_scc1 A_FALLBACK")
    for q in range(4):
        a(f"ds_write_b128 v6, {vr(O+48+4*q,4)} offset:{1024*q}")
    a(f"v_mov_b32 v{T2}, v{O+12}")
    a(f"v_mov_b32 v{T2+1}, v{O+12}")
    a("v_add_u32 v10, 4096, v2")
    a("s_lshl_b32 s33, s24, 13")
    a(f"s_add_u32 s33, s33, {WOF}")
    a("s_lshl_b32 s36, s50, 15")
    a("s_add_u32 s36, s36, s33")
    a("s_xor_b32 s37, s50, 1")
    a("s_lshl_b32 s37, s37, 15")
    a("s_add_u32 s37, s37, s33")
    a("v_lshrrev_b32 v11, 5, v1")
    a("v_lshlrev_b32 v12, 6, v11")
    a("s_lshl_b32 s38, s49, 7")
    a(f"s_add_u32 s38, s38, {GO}")
    a("v_and_b32 v13, 31, v1")
    a("v_lshlrev_b32 v3, 12, v13")
    a("v_lshl_add_u32 v3, v11, 4, v3")
    a("s_lshl_b32 s39, s50, 17")
    a("s_lshr_b32 s34, s49, 4")
    a("s_lshl_b32 s34, s34, 10")
    a("s_add_u32 s39, s39, s34")
    a("s_and_b32 s34, s49, 15")
    a("s_lshl_b32 s34, s34, 5")
    a("s_add_u32 s39, s39, s34")
    a(f"s_add_u32 s39, s39, {BT}")
    a("s_waitcnt lgkmcnt(0)")
    a("s_barrier")
    LM = T2 + 2
    for s in range(3):
        a(f"ds_read_b64 {vr(LM+2*s,2)}, v8 offset:{4096*s+3072}")
    RB = O + 16
    for s in range(3):
        for q in range(4):
            a(f"ds_read_b128 {vr(RB+16*s+4*q,4)}, v7 offset:{4096*s+1024*q}")
    a(f"v_permlane32_swap_b32 v{T2}, v{T2+1}")
    a("s_waitcnt lgkmcnt(12)")
    a(f"v_min3_f32 v{MX}, v{NM}, v{LM+1}, v{LM+3}")
    a(f"v_min_f32 v{MX}, v{MX}, v{LM+5}")
    a(f"v_sub_f32 v{S}, v{MX}, v{NM}")
    for s in range(3):
        a(f"v_sub_f32 v{S+2+2*s}, v{MX}, v{LM+2*s+1}")
    for s in range(4):
        a(f"v_exp_f32 v{S+2*s}, v{S+2*s}")
    a(f"v_mul_f32 v{MX+1}, v{S}, v{T2+1}")
    for s in range(3):
        a(f"v_fmac_f32 v{MX+1}, v{S+2+2*s}, v{LM+2*s}")
    a(f"v_rcp_f32 v{MX+1}, v{MX+1}")
    a("s_nop 0")
    for s in range(4):
        a(f"v_mul_f32 v{S+2*s}, v{S+2*s}, v{MX+1}")
    for r in range(0, 16, 2):
        a(f"v_pk_mul_f32 {vr(O+r,2)}, {vr(O+r,2)}, {vr(S,2)} op_sel_hi:[1,0]")
    for s in range(3):
        a(f"s_waitcnt lgkmcnt({8-4*s})")
        for r in range(0, 16, 2):
            a(f"v_pk_fma_f32 {vr(O+r,2)}, {vr(RB+16*s+r,2)}, {vr(S+2+2*s,2)}, {vr(O+r,2)} op_sel_hi:[1,0,1]")
    for r in range(0, 16, 2):
        a(f"v_cvt_pk_bf16_f32 v{P+r//2}, v{O+r}, v{O+r+1}")
    a("s_mov_b32 exec_lo, 0")
    a(f"v_mov_b32 v{P+6}, 0")
    a(f"v_mov_b32 v{P+7}, 0")
    a("s_mov_b32 exec_lo, -1")
    a.nvm = 0
    for f in range(2):
        tagos = a.vm(f"buffer_store_dwordx4 {vr(P+4*f,4)}, v9, s[20:23], s43 offen offset:{1024*f}{SC}")
    a.stamp(9)
    a("s_barrier")
    late_check(a, 248, 14, 15)
    WB, GG, BB = KB, Q, Q + 16
    NPRE = int(os.environ.get("NPRE", "4"))
    def wo_load(i):
        for x in range(2):
            a.vm(f"buffer_load_dwordx4 {vr(WB+8*i+4*x,4)}, v{2 if i<4 else 10}, s[20:23], s{36+x} offen offset:{1024*(i&3)}{SC}")
    for i in range(NPRE): wo_load(i)
    a("s_lshl_b32 s52, s47, 9")
    a("s_lshl_b32 s33, s24, 7")
    a("s_add_u32 s52, s52, s33")
    a(f"s_add_u32 s52, s52, {F_O}")
    a.wait_vm(tagos)
    cnt_add(a, 252, "s51")
    a("s_cmp_ge_u32 s32, 28")
    a("s_cbranch_scc1 L_END")
    for i in range(NPRE, 8): wo_load(i)
    for i in range(4):
        a.vm(f"buffer_load_dwordx4 {vr(GG+4*i,4)}, v12, s[20:23], s38 offen offset:{16*i}{SC}")
    for i in range(2):
        a.vm(f"buffer_load_dwordx4 {vr(BB+4*i,4)}, v3, s[20:23], s39 offen offset:{512*i}{SC}")
    cnt_load(a, 250, "s52")
    a("s_lshl_b32 s33, s24, 13")
    a(f"s_add_u32 s33, s33, {OF}")
    a("s_lshl_b32 s36, s49, 15")
    a("s_add_u32 s36, s36, s33")
    a("s_xor_b32 s37, s49, 1")
    a("s_lshl_b32 s37, s37, 15")
    a("s_add_u32 s37, s37, s33")
    a.srd(12, P_OUT, X_BYTES)
    a("v_mul_u32_u24 v12, 14336, v11")
    a("v_lshl_add_u32 v12, v13, 1, v12")
    a("s_mul_i32 s44, s49, 28672")
    a("s_lshl_b32 s33, s50, 6")
    a("s_add_u32 s44, s44, s33")
    for i in range(1, 4):
        a(f"s_add_u32 s{44+i}, s44, {3584*i}")
    a("s_waitcnt vmcnt(0)")
    BU = 232
    for i in range(8):
        a(f"v_lshlrev_b32 v{BU+2*i}, 16, v{BB+i}")
        a(f"v_and_b32 v{BU+2*i+1}, 0xffff0000, v{BB+i}")
    cnt_wait(a, 250, "s52", 8)
    a.stamp(10)
    AF = O
    tags = []
    for i in range(8):
        for x in range(2):
            t = a.vm(f"buffer_load_dwordx4 {vr(AF+8*i+4*x,4)}, v{2 if i<4 else 10}, s[20:23], s{36+x} offen offset:{1024*(i&3)}{SC}")
        tags.append(t)
    AC = [BB, S, S + 16, P]
    for i in range(8):
        a.wait_vm(tags[i])
        for t in (3, 2, 1, 0):
            sa, sb = t >> 1, t & 1
            c = "0" if i == 0 else vr(AC[t], 16)
            a(f"{MF32} {vr(AC[t],16)}, {vr(AF+8*i+4*sa,4)}, {vr(WB+8*i+4*sb,4)}, {c}")
    a.nop(9)
    a.stamp(11)
    for t in (3, 2, 1):
        for q in range(4):
            a(f"ds_write_b128 v{3+t}, {vr(AC[t]+4*q,4)} offset:{1024*q}")
    for r in range(0, 16, 2):
        a(f"v_pk_add_f32 {vr(AC[0]+r,2)}, {vr(AC[0]+r,2)}, {vr(BU+r,2)} neg_lo:[0,1] neg_hi:[0,1]")
    a("s_waitcnt lgkmcnt(0)")
    a("s_barrier")
    for s in range(3):
        for q in range(4):
            a(f"ds_read_b128 {vr(AF+16*s+4*q,4)}, v7 offset:{4096*s+1024*q}")
    for s in range(3):
        a(f"s_waitcnt lgkmcnt({8-4*s})")
        for r in range(0, 16, 2):
            a(f"v_pk_add_f32 {vr(AC[0]+r,2)}, {vr(AC[0]+r,2)}, {vr(AF+16*s+r,2)}")
    for r in range(0, 16, 2):
        a(f"v_pk_fma_f32 {vr(AC[0]+r,2)}, {vr(AC[0]+r,2)}, {vr(GG+r,2)}, {vr(BU+r,2)}")
    for r in range(0, 16, 2):
        a(f"v_cvt_pk_bf16_f32 v{AF+r//2}, v{AC[0]+r}, v{AC[0]+r+1}")
    for r in range(16):
        op = "buffer_store_short_d16_hi" if r & 1 else "buffer_store_short"
        a(f"{op} v{AF+r//2}, v12, s[12:15], s{44+(r>>2)} offen offset:{896*(r&3)}")
    fin(a, 12)
    a("s_endpgm")
    a.label("A_FALLBACK")
    a("s_mov_b32 s41, -1")
    for t in range(4):
        a(f"v_mov_b32 v{MX+t}, 0xff800000")
    a("s_mov_b32 s44, 0")
    a("s_waitcnt vmcnt(0) lgkmcnt(0)")
    a.label("A_FBLOOP")
    for f in range(2):
        a(f"buffer_load_dwordx4 {vr(KB+4*f,4)}, v{VK0+f}, s[12:15], s44 offen{SC}")
    a("s_waitcnt vmcnt(0)")
    patch(KB)
    a("s_nop 1")
    for t in range(4):
        a(f"{MF32} {vr(O+16*t,16)}, {vr(KB,4)}, {vr(Q+8*t,4)}, 0")
        a(f"{MF32} {vr(O+16*t,16)}, {vr(KB+4,4)}, {vr(Q+8*t+4,4)}, {vr(O+16*t,16)}")
    a.nop(16)
    for i in range(8):
        for t in range(4):
            a(f"v_max3_f32 v{MX+t}, v{MX+t}, v{O+16*t+2*i}, v{O+16*t+2*i+1}")
    a(f"s_addk_i32 s44, {KTS}")
    a(f"s_cmp_lt_u32 s44, {16*KTS}")
    a("s_cbranch_scc1 A_FBLOOP")
    first_loads()
    zero_acc()
    a("s_waitcnt vmcnt(0)")
    patch(KB)
    a("s_branch A_SETMAX")

def gen_B(a):
    a.label("L_B")
    a("s_setprio 1")
    a.stamp(1)
    if "noB" in EXP: a("s_endpgm")
    TS = 272; TW = 64 * TS
    UB = 4 * TW
    US = 4608
    YB, XB, KACC, FR, CT = 16, 80, 136, 152, 216
    Z1, Z256, TM = 224, 226, 226
    a(f"s_mul_i32 s29, s24, {TW}")
    a("s_mov_b32 m0, s29")
    a("v_mov_b32 v15, 0x3f80")
    a(f"ds_write_addtid_b32 v15 offset:{32*TS}")
    a("v_and_b32 v12, 31, v1")
    a(f"v_mul_u32_u24 v12, {TS}, v12")
    a("v_lshrrev_b32 v13, 5, v1")
    a("v_lshl_add_u32 v12, v13, 4, v12")
    a("v_add_u32 v240, s29, v12")
    for r in range(16):
        a(f"v_mov_b32 v{KACC+r}, 0")
    a(f"v_mul_u32_u24 v12, {US-512}, v13")
    a("v_add_u32 v12, v12, v2")
    a(f"v_add_u32 v12, {UB}, v12")
    a(f"ds_write_b128 v12, {vr(KACC,4)}")
    a("s_and_b32 s42, s2, 31")
    a("s_lshl_b32 s42, s42, 7")
    a(f"s_add_u32 s42, s42, {F_XT}")
    a("v_lshrrev_b32 v12, 1, v1")
    a("v_and_b32 v13, 1, v1")
    a(f"v_mul_u32_u24 v3, {XTS}, v12")
    a("v_lshl_add_u32 v3, v13, 4, v3")
    a(f"s_mul_i32 s43, s24, {64*XTS}")
    a("s_mul_i32 s33, s31, 896")
    a("s_add_u32 s43, s43, s33")
    a("s_lshl_b32 s33, s39, 4")
    a("s_add_u32 s43, s43, s33")
    a(f"s_add_u32 s43, s43, {XT}")
    a(f"s_add_u32 s44, s43, {32*XTS}")
    a(f"v_mul_u32_u24 v241, {US}, v13")
    a("v_lshl_add_u32 v241, v12, 4, v241")
    a("s_lshl_b32 s33, s24, 10")
    a(f"s_add_u32 s33, s33, {UB + 512}")
    a("v_add_u32 v241, s33, v241")
    a("s_waitcnt lgkmcnt(0)")
    a("s_and_b32 s33, s26, 1")
    a("s_lshl_b32 s33, s33, 4")
    a("s_lshr_b32 s28, s28, s33")
    a("s_lshl_b32 s28, s28, 16")
    a("s_lshr_b32 s38, s38, s33")
    a("s_lshl_b32 s38, s38, 16")
    hi = float(np.float32(LOG2E)); lo = float(np.float32(LOG2E - hi))
    a(f"v_mov_b32 v13, {hex(f2u(hi))}")
    a("v_mul_f32 v14, s28, v13")
    a("v_fma_f32 v13, s28, v13, -v14")
    a(f"v_mov_b32 v15, {hex(f2u(lo))}")
    a("v_fmac_f32 v13, s28, v15")
    a("v_exp_f32 v14, v14")
    a(f"v_mul_f32 v13, {hex(f2u(math.log(2)))}, v13")
    a("v_fmac_f32 v14, v14, v13")
    a("v_cvt_pk_bf16_f32 v14, v14, v14")
    a("v_and_b32 v14, 0xffff0000, v14")
    a(f"s_mov_b32 s48, {hex(f2u(LOG2E))}")
    a(f"s_mov_b32 s49, {hex(f2u(1/(2*math.pi)))}")
    a("s_mov_b32 s30, 2")
    a("s_waitcnt vmcnt(0)")
    a.stamp(2)
    a.label("B_PASS")
    a("s_cmp_eq_u32 s30, 2")
    for i in range(6):
        a(f"v_and_b32 v{8+i}, 0xffff0000, v{RAW+i}")
    for i in range(6):
        a(f"v_lshlrev_b32 v{RAW+i}, 16, v{RAW+i}")
    r1 = [0, 0, 2, 4, 4, 4, 6, 8, 8]
    P_ = {}
    for r in range(9): P_[(0, r)] = r; P_[(1, r)] = 256 + r1[r]
    for i, e in enumerate((0, 4, 8)): P_[(0, 9 + i)] = 512 + e; P_[(1, 9 + i)] = 768 + e
    for i, e in enumerate((0, 8)):
        P_[(0, 12 + i)] = 1024 + e; P_[(1, 12 + i)] = 1280 + e; P_[(0, 14 + i)] = 1536 + e; P_[(1, 14 + i)] = 1792 + e
    plist = sorted(set(P_.values()))
    xreg = {p: XB + 2 * i for i, p in enumerate(plist)}
    rows_of = {p: [8 * (r >> 2) + 4 * h + (r & 3) for (h, r), pp in P_.items() if pp == p] for p in plist}
    yreg = {j: YB + 2 * j for j in range(1, 32)}
    a("v_pk_mul_f32 v[8:9], v[8:9], v[14:15] op_sel_hi:[1,0]")
    cmul(a, xreg[0], 12, 10, 0)
    a("v_pk_mul_f32 v[8:9], v[8:9], s[48:49]")
    cmul(a, xreg[0], 12, 10, 1)
    a(f"v_mul_f32 v{TM+2}, 0x41000000, v8")
    a(f"v_mul_f32 v{TM+3}, 0x41000000, v9")
    a(f"v_mul_f32 v{TM+4}, 0x43800000, v8")
    a(f"v_mul_f32 v{TM+5}, 0x43800000, v9")
    a(f"v_pk_mul_f32 {vr(xreg[0],2)}, {vr(xreg[0],2)}, v[14:15] op_sel_hi:[1,0]")
    anchors = [(TM + 2, yreg[1]), (8, Z1), (TM + 4, Z256)]
    for s_, d_ in anchors:
        a(f"v_fract_f32 v{s_+1}, v{s_+1}")
        a(f"v_exp_f32 v{s_}, v{s_}")
    for s_, d_ in anchors:
        a(f"v_cos_f32 v{d_}, v{s_+1}")
        a(f"v_sin_f32 v{d_+1}, v{s_+1}")
    a("s_nop 0")
    for s_, d_ in anchors:
        a(f"v_pk_mul_f32 {vr(d_,2)}, {vr(d_,2)}, {vr(s_,2)} op_sel_hi:[1,0]")
    ops = []
    ops += [(("Y", 2), ("Y", 1), ("Y", 1)), (("Y", 3), ("Y", 2), ("Y", 1)), (("Y", 4), ("Y", 2), ("Y", 2))]
    ops += [(("Y", 4 + k), ("Y", 4), ("Y", k)) for k in (4, 1, 2, 3)]
    ops += [(("Y", 8 + k), ("Y", 8), ("Y", k)) for k in (8, 1, 2, 3, 4, 5, 6, 7)]
    ops += [(("Y", 16 + k), ("Y", 16), ("Y", k)) for k in range(1, 16)]
    xo = [(("X", 8), ("X", 0), ("Y", 1))]
    xo += [(("X", e + 1), ("X", e), ("Z", 1)) for e in range(7)]
    for base, es in ((256, (0, 8, 4, 2, 6)), (512, (0, 8, 4)), (768, (0, 8, 4)), (1024, (0, 8)), (1280, (0, 8)), (1536, (0, 8)), (1792, (0, 8))):
        xo += [(("X", base + e), ("X", base - 256 + e), ("Z", 256)) for e in es]
    def reg(n):
        return {"Y": yreg, "X": xreg, "Z": {1: Z1, 256: Z256}}[n[0]][n[1]]
    done = {("Y", 1), ("X", 0), ("Z", 1), ("Z", 256)}
    allops = xo + ops
    memo = {}
    def height(n):
        if n in memo: return memo[n]
        h = 0
        for (d, x, y) in allops:
            if x == n or y == n: h = max(h, 1 + height(d))
        memo[n] = h
        return h
    pending = sorted(allops, key=lambda o: -height(o[0]))
    towrite = [("Y", 1), ("X", 0)]
    ct = [0]
    def emit_write(n):
        t = CT + (ct[0] % 8); ct[0] += 1
        r = reg(n)
        if n[0] == "Y":
            a(f"v_cvt_pk_bf16_f32 v{t}, v{r}, v{r+1}")
            a(f"ds_write_addtid_b32 v{t} offset:{(32+n[1])*TS}")
        else:
            a(f"v_cvt_pk_bf16_f32 v{t}, v{r}, -v{r+1}")
            for m in rows_of[n[1]]:
                a(f"ds_write_addtid_b32 v{t} offset:{m*TS}")
    nb = 0
    UL = XRW
    PB0 = int(os.environ.get('PB0', '9')); PB1 = int(os.environ.get('PB1', '14'))
    while pending:
        batch = [o for o in pending if o[1] in done and o[2] in done][:4]
        for o in batch: pending.remove(o)
        for (d, x, y) in batch: cmul(a, reg(d), reg(x), reg(y), 0)
        w = towrite; towrite = []
        for n in w[:2]: emit_write(n)
        for (d, x, y) in batch: cmul(a, reg(d), reg(x), reg(y), 1)
        for n in w[2:]: emit_write(n)
        for (d, x, y) in batch:
            done.add(d); towrite.append(d)
        nb += 1
        if nb == PB0:
            a("s_cbranch_scc1 B_P1")
            a("s_setprio 3")
            nonce_issue(a, 250)
            a("s_setprio 1")
            a.label("B_P1")
        if nb == PB1:
            a("s_lshl_b32 s33, s24, 1")
            a("s_add_u32 s33, s33, s30")
            a("s_cmp_lg_u32 s33, 1")
            a("s_cbranch_scc1 B_P3")
            a("s_waitcnt vmcnt(0)")
            nonce_take(a, 250)
            a("s_setprio 3")
            cnt_load(a, 250, "s42")
            a("s_setprio 1")
            a.label("B_P3")
    for n in towrite: emit_write(n)
    for ks in range(8):
        a(f"ds_read_b128 {vr(FR+8*ks,4)}, v240 offset:{32*ks}")
        a(f"ds_read_b128 {vr(FR+8*ks+4,4)}, v240 offset:{32*TS+32*ks}")
    for ks in range(8):
        a(f"s_waitcnt lgkmcnt({14-2*ks})")
        a(f"{MF32} {vr(KACC,16)}, {vr(FR+8*ks,4)}, {vr(FR+8*ks+4,4)}, {vr(KACC,16)}")
    a("s_sub_u32 s30, s30, 1")
    a("s_cmp_lg_u32 s30, 0")
    a("s_cbranch_scc1 B_PASS")
    a.stamp(3)
    a("v_add_u32 v242, s29, v2")
    a("s_xor_b32 s33, s24, 1")
    a(f"s_mul_i32 s33, s33, {TW}")
    a("v_add_u32 v243, s33, v2")
    a("s_and_b32 s33, s24, 2")
    a(f"s_mul_i32 s48, s33, {TW}")
    a("s_add_u32 s48, s48, 4096")
    a("s_mul_i32 s33, s27, 4160")
    a("s_add_u32 s49, s33, s48")
    a("v_sub_u32 v6, 63, v1")
    a("v_lshlrev_b32 v6, 4, v6")
    a("v_add_u32 v6, s49, v6")
    a("v_and_b32 v7, 1, v1")
    a("v_cmp_eq_u32 vcc, 1, v7")
    for q in range(4):
        a(f"ds_write_b128 v242, {vr(KACC+4*q,4)} offset:{1024*q}")
    a("v_lshrrev_b32 v4, 4, v1")
    a("v_and_b32 v5, 15, v1")
    a("v_add_u32 v7, 1, v5")
    a("v_lshrrev_b32 v7, 1, v7")
    a("v_lshlrev_b32 v8, 2, v4")
    a("v_sub_u32 v8, v8, v7")
    a("v_and_b32 v7, 1, v5")
    a("v_mul_u32_u24 v7, 1040, v7")
    a("v_sub_u32 v8, v8, v7")
    a(f"v_add_u32 v8, {1016 + 1040 - 48 - 128}, v8")
    a("v_lshlrev_b32 v8, 2, v8")
    a("s_lshl_b32 s33, s27, 8")
    a("s_sub_u32 s33, s48, s33")
    a("v_add_u32 v8, s33, v8")
    for i in range(1, 4):
        a(f"v_subrev_u32 v{8+i}, {1024*i}, v8")
    a("s_cmp_lg_u32 s24, 0")
    a("s_cbranch_scc1 B_NOPOLL")
    a("s_waitcnt vmcnt(0)")
    cnt_wait(a, 250, "s42", 32, 6)
    a.label("B_NOPOLL")
    a("s_waitcnt lgkmcnt(0)")
    a("s_barrier")
    a.stamp(7)
    a("s_setprio 3")
    for i in range(2):
        a(f"buffer_load_dwordx4 {vr(UL+4*i,4)}, v3, s[20:23], s{43+i} offen{SC}")
    a("s_setprio 1")
    for q in range(4):
        a(f"ds_read_b128 {vr(FR+4*q,4)}, v243 offset:{1024*q}")
    a("s_lshr_b32 s33, s24, 1")
    a(f"s_mul_i32 s36, s33, {US}")
    a(f"s_add_u32 s36, s36, {UB + 512}")
    a("v_lshlrev_b32 v12, 5, v5")
    a("v_lshl_add_u32 v13, v4, 3, v12")
    a("v_lshl_add_u32 v12, v4, 4, v12")
    a("s_lshl_b32 s33, s27, 8")
    a("s_sub_u32 s33, s36, s33")
    a(f"s_sub_u32 s33, s33, {32 + 192}")
    a("v_add_u32 v12, s33, v12")
    a("s_lshl_b32 s33, s27, 11")
    a("s_add_u32 s33, s33, s36")
    a("v_add_u32 v13, s33, v13")
    a("s_lshl_b32 s40, s26, 1")
    a("s_add_u32 s40, s40, s27")
    a("s_lshl_b32 s41, s40, 11")
    a(f"s_add_u32 s41, s41, {BT}")
    a("s_lshr_b32 s40, s26, 5")
    a("s_lshl_b32 s40, s40, 7")
    a(f"s_add_u32 s40, s40, {F_B}")
    a("s_waitcnt lgkmcnt(0)")
    for r in range(0, 16, 2):
        a(f"v_pk_add_f32 {vr(KACC+r,2)}, {vr(KACC+r,2)}, {vr(FR+r,2)}")
    K_ = KACC; W_ = FR + 16
    a(f"v_cndmask_b32 v{CT}, v{K_+12}, v{K_+13}, vcc")
    a(f"v_cndmask_b32 v{CT+1}, v{K_+14}, v{K_+15}, vcc")
    for i in range(4):
        a(f"v_mov_b32 v{W_+16+i}, 0")
    def pk(d, lo_, hi_): a(f"v_cvt_pk_bf16_f32 v{d}, v{lo_}, v{hi_}")
    a("s_cmp_eq_u32 s27, 1")
    a("s_cbranch_scc1 B_ODD")
    A_, B_, C_ = K_ + 9, K_ + 10, K_ + 11
    for i in range(4): pk(W_ + i, K_ + 7 - 2 * i, K_ + 6 - 2 * i)
    for i, (x, y) in enumerate(((C_, C_), (B_, B_), (B_, A_), (A_, A_))): pk(W_ + 4 + i, x, y)
    for sl in range(2):
        A2, C2, M2 = K_ + 12 + 2 * sl, K_ + 13 + 2 * sl, CT + sl
        for i, (x, y) in enumerate(((C2, C2), (C2, M2), (A2, A2), (A2, A2))): pk(W_ + 8 + 4 * sl + i, x, y)
    a("s_branch B_IMG")
    a.label("B_ODD")
    for i in range(4): pk(W_ + i, K_ + 8 - 2 * i, K_ + 7 - 2 * i)
    for i, (x, y) in enumerate(((C_, C_), (C_, B_), (B_, B_), (A_, A_))): pk(W_ + 4 + i, x, y)
    for sl in range(2):
        A2, C2, M2 = K_ + 12 + 2 * sl, K_ + 13 + 2 * sl, CT + sl
        for i, (x, y) in enumerate(((C2, C2), (C2, C2), (M2, A2), (A2, A2))): pk(W_ + 8 + 4 * sl + i, x, y)
    a("s_mov_b64 exec, 1")
    pk(W_ + 16, K_, VZ)
    a("s_mov_b64 exec, -1")
    a.label("B_IMG")
    for sl in range(4):
        a(f"ds_write_b128 v6, {vr(W_+4*sl,4)} offset:{(3-sl)*1024}")
    a("v_add_u32 v7, s49, v2")
    a("s_mov_b64 exec, 3")
    a(f"ds_write_b128 v7, {vr(W_+16,4)} offset:4096")
    a("s_mov_b64 exec, -1")
    a("s_waitcnt vmcnt(0)")
    for i in range(2):
        a(f"ds_write_b128 v241, {vr(UL+4*i,4)} offset:{512*i}")
    a("s_waitcnt lgkmcnt(0)")
    a("s_barrier")
    a.stamp(4)
    FB, CAC = 16, 144
    a.nds = 0
    tg = {}
    def loadstep(stp):
        b = FB + 64 * (stp & 1)
        for i in range(8):
            o = 128 * (1 - (i & 1)) + 16 * (3 - stp)
            a.ds(f"ds_read2_b32 {vr(b+4*i,2)}, v{8+(i>>1)} offset0:{o} offset1:{o+1}")
            a.ds(f"ds_read2_b32 {vr(b+4*i+2,2)}, v{8+(i>>1)} offset0:{o+2} offset1:{o+3}")
            tg[(stp, i)] = a.ds(f"ds_read_b128 {vr(b+32+4*i,4)}, v12 offset:{512*i+64*(3-stp)}")
    loadstep(0)
    for stp in range(4):
        b = FB + 64 * (stp & 1)
        order = sorted([(i, tp) for i in range(8) for tp in range(8 - i)], key=lambda x: (max(x), x[0] + x[1]))
        nxt = []
        if stp < 3:
            b2 = FB + 64 * ((stp + 1) & 1)
            for i in range(8):
                o = 128 * (1 - (i & 1)) + 16 * (3 - stp - 1)
                nxt.append((None, f"ds_read2_b32 {vr(b2+4*i,2)}, v{8+(i>>1)} offset0:{o} offset1:{o+1}"))
                nxt.append((None, f"ds_read2_b32 {vr(b2+4*i+2,2)}, v{8+(i>>1)} offset0:{o+2} offset1:{o+3}"))
                nxt.append(((stp + 1, i), f"ds_read_b128 {vr(b2+32+4*i,4)}, v12 offset:{512*i+64*(3-stp-1)}"))
        waited = -1
        seen = set()
        for k, (i, tp) in enumerate(order):
            if max(i, tp) > waited:
                waited = max(i, tp)
                a.wait_ds(tg[(stp, waited)])
            t = i + tp
            c = vr(CAC + 4 * t, 4)
            if stp == 0 and t not in seen:
                c = "0"; seen.add(t)
            a(f"{MF16} {vr(CAC+4*t,4)}, {vr(b+4*i,4)}, {vr(b+32+4*tp,4)}, {c}")
            if k >= 8 and nxt:
                key, ins = nxt.pop(0)
                r = a.ds(ins)
                if key: tg[key] = r
        assert not nxt
    a.stamp(5)
    RR = 16
    for tl in range(4):
        a(f"ds_read_b64 {vr(80+2*tl,2)}, v13 offset:{512*tl}")
    a("s_cmp_eq_u32 s27, 1")
    a.nop(3)
    a("s_cbranch_scc1 B_R1")
    for par in range(2):
        if par: a.label("B_R1")
        for q in range(4):
            a(f"ds_write_b128 v242, {vr(CAC+16*(1-par)+4*q,4)} offset:{1024*q}")
        a("s_waitcnt lgkmcnt(0)")
        a("s_barrier")
        for q in range(4):
            a(f"ds_read_b128 {vr(RR+4*q,4)}, v243 offset:{1024*q}")
        a("s_waitcnt lgkmcnt(0)")
        for r in range(0, 16, 2):
            a(f"v_pk_add_f32 {vr(RR+r,2)}, {vr(RR+r,2)}, {vr(CAC+16*par+r,2)}")
        if not par: a("s_branch B_R2")
    a.label("B_R2")
    for t in range(4):
        for i in range(2):
            a(f"v_lshlrev_b32 v{88+2*i}, 16, v{80+2*t+i}")
            a(f"v_and_b32 v{88+2*i+1}, 0xffff0000, v{80+2*t+i}")
        for r in range(4):
            a(f"v_fmac_f32 v{RR+4*t+r}, s38, v{88+r}")
        for i in range(2):
            a(f"v_cvt_pk_bf16_f32 v{80+2*t+i}, v{RR+4*t+2*i}, v{RR+4*t+2*i+1}")
    a("s_nop 1")
    for p in range(2):
        for i in range(2):
            a(f"v_permlane16_swap_b32 v{80+4*p+i}, v{80+4*p+2+i}")
    for p in range(2):
        a(f"buffer_store_dwordx4 {vr(80+4*p,4)}, v2, s[20:23], s41 offen offset:{1024*p}{SC}")
    a("s_waitcnt vmcnt(0)")
    cnt_add(a, 4, "s40")
    fin(a, 6)
    a("s_endpgm")

def gen_C(a):
    a.label("L_C")
    a("s_setprio 3")
    R, U, GU, GW = 16, 80, 144, 160
    a("s_sub_u32 s25, s2, 224")
    a("s_lshl_b32 s26, s31, 2")
    a("s_sub_u32 s33, s32, 28")
    a("s_add_u32 s26, s26, s33")
    a("s_lshl_b32 s26, s26, 2")
    a("s_add_u32 s26, s26, s24")
    a("s_mul_i32 s36, s26, 14336")
    for i in range(1, 4):
        a(f"s_add_u32 s{36+i}, s36, {3584*i}")
    a("s_add_u32 s45, s25, s24")
    a("s_waitcnt lgkmcnt(0)")
    a.srd(20, P_WS, WS_SIZE)
    a.srd(12, P_X, X_BYTES)
    for r in range(16):
        a(f"buffer_load_dwordx4 {vr(R+4*r,4)}, v2, s[12:15], s{36+(r>>2)} offen offset:{896*(r&3)}")
    a.srd(16, P_GW, 896)
    a(f"buffer_load_dwordx4 {vr(GW,4)}, v2, s[16:19], 0 offen")
    a("v_mov_b32 v4, 1")
    a(f"s_mul_i32 s36, s26, {2*XTS}")
    a(f"s_add_u32 s36, s36, {XT}")
    a("s_add_u32 s37, s36, 3584")
    a(f"s_add_u32 s38, s36, {XTS}")
    a("s_add_u32 s39, s38, 3584")
    a("s_mov_b32 s46, 0x05040100")
    a("s_mov_b32 s47, 0x07060302")
    a("s_mov_b32 exec_hi, 0xffffff")
    for hb in range(2):
        a(f"s_waitcnt vmcnt({9 if hb == 0 else 8})")
        for cc in range(8):
            i, e = cc >> 1, cc & 1
            u = U + 32 * hb + 4 * cc
            for q in range(4):
                a(f"v_perm_b32 v{u+q}, v{R+32*hb+4*(2*q+1)+i}, v{R+32*hb+4*(2*q)+i}, s{46+e}")
            a(f"buffer_store_dwordx4 {vr(u,4)}, v2, s[20:23], s{36+2*hb+(cc>>2)} offen offset:{896*(cc&3)}{SC}")
    a.stamp(1)
    a("s_mov_b64 exec, -1")
    nonce_issue(a, 250)
    a("v_lshlrev_b32 v5, 7, v1")
    a(f"s_mov_b32 s41, {F_XT}")
    for r in range(16):
        a(f"v_mov_b32 v{GU+r}, 0")
    a("s_mov_b32 exec_hi, 0xffffff")
    for i in range(4):
        for r in range(16):
            a(f"v_dot2c_f32_bf16 v{GU+r}, v{R+4*r+i}, v{GW+i}")
    a("s_mov_b64 exec, -1")
    a("s_waitcnt vmcnt(0)")
    nonce_take(a, 250)
    a("s_barrier")
    a("s_cmp_lg_u32 s24, 0")
    a("s_cbranch_scc1 C_NOADD")
    a("s_mov_b32 exec_hi, 0")
    a("buffer_atomic_add v4, v5, s[20:23], s41 offen sc1")
    a("s_mov_b64 exec, -1")
    a.label("C_NOADD")
    a.stamp(2)
    a("s_setprio 1")
    a("s_min_u32 s45, s25, 15")
    a("s_mul_i32 s33, s45, 25088")
    a("s_mul_i32 s34, s24, 7168")
    a("s_add_u32 s33, s33, s34")
    a("v_add_u32 v3, 4096, v2")
    a.srd(12, P_WO, 448 * 896)
    a("s_mov_b32 m0, s34")
    a("s_nop 0")
    for i in range(4):
        a(f"buffer_load_dwordx4 v2, s[12:15], s33 offen offset:{1024*i} lds")
    a("s_add_u32 m0, s34, 4096")
    a("s_nop 0")
    for i in range(3):
        a(f"buffer_load_dwordx4 v3, s[12:15], s33 offen offset:{1024*i} lds")
    for sh in ("row_shr:1", "row_shr:2", "row_shr:4", "row_shr:8"):
        for r in range(16):
            a(f"v_add_f32_dpp v{GU+r}, v{GU+r}, v{GU+r} {sh} row_mask:0xf bank_mask:0xf bound_ctrl:0")
    for r in range(16):
        a(f"v_add_f32_dpp v{GU+r}, v{GU+r}, v{GU+r} row_bcast:15 row_mask:0xa bank_mask:0xf")
    for r in range(16):
        a(f"v_add_f32_dpp v{GU+r}, v{GU+r}, v{GU+r} row_bcast:31 row_mask:0xc bank_mask:0xf")
    for op in (f"v_mul_f32 vX, {hex(f2u(-LOG2E))}, vX", "v_exp_f32 vX, vX", "v_add_f32 vX, 1.0, vX", "v_rcp_f32 vX, vX"):
        for r in range(16):
            a(op.replace("vX", f"v{GU+r}"))
    a("s_lshl_b32 s35, s26, 6")
    a(f"s_add_u32 s35, s35, {GO}")
    a("s_lshr_b32 s37, s26, 1")
    a("s_lshl_b32 s37, s37, 7")
    a(f"s_add_u32 s37, s37, {F_G}")
    a("s_mov_b32 exec_lo, 0")
    a("s_mov_b32 exec_hi, 0x80000000")
    for i in range(4):
        a(f"buffer_store_dwordx4 {vr(GU+4*i,4)}, v{VZ}, s[20:23], s35 offen offset:{16*i}{SC}")
    a("s_mov_b64 exec, -1")
    a("v_lshrrev_b32 v15, 5, v1")
    a("v_bfe_u32 v13, v1, 2, 2")
    a("v_lshl_add_u32 v13, v15, 2, v13")
    a("v_mul_u32_u24 v13, 896, v13")
    a("v_bfe_u32 v14, v1, 4, 1")
    a("v_lshl_add_u32 v13, v14, 5, v13")
    a("v_and_b32 v14, 3, v1")
    a("v_lshl_add_u32 v12, v14, 3, v13")
    a("s_lshr_b32 s49, s24, 1")
    a("s_mul_i32 s36, s49, 14336")
    a("s_mul_i32 s38, s27, 448")
    a("s_add_u32 s36, s36, s38")
    a("v_add_u32 v12, s36, v12")
    a(f"s_mul_i32 s38, s27, {7*32768}")
    a("s_lshl_b32 s39, s45, 1")
    a("s_add_u32 s39, s39, s49")
    a("s_lshl_b32 s39, s39, 10")
    a("s_add_u32 s38, s38, s39")
    a(f"s_add_u32 s38, s38, {WOF}")
    a("s_lshr_b32 s40, s25, 2")
    a("s_lshl_b32 s40, s40, 7")
    a(f"s_add_u32 s40, s40, {F_WO}")
    a("s_waitcnt vmcnt(0)")
    cnt_add(a, 4, "s37")
    a("s_cmp_ge_u32 s25, 16")
    a("s_cbranch_scc1 C_END")
    a("s_barrier")
    for i in range(7):
        for hr in range(2):
            a(f"ds_read_b64_tr_b16 {vr(16+4*i+2*hr,2)}, v12 offset:{64*i+8*hr*896}")
    a("s_waitcnt lgkmcnt(0)")
    a("s_cmp_eq_u32 s49, 0")
    a("s_cbranch_scc1 C_WO2")
    a("s_mov_b32 exec_lo, 0")
    for i in range(7):
        a(f"v_mov_b32 v{16+4*i+2}, 0")
        a(f"v_mov_b32 v{16+4*i+3}, 0")
    a("s_mov_b32 exec_lo, -1")
    a.label("C_WO2")
    for i in range(7):
        a(f"buffer_store_dwordx4 {vr(16+4*i,4)}, v2, s[20:23], s38 offen{SC}")
        if i < 6: a("s_add_u32 s38, s38, 32768")
    a("s_waitcnt vmcnt(0)")
    cnt_add(a, 4, "s40")
    a.label("C_END")
    fin(a, 3)

def gen():
    a = Asm()
    gen_entry(a)
    gen_A(a)
    gen_B(a)
    gen_C(a)
    a.label("L_END")
    a("s_endpgm")
    return a.text()

HEADER = open("cdna_kernels/" + NAME + ".s.ref").read().split("; Override launch geometry")[0]

if __name__ == "__main__":
    name = NAME + "_kernel"
    out = HEADER + "; @launch grid=(512,1,1) block=(256,1,1) lds=81920\n"
    out += '.amdgcn_target "amdgcn-amd-amdhsa--gfx950"\n' + kernel_header(name) + gen() + kernel_desc(name, 256)
    dst = sys.argv[1] if len(sys.argv) > 1 else "cdna_kernels/" + NAME + ".s"
    open(dst, "w").write(out)
```

```python
import sys, math, os
import numpy as np
from dsl import *

NAME = "gated_mix__mha_block__ssm_conv_s4__prompt"
KTS = 28672; VTS = 32256; XTS = 7296
KF = 0x000000
VF = 0x200000
XT = 0x400000
GO = 0x5D0000
WOF = 0x5E0000
OF = 0x660000
BT = 0x860000
FL = 0xA40000
F_KV = FL
F_O = FL + 64 * 128
F_XT = FL + 192 * 128
F_G = FL + 256 * 128
F_B = FL + 320 * 128
F_WO = FL + 336 * 128
WS_SIZE = 0xA50000
X_BYTES = 2048 * 896
W_BYTES = 448 * 2688
LOG2E = 1.4426950408889634
QSCALE = LOG2E * 28 ** -0.5
MF32 = "v_mfma_f32_32x32x16_bf16"
MF16 = "v_mfma_f32_16x16x32_bf16"
SC = " sc1"
NON = 60
POLLMAX = 40000
EXP = os.environ.get("EXP", "")
DEPTH = int(os.environ.get("DEPTH", "3"))
PA = int(os.environ.get("PA", "2")); PB = int(os.environ.get("PB", "1"))
P_X, P_W, P_WO, P_PAR, P_LDT, P_DSK, P_GW, P_OUT, P_DBG, P_WS = 64, 66, 68, 72, 84, 86, 88, 90, 92, 94
VZ = 255

def fin(a, idx):
    if not os.environ.get("STAMP"): return
    a("s_waitcnt vmcnt(0)")
    a.stamp(idx)
    a.stamp_flush(P_WS)

def cmul(a, d, x, y, phase):
    if phase == 0:
        a(f"v_pk_mul_f32 {vr(d,2)}, {vr(x,2)}, {vr(y,2)} op_sel_hi:[0,1]")
    else:
        a(f"v_pk_fma_f32 {vr(d,2)}, {vr(x,2)}, {vr(y,2)}, {vr(d,2)} op_sel:[1,1,0] op_sel_hi:[1,0,1] neg_lo:[1,0,0]")

uid = [0]
def nonce_issue(a, v):
    uid[0] += 1; u = uid[0]
    a("s_cmp_lg_u32 s24, 0")
    a(f"s_cbranch_scc1 NI{u}")
    a(f"global_load_dword v{v}, v{VZ}, {sr(P_DBG,2)}{os.environ.get('NSC', ' sc1')}")
    a.label(f"NI{u}")

def nonce_take(a, v):
    uid[0] += 1; u = uid[0]
    a("s_cmp_lg_u32 s24, 0")
    a(f"s_cbranch_scc1 ND{u}")
    a(f"s_mov_b32 s62, {POLLMAX}")
    a.label(f"NT{u}")
    a(f"v_readfirstlane_b32 s{NON}, v{v}")
    a("s_nop 1")
    a(f"s_cmp_lg_u32 s{NON}, 0")
    a(f"s_cbranch_scc1 ND{u}")
    a("s_sub_u32 s62, s62, 1")
    a(f"s_cbranch_scc1 ND{u}")
    a("s_sleep 8")
    a(f"global_load_dword v{v}, v{VZ}, {sr(P_DBG,2)} sc1")
    a("s_waitcnt vmcnt(0)")
    a(f"s_branch NT{u}")
    a.label(f"ND{u}")

def cnt_load(a, vd, soff):
    a(f"v_mov_b32 v{vd}, 0")
    a("s_mov_b64 exec, 1")
    t = a.vm(f"buffer_atomic_add v{vd}, v{VZ}, s[20:23], {soff} offen sc0 sc1")
    a("s_mov_b64 exec, -1")
    return t

def cnt_wait(a, vd, soff, target, sleep=1):
    uid[0] += 1; u = uid[0]
    a(f"s_mov_b32 s62, {POLLMAX}")
    a.label(f"FC{u}")
    a(f"v_readfirstlane_b32 s4, v{vd}")
    a("s_nop 1")
    a(f"s_cmp_eq_u32 s4, {target}")
    a(f"s_cbranch_scc1 FD{u}")
    a("s_sub_u32 s62, s62, 1")
    a(f"s_cbranch_scc1 FD{u}")
    a(f"s_sleep {sleep}")
    n0 = a.nvm
    cnt_load(a, vd, soff)
    a.nvm = n0
    a("s_waitcnt vmcnt(0)")
    a(f"s_branch FC{u}")
    a.label(f"FD{u}")

def cnt_add(a, vt, soff, va=None, mask="1"):
    a(f"v_mov_b32 v{vt}, 1")
    a(f"s_mov_b64 exec, {mask}")
    a.vm(f"buffer_atomic_add v{vt}, v{VZ if va is None else va}, s[20:23], {soff} offen sc1")
    a("s_mov_b64 exec, -1")

def late_load(a, vd, va):
    a("s_mov_b64 exec, 7")
    a(f"buffer_load_dword v{vd}, v{va}, s[20:23], 0 offen sc1")
    a("s_mov_b64 exec, -1")

def late_check(a, vd, va, vtgt):
    uid[0] += 1; u = uid[0]
    a(f"s_mov_b32 s62, {POLLMAX}")
    a.label(f"FC{u}")
    a(f"v_cmp_ne_u32 vcc, v{vd}, v{vtgt}")
    a("s_nop 1")
    a("s_and_b32 s4, vcc_lo, 7")
    a(f"s_cbranch_scc0 FD{u}")
    a("s_sub_u32 s62, s62, 1")
    a(f"s_cbranch_scc1 FD{u}")
    a("s_sleep 16")
    late_load(a, vd, va)
    a("s_waitcnt vmcnt(0)")
    a(f"s_branch FC{u}")
    a.label(f"FD{u}")

RAW = 244
XRW = 232

def gen_entry(a):
    a("s_cmp_ge_u32 s2, 512")
    a("s_cbranch_scc1 L_END")
    a.stamp(0)
    a("s_load_dwordx16 s[64:79], s[0:1], 0")
    a("s_load_dwordx16 s[80:95], s[0:1], 64")
    a("v_lshrrev_b32 v13, 6, v0")
    a("v_and_b32 v1, 63, v0")
    a("v_lshlrev_b32 v2, 4, v1")
    a(f"v_mov_b32 v{VZ}, 0")
    a("v_readfirstlane_b32 s24, v13")
    a("s_and_b32 s31, s2, 7")
    a("s_bfe_u32 s32, s2, 0x50003")
    a("s_cmp_ge_u32 s2, 256")
    a("s_cbranch_scc1 L_A")
    a("s_and_b32 s27, s24, 1")
    a("s_cmp_ge_u32 s32, 28")
    a("s_cbranch_scc1 L_C")
    a("s_setprio 3")
    a("s_lshl_b32 s39, s32, 1")
    a("s_lshr_b32 s34, s24, 1")
    a("s_add_u32 s26, s39, s34")
    a("s_lshl_b32 s26, s26, 3")
    a("s_add_u32 s26, s26, s31")
    a("s_lshl_b32 s33, s26, 9")
    a("s_lshl_b32 s34, s27, 8")
    a("s_add_u32 s33, s33, s34")
    a("v_lshlrev_b32 v3, 2, v1")
    a("v_add_u32 v13, s33, v3")
    a("s_lshl_b32 s34, s26, 1")
    a("s_and_b32 s34, s34, -4")
    a("s_add_u32 s45, s2, s24")
    a("v_lshlrev_b32 v4, 7, v1")
    a(f"s_mov_b32 s33, {FL}")
    a("s_waitcnt lgkmcnt(0)")
    a.srd(20, P_WS, WS_SIZE)
    a("s_cmp_lg_u32 s45, 0")
    a("s_cbranch_scc1 E_NOINIT")
    for i in range(6):
        a(f"buffer_store_dword v{VZ}, v4, s[20:23], s33 offen sc1")
        if i < 5: a("s_addk_i32 s33, 8192")
    a.label("E_NOINIT")
    for i in range(6):
        a(f"global_load_dword v{RAW+i}, v13, {sr(P_PAR+2*i,2)}")
    a(f"s_load_dword s28, {sr(P_LDT,2)}, s34")
    a(f"s_load_dword s38, {sr(P_DSK,2)}, s34")
    a("s_cmp_lg_u32 s45, 0")
    a("s_cbranch_scc1 L_B")
    a("v_mov_b32 v4, 1")
    a("s_waitcnt vmcnt(6)")
    a("s_mov_b64 exec, 1")
    a(f"global_store_dword v{VZ}, v4, {sr(P_DBG,2)} sc1")
    a("s_mov_b64 exec, -1")
    a("s_branch L_B")

def gen_A(a):
    a.label("L_A")
    if "noA" in EXP: a("s_endpgm")
    a(f"s_setprio {PA}")
    a("s_lshr_b32 s33, s31, 1")
    a("s_lshl_b32 s33, s33, 2")
    a("s_and_b32 s34, s32, 3")
    a("s_add_u32 s25, s33, s34")
    a("s_and_b32 s27, s31, 1")
    a("s_lshr_b32 s54, s32, 2")
    a("s_lshl_b32 s33, s27, 3")
    a("s_add_u32 s26, s33, s54")
    XR, ACC, QACC, WF, NV, PK, T = 16, 128, 160, 176, 248, 224, 240
    XL = 32768
    a("s_lshl_b32 s33, s25, 2")
    a("s_add_u32 s35, s33, s24")
    a("s_mul_i32 s33, s35, 28672")
    a("v_lshrrev_b32 v13, 3, v1")
    a("v_mul_u32_u24 v12, 896, v13")
    a("v_and_b32 v14, 7, v1")
    a("v_lshrrev_b32 v15, 4, v1")
    a("v_xor_b32 v15, v15, v14")
    a("v_lshl_add_u32 v3, v15, 4, v12")
    a("v_add_u32 v3, s33, v3")
    a("v_xor_b32 v246, 64, v3")
    a(f"v_add_u32 v244, {6144}, v246")
    a(f"v_add_u32 v245, {6144*2}, v3")
    a(f"v_add_u32 v246, {6144*3}, v246")
    a("s_mul_i32 s40, s24, 12288")
    a(f"s_add_u32 s40, s40, {XL}")
    a("s_lshl_b32 s33, s34, 1")
    a("s_add_u32 s28, s33, s54")
    a("s_sub_u32 s33, s28, 7")
    a("s_cmp_ge_u32 s28, 7")
    a("s_cselect_b32 s28, s33, s28")
    if "norot" in EXP: a("s_mov_b32 s28, 0")
    a("s_mov_b32 s30, s28")
    a("v_bfe_u32 v15, v1, 4, 1")
    a("v_lshlrev_b32 v15, 2, v15")
    a("v_xor_b32 v15, v15, v14")
    a("v_mul_u32_u24 v4, 2688, v13")
    a("v_lshl_add_u32 v4, v15, 4, v4")
    a("s_min_u32 s55, s54, 6")
    a("s_mul_i32 s33, s24, 43008")
    a("s_mul_i32 s34, s27, 896")
    a("s_add_u32 s33, s33, s34")
    a("s_lshl_b32 s34, s55, 7")
    a("s_add_u32 s33, s33, s34")
    a("s_add_u32 s33, s33, 896")
    a("v_add_u32 v4, s33, v4")
    a(f"v_add_u32 v5, {21504-1024}, v4")
    a("s_lshl_b32 s36, s24, 11")
    a("s_waitcnt lgkmcnt(0)")
    a.stamp(1)
    a.srd(12, P_X, X_BYTES)
    a.srd(16, P_W, W_BYTES)
    def adv(r):
        a(f"s_add_u32 s{r}, s{r}, 1")
        a(f"s_cmp_eq_u32 s{r}, 7")
        a(f"s_cselect_b32 s{r}, 0, s{r}")
    QD = int(os.environ.get("QD", "14"))
    L = []
    for s_ in range(7):
        L += [("x", s_, 0), ("x", s_, 1), ("x", s_, 2), ("x", s_, 3), ("w", s_, 0), ("w", s_, 1)]
    L += [("n", 0, 0)] + [("q", i, 0) for i in range(7)]
    tag = {}; tagxf = {}
    lp = [0]; lastbar = [-1]; xfree = [-1]; light = [False]
    def issue():
        if lp[0] >= len(L): return
        while light[0] and L[lp[0]][0] == "w": lp[0] += 1
        k, s_, n = L[lp[0]]
        need = {"x": s_ - 3, "q": 4 + (s_ >> 2)}.get(k, -1)
        if need > xfree[0]: return
        if k == "w" and s_ >= 4 and lastbar[0] < s_ - 2: return
        lp[0] += 1
        if k == "x":
            if n == 0:
                if s_: adv(28)
                a(f"s_add_u32 m0, s40, {(s_%3)*4096}")
                a("s_lshl_b32 s29, s28, 7")
                a("s_mul_i32 s37, s28, 172032")
            tag[(k, s_, n)] = a.vm(f"buffer_load_dwordx4 v{3 if n == 0 else 243+n}, s[12:15], s29 offen offset:{1024*n} lds")
        elif k == "w":
            if n == 0:
                a(f"s_add_u32 m0, s36, {(s_%4)*8192}")
                a("s_nop 0")
            tag[(k, s_, n)] = a.vm(f"buffer_load_dwordx4 v{4+n}, s[16:19], s37 offen offset:{1024*n} lds")
        elif k == "n":
            nonce_issue(a, NV)
        else:
            a(f"s_add_u32 m0, s40, {4096 + 1024*s_}")
            a("s_mul_i32 s39, s30, 172032")
            a.vm(f"buffer_load_dwordx4 v14, s[16:19], s39 offen lds")
            if s_ < 6: adv(30)
    LSL = int(os.environ.get("LSL", "24"))
    if LSL:
        a("s_cmp_lg_u32 s54, 7")
        a("s_cbranch_scc1 A_GO")
        a(f"s_sleep {LSL}")
        a.label("A_GO")
    for _ in range(QD): issue()
    if "stopA" in EXP: a.stamp(7)
    a.srd(20, P_WS, WS_SIZE)
    if "Aload" in EXP:
        a("s_waitcnt vmcnt(0)"); a("s_endpgm")
    a("v_and_b32 v13, 31, v1")
    a("v_bfe_u32 v14, v1, 1, 3")
    a("v_lshrrev_b32 v15, 5, v1")
    a("v_xor_b32 v14, v14, v15")
    a("v_lshlrev_b32 v13, 7, v13")
    a("v_lshl_add_u32 v8, v14, 4, v13")
    a("v_add_u32 v8, s40, v8")
    for ks in range(1, 4):
        a(f"v_xor_b32 v{8+ks}, {32*ks}, v8")
    a(f"v_bfe_u32 v{T}, v1, 2, 2")
    a(f"v_lshl_add_u32 v{T+1}, v15, 3, v{T}")
    a(f"v_bfe_u32 v{T+2}, v1, 4, 1")
    a(f"v_and_b32 v{T+3}, 3, v1")
    a(f"v_lshl_add_u32 v{PK}, v{T+2}, 2, v{T+3}")
    a(f"v_and_b32 v{PK+1}, 1, v1")
    a(f"v_bfe_u32 v{PK+2}, v1, 1, 1")
    a(f"v_lshl_add_u32 v{PK+1}, v{PK+1}, 1, v{PK+2}")
    a(f"v_lshl_add_u32 v{PK+1}, v{T+2}, 2, v{PK+1}")
    a(f"v_bfe_u32 v{T+3}, v1, 3, 1")
    a(f"v_lshlrev_b32 v{T+3}, 6, v{T+3}")
    a(f"v_lshl_add_u32 v{T+3}, v{T+1}, 7, v{T+3}")
    a("s_cmp_eq_u32 s27, 1")
    a("s_cselect_b64 vcc, -1, 0")
    a(f"v_cndmask_b32 v12, v{PK+1}, v{PK}, vcc")
    a(f"v_lshl_add_u32 v12, v12, 3, v{T+3}")
    a("v_xor_b32 v13, 64, v12")
    a(f"v_add_u32 v{PK+2}, 2, v{PK+1}")
    a(f"v_sub_u32 v{PK+3}, 7, v{PK+1}")
    a(f"v_cmp_gt_u32 vcc, 6, v{PK+1}")
    a("s_bitcmp1_b32 s26, 0")
    a("s_cselect_b64 s[4:5], -1, 0")
    a(f"v_cndmask_b32 v{PK+2}, v{PK+3}, v{PK+2}, vcc")
    a(f"v_cndmask_b32 v{PK+2}, v{PK+1}, v{PK+2}, s[4:5]")
    a(f"v_lshlrev_b32 v15, 6, v{T+1}")
    a(f"v_lshl_add_u32 v15, v{PK+2}, 3, v15")
    a(f"v_add_u32 v15, {XL + 4096}, v15")
    a("v_lshrrev_b32 v14, 2, v1")
    a("v_mul_u32_u24 v14, 2688, v14")
    a(f"v_and_b32 v{T}, 3, v1")
    a(f"v_lshl_add_u32 v14, v{T}, 4, v14")
    a("s_mul_i32 s33, s26, 56")
    a("s_and_b32 s33, s33, -16")
    a(f"s_mul_i32 s34, s24, {16*2688}")
    a("s_add_u32 s33, s33, s34")
    a("v_add_u32 v14, s33, v14")
    a("s_mul_i32 s33, s54, 2341")
    a("s_lshr_b32 s33, s33, 10")
    a(f"v_add_u32 v{PK}, s33, v1")
    a(f"v_mul_u32_u24 v{PK+1}, 28, v{PK}")
    a(f"v_lshrrev_b32 v{PK+1}, 6, v{PK+1}")
    a(f"v_cmp_ge_u32 s[56:57], s54, v{PK+1}")
    a(f"v_lshlrev_b32 v243, 9, v{PK}")
    a("s_lshr_b32 s42, s25, 2")
    a("s_lshl_b32 s42, s42, 7")
    a(f"s_add_u32 s42, s42, {F_KV}")
    a("s_and_b64 s[56:57], s[56:57], 15")
    a("s_cmp_eq_u32 s54, 7")
    a("s_cbranch_scc1 A_LIGHT")
    a("s_cmp_eq_u32 s27, 1")
    a("s_cbranch_scc1 A_V")

    def pass1(vtype):
        tagtr = {}
        NB = 6; TD = 3
        NIS = int(os.environ.get("NIS", "2"))
        def trload(u):
            s, ks = u >> 2, u & 3
            for t in range(2):
                for hr in range(2):
                    off = (s % 4) * 8192 + (16 * ks + 4 * hr) * 128
                    tagtr[u] = a.ds(f"ds_read_b64_tr_b16 {vr(WF+(u%NB)*8+4*t+2*hr,2)}, v{12+t} offset:{off}")
        pend = None
        for u in range(-4, 28):
            if u >= 0:
                a.wait_ds(max(tagtr[u], tagxf[u >> 2]))
                for t in range(2):
                    wf = vr(WF + (u % NB) * 8 + 4 * t, 4); xf = vr(XR + 4 * u, 4)
                    c = "0" if u == 0 else vr(ACC + 16 * t, 16)
                    if vtype:
                        a(f"{MF32} {vr(ACC+16*t,16)}, {xf}, {wf}, {c}")
                    else:
                        a(f"{MF32} {vr(ACC+16*t,16)}, {wf}, {xf}, {c}")
            if (u + TD) % 4 == 0 and (u + TD) // 4 < 7:
                sb = (u + TD) // 4
                a.wait_vm(tag[("w", sb, 1)])
                a("s_barrier")
                lastbar[0] = sb
                if sb in (0, 6): a.stamp(2 + sb // 6)
            if pend is not None:
                a.wait_ds(tagxf[pend]); xfree[0] = pend; pend = None
            if 0 <= u + TD < 28:
                trload(u + TD)
            if u % 4 == 0 and u // 4 + 1 < 7:
                s = u // 4 + 1
                a.wait_vm(tag[("x", s, 3)])
                for ks in range(4):
                    tagxf[s] = a.ds(f"ds_read_b128 {vr(XR+16*s+4*ks,4)}, v{8+ks} offset:{(s%3)*4096}")
                pend = s
            for _ in range(NIS): issue()
        assert lp[0] == len(L), lp
    saved = (a.nvm, a.nds, lp[0])
    a("v_mov_b32 v247, v2")
    a(f"s_mul_i32 s38, s35, {KTS}")
    a("s_lshl_b32 s33, s55, 12")
    a("s_add_u32 s38, s38, s33")
    a("s_add_u32 s41, s38, 1024")
    a("s_add_u32 s43, s38, 2048")
    a("s_add_u32 s44, s38, 3072")
    pass1(False)
    a("s_branch A_ST")
    a.label("A_V")
    a.nvm, a.nds, lp[0] = saved; lastbar[0] = -1; xfree[0] = -1
    a("v_lshrrev_b32 v247, 5, v1")
    a(f"v_mul_u32_u24 v247, {8064-512}, v247")
    a("v_add_u32 v247, v247, v2")
    a(f"s_mul_i32 s38, s35, {VTS}")
    a("s_mul_i32 s33, s55, 1152")
    a("s_add_u32 s38, s38, s33")
    a(f"s_add_u32 s38, s38, {VF}")
    a("s_add_u32 s41, s38, 16128")
    a("s_add_u32 s43, s38, 512")
    a("s_add_u32 s44, s41, 512")
    a(f"v_lshrrev_b32 v{T}, 1, v1")
    a(f"v_mul_u32_u24 v{T}, 8064, v{T}")
    a(f"v_and_b32 v{T+1}, 1, v1")
    a(f"v_lshl_add_u32 v{T}, v{T+1}, 4, v{T}")
    a(f"v_subrev_u32 v{T+1}, 1, v{T+1}")
    for i in range(4):
        a(f"v_and_b32 v{PK+i}, 0x3f803f80, v{T+1}")
    a("s_mov_b64 exec, 0xff")
    a(f"buffer_store_dwordx4 {vr(PK,4)}, v{T}, s[20:23], s38 offen offset:1024{SC}")
    a("s_mov_b64 exec, -1")
    pass1(True)
    a.label("A_ST")
    a.nop(11)
    for t in range(2):
        for r in range(0, 16, 2):
            a(f"v_cvt_pk_bf16_f32 v{PK+8*t+r//2}, v{ACC+16*t+r}, v{ACC+16*t+r+1}")
        for f in range(2):
            a(f"buffer_store_dwordx4 {vr(PK+8*t+4*f,4)}, v247, s[20:23], s{(38,41,43,44)[2*t+f]} offen{SC}")
    a("s_waitcnt vmcnt(4)")
    a("s_branch A_P2")
    a.label("A_LIGHT")
    a.nvm, a.nds, lp[0] = saved; xfree[0] = -1; light[0] = True
    for _ in range(6): issue()
    for s_ in range(7):
        a.wait_vm(tag[("x", s_, 3)])
        for ks in range(4):
            a.ds(f"ds_read_b128 {vr(XR+16*s_+4*ks,4)}, v{8+ks} offset:{(s_%3)*4096}")
        a("s_waitcnt lgkmcnt(0)")
        xfree[0] = s_
        for _ in range(6): issue()
    assert lp[0] == len(L)
    a("s_waitcnt vmcnt(0)")
    a.label("A_P2")
    a.stamp(4)
    a("s_barrier")
    tq = {}
    def trq(u):
        for hr in range(2):
            tq[u] = a.ds(f"ds_read_b64_tr_b16 {vr(WF+(u%8)*4+2*hr,2)}, v15 offset:{(u&3)*12288+(u>>2)*1024+256*hr}")
    for u in range(6): trq(u)
    nonce_take(a, NV)
    for u in range(28):
        if u + 6 < 28: trq(u + 6)
        a.wait_ds(tq[u])
        c = "0" if u == 0 else vr(QACC, 16)
        a(f"{MF32} {vr(QACC,16)}, {vr(WF+(u%8)*4,4)}, {vr(XR+4*u,4)}, {c}")
    a("s_waitcnt vmcnt(0)")
    a("s_barrier")
    a("s_cmp_eq_u32 s54, 7")
    a("s_cselect_b32 s33, 1, s24")
    a("s_cmp_lg_u32 s33, 0")
    a("s_cbranch_scc1 A_NOPUB")
    cnt_add(a, NV, "s42", 243, "s[56:57]")
    a.label("A_NOPUB")
    a.stamp(5)
    if "stopA" in EXP:
        fin(a, 6); a("s_endpgm")
    Q, O, S, P, KB, VB, NM, MX, T2 = 16, 48, 112, 144, 160, 192, 224, 228, 232
    VK0, VK1, VV0, VV1, C1, C2 = 10, 11, 12, 13, 252, 253
    a("s_mul_i32 s33, s26, 28")
    a("s_lshr_b32 s44, s33, 6")
    a("s_add_u32 s34, s33, 27")
    a("s_lshr_b32 s34, s34, 6")
    a("s_sub_u32 s34, s34, s44")
    a("s_lshl_b32 s34, s34, 3")
    a("s_add_u32 s58, s34, 8")
    a("v_lshrrev_b32 v4, 5, v1")
    a("s_lshl_b32 s34, s26, 9")
    a("s_lshl_b32 s36, s24, 7")
    a("s_add_u32 s34, s34, s36")
    a(f"s_add_u32 s53, s34, {F_KV}")
    a(f"s_mov_b32 s46, {hex(f2u(QSCALE))}")
    a("s_mov_b32 s47, s46")
    for r in range(0, 16, 2):
        a(f"v_pk_mul_f32 {vr(QACC+r,2)}, {vr(QACC+r,2)}, s[46:47]")
    for r in range(0, 16, 2):
        a(f"v_cvt_pk_bf16_f32 v{Q+r//2}, v{QACC+r}, v{QACC+r+1}")
    a("s_mov_b32 exec_lo, 0")
    a(f"v_mov_b32 v{Q+6}, 0")
    a(f"v_mov_b32 v{Q+7}, 0")
    a("s_mov_b32 exec_lo, -1")
    a("s_lshl_b32 s36, s24, 11")
    a("v_add_u32 v6, s36, v2")
    for f in range(2):
        a(f"ds_write_b128 v6, {vr(Q+4*f,4)} offset:{1024*f}")
    a("s_lshr_b32 s34, s26, 1")
    a("s_mul_i32 s34, s34, 3584")
    a("s_and_b32 s36, s26, 1")
    a("s_lshl_b32 s37, s36, 11")
    a("s_add_u32 s34, s34, s37")
    a(f"v_add_u32 v{VK0}, s34, v2")
    a(f"v_add_u32 v{VK1}, 1024, v{VK0}")
    a(f"s_mul_i32 s37, s36, {2048-8}")
    a("s_mov_b32 exec_lo, 0")
    a(f"v_subrev_u32 v{VK1}, s37, v{VK1}")
    a("s_mov_b32 exec_lo, -1")
    a("v_and_b32 v5, 31, v1")
    a("v_add_u32 v7, s33, v5")
    a("v_lshrrev_b32 v8, 6, v7")
    a("v_lshlrev_b32 v8, 7, v8")
    a(f"v_lshl_add_u32 v{VV0}, v7, 4, v8")
    a("s_mul_i32 s34, s44, 1152")
    a("s_add_u32 s34, s34, 1024")
    a("s_add_u32 s37, s34, 16")
    a("s_mov_b32 exec_lo, 0x10000000")
    a("s_mov_b32 exec_hi, 0x10000000")
    a(f"v_mov_b32 v{VV0}, s34")
    a("s_mov_b32 exec_lo, 0xe0000000")
    a("s_mov_b32 exec_hi, 0xe0000000")
    a(f"v_mov_b32 v{VV0}, s37")
    a("s_mov_b64 exec, -1")
    a("s_movk_i32 s34, 8064")
    a(f"v_mad_u32_u24 v{VV0}, v4, s34, v{VV0}")
    a(f"v_add_u32 v{VV1}, 16128, v{VV0}")
    a(f"s_mul_i32 s34, s24, {16*KTS}")
    a(f"s_mul_i32 s37, s24, {16*VTS}")
    a(f"s_add_u32 s37, s37, {VF}")
    a.srd(12, P_WS, 16 * KTS, "s34")
    a.srd(16, P_WS, 16 * VTS, "s37")
    a(f"v_mov_b32 v{C1}, 0x3f803f80")
    a(f"v_mov_b32 v{C2}, 0x3f80")
    a("s_waitcnt lgkmcnt(0)")
    a("s_barrier")
    for t in range(1, 4):
        a(f"v_xor_b32 v5, {2048*t}, v6")
        for f in range(2):
            a(f"ds_read_b128 {vr(Q+8*t+4*f,4)}, v5 offset:{1024*f}")
    def zero_acc():
        for r in range(64):
            a(f"v_mov_b32 v{O+r}, 0")
        for r in range(8):
            a(f"v_mov_b32 v{VB+24+r}, 0")
    cnt_load(a, NV + 2, "s53")
    zero_acc()
    for t in range(4):
        a(f"v_mov_b32 v{NM+t}, 0")
    a("s_mov_b32 s41, 0")
    a("s_mov_b32 s42, 0x07060302")
    a("s_min_u32 s33, s32, 27")
    a("s_and_b32 s34, s33, 3")
    a("s_lshl_b32 s47, s31, 2")
    a("s_add_u32 s47, s47, s34")
    a("s_lshr_b32 s48, s33, 2")
    a("s_lshr_b32 s49, s24, 1")
    a("s_lshl_b32 s33, s47, 1")
    a("s_add_u32 s49, s49, s33")
    a("s_and_b32 s50, s24, 1")
    a("s_lshl_b32 s33, s48, 1")
    a("s_add_u32 s50, s50, s33")
    a("v_bfe_u32 v5, v1, 2, 2")
    a("v_lshlrev_b32 v9, 7, v5")
    a("v_bfe_u32 v5, v1, 4, 1")
    a("v_lshl_add_u32 v9, v5, 6, v9")
    a("v_and_b32 v5, 3, v1")
    a("v_lshl_add_u32 v9, v5, 4, v9")
    a("v_lshl_add_u32 v9, v4, 9, v9")
    for t in range(1, 4):
        a(f"s_xor_b32 s33, s24, {t}")
        a("s_mul_i32 s33, s33, 12288")
        a(f"s_add_u32 s33, s33, {(t-1)*4096}")
        a(f"v_add_u32 v{3+t}, s33, v2")
    a("s_mul_i32 s33, s24, 12288")
    a("v_add_u32 v7, s33, v2")
    a("v_or_b32 v8, 512, v7")
    a("s_lshl_b32 s33, s35, 4")
    a("s_add_u32 s33, s33, s26")
    a("s_lshl_b32 s43, s33, 11")
    a(f"s_add_u32 s43, s43, {OF}")
    a("s_lshr_b32 s51, s35, 1")
    a("s_lshl_b32 s51, s51, 9")
    a("s_lshr_b32 s33, s26, 2")
    a("s_lshl_b32 s33, s33, 7")
    a("s_add_u32 s51, s51, s33")
    a(f"s_add_u32 s51, s51, {F_O}")
    a("s_lshl_b32 s33, s50, 7")
    a(f"s_add_u32 s33, s33, {F_B}")
    a("v_mov_b32 v14, s33")
    a("v_mov_b32 v15, 64")
    a("s_lshl_b32 s33, s49, 7")
    a(f"s_add_u32 s33, s33, {F_G}")
    a("v_writelane_b32 v14, s33, 1")
    a("v_writelane_b32 v15, 2, 1")
    a("s_lshl_b32 s33, s24, 7")
    a(f"s_add_u32 s33, s33, {F_WO}")
    a("v_writelane_b32 v14, s33, 2")
    a("v_writelane_b32 v15, 16, 2")
    a("s_waitcnt vmcnt(0) lgkmcnt(0)")
    cnt_wait(a, NV + 2, "s53", "s58")
    a.stamp(6)
    def first_loads():
        a("s_mov_b32 s44, 0")
        a("s_mov_b32 s45, 0")
        for kt in range(4):
            for f in range(2):
                r = a.vm(f"buffer_load_dwordx4 {vr(KB+8*kt+4*f,4)}, v{VK0+f}, s[12:15], s44 offen{SC}")
            a(f"s_addk_i32 s44, {KTS}")
            if kt == 0: tag = r
            if kt < 3:
                for f in range(2):
                    a.vm(f"buffer_load_dwordx4 {vr(VB+8*kt+4*f,4)}, v{VV0+f}, s[16:19], s45 offen{SC}")
                a(f"s_addk_i32 s45, {VTS}")
        return tag
    def patch(kb):
        a(f"v_mov_b32_dpp v{kb+6}, v{C1} quad_perm:[0,1,2,3] row_mask:0xc bank_mask:0xf")
        a(f"v_mov_b32_dpp v{kb+7}, v{C2} quad_perm:[0,1,2,3] row_mask:0xc bank_mask:0xf")
    tagk0 = first_loads()
    a.wait_vm(tagk0)
    a.stamp(7)
    TT = [S, S + 16, T2, P]
    patch(KB)
    a("s_nop 0")
    for t in range(4):
        a(f"{MF32} {vr(TT[t],16)}, {vr(KB,4)}, {vr(Q+8*t,4)}, 0")
        a(f"{MF32} {vr(TT[t],16)}, {vr(KB+4,4)}, {vr(Q+8*t+4,4)}, {vr(TT[t],16)}")
    a.nop(8)
    for tp in (0, 2):
        for i in range(8):
            for t in (tp, tp + 1):
                if i == 0:
                    a(f"v_max3_f32 v{MX+t}, v{TT[t]}, v{TT[t]+1}, v{TT[t]+2}")
                elif i < 7:
                    a(f"v_max3_f32 v{MX+t}, v{MX+t}, v{TT[t]+2*i+1}, v{TT[t]+2*i+2}")
                else:
                    a(f"v_max_f32 v{MX+t}, v{MX+t}, v{TT[t]+15}")
    a.label("A_SETMAX")
    for t in range(4):
        a(f"v_mov_b32 v{T2+t}, v{MX+t}")
    for r in range(2):
        a(f"v_mov_b32 v{P+8+r}, 0")
    for t in range(4):
        a(f"v_permlane32_swap_b32 v{T2+t}, v{MX+t}")
    for t in range(4):
        a(f"v_max_f32 v{MX+t}, v{MX+t}, v{T2+t}")
    for t in range(4):
        a(f"v_sub_f32 v{NM+t}, v{NM+t}, v{MX+t}")
    for t in range(4):
        a(f"v_and_b32 v{T2+t}, 0xffff0000, v{NM+t}")
    for t in range(4):
        a(f"v_sub_f32 v{T2+t}, v{NM+t}, v{T2+t}")
    for t in range(4):
        a(f"v_and_b32 v{T2+4+t}, 0xffff0000, v{T2+t}")
    for t in range(4):
        a(f"v_sub_f32 v{T2+4+t}, v{T2+t}, v{T2+4+t}")
    a("s_mov_b32 exec_lo, 0")
    for t in range(4):
        a(f"v_perm_b32 v{Q+8*t+6}, v{T2+t}, v{NM+t}, s42")
        a(f"v_lshrrev_b32 v{Q+8*t+7}, 16, v{T2+4+t}")
    a("s_mov_b32 exec_lo, -1")
    a(f"{MF32} {vr(S,16)}, {vr(KB,4)}, {vr(Q,4)}, 0")
    a(f"{MF32} {vr(S,16)}, {vr(KB+4,4)}, {vr(Q+4,4)}, {vr(S,16)}")
    for r in range(2, 8):
        a(f"v_mov_b32 v{P+8+r}, 0")
    a("s_mov_b32 s46, 4")
    a("s_setprio 0")
    a.nop(3)
    a.label("A_LOOP")
    for n in range(16):
        kt, t = n >> 2, n & 3
        n1 = (n + 1) & 15; kt1, t1 = n1 >> 2, n1 & 3
        n0 = (n - 1) & 15; kt0, t0 = n0 >> 2, n0 & 3
        sc = S + 16 * (n & 1); sn = S + 16 * (n1 & 1)
        pc = P + 8 * (n & 1); pp = P + 8 * (n0 & 1)
        mf = [f"{MF32} {vr(sn,16)}, {vr(KB+8*kt1,4)}, {vr(Q+8*t1,4)}, 0",
              f"{MF32} {vr(sn,16)}, {vr(KB+8*kt1+4,4)}, {vr(Q+8*t1+4,4)}, {vr(sn,16)}",
              f"{MF32} {vr(O+16*t0,16)}, {vr(VB+8*kt0,4)}, {vr(pp,4)}, {vr(O+16*t0,16)}",
              f"{MF32} {vr(O+16*t0,16)}, {vr(VB+8*kt0+4,4)}, {vr(pp+4,4)}, {vr(O+16*t0,16)}"]
        for m in range(4):
            if (m == 0 and t == 3) or (m == 2 and t == 1):
                a("s_waitcnt vmcnt(12)")
            a(mf[m])
            if m == 0 and t == 3:
                patch(KB + 8 * kt1)
            for e in range(4):
                a(f"v_exp_f32 v{sc+4*m+e}, v{sc+4*m+e}")
                if m == 1 and t == 2 and e in (0, 1):
                    a(f"buffer_load_dwordx4 {vr(KB+8*kt+4*e,4)}, v{VK0+e}, s[12:15], s44 offen{SC}")
                if m == 1 and t == 2 and e == 2:
                    a(f"s_addk_i32 s44, {KTS}")
                if m == 3 and t == 0 and e in (0, 1):
                    a(f"buffer_load_dwordx4 {vr(VB+8*kt0+4*e,4)}, v{VV0+e}, s[16:19], s45 offen{SC}")
                if m == 3 and t == 0 and e == 2:
                    a(f"s_addk_i32 s45, {VTS}")
                if n == 0 and m == 3 and e == 3:
                    a("s_cmp_lg_u32 s46, 1")
                    a("s_cbranch_scc1 A_NOFL")
                    late_load(a, 248, 14)
                    a.label("A_NOFL")
                if n == 15 and m == 3 and e == 0:
                    a("s_sub_u32 s46, s46, 1")
                if n == 15 and m == 3 and e == 1:
                    a("s_cmp_lg_u32 s46, 0")
            for c in range(2):
                a(f"v_cvt_pk_bf16_f32 v{pc+2*m+c}, v{sc+4*m+2*c}, v{sc+4*m+2*c+1}")
    a("s_cbranch_scc1 A_LOOP")
    a.stamp(8)
    a("s_nop 0")
    a(f"{MF32} {vr(O+48,16)}, {vr(VB+24,4)}, {vr(P+8,4)}, {vr(O+48,16)}")
    a(f"{MF32} {vr(O+48,16)}, {vr(VB+28,4)}, {vr(P+12,4)}, {vr(O+48,16)}")
    a("v_mov_b32 v3, 0x5f800000")
    a("s_mov_b32 exec_lo, 0")
    for t in range(3):
        a(f"v_cmp_nlt_f32 {sr(4+2*t,2)}, v{O+16*t+12}, v3")
    for t in range(1, 3):
        a(f"v_mov_b32 v{O+16*t+13}, v{NM+t}")
    a("s_mov_b32 exec_lo, -1")
    for t in range(1, 3):
        for q in range(4):
            a(f"ds_write_b128 v{3+t}, {vr(O+16*t+4*q,4)} offset:{1024*q}")
    a("s_mov_b32 exec_lo, 0")
    a(f"v_cmp_nlt_f32 vcc, v{O+48+12}, v3")
    a(f"v_mov_b32 v{O+48+13}, v{NM+3}")
    a("s_mov_b32 exec_lo, -1")
    a("s_or_b32 s5, s5, s7")
    a("s_or_b32 s5, s5, s9")
    a("s_or_b32 s5, s5, vcc_hi")
    a("s_andn2_b32 s5, s5, s41")
    a("s_cbranch_scc1 A_FALLBACK")
    for q in range(4):
        a(f"ds_write_b128 v6, {vr(O+48+4*q,4)} offset:{1024*q}")
    a(f"v_mov_b32 v{T2}, v{O+12}")
    a(f"v_mov_b32 v{T2+1}, v{O+12}")
    a("v_add_u32 v10, 4096, v2")
    a("s_lshl_b32 s33, s24, 13")
    a(f"s_add_u32 s33, s33, {WOF}")
    a("s_lshl_b32 s36, s50, 15")
    a("s_add_u32 s36, s36, s33")
    a("s_xor_b32 s37, s50, 1")
    a("s_lshl_b32 s37, s37, 15")
    a("s_add_u32 s37, s37, s33")
    a("v_lshrrev_b32 v11, 5, v1")
    a("v_lshlrev_b32 v12, 6, v11")
    a("s_lshl_b32 s38, s49, 7")
    a(f"s_add_u32 s38, s38, {GO}")
    a("v_and_b32 v13, 31, v1")
    a("v_lshlrev_b32 v3, 12, v13")
    a("v_lshl_add_u32 v3, v11, 4, v3")
    a("s_lshl_b32 s39, s50, 17")
    a("s_lshr_b32 s34, s49, 4")
    a("s_lshl_b32 s34, s34, 10")
    a("s_add_u32 s39, s39, s34")
    a("s_and_b32 s34, s49, 15")
    a("s_lshl_b32 s34, s34, 5")
    a("s_add_u32 s39, s39, s34")
    a(f"s_add_u32 s39, s39, {BT}")
    a("s_waitcnt lgkmcnt(0)")
    a("s_barrier")
    LM = T2 + 2
    for s in range(3):
        a(f"ds_read_b64 {vr(LM+2*s,2)}, v8 offset:{4096*s+3072}")
    RB = O + 16
    for s in range(3):
        for q in range(4):
            a(f"ds_read_b128 {vr(RB+16*s+4*q,4)}, v7 offset:{4096*s+1024*q}")
    a(f"v_permlane32_swap_b32 v{T2}, v{T2+1}")
    a("s_waitcnt lgkmcnt(12)")
    a(f"v_min3_f32 v{MX}, v{NM}, v{LM+1}, v{LM+3}")
    a(f"v_min_f32 v{MX}, v{MX}, v{LM+5}")
    a(f"v_sub_f32 v{S}, v{MX}, v{NM}")
    for s in range(3):
        a(f"v_sub_f32 v{S+2+2*s}, v{MX}, v{LM+2*s+1}")
    for s in range(4):
        a(f"v_exp_f32 v{S+2*s}, v{S+2*s}")
    a(f"v_mul_f32 v{MX+1}, v{S}, v{T2+1}")
    for s in range(3):
        a(f"v_fmac_f32 v{MX+1}, v{S+2+2*s}, v{LM+2*s}")
    a(f"v_rcp_f32 v{MX+1}, v{MX+1}")
    a("s_nop 0")
    for s in range(4):
        a(f"v_mul_f32 v{S+2*s}, v{S+2*s}, v{MX+1}")
    for r in range(0, 16, 2):
        a(f"v_pk_mul_f32 {vr(O+r,2)}, {vr(O+r,2)}, {vr(S,2)} op_sel_hi:[1,0]")
    for s in range(3):
        a(f"s_waitcnt lgkmcnt({8-4*s})")
        for r in range(0, 16, 2):
            a(f"v_pk_fma_f32 {vr(O+r,2)}, {vr(RB+16*s+r,2)}, {vr(S+2+2*s,2)}, {vr(O+r,2)} op_sel_hi:[1,0,1]")
    for r in range(0, 16, 2):
        a(f"v_cvt_pk_bf16_f32 v{P+r//2}, v{O+r}, v{O+r+1}")
    a("s_mov_b32 exec_lo, 0")
    a(f"v_mov_b32 v{P+6}, 0")
    a(f"v_mov_b32 v{P+7}, 0")
    a("s_mov_b32 exec_lo, -1")
    a.nvm = 0
    for f in range(2):
        tagos = a.vm(f"buffer_store_dwordx4 {vr(P+4*f,4)}, v9, s[20:23], s43 offen offset:{1024*f}{SC}")
    a.stamp(9)
    a("s_barrier")
    late_check(a, 248, 14, 15)
    WB, GG, BB = KB, Q, Q + 16
    NPRE = int(os.environ.get("NPRE", "4"))
    def wo_load(i):
        for x in range(2):
            a.vm(f"buffer_load_dwordx4 {vr(WB+8*i+4*x,4)}, v{2 if i<4 else 10}, s[20:23], s{36+x} offen offset:{1024*(i&3)}{SC}")
    for i in range(NPRE): wo_load(i)
    a("s_lshl_b32 s52, s47, 9")
    a("s_lshl_b32 s33, s24, 7")
    a("s_add_u32 s52, s52, s33")
    a(f"s_add_u32 s52, s52, {F_O}")
    a.wait_vm(tagos)
    cnt_add(a, 252, "s51")
    a("s_cmp_ge_u32 s32, 28")
    a("s_cbranch_scc1 L_END")
    for i in range(NPRE, 8): wo_load(i)
    for i in range(4):
        a.vm(f"buffer_load_dwordx4 {vr(GG+4*i,4)}, v12, s[20:23], s38 offen offset:{16*i}{SC}")
    for i in range(2):
        a.vm(f"buffer_load_dwordx4 {vr(BB+4*i,4)}, v3, s[20:23], s39 offen offset:{512*i}{SC}")
    cnt_load(a, 250, "s52")
    a("s_lshl_b32 s33, s24, 13")
    a(f"s_add_u32 s33, s33, {OF}")
    a("s_lshl_b32 s36, s49, 15")
    a("s_add_u32 s36, s36, s33")
    a("s_xor_b32 s37, s49, 1")
    a("s_lshl_b32 s37, s37, 15")
    a("s_add_u32 s37, s37, s33")
    a.srd(12, P_OUT, X_BYTES)
    a("v_mul_u32_u24 v12, 14336, v11")
    a("v_lshl_add_u32 v12, v13, 1, v12")
    a("s_mul_i32 s44, s49, 28672")
    a("s_lshl_b32 s33, s50, 6")
    a("s_add_u32 s44, s44, s33")
    for i in range(1, 4):
        a(f"s_add_u32 s{44+i}, s44, {3584*i}")
    a("s_waitcnt vmcnt(0)")
    BU = 232
    for i in range(8):
        a(f"v_lshlrev_b32 v{BU+2*i}, 16, v{BB+i}")
        a(f"v_and_b32 v{BU+2*i+1}, 0xffff0000, v{BB+i}")
    cnt_wait(a, 250, "s52", 8)
    a.stamp(10)
    AF = O
    tags = []
    for i in range(8):
        for x in range(2):
            t = a.vm(f"buffer_load_dwordx4 {vr(AF+8*i+4*x,4)}, v{2 if i<4 else 10}, s[20:23], s{36+x} offen offset:{1024*(i&3)}{SC}")
        tags.append(t)
    AC = [BB, S, S + 16, P]
    for i in range(8):
        a.wait_vm(tags[i])
        for t in (3, 2, 1, 0):
            sa, sb = t >> 1, t & 1
            c = "0" if i == 0 else vr(AC[t], 16)
            a(f"{MF32} {vr(AC[t],16)}, {vr(AF+8*i+4*sa,4)}, {vr(WB+8*i+4*sb,4)}, {c}")
    a.nop(9)
    a.stamp(11)
    for t in (3, 2, 1):
        for q in range(4):
            a(f"ds_write_b128 v{3+t}, {vr(AC[t]+4*q,4)} offset:{1024*q}")
    for r in range(0, 16, 2):
        a(f"v_pk_add_f32 {vr(AC[0]+r,2)}, {vr(AC[0]+r,2)}, {vr(BU+r,2)} neg_lo:[0,1] neg_hi:[0,1]")
    a("s_waitcnt lgkmcnt(0)")
    a("s_barrier")
    for s in range(3):
        for q in range(4):
            a(f"ds_read_b128 {vr(AF+16*s+4*q,4)}, v7 offset:{4096*s+1024*q}")
    for s in range(3):
        a(f"s_waitcnt lgkmcnt({8-4*s})")
        for r in range(0, 16, 2):
            a(f"v_pk_add_f32 {vr(AC[0]+r,2)}, {vr(AC[0]+r,2)}, {vr(AF+16*s+r,2)}")
    for r in range(0, 16, 2):
        a(f"v_pk_fma_f32 {vr(AC[0]+r,2)}, {vr(AC[0]+r,2)}, {vr(GG+r,2)}, {vr(BU+r,2)}")
    for r in range(0, 16, 2):
        a(f"v_cvt_pk_bf16_f32 v{AF+r//2}, v{AC[0]+r}, v{AC[0]+r+1}")
    for r in range(16):
        op = "buffer_store_short_d16_hi" if r & 1 else "buffer_store_short"
        a(f"{op} v{AF+r//2}, v12, s[12:15], s{44+(r>>2)} offen offset:{896*(r&3)}")
    fin(a, 12)
    a("s_endpgm")
    a.label("A_FALLBACK")
    a("s_mov_b32 s41, -1")
    for t in range(4):
        a(f"v_mov_b32 v{MX+t}, 0xff800000")
    a("s_mov_b32 s44, 0")
    a("s_waitcnt vmcnt(0) lgkmcnt(0)")
    a.label("A_FBLOOP")
    for f in range(2):
        a(f"buffer_load_dwordx4 {vr(KB+4*f,4)}, v{VK0+f}, s[12:15], s44 offen{SC}")
    a("s_waitcnt vmcnt(0)")
    patch(KB)
    a("s_nop 1")
    for t in range(4):
        a(f"{MF32} {vr(O+16*t,16)}, {vr(KB,4)}, {vr(Q+8*t,4)}, 0")
        a(f"{MF32} {vr(O+16*t,16)}, {vr(KB+4,4)}, {vr(Q+8*t+4,4)}, {vr(O+16*t,16)}")
    a.nop(16)
    for i in range(8):
        for t in range(4):
            a(f"v_max3_f32 v{MX+t}, v{MX+t}, v{O+16*t+2*i}, v{O+16*t+2*i+1}")
    a(f"s_addk_i32 s44, {KTS}")
    a(f"s_cmp_lt_u32 s44, {16*KTS}")
    a("s_cbranch_scc1 A_FBLOOP")
    first_loads()
    zero_acc()
    a("s_waitcnt vmcnt(0)")
    patch(KB)
    a("s_branch A_SETMAX")

def gen_B(a):
    a.label("L_B")
    a(f"s_setprio {PB}")
    a.stamp(1)
    if "noB" in EXP: a("s_endpgm")
    TS = 272; TW = 64 * TS
    UB = 4 * TW
    US = 4608
    YB, XB, KACC, FR, CT = 16, 80, 136, 152, 216
    Z1, Z256, TM = 224, 226, 226
    a(f"s_mul_i32 s29, s24, {TW}")
    a("s_mov_b32 m0, s29")
    a("v_mov_b32 v15, 0x3f80")
    a(f"ds_write_addtid_b32 v15 offset:{32*TS}")
    a("v_and_b32 v12, 31, v1")
    a(f"v_mul_u32_u24 v12, {TS}, v12")
    a("v_lshrrev_b32 v13, 5, v1")
    a("v_lshl_add_u32 v12, v13, 4, v12")
    a("v_add_u32 v240, s29, v12")
    for r in range(16):
        a(f"v_mov_b32 v{KACC+r}, 0")
    a(f"v_mul_u32_u24 v12, {US-512}, v13")
    a("v_add_u32 v12, v12, v2")
    a(f"v_add_u32 v12, {UB}, v12")
    a(f"ds_write_b128 v12, {vr(KACC,4)}")
    a("s_and_b32 s42, s2, 31")
    a("s_lshl_b32 s42, s42, 7")
    a(f"s_add_u32 s42, s42, {F_XT}")
    a("v_lshrrev_b32 v12, 1, v1")
    a("v_and_b32 v13, 1, v1")
    a(f"v_mul_u32_u24 v3, {XTS}, v12")
    a("v_lshl_add_u32 v3, v13, 4, v3")
    a(f"s_mul_i32 s43, s24, {64*XTS}")
    a("s_mul_i32 s33, s31, 896")
    a("s_add_u32 s43, s43, s33")
    a("s_lshl_b32 s33, s39, 4")
    a("s_add_u32 s43, s43, s33")
    a(f"s_add_u32 s43, s43, {XT}")
    a(f"s_add_u32 s44, s43, {32*XTS}")
    a(f"v_mul_u32_u24 v241, {US}, v13")
    a("v_lshl_add_u32 v241, v12, 4, v241")
    a("s_lshl_b32 s33, s24, 10")
    a(f"s_add_u32 s33, s33, {UB + 512}")
    a("v_add_u32 v241, s33, v241")
    a("s_waitcnt lgkmcnt(0)")
    a("s_and_b32 s33, s26, 1")
    a("s_lshl_b32 s33, s33, 4")
    a("s_lshr_b32 s28, s28, s33")
    a("s_lshl_b32 s28, s28, 16")
    a("s_lshr_b32 s38, s38, s33")
    a("s_lshl_b32 s38, s38, 16")
    hi = float(np.float32(LOG2E)); lo = float(np.float32(LOG2E - hi))
    a(f"v_mov_b32 v13, {hex(f2u(hi))}")
    a("v_mul_f32 v14, s28, v13")
    a("v_fma_f32 v13, s28, v13, -v14")
    a(f"v_mov_b32 v15, {hex(f2u(lo))}")
    a("v_fmac_f32 v13, s28, v15")
    a("v_exp_f32 v14, v14")
    a(f"v_mul_f32 v13, {hex(f2u(math.log(2)))}, v13")
    a("v_fmac_f32 v14, v14, v13")
    a("v_cvt_pk_bf16_f32 v14, v14, v14")
    a("v_and_b32 v14, 0xffff0000, v14")
    a(f"s_mov_b32 s48, {hex(f2u(LOG2E))}")
    a(f"s_mov_b32 s49, {hex(f2u(1/(2*math.pi)))}")
    a("s_mov_b32 s30, 2")
    a("s_waitcnt vmcnt(0)")
    a.stamp(2)
    a.label("B_PASS")
    a("s_cmp_eq_u32 s30, 2")
    for i in range(6):
        a(f"v_and_b32 v{8+i}, 0xffff0000, v{RAW+i}")
    for i in range(6):
        a(f"v_lshlrev_b32 v{RAW+i}, 16, v{RAW+i}")
    r1 = [0, 0, 2, 4, 4, 4, 6, 8, 8]
    P_ = {}
    for r in range(9): P_[(0, r)] = r; P_[(1, r)] = 256 + r1[r]
    for i, e in enumerate((0, 4, 8)): P_[(0, 9 + i)] = 512 + e; P_[(1, 9 + i)] = 768 + e
    for i, e in enumerate((0, 8)):
        P_[(0, 12 + i)] = 1024 + e; P_[(1, 12 + i)] = 1280 + e; P_[(0, 14 + i)] = 1536 + e; P_[(1, 14 + i)] = 1792 + e
    plist = sorted(set(P_.values()))
    xreg = {p: XB + 2 * i for i, p in enumerate(plist)}
    rows_of = {p: [8 * (r >> 2) + 4 * h + (r & 3) for (h, r), pp in P_.items() if pp == p] for p in plist}
    yreg = {j: YB + 2 * j for j in range(1, 32)}
    a("v_pk_mul_f32 v[8:9], v[8:9], v[14:15] op_sel_hi:[1,0]")
    cmul(a, xreg[0], 12, 10, 0)
    a("v_pk_mul_f32 v[8:9], v[8:9], s[48:49]")
    cmul(a, xreg[0], 12, 10, 1)
    a(f"v_mul_f32 v{TM+2}, 0x41000000, v8")
    a(f"v_mul_f32 v{TM+3}, 0x41000000, v9")
    a(f"v_mul_f32 v{TM+4}, 0x43800000, v8")
    a(f"v_mul_f32 v{TM+5}, 0x43800000, v9")
    a(f"v_pk_mul_f32 {vr(xreg[0],2)}, {vr(xreg[0],2)}, v[14:15] op_sel_hi:[1,0]")
    anchors = [(TM + 2, yreg[1]), (8, Z1), (TM + 4, Z256)]
    for s_, d_ in anchors:
        a(f"v_fract_f32 v{s_+1}, v{s_+1}")
        a(f"v_exp_f32 v{s_}, v{s_}")
    for s_, d_ in anchors:
        a(f"v_cos_f32 v{d_}, v{s_+1}")
        a(f"v_sin_f32 v{d_+1}, v{s_+1}")
    a("s_nop 0")
    for s_, d_ in anchors:
        a(f"v_pk_mul_f32 {vr(d_,2)}, {vr(d_,2)}, {vr(s_,2)} op_sel_hi:[1,0]")
    ops = []
    ops += [(("Y", 2), ("Y", 1), ("Y", 1)), (("Y", 3), ("Y", 2), ("Y", 1)), (("Y", 4), ("Y", 2), ("Y", 2))]
    ops += [(("Y", 4 + k), ("Y", 4), ("Y", k)) for k in (4, 1, 2, 3)]
    ops += [(("Y", 8 + k), ("Y", 8), ("Y", k)) for k in (8, 1, 2, 3, 4, 5, 6, 7)]
    ops += [(("Y", 16 + k), ("Y", 16), ("Y", k)) for k in range(1, 16)]
    xo = [(("X", 8), ("X", 0), ("Y", 1))]
    xo += [(("X", e + 1), ("X", e), ("Z", 1)) for e in range(7)]
    for base, es in ((256, (0, 8, 4, 2, 6)), (512, (0, 8, 4)), (768, (0, 8, 4)), (1024, (0, 8)), (1280, (0, 8)), (1536, (0, 8)), (1792, (0, 8))):
        xo += [(("X", base + e), ("X", base - 256 + e), ("Z", 256)) for e in es]
    def reg(n):
        return {"Y": yreg, "X": xreg, "Z": {1: Z1, 256: Z256}}[n[0]][n[1]]
    done = {("Y", 1), ("X", 0), ("Z", 1), ("Z", 256)}
    allops = xo + ops
    memo = {}
    def height(n):
        if n in memo: return memo[n]
        h = 0
        for (d, x, y) in allops:
            if x == n or y == n: h = max(h, 1 + height(d))
        memo[n] = h
        return h
    pending = sorted(allops, key=lambda o: -height(o[0]))
    towrite = [("Y", 1), ("X", 0)]
    ct = [0]
    def emit_write(n):
        t = CT + (ct[0] % 8); ct[0] += 1
        r = reg(n)
        if n[0] == "Y":
            a(f"v_cvt_pk_bf16_f32 v{t}, v{r}, v{r+1}")
            a(f"ds_write_addtid_b32 v{t} offset:{(32+n[1])*TS}")
        else:
            a(f"v_cvt_pk_bf16_f32 v{t}, v{r}, -v{r+1}")
            for m in rows_of[n[1]]:
                a(f"ds_write_addtid_b32 v{t} offset:{m*TS}")
    nb = 0
    UL = XRW
    PB0 = int(os.environ.get('PB0', '9')); PB1 = int(os.environ.get('PB1', '14'))
    while pending:
        batch = [o for o in pending if o[1] in done and o[2] in done][:4]
        for o in batch: pending.remove(o)
        for (d, x, y) in batch: cmul(a, reg(d), reg(x), reg(y), 0)
        w = towrite; towrite = []
        for n in w[:2]: emit_write(n)
        for (d, x, y) in batch: cmul(a, reg(d), reg(x), reg(y), 1)
        for n in w[2:]: emit_write(n)
        for (d, x, y) in batch:
            done.add(d); towrite.append(d)
        nb += 1
        if nb == PB0:
            a("s_cbranch_scc1 B_P1")
            a("s_setprio 3")
            nonce_issue(a, 250)
            a(f"s_setprio {PB}")
            a.label("B_P1")
        if nb == PB1:
            a("s_lshl_b32 s33, s24, 1")
            a("s_add_u32 s33, s33, s30")
            a("s_cmp_lg_u32 s33, 1")
            a("s_cbranch_scc1 B_P3")
            a("s_waitcnt vmcnt(0)")
            nonce_take(a, 250)
            a("s_setprio 3")
            cnt_load(a, 250, "s42")
            a(f"s_setprio {PB}")
            a.label("B_P3")
    for n in towrite: emit_write(n)
    for ks in range(8):
        a(f"ds_read_b128 {vr(FR+8*ks,4)}, v240 offset:{32*ks}")
        a(f"ds_read_b128 {vr(FR+8*ks+4,4)}, v240 offset:{32*TS+32*ks}")
    for ks in range(8):
        a(f"s_waitcnt lgkmcnt({14-2*ks})")
        a(f"{MF32} {vr(KACC,16)}, {vr(FR+8*ks,4)}, {vr(FR+8*ks+4,4)}, {vr(KACC,16)}")
    a("s_sub_u32 s30, s30, 1")
    a("s_cmp_lg_u32 s30, 0")
    a("s_cbranch_scc1 B_PASS")
    a.stamp(3)
    a("v_add_u32 v242, s29, v2")
    a("s_xor_b32 s33, s24, 1")
    a(f"s_mul_i32 s33, s33, {TW}")
    a("v_add_u32 v243, s33, v2")
    a("s_and_b32 s33, s24, 2")
    a(f"s_mul_i32 s48, s33, {TW}")
    a("s_add_u32 s48, s48, 4096")
    a("s_mul_i32 s33, s27, 4160")
    a("s_add_u32 s49, s33, s48")
    a("v_sub_u32 v6, 63, v1")
    a("v_lshlrev_b32 v6, 4, v6")
    a("v_add_u32 v6, s49, v6")
    a("v_and_b32 v7, 1, v1")
    a("v_cmp_eq_u32 vcc, 1, v7")
    for q in range(4):
        a(f"ds_write_b128 v242, {vr(KACC+4*q,4)} offset:{1024*q}")
    a("v_lshrrev_b32 v4, 4, v1")
    a("v_and_b32 v5, 15, v1")
    a("v_add_u32 v7, 1, v5")
    a("v_lshrrev_b32 v7, 1, v7")
    a("v_lshlrev_b32 v8, 2, v4")
    a("v_sub_u32 v8, v8, v7")
    a("v_and_b32 v7, 1, v5")
    a("v_mul_u32_u24 v7, 1040, v7")
    a("v_sub_u32 v8, v8, v7")
    a(f"v_add_u32 v8, {1016 + 1040 - 48 - 128}, v8")
    a("v_lshlrev_b32 v8, 2, v8")
    a("s_lshl_b32 s33, s27, 8")
    a("s_sub_u32 s33, s48, s33")
    a("v_add_u32 v8, s33, v8")
    for i in range(1, 4):
        a(f"v_subrev_u32 v{8+i}, {1024*i}, v8")
    a("s_cmp_lg_u32 s24, 0")
    a("s_cbranch_scc1 B_NOPOLL")
    a("s_waitcnt vmcnt(0)")
    cnt_wait(a, 250, "s42", 32, 6)
    a.label("B_NOPOLL")
    a("s_waitcnt lgkmcnt(0)")
    a("s_barrier")
    a.stamp(7)
    a("s_setprio 3")
    for i in range(2):
        a(f"buffer_load_dwordx4 {vr(UL+4*i,4)}, v3, s[20:23], s{43+i} offen{SC}")
    a(f"s_setprio {PB}")
    for q in range(4):
        a(f"ds_read_b128 {vr(FR+4*q,4)}, v243 offset:{1024*q}")
    a("s_lshr_b32 s33, s24, 1")
    a(f"s_mul_i32 s36, s33, {US}")
    a(f"s_add_u32 s36, s36, {UB + 512}")
    a("v_lshlrev_b32 v12, 5, v5")
    a("v_lshl_add_u32 v13, v4, 3, v12")
    a("v_lshl_add_u32 v12, v4, 4, v12")
    a("s_lshl_b32 s33, s27, 8")
    a("s_sub_u32 s33, s36, s33")
    a(f"s_sub_u32 s33, s33, {32 + 192}")
    a("v_add_u32 v12, s33, v12")
    a("s_lshl_b32 s33, s27, 11")
    a("s_add_u32 s33, s33, s36")
    a("v_add_u32 v13, s33, v13")
    a("s_lshl_b32 s40, s26, 1")
    a("s_add_u32 s40, s40, s27")
    a("s_lshl_b32 s41, s40, 11")
    a(f"s_add_u32 s41, s41, {BT}")
    a("s_lshr_b32 s40, s26, 5")
    a("s_lshl_b32 s40, s40, 7")
    a(f"s_add_u32 s40, s40, {F_B}")
    a("s_waitcnt lgkmcnt(0)")
    for r in range(0, 16, 2):
        a(f"v_pk_add_f32 {vr(KACC+r,2)}, {vr(KACC+r,2)}, {vr(FR+r,2)}")
    K_ = KACC; W_ = FR + 16
    a(f"v_cndmask_b32 v{CT}, v{K_+12}, v{K_+13}, vcc")
    a(f"v_cndmask_b32 v{CT+1}, v{K_+14}, v{K_+15}, vcc")
    for i in range(4):
        a(f"v_mov_b32 v{W_+16+i}, 0")
    def pk(d, lo_, hi_): a(f"v_cvt_pk_bf16_f32 v{d}, v{lo_}, v{hi_}")
    a("s_cmp_eq_u32 s27, 1")
    a("s_cbranch_scc1 B_ODD")
    A_, B_, C_ = K_ + 9, K_ + 10, K_ + 11
    for i in range(4): pk(W_ + i, K_ + 7 - 2 * i, K_ + 6 - 2 * i)
    for i, (x, y) in enumerate(((C_, C_), (B_, B_), (B_, A_), (A_, A_))): pk(W_ + 4 + i, x, y)
    for sl in range(2):
        A2, C2, M2 = K_ + 12 + 2 * sl, K_ + 13 + 2 * sl, CT + sl
        for i, (x, y) in enumerate(((C2, C2), (C2, M2), (A2, A2), (A2, A2))): pk(W_ + 8 + 4 * sl + i, x, y)
    a("s_branch B_IMG")
    a.label("B_ODD")
    for i in range(4): pk(W_ + i, K_ + 8 - 2 * i, K_ + 7 - 2 * i)
    for i, (x, y) in enumerate(((C_, C_), (C_, B_), (B_, B_), (A_, A_))): pk(W_ + 4 + i, x, y)
    for sl in range(2):
        A2, C2, M2 = K_ + 12 + 2 * sl, K_ + 13 + 2 * sl, CT + sl
        for i, (x, y) in enumerate(((C2, C2), (C2, C2), (M2, A2), (A2, A2))): pk(W_ + 8 + 4 * sl + i, x, y)
    a("s_mov_b64 exec, 1")
    pk(W_ + 16, K_, VZ)
    a("s_mov_b64 exec, -1")
    a.label("B_IMG")
    for sl in range(4):
        a(f"ds_write_b128 v6, {vr(W_+4*sl,4)} offset:{(3-sl)*1024}")
    a("v_add_u32 v7, s49, v2")
    a("s_mov_b64 exec, 3")
    a(f"ds_write_b128 v7, {vr(W_+16,4)} offset:4096")
    a("s_mov_b64 exec, -1")
    a("s_waitcnt vmcnt(0)")
    for i in range(2):
        a(f"ds_write_b128 v241, {vr(UL+4*i,4)} offset:{512*i}")
    a("s_waitcnt lgkmcnt(0)")
    a("s_barrier")
    a.stamp(4)
    FB, CAC = 16, 144
    a.nds = 0
    tg = {}
    def loadstep(stp):
        b = FB + 64 * (stp & 1)
        for i in range(8):
            o = 128 * (1 - (i & 1)) + 16 * (3 - stp)
            a.ds(f"ds_read2_b32 {vr(b+4*i,2)}, v{8+(i>>1)} offset0:{o} offset1:{o+1}")
            a.ds(f"ds_read2_b32 {vr(b+4*i+2,2)}, v{8+(i>>1)} offset0:{o+2} offset1:{o+3}")
            tg[(stp, i)] = a.ds(f"ds_read_b128 {vr(b+32+4*i,4)}, v12 offset:{512*i+64*(3-stp)}")
    loadstep(0)
    for stp in range(4):
        b = FB + 64 * (stp & 1)
        order = sorted([(i, tp) for i in range(8) for tp in range(8 - i)], key=lambda x: (max(x), x[0] + x[1]))
        nxt = []
        if stp < 3:
            b2 = FB + 64 * ((stp + 1) & 1)
            for i in range(8):
                o = 128 * (1 - (i & 1)) + 16 * (3 - stp - 1)
                nxt.append((None, f"ds_read2_b32 {vr(b2+4*i,2)}, v{8+(i>>1)} offset0:{o} offset1:{o+1}"))
                nxt.append((None, f"ds_read2_b32 {vr(b2+4*i+2,2)}, v{8+(i>>1)} offset0:{o+2} offset1:{o+3}"))
                nxt.append(((stp + 1, i), f"ds_read_b128 {vr(b2+32+4*i,4)}, v12 offset:{512*i+64*(3-stp-1)}"))
        waited = -1
        seen = set()
        for k, (i, tp) in enumerate(order):
            if max(i, tp) > waited:
                waited = max(i, tp)
                a.wait_ds(tg[(stp, waited)])
            t = i + tp
            c = vr(CAC + 4 * t, 4)
            if stp == 0 and t not in seen:
                c = "0"; seen.add(t)
            a(f"{MF16} {vr(CAC+4*t,4)}, {vr(b+4*i,4)}, {vr(b+32+4*tp,4)}, {c}")
            if k >= 8 and nxt:
                key, ins = nxt.pop(0)
                r = a.ds(ins)
                if key: tg[key] = r
        assert not nxt
    a.stamp(5)
    RR = 16
    for tl in range(4):
        a(f"ds_read_b64 {vr(80+2*tl,2)}, v13 offset:{512*tl}")
    a("s_cmp_eq_u32 s27, 1")
    a.nop(3)
    a("s_cbranch_scc1 B_R1")
    for par in range(2):
        if par: a.label("B_R1")
        for q in range(4):
            a(f"ds_write_b128 v242, {vr(CAC+16*(1-par)+4*q,4)} offset:{1024*q}")
        a("s_waitcnt lgkmcnt(0)")
        a("s_barrier")
        for q in range(4):
            a(f"ds_read_b128 {vr(RR+4*q,4)}, v243 offset:{1024*q}")
        a("s_waitcnt lgkmcnt(0)")
        for r in range(0, 16, 2):
            a(f"v_pk_add_f32 {vr(RR+r,2)}, {vr(RR+r,2)}, {vr(CAC+16*par+r,2)}")
        if not par: a("s_branch B_R2")
    a.label("B_R2")
    for t in range(4):
        for i in range(2):
            a(f"v_lshlrev_b32 v{88+2*i}, 16, v{80+2*t+i}")
            a(f"v_and_b32 v{88+2*i+1}, 0xffff0000, v{80+2*t+i}")
        for r in range(4):
            a(f"v_fmac_f32 v{RR+4*t+r}, s38, v{88+r}")
        for i in range(2):
            a(f"v_cvt_pk_bf16_f32 v{80+2*t+i}, v{RR+4*t+2*i}, v{RR+4*t+2*i+1}")
    a("s_nop 1")
    for p in range(2):
        for i in range(2):
            a(f"v_permlane16_swap_b32 v{80+4*p+i}, v{80+4*p+2+i}")
    for p in range(2):
        a(f"buffer_store_dwordx4 {vr(80+4*p,4)}, v2, s[20:23], s41 offen offset:{1024*p}{SC}")
    a("s_waitcnt vmcnt(0)")
    cnt_add(a, 4, "s40")
    fin(a, 6)
    a("s_endpgm")

def gen_C(a):
    a.label("L_C")
    a("s_setprio 3")
    R, U, GU, GW = 16, 80, 144, 160
    a("s_sub_u32 s25, s2, 224")
    a("s_lshl_b32 s26, s31, 2")
    a("s_sub_u32 s33, s32, 28")
    a("s_add_u32 s26, s26, s33")
    a("s_lshl_b32 s26, s26, 2")
    a("s_add_u32 s26, s26, s24")
    a("s_mul_i32 s36, s26, 14336")
    for i in range(1, 4):
        a(f"s_add_u32 s{36+i}, s36, {3584*i}")
    a("s_add_u32 s45, s25, s24")
    a("s_waitcnt lgkmcnt(0)")
    a.srd(20, P_WS, WS_SIZE)
    a.srd(12, P_X, X_BYTES)
    for r in range(16):
        a(f"buffer_load_dwordx4 {vr(R+4*r,4)}, v2, s[12:15], s{36+(r>>2)} offen offset:{896*(r&3)}")
    a.srd(16, P_GW, 896)
    a(f"buffer_load_dwordx4 {vr(GW,4)}, v2, s[16:19], 0 offen")
    a("v_mov_b32 v4, 1")
    a(f"s_mul_i32 s36, s26, {2*XTS}")
    a(f"s_add_u32 s36, s36, {XT}")
    a("s_add_u32 s37, s36, 3584")
    a(f"s_add_u32 s38, s36, {XTS}")
    a("s_add_u32 s39, s38, 3584")
    a("s_mov_b32 s46, 0x05040100")
    a("s_mov_b32 s47, 0x07060302")
    a("s_mov_b32 exec_hi, 0xffffff")
    for hb in range(2):
        a(f"s_waitcnt vmcnt({9 if hb == 0 else 8})")
        for cc in range(8):
            i, e = cc >> 1, cc & 1
            u = U + 32 * hb + 4 * cc
            for q in range(4):
                a(f"v_perm_b32 v{u+q}, v{R+32*hb+4*(2*q+1)+i}, v{R+32*hb+4*(2*q)+i}, s{46+e}")
            a(f"buffer_store_dwordx4 {vr(u,4)}, v2, s[20:23], s{36+2*hb+(cc>>2)} offen offset:{896*(cc&3)}{SC}")
    a.stamp(1)
    a("s_mov_b64 exec, -1")
    nonce_issue(a, 250)
    a("v_lshlrev_b32 v5, 7, v1")
    a(f"s_mov_b32 s41, {F_XT}")
    for r in range(16):
        a(f"v_mov_b32 v{GU+r}, 0")
    a("s_mov_b32 exec_hi, 0xffffff")
    for i in range(4):
        for r in range(16):
            a(f"v_dot2c_f32_bf16 v{GU+r}, v{R+4*r+i}, v{GW+i}")
    a("s_mov_b64 exec, -1")
    a("s_waitcnt vmcnt(0)")
    nonce_take(a, 250)
    a("s_barrier")
    a("s_cmp_lg_u32 s24, 0")
    a("s_cbranch_scc1 C_NOADD")
    a("s_mov_b32 exec_hi, 0")
    a("buffer_atomic_add v4, v5, s[20:23], s41 offen sc1")
    a("s_mov_b64 exec, -1")
    a.label("C_NOADD")
    a.stamp(2)
    a("s_setprio 1")
    a("s_min_u32 s45, s25, 15")
    a("s_mul_i32 s33, s45, 25088")
    a("s_mul_i32 s34, s24, 7168")
    a("s_add_u32 s33, s33, s34")
    a("v_add_u32 v3, 4096, v2")
    a.srd(12, P_WO, 448 * 896)
    a("s_mov_b32 m0, s34")
    a("s_nop 0")
    for i in range(4):
        a(f"buffer_load_dwordx4 v2, s[12:15], s33 offen offset:{1024*i} lds")
    a("s_add_u32 m0, s34, 4096")
    a("s_nop 0")
    for i in range(3):
        a(f"buffer_load_dwordx4 v3, s[12:15], s33 offen offset:{1024*i} lds")
    for sh in ("row_shr:1", "row_shr:2", "row_shr:4", "row_shr:8"):
        for r in range(16):
            a(f"v_add_f32_dpp v{GU+r}, v{GU+r}, v{GU+r} {sh} row_mask:0xf bank_mask:0xf bound_ctrl:0")
    for r in range(16):
        a(f"v_add_f32_dpp v{GU+r}, v{GU+r}, v{GU+r} row_bcast:15 row_mask:0xa bank_mask:0xf")
    for r in range(16):
        a(f"v_add_f32_dpp v{GU+r}, v{GU+r}, v{GU+r} row_bcast:31 row_mask:0xc bank_mask:0xf")
    for op in (f"v_mul_f32 vX, {hex(f2u(-LOG2E))}, vX", "v_exp_f32 vX, vX", "v_add_f32 vX, 1.0, vX", "v_rcp_f32 vX, vX"):
        for r in range(16):
            a(op.replace("vX", f"v{GU+r}"))
    a("s_lshl_b32 s35, s26, 6")
    a(f"s_add_u32 s35, s35, {GO}")
    a("s_lshr_b32 s37, s26, 1")
    a("s_lshl_b32 s37, s37, 7")
    a(f"s_add_u32 s37, s37, {F_G}")
    a("s_mov_b32 exec_lo, 0")
    a("s_mov_b32 exec_hi, 0x80000000")
    for i in range(4):
        a(f"buffer_store_dwordx4 {vr(GU+4*i,4)}, v{VZ}, s[20:23], s35 offen offset:{16*i}{SC}")
    a("s_mov_b64 exec, -1")
    a("v_lshrrev_b32 v15, 5, v1")
    a("v_bfe_u32 v13, v1, 2, 2")
    a("v_lshl_add_u32 v13, v15, 2, v13")
    a("v_mul_u32_u24 v13, 896, v13")
    a("v_bfe_u32 v14, v1, 4, 1")
    a("v_lshl_add_u32 v13, v14, 5, v13")
    a("v_and_b32 v14, 3, v1")
    a("v_lshl_add_u32 v12, v14, 3, v13")
    a("s_lshr_b32 s49, s24, 1")
    a("s_mul_i32 s36, s49, 14336")
    a("s_mul_i32 s38, s27, 448")
    a("s_add_u32 s36, s36, s38")
    a("v_add_u32 v12, s36, v12")
    a(f"s_mul_i32 s38, s27, {7*32768}")
    a("s_lshl_b32 s39, s45, 1")
    a("s_add_u32 s39, s39, s49")
    a("s_lshl_b32 s39, s39, 10")
    a("s_add_u32 s38, s38, s39")
    a(f"s_add_u32 s38, s38, {WOF}")
    a("s_lshr_b32 s40, s25, 2")
    a("s_lshl_b32 s40, s40, 7")
    a(f"s_add_u32 s40, s40, {F_WO}")
    a("s_waitcnt vmcnt(0)")
    cnt_add(a, 4, "s37")
    a("s_cmp_ge_u32 s25, 16")
    a("s_cbranch_scc1 C_END")
    a("s_barrier")
    for i in range(7):
        for hr in range(2):
            a(f"ds_read_b64_tr_b16 {vr(16+4*i+2*hr,2)}, v12 offset:{64*i+8*hr*896}")
    a("s_waitcnt lgkmcnt(0)")
    a("s_cmp_eq_u32 s49, 0")
    a("s_cbranch_scc1 C_WO2")
    a("s_mov_b32 exec_lo, 0")
    for i in range(7):
        a(f"v_mov_b32 v{16+4*i+2}, 0")
        a(f"v_mov_b32 v{16+4*i+3}, 0")
    a("s_mov_b32 exec_lo, -1")
    a.label("C_WO2")
    for i in range(7):
        a(f"buffer_store_dwordx4 {vr(16+4*i,4)}, v2, s[20:23], s38 offen{SC}")
        if i < 6: a("s_add_u32 s38, s38, 32768")
    a("s_waitcnt vmcnt(0)")
    cnt_add(a, 4, "s40")
    a.label("C_END")
    fin(a, 3)

def gen():
    a = Asm()
    gen_entry(a)
    gen_A(a)
    gen_B(a)
    gen_C(a)
    a.label("L_END")
    a("s_endpgm")
    return a.text()

HEADER = open("cdna_kernels/" + NAME + ".s.ref").read().split("; Override launch geometry")[0]

if __name__ == "__main__":
    name = NAME + "_kernel"
    out = HEADER + "; @launch grid=(512,1,1) block=(256,1,1) lds=81920\n"
    out += '.amdgcn_target "amdgcn-amd-amdhsa--gfx950"\n' + kernel_header(name) + gen() + kernel_desc(name, 256)
    dst = sys.argv[1] if len(sys.argv) > 1 else "cdna_kernels/" + NAME + ".s"
    open(dst, "w").write(out)
```

```python
import sys, math, os
import numpy as np
from dsl import *

NAME = "gated_mix__mha_block__ssm_conv_s4__prompt"
KTS = 28672; VTS = 32256; XTS = 7296
KF = 0x000000
VF = 0x200000
XT = 0x400000
GO = 0x5D0000
WOF = 0x5E0000
OF = 0x660000
BT = 0x860000
FL = 0xA40000
F_KV = FL
F_O = FL + 64 * 128
F_XT = FL + 192 * 128
F_G = FL + 256 * 128
F_B = FL + 320 * 128
F_WO = FL + 336 * 128
WS_SIZE = 0xA50000
X_BYTES = 2048 * 896
W_BYTES = 448 * 2688
LOG2E = 1.4426950408889634
QSCALE = LOG2E * 28 ** -0.5
MF32 = "v_mfma_f32_32x32x16_bf16"
MF16 = "v_mfma_f32_16x16x32_bf16"
SC = " sc1"
NON = 60
POLLMAX = 40000
EXP = os.environ.get("EXP", "")
DEPTH = int(os.environ.get("DEPTH", "3"))
PA = int(os.environ.get("PA", "1")); PB = int(os.environ.get("PB", "2")); PC = int(os.environ.get("PC", "0"))
P_X, P_W, P_WO, P_PAR, P_LDT, P_DSK, P_GW, P_OUT, P_DBG, P_WS = 64, 66, 68, 72, 84, 86, 88, 90, 92, 94
VZ = 255

def fin(a, idx):
    if not os.environ.get("STAMP"): return
    a("s_waitcnt vmcnt(0)")
    a.stamp(idx)
    a.stamp_flush(P_WS)

def cmul(a, d, x, y, phase):
    if phase == 0:
        a(f"v_pk_mul_f32 {vr(d,2)}, {vr(x,2)}, {vr(y,2)} op_sel_hi:[0,1]")
    else:
        a(f"v_pk_fma_f32 {vr(d,2)}, {vr(x,2)}, {vr(y,2)}, {vr(d,2)} op_sel:[1,1,0] op_sel_hi:[1,0,1] neg_lo:[1,0,0]")

uid = [0]
def nonce_issue(a, v):
    uid[0] += 1; u = uid[0]
    a("s_cmp_lg_u32 s24, 0")
    a(f"s_cbranch_scc1 NI{u}")
    a(f"global_load_dword v{v}, v{VZ}, {sr(P_DBG,2)}{os.environ.get('NSC', ' sc1')}")
    a.label(f"NI{u}")

def nonce_take(a, v):
    uid[0] += 1; u = uid[0]
    a("s_cmp_lg_u32 s24, 0")
    a(f"s_cbranch_scc1 ND{u}")
    a(f"s_mov_b32 s62, {POLLMAX}")
    a.label(f"NT{u}")
    a(f"v_readfirstlane_b32 s{NON}, v{v}")
    a("s_nop 1")
    a(f"s_cmp_lg_u32 s{NON}, 0")
    a(f"s_cbranch_scc1 ND{u}")
    a("s_sub_u32 s62, s62, 1")
    a(f"s_cbranch_scc1 ND{u}")
    a("s_sleep 8")
    a(f"global_load_dword v{v}, v{VZ}, {sr(P_DBG,2)} sc1")
    a("s_waitcnt vmcnt(0)")
    a(f"s_branch NT{u}")
    a.label(f"ND{u}")

def cnt_load(a, vd, soff):
    a(f"v_mov_b32 v{vd}, 0")
    a("s_mov_b64 exec, 1")
    t = a.vm(f"buffer_atomic_add v{vd}, v{VZ}, s[20:23], {soff} offen sc0 sc1")
    a("s_mov_b64 exec, -1")
    return t

def cnt_wait(a, vd, soff, target, sleep=1):
    uid[0] += 1; u = uid[0]
    a(f"s_mov_b32 s62, {POLLMAX}")
    a.label(f"FC{u}")
    a(f"v_readfirstlane_b32 s4, v{vd}")
    a("s_nop 1")
    a(f"s_cmp_eq_u32 s4, {target}")
    a(f"s_cbranch_scc1 FD{u}")
    a("s_sub_u32 s62, s62, 1")
    a(f"s_cbranch_scc1 FD{u}")
    a(f"s_sleep {sleep}")
    n0 = a.nvm
    cnt_load(a, vd, soff)
    a.nvm = n0
    a("s_waitcnt vmcnt(0)")
    a(f"s_branch FC{u}")
    a.label(f"FD{u}")

def cnt_add(a, vt, soff, va=None, mask="1"):
    a(f"v_mov_b32 v{vt}, 1")
    a(f"s_mov_b64 exec, {mask}")
    a.vm(f"buffer_atomic_add v{vt}, v{VZ if va is None else va}, s[20:23], {soff} offen sc1")
    a("s_mov_b64 exec, -1")

def late_load(a, vd, va):
    a("s_mov_b64 exec, 7")
    a(f"buffer_load_dword v{vd}, v{va}, s[20:23], 0 offen sc1")
    a("s_mov_b64 exec, -1")

def late_check(a, vd, va, vtgt):
    uid[0] += 1; u = uid[0]
    a(f"s_mov_b32 s62, {POLLMAX}")
    a.label(f"FC{u}")
    a(f"v_cmp_ne_u32 vcc, v{vd}, v{vtgt}")
    a("s_nop 1")
    a("s_and_b32 s4, vcc_lo, 7")
    a(f"s_cbranch_scc0 FD{u}")
    a("s_sub_u32 s62, s62, 1")
    a(f"s_cbranch_scc1 FD{u}")
    a("s_sleep 16")
    late_load(a, vd, va)
    a("s_waitcnt vmcnt(0)")
    a(f"s_branch FC{u}")
    a.label(f"FD{u}")

RAW = 244
XRW = 232

def gen_entry(a):
    a("s_cmp_ge_u32 s2, 512")
    a("s_cbranch_scc1 L_END")
    a.stamp(0)
    a("s_load_dwordx16 s[64:79], s[0:1], 0")
    a("s_load_dwordx16 s[80:95], s[0:1], 64")
    if "nopf" not in EXP:
        a(f"s_cmp_ge_u32 s2, {os.environ.get('PFN', '8')}")
        a("s_cbranch_scc1 E_NOPF")
        a("s_getpc_b64 s[4:5]")
        a.label("E_PC")
        a("v_lshlrev_b32 v4, 7, v0")
        a("v_min_u32 v4, L_END-E_PC, v4")
        a("v_mov_b32 v5, s5")
        a("v_add_co_u32 v4, vcc, s4, v4")
        a("s_nop 1")
        a("v_addc_co_u32 v5, vcc, 0, v5, vcc")
        a("global_load_dword v6, v[4:5], off")
        a.label("E_NOPF")
    a("v_lshrrev_b32 v13, 6, v0")
    a("v_and_b32 v1, 63, v0")
    a("v_lshlrev_b32 v2, 4, v1")
    a(f"v_mov_b32 v{VZ}, 0")
    a("v_readfirstlane_b32 s24, v13")
    a("s_and_b32 s31, s2, 7")
    a("s_bfe_u32 s32, s2, 0x50003")
    a("s_cmp_ge_u32 s2, 256")
    a("s_cbranch_scc1 L_A")
    a("s_and_b32 s27, s24, 1")
    a("s_cmp_ge_u32 s32, 28")
    a("s_cbranch_scc1 L_C")
    a("s_setprio 3")
    a("s_lshl_b32 s39, s32, 1")
    a("s_lshr_b32 s34, s24, 1")
    a("s_add_u32 s26, s39, s34")
    a("s_lshl_b32 s26, s26, 3")
    a("s_add_u32 s26, s26, s31")
    a("s_lshl_b32 s33, s26, 9")
    a("s_lshl_b32 s34, s27, 8")
    a("s_add_u32 s33, s33, s34")
    a("v_lshlrev_b32 v3, 2, v1")
    a("v_add_u32 v13, s33, v3")
    a("s_lshl_b32 s34, s26, 1")
    a("s_and_b32 s34, s34, -4")
    a("s_add_u32 s45, s2, s24")
    a("v_lshlrev_b32 v4, 7, v1")
    a(f"s_mov_b32 s33, {FL}")
    a("s_waitcnt lgkmcnt(0)")
    a.srd(20, P_WS, WS_SIZE)
    a("s_cmp_lg_u32 s45, 0")
    a("s_cbranch_scc1 E_NOINIT")
    for i in range(6):
        a(f"buffer_store_dword v{VZ}, v4, s[20:23], s33 offen sc1")
        if i < 5: a("s_addk_i32 s33, 8192")
    a.label("E_NOINIT")
    for i in range(6):
        a(f"global_load_dword v{RAW+i}, v13, {sr(P_PAR+2*i,2)}")
    a(f"s_load_dword s28, {sr(P_LDT,2)}, s34")
    a(f"s_load_dword s38, {sr(P_DSK,2)}, s34")
    a("s_cmp_lg_u32 s45, 0")
    a("s_cbranch_scc1 L_B")
    a("v_mov_b32 v4, 1")
    a("s_waitcnt vmcnt(6)")
    a("s_mov_b64 exec, 1")
    a(f"global_store_dword v{VZ}, v4, {sr(P_DBG,2)} sc1")
    a("s_mov_b64 exec, -1")
    a("s_branch L_B")

def gen_A(a):
    a.label("L_A")
    if "noA" in EXP: a("s_endpgm")
    a(f"s_setprio {PA}")
    a("s_lshr_b32 s33, s31, 1")
    a("s_lshl_b32 s33, s33, 2")
    a("s_and_b32 s34, s32, 3")
    a("s_add_u32 s25, s33, s34")
    a("s_and_b32 s27, s31, 1")
    a("s_lshr_b32 s54, s32, 2")
    a("s_lshl_b32 s33, s27, 3")
    a("s_add_u32 s26, s33, s54")
    XR, ACC, QACC, WF, NV, PK, T = 16, 128, 160, 176, 248, 224, 240
    XL = 32768
    a("s_lshl_b32 s33, s25, 2")
    a("s_add_u32 s35, s33, s24")
    a("s_mul_i32 s33, s35, 28672")
    a("v_lshrrev_b32 v13, 3, v1")
    a("v_mul_u32_u24 v12, 896, v13")
    a("v_and_b32 v14, 7, v1")
    a("v_lshrrev_b32 v15, 4, v1")
    a("v_xor_b32 v15, v15, v14")
    a("v_lshl_add_u32 v3, v15, 4, v12")
    a("v_add_u32 v3, s33, v3")
    a("v_xor_b32 v246, 64, v3")
    a(f"v_add_u32 v244, {6144}, v246")
    a(f"v_add_u32 v245, {6144*2}, v3")
    a(f"v_add_u32 v246, {6144*3}, v246")
    a("s_mul_i32 s40, s24, 12288")
    a(f"s_add_u32 s40, s40, {XL}")
    a("s_lshl_b32 s33, s34, 1")
    a("s_add_u32 s28, s33, s54")
    a("s_sub_u32 s33, s28, 7")
    a("s_cmp_ge_u32 s28, 7")
    a("s_cselect_b32 s28, s33, s28")
    if "norot" in EXP: a("s_mov_b32 s28, 0")
    a("s_mov_b32 s30, s28")
    a("v_bfe_u32 v15, v1, 4, 1")
    a("v_lshlrev_b32 v15, 2, v15")
    a("v_xor_b32 v15, v15, v14")
    a("v_mul_u32_u24 v4, 2688, v13")
    a("v_lshl_add_u32 v4, v15, 4, v4")
    a("s_min_u32 s55, s54, 6")
    a("s_mul_i32 s33, s24, 43008")
    a("s_mul_i32 s34, s27, 896")
    a("s_add_u32 s33, s33, s34")
    a("s_lshl_b32 s34, s55, 7")
    a("s_add_u32 s33, s33, s34")
    a("s_add_u32 s33, s33, 896")
    a("v_add_u32 v4, s33, v4")
    a(f"v_add_u32 v5, {21504-1024}, v4")
    a("s_lshl_b32 s36, s24, 11")
    a("s_waitcnt lgkmcnt(0)")
    a.stamp(1)
    a.srd(12, P_X, X_BYTES)
    a.srd(16, P_W, W_BYTES)
    def adv(r):
        a(f"s_add_u32 s{r}, s{r}, 1")
        a(f"s_cmp_eq_u32 s{r}, 7")
        a(f"s_cselect_b32 s{r}, 0, s{r}")
    QD = int(os.environ.get("QD", "14"))
    L = []
    for s_ in range(7):
        L += [("x", s_, 0), ("x", s_, 1), ("x", s_, 2), ("x", s_, 3), ("w", s_, 0), ("w", s_, 1)]
    L += [("n", 0, 0)] + [("q", i, 0) for i in range(7)]
    tag = {}; tagxf = {}
    lp = [0]; lastbar = [-1]; xfree = [-1]; light = [False]
    def issue():
        if lp[0] >= len(L): return
        while light[0] and L[lp[0]][0] == "w": lp[0] += 1
        k, s_, n = L[lp[0]]
        need = {"x": s_ - 3, "q": 4 + (s_ >> 2)}.get(k, -1)
        if need > xfree[0]: return
        if k == "w" and s_ >= 4 and lastbar[0] < s_ - 2: return
        lp[0] += 1
        if k == "x":
            if n == 0:
                if s_: adv(28)
                a(f"s_add_u32 m0, s40, {(s_%3)*4096}")
                a("s_lshl_b32 s29, s28, 7")
                a("s_mul_i32 s37, s28, 172032")
            tag[(k, s_, n)] = a.vm(f"buffer_load_dwordx4 v{3 if n == 0 else 243+n}, s[12:15], s29 offen offset:{1024*n} lds")
        elif k == "w":
            if n == 0:
                a(f"s_add_u32 m0, s36, {(s_%4)*8192}")
                a("s_nop 0")
            tag[(k, s_, n)] = a.vm(f"buffer_load_dwordx4 v{4+n}, s[16:19], s37 offen offset:{1024*n} lds")
        elif k == "n":
            nonce_issue(a, NV)
        else:
            a(f"s_add_u32 m0, s40, {4096 + 1024*s_}")
            a("s_mul_i32 s39, s30, 172032")
            a.vm(f"buffer_load_dwordx4 v14, s[16:19], s39 offen lds")
            if s_ < 6: adv(30)
    LSL = int(os.environ.get("LSL", "0"))
    if LSL:
        a("s_cmp_lg_u32 s54, 7")
        a("s_cbranch_scc1 A_GO")
        a(f"s_sleep {LSL}")
        a.label("A_GO")
    for _ in range(QD): issue()
    if "stopA" in EXP: a.stamp(7)
    a.srd(20, P_WS, WS_SIZE)
    if "Aload" in EXP:
        a("s_waitcnt vmcnt(0)"); a("s_endpgm")
    a("v_and_b32 v13, 31, v1")
    a("v_bfe_u32 v14, v1, 1, 3")
    a("v_lshrrev_b32 v15, 5, v1")
    a("v_xor_b32 v14, v14, v15")
    a("v_lshlrev_b32 v13, 7, v13")
    a("v_lshl_add_u32 v8, v14, 4, v13")
    a("v_add_u32 v8, s40, v8")
    for ks in range(1, 4):
        a(f"v_xor_b32 v{8+ks}, {32*ks}, v8")
    a(f"v_bfe_u32 v{T}, v1, 2, 2")
    a(f"v_lshl_add_u32 v{T+1}, v15, 3, v{T}")
    a(f"v_bfe_u32 v{T+2}, v1, 4, 1")
    a(f"v_and_b32 v{T+3}, 3, v1")
    a(f"v_lshl_add_u32 v{PK}, v{T+2}, 2, v{T+3}")
    a(f"v_and_b32 v{PK+1}, 1, v1")
    a(f"v_bfe_u32 v{PK+2}, v1, 1, 1")
    a(f"v_lshl_add_u32 v{PK+1}, v{PK+1}, 1, v{PK+2}")
    a(f"v_lshl_add_u32 v{PK+1}, v{T+2}, 2, v{PK+1}")
    a(f"v_bfe_u32 v{T+3}, v1, 3, 1")
    a(f"v_lshlrev_b32 v{T+3}, 6, v{T+3}")
    a(f"v_lshl_add_u32 v{T+3}, v{T+1}, 7, v{T+3}")
    a("s_cmp_eq_u32 s27, 1")
    a("s_cselect_b64 vcc, -1, 0")
    a(f"v_cndmask_b32 v12, v{PK+1}, v{PK}, vcc")
    a(f"v_lshl_add_u32 v12, v12, 3, v{T+3}")
    a("v_xor_b32 v13, 64, v12")
    a(f"v_add_u32 v{PK+2}, 2, v{PK+1}")
    a(f"v_sub_u32 v{PK+3}, 7, v{PK+1}")
    a(f"v_cmp_gt_u32 vcc, 6, v{PK+1}")
    a("s_bitcmp1_b32 s26, 0")
    a("s_cselect_b64 s[4:5], -1, 0")
    a(f"v_cndmask_b32 v{PK+2}, v{PK+3}, v{PK+2}, vcc")
    a(f"v_cndmask_b32 v{PK+2}, v{PK+1}, v{PK+2}, s[4:5]")
    a(f"v_lshlrev_b32 v15, 6, v{T+1}")
    a(f"v_lshl_add_u32 v15, v{PK+2}, 3, v15")
    a(f"v_add_u32 v15, {XL + 4096}, v15")
    a("v_lshrrev_b32 v14, 2, v1")
    a("v_mul_u32_u24 v14, 2688, v14")
    a(f"v_and_b32 v{T}, 3, v1")
    a(f"v_lshl_add_u32 v14, v{T}, 4, v14")
    a("s_mul_i32 s33, s26, 56")
    a("s_and_b32 s33, s33, -16")
    a(f"s_mul_i32 s34, s24, {16*2688}")
    a("s_add_u32 s33, s33, s34")
    a("v_add_u32 v14, s33, v14")
    a("s_mul_i32 s33, s54, 2341")
    a("s_lshr_b32 s33, s33, 10")
    a(f"v_add_u32 v{PK}, s33, v1")
    a(f"v_mul_u32_u24 v{PK+1}, 28, v{PK}")
    a(f"v_lshrrev_b32 v{PK+1}, 6, v{PK+1}")
    a(f"v_cmp_ge_u32 s[56:57], s54, v{PK+1}")
    a(f"v_lshlrev_b32 v243, 9, v{PK}")
    a("s_lshr_b32 s42, s25, 2")
    a("s_lshl_b32 s42, s42, 7")
    a(f"s_add_u32 s42, s42, {F_KV}")
    a("s_and_b64 s[56:57], s[56:57], 15")
    a("s_cmp_eq_u32 s54, 7")
    a("s_cbranch_scc1 A_LIGHT")
    a("s_cmp_eq_u32 s27, 1")
    a("s_cbranch_scc1 A_V")

    def pass1(vtype):
        tagtr = {}
        NB = 6; TD = 3
        NIS = int(os.environ.get("NIS", "2"))
        def trload(u):
            s, ks = u >> 2, u & 3
            for t in range(2):
                for hr in range(2):
                    off = (s % 4) * 8192 + (16 * ks + 4 * hr) * 128
                    tagtr[u] = a.ds(f"ds_read_b64_tr_b16 {vr(WF+(u%NB)*8+4*t+2*hr,2)}, v{12+t} offset:{off}")
        pend = None
        for u in range(-4, 28):
            if u >= 0:
                a.wait_ds(max(tagtr[u], tagxf[u >> 2]))
                for t in range(2):
                    wf = vr(WF + (u % NB) * 8 + 4 * t, 4); xf = vr(XR + 4 * u, 4)
                    c = "0" if u == 0 else vr(ACC + 16 * t, 16)
                    if vtype:
                        a(f"{MF32} {vr(ACC+16*t,16)}, {xf}, {wf}, {c}")
                    else:
                        a(f"{MF32} {vr(ACC+16*t,16)}, {wf}, {xf}, {c}")
            if (u + TD) % 4 == 0 and (u + TD) // 4 < 7:
                sb = (u + TD) // 4
                a.wait_vm(tag[("w", sb, 1)])
                a("s_barrier")
                lastbar[0] = sb
                if sb in (0, 6): a.stamp(2 + sb // 6)
            if pend is not None:
                a.wait_ds(tagxf[pend]); xfree[0] = pend; pend = None
            if 0 <= u + TD < 28:
                trload(u + TD)
            if u % 4 == 0 and u // 4 + 1 < 7:
                s = u // 4 + 1
                a.wait_vm(tag[("x", s, 3)])
                for ks in range(4):
                    tagxf[s] = a.ds(f"ds_read_b128 {vr(XR+16*s+4*ks,4)}, v{8+ks} offset:{(s%3)*4096}")
                pend = s
            for _ in range(NIS): issue()
        assert lp[0] == len(L), lp
    saved = (a.nvm, a.nds, lp[0])
    a("v_mov_b32 v247, v2")
    a(f"s_mul_i32 s38, s35, {KTS}")
    a("s_lshl_b32 s33, s55, 12")
    a("s_add_u32 s38, s38, s33")
    a("s_add_u32 s41, s38, 1024")
    a("s_add_u32 s43, s38, 2048")
    a("s_add_u32 s44, s38, 3072")
    pass1(False)
    a("s_branch A_ST")
    a.label("A_V")
    a.nvm, a.nds, lp[0] = saved; lastbar[0] = -1; xfree[0] = -1
    a("v_lshrrev_b32 v247, 5, v1")
    a(f"v_mul_u32_u24 v247, {8064-512}, v247")
    a("v_add_u32 v247, v247, v2")
    a(f"s_mul_i32 s38, s35, {VTS}")
    a("s_mul_i32 s33, s55, 1152")
    a("s_add_u32 s38, s38, s33")
    a(f"s_add_u32 s38, s38, {VF}")
    a("s_add_u32 s41, s38, 16128")
    a("s_add_u32 s43, s38, 512")
    a("s_add_u32 s44, s41, 512")
    a(f"v_lshrrev_b32 v{T}, 1, v1")
    a(f"v_mul_u32_u24 v{T}, 8064, v{T}")
    a(f"v_and_b32 v{T+1}, 1, v1")
    a(f"v_lshl_add_u32 v{T}, v{T+1}, 4, v{T}")
    a(f"v_subrev_u32 v{T+1}, 1, v{T+1}")
    for i in range(4):
        a(f"v_and_b32 v{PK+i}, 0x3f803f80, v{T+1}")
    a("s_mov_b64 exec, 0xff")
    a(f"buffer_store_dwordx4 {vr(PK,4)}, v{T}, s[20:23], s38 offen offset:1024{SC}")
    a("s_mov_b64 exec, -1")
    pass1(True)
    a.label("A_ST")
    a.nop(11)
    for t in range(2):
        for r in range(0, 16, 2):
            a(f"v_cvt_pk_bf16_f32 v{PK+8*t+r//2}, v{ACC+16*t+r}, v{ACC+16*t+r+1}")
        for f in range(2):
            a(f"buffer_store_dwordx4 {vr(PK+8*t+4*f,4)}, v247, s[20:23], s{(38,41,43,44)[2*t+f]} offen{SC}")
    a("s_waitcnt vmcnt(4)")
    a("s_branch A_P2")
    a.label("A_LIGHT")
    a.nvm, a.nds, lp[0] = saved; xfree[0] = -1; light[0] = True
    for _ in range(6): issue()
    for s_ in range(7):
        a.wait_vm(tag[("x", s_, 3)])
        for ks in range(4):
            a.ds(f"ds_read_b128 {vr(XR+16*s_+4*ks,4)}, v{8+ks} offset:{(s_%3)*4096}")
        a("s_waitcnt lgkmcnt(0)")
        xfree[0] = s_
        for _ in range(6): issue()
    assert lp[0] == len(L)
    a("s_waitcnt vmcnt(0)")
    a.label("A_P2")
    a.stamp(4)
    a("s_barrier")
    tq = {}
    def trq(u):
        for hr in range(2):
            tq[u] = a.ds(f"ds_read_b64_tr_b16 {vr(WF+(u%8)*4+2*hr,2)}, v15 offset:{(u&3)*12288+(u>>2)*1024+256*hr}")
    for u in range(6): trq(u)
    nonce_take(a, NV)
    for u in range(28):
        if u + 6 < 28: trq(u + 6)
        a.wait_ds(tq[u])
        c = "0" if u == 0 else vr(QACC, 16)
        a(f"{MF32} {vr(QACC,16)}, {vr(WF+(u%8)*4,4)}, {vr(XR+4*u,4)}, {c}")
    a("s_waitcnt vmcnt(0)")
    a("s_barrier")
    a("s_cmp_eq_u32 s54, 7")
    a("s_cselect_b32 s33, 1, s24")
    a("s_cmp_lg_u32 s33, 0")
    a("s_cbranch_scc1 A_NOPUB")
    cnt_add(a, NV, "s42", 243, "s[56:57]")
    a.label("A_NOPUB")
    a.stamp(5)
    if "stopA" in EXP:
        fin(a, 6); a("s_endpgm")
    Q, O, S, P, KB, VB, NM, MX, T2 = 16, 48, 112, 144, 160, 192, 224, 228, 232
    VK0, VK1, VV0, VV1, C1, C2 = 10, 11, 12, 13, 252, 253
    a("s_mul_i32 s33, s26, 28")
    a("s_lshr_b32 s44, s33, 6")
    a("s_add_u32 s34, s33, 27")
    a("s_lshr_b32 s34, s34, 6")
    a("s_sub_u32 s34, s34, s44")
    a("s_lshl_b32 s34, s34, 3")
    a("s_add_u32 s58, s34, 8")
    a("v_lshrrev_b32 v4, 5, v1")
    a("s_lshl_b32 s34, s26, 9")
    a("s_lshl_b32 s36, s24, 7")
    a("s_add_u32 s34, s34, s36")
    a(f"s_add_u32 s53, s34, {F_KV}")
    a(f"s_mov_b32 s46, {hex(f2u(QSCALE))}")
    a("s_mov_b32 s47, s46")
    for r in range(0, 16, 2):
        a(f"v_pk_mul_f32 {vr(QACC+r,2)}, {vr(QACC+r,2)}, s[46:47]")
    for r in range(0, 16, 2):
        a(f"v_cvt_pk_bf16_f32 v{Q+r//2}, v{QACC+r}, v{QACC+r+1}")
    a("s_mov_b32 exec_lo, 0")
    a(f"v_mov_b32 v{Q+6}, 0")
    a(f"v_mov_b32 v{Q+7}, 0")
    a("s_mov_b32 exec_lo, -1")
    a("s_lshl_b32 s36, s24, 11")
    a("v_add_u32 v6, s36, v2")
    for f in range(2):
        a(f"ds_write_b128 v6, {vr(Q+4*f,4)} offset:{1024*f}")
    a("s_lshr_b32 s34, s26, 1")
    a("s_mul_i32 s34, s34, 3584")
    a("s_and_b32 s36, s26, 1")
    a("s_lshl_b32 s37, s36, 11")
    a("s_add_u32 s34, s34, s37")
    a(f"v_add_u32 v{VK0}, s34, v2")
    a(f"v_add_u32 v{VK1}, 1024, v{VK0}")
    a(f"s_mul_i32 s37, s36, {2048-8}")
    a("s_mov_b32 exec_lo, 0")
    a(f"v_subrev_u32 v{VK1}, s37, v{VK1}")
    a("s_mov_b32 exec_lo, -1")
    a("v_and_b32 v5, 31, v1")
    a("v_add_u32 v7, s33, v5")
    a("v_lshrrev_b32 v8, 6, v7")
    a("v_lshlrev_b32 v8, 7, v8")
    a(f"v_lshl_add_u32 v{VV0}, v7, 4, v8")
    a("s_mul_i32 s34, s44, 1152")
    a("s_add_u32 s34, s34, 1024")
    a("s_add_u32 s37, s34, 16")
    a("s_mov_b32 exec_lo, 0x10000000")
    a("s_mov_b32 exec_hi, 0x10000000")
    a(f"v_mov_b32 v{VV0}, s34")
    a("s_mov_b32 exec_lo, 0xe0000000")
    a("s_mov_b32 exec_hi, 0xe0000000")
    a(f"v_mov_b32 v{VV0}, s37")
    a("s_mov_b64 exec, -1")
    a("s_movk_i32 s34, 8064")
    a(f"v_mad_u32_u24 v{VV0}, v4, s34, v{VV0}")
    a(f"v_add_u32 v{VV1}, 16128, v{VV0}")
    a(f"s_mul_i32 s34, s24, {16*KTS}")
    a(f"s_mul_i32 s37, s24, {16*VTS}")
    a(f"s_add_u32 s37, s37, {VF}")
    a.srd(12, P_WS, 16 * KTS, "s34")
    a.srd(16, P_WS, 16 * VTS, "s37")
    a(f"v_mov_b32 v{C1}, 0x3f803f80")
    a(f"v_mov_b32 v{C2}, 0x3f80")
    a("s_waitcnt lgkmcnt(0)")
    a("s_barrier")
    for t in range(1, 4):
        a(f"v_xor_b32 v5, {2048*t}, v6")
        for f in range(2):
            a(f"ds_read_b128 {vr(Q+8*t+4*f,4)}, v5 offset:{1024*f}")
    def zero_acc():
        for r in range(64):
            a(f"v_mov_b32 v{O+r}, 0")
        for r in range(8):
            a(f"v_mov_b32 v{VB+24+r}, 0")
    cnt_load(a, NV + 2, "s53")
    zero_acc()
    for t in range(4):
        a(f"v_mov_b32 v{NM+t}, 0")
    a("s_mov_b32 s41, 0")
    a("s_mov_b32 s42, 0x07060302")
    a("s_min_u32 s33, s32, 27")
    a("s_and_b32 s34, s33, 3")
    a("s_lshl_b32 s47, s31, 2")
    a("s_add_u32 s47, s47, s34")
    a("s_lshr_b32 s48, s33, 2")
    a("s_lshr_b32 s49, s24, 1")
    a("s_lshl_b32 s33, s47, 1")
    a("s_add_u32 s49, s49, s33")
    a("s_and_b32 s50, s24, 1")
    a("s_lshl_b32 s33, s48, 1")
    a("s_add_u32 s50, s50, s33")
    a("v_bfe_u32 v5, v1, 2, 2")
    a("v_lshlrev_b32 v9, 7, v5")
    a("v_bfe_u32 v5, v1, 4, 1")
    a("v_lshl_add_u32 v9, v5, 6, v9")
    a("v_and_b32 v5, 3, v1")
    a("v_lshl_add_u32 v9, v5, 4, v9")
    a("v_lshl_add_u32 v9, v4, 9, v9")
    for t in range(1, 4):
        a(f"s_xor_b32 s33, s24, {t}")
        a("s_mul_i32 s33, s33, 12288")
        a(f"s_add_u32 s33, s33, {(t-1)*4096}")
        a(f"v_add_u32 v{3+t}, s33, v2")
    a("s_mul_i32 s33, s24, 12288")
    a("v_add_u32 v7, s33, v2")
    a("v_or_b32 v8, 512, v7")
    a("s_lshl_b32 s33, s35, 4")
    a("s_add_u32 s33, s33, s26")
    a("s_lshl_b32 s43, s33, 11")
    a(f"s_add_u32 s43, s43, {OF}")
    a("s_lshr_b32 s51, s35, 1")
    a("s_lshl_b32 s51, s51, 9")
    a("s_lshr_b32 s33, s26, 2")
    a("s_lshl_b32 s33, s33, 7")
    a("s_add_u32 s51, s51, s33")
    a(f"s_add_u32 s51, s51, {F_O}")
    a("s_lshl_b32 s33, s50, 7")
    a(f"s_add_u32 s33, s33, {F_B}")
    a("v_mov_b32 v14, s33")
    a("v_mov_b32 v15, 64")
    a("s_lshl_b32 s33, s49, 7")
    a(f"s_add_u32 s33, s33, {F_G}")
    a("v_writelane_b32 v14, s33, 1")
    a("v_writelane_b32 v15, 2, 1")
    a("s_lshl_b32 s33, s24, 7")
    a(f"s_add_u32 s33, s33, {F_WO}")
    a("v_writelane_b32 v14, s33, 2")
    a("v_writelane_b32 v15, 16, 2")
    a("s_waitcnt vmcnt(0) lgkmcnt(0)")
    cnt_wait(a, NV + 2, "s53", "s58")
    a.stamp(6)
    def first_loads():
        a("s_mov_b32 s44, 0")
        a("s_mov_b32 s45, 0")
        for kt in range(4):
            for f in range(2):
                r = a.vm(f"buffer_load_dwordx4 {vr(KB+8*kt+4*f,4)}, v{VK0+f}, s[12:15], s44 offen{SC}")
            a(f"s_addk_i32 s44, {KTS}")
            if kt == 0: tag = r
            if kt < 3:
                for f in range(2):
                    a.vm(f"buffer_load_dwordx4 {vr(VB+8*kt+4*f,4)}, v{VV0+f}, s[16:19], s45 offen{SC}")
                a(f"s_addk_i32 s45, {VTS}")
        return tag
    def patch(kb):
        a(f"v_mov_b32_dpp v{kb+6}, v{C1} quad_perm:[0,1,2,3] row_mask:0xc bank_mask:0xf")
        a(f"v_mov_b32_dpp v{kb+7}, v{C2} quad_perm:[0,1,2,3] row_mask:0xc bank_mask:0xf")
    tagk0 = first_loads()
    a.wait_vm(tagk0)
    a.stamp(7)
    TT = [S, S + 16, T2, P]
    patch(KB)
    a("s_nop 0")
    for t in range(4):
        a(f"{MF32} {vr(TT[t],16)}, {vr(KB,4)}, {vr(Q+8*t,4)}, 0")
        a(f"{MF32} {vr(TT[t],16)}, {vr(KB+4,4)}, {vr(Q+8*t+4,4)}, {vr(TT[t],16)}")
    a.nop(8)
    for tp in (0, 2):
        for i in range(8):
            for t in (tp, tp + 1):
                if i == 0:
                    a(f"v_max3_f32 v{MX+t}, v{TT[t]}, v{TT[t]+1}, v{TT[t]+2}")
                elif i < 7:
                    a(f"v_max3_f32 v{MX+t}, v{MX+t}, v{TT[t]+2*i+1}, v{TT[t]+2*i+2}")
                else:
                    a(f"v_max_f32 v{MX+t}, v{MX+t}, v{TT[t]+15}")
    a.label("A_SETMAX")
    for t in range(4):
        a(f"v_mov_b32 v{T2+t}, v{MX+t}")
    for r in range(2):
        a(f"v_mov_b32 v{P+8+r}, 0")
    for t in range(4):
        a(f"v_permlane32_swap_b32 v{T2+t}, v{MX+t}")
    for t in range(4):
        a(f"v_max_f32 v{MX+t}, v{MX+t}, v{T2+t}")
    for t in range(4):
        a(f"v_sub_f32 v{NM+t}, v{NM+t}, v{MX+t}")
    for t in range(4):
        a(f"v_and_b32 v{T2+t}, 0xffff0000, v{NM+t}")
    for t in range(4):
        a(f"v_sub_f32 v{T2+t}, v{NM+t}, v{T2+t}")
    for t in range(4):
        a(f"v_and_b32 v{T2+4+t}, 0xffff0000, v{T2+t}")
    for t in range(4):
        a(f"v_sub_f32 v{T2+4+t}, v{T2+t}, v{T2+4+t}")
    a("s_mov_b32 exec_lo, 0")
    for t in range(4):
        a(f"v_perm_b32 v{Q+8*t+6}, v{T2+t}, v{NM+t}, s42")
        a(f"v_lshrrev_b32 v{Q+8*t+7}, 16, v{T2+4+t}")
    a("s_mov_b32 exec_lo, -1")
    a(f"{MF32} {vr(S,16)}, {vr(KB,4)}, {vr(Q,4)}, 0")
    a(f"{MF32} {vr(S,16)}, {vr(KB+4,4)}, {vr(Q+4,4)}, {vr(S,16)}")
    for r in range(2, 8):
        a(f"v_mov_b32 v{P+8+r}, 0")
    a("s_mov_b32 s46, 4")
    a("s_setprio 0")
    a.nop(3)
    a.label("A_LOOP")
    for n in range(16):
        kt, t = n >> 2, n & 3
        n1 = (n + 1) & 15; kt1, t1 = n1 >> 2, n1 & 3
        n0 = (n - 1) & 15; kt0, t0 = n0 >> 2, n0 & 3
        sc = S + 16 * (n & 1); sn = S + 16 * (n1 & 1)
        pc = P + 8 * (n & 1); pp = P + 8 * (n0 & 1)
        mf = [f"{MF32} {vr(sn,16)}, {vr(KB+8*kt1,4)}, {vr(Q+8*t1,4)}, 0",
              f"{MF32} {vr(sn,16)}, {vr(KB+8*kt1+4,4)}, {vr(Q+8*t1+4,4)}, {vr(sn,16)}",
              f"{MF32} {vr(O+16*t0,16)}, {vr(VB+8*kt0,4)}, {vr(pp,4)}, {vr(O+16*t0,16)}",
              f"{MF32} {vr(O+16*t0,16)}, {vr(VB+8*kt0+4,4)}, {vr(pp+4,4)}, {vr(O+16*t0,16)}"]
        for m in range(4):
            if (m == 0 and t == 3) or (m == 2 and t == 1):
                a("s_waitcnt vmcnt(12)")
            a(mf[m])
            if m == 0 and t == 3:
                patch(KB + 8 * kt1)
            for e in range(4):
                a(f"v_exp_f32 v{sc+4*m+e}, v{sc+4*m+e}")
                if m == 1 and t == 2 and e in (0, 1):
                    a(f"buffer_load_dwordx4 {vr(KB+8*kt+4*e,4)}, v{VK0+e}, s[12:15], s44 offen{SC}")
                if m == 1 and t == 2 and e == 2:
                    a(f"s_addk_i32 s44, {KTS}")
                if m == 3 and t == 0 and e in (0, 1):
                    a(f"buffer_load_dwordx4 {vr(VB+8*kt0+4*e,4)}, v{VV0+e}, s[16:19], s45 offen{SC}")
                if m == 3 and t == 0 and e == 2:
                    a(f"s_addk_i32 s45, {VTS}")
                if n == 0 and m == 3 and e == 3:
                    a("s_cmp_lg_u32 s46, 1")
                    a("s_cbranch_scc1 A_NOFL")
                    late_load(a, 248, 14)
                    a.label("A_NOFL")
                if n == 15 and m == 3 and e == 0:
                    a("s_sub_u32 s46, s46, 1")
                if n == 15 and m == 3 and e == 1:
                    a("s_cmp_lg_u32 s46, 0")
            for c in range(2):
                a(f"v_cvt_pk_bf16_f32 v{pc+2*m+c}, v{sc+4*m+2*c}, v{sc+4*m+2*c+1}")
    a("s_cbranch_scc1 A_LOOP")
    a.stamp(8)
    a("s_nop 0")
    a(f"{MF32} {vr(O+48,16)}, {vr(VB+24,4)}, {vr(P+8,4)}, {vr(O+48,16)}")
    a(f"{MF32} {vr(O+48,16)}, {vr(VB+28,4)}, {vr(P+12,4)}, {vr(O+48,16)}")
    a("v_mov_b32 v3, 0x5f800000")
    a("s_mov_b32 exec_lo, 0")
    for t in range(3):
        a(f"v_cmp_nlt_f32 {sr(4+2*t,2)}, v{O+16*t+12}, v3")
    for t in range(1, 3):
        a(f"v_mov_b32 v{O+16*t+13}, v{NM+t}")
    a("s_mov_b32 exec_lo, -1")
    for t in range(1, 3):
        for q in range(4):
            a(f"ds_write_b128 v{3+t}, {vr(O+16*t+4*q,4)} offset:{1024*q}")
    a("s_mov_b32 exec_lo, 0")
    a(f"v_cmp_nlt_f32 vcc, v{O+48+12}, v3")
    a(f"v_mov_b32 v{O+48+13}, v{NM+3}")
    a("s_mov_b32 exec_lo, -1")
    a("s_or_b32 s5, s5, s7")
    a("s_or_b32 s5, s5, s9")
    a("s_or_b32 s5, s5, vcc_hi")
    a("s_andn2_b32 s5, s5, s41")
    a("s_cbranch_scc1 A_FALLBACK")
    for q in range(4):
        a(f"ds_write_b128 v6, {vr(O+48+4*q,4)} offset:{1024*q}")
    a(f"v_mov_b32 v{T2}, v{O+12}")
    a(f"v_mov_b32 v{T2+1}, v{O+12}")
    a("v_add_u32 v10, 4096, v2")
    a("s_lshl_b32 s33, s24, 13")
    a(f"s_add_u32 s33, s33, {WOF}")
    a("s_lshl_b32 s36, s50, 15")
    a("s_add_u32 s36, s36, s33")
    a("s_xor_b32 s37, s50, 1")
    a("s_lshl_b32 s37, s37, 15")
    a("s_add_u32 s37, s37, s33")
    a("v_lshrrev_b32 v11, 5, v1")
    a("v_lshlrev_b32 v12, 6, v11")
    a("s_lshl_b32 s38, s49, 7")
    a(f"s_add_u32 s38, s38, {GO}")
    a("v_and_b32 v13, 31, v1")
    a("v_lshlrev_b32 v3, 12, v13")
    a("v_lshl_add_u32 v3, v11, 4, v3")
    a("s_lshl_b32 s39, s50, 17")
    a("s_lshr_b32 s34, s49, 4")
    a("s_lshl_b32 s34, s34, 10")
    a("s_add_u32 s39, s39, s34")
    a("s_and_b32 s34, s49, 15")
    a("s_lshl_b32 s34, s34, 5")
    a("s_add_u32 s39, s39, s34")
    a(f"s_add_u32 s39, s39, {BT}")
    a("s_waitcnt lgkmcnt(0)")
    a("s_barrier")
    LM = T2 + 2
    for s in range(3):
        a(f"ds_read_b64 {vr(LM+2*s,2)}, v8 offset:{4096*s+3072}")
    RB = O + 16
    for s in range(3):
        for q in range(4):
            a(f"ds_read_b128 {vr(RB+16*s+4*q,4)}, v7 offset:{4096*s+1024*q}")
    a(f"v_permlane32_swap_b32 v{T2}, v{T2+1}")
    a("s_waitcnt lgkmcnt(12)")
    a(f"v_min3_f32 v{MX}, v{NM}, v{LM+1}, v{LM+3}")
    a(f"v_min_f32 v{MX}, v{MX}, v{LM+5}")
    a(f"v_sub_f32 v{S}, v{MX}, v{NM}")
    for s in range(3):
        a(f"v_sub_f32 v{S+2+2*s}, v{MX}, v{LM+2*s+1}")
    for s in range(4):
        a(f"v_exp_f32 v{S+2*s}, v{S+2*s}")
    a(f"v_mul_f32 v{MX+1}, v{S}, v{T2+1}")
    for s in range(3):
        a(f"v_fmac_f32 v{MX+1}, v{S+2+2*s}, v{LM+2*s}")
    a(f"v_rcp_f32 v{MX+1}, v{MX+1}")
    a("s_nop 0")
    for s in range(4):
        a(f"v_mul_f32 v{S+2*s}, v{S+2*s}, v{MX+1}")
    for r in range(0, 16, 2):
        a(f"v_pk_mul_f32 {vr(O+r,2)}, {vr(O+r,2)}, {vr(S,2)} op_sel_hi:[1,0]")
    for s in range(3):
        a(f"s_waitcnt lgkmcnt({8-4*s})")
        for r in range(0, 16, 2):
            a(f"v_pk_fma_f32 {vr(O+r,2)}, {vr(RB+16*s+r,2)}, {vr(S+2+2*s,2)}, {vr(O+r,2)} op_sel_hi:[1,0,1]")
    for r in range(0, 16, 2):
        a(f"v_cvt_pk_bf16_f32 v{P+r//2}, v{O+r}, v{O+r+1}")
    a("s_mov_b32 exec_lo, 0")
    a(f"v_mov_b32 v{P+6}, 0")
    a(f"v_mov_b32 v{P+7}, 0")
    a("s_mov_b32 exec_lo, -1")
    a.nvm = 0
    for f in range(2):
        tagos = a.vm(f"buffer_store_dwordx4 {vr(P+4*f,4)}, v9, s[20:23], s43 offen offset:{1024*f}{SC}")
    a.stamp(9)
    a("s_barrier")
    late_check(a, 248, 14, 15)
    WB, GG, BB = KB, Q, Q + 16
    NPRE = int(os.environ.get("NPRE", "4"))
    def wo_load(i):
        for x in range(2):
            a.vm(f"buffer_load_dwordx4 {vr(WB+8*i+4*x,4)}, v{2 if i<4 else 10}, s[20:23], s{36+x} offen offset:{1024*(i&3)}{SC}")
    for i in range(NPRE): wo_load(i)
    a("s_lshl_b32 s52, s47, 9")
    a("s_lshl_b32 s33, s24, 7")
    a("s_add_u32 s52, s52, s33")
    a(f"s_add_u32 s52, s52, {F_O}")
    a.wait_vm(tagos)
    cnt_add(a, 252, "s51")
    a("s_cmp_ge_u32 s32, 28")
    a("s_cbranch_scc1 L_END")
    for i in range(NPRE, 8): wo_load(i)
    for i in range(4):
        a.vm(f"buffer_load_dwordx4 {vr(GG+4*i,4)}, v12, s[20:23], s38 offen offset:{16*i}{SC}")
    for i in range(2):
        a.vm(f"buffer_load_dwordx4 {vr(BB+4*i,4)}, v3, s[20:23], s39 offen offset:{512*i}{SC}")
    cnt_load(a, 250, "s52")
    a("s_lshl_b32 s33, s24, 13")
    a(f"s_add_u32 s33, s33, {OF}")
    a("s_lshl_b32 s36, s49, 15")
    a("s_add_u32 s36, s36, s33")
    a("s_xor_b32 s37, s49, 1")
    a("s_lshl_b32 s37, s37, 15")
    a("s_add_u32 s37, s37, s33")
    a.srd(12, P_OUT, X_BYTES)
    a("v_mul_u32_u24 v12, 14336, v11")
    a("v_lshl_add_u32 v12, v13, 1, v12")
    a("s_mul_i32 s44, s49, 28672")
    a("s_lshl_b32 s33, s50, 6")
    a("s_add_u32 s44, s44, s33")
    for i in range(1, 4):
        a(f"s_add_u32 s{44+i}, s44, {3584*i}")
    a("s_waitcnt vmcnt(0)")
    BU = 232
    for i in range(8):
        a(f"v_lshlrev_b32 v{BU+2*i}, 16, v{BB+i}")
        a(f"v_and_b32 v{BU+2*i+1}, 0xffff0000, v{BB+i}")
    cnt_wait(a, 250, "s52", 8)
    a.stamp(10)
    AF = O
    tags = []
    for i in range(8):
        for x in range(2):
            t = a.vm(f"buffer_load_dwordx4 {vr(AF+8*i+4*x,4)}, v{2 if i<4 else 10}, s[20:23], s{36+x} offen offset:{1024*(i&3)}{SC}")
        tags.append(t)
    AC = [BB, S, S + 16, P]
    for i in range(8):
        a.wait_vm(tags[i])
        for t in (3, 2, 1, 0):
            sa, sb = t >> 1, t & 1
            c = "0" if i == 0 else vr(AC[t], 16)
            a(f"{MF32} {vr(AC[t],16)}, {vr(AF+8*i+4*sa,4)}, {vr(WB+8*i+4*sb,4)}, {c}")
    a.nop(9)
    a.stamp(11)
    for t in (3, 2, 1):
        for q in range(4):
            a(f"ds_write_b128 v{3+t}, {vr(AC[t]+4*q,4)} offset:{1024*q}")
    for r in range(0, 16, 2):
        a(f"v_pk_add_f32 {vr(AC[0]+r,2)}, {vr(AC[0]+r,2)}, {vr(BU+r,2)} neg_lo:[0,1] neg_hi:[0,1]")
    a("s_waitcnt lgkmcnt(0)")
    a("s_barrier")
    for s in range(3):
        for q in range(4):
            a(f"ds_read_b128 {vr(AF+16*s+4*q,4)}, v7 offset:{4096*s+1024*q}")
    for s in range(3):
        a(f"s_waitcnt lgkmcnt({8-4*s})")
        for r in range(0, 16, 2):
            a(f"v_pk_add_f32 {vr(AC[0]+r,2)}, {vr(AC[0]+r,2)}, {vr(AF+16*s+r,2)}")
    for r in range(0, 16, 2):
        a(f"v_pk_fma_f32 {vr(AC[0]+r,2)}, {vr(AC[0]+r,2)}, {vr(GG+r,2)}, {vr(BU+r,2)}")
    for r in range(0, 16, 2):
        a(f"v_cvt_pk_bf16_f32 v{AF+r//2}, v{AC[0]+r}, v{AC[0]+r+1}")
    for r in range(16):
        op = "buffer_store_short_d16_hi" if r & 1 else "buffer_store_short"
        a(f"{op} v{AF+r//2}, v12, s[12:15], s{44+(r>>2)} offen offset:{896*(r&3)}")
    fin(a, 12)
    a("s_endpgm")
    a.label("A_FALLBACK")
    a("s_mov_b32 s41, -1")
    for t in range(4):
        a(f"v_mov_b32 v{MX+t}, 0xff800000")
    a("s_mov_b32 s44, 0")
    a("s_waitcnt vmcnt(0) lgkmcnt(0)")
    a.label("A_FBLOOP")
    for f in range(2):
        a(f"buffer_load_dwordx4 {vr(KB+4*f,4)}, v{VK0+f}, s[12:15], s44 offen{SC}")
    a("s_waitcnt vmcnt(0)")
    patch(KB)
    a("s_nop 1")
    for t in range(4):
        a(f"{MF32} {vr(O+16*t,16)}, {vr(KB,4)}, {vr(Q+8*t,4)}, 0")
        a(f"{MF32} {vr(O+16*t,16)}, {vr(KB+4,4)}, {vr(Q+8*t+4,4)}, {vr(O+16*t,16)}")
    a.nop(16)
    for i in range(8):
        for t in range(4):
            a(f"v_max3_f32 v{MX+t}, v{MX+t}, v{O+16*t+2*i}, v{O+16*t+2*i+1}")
    a(f"s_addk_i32 s44, {KTS}")
    a(f"s_cmp_lt_u32 s44, {16*KTS}")
    a("s_cbranch_scc1 A_FBLOOP")
    first_loads()
    zero_acc()
    a("s_waitcnt vmcnt(0)")
    patch(KB)
    a("s_branch A_SETMAX")

def gen_B(a):
    a.label("L_B")
    a(f"s_setprio {PB}")
    a.stamp(1)
    if "noB" in EXP: a("s_endpgm")
    TS = 272; TW = 64 * TS
    UB = 4 * TW
    US = 4608
    YB, XB, KACC, FR, CT = 16, 80, 136, 152, 216
    Z1, Z256, TM = 224, 226, 226
    a(f"s_mul_i32 s29, s24, {TW}")
    a("s_mov_b32 m0, s29")
    a("v_mov_b32 v15, 0x3f80")
    a(f"ds_write_addtid_b32 v15 offset:{32*TS}")
    a("v_and_b32 v12, 31, v1")
    a(f"v_mul_u32_u24 v12, {TS}, v12")
    a("v_lshrrev_b32 v13, 5, v1")
    a("v_lshl_add_u32 v12, v13, 4, v12")
    a("v_add_u32 v240, s29, v12")
    for r in range(16):
        a(f"v_mov_b32 v{KACC+r}, 0")
    a(f"v_mul_u32_u24 v12, {US-512}, v13")
    a("v_add_u32 v12, v12, v2")
    a(f"v_add_u32 v12, {UB}, v12")
    a(f"ds_write_b128 v12, {vr(KACC,4)}")
    a("s_and_b32 s42, s2, 31")
    a("s_lshl_b32 s42, s42, 7")
    a(f"s_add_u32 s42, s42, {F_XT}")
    a("v_lshrrev_b32 v12, 1, v1")
    a("v_and_b32 v13, 1, v1")
    a(f"v_mul_u32_u24 v3, {XTS}, v12")
    a("v_lshl_add_u32 v3, v13, 4, v3")
    a(f"s_mul_i32 s43, s24, {64*XTS}")
    a("s_mul_i32 s33, s31, 896")
    a("s_add_u32 s43, s43, s33")
    a("s_lshl_b32 s33, s39, 4")
    a("s_add_u32 s43, s43, s33")
    a(f"s_add_u32 s43, s43, {XT}")
    a(f"s_add_u32 s44, s43, {32*XTS}")
    a(f"v_mul_u32_u24 v241, {US}, v13")
    a("v_lshl_add_u32 v241, v12, 4, v241")
    a("s_lshl_b32 s33, s24, 10")
    a(f"s_add_u32 s33, s33, {UB + 512}")
    a("v_add_u32 v241, s33, v241")
    a("s_waitcnt lgkmcnt(0)")
    a("s_and_b32 s33, s26, 1")
    a("s_lshl_b32 s33, s33, 4")
    a("s_lshr_b32 s28, s28, s33")
    a("s_lshl_b32 s28, s28, 16")
    a("s_lshr_b32 s38, s38, s33")
    a("s_lshl_b32 s38, s38, 16")
    hi = float(np.float32(LOG2E)); lo = float(np.float32(LOG2E - hi))
    a(f"v_mov_b32 v13, {hex(f2u(hi))}")
    a("v_mul_f32 v14, s28, v13")
    a("v_fma_f32 v13, s28, v13, -v14")
    a(f"v_mov_b32 v15, {hex(f2u(lo))}")
    a("v_fmac_f32 v13, s28, v15")
    a("v_exp_f32 v14, v14")
    a(f"v_mul_f32 v13, {hex(f2u(math.log(2)))}, v13")
    a("v_fmac_f32 v14, v14, v13")
    a("v_cvt_pk_bf16_f32 v14, v14, v14")
    a("v_and_b32 v14, 0xffff0000, v14")
    a(f"s_mov_b32 s48, {hex(f2u(LOG2E))}")
    a(f"s_mov_b32 s49, {hex(f2u(1/(2*math.pi)))}")
    a("s_mov_b32 s30, 2")
    a("s_waitcnt vmcnt(0)")
    a.stamp(2)
    a.label("B_PASS")
    a("s_cmp_eq_u32 s30, 2")
    for i in range(6):
        a(f"v_and_b32 v{8+i}, 0xffff0000, v{RAW+i}")
    for i in range(6):
        a(f"v_lshlrev_b32 v{RAW+i}, 16, v{RAW+i}")
    r1 = [0, 0, 2, 4, 4, 4, 6, 8, 8]
    P_ = {}
    for r in range(9): P_[(0, r)] = r; P_[(1, r)] = 256 + r1[r]
    for i, e in enumerate((0, 4, 8)): P_[(0, 9 + i)] = 512 + e; P_[(1, 9 + i)] = 768 + e
    for i, e in enumerate((0, 8)):
        P_[(0, 12 + i)] = 1024 + e; P_[(1, 12 + i)] = 1280 + e; P_[(0, 14 + i)] = 1536 + e; P_[(1, 14 + i)] = 1792 + e
    plist = sorted(set(P_.values()))
    xreg = {p: XB + 2 * i for i, p in enumerate(plist)}
    rows_of = {p: [8 * (r >> 2) + 4 * h + (r & 3) for (h, r), pp in P_.items() if pp == p] for p in plist}
    yreg = {j: YB + 2 * j for j in range(1, 32)}
    a("v_pk_mul_f32 v[8:9], v[8:9], v[14:15] op_sel_hi:[1,0]")
    cmul(a, xreg[0], 12, 10, 0)
    a("v_pk_mul_f32 v[8:9], v[8:9], s[48:49]")
    cmul(a, xreg[0], 12, 10, 1)
    a(f"v_mul_f32 v{TM+2}, 0x41000000, v8")
    a(f"v_mul_f32 v{TM+3}, 0x41000000, v9")
    a(f"v_mul_f32 v{TM+4}, 0x43800000, v8")
    a(f"v_mul_f32 v{TM+5}, 0x43800000, v9")
    a(f"v_pk_mul_f32 {vr(xreg[0],2)}, {vr(xreg[0],2)}, v[14:15] op_sel_hi:[1,0]")
    anchors = [(TM + 2, yreg[1]), (8, Z1), (TM + 4, Z256)]
    for s_, d_ in anchors:
        a(f"v_fract_f32 v{s_+1}, v{s_+1}")
        a(f"v_exp_f32 v{s_}, v{s_}")
    for s_, d_ in anchors:
        a(f"v_cos_f32 v{d_}, v{s_+1}")
        a(f"v_sin_f32 v{d_+1}, v{s_+1}")
    a("s_nop 0")
    for s_, d_ in anchors:
        a(f"v_pk_mul_f32 {vr(d_,2)}, {vr(d_,2)}, {vr(s_,2)} op_sel_hi:[1,0]")
    ops = []
    ops += [(("Y", 2), ("Y", 1), ("Y", 1)), (("Y", 3), ("Y", 2), ("Y", 1)), (("Y", 4), ("Y", 2), ("Y", 2))]
    ops += [(("Y", 4 + k), ("Y", 4), ("Y", k)) for k in (4, 1, 2, 3)]
    ops += [(("Y", 8 + k), ("Y", 8), ("Y", k)) for k in (8, 1, 2, 3, 4, 5, 6, 7)]
    ops += [(("Y", 16 + k), ("Y", 16), ("Y", k)) for k in range(1, 16)]
    xo = [(("X", 8), ("X", 0), ("Y", 1))]
    xo += [(("X", e + 1), ("X", e), ("Z", 1)) for e in range(7)]
    for base, es in ((256, (0, 8, 4, 2, 6)), (512, (0, 8, 4)), (768, (0, 8, 4)), (1024, (0, 8)), (1280, (0, 8)), (1536, (0, 8)), (1792, (0, 8))):
        xo += [(("X", base + e), ("X", base - 256 + e), ("Z", 256)) for e in es]
    def reg(n):
        return {"Y": yreg, "X": xreg, "Z": {1: Z1, 256: Z256}}[n[0]][n[1]]
    done = {("Y", 1), ("X", 0), ("Z", 1), ("Z", 256)}
    allops = xo + ops
    memo = {}
    def height(n):
        if n in memo: return memo[n]
        h = 0
        for (d, x, y) in allops:
            if x == n or y == n: h = max(h, 1 + height(d))
        memo[n] = h
        return h
    pending = sorted(allops, key=lambda o: -height(o[0]))
    towrite = [("Y", 1), ("X", 0)]
    ct = [0]
    def emit_write(n):
        t = CT + (ct[0] % 8); ct[0] += 1
        r = reg(n)
        if n[0] == "Y":
            a(f"v_cvt_pk_bf16_f32 v{t}, v{r}, v{r+1}")
            a(f"ds_write_addtid_b32 v{t} offset:{(32+n[1])*TS}")
        else:
            a(f"v_cvt_pk_bf16_f32 v{t}, v{r}, -v{r+1}")
            for m in rows_of[n[1]]:
                a(f"ds_write_addtid_b32 v{t} offset:{m*TS}")
    nb = 0
    UL = XRW
    PB0 = int(os.environ.get('PB0', '9')); PB1 = int(os.environ.get('PB1', '14'))
    while pending:
        batch = [o for o in pending if o[1] in done and o[2] in done][:4]
        for o in batch: pending.remove(o)
        for (d, x, y) in batch: cmul(a, reg(d), reg(x), reg(y), 0)
        w = towrite; towrite = []
        for n in w[:2]: emit_write(n)
        for (d, x, y) in batch: cmul(a, reg(d), reg(x), reg(y), 1)
        for n in w[2:]: emit_write(n)
        for (d, x, y) in batch:
            done.add(d); towrite.append(d)
        nb += 1
        if nb == PB0:
            a("s_cbranch_scc1 B_P1")
            a("s_setprio 3")
            nonce_issue(a, 250)
            a(f"s_setprio {PB}")
            a.label("B_P1")
        if nb == PB1:
            a("s_lshl_b32 s33, s24, 1")
            a("s_add_u32 s33, s33, s30")
            a("s_cmp_lg_u32 s33, 1")
            a("s_cbranch_scc1 B_P3")
            a("s_waitcnt vmcnt(0)")
            nonce_take(a, 250)
            a("s_setprio 3")
            cnt_load(a, 250, "s42")
            a(f"s_setprio {PB}")
            a.label("B_P3")
    for n in towrite: emit_write(n)
    for ks in range(8):
        a(f"ds_read_b128 {vr(FR+8*ks,4)}, v240 offset:{32*ks}")
        a(f"ds_read_b128 {vr(FR+8*ks+4,4)}, v240 offset:{32*TS+32*ks}")
    for ks in range(8):
        a(f"s_waitcnt lgkmcnt({14-2*ks})")
        a(f"{MF32} {vr(KACC,16)}, {vr(FR+8*ks,4)}, {vr(FR+8*ks+4,4)}, {vr(KACC,16)}")
    a("s_sub_u32 s30, s30, 1")
    a("s_cmp_lg_u32 s30, 0")
    a("s_cbranch_scc1 B_PASS")
    a.stamp(3)
    a("v_add_u32 v242, s29, v2")
    a("s_xor_b32 s33, s24, 1")
    a(f"s_mul_i32 s33, s33, {TW}")
    a("v_add_u32 v243, s33, v2")
    a("s_and_b32 s33, s24, 2")
    a(f"s_mul_i32 s48, s33, {TW}")
    a("s_add_u32 s48, s48, 4096")
    a("s_mul_i32 s33, s27, 4160")
    a("s_add_u32 s49, s33, s48")
    a("v_sub_u32 v6, 63, v1")
    a("v_lshlrev_b32 v6, 4, v6")
    a("v_add_u32 v6, s49, v6")
    a("v_and_b32 v7, 1, v1")
    a("v_cmp_eq_u32 vcc, 1, v7")
    for q in range(4):
        a(f"ds_write_b128 v242, {vr(KACC+4*q,4)} offset:{1024*q}")
    a("v_lshrrev_b32 v4, 4, v1")
    a("v_and_b32 v5, 15, v1")
    a("v_add_u32 v7, 1, v5")
    a("v_lshrrev_b32 v7, 1, v7")
    a("v_lshlrev_b32 v8, 2, v4")
    a("v_sub_u32 v8, v8, v7")
    a("v_and_b32 v7, 1, v5")
    a("v_mul_u32_u24 v7, 1040, v7")
    a("v_sub_u32 v8, v8, v7")
    a(f"v_add_u32 v8, {1016 + 1040 - 48 - 128}, v8")
    a("v_lshlrev_b32 v8, 2, v8")
    a("s_lshl_b32 s33, s27, 8")
    a("s_sub_u32 s33, s48, s33")
    a("v_add_u32 v8, s33, v8")
    for i in range(1, 4):
        a(f"v_subrev_u32 v{8+i}, {1024*i}, v8")
    a("s_cmp_lg_u32 s24, 0")
    a("s_cbranch_scc1 B_NOPOLL")
    a("s_waitcnt vmcnt(0)")
    cnt_wait(a, 250, "s42", 32, 6)
    a.label("B_NOPOLL")
    a("s_waitcnt lgkmcnt(0)")
    a("s_barrier")
    a.stamp(7)
    a("s_setprio 3")
    for i in range(2):
        a(f"buffer_load_dwordx4 {vr(UL+4*i,4)}, v3, s[20:23], s{43+i} offen{SC}")
    a(f"s_setprio {PC}")
    for q in range(4):
        a(f"ds_read_b128 {vr(FR+4*q,4)}, v243 offset:{1024*q}")
    a("s_lshr_b32 s33, s24, 1")
    a(f"s_mul_i32 s36, s33, {US}")
    a(f"s_add_u32 s36, s36, {UB + 512}")
    a("v_lshlrev_b32 v12, 5, v5")
    a("v_lshl_add_u32 v13, v4, 3, v12")
    a("v_lshl_add_u32 v12, v4, 4, v12")
    a("s_lshl_b32 s33, s27, 8")
    a("s_sub_u32 s33, s36, s33")
    a(f"s_sub_u32 s33, s33, {32 + 192}")
    a("v_add_u32 v12, s33, v12")
    a("s_lshl_b32 s33, s27, 11")
    a("s_add_u32 s33, s33, s36")
    a("v_add_u32 v13, s33, v13")
    a("s_lshl_b32 s40, s26, 1")
    a("s_add_u32 s40, s40, s27")
    a("s_lshl_b32 s41, s40, 11")
    a(f"s_add_u32 s41, s41, {BT}")
    a("s_lshr_b32 s40, s26, 5")
    a("s_lshl_b32 s40, s40, 7")
    a(f"s_add_u32 s40, s40, {F_B}")
    a("s_waitcnt lgkmcnt(0)")
    for r in range(0, 16, 2):
        a(f"v_pk_add_f32 {vr(KACC+r,2)}, {vr(KACC+r,2)}, {vr(FR+r,2)}")
    K_ = KACC; W_ = FR + 16
    a(f"v_cndmask_b32 v{CT}, v{K_+12}, v{K_+13}, vcc")
    a(f"v_cndmask_b32 v{CT+1}, v{K_+14}, v{K_+15}, vcc")
    for i in range(4):
        a(f"v_mov_b32 v{W_+16+i}, 0")
    def pk(d, lo_, hi_): a(f"v_cvt_pk_bf16_f32 v{d}, v{lo_}, v{hi_}")
    a("s_cmp_eq_u32 s27, 1")
    a("s_cbranch_scc1 B_ODD")
    A_, B_, C_ = K_ + 9, K_ + 10, K_ + 11
    for i in range(4): pk(W_ + i, K_ + 7 - 2 * i, K_ + 6 - 2 * i)
    for i, (x, y) in enumerate(((C_, C_), (B_, B_), (B_, A_), (A_, A_))): pk(W_ + 4 + i, x, y)
    for sl in range(2):
        A2, C2, M2 = K_ + 12 + 2 * sl, K_ + 13 + 2 * sl, CT + sl
        for i, (x, y) in enumerate(((C2, C2), (C2, M2), (A2, A2), (A2, A2))): pk(W_ + 8 + 4 * sl + i, x, y)
    a("s_branch B_IMG")
    a.label("B_ODD")
    for i in range(4): pk(W_ + i, K_ + 8 - 2 * i, K_ + 7 - 2 * i)
    for i, (x, y) in enumerate(((C_, C_), (C_, B_), (B_, B_), (A_, A_))): pk(W_ + 4 + i, x, y)
    for sl in range(2):
        A2, C2, M2 = K_ + 12 + 2 * sl, K_ + 13 + 2 * sl, CT + sl
        for i, (x, y) in enumerate(((C2, C2), (C2, C2), (M2, A2), (A2, A2))): pk(W_ + 8 + 4 * sl + i, x, y)
    a("s_mov_b64 exec, 1")
    pk(W_ + 16, K_, VZ)
    a("s_mov_b64 exec, -1")
    a.label("B_IMG")
    for sl in range(4):
        a(f"ds_write_b128 v6, {vr(W_+4*sl,4)} offset:{(3-sl)*1024}")
    a("v_add_u32 v7, s49, v2")
    a("s_mov_b64 exec, 3")
    a(f"ds_write_b128 v7, {vr(W_+16,4)} offset:4096")
    a("s_mov_b64 exec, -1")
    a("s_waitcnt vmcnt(0)")
    for i in range(2):
        a(f"ds_write_b128 v241, {vr(UL+4*i,4)} offset:{512*i}")
    a("s_waitcnt lgkmcnt(0)")
    a("s_barrier")
    a.stamp(4)
    FB, CAC = 16, 144
    a.nds = 0
    tg = {}
    def loadstep(stp):
        b = FB + 64 * (stp & 1)
        for i in range(8):
            o = 128 * (1 - (i & 1)) + 16 * (3 - stp)
            a.ds(f"ds_read2_b32 {vr(b+4*i,2)}, v{8+(i>>1)} offset0:{o} offset1:{o+1}")
            a.ds(f"ds_read2_b32 {vr(b+4*i+2,2)}, v{8+(i>>1)} offset0:{o+2} offset1:{o+3}")
            tg[(stp, i)] = a.ds(f"ds_read_b128 {vr(b+32+4*i,4)}, v12 offset:{512*i+64*(3-stp)}")
    loadstep(0)
    for stp in range(4):
        b = FB + 64 * (stp & 1)
        order = sorted([(i, tp) for i in range(8) for tp in range(8 - i)], key=lambda x: (max(x), x[0] + x[1]))
        nxt = []
        if stp < 3:
            b2 = FB + 64 * ((stp + 1) & 1)
            for i in range(8):
                o = 128 * (1 - (i & 1)) + 16 * (3 - stp - 1)
                nxt.append((None, f"ds_read2_b32 {vr(b2+4*i,2)}, v{8+(i>>1)} offset0:{o} offset1:{o+1}"))
                nxt.append((None, f"ds_read2_b32 {vr(b2+4*i+2,2)}, v{8+(i>>1)} offset0:{o+2} offset1:{o+3}"))
                nxt.append(((stp + 1, i), f"ds_read_b128 {vr(b2+32+4*i,4)}, v12 offset:{512*i+64*(3-stp-1)}"))
        waited = -1
        seen = set()
        for k, (i, tp) in enumerate(order):
            if max(i, tp) > waited:
                waited = max(i, tp)
                a.wait_ds(tg[(stp, waited)])
            t = i + tp
            c = vr(CAC + 4 * t, 4)
            if stp == 0 and t not in seen:
                c = "0"; seen.add(t)
            a(f"{MF16} {vr(CAC+4*t,4)}, {vr(b+4*i,4)}, {vr(b+32+4*tp,4)}, {c}")
            if k >= 8 and nxt:
                key, ins = nxt.pop(0)
                r = a.ds(ins)
                if key: tg[key] = r
        assert not nxt
    a.stamp(5)
    RR = 16
    for tl in range(4):
        a(f"ds_read_b64 {vr(80+2*tl,2)}, v13 offset:{512*tl}")
    a("s_cmp_eq_u32 s27, 1")
    a.nop(3)
    a("s_cbranch_scc1 B_R1")
    for par in range(2):
        if par: a.label("B_R1")
        for q in range(4):
            a(f"ds_write_b128 v242, {vr(CAC+16*(1-par)+4*q,4)} offset:{1024*q}")
        a("s_waitcnt lgkmcnt(0)")
        a("s_barrier")
        for q in range(4):
            a(f"ds_read_b128 {vr(RR+4*q,4)}, v243 offset:{1024*q}")
        a("s_waitcnt lgkmcnt(0)")
        for r in range(0, 16, 2):
            a(f"v_pk_add_f32 {vr(RR+r,2)}, {vr(RR+r,2)}, {vr(CAC+16*par+r,2)}")
        if not par: a("s_branch B_R2")
    a.label("B_R2")
    for t in range(4):
        for i in range(2):
            a(f"v_lshlrev_b32 v{88+2*i}, 16, v{80+2*t+i}")
            a(f"v_and_b32 v{88+2*i+1}, 0xffff0000, v{80+2*t+i}")
        for r in range(4):
            a(f"v_fmac_f32 v{RR+4*t+r}, s38, v{88+r}")
        for i in range(2):
            a(f"v_cvt_pk_bf16_f32 v{80+2*t+i}, v{RR+4*t+2*i}, v{RR+4*t+2*i+1}")
    a("s_nop 1")
    for p in range(2):
        for i in range(2):
            a(f"v_permlane16_swap_b32 v{80+4*p+i}, v{80+4*p+2+i}")
    for p in range(2):
        a(f"buffer_store_dwordx4 {vr(80+4*p,4)}, v2, s[20:23], s41 offen offset:{1024*p}{SC}")
    a("s_waitcnt vmcnt(0)")
    cnt_add(a, 4, "s40")
    fin(a, 6)
    a("s_endpgm")

def gen_C(a):
    a.label("L_C")
    a("s_setprio 3")
    R, U, GU, GW = 16, 80, 144, 160
    a("s_sub_u32 s25, s2, 224")
    a("s_lshl_b32 s26, s31, 2")
    a("s_sub_u32 s33, s32, 28")
    a("s_add_u32 s26, s26, s33")
    a("s_lshl_b32 s26, s26, 2")
    a("s_add_u32 s26, s26, s24")
    a("s_mul_i32 s36, s26, 14336")
    for i in range(1, 4):
        a(f"s_add_u32 s{36+i}, s36, {3584*i}")
    a("s_add_u32 s45, s25, s24")
    a("s_waitcnt lgkmcnt(0)")
    a.srd(20, P_WS, WS_SIZE)
    a.srd(12, P_X, X_BYTES)
    for r in range(16):
        a(f"buffer_load_dwordx4 {vr(R+4*r,4)}, v2, s[12:15], s{36+(r>>2)} offen offset:{896*(r&3)}")
    a.srd(16, P_GW, 896)
    a(f"buffer_load_dwordx4 {vr(GW,4)}, v2, s[16:19], 0 offen")
    a("v_mov_b32 v4, 1")
    a(f"s_mul_i32 s36, s26, {2*XTS}")
    a(f"s_add_u32 s36, s36, {XT}")
    a("s_add_u32 s37, s36, 3584")
    a(f"s_add_u32 s38, s36, {XTS}")
    a("s_add_u32 s39, s38, 3584")
    a("s_mov_b32 s46, 0x05040100")
    a("s_mov_b32 s47, 0x07060302")
    a("s_mov_b32 exec_hi, 0xffffff")
    for hb in range(2):
        a(f"s_waitcnt vmcnt({9 if hb == 0 else 8})")
        for cc in range(8):
            i, e = cc >> 1, cc & 1
            u = U + 32 * hb + 4 * cc
            for q in range(4):
                a(f"v_perm_b32 v{u+q}, v{R+32*hb+4*(2*q+1)+i}, v{R+32*hb+4*(2*q)+i}, s{46+e}")
            a(f"buffer_store_dwordx4 {vr(u,4)}, v2, s[20:23], s{36+2*hb+(cc>>2)} offen offset:{896*(cc&3)}{SC}")
    a.stamp(1)
    a("s_mov_b64 exec, -1")
    nonce_issue(a, 250)
    a("v_lshlrev_b32 v5, 7, v1")
    a(f"s_mov_b32 s41, {F_XT}")
    for r in range(16):
        a(f"v_mov_b32 v{GU+r}, 0")
    a("s_mov_b32 exec_hi, 0xffffff")
    for i in range(4):
        for r in range(16):
            a(f"v_dot2c_f32_bf16 v{GU+r}, v{R+4*r+i}, v{GW+i}")
    a("s_mov_b64 exec, -1")
    a("s_waitcnt vmcnt(0)")
    nonce_take(a, 250)
    a("s_barrier")
    a("s_cmp_lg_u32 s24, 0")
    a("s_cbranch_scc1 C_NOADD")
    a("s_mov_b32 exec_hi, 0")
    a("buffer_atomic_add v4, v5, s[20:23], s41 offen sc1")
    a("s_mov_b64 exec, -1")
    a.label("C_NOADD")
    a.stamp(2)
    a("s_setprio 1")
    a("s_min_u32 s45, s25, 15")
    a("s_mul_i32 s33, s45, 25088")
    a("s_mul_i32 s34, s24, 7168")
    a("s_add_u32 s33, s33, s34")
    a("v_add_u32 v3, 4096, v2")
    a.srd(12, P_WO, 448 * 896)
    a("s_mov_b32 m0, s34")
    a("s_nop 0")
    for i in range(4):
        a(f"buffer_load_dwordx4 v2, s[12:15], s33 offen offset:{1024*i} lds")
    a("s_add_u32 m0, s34, 4096")
    a("s_nop 0")
    for i in range(3):
        a(f"buffer_load_dwordx4 v3, s[12:15], s33 offen offset:{1024*i} lds")
    for sh in ("row_shr:1", "row_shr:2", "row_shr:4", "row_shr:8"):
        for r in range(16):
            a(f"v_add_f32_dpp v{GU+r}, v{GU+r}, v{GU+r} {sh} row_mask:0xf bank_mask:0xf bound_ctrl:0")
    for r in range(16):
        a(f"v_add_f32_dpp v{GU+r}, v{GU+r}, v{GU+r} row_bcast:15 row_mask:0xa bank_mask:0xf")
    for r in range(16):
        a(f"v_add_f32_dpp v{GU+r}, v{GU+r}, v{GU+r} row_bcast:31 row_mask:0xc bank_mask:0xf")
    for op in (f"v_mul_f32 vX, {hex(f2u(-LOG2E))}, vX", "v_exp_f32 vX, vX", "v_add_f32 vX, 1.0, vX", "v_rcp_f32 vX, vX"):
        for r in range(16):
            a(op.replace("vX", f"v{GU+r}"))
    a("s_lshl_b32 s35, s26, 6")
    a(f"s_add_u32 s35, s35, {GO}")
    a("s_lshr_b32 s37, s26, 1")
    a("s_lshl_b32 s37, s37, 7")
    a(f"s_add_u32 s37, s37, {F_G}")
    a("s_mov_b32 exec_lo, 0")
    a("s_mov_b32 exec_hi, 0x80000000")
    for i in range(4):
        a(f"buffer_store_dwordx4 {vr(GU+4*i,4)}, v{VZ}, s[20:23], s35 offen offset:{16*i}{SC}")
    a("s_mov_b64 exec, -1")
    a("v_lshrrev_b32 v15, 5, v1")
    a("v_bfe_u32 v13, v1, 2, 2")
    a("v_lshl_add_u32 v13, v15, 2, v13")
    a("v_mul_u32_u24 v13, 896, v13")
    a("v_bfe_u32 v14, v1, 4, 1")
    a("v_lshl_add_u32 v13, v14, 5, v13")
    a("v_and_b32 v14, 3, v1")
    a("v_lshl_add_u32 v12, v14, 3, v13")
    a("s_lshr_b32 s49, s24, 1")
    a("s_mul_i32 s36, s49, 14336")
    a("s_mul_i32 s38, s27, 448")
    a("s_add_u32 s36, s36, s38")
    a("v_add_u32 v12, s36, v12")
    a(f"s_mul_i32 s38, s27, {7*32768}")
    a("s_lshl_b32 s39, s45, 1")
    a("s_add_u32 s39, s39, s49")
    a("s_lshl_b32 s39, s39, 10")
    a("s_add_u32 s38, s38, s39")
    a(f"s_add_u32 s38, s38, {WOF}")
    a("s_lshr_b32 s40, s25, 2")
    a("s_lshl_b32 s40, s40, 7")
    a(f"s_add_u32 s40, s40, {F_WO}")
    a("s_waitcnt vmcnt(0)")
    cnt_add(a, 4, "s37")
    a("s_cmp_ge_u32 s25, 16")
    a("s_cbranch_scc1 C_END")
    a("s_barrier")
    for i in range(7):
        for hr in range(2):
            a(f"ds_read_b64_tr_b16 {vr(16+4*i+2*hr,2)}, v12 offset:{64*i+8*hr*896}")
    a("s_waitcnt lgkmcnt(0)")
    a("s_cmp_eq_u32 s49, 0")
    a("s_cbranch_scc1 C_WO2")
    a("s_mov_b32 exec_lo, 0")
    for i in range(7):
        a(f"v_mov_b32 v{16+4*i+2}, 0")
        a(f"v_mov_b32 v{16+4*i+3}, 0")
    a("s_mov_b32 exec_lo, -1")
    a.label("C_WO2")
    for i in range(7):
        a(f"buffer_store_dwordx4 {vr(16+4*i,4)}, v2, s[20:23], s38 offen{SC}")
        if i < 6: a("s_add_u32 s38, s38, 32768")
    a("s_waitcnt vmcnt(0)")
    cnt_add(a, 4, "s40")
    a.label("C_END")
    fin(a, 3)

def gen():
    a = Asm()
    gen_entry(a)
    gen_A(a)
    gen_B(a)
    gen_C(a)
    a.label("L_END")
    a("s_endpgm")
    return a.text()

HEADER = open("cdna_kernels/" + NAME + ".s.ref").read().split("; Override launch geometry")[0]

if __name__ == "__main__":
    name = NAME + "_kernel"
    out = HEADER + "; @launch grid=(512,1,1) block=(256,1,1) lds=81920\n"
    out += '.amdgcn_target "amdgcn-amd-amdhsa--gfx950"\n' + kernel_header(name) + gen() + kernel_desc(name, 256)
    dst = sys.argv[1] if len(sys.argv) > 1 else "cdna_kernels/" + NAME + ".s"
    open(dst, "w").write(out)
```

```python
import sys, math, os
import numpy as np
from dsl import *

NAME = "gated_mix__mha_block__ssm_conv_s4__prompt"
KTS = 28672; VTS = 32256; XTS = 7296
KF = 0x000000
VF = 0x200000
XT = 0x400000
GO = 0x5D0000
WOF = 0x5E0000
OF = 0x660000
BT = 0x860000
FL = 0xA40000
F_KV = FL
F_O = FL + 64 * 128
F_XT = FL + 192 * 128
F_G = FL + 256 * 128
F_B = FL + 320 * 128
F_WO = FL + 336 * 128
WS_SIZE = 0xA50000
X_BYTES = 2048 * 896
W_BYTES = 448 * 2688
LOG2E = 1.4426950408889634
QSCALE = LOG2E * 28 ** -0.5
MF32 = "v_mfma_f32_32x32x16_bf16"
MF16 = "v_mfma_f32_16x16x32_bf16"
SC = " sc1"
NON = 60
POLLMAX = 40000
EXP = os.environ.get("EXP", "")
DEPTH = int(os.environ.get("DEPTH", "3"))
PA = int(os.environ.get("PA", "1")); PB = int(os.environ.get("PB", "2")); PC = int(os.environ.get("PC", "0"))
P_X, P_W, P_WO, P_PAR, P_LDT, P_DSK, P_GW, P_OUT, P_DBG, P_WS = 64, 66, 68, 72, 84, 86, 88, 90, 92, 94
VZ = 255

uid = [0]
def fin(a, idx):
    if not os.environ.get("STAMP"): return
    a("s_waitcnt vmcnt(0)")
    a.stamp(idx)
    dw = os.environ.get("DBGWG")
    if dw:
        uid[0] += 1; u = uid[0]
        a("s_lshl_b32 s96, s2, 2")
        a("s_add_u32 s96, s96, s24")
        a(f"s_cmp_lg_u32 s96, {int(dw)*4}")
        a(f"s_cbranch_scc1 DG{u}")
        a("s_mov_b64 exec, -1")
        a("v_readlane_b32 s97, v254, 1")
        a("v_mbcnt_lo_u32_b32 v0, -1, 0")
        a("v_lshlrev_b32 v1, 1, v0")
        a("v_subrev_u32 v254, s97, v254")
        a("v_and_b32 v1, -4, v1")
        a("s_mov_b32 exec_lo, 0xaaaaaaa8")
        a("s_mov_b32 exec_hi, 0")
        a(f"global_store_dword v1, v254, {sr(P_DBG,2)}")
        a.label(f"DG{u}")
        return
    a.stamp_flush(P_WS)

def cmul(a, d, x, y, phase):
    if phase == 0:
        a(f"v_pk_mul_f32 {vr(d,2)}, {vr(x,2)}, {vr(y,2)} op_sel_hi:[0,1]")
    else:
        a(f"v_pk_fma_f32 {vr(d,2)}, {vr(x,2)}, {vr(y,2)}, {vr(d,2)} op_sel:[1,1,0] op_sel_hi:[1,0,1] neg_lo:[1,0,0]")

def nonce_issue(a, v):
    uid[0] += 1; u = uid[0]
    a("s_cmp_lg_u32 s24, 0")
    a(f"s_cbranch_scc1 NI{u}")
    a(f"global_load_dword v{v}, v{VZ}, {sr(P_DBG,2)}{os.environ.get('NSC', ' sc1')}")
    a.label(f"NI{u}")

def nonce_take(a, v):
    uid[0] += 1; u = uid[0]
    a("s_cmp_lg_u32 s24, 0")
    a(f"s_cbranch_scc1 ND{u}")
    a(f"s_mov_b32 s62, {POLLMAX}")
    a.label(f"NT{u}")
    a(f"v_readfirstlane_b32 s{NON}, v{v}")
    a("s_nop 1")
    a(f"s_cmp_lg_u32 s{NON}, 0")
    a(f"s_cbranch_scc1 ND{u}")
    a("s_sub_u32 s62, s62, 1")
    a(f"s_cbranch_scc1 ND{u}")
    a("s_sleep 8")
    a(f"global_load_dword v{v}, v{VZ}, {sr(P_DBG,2)} sc1")
    a("s_waitcnt vmcnt(0)")
    a(f"s_branch NT{u}")
    a.label(f"ND{u}")

def cnt_load(a, vd, soff):
    a(f"v_mov_b32 v{vd}, 0")
    a("s_mov_b64 exec, 1")
    t = a.vm(f"buffer_atomic_add v{vd}, v{VZ}, s[20:23], {soff} offen sc0 sc1")
    a("s_mov_b64 exec, -1")
    return t

def cnt_wait(a, vd, soff, target, sleep=1):
    uid[0] += 1; u = uid[0]
    a(f"s_mov_b32 s62, {POLLMAX}")
    a.label(f"FC{u}")
    a(f"v_readfirstlane_b32 s4, v{vd}")
    a("s_nop 1")
    a(f"s_cmp_eq_u32 s4, {target}")
    a(f"s_cbranch_scc1 FD{u}")
    a("s_sub_u32 s62, s62, 1")
    a(f"s_cbranch_scc1 FD{u}")
    a(f"s_sleep {sleep}")
    n0 = a.nvm
    cnt_load(a, vd, soff)
    a.nvm = n0
    a("s_waitcnt vmcnt(0)")
    a(f"s_branch FC{u}")
    a.label(f"FD{u}")

def cnt_add(a, vt, soff, va=None, mask="1"):
    a(f"v_mov_b32 v{vt}, 1")
    a(f"s_mov_b64 exec, {mask}")
    a.vm(f"buffer_atomic_add v{vt}, v{VZ if va is None else va}, s[20:23], {soff} offen sc1")
    a("s_mov_b64 exec, -1")

def late_load(a, vd, va):
    a("s_mov_b64 exec, 7")
    a(f"buffer_load_dword v{vd}, v{va}, s[20:23], 0 offen sc1")
    a("s_mov_b64 exec, -1")

def late_check(a, vd, va, vtgt):
    uid[0] += 1; u = uid[0]
    a(f"s_mov_b32 s62, {POLLMAX}")
    a.label(f"FC{u}")
    a(f"v_cmp_ne_u32 vcc, v{vd}, v{vtgt}")
    a("s_nop 1")
    a("s_and_b32 s4, vcc_lo, 7")
    a(f"s_cbranch_scc0 FD{u}")
    a("s_sub_u32 s62, s62, 1")
    a(f"s_cbranch_scc1 FD{u}")
    a("s_sleep 16")
    late_load(a, vd, va)
    a("s_waitcnt vmcnt(0)")
    a(f"s_branch FC{u}")
    a.label(f"FD{u}")

RAW = 244
XRW = 232

def gen_entry(a):
    a("s_cmp_ge_u32 s2, 512")
    a("s_cbranch_scc1 L_END")
    a.stamp(0)
    a("s_load_dwordx16 s[64:79], s[0:1], 0")
    a("s_load_dwordx16 s[80:95], s[0:1], 64")
    if "nopf" not in EXP:
        a(f"s_cmp_ge_u32 s2, {os.environ.get('PFN', '8')}")
        a("s_cbranch_scc1 E_NOPF")
        a("s_getpc_b64 s[4:5]")
        a.label("E_PC")
        a("v_lshlrev_b32 v4, 7, v0")
        a("v_min_u32 v4, L_END-E_PC, v4")
        a("v_mov_b32 v5, s5")
        a("v_add_co_u32 v4, vcc, s4, v4")
        a("s_nop 1")
        a("v_addc_co_u32 v5, vcc, 0, v5, vcc")
        a("global_load_dword v6, v[4:5], off")
        a.label("E_NOPF")
    a("v_lshrrev_b32 v13, 6, v0")
    a("v_and_b32 v1, 63, v0")
    a("v_lshlrev_b32 v2, 4, v1")
    a(f"v_mov_b32 v{VZ}, 0")
    a("v_readfirstlane_b32 s24, v13")
    a("s_and_b32 s31, s2, 7")
    a("s_bfe_u32 s32, s2, 0x50003")
    a("s_cmp_ge_u32 s2, 256")
    a("s_cbranch_scc1 L_A")
    a("s_and_b32 s27, s24, 1")
    a("s_cmp_ge_u32 s32, 28")
    a("s_cbranch_scc1 L_C")
    a("s_setprio 3")
    a("s_lshl_b32 s39, s32, 1")
    a("s_lshr_b32 s34, s24, 1")
    a("s_add_u32 s26, s39, s34")
    a("s_lshl_b32 s26, s26, 3")
    a("s_add_u32 s26, s26, s31")
    a("s_lshl_b32 s33, s26, 9")
    a("s_lshl_b32 s34, s27, 8")
    a("s_add_u32 s33, s33, s34")
    a("v_lshlrev_b32 v3, 2, v1")
    a("v_add_u32 v13, s33, v3")
    a("s_lshl_b32 s34, s26, 1")
    a("s_and_b32 s34, s34, -4")
    a("s_add_u32 s45, s2, s24")
    a("v_lshlrev_b32 v4, 7, v1")
    a(f"s_mov_b32 s33, {FL}")
    a("s_waitcnt lgkmcnt(0)")
    a.srd(20, P_WS, WS_SIZE)
    a("s_cmp_lg_u32 s45, 0")
    a("s_cbranch_scc1 E_NOINIT")
    for i in range(6):
        a(f"buffer_store_dword v{VZ}, v4, s[20:23], s33 offen sc1")
        if i < 5: a("s_addk_i32 s33, 8192")
    a.label("E_NOINIT")
    for i in range(6):
        a(f"global_load_dword v{RAW+i}, v13, {sr(P_PAR+2*i,2)}")
    a(f"s_load_dword s28, {sr(P_LDT,2)}, s34")
    a(f"s_load_dword s38, {sr(P_DSK,2)}, s34")
    a("s_cmp_lg_u32 s45, 0")
    a("s_cbranch_scc1 L_B")
    a("v_mov_b32 v4, 1")
    a("s_waitcnt vmcnt(6)")
    a("s_mov_b64 exec, 1")
    a(f"global_store_dword v{VZ}, v4, {sr(P_DBG,2)} sc1")
    a("s_mov_b64 exec, -1")
    a("s_branch L_B")

def gen_A(a):
    a.label("L_A")
    if "noA" in EXP: a("s_endpgm")
    a(f"s_setprio {PA}")
    a("s_lshr_b32 s33, s31, 1")
    a("s_lshl_b32 s33, s33, 2")
    a("s_and_b32 s34, s32, 3")
    a("s_add_u32 s25, s33, s34")
    a("s_and_b32 s27, s31, 1")
    a("s_lshr_b32 s54, s32, 2")
    a("s_lshl_b32 s33, s27, 3")
    a("s_add_u32 s26, s33, s54")
    XR, ACC, QACC, WF, NV, PK, T = 16, 128, 160, 176, 248, 224, 240
    XL = 32768
    a("s_lshl_b32 s33, s25, 2")
    a("s_add_u32 s35, s33, s24")
    a("s_mul_i32 s33, s35, 28672")
    a("v_lshrrev_b32 v13, 3, v1")
    a("v_mul_u32_u24 v12, 896, v13")
    a("v_and_b32 v14, 7, v1")
    a("v_lshrrev_b32 v15, 4, v1")
    a("v_xor_b32 v15, v15, v14")
    a("v_lshl_add_u32 v3, v15, 4, v12")
    a("v_add_u32 v3, s33, v3")
    a("v_xor_b32 v246, 64, v3")
    a(f"v_add_u32 v244, {6144}, v246")
    a(f"v_add_u32 v245, {6144*2}, v3")
    a(f"v_add_u32 v246, {6144*3}, v246")
    a("s_mul_i32 s40, s24, 12288")
    a(f"s_add_u32 s40, s40, {XL}")
    a("s_lshl_b32 s33, s34, 1")
    a("s_add_u32 s28, s33, s54")
    a("s_sub_u32 s33, s28, 7")
    a("s_cmp_ge_u32 s28, 7")
    a("s_cselect_b32 s28, s33, s28")
    if "norot" in EXP: a("s_mov_b32 s28, 0")
    a("s_mov_b32 s30, s28")
    a("v_bfe_u32 v15, v1, 4, 1")
    a("v_lshlrev_b32 v15, 2, v15")
    a("v_xor_b32 v15, v15, v14")
    a("v_mul_u32_u24 v4, 2688, v13")
    a("v_lshl_add_u32 v4, v15, 4, v4")
    a("s_min_u32 s55, s54, 6")
    a("s_mul_i32 s33, s24, 43008")
    a("s_mul_i32 s34, s27, 896")
    a("s_add_u32 s33, s33, s34")
    a("s_lshl_b32 s34, s55, 7")
    a("s_add_u32 s33, s33, s34")
    a("s_add_u32 s33, s33, 896")
    a("v_add_u32 v4, s33, v4")
    a(f"v_add_u32 v5, {21504-1024}, v4")
    a("s_lshl_b32 s36, s24, 11")
    a("s_waitcnt lgkmcnt(0)")
    a.stamp(1)
    a.srd(12, P_X, X_BYTES)
    a.srd(16, P_W, W_BYTES)
    def adv(r):
        a(f"s_add_u32 s{r}, s{r}, 1")
        a(f"s_cmp_eq_u32 s{r}, 7")
        a(f"s_cselect_b32 s{r}, 0, s{r}")
    QD = int(os.environ.get("QD", "14"))
    L = []
    for s_ in range(7):
        L += [("x", s_, 0), ("x", s_, 1), ("x", s_, 2), ("x", s_, 3), ("w", s_, 0), ("w", s_, 1)]
    L += [("n", 0, 0)] + [("q", i, 0) for i in range(7)]
    tag = {}; tagxf = {}
    lp = [0]; lastbar = [-1]; xfree = [-1]; light = [False]
    def issue():
        if lp[0] >= len(L): return
        while light[0] and L[lp[0]][0] == "w": lp[0] += 1
        k, s_, n = L[lp[0]]
        need = {"x": s_ - 3, "q": 4 + (s_ >> 2)}.get(k, -1)
        if need > xfree[0]: return
        if k == "w" and s_ >= 4 and lastbar[0] < s_ - 2: return
        lp[0] += 1
        if k == "x":
            if n == 0:
                if s_: adv(28)
                a(f"s_add_u32 m0, s40, {(s_%3)*4096}")
                a("s_lshl_b32 s29, s28, 7")
                a("s_mul_i32 s37, s28, 172032")
            tag[(k, s_, n)] = a.vm(f"buffer_load_dwordx4 v{3 if n == 0 else 243+n}, s[12:15], s29 offen offset:{1024*n} lds")
        elif k == "w":
            if n == 0:
                a(f"s_add_u32 m0, s36, {(s_%4)*8192}")
                a("s_nop 0")
            tag[(k, s_, n)] = a.vm(f"buffer_load_dwordx4 v{4+n}, s[16:19], s37 offen offset:{1024*n} lds")
        elif k == "n":
            nonce_issue(a, NV)
        else:
            a(f"s_add_u32 m0, s40, {4096 + 1024*s_}")
            a("s_mul_i32 s39, s30, 172032")
            a.vm(f"buffer_load_dwordx4 v14, s[16:19], s39 offen lds")
            if s_ < 6: adv(30)
    LSL = int(os.environ.get("LSL", "0"))
    if LSL:
        a("s_cmp_lg_u32 s54, 7")
        a("s_cbranch_scc1 A_GO")
        a(f"s_sleep {LSL}")
        a.label("A_GO")
    for _ in range(QD): issue()
    if "stopA" in EXP: a.stamp(7)
    a.srd(20, P_WS, WS_SIZE)
    if "Aload" in EXP:
        a("s_waitcnt vmcnt(0)"); a("s_endpgm")
    a("v_and_b32 v13, 31, v1")
    a("v_bfe_u32 v14, v1, 1, 3")
    a("v_lshrrev_b32 v15, 5, v1")
    a("v_xor_b32 v14, v14, v15")
    a("v_lshlrev_b32 v13, 7, v13")
    a("v_lshl_add_u32 v8, v14, 4, v13")
    a("v_add_u32 v8, s40, v8")
    for ks in range(1, 4):
        a(f"v_xor_b32 v{8+ks}, {32*ks}, v8")
    a(f"v_bfe_u32 v{T}, v1, 2, 2")
    a(f"v_lshl_add_u32 v{T+1}, v15, 3, v{T}")
    a(f"v_bfe_u32 v{T+2}, v1, 4, 1")
    a(f"v_and_b32 v{T+3}, 3, v1")
    a(f"v_lshl_add_u32 v{PK}, v{T+2}, 2, v{T+3}")
    a(f"v_and_b32 v{PK+1}, 1, v1")
    a(f"v_bfe_u32 v{PK+2}, v1, 1, 1")
    a(f"v_lshl_add_u32 v{PK+1}, v{PK+1}, 1, v{PK+2}")
    a(f"v_lshl_add_u32 v{PK+1}, v{T+2}, 2, v{PK+1}")
    a(f"v_bfe_u32 v{T+3}, v1, 3, 1")
    a(f"v_lshlrev_b32 v{T+3}, 6, v{T+3}")
    a(f"v_lshl_add_u32 v{T+3}, v{T+1}, 7, v{T+3}")
    a("s_cmp_eq_u32 s27, 1")
    a("s_cselect_b64 vcc, -1, 0")
    a(f"v_cndmask_b32 v12, v{PK+1}, v{PK}, vcc")
    a(f"v_lshl_add_u32 v12, v12, 3, v{T+3}")
    a("v_xor_b32 v13, 64, v12")
    a(f"v_add_u32 v{PK+2}, 2, v{PK+1}")
    a(f"v_sub_u32 v{PK+3}, 7, v{PK+1}")
    a(f"v_cmp_gt_u32 vcc, 6, v{PK+1}")
    a("s_bitcmp1_b32 s26, 0")
    a("s_cselect_b64 s[4:5], -1, 0")
    a(f"v_cndmask_b32 v{PK+2}, v{PK+3}, v{PK+2}, vcc")
    a(f"v_cndmask_b32 v{PK+2}, v{PK+1}, v{PK+2}, s[4:5]")
    a(f"v_lshlrev_b32 v15, 6, v{T+1}")
    a(f"v_lshl_add_u32 v15, v{PK+2}, 3, v15")
    a(f"v_add_u32 v15, {XL + 4096}, v15")
    a("v_lshrrev_b32 v14, 2, v1")
    a("v_mul_u32_u24 v14, 2688, v14")
    a(f"v_and_b32 v{T}, 3, v1")
    a(f"v_lshl_add_u32 v14, v{T}, 4, v14")
    a("s_mul_i32 s33, s26, 56")
    a("s_and_b32 s33, s33, -16")
    a(f"s_mul_i32 s34, s24, {16*2688}")
    a("s_add_u32 s33, s33, s34")
    a("v_add_u32 v14, s33, v14")
    a("s_mul_i32 s33, s54, 2341")
    a("s_lshr_b32 s33, s33, 10")
    a(f"v_add_u32 v{PK}, s33, v1")
    a(f"v_mul_u32_u24 v{PK+1}, 28, v{PK}")
    a(f"v_lshrrev_b32 v{PK+1}, 6, v{PK+1}")
    a(f"v_cmp_ge_u32 s[56:57], s54, v{PK+1}")
    a(f"v_lshlrev_b32 v243, 9, v{PK}")
    a("s_lshr_b32 s42, s25, 2")
    a("s_lshl_b32 s42, s42, 7")
    a(f"s_add_u32 s42, s42, {F_KV}")
    a("s_and_b64 s[56:57], s[56:57], 15")
    a("s_cmp_eq_u32 s54, 7")
    a("s_cbranch_scc1 A_LIGHT")
    a("s_cmp_eq_u32 s27, 1")
    a("s_cbranch_scc1 A_V")

    def pass1(vtype):
        tagtr = {}
        NB = 6; TD = 3
        NIS = int(os.environ.get("NIS", "2"))
        def trload(u):
            s, ks = u >> 2, u & 3
            for t in range(2):
                for hr in range(2):
                    off = (s % 4) * 8192 + (16 * ks + 4 * hr) * 128
                    tagtr[u] = a.ds(f"ds_read_b64_tr_b16 {vr(WF+(u%NB)*8+4*t+2*hr,2)}, v{12+t} offset:{off}")
        pend = None
        for u in range(-4, 28):
            if u >= 0:
                a.wait_ds(max(tagtr[u], tagxf[u >> 2]))
                for t in range(2):
                    wf = vr(WF + (u % NB) * 8 + 4 * t, 4); xf = vr(XR + 4 * u, 4)
                    c = "0" if u == 0 else vr(ACC + 16 * t, 16)
                    if vtype:
                        a(f"{MF32} {vr(ACC+16*t,16)}, {xf}, {wf}, {c}")
                    else:
                        a(f"{MF32} {vr(ACC+16*t,16)}, {wf}, {xf}, {c}")
            if (u + TD) % 4 == 0 and (u + TD) // 4 < 7:
                sb = (u + TD) // 4
                a.wait_vm(tag[("w", sb, 1)])
                a("s_barrier")
                lastbar[0] = sb
                if sb in (0, 6): a.stamp(2 + sb // 6)
            if pend is not None:
                a.wait_ds(tagxf[pend]); xfree[0] = pend; pend = None
            if 0 <= u + TD < 28:
                trload(u + TD)
            if u % 4 == 0 and u // 4 + 1 < 7:
                s = u // 4 + 1
                a.wait_vm(tag[("x", s, 3)])
                for ks in range(4):
                    tagxf[s] = a.ds(f"ds_read_b128 {vr(XR+16*s+4*ks,4)}, v{8+ks} offset:{(s%3)*4096}")
                pend = s
            for _ in range(NIS): issue()
        assert lp[0] == len(L), lp
    saved = (a.nvm, a.nds, lp[0])
    a("v_mov_b32 v247, v2")
    a(f"s_mul_i32 s38, s35, {KTS}")
    a("s_lshl_b32 s33, s55, 12")
    a("s_add_u32 s38, s38, s33")
    a("s_add_u32 s41, s38, 1024")
    a("s_add_u32 s43, s38, 2048")
    a("s_add_u32 s44, s38, 3072")
    pass1(False)
    a("s_branch A_ST")
    a.label("A_V")
    a.nvm, a.nds, lp[0] = saved; lastbar[0] = -1; xfree[0] = -1
    a("v_lshrrev_b32 v247, 5, v1")
    a(f"v_mul_u32_u24 v247, {8064-512}, v247")
    a("v_add_u32 v247, v247, v2")
    a(f"s_mul_i32 s38, s35, {VTS}")
    a("s_mul_i32 s33, s55, 1152")
    a("s_add_u32 s38, s38, s33")
    a(f"s_add_u32 s38, s38, {VF}")
    a("s_add_u32 s41, s38, 16128")
    a("s_add_u32 s43, s38, 512")
    a("s_add_u32 s44, s41, 512")
    a(f"v_lshrrev_b32 v{T}, 1, v1")
    a(f"v_mul_u32_u24 v{T}, 8064, v{T}")
    a(f"v_and_b32 v{T+1}, 1, v1")
    a(f"v_lshl_add_u32 v{T}, v{T+1}, 4, v{T}")
    a(f"v_subrev_u32 v{T+1}, 1, v{T+1}")
    for i in range(4):
        a(f"v_and_b32 v{PK+i}, 0x3f803f80, v{T+1}")
    a("s_mov_b64 exec, 0xff")
    a(f"buffer_store_dwordx4 {vr(PK,4)}, v{T}, s[20:23], s38 offen offset:1024{SC}")
    a("s_mov_b64 exec, -1")
    pass1(True)
    a.label("A_ST")
    a.nop(11)
    for t in range(2):
        for r in range(0, 16, 2):
            a(f"v_cvt_pk_bf16_f32 v{PK+8*t+r//2}, v{ACC+16*t+r}, v{ACC+16*t+r+1}")
        for f in range(2):
            a(f"buffer_store_dwordx4 {vr(PK+8*t+4*f,4)}, v247, s[20:23], s{(38,41,43,44)[2*t+f]} offen{SC}")
    a("s_waitcnt vmcnt(4)")
    a("s_branch A_P2")
    a.label("A_LIGHT")
    a.nvm, a.nds, lp[0] = saved; xfree[0] = -1; light[0] = True
    for _ in range(6): issue()
    for s_ in range(7):
        a.wait_vm(tag[("x", s_, 3)])
        for ks in range(4):
            a.ds(f"ds_read_b128 {vr(XR+16*s_+4*ks,4)}, v{8+ks} offset:{(s_%3)*4096}")
        a("s_waitcnt lgkmcnt(0)")
        xfree[0] = s_
        for _ in range(6): issue()
    assert lp[0] == len(L)
    a("s_waitcnt vmcnt(0)")
    a.label("A_P2")
    a.stamp(4)
    a("s_barrier")
    tq = {}
    def trq(u):
        for hr in range(2):
            tq[u] = a.ds(f"ds_read_b64_tr_b16 {vr(WF+(u%8)*4+2*hr,2)}, v15 offset:{(u&3)*12288+(u>>2)*1024+256*hr}")
    for u in range(6): trq(u)
    nonce_take(a, NV)
    for u in range(28):
        if u + 6 < 28: trq(u + 6)
        a.wait_ds(tq[u])
        c = "0" if u == 0 else vr(QACC, 16)
        a(f"{MF32} {vr(QACC,16)}, {vr(WF+(u%8)*4,4)}, {vr(XR+4*u,4)}, {c}")
    a("s_waitcnt vmcnt(0)")
    a("s_barrier")
    a("s_cmp_eq_u32 s54, 7")
    a("s_cselect_b32 s33, 1, s24")
    a("s_cmp_lg_u32 s33, 0")
    a("s_cbranch_scc1 A_NOPUB")
    cnt_add(a, NV, "s42", 243, "s[56:57]")
    a.label("A_NOPUB")
    a.stamp(5)
    if "stopA" in EXP:
        fin(a, 6); a("s_endpgm")
    Q, O, S, P, KB, VB, NM, MX, T2 = 16, 48, 112, 144, 160, 192, 224, 228, 232
    VK0, VK1, VV0, VV1, C1, C2 = 10, 11, 12, 13, 252, 253
    a("s_mul_i32 s33, s26, 28")
    a("s_lshr_b32 s44, s33, 6")
    a("s_add_u32 s34, s33, 27")
    a("s_lshr_b32 s34, s34, 6")
    a("s_sub_u32 s34, s34, s44")
    a("s_lshl_b32 s34, s34, 3")
    a("s_add_u32 s58, s34, 8")
    a("v_lshrrev_b32 v4, 5, v1")
    a("s_lshl_b32 s34, s26, 9")
    a("s_lshl_b32 s36, s24, 7")
    a("s_add_u32 s34, s34, s36")
    a(f"s_add_u32 s53, s34, {F_KV}")
    a(f"s_mov_b32 s46, {hex(f2u(QSCALE))}")
    a("s_mov_b32 s47, s46")
    for r in range(0, 16, 2):
        a(f"v_pk_mul_f32 {vr(QACC+r,2)}, {vr(QACC+r,2)}, s[46:47]")
    for r in range(0, 16, 2):
        a(f"v_cvt_pk_bf16_f32 v{Q+r//2}, v{QACC+r}, v{QACC+r+1}")
    a("s_mov_b32 exec_lo, 0")
    a(f"v_mov_b32 v{Q+6}, 0")
    a(f"v_mov_b32 v{Q+7}, 0")
    a("s_mov_b32 exec_lo, -1")
    a("s_lshl_b32 s36, s24, 11")
    a("v_add_u32 v6, s36, v2")
    for f in range(2):
        a(f"ds_write_b128 v6, {vr(Q+4*f,4)} offset:{1024*f}")
    a("s_lshr_b32 s34, s26, 1")
    a("s_mul_i32 s34, s34, 3584")
    a("s_and_b32 s36, s26, 1")
    a("s_lshl_b32 s37, s36, 11")
    a("s_add_u32 s34, s34, s37")
    a(f"v_add_u32 v{VK0}, s34, v2")
    a(f"v_add_u32 v{VK1}, 1024, v{VK0}")
    a(f"s_mul_i32 s37, s36, {2048-8}")
    a("s_mov_b32 exec_lo, 0")
    a(f"v_subrev_u32 v{VK1}, s37, v{VK1}")
    a("s_mov_b32 exec_lo, -1")
    a("v_and_b32 v5, 31, v1")
    a("v_add_u32 v7, s33, v5")
    a("v_lshrrev_b32 v8, 6, v7")
    a("v_lshlrev_b32 v8, 7, v8")
    a(f"v_lshl_add_u32 v{VV0}, v7, 4, v8")
    a("s_mul_i32 s34, s44, 1152")
    a("s_add_u32 s34, s34, 1024")
    a("s_add_u32 s37, s34, 16")
    a("s_mov_b32 exec_lo, 0x10000000")
    a("s_mov_b32 exec_hi, 0x10000000")
    a(f"v_mov_b32 v{VV0}, s34")
    a("s_mov_b32 exec_lo, 0xe0000000")
    a("s_mov_b32 exec_hi, 0xe0000000")
    a(f"v_mov_b32 v{VV0}, s37")
    a("s_mov_b64 exec, -1")
    a("s_movk_i32 s34, 8064")
    a(f"v_mad_u32_u24 v{VV0}, v4, s34, v{VV0}")
    a(f"v_add_u32 v{VV1}, 16128, v{VV0}")
    a(f"s_mul_i32 s34, s24, {16*KTS}")
    a(f"s_mul_i32 s37, s24, {16*VTS}")
    a(f"s_add_u32 s37, s37, {VF}")
    a.srd(12, P_WS, 16 * KTS, "s34")
    a.srd(16, P_WS, 16 * VTS, "s37")
    a(f"v_mov_b32 v{C1}, 0x3f803f80")
    a(f"v_mov_b32 v{C2}, 0x3f80")
    a("s_waitcnt lgkmcnt(0)")
    a("s_barrier")
    for t in range(1, 4):
        a(f"v_xor_b32 v5, {2048*t}, v6")
        for f in range(2):
            a(f"ds_read_b128 {vr(Q+8*t+4*f,4)}, v5 offset:{1024*f}")
    def zero_acc():
        for r in range(64):
            a(f"v_mov_b32 v{O+r}, 0")
        for r in range(8):
            a(f"v_mov_b32 v{VB+24+r}, 0")
    cnt_load(a, NV + 2, "s53")
    zero_acc()
    for t in range(4):
        a(f"v_mov_b32 v{NM+t}, 0")
    a("s_mov_b32 s41, 0")
    a("s_mov_b32 s42, 0x07060302")
    a("s_min_u32 s33, s32, 27")
    a("s_and_b32 s34, s33, 3")
    a("s_lshl_b32 s47, s31, 2")
    a("s_add_u32 s47, s47, s34")
    a("s_lshr_b32 s48, s33, 2")
    a("s_lshr_b32 s49, s24, 1")
    a("s_lshl_b32 s33, s47, 1")
    a("s_add_u32 s49, s49, s33")
    a("s_and_b32 s50, s24, 1")
    a("s_lshl_b32 s33, s48, 1")
    a("s_add_u32 s50, s50, s33")
    a("v_bfe_u32 v5, v1, 2, 2")
    a("v_lshlrev_b32 v9, 7, v5")
    a("v_bfe_u32 v5, v1, 4, 1")
    a("v_lshl_add_u32 v9, v5, 6, v9")
    a("v_and_b32 v5, 3, v1")
    a("v_lshl_add_u32 v9, v5, 4, v9")
    a("v_lshl_add_u32 v9, v4, 9, v9")
    for t in range(1, 4):
        a(f"s_xor_b32 s33, s24, {t}")
        a("s_mul_i32 s33, s33, 12288")
        a(f"s_add_u32 s33, s33, {(t-1)*4096}")
        a(f"v_add_u32 v{3+t}, s33, v2")
    a("s_mul_i32 s33, s24, 12288")
    a("v_add_u32 v7, s33, v2")
    a("v_or_b32 v8, 512, v7")
    a("s_lshl_b32 s33, s35, 4")
    a("s_add_u32 s33, s33, s26")
    a("s_lshl_b32 s43, s33, 11")
    a(f"s_add_u32 s43, s43, {OF}")
    a("s_lshr_b32 s51, s35, 1")
    a("s_lshl_b32 s51, s51, 9")
    a("s_lshr_b32 s33, s26, 2")
    a("s_lshl_b32 s33, s33, 7")
    a("s_add_u32 s51, s51, s33")
    a(f"s_add_u32 s51, s51, {F_O}")
    a("s_lshl_b32 s33, s50, 7")
    a(f"s_add_u32 s33, s33, {F_B}")
    a("v_mov_b32 v14, s33")
    a("v_mov_b32 v15, 64")
    a("s_lshl_b32 s33, s49, 7")
    a(f"s_add_u32 s33, s33, {F_G}")
    a("v_writelane_b32 v14, s33, 1")
    a("v_writelane_b32 v15, 2, 1")
    a("s_lshl_b32 s33, s24, 7")
    a(f"s_add_u32 s33, s33, {F_WO}")
    a("v_writelane_b32 v14, s33, 2")
    a("v_writelane_b32 v15, 16, 2")
    a("s_waitcnt vmcnt(0) lgkmcnt(0)")
    cnt_wait(a, NV + 2, "s53", "s58")
    a.stamp(6)
    def first_loads():
        a("s_mov_b32 s44, 0")
        a("s_mov_b32 s45, 0")
        for kt in range(4):
            for f in range(2):
                r = a.vm(f"buffer_load_dwordx4 {vr(KB+8*kt+4*f,4)}, v{VK0+f}, s[12:15], s44 offen{SC}")
            a(f"s_addk_i32 s44, {KTS}")
            if kt == 0: tag = r
            if kt < 3:
                for f in range(2):
                    a.vm(f"buffer_load_dwordx4 {vr(VB+8*kt+4*f,4)}, v{VV0+f}, s[16:19], s45 offen{SC}")
                a(f"s_addk_i32 s45, {VTS}")
        return tag
    def patch(kb):
        a(f"v_mov_b32_dpp v{kb+6}, v{C1} quad_perm:[0,1,2,3] row_mask:0xc bank_mask:0xf")
        a(f"v_mov_b32_dpp v{kb+7}, v{C2} quad_perm:[0,1,2,3] row_mask:0xc bank_mask:0xf")
    tagk0 = first_loads()
    a.wait_vm(tagk0)
    a.stamp(7)
    TT = [S, S + 16, T2, P]
    patch(KB)
    a("s_nop 0")
    for t in range(4):
        a(f"{MF32} {vr(TT[t],16)}, {vr(KB,4)}, {vr(Q+8*t,4)}, 0")
        a(f"{MF32} {vr(TT[t],16)}, {vr(KB+4,4)}, {vr(Q+8*t+4,4)}, {vr(TT[t],16)}")
    a.nop(8)
    for tp in (0, 2):
        for i in range(8):
            for t in (tp, tp + 1):
                if i == 0:
                    a(f"v_max3_f32 v{MX+t}, v{TT[t]}, v{TT[t]+1}, v{TT[t]+2}")
                elif i < 7:
                    a(f"v_max3_f32 v{MX+t}, v{MX+t}, v{TT[t]+2*i+1}, v{TT[t]+2*i+2}")
                else:
                    a(f"v_max_f32 v{MX+t}, v{MX+t}, v{TT[t]+15}")
    a.label("A_SETMAX")
    for t in range(4):
        a(f"v_mov_b32 v{T2+t}, v{MX+t}")
    for r in range(2):
        a(f"v_mov_b32 v{P+8+r}, 0")
    for t in range(4):
        a(f"v_permlane32_swap_b32 v{T2+t}, v{MX+t}")
    for t in range(4):
        a(f"v_max_f32 v{MX+t}, v{MX+t}, v{T2+t}")
    for t in range(4):
        a(f"v_sub_f32 v{NM+t}, v{NM+t}, v{MX+t}")
    for t in range(4):
        a(f"v_and_b32 v{T2+t}, 0xffff0000, v{NM+t}")
    for t in range(4):
        a(f"v_sub_f32 v{T2+t}, v{NM+t}, v{T2+t}")
    for t in range(4):
        a(f"v_and_b32 v{T2+4+t}, 0xffff0000, v{T2+t}")
    for t in range(4):
        a(f"v_sub_f32 v{T2+4+t}, v{T2+t}, v{T2+4+t}")
    a("s_mov_b32 exec_lo, 0")
    for t in range(4):
        a(f"v_perm_b32 v{Q+8*t+6}, v{T2+t}, v{NM+t}, s42")
        a(f"v_lshrrev_b32 v{Q+8*t+7}, 16, v{T2+4+t}")
    a("s_mov_b32 exec_lo, -1")
    a(f"{MF32} {vr(S,16)}, {vr(KB,4)}, {vr(Q,4)}, 0")
    a(f"{MF32} {vr(S,16)}, {vr(KB+4,4)}, {vr(Q+4,4)}, {vr(S,16)}")
    for r in range(2, 8):
        a(f"v_mov_b32 v{P+8+r}, 0")
    a("s_mov_b32 s46, 4")
    a("s_setprio 0")
    a.nop(3)
    a.label("A_LOOP")
    for n in range(16):
        kt, t = n >> 2, n & 3
        n1 = (n + 1) & 15; kt1, t1 = n1 >> 2, n1 & 3
        n0 = (n - 1) & 15; kt0, t0 = n0 >> 2, n0 & 3
        sc = S + 16 * (n & 1); sn = S + 16 * (n1 & 1)
        pc = P + 8 * (n & 1); pp = P + 8 * (n0 & 1)
        mf = [f"{MF32} {vr(sn,16)}, {vr(KB+8*kt1,4)}, {vr(Q+8*t1,4)}, 0",
              f"{MF32} {vr(sn,16)}, {vr(KB+8*kt1+4,4)}, {vr(Q+8*t1+4,4)}, {vr(sn,16)}",
              f"{MF32} {vr(O+16*t0,16)}, {vr(VB+8*kt0,4)}, {vr(pp,4)}, {vr(O+16*t0,16)}",
              f"{MF32} {vr(O+16*t0,16)}, {vr(VB+8*kt0+4,4)}, {vr(pp+4,4)}, {vr(O+16*t0,16)}"]
        for m in range(4):
            if (m == 0 and t == 3) or (m == 2 and t == 1):
                a("s_waitcnt vmcnt(12)")
            a(mf[m])
            if m == 0 and t == 3:
                patch(KB + 8 * kt1)
            for e in range(4):
                a(f"v_exp_f32 v{sc+4*m+e}, v{sc+4*m+e}")
                if m == 1 and t == 2 and e in (0, 1):
                    a(f"buffer_load_dwordx4 {vr(KB+8*kt+4*e,4)}, v{VK0+e}, s[12:15], s44 offen{SC}")
                if m == 1 and t == 2 and e == 2:
                    a(f"s_addk_i32 s44, {KTS}")
                if m == 3 and t == 0 and e in (0, 1):
                    a(f"buffer_load_dwordx4 {vr(VB+8*kt0+4*e,4)}, v{VV0+e}, s[16:19], s45 offen{SC}")
                if m == 3 and t == 0 and e == 2:
                    a(f"s_addk_i32 s45, {VTS}")
                if n == 0 and m == 3 and e == 3:
                    a("s_cmp_lg_u32 s46, 1")
                    a("s_cbranch_scc1 A_NOFL")
                    late_load(a, 248, 14)
                    a.label("A_NOFL")
                if n == 15 and m == 3 and e == 0:
                    a("s_sub_u32 s46, s46, 1")
                if n == 15 and m == 3 and e == 1:
                    a("s_cmp_lg_u32 s46, 0")
            for c in range(2):
                a(f"v_cvt_pk_bf16_f32 v{pc+2*m+c}, v{sc+4*m+2*c}, v{sc+4*m+2*c+1}")
    a("s_cbranch_scc1 A_LOOP")
    a.stamp(8)
    a("s_nop 0")
    a(f"{MF32} {vr(O+48,16)}, {vr(VB+24,4)}, {vr(P+8,4)}, {vr(O+48,16)}")
    a(f"{MF32} {vr(O+48,16)}, {vr(VB+28,4)}, {vr(P+12,4)}, {vr(O+48,16)}")
    a("v_mov_b32 v3, 0x5f800000")
    a("s_mov_b32 exec_lo, 0")
    for t in range(3):
        a(f"v_cmp_nlt_f32 {sr(4+2*t,2)}, v{O+16*t+12}, v3")
    for t in range(1, 3):
        a(f"v_mov_b32 v{O+16*t+13}, v{NM+t}")
    a("s_mov_b32 exec_lo, -1")
    for t in range(1, 3):
        for q in range(4):
            a(f"ds_write_b128 v{3+t}, {vr(O+16*t+4*q,4)} offset:{1024*q}")
    a("s_mov_b32 exec_lo, 0")
    a(f"v_cmp_nlt_f32 vcc, v{O+48+12}, v3")
    a(f"v_mov_b32 v{O+48+13}, v{NM+3}")
    a("s_mov_b32 exec_lo, -1")
    a("s_or_b32 s5, s5, s7")
    a("s_or_b32 s5, s5, s9")
    a("s_or_b32 s5, s5, vcc_hi")
    a("s_andn2_b32 s5, s5, s41")
    a("s_cbranch_scc1 A_FALLBACK")
    for q in range(4):
        a(f"ds_write_b128 v6, {vr(O+48+4*q,4)} offset:{1024*q}")
    a(f"v_mov_b32 v{T2}, v{O+12}")
    a(f"v_mov_b32 v{T2+1}, v{O+12}")
    a("v_add_u32 v10, 4096, v2")
    a("s_lshl_b32 s33, s24, 13")
    a(f"s_add_u32 s33, s33, {WOF}")
    a("s_lshl_b32 s36, s50, 15")
    a("s_add_u32 s36, s36, s33")
    a("s_xor_b32 s37, s50, 1")
    a("s_lshl_b32 s37, s37, 15")
    a("s_add_u32 s37, s37, s33")
    a("v_lshrrev_b32 v11, 5, v1")
    a("v_lshlrev_b32 v12, 6, v11")
    a("s_lshl_b32 s38, s49, 7")
    a(f"s_add_u32 s38, s38, {GO}")
    a("v_and_b32 v13, 31, v1")
    a("v_lshlrev_b32 v3, 12, v13")
    a("v_lshl_add_u32 v3, v11, 4, v3")
    a("s_lshl_b32 s39, s50, 17")
    a("s_lshr_b32 s34, s49, 4")
    a("s_lshl_b32 s34, s34, 10")
    a("s_add_u32 s39, s39, s34")
    a("s_and_b32 s34, s49, 15")
    a("s_lshl_b32 s34, s34, 5")
    a("s_add_u32 s39, s39, s34")
    a(f"s_add_u32 s39, s39, {BT}")
    a("s_waitcnt lgkmcnt(0)")
    a("s_barrier")
    LM = T2 + 2
    for s in range(3):
        a(f"ds_read_b64 {vr(LM+2*s,2)}, v8 offset:{4096*s+3072}")
    RB = O + 16
    for s in range(3):
        for q in range(4):
            a(f"ds_read_b128 {vr(RB+16*s+4*q,4)}, v7 offset:{4096*s+1024*q}")
    a(f"v_permlane32_swap_b32 v{T2}, v{T2+1}")
    a("s_waitcnt lgkmcnt(12)")
    a(f"v_min3_f32 v{MX}, v{NM}, v{LM+1}, v{LM+3}")
    a(f"v_min_f32 v{MX}, v{MX}, v{LM+5}")
    a(f"v_sub_f32 v{S}, v{MX}, v{NM}")
    for s in range(3):
        a(f"v_sub_f32 v{S+2+2*s}, v{MX}, v{LM+2*s+1}")
    for s in range(4):
        a(f"v_exp_f32 v{S+2*s}, v{S+2*s}")
    a(f"v_mul_f32 v{MX+1}, v{S}, v{T2+1}")
    for s in range(3):
        a(f"v_fmac_f32 v{MX+1}, v{S+2+2*s}, v{LM+2*s}")
    a(f"v_rcp_f32 v{MX+1}, v{MX+1}")
    a("s_nop 0")
    for s in range(4):
        a(f"v_mul_f32 v{S+2*s}, v{S+2*s}, v{MX+1}")
    for r in range(0, 16, 2):
        a(f"v_pk_mul_f32 {vr(O+r,2)}, {vr(O+r,2)}, {vr(S,2)} op_sel_hi:[1,0]")
    for s in range(3):
        a(f"s_waitcnt lgkmcnt({8-4*s})")
        for r in range(0, 16, 2):
            a(f"v_pk_fma_f32 {vr(O+r,2)}, {vr(RB+16*s+r,2)}, {vr(S+2+2*s,2)}, {vr(O+r,2)} op_sel_hi:[1,0,1]")
    for r in range(0, 16, 2):
        a(f"v_cvt_pk_bf16_f32 v{P+r//2}, v{O+r}, v{O+r+1}")
    a("s_mov_b32 exec_lo, 0")
    a(f"v_mov_b32 v{P+6}, 0")
    a(f"v_mov_b32 v{P+7}, 0")
    a("s_mov_b32 exec_lo, -1")
    a.nvm = 0
    for f in range(2):
        tagos = a.vm(f"buffer_store_dwordx4 {vr(P+4*f,4)}, v9, s[20:23], s43 offen offset:{1024*f}{SC}")
    a.stamp(9)
    a("s_barrier")
    late_check(a, 248, 14, 15)
    WB, GG, BB = KB, Q, Q + 16
    NPRE = int(os.environ.get("NPRE", "4"))
    def wo_load(i):
        for x in range(2):
            a.vm(f"buffer_load_dwordx4 {vr(WB+8*i+4*x,4)}, v{2 if i<4 else 10}, s[20:23], s{36+x} offen offset:{1024*(i&3)}{SC}")
    for i in range(NPRE): wo_load(i)
    a("s_lshl_b32 s52, s47, 9")
    a("s_lshl_b32 s33, s24, 7")
    a("s_add_u32 s52, s52, s33")
    a(f"s_add_u32 s52, s52, {F_O}")
    a.wait_vm(tagos)
    cnt_add(a, 252, "s51")
    a("s_cmp_ge_u32 s32, 28")
    a("s_cbranch_scc1 L_END")
    for i in range(NPRE, 8): wo_load(i)
    for i in range(4):
        a.vm(f"buffer_load_dwordx4 {vr(GG+4*i,4)}, v12, s[20:23], s38 offen offset:{16*i}{SC}")
    for i in range(2):
        a.vm(f"buffer_load_dwordx4 {vr(BB+4*i,4)}, v3, s[20:23], s39 offen offset:{512*i}{SC}")
    cnt_load(a, 250, "s52")
    a("s_lshl_b32 s33, s24, 13")
    a(f"s_add_u32 s33, s33, {OF}")
    a("s_lshl_b32 s36, s49, 15")
    a("s_add_u32 s36, s36, s33")
    a("s_xor_b32 s37, s49, 1")
    a("s_lshl_b32 s37, s37, 15")
    a("s_add_u32 s37, s37, s33")
    a.srd(12, P_OUT, X_BYTES)
    a("v_mul_u32_u24 v12, 14336, v11")
    a("v_lshl_add_u32 v12, v13, 1, v12")
    a("s_mul_i32 s44, s49, 28672")
    a("s_lshl_b32 s33, s50, 6")
    a("s_add_u32 s44, s44, s33")
    for i in range(1, 4):
        a(f"s_add_u32 s{44+i}, s44, {3584*i}")
    a("s_waitcnt vmcnt(0)")
    BU = 232
    for i in range(8):
        a(f"v_lshlrev_b32 v{BU+2*i}, 16, v{BB+i}")
        a(f"v_and_b32 v{BU+2*i+1}, 0xffff0000, v{BB+i}")
    cnt_wait(a, 250, "s52", 8)
    a.stamp(10)
    AF = O
    tags = []
    for i in range(8):
        for x in range(2):
            t = a.vm(f"buffer_load_dwordx4 {vr(AF+8*i+4*x,4)}, v{2 if i<4 else 10}, s[20:23], s{36+x} offen offset:{1024*(i&3)}{SC}")
        tags.append(t)
    AC = [BB, S, S + 16, P]
    for i in range(8):
        a.wait_vm(tags[i])
        for t in (3, 2, 1, 0):
            sa, sb = t >> 1, t & 1
            c = "0" if i == 0 else vr(AC[t], 16)
            a(f"{MF32} {vr(AC[t],16)}, {vr(AF+8*i+4*sa,4)}, {vr(WB+8*i+4*sb,4)}, {c}")
    a.nop(9)
    a.stamp(11)
    for t in (3, 2, 1):
        for q in range(4):
            a(f"ds_write_b128 v{3+t}, {vr(AC[t]+4*q,4)} offset:{1024*q}")
    for r in range(0, 16, 2):
        a(f"v_pk_add_f32 {vr(AC[0]+r,2)}, {vr(AC[0]+r,2)}, {vr(BU+r,2)} neg_lo:[0,1] neg_hi:[0,1]")
    a("s_waitcnt lgkmcnt(0)")
    a("s_barrier")
    for s in range(3):
        for q in range(4):
            a(f"ds_read_b128 {vr(AF+16*s+4*q,4)}, v7 offset:{4096*s+1024*q}")
    for s in range(3):
        a(f"s_waitcnt lgkmcnt({8-4*s})")
        for r in range(0, 16, 2):
            a(f"v_pk_add_f32 {vr(AC[0]+r,2)}, {vr(AC[0]+r,2)}, {vr(AF+16*s+r,2)}")
    for r in range(0, 16, 2):
        a(f"v_pk_fma_f32 {vr(AC[0]+r,2)}, {vr(AC[0]+r,2)}, {vr(GG+r,2)}, {vr(BU+r,2)}")
    for r in range(0, 16, 2):
        a(f"v_cvt_pk_bf16_f32 v{AF+r//2}, v{AC[0]+r}, v{AC[0]+r+1}")
    for r in range(16):
        op = "buffer_store_short_d16_hi" if r & 1 else "buffer_store_short"
        a(f"{op} v{AF+r//2}, v12, s[12:15], s{44+(r>>2)} offen offset:{896*(r&3)}")
    fin(a, 12)
    a("s_endpgm")
    a.label("A_FALLBACK")
    a("s_mov_b32 s41, -1")
    for t in range(4):
        a(f"v_mov_b32 v{MX+t}, 0xff800000")
    a("s_mov_b32 s44, 0")
    a("s_waitcnt vmcnt(0) lgkmcnt(0)")
    a.label("A_FBLOOP")
    for f in range(2):
        a(f"buffer_load_dwordx4 {vr(KB+4*f,4)}, v{VK0+f}, s[12:15], s44 offen{SC}")
    a("s_waitcnt vmcnt(0)")
    patch(KB)
    a("s_nop 1")
    for t in range(4):
        a(f"{MF32} {vr(O+16*t,16)}, {vr(KB,4)}, {vr(Q+8*t,4)}, 0")
        a(f"{MF32} {vr(O+16*t,16)}, {vr(KB+4,4)}, {vr(Q+8*t+4,4)}, {vr(O+16*t,16)}")
    a.nop(16)
    for i in range(8):
        for t in range(4):
            a(f"v_max3_f32 v{MX+t}, v{MX+t}, v{O+16*t+2*i}, v{O+16*t+2*i+1}")
    a(f"s_addk_i32 s44, {KTS}")
    a(f"s_cmp_lt_u32 s44, {16*KTS}")
    a("s_cbranch_scc1 A_FBLOOP")
    first_loads()
    zero_acc()
    a("s_waitcnt vmcnt(0)")
    patch(KB)
    a("s_branch A_SETMAX")

def gen_B(a):
    a.label("L_B")
    a(f"s_setprio {PB}")
    a.stamp(1)
    if "noB" in EXP: a("s_endpgm")
    TS = 272; TW = 64 * TS
    UB = 4 * TW
    US = 4608
    YB, XB, KACC, FR, CT = 16, 80, 136, 152, 216
    Z1, Z256, TM = 224, 226, 226
    a(f"s_mul_i32 s29, s24, {TW}")
    a("s_mov_b32 m0, s29")
    a("v_mov_b32 v15, 0x3f80")
    a(f"ds_write_addtid_b32 v15 offset:{32*TS}")
    a("v_and_b32 v12, 31, v1")
    a(f"v_mul_u32_u24 v12, {TS}, v12")
    a("v_lshrrev_b32 v13, 5, v1")
    a("v_lshl_add_u32 v12, v13, 4, v12")
    a("v_add_u32 v240, s29, v12")
    for r in range(16):
        a(f"v_mov_b32 v{KACC+r}, 0")
    a(f"v_mul_u32_u24 v12, {US-512}, v13")
    a("v_add_u32 v12, v12, v2")
    a(f"v_add_u32 v12, {UB}, v12")
    a(f"ds_write_b128 v12, {vr(KACC,4)}")
    a("s_and_b32 s42, s2, 31")
    a("s_lshl_b32 s42, s42, 7")
    a(f"s_add_u32 s42, s42, {F_XT}")
    a("v_lshrrev_b32 v12, 1, v1")
    a("v_and_b32 v13, 1, v1")
    a(f"v_mul_u32_u24 v3, {XTS}, v12")
    a("v_lshl_add_u32 v3, v13, 4, v3")
    a(f"s_mul_i32 s43, s24, {64*XTS}")
    a("s_mul_i32 s33, s31, 896")
    a("s_add_u32 s43, s43, s33")
    a("s_lshl_b32 s33, s39, 4")
    a("s_add_u32 s43, s43, s33")
    a(f"s_add_u32 s43, s43, {XT}")
    a(f"s_add_u32 s44, s43, {32*XTS}")
    a(f"v_mul_u32_u24 v241, {US}, v13")
    a("v_lshl_add_u32 v241, v12, 4, v241")
    a("s_lshl_b32 s33, s24, 10")
    a(f"s_add_u32 s33, s33, {UB + 512}")
    a("v_add_u32 v241, s33, v241")
    a("s_waitcnt lgkmcnt(0)")
    a("s_and_b32 s33, s26, 1")
    a("s_lshl_b32 s33, s33, 4")
    a("s_lshr_b32 s28, s28, s33")
    a("s_lshl_b32 s28, s28, 16")
    a("s_lshr_b32 s38, s38, s33")
    a("s_lshl_b32 s38, s38, 16")
    hi = float(np.float32(LOG2E)); lo = float(np.float32(LOG2E - hi))
    a(f"v_mov_b32 v13, {hex(f2u(hi))}")
    a("v_mul_f32 v14, s28, v13")
    a("v_fma_f32 v13, s28, v13, -v14")
    a(f"v_mov_b32 v15, {hex(f2u(lo))}")
    a("v_fmac_f32 v13, s28, v15")
    a("v_exp_f32 v14, v14")
    a(f"v_mul_f32 v13, {hex(f2u(math.log(2)))}, v13")
    a("v_fmac_f32 v14, v14, v13")
    a("v_cvt_pk_bf16_f32 v14, v14, v14")
    a("v_and_b32 v14, 0xffff0000, v14")
    a(f"s_mov_b32 s48, {hex(f2u(LOG2E))}")
    a(f"s_mov_b32 s49, {hex(f2u(1/(2*math.pi)))}")
    a("s_mov_b32 s30, 2")
    a("s_waitcnt vmcnt(0)")
    a.stamp(2)
    a.label("B_PASS")
    a("s_cmp_eq_u32 s30, 2")
    for i in range(6):
        a(f"v_and_b32 v{8+i}, 0xffff0000, v{RAW+i}")
    for i in range(6):
        a(f"v_lshlrev_b32 v{RAW+i}, 16, v{RAW+i}")
    r1 = [0, 0, 2, 4, 4, 4, 6, 8, 8]
    P_ = {}
    for r in range(9): P_[(0, r)] = r; P_[(1, r)] = 256 + r1[r]
    for i, e in enumerate((0, 4, 8)): P_[(0, 9 + i)] = 512 + e; P_[(1, 9 + i)] = 768 + e
    for i, e in enumerate((0, 8)):
        P_[(0, 12 + i)] = 1024 + e; P_[(1, 12 + i)] = 1280 + e; P_[(0, 14 + i)] = 1536 + e; P_[(1, 14 + i)] = 1792 + e
    plist = sorted(set(P_.values()))
    xreg = {p: XB + 2 * i for i, p in enumerate(plist)}
    rows_of = {p: [8 * (r >> 2) + 4 * h + (r & 3) for (h, r), pp in P_.items() if pp == p] for p in plist}
    yreg = {j: YB + 2 * j for j in range(1, 32)}
    a("v_pk_mul_f32 v[8:9], v[8:9], v[14:15] op_sel_hi:[1,0]")
    cmul(a, xreg[0], 12, 10, 0)
    a("v_pk_mul_f32 v[8:9], v[8:9], s[48:49]")
    cmul(a, xreg[0], 12, 10, 1)
    a(f"v_mul_f32 v{TM+2}, 0x41000000, v8")
    a(f"v_mul_f32 v{TM+3}, 0x41000000, v9")
    a(f"v_mul_f32 v{TM+4}, 0x43800000, v8")
    a(f"v_mul_f32 v{TM+5}, 0x43800000, v9")
    a(f"v_pk_mul_f32 {vr(xreg[0],2)}, {vr(xreg[0],2)}, v[14:15] op_sel_hi:[1,0]")
    anchors = [(TM + 2, yreg[1]), (8, Z1), (TM + 4, Z256)]
    for s_, d_ in anchors:
        a(f"v_fract_f32 v{s_+1}, v{s_+1}")
        a(f"v_exp_f32 v{s_}, v{s_}")
    for s_, d_ in anchors:
        a(f"v_cos_f32 v{d_}, v{s_+1}")
        a(f"v_sin_f32 v{d_+1}, v{s_+1}")
    a("s_nop 0")
    for s_, d_ in anchors:
        a(f"v_pk_mul_f32 {vr(d_,2)}, {vr(d_,2)}, {vr(s_,2)} op_sel_hi:[1,0]")
    ops = []
    ops += [(("Y", 2), ("Y", 1), ("Y", 1)), (("Y", 3), ("Y", 2), ("Y", 1)), (("Y", 4), ("Y", 2), ("Y", 2))]
    ops += [(("Y", 4 + k), ("Y", 4), ("Y", k)) for k in (4, 1, 2, 3)]
    ops += [(("Y", 8 + k), ("Y", 8), ("Y", k)) for k in (8, 1, 2, 3, 4, 5, 6, 7)]
    ops += [(("Y", 16 + k), ("Y", 16), ("Y", k)) for k in range(1, 16)]
    xo = [(("X", 8), ("X", 0), ("Y", 1))]
    xo += [(("X", e + 1), ("X", e), ("Z", 1)) for e in range(7)]
    for base, es in ((256, (0, 8, 4, 2, 6)), (512, (0, 8, 4)), (768, (0, 8, 4)), (1024, (0, 8)), (1280, (0, 8)), (1536, (0, 8)), (1792, (0, 8))):
        xo += [(("X", base + e), ("X", base - 256 + e), ("Z", 256)) for e in es]
    def reg(n):
        return {"Y": yreg, "X": xreg, "Z": {1: Z1, 256: Z256}}[n[0]][n[1]]
    done = {("Y", 1), ("X", 0), ("Z", 1), ("Z", 256)}
    allops = xo + ops
    memo = {}
    def height(n):
        if n in memo: return memo[n]
        h = 0
        for (d, x, y) in allops:
            if x == n or y == n: h = max(h, 1 + height(d))
        memo[n] = h
        return h
    pending = sorted(allops, key=lambda o: -height(o[0]))
    towrite = [("Y", 1), ("X", 0)]
    ct = [0]
    def emit_write(n):
        t = CT + (ct[0] % 8); ct[0] += 1
        r = reg(n)
        if n[0] == "Y":
            a(f"v_cvt_pk_bf16_f32 v{t}, v{r}, v{r+1}")
            a(f"ds_write_addtid_b32 v{t} offset:{(32+n[1])*TS}")
        else:
            a(f"v_cvt_pk_bf16_f32 v{t}, v{r}, -v{r+1}")
            for m in rows_of[n[1]]:
                a(f"ds_write_addtid_b32 v{t} offset:{m*TS}")
    nb = 0
    UL = XRW
    PB0 = int(os.environ.get('PB0', '9')); PB1 = int(os.environ.get('PB1', '14'))
    while pending:
        batch = [o for o in pending if o[1] in done and o[2] in done][:4]
        for o in batch: pending.remove(o)
        for (d, x, y) in batch: cmul(a, reg(d), reg(x), reg(y), 0)
        w = towrite; towrite = []
        for n in w[:2]: emit_write(n)
        for (d, x, y) in batch: cmul(a, reg(d), reg(x), reg(y), 1)
        for n in w[2:]: emit_write(n)
        for (d, x, y) in batch:
            done.add(d); towrite.append(d)
        nb += 1
        if nb == PB0:
            a("s_cbranch_scc1 B_P1")
            a("s_setprio 3")
            nonce_issue(a, 250)
            a(f"s_setprio {PB}")
            a.label("B_P1")
        if nb == PB1:
            a("s_lshl_b32 s33, s24, 1")
            a("s_add_u32 s33, s33, s30")
            a("s_cmp_lg_u32 s33, 1")
            a("s_cbranch_scc1 B_P3")
            a("s_waitcnt vmcnt(0)")
            nonce_take(a, 250)
            a("s_setprio 3")
            cnt_load(a, 250, "s42")
            a(f"s_setprio {PB}")
            a.label("B_P3")
    for n in towrite: emit_write(n)
    for ks in range(8):
        a(f"ds_read_b128 {vr(FR+8*ks,4)}, v240 offset:{32*ks}")
        a(f"ds_read_b128 {vr(FR+8*ks+4,4)}, v240 offset:{32*TS+32*ks}")
    for ks in range(8):
        a(f"s_waitcnt lgkmcnt({14-2*ks})")
        a(f"{MF32} {vr(KACC,16)}, {vr(FR+8*ks,4)}, {vr(FR+8*ks+4,4)}, {vr(KACC,16)}")
    a("s_sub_u32 s30, s30, 1")
    a("s_cmp_lg_u32 s30, 0")
    a("s_cbranch_scc1 B_PASS")
    a.stamp(3)
    a("v_add_u32 v242, s29, v2")
    a("s_xor_b32 s33, s24, 1")
    a(f"s_mul_i32 s33, s33, {TW}")
    a("v_add_u32 v243, s33, v2")
    a("s_and_b32 s33, s24, 2")
    a(f"s_mul_i32 s48, s33, {TW}")
    a("s_add_u32 s48, s48, 4096")
    a("s_mul_i32 s33, s27, 4160")
    a("s_add_u32 s49, s33, s48")
    a("v_sub_u32 v6, 63, v1")
    a("v_lshlrev_b32 v6, 4, v6")
    a("v_add_u32 v6, s49, v6")
    a("v_and_b32 v7, 1, v1")
    a("v_cmp_eq_u32 vcc, 1, v7")
    for q in range(4):
        a(f"ds_write_b128 v242, {vr(KACC+4*q,4)} offset:{1024*q}")
    a("v_lshrrev_b32 v4, 4, v1")
    a("v_and_b32 v5, 15, v1")
    a("v_add_u32 v7, 1, v5")
    a("v_lshrrev_b32 v7, 1, v7")
    a("v_lshlrev_b32 v8, 2, v4")
    a("v_sub_u32 v8, v8, v7")
    a("v_and_b32 v7, 1, v5")
    a("v_mul_u32_u24 v7, 1040, v7")
    a("v_sub_u32 v8, v8, v7")
    a(f"v_add_u32 v8, {1016 + 1040 - 48 - 128}, v8")
    a("v_lshlrev_b32 v8, 2, v8")
    a("s_lshl_b32 s33, s27, 8")
    a("s_sub_u32 s33, s48, s33")
    a("v_add_u32 v8, s33, v8")
    for i in range(1, 4):
        a(f"v_subrev_u32 v{8+i}, {1024*i}, v8")
    a("s_cmp_lg_u32 s24, 0")
    a("s_cbranch_scc1 B_NOPOLL")
    a("s_waitcnt vmcnt(0)")
    cnt_wait(a, 250, "s42", 32, 6)
    a.label("B_NOPOLL")
    a("s_waitcnt lgkmcnt(0)")
    a("s_barrier")
    a.stamp(7)
    a("s_setprio 3")
    for i in range(2):
        a(f"buffer_load_dwordx4 {vr(UL+4*i,4)}, v3, s[20:23], s{43+i} offen{SC}")
    a(f"s_setprio {PC}")
    for q in range(4):
        a(f"ds_read_b128 {vr(FR+4*q,4)}, v243 offset:{1024*q}")
    a("s_lshr_b32 s33, s24, 1")
    a(f"s_mul_i32 s36, s33, {US}")
    a(f"s_add_u32 s36, s36, {UB + 512}")
    a("v_lshlrev_b32 v12, 5, v5")
    a("v_lshl_add_u32 v13, v4, 3, v12")
    a("v_lshl_add_u32 v12, v4, 4, v12")
    a("s_lshl_b32 s33, s27, 8")
    a("s_sub_u32 s33, s36, s33")
    a(f"s_sub_u32 s33, s33, {32 + 192}")
    a("v_add_u32 v12, s33, v12")
    a("s_lshl_b32 s33, s27, 11")
    a("s_add_u32 s33, s33, s36")
    a("v_add_u32 v13, s33, v13")
    a("s_lshl_b32 s40, s26, 1")
    a("s_add_u32 s40, s40, s27")
    a("s_lshl_b32 s41, s40, 11")
    a(f"s_add_u32 s41, s41, {BT}")
    a("s_lshr_b32 s40, s26, 5")
    a("s_lshl_b32 s40, s40, 7")
    a(f"s_add_u32 s40, s40, {F_B}")
    a("s_waitcnt lgkmcnt(0)")
    for r in range(0, 16, 2):
        a(f"v_pk_add_f32 {vr(KACC+r,2)}, {vr(KACC+r,2)}, {vr(FR+r,2)}")
    K_ = KACC; W_ = FR + 16
    a(f"v_cndmask_b32 v{CT}, v{K_+12}, v{K_+13}, vcc")
    a(f"v_cndmask_b32 v{CT+1}, v{K_+14}, v{K_+15}, vcc")
    for i in range(4):
        a(f"v_mov_b32 v{W_+16+i}, 0")
    def pk(d, lo_, hi_): a(f"v_cvt_pk_bf16_f32 v{d}, v{lo_}, v{hi_}")
    a("s_cmp_eq_u32 s27, 1")
    a("s_cbranch_scc1 B_ODD")
    A_, B_, C_ = K_ + 9, K_ + 10, K_ + 11
    for i in range(4): pk(W_ + i, K_ + 7 - 2 * i, K_ + 6 - 2 * i)
    for i, (x, y) in enumerate(((C_, C_), (B_, B_), (B_, A_), (A_, A_))): pk(W_ + 4 + i, x, y)
    for sl in range(2):
        A2, C2, M2 = K_ + 12 + 2 * sl, K_ + 13 + 2 * sl, CT + sl
        for i, (x, y) in enumerate(((C2, C2), (C2, M2), (A2, A2), (A2, A2))): pk(W_ + 8 + 4 * sl + i, x, y)
    a("s_branch B_IMG")
    a.label("B_ODD")
    for i in range(4): pk(W_ + i, K_ + 8 - 2 * i, K_ + 7 - 2 * i)
    for i, (x, y) in enumerate(((C_, C_), (C_, B_), (B_, B_), (A_, A_))): pk(W_ + 4 + i, x, y)
    for sl in range(2):
        A2, C2, M2 = K_ + 12 + 2 * sl, K_ + 13 + 2 * sl, CT + sl
        for i, (x, y) in enumerate(((C2, C2), (C2, C2), (M2, A2), (A2, A2))): pk(W_ + 8 + 4 * sl + i, x, y)
    a("s_mov_b64 exec, 1")
    pk(W_ + 16, K_, VZ)
    a("s_mov_b64 exec, -1")
    a.label("B_IMG")
    for sl in range(4):
        a(f"ds_write_b128 v6, {vr(W_+4*sl,4)} offset:{(3-sl)*1024}")
    a("v_add_u32 v7, s49, v2")
    a("s_mov_b64 exec, 3")
    a(f"ds_write_b128 v7, {vr(W_+16,4)} offset:4096")
    a("s_mov_b64 exec, -1")
    a("s_waitcnt vmcnt(0)")
    for i in range(2):
        a(f"ds_write_b128 v241, {vr(UL+4*i,4)} offset:{512*i}")
    a("s_waitcnt lgkmcnt(0)")
    a("s_barrier")
    a.stamp(4)
    FB, CAC = 16, 144
    a.nds = 0
    tg = {}
    def loadstep(stp):
        b = FB + 64 * (stp & 1)
        for i in range(8):
            o = 128 * (1 - (i & 1)) + 16 * (3 - stp)
            a.ds(f"ds_read2_b32 {vr(b+4*i,2)}, v{8+(i>>1)} offset0:{o} offset1:{o+1}")
            a.ds(f"ds_read2_b32 {vr(b+4*i+2,2)}, v{8+(i>>1)} offset0:{o+2} offset1:{o+3}")
            tg[(stp, i)] = a.ds(f"ds_read_b128 {vr(b+32+4*i,4)}, v12 offset:{512*i+64*(3-stp)}")
    loadstep(0)
    for stp in range(4):
        b = FB + 64 * (stp & 1)
        order = sorted([(i, tp) for i in range(8) for tp in range(8 - i)], key=lambda x: (max(x), x[0] + x[1]))
        nxt = []
        if stp < 3:
            b2 = FB + 64 * ((stp + 1) & 1)
            for i in range(8):
                o = 128 * (1 - (i & 1)) + 16 * (3 - stp - 1)
                nxt.append((None, f"ds_read2_b32 {vr(b2+4*i,2)}, v{8+(i>>1)} offset0:{o} offset1:{o+1}"))
                nxt.append((None, f"ds_read2_b32 {vr(b2+4*i+2,2)}, v{8+(i>>1)} offset0:{o+2} offset1:{o+3}"))
                nxt.append(((stp + 1, i), f"ds_read_b128 {vr(b2+32+4*i,4)}, v12 offset:{512*i+64*(3-stp-1)}"))
        waited = -1
        seen = set()
        for k, (i, tp) in enumerate(order):
            if max(i, tp) > waited:
                waited = max(i, tp)
                a.wait_ds(tg[(stp, waited)])
            t = i + tp
            c = vr(CAC + 4 * t, 4)
            if stp == 0 and t not in seen:
                c = "0"; seen.add(t)
            a(f"{MF16} {vr(CAC+4*t,4)}, {vr(b+4*i,4)}, {vr(b+32+4*tp,4)}, {c}")
            if k >= 8 and nxt:
                key, ins = nxt.pop(0)
                r = a.ds(ins)
                if key: tg[key] = r
        assert not nxt
    a.stamp(5)
    RR = 16
    for tl in range(4):
        a(f"ds_read_b64 {vr(80+2*tl,2)}, v13 offset:{512*tl}")
    a("s_cmp_eq_u32 s27, 1")
    a.nop(3)
    a("s_cbranch_scc1 B_R1")
    for par in range(2):
        if par: a.label("B_R1")
        for q in range(4):
            a(f"ds_write_b128 v242, {vr(CAC+16*(1-par)+4*q,4)} offset:{1024*q}")
        a("s_waitcnt lgkmcnt(0)")
        a("s_barrier")
        for q in range(4):
            a(f"ds_read_b128 {vr(RR+4*q,4)}, v243 offset:{1024*q}")
        a("s_waitcnt lgkmcnt(0)")
        for r in range(0, 16, 2):
            a(f"v_pk_add_f32 {vr(RR+r,2)}, {vr(RR+r,2)}, {vr(CAC+16*par+r,2)}")
        if not par: a("s_branch B_R2")
    a.label("B_R2")
    for t in range(4):
        for i in range(2):
            a(f"v_lshlrev_b32 v{88+2*i}, 16, v{80+2*t+i}")
            a(f"v_and_b32 v{88+2*i+1}, 0xffff0000, v{80+2*t+i}")
        for r in range(4):
            a(f"v_fmac_f32 v{RR+4*t+r}, s38, v{88+r}")
        for i in range(2):
            a(f"v_cvt_pk_bf16_f32 v{80+2*t+i}, v{RR+4*t+2*i}, v{RR+4*t+2*i+1}")
    a("s_nop 1")
    for p in range(2):
        for i in range(2):
            a(f"v_permlane16_swap_b32 v{80+4*p+i}, v{80+4*p+2+i}")
    for p in range(2):
        a(f"buffer_store_dwordx4 {vr(80+4*p,4)}, v2, s[20:23], s41 offen offset:{1024*p}{SC}")
    a("s_waitcnt vmcnt(0)")
    cnt_add(a, 4, "s40")
    fin(a, 6)
    a("s_endpgm")

def gen_C(a):
    a.label("L_C")
    a("s_setprio 3")
    R, U, GU, GW = 16, 80, 144, 160
    a("s_sub_u32 s25, s2, 224")
    a("s_lshl_b32 s26, s31, 2")
    a("s_sub_u32 s33, s32, 28")
    a("s_add_u32 s26, s26, s33")
    a("s_lshl_b32 s26, s26, 2")
    a("s_add_u32 s26, s26, s24")
    a("s_mul_i32 s36, s26, 14336")
    for i in range(1, 4):
        a(f"s_add_u32 s{36+i}, s36, {3584*i}")
    a("s_add_u32 s45, s25, s24")
    a("s_waitcnt lgkmcnt(0)")
    a.srd(20, P_WS, WS_SIZE)
    a.srd(12, P_X, X_BYTES)
    for r in range(16):
        a(f"buffer_load_dwordx4 {vr(R+4*r,4)}, v2, s[12:15], s{36+(r>>2)} offen offset:{896*(r&3)}")
    a.srd(16, P_GW, 896)
    a(f"buffer_load_dwordx4 {vr(GW,4)}, v2, s[16:19], 0 offen")
    a("v_mov_b32 v4, 1")
    a(f"s_mul_i32 s36, s26, {2*XTS}")
    a(f"s_add_u32 s36, s36, {XT}")
    a("s_add_u32 s37, s36, 3584")
    a(f"s_add_u32 s38, s36, {XTS}")
    a("s_add_u32 s39, s38, 3584")
    a("s_mov_b32 s46, 0x05040100")
    a("s_mov_b32 s47, 0x07060302")
    a("s_mov_b32 exec_hi, 0xffffff")
    for hb in range(2):
        a(f"s_waitcnt vmcnt({9 if hb == 0 else 8})")
        for cc in range(8):
            i, e = cc >> 1, cc & 1
            u = U + 32 * hb + 4 * cc
            for q in range(4):
                a(f"v_perm_b32 v{u+q}, v{R+32*hb+4*(2*q+1)+i}, v{R+32*hb+4*(2*q)+i}, s{46+e}")
            a(f"buffer_store_dwordx4 {vr(u,4)}, v2, s[20:23], s{36+2*hb+(cc>>2)} offen offset:{896*(cc&3)}{SC}")
    a.stamp(1)
    a("s_mov_b64 exec, -1")
    nonce_issue(a, 250)
    a("v_lshlrev_b32 v5, 7, v1")
    a(f"s_mov_b32 s41, {F_XT}")
    for r in range(16):
        a(f"v_mov_b32 v{GU+r}, 0")
    a("s_mov_b32 exec_hi, 0xffffff")
    for i in range(4):
        for r in range(16):
            a(f"v_dot2c_f32_bf16 v{GU+r}, v{R+4*r+i}, v{GW+i}")
    a("s_mov_b64 exec, -1")
    a("s_waitcnt vmcnt(0)")
    nonce_take(a, 250)
    a("s_barrier")
    a("s_cmp_lg_u32 s24, 0")
    a("s_cbranch_scc1 C_NOADD")
    a("s_mov_b32 exec_hi, 0")
    a("buffer_atomic_add v4, v5, s[20:23], s41 offen sc1")
    a("s_mov_b64 exec, -1")
    a.label("C_NOADD")
    a.stamp(2)
    a("s_setprio 1")
    a("s_min_u32 s45, s25, 15")
    a("s_mul_i32 s33, s45, 25088")
    a("s_mul_i32 s34, s24, 7168")
    a("s_add_u32 s33, s33, s34")
    a("v_add_u32 v3, 4096, v2")
    a.srd(12, P_WO, 448 * 896)
    a("s_mov_b32 m0, s34")
    a("s_nop 0")
    for i in range(4):
        a(f"buffer_load_dwordx4 v2, s[12:15], s33 offen offset:{1024*i} lds")
    a("s_add_u32 m0, s34, 4096")
    a("s_nop 0")
    for i in range(3):
        a(f"buffer_load_dwordx4 v3, s[12:15], s33 offen offset:{1024*i} lds")
    for sh in ("row_shr:1", "row_shr:2", "row_shr:4", "row_shr:8"):
        for r in range(16):
            a(f"v_add_f32_dpp v{GU+r}, v{GU+r}, v{GU+r} {sh} row_mask:0xf bank_mask:0xf bound_ctrl:0")
    for r in range(16):
        a(f"v_add_f32_dpp v{GU+r}, v{GU+r}, v{GU+r} row_bcast:15 row_mask:0xa bank_mask:0xf")
    for r in range(16):
        a(f"v_add_f32_dpp v{GU+r}, v{GU+r}, v{GU+r} row_bcast:31 row_mask:0xc bank_mask:0xf")
    for op in (f"v_mul_f32 vX, {hex(f2u(-LOG2E))}, vX", "v_exp_f32 vX, vX", "v_add_f32 vX, 1.0, vX", "v_rcp_f32 vX, vX"):
        for r in range(16):
            a(op.replace("vX", f"v{GU+r}"))
    a("s_lshl_b32 s35, s26, 6")
    a(f"s_add_u32 s35, s35, {GO}")
    a("s_lshr_b32 s37, s26, 1")
    a("s_lshl_b32 s37, s37, 7")
    a(f"s_add_u32 s37, s37, {F_G}")
    a("s_mov_b32 exec_lo, 0")
    a("s_mov_b32 exec_hi, 0x80000000")
    for i in range(4):
        a(f"buffer_store_dwordx4 {vr(GU+4*i,4)}, v{VZ}, s[20:23], s35 offen offset:{16*i}{SC}")
    a("s_mov_b64 exec, -1")
    a("v_lshrrev_b32 v15, 5, v1")
    a("v_bfe_u32 v13, v1, 2, 2")
    a("v_lshl_add_u32 v13, v15, 2, v13")
    a("v_mul_u32_u24 v13, 896, v13")
    a("v_bfe_u32 v14, v1, 4, 1")
    a("v_lshl_add_u32 v13, v14, 5, v13")
    a("v_and_b32 v14, 3, v1")
    a("v_lshl_add_u32 v12, v14, 3, v13")
    a("s_lshr_b32 s49, s24, 1")
    a("s_mul_i32 s36, s49, 14336")
    a("s_mul_i32 s38, s27, 448")
    a("s_add_u32 s36, s36, s38")
    a("v_add_u32 v12, s36, v12")
    a(f"s_mul_i32 s38, s27, {7*32768}")
    a("s_lshl_b32 s39, s45, 1")
    a("s_add_u32 s39, s39, s49")
    a("s_lshl_b32 s39, s39, 10")
    a("s_add_u32 s38, s38, s39")
    a(f"s_add_u32 s38, s38, {WOF}")
    a("s_lshr_b32 s40, s25, 2")
    a("s_lshl_b32 s40, s40, 7")
    a(f"s_add_u32 s40, s40, {F_WO}")
    a("s_waitcnt vmcnt(0)")
    cnt_add(a, 4, "s37")
    a("s_cmp_ge_u32 s25, 16")
    a("s_cbranch_scc1 C_END")
    a("s_barrier")
    for i in range(7):
        for hr in range(2):
            a(f"ds_read_b64_tr_b16 {vr(16+4*i+2*hr,2)}, v12 offset:{64*i+8*hr*896}")
    a("s_waitcnt lgkmcnt(0)")
    a("s_cmp_eq_u32 s49, 0")
    a("s_cbranch_scc1 C_WO2")
    a("s_mov_b32 exec_lo, 0")
    for i in range(7):
        a(f"v_mov_b32 v{16+4*i+2}, 0")
        a(f"v_mov_b32 v{16+4*i+3}, 0")
    a("s_mov_b32 exec_lo, -1")
    a.label("C_WO2")
    for i in range(7):
        a(f"buffer_store_dwordx4 {vr(16+4*i,4)}, v2, s[20:23], s38 offen{SC}")
        if i < 6: a("s_add_u32 s38, s38, 32768")
    a("s_waitcnt vmcnt(0)")
    cnt_add(a, 4, "s40")
    a.label("C_END")
    fin(a, 3)

def gen():
    a = Asm()
    gen_entry(a)
    gen_A(a)
    gen_B(a)
    gen_C(a)
    a.label("L_END")
    a("s_endpgm")
    return a.text()

HEADER = open("cdna_kernels/" + NAME + ".s.ref").read().split("; Override launch geometry")[0]

if __name__ == "__main__":
    name = NAME + "_kernel"
    out = HEADER + "; @launch grid=(512,1,1) block=(256,1,1) lds=81920\n"
    out += '.amdgcn_target "amdgcn-amd-amdhsa--gfx950"\n' + kernel_header(name) + gen() + kernel_desc(name, 256)
    dst = sys.argv[1] if len(sys.argv) > 1 else "cdna_kernels/" + NAME + ".s"
    open(dst, "w").write(out)
```

```python
import sys, math, os
import numpy as np
from dsl import *

NAME = "gated_mix__mha_block__ssm_conv_s4__prompt"
KTS = 28672; VTS = 32256; XTS = 7296
KF = 0x000000
VF = 0x200000
XT = 0x400000
GO = 0x5D0000
WOF = 0x5E0000
OF = 0x660000
BT = 0x860000
FL = 0xA40000
F_KV = FL
F_O = FL + 64 * 128
F_XT = FL + 192 * 128
F_G = FL + 256 * 128
F_B = FL + 320 * 128
F_WO = FL + 336 * 128
WS_SIZE = 0xA50000
X_BYTES = 2048 * 896
W_BYTES = 448 * 2688
LOG2E = 1.4426950408889634
QSCALE = LOG2E * 28 ** -0.5
MF32 = "v_mfma_f32_32x32x16_bf16"
MF16 = "v_mfma_f32_16x16x32_bf16"
SC = " sc1"
NON = 60
POLLMAX = 40000
EXP = os.environ.get("EXP", "")
DEPTH = int(os.environ.get("DEPTH", "3"))
PA = int(os.environ.get("PA", "1")); PB = int(os.environ.get("PB", "2")); PC = int(os.environ.get("PC", "0"))
P_X, P_W, P_WO, P_PAR, P_LDT, P_DSK, P_GW, P_OUT, P_DBG, P_WS = 64, 66, 68, 72, 84, 86, 88, 90, 92, 94
VZ = 255

uid = [0]
def fin(a, idx):
    if not os.environ.get("STAMP"): return
    a("s_waitcnt vmcnt(0)")
    a.stamp(idx)
    dw = os.environ.get("DBGWG")
    if dw:
        uid[0] += 1; u = uid[0]
        a("s_lshl_b32 s96, s2, 2")
        a("s_add_u32 s96, s96, s24")
        a(f"s_cmp_lg_u32 s96, {int(dw)*4}")
        a(f"s_cbranch_scc1 DG{u}")
        a("s_mov_b64 exec, -1")
        a("v_readlane_b32 s97, v254, 1")
        a("v_mbcnt_lo_u32_b32 v0, -1, 0")
        a("v_lshlrev_b32 v1, 1, v0")
        a("v_subrev_u32 v254, s97, v254")
        a("v_and_b32 v1, -4, v1")
        a("s_mov_b32 exec_lo, 0xaaaaaaa8")
        a("s_mov_b32 exec_hi, 0")
        a(f"global_store_dword v1, v254, {sr(P_DBG,2)}")
        a.label(f"DG{u}")
        return
    a.stamp_flush(P_WS)

def cmul(a, d, x, y, phase):
    if phase == 0:
        a(f"v_pk_mul_f32 {vr(d,2)}, {vr(x,2)}, {vr(y,2)} op_sel_hi:[0,1]")
    else:
        a(f"v_pk_fma_f32 {vr(d,2)}, {vr(x,2)}, {vr(y,2)}, {vr(d,2)} op_sel:[1,1,0] op_sel_hi:[1,0,1] neg_lo:[1,0,0]")

def nonce_issue(a, v):
    uid[0] += 1; u = uid[0]
    a("s_cmp_lg_u32 s24, 0")
    a(f"s_cbranch_scc1 NI{u}")
    a(f"global_load_dword v{v}, v{VZ}, {sr(P_DBG,2)}{os.environ.get('NSC', ' sc1')}")
    a.label(f"NI{u}")

def nonce_take(a, v):
    uid[0] += 1; u = uid[0]
    a("s_cmp_lg_u32 s24, 0")
    a(f"s_cbranch_scc1 ND{u}")
    a(f"s_mov_b32 s62, {POLLMAX}")
    a.label(f"NT{u}")
    a(f"v_readfirstlane_b32 s{NON}, v{v}")
    a("s_nop 1")
    a(f"s_cmp_lg_u32 s{NON}, 0")
    a(f"s_cbranch_scc1 ND{u}")
    a("s_sub_u32 s62, s62, 1")
    a(f"s_cbranch_scc1 ND{u}")
    a("s_sleep 8")
    a(f"global_load_dword v{v}, v{VZ}, {sr(P_DBG,2)} sc1")
    a("s_waitcnt vmcnt(0)")
    a(f"s_branch NT{u}")
    a.label(f"ND{u}")

def cnt_load(a, vd, soff):
    a(f"v_mov_b32 v{vd}, 0")
    a("s_mov_b64 exec, 1")
    t = a.vm(f"buffer_atomic_add v{vd}, v{VZ}, s[20:23], {soff} offen sc0 sc1")
    a("s_mov_b64 exec, -1")
    return t

def cnt_wait(a, vd, soff, target, sleep=1):
    uid[0] += 1; u = uid[0]
    a(f"s_mov_b32 s62, {POLLMAX}")
    a.label(f"FC{u}")
    a(f"v_readfirstlane_b32 s4, v{vd}")
    a("s_nop 1")
    a(f"s_cmp_eq_u32 s4, {target}")
    a(f"s_cbranch_scc1 FD{u}")
    a("s_sub_u32 s62, s62, 1")
    a(f"s_cbranch_scc1 FD{u}")
    a(f"s_sleep {sleep}")
    n0 = a.nvm
    cnt_load(a, vd, soff)
    a.nvm = n0
    a("s_waitcnt vmcnt(0)")
    a(f"s_branch FC{u}")
    a.label(f"FD{u}")

def cnt_add(a, vt, soff, va=None, mask="1"):
    a(f"v_mov_b32 v{vt}, 1")
    a(f"s_mov_b64 exec, {mask}")
    a.vm(f"buffer_atomic_add v{vt}, v{VZ if va is None else va}, s[20:23], {soff} offen sc1")
    a("s_mov_b64 exec, -1")

def late_load(a, vd, va):
    a("s_mov_b64 exec, 7")
    a(f"buffer_load_dword v{vd}, v{va}, s[20:23], 0 offen sc1")
    a("s_mov_b64 exec, -1")

def late_check(a, vd, va, vtgt):
    uid[0] += 1; u = uid[0]
    a(f"s_mov_b32 s62, {POLLMAX}")
    a.label(f"FC{u}")
    a(f"v_cmp_ne_u32 vcc, v{vd}, v{vtgt}")
    a("s_nop 1")
    a("s_and_b32 s4, vcc_lo, 7")
    a(f"s_cbranch_scc0 FD{u}")
    a("s_sub_u32 s62, s62, 1")
    a(f"s_cbranch_scc1 FD{u}")
    a("s_sleep 16")
    late_load(a, vd, va)
    a("s_waitcnt vmcnt(0)")
    a(f"s_branch FC{u}")
    a.label(f"FD{u}")

RAW = 244
XRW = 232

def gen_entry(a):
    a("s_cmp_ge_u32 s2, 512")
    a("s_cbranch_scc1 L_END")
    a.stamp(0)
    a("s_load_dwordx16 s[64:79], s[0:1], 0")
    a("s_load_dwordx16 s[80:95], s[0:1], 64")
    if "nopf" not in EXP:
        a(f"s_cmp_ge_u32 s2, {os.environ.get('PFN', '8')}")
        a("s_cbranch_scc1 E_NOPF")
        a("s_getpc_b64 s[4:5]")
        a.label("E_PC")
        a("v_lshlrev_b32 v4, 7, v0")
        a("v_min_u32 v4, L_END-E_PC, v4")
        a("v_mov_b32 v5, s5")
        a("v_add_co_u32 v4, vcc, s4, v4")
        a("s_nop 1")
        a("v_addc_co_u32 v5, vcc, 0, v5, vcc")
        a("global_load_dword v6, v[4:5], off")
        a.label("E_NOPF")
    a("v_lshrrev_b32 v13, 6, v0")
    a("v_and_b32 v1, 63, v0")
    a("v_lshlrev_b32 v2, 4, v1")
    a(f"v_mov_b32 v{VZ}, 0")
    a("v_readfirstlane_b32 s24, v13")
    a("s_and_b32 s31, s2, 7")
    a("s_bfe_u32 s32, s2, 0x50003")
    a("s_cmp_ge_u32 s2, 256")
    a("s_cbranch_scc1 L_A")
    a("s_and_b32 s27, s24, 1")
    a("s_cmp_ge_u32 s32, 28")
    a("s_cbranch_scc1 L_C")
    a("s_setprio 3")
    a("s_lshl_b32 s39, s32, 1")
    a("s_lshr_b32 s34, s24, 1")
    a("s_add_u32 s26, s39, s34")
    a("s_lshl_b32 s26, s26, 3")
    a("s_add_u32 s26, s26, s31")
    a("s_lshl_b32 s33, s26, 9")
    a("s_lshl_b32 s34, s27, 8")
    a("s_add_u32 s33, s33, s34")
    a("v_lshlrev_b32 v3, 2, v1")
    a("v_add_u32 v13, s33, v3")
    a("s_lshl_b32 s34, s26, 1")
    a("s_and_b32 s34, s34, -4")
    a("s_add_u32 s45, s2, s24")
    a("v_lshlrev_b32 v4, 7, v1")
    a(f"s_mov_b32 s33, {FL}")
    a("s_waitcnt lgkmcnt(0)")
    a.srd(20, P_WS, WS_SIZE)
    a("s_cmp_lg_u32 s45, 0")
    a("s_cbranch_scc1 E_NOINIT")
    for i in range(6):
        a(f"buffer_store_dword v{VZ}, v4, s[20:23], s33 offen sc1")
        if i < 5: a("s_addk_i32 s33, 8192")
    a.label("E_NOINIT")
    for i in range(6):
        a(f"global_load_dword v{RAW+i}, v13, {sr(P_PAR+2*i,2)}")
    a(f"s_load_dword s28, {sr(P_LDT,2)}, s34")
    a(f"s_load_dword s38, {sr(P_DSK,2)}, s34")
    a("s_cmp_lg_u32 s45, 0")
    a("s_cbranch_scc1 L_B")
    a("v_mov_b32 v4, 1")
    a("s_waitcnt vmcnt(6)")
    a("s_mov_b64 exec, 1")
    a(f"global_store_dword v{VZ}, v4, {sr(P_DBG,2)} sc1")
    a("s_mov_b64 exec, -1")
    a("s_branch L_B")

def gen_A(a):
    a.label("L_A")
    if "noA" in EXP: a("s_endpgm")
    a(f"s_setprio {PA}")
    a("s_lshr_b32 s33, s31, 1")
    a("s_lshl_b32 s33, s33, 2")
    a("s_and_b32 s34, s32, 3")
    a("s_add_u32 s25, s33, s34")
    a("s_and_b32 s27, s31, 1")
    a("s_lshr_b32 s54, s32, 2")
    a("s_lshl_b32 s33, s27, 3")
    a("s_add_u32 s26, s33, s54")
    XR, ACC, QACC, WF, NV, PK, T = 16, 128, 160, 176, 248, 224, 240
    XL = 32768
    a("s_lshl_b32 s33, s25, 2")
    a("s_add_u32 s35, s33, s24")
    a("s_mul_i32 s33, s35, 28672")
    a("v_lshrrev_b32 v13, 3, v1")
    a("v_mul_u32_u24 v12, 896, v13")
    a("v_and_b32 v14, 7, v1")
    a("v_lshrrev_b32 v15, 4, v1")
    a("v_xor_b32 v15, v15, v14")
    a("v_lshl_add_u32 v3, v15, 4, v12")
    a("v_add_u32 v3, s33, v3")
    a("v_xor_b32 v246, 64, v3")
    a(f"v_add_u32 v244, {6144}, v246")
    a(f"v_add_u32 v245, {6144*2}, v3")
    a(f"v_add_u32 v246, {6144*3}, v246")
    a("s_mul_i32 s40, s24, 12288")
    a(f"s_add_u32 s40, s40, {XL}")
    a("s_lshl_b32 s33, s34, 1")
    a("s_add_u32 s28, s33, s54")
    a("s_sub_u32 s33, s28, 7")
    a("s_cmp_ge_u32 s28, 7")
    a("s_cselect_b32 s28, s33, s28")
    if "norot" in EXP: a("s_mov_b32 s28, 0")
    a("s_mov_b32 s30, s28")
    a("v_bfe_u32 v15, v1, 4, 1")
    a("v_lshlrev_b32 v15, 2, v15")
    a("v_xor_b32 v15, v15, v14")
    a("v_mul_u32_u24 v4, 2688, v13")
    a("v_lshl_add_u32 v4, v15, 4, v4")
    a("s_min_u32 s55, s54, 6")
    a("s_mul_i32 s33, s24, 43008")
    a("s_mul_i32 s34, s27, 896")
    a("s_add_u32 s33, s33, s34")
    a("s_lshl_b32 s34, s55, 7")
    a("s_add_u32 s33, s33, s34")
    a("s_add_u32 s33, s33, 896")
    a("v_add_u32 v4, s33, v4")
    a(f"v_add_u32 v5, {21504-1024}, v4")
    a("s_lshl_b32 s36, s24, 11")
    a("s_waitcnt lgkmcnt(0)")
    a.stamp(1)
    a.srd(12, P_X, X_BYTES)
    a.srd(16, P_W, W_BYTES)
    def adv(r):
        a(f"s_add_u32 s{r}, s{r}, 1")
        a(f"s_cmp_eq_u32 s{r}, 7")
        a(f"s_cselect_b32 s{r}, 0, s{r}")
    QD = int(os.environ.get("QD", "14"))
    L = []
    for s_ in range(7):
        L += [("x", s_, 0), ("x", s_, 1), ("x", s_, 2), ("x", s_, 3), ("w", s_, 0), ("w", s_, 1)]
    L += [("n", 0, 0)] + [("q", i, 0) for i in range(7)]
    tag = {}; tagxf = {}
    lp = [0]; lastbar = [-1]; xfree = [-1]; light = [False]
    def issue():
        if lp[0] >= len(L): return
        while light[0] and L[lp[0]][0] == "w": lp[0] += 1
        k, s_, n = L[lp[0]]
        need = {"x": s_ - 3, "q": 4 + (s_ >> 2)}.get(k, -1)
        if need > xfree[0]: return
        if k == "w" and s_ >= 4 and lastbar[0] < s_ - 2: return
        lp[0] += 1
        if k == "x":
            if n == 0:
                if s_: adv(28)
                a(f"s_add_u32 m0, s40, {(s_%3)*4096}")
                a("s_lshl_b32 s29, s28, 7")
                a("s_mul_i32 s37, s28, 172032")
            tag[(k, s_, n)] = a.vm(f"buffer_load_dwordx4 v{3 if n == 0 else 243+n}, s[12:15], s29 offen offset:{1024*n} lds")
        elif k == "w":
            if n == 0:
                a(f"s_add_u32 m0, s36, {(s_%4)*8192}")
                a("s_nop 0")
            tag[(k, s_, n)] = a.vm(f"buffer_load_dwordx4 v{4+n}, s[16:19], s37 offen offset:{1024*n} lds")
        elif k == "n":
            nonce_issue(a, NV)
        else:
            a(f"s_add_u32 m0, s40, {4096 + 1024*s_}")
            a("s_mul_i32 s39, s30, 172032")
            a.vm(f"buffer_load_dwordx4 v14, s[16:19], s39 offen lds")
            if s_ < 6: adv(30)
    LSL = int(os.environ.get("LSL", "0"))
    if LSL:
        a("s_cmp_lg_u32 s54, 7")
        a("s_cbranch_scc1 A_GO")
        a(f"s_sleep {LSL}")
        a.label("A_GO")
    for _ in range(QD): issue()
    if "stopA" in EXP: a.stamp(7)
    a.srd(20, P_WS, WS_SIZE)
    if "Aload" in EXP:
        a("s_waitcnt vmcnt(0)"); a("s_endpgm")
    a("v_and_b32 v13, 31, v1")
    a("v_bfe_u32 v14, v1, 1, 3")
    a("v_lshrrev_b32 v15, 5, v1")
    a("v_xor_b32 v14, v14, v15")
    a("v_lshlrev_b32 v13, 7, v13")
    a("v_lshl_add_u32 v8, v14, 4, v13")
    a("v_add_u32 v8, s40, v8")
    for ks in range(1, 4):
        a(f"v_xor_b32 v{8+ks}, {32*ks}, v8")
    a(f"v_bfe_u32 v{T}, v1, 2, 2")
    a(f"v_lshl_add_u32 v{T+1}, v15, 3, v{T}")
    a(f"v_bfe_u32 v{T+2}, v1, 4, 1")
    a(f"v_and_b32 v{T+3}, 3, v1")
    a(f"v_lshl_add_u32 v{PK}, v{T+2}, 2, v{T+3}")
    a(f"v_and_b32 v{PK+1}, 1, v1")
    a(f"v_bfe_u32 v{PK+2}, v1, 1, 1")
    a(f"v_lshl_add_u32 v{PK+1}, v{PK+1}, 1, v{PK+2}")
    a(f"v_lshl_add_u32 v{PK+1}, v{T+2}, 2, v{PK+1}")
    a(f"v_bfe_u32 v{T+3}, v1, 3, 1")
    a(f"v_lshlrev_b32 v{T+3}, 6, v{T+3}")
    a(f"v_lshl_add_u32 v{T+3}, v{T+1}, 7, v{T+3}")
    a("s_cmp_eq_u32 s27, 1")
    a("s_cselect_b64 vcc, -1, 0")
    a(f"v_cndmask_b32 v12, v{PK+1}, v{PK}, vcc")
    a(f"v_lshl_add_u32 v12, v12, 3, v{T+3}")
    a("v_xor_b32 v13, 64, v12")
    a(f"v_add_u32 v{PK+2}, 2, v{PK+1}")
    a(f"v_sub_u32 v{PK+3}, 7, v{PK+1}")
    a(f"v_cmp_gt_u32 vcc, 6, v{PK+1}")
    a("s_bitcmp1_b32 s26, 0")
    a("s_cselect_b64 s[4:5], -1, 0")
    a(f"v_cndmask_b32 v{PK+2}, v{PK+3}, v{PK+2}, vcc")
    a(f"v_cndmask_b32 v{PK+2}, v{PK+1}, v{PK+2}, s[4:5]")
    a(f"v_lshlrev_b32 v15, 6, v{T+1}")
    a(f"v_lshl_add_u32 v15, v{PK+2}, 3, v15")
    a(f"v_add_u32 v15, {XL + 4096}, v15")
    a("v_lshrrev_b32 v14, 2, v1")
    a("v_mul_u32_u24 v14, 2688, v14")
    a(f"v_and_b32 v{T}, 3, v1")
    a(f"v_lshl_add_u32 v14, v{T}, 4, v14")
    a("s_mul_i32 s33, s26, 56")
    a("s_and_b32 s33, s33, -16")
    a(f"s_mul_i32 s34, s24, {16*2688}")
    a("s_add_u32 s33, s33, s34")
    a("v_add_u32 v14, s33, v14")
    a("s_mul_i32 s33, s54, 2341")
    a("s_lshr_b32 s33, s33, 10")
    a(f"v_add_u32 v{PK}, s33, v1")
    a(f"v_mul_u32_u24 v{PK+1}, 28, v{PK}")
    a(f"v_lshrrev_b32 v{PK+1}, 6, v{PK+1}")
    a(f"v_cmp_ge_u32 s[56:57], s54, v{PK+1}")
    a(f"v_lshlrev_b32 v243, 9, v{PK}")
    a("s_lshr_b32 s42, s25, 2")
    a("s_lshl_b32 s42, s42, 7")
    a(f"s_add_u32 s42, s42, {F_KV}")
    a("s_and_b64 s[56:57], s[56:57], 15")
    a("s_cmp_eq_u32 s54, 7")
    a("s_cbranch_scc1 A_LIGHT")
    a("s_cmp_eq_u32 s27, 1")
    a("s_cbranch_scc1 A_V")

    def pass1(vtype):
        tagtr = {}
        NB = 6; TD = 3
        NIS = int(os.environ.get("NIS", "2"))
        def trload(u):
            s, ks = u >> 2, u & 3
            for t in range(2):
                for hr in range(2):
                    off = (s % 4) * 8192 + (16 * ks + 4 * hr) * 128
                    tagtr[u] = a.ds(f"ds_read_b64_tr_b16 {vr(WF+(u%NB)*8+4*t+2*hr,2)}, v{12+t} offset:{off}")
        pend = None
        for u in range(-4, 28):
            if u >= 0:
                a.wait_ds(max(tagtr[u], tagxf[u >> 2]))
                for t in range(2):
                    wf = vr(WF + (u % NB) * 8 + 4 * t, 4); xf = vr(XR + 4 * u, 4)
                    c = "0" if u == 0 else vr(ACC + 16 * t, 16)
                    if vtype:
                        a(f"{MF32} {vr(ACC+16*t,16)}, {xf}, {wf}, {c}")
                    else:
                        a(f"{MF32} {vr(ACC+16*t,16)}, {wf}, {xf}, {c}")
            if (u + TD) % 4 == 0 and (u + TD) // 4 < 7:
                sb = (u + TD) // 4
                a.wait_vm(tag[("w", sb, 1)])
                a("s_barrier")
                lastbar[0] = sb
                if sb in (0, 6): a.stamp(2 + sb // 6)
            if pend is not None:
                a.wait_ds(tagxf[pend]); xfree[0] = pend; pend = None
            if 0 <= u + TD < 28:
                trload(u + TD)
            if u % 4 == 0 and u // 4 + 1 < 7:
                s = u // 4 + 1
                a.wait_vm(tag[("x", s, 3)])
                for ks in range(4):
                    tagxf[s] = a.ds(f"ds_read_b128 {vr(XR+16*s+4*ks,4)}, v{8+ks} offset:{(s%3)*4096}")
                pend = s
            for _ in range(NIS): issue()
        assert lp[0] == len(L), lp
    saved = (a.nvm, a.nds, lp[0])
    a("v_mov_b32 v247, v2")
    a(f"s_mul_i32 s38, s35, {KTS}")
    a("s_lshl_b32 s33, s55, 12")
    a("s_add_u32 s38, s38, s33")
    a("s_add_u32 s41, s38, 1024")
    a("s_add_u32 s43, s38, 2048")
    a("s_add_u32 s44, s38, 3072")
    pass1(False)
    a("s_branch A_ST")
    a.label("A_V")
    a.nvm, a.nds, lp[0] = saved; lastbar[0] = -1; xfree[0] = -1
    a("v_lshrrev_b32 v247, 5, v1")
    a(f"v_mul_u32_u24 v247, {8064-512}, v247")
    a("v_add_u32 v247, v247, v2")
    a(f"s_mul_i32 s38, s35, {VTS}")
    a("s_mul_i32 s33, s55, 1152")
    a("s_add_u32 s38, s38, s33")
    a(f"s_add_u32 s38, s38, {VF}")
    a("s_add_u32 s41, s38, 16128")
    a("s_add_u32 s43, s38, 512")
    a("s_add_u32 s44, s41, 512")
    a(f"v_lshrrev_b32 v{T}, 1, v1")
    a(f"v_mul_u32_u24 v{T}, 8064, v{T}")
    a(f"v_and_b32 v{T+1}, 1, v1")
    a(f"v_lshl_add_u32 v{T}, v{T+1}, 4, v{T}")
    a(f"v_subrev_u32 v{T+1}, 1, v{T+1}")
    for i in range(4):
        a(f"v_and_b32 v{PK+i}, 0x3f803f80, v{T+1}")
    a("s_mov_b64 exec, 0xff")
    a(f"buffer_store_dwordx4 {vr(PK,4)}, v{T}, s[20:23], s38 offen offset:1024{SC}")
    a("s_mov_b64 exec, -1")
    pass1(True)
    a.label("A_ST")
    a.nop(11)
    for t in range(2):
        for r in range(0, 16, 2):
            a(f"v_cvt_pk_bf16_f32 v{PK+8*t+r//2}, v{ACC+16*t+r}, v{ACC+16*t+r+1}")
        for f in range(2):
            a(f"buffer_store_dwordx4 {vr(PK+8*t+4*f,4)}, v247, s[20:23], s{(38,41,43,44)[2*t+f]} offen{SC}")
    a("s_waitcnt vmcnt(4)")
    a("s_branch A_P2")
    a.label("A_LIGHT")
    a.nvm, a.nds, lp[0] = saved; xfree[0] = -1; light[0] = True
    for _ in range(6): issue()
    for s_ in range(7):
        a.wait_vm(tag[("x", s_, 3)])
        for ks in range(4):
            a.ds(f"ds_read_b128 {vr(XR+16*s_+4*ks,4)}, v{8+ks} offset:{(s_%3)*4096}")
        a("s_waitcnt lgkmcnt(0)")
        xfree[0] = s_
        for _ in range(6): issue()
    assert lp[0] == len(L)
    a("s_waitcnt vmcnt(0)")
    a.label("A_P2")
    a.stamp(4)
    a("s_barrier")
    Q, O, S, P, KB, VB, NM, MX, T2 = 16, 48, 112, 144, 160, 192, 224, 228, 232
    VK0, VK1, VV0, VV1, C1, C2 = 10, 11, 12, 13, 252, 253
    class Rec:
        def __init__(self): self.ch = []
        def __call__(self, *ins): self.ch.append(list(ins))
    c = Rec()
    c("s_mul_i32 s33, s26, 28"); c("s_lshr_b32 s44, s33, 6"); c("s_add_u32 s34, s33, 27"); c("s_lshr_b32 s34, s34, 6")
    c("s_sub_u32 s34, s34, s44"); c("s_lshl_b32 s34, s34, 3"); c("s_add_u32 s58, s34, 8")
    c("v_lshrrev_b32 v4, 5, v1")
    c("s_lshl_b32 s34, s26, 9"); c("s_lshl_b32 s36, s24, 7"); c("s_add_u32 s34, s34, s36"); c(f"s_add_u32 s53, s34, {F_KV}")
    c(f"s_mov_b32 s46, {hex(f2u(QSCALE))}"); c("s_mov_b32 s47, s46")
    c("s_lshl_b32 s36, s24, 11"); c("v_add_u32 v6, s36, v2")
    for t in range(1, 4): c(f"v_xor_b32 v{6+t}, {2048*t}, v6")
    c("s_lshr_b32 s34, s26, 1"); c("s_mul_i32 s34, s34, 3584"); c("s_and_b32 s36, s26, 1"); c("s_lshl_b32 s37, s36, 11")
    c("s_add_u32 s34, s34, s37"); c(f"v_add_u32 v{VK0}, s34, v2"); c(f"v_add_u32 v{VK1}, 1024, v{VK0}")
    c(f"s_mul_i32 s37, s36, {2048-8}")
    c("s_mov_b32 exec_lo, 0", f"v_subrev_u32 v{VK1}, s37, v{VK1}", "s_mov_b32 exec_lo, -1")
    c("v_and_b32 v5, 31, v1"); c("v_add_u32 v3, s33, v5"); c("v_lshrrev_b32 v5, 6, v3"); c("v_lshlrev_b32 v5, 7, v5")
    c(f"v_lshl_add_u32 v{VV0}, v3, 4, v5")
    c("s_mul_i32 s34, s44, 1152"); c("s_add_u32 s34, s34, 1024"); c("s_add_u32 s37, s34, 16")
    c("s_mov_b32 exec_lo, 0xf0000000", "s_mov_b32 exec_hi, 0xf0000000", f"v_mov_b32 v{VV0}, s37", "s_mov_b64 exec, -1")
    c(f"v_writelane_b32 v{VV0}, s34, 28"); c(f"v_writelane_b32 v{VV0}, s34, 60")
    c("s_movk_i32 s34, 8064"); c(f"v_mad_u32_u24 v{VV0}, v4, s34, v{VV0}"); c(f"v_add_u32 v{VV1}, 16128, v{VV0}")
    c(f"s_mul_i32 s34, s24, {16*KTS}"); c(f"s_mul_i32 s37, s24, {16*VTS}"); c(f"s_add_u32 s37, s37, {VF}")
    for d, sz, off in ((12, 16 * KTS, "s34"), (16, 16 * VTS, "s37")):
        c(f"s_add_u32 s{d}, s{P_WS}, {off}", f"s_addc_u32 s{d+1}, s{P_WS+1}, 0")
        c(f"s_mov_b32 s{d+2}, {sz}"); c(f"s_mov_b32 s{d+3}, 0x00020000")
    c(f"v_mov_b32 v{C1}, 0x3f803f80"); c(f"v_mov_b32 v{C2}, 0x3f80")
    for r in range(8): c(f"v_mov_b32 v{VB+24+r}, 0")
    for t in range(4): c(f"v_mov_b32 v{NM+t}, 0")
    c("s_mov_b32 s41, 0")
    c("s_cmp_eq_u32 s54, 7", "s_cselect_b32 s59, 1, s24")
    tq = {}
    def trq(u):
        for hr in range(2):
            tq[u] = a.ds(f"ds_read_b64_tr_b16 {vr(WF+(u%8)*4+2*hr,2)}, v15 offset:{(u&3)*12288+(u>>2)*1024+256*hr}")
    for u in range(6): trq(u)
    nonce_take(a, NV)
    for u in range(28):
        if u + 6 < 28: trq(u + 6)
        a.wait_ds(tq[u])
        cc = "0" if u == 0 else vr(QACC, 16)
        a(f"{MF32} {vr(QACC,16)}, {vr(WF+(u%8)*4,4)}, {vr(XR+4*u,4)}, {cc}")
        n = 0
        while c.ch and n < 3:
            for ins in c.ch.pop(0): a(ins); n += 1
    assert not c.ch, len(c.ch)
    def zero_acc():
        for t in range(4):
            a(f"{MF32} {vr(O+16*t,16)}, {vr(VB+24,4)}, {vr(VB+24,4)}, 0")
    zero_acc()
    a("s_cmp_lg_u32 s59, 0")
    a("s_waitcnt vmcnt(0)")
    a("s_barrier")
    a("s_cbranch_scc1 A_NOPUB")
    cnt_add(a, NV, "s42", 243, "s[56:57]")
    a.label("A_NOPUB")
    a.stamp(5)
    if "stopA" in EXP:
        fin(a, 6); a("s_endpgm")
    a.nop(4)
    for r in range(0, 16, 2):
        a(f"v_pk_mul_f32 {vr(QACC+r,2)}, {vr(QACC+r,2)}, s[46:47]")
    for r in range(0, 16, 2):
        a(f"v_cvt_pk_bf16_f32 v{Q+r//2}, v{QACC+r}, v{QACC+r+1}")
    a("s_mov_b32 exec_lo, 0")
    a(f"v_mov_b32 v{Q+6}, 0")
    a(f"v_mov_b32 v{Q+7}, 0")
    a("s_mov_b32 exec_lo, -1")
    for f in range(2):
        a(f"ds_write_b128 v6, {vr(Q+4*f,4)} offset:{1024*f}")
    cnt_load(a, NV + 2, "s53")
    a("s_waitcnt lgkmcnt(0)")
    a("s_barrier")
    for t in range(1, 4):
        for f in range(2):
            a(f"ds_read_b128 {vr(Q+8*t+4*f,4)}, v{6+t} offset:{1024*f}")
    a("s_waitcnt vmcnt(0)")
    cnt_wait(a, NV + 2, "s53", "s58")
    a.stamp(6)
    def first_loads():
        a("s_mov_b32 s44, 0")
        a("s_mov_b32 s45, 0")
        for kt in range(4):
            for f in range(2):
                r = a.vm(f"buffer_load_dwordx4 {vr(KB+8*kt+4*f,4)}, v{VK0+f}, s[12:15], s44 offen{SC}")
            a(f"s_addk_i32 s44, {KTS}")
            if kt == 0: tag = r
            if kt < 3:
                for f in range(2):
                    a.vm(f"buffer_load_dwordx4 {vr(VB+8*kt+4*f,4)}, v{VV0+f}, s[16:19], s45 offen{SC}")
                a(f"s_addk_i32 s45, {VTS}")
        return tag
    def patch(kb):
        a(f"v_mov_b32_dpp v{kb+6}, v{C1} quad_perm:[0,1,2,3] row_mask:0xc bank_mask:0xf")
        a(f"v_mov_b32_dpp v{kb+7}, v{C2} quad_perm:[0,1,2,3] row_mask:0xc bank_mask:0xf")
    tagk0 = first_loads()
    a("s_mov_b32 s42, 0x07060302")
    a("s_min_u32 s33, s32, 27")
    a("s_and_b32 s34, s33, 3")
    a("s_lshl_b32 s47, s31, 2")
    a("s_add_u32 s47, s47, s34")
    a("s_lshr_b32 s48, s33, 2")
    a("s_lshr_b32 s49, s24, 1")
    a("s_lshl_b32 s33, s47, 1")
    a("s_add_u32 s49, s49, s33")
    a("s_and_b32 s50, s24, 1")
    a("s_lshl_b32 s33, s48, 1")
    a("s_add_u32 s50, s50, s33")
    a("v_bfe_u32 v5, v1, 2, 2")
    a("v_lshlrev_b32 v9, 7, v5")
    a("v_bfe_u32 v5, v1, 4, 1")
    a("v_lshl_add_u32 v9, v5, 6, v9")
    a("v_and_b32 v5, 3, v1")
    a("v_lshl_add_u32 v9, v5, 4, v9")
    a("v_lshl_add_u32 v9, v4, 9, v9")
    for t in range(1, 4):
        a(f"s_xor_b32 s33, s24, {t}")
        a("s_mul_i32 s33, s33, 12288")
        a(f"s_add_u32 s33, s33, {(t-1)*4096}")
        a(f"v_add_u32 v{3+t}, s33, v2")
    a("s_mul_i32 s33, s24, 12288")
    a("v_add_u32 v7, s33, v2")
    a("v_or_b32 v8, 512, v7")
    a("s_lshl_b32 s33, s35, 4")
    a("s_add_u32 s33, s33, s26")
    a("s_lshl_b32 s43, s33, 11")
    a(f"s_add_u32 s43, s43, {OF}")
    a("s_lshr_b32 s51, s35, 1")
    a("s_lshl_b32 s51, s51, 9")
    a("s_lshr_b32 s33, s26, 2")
    a("s_lshl_b32 s33, s33, 7")
    a("s_add_u32 s51, s51, s33")
    a(f"s_add_u32 s51, s51, {F_O}")
    a("s_lshl_b32 s33, s50, 7")
    a(f"s_add_u32 s33, s33, {F_B}")
    a("v_mov_b32 v14, s33")
    a("v_mov_b32 v15, 64")
    a("s_lshl_b32 s33, s49, 7")
    a(f"s_add_u32 s33, s33, {F_G}")
    a("v_writelane_b32 v14, s33, 1")
    a("v_writelane_b32 v15, 2, 1")
    a("s_lshl_b32 s33, s24, 7")
    a(f"s_add_u32 s33, s33, {F_WO}")
    a("v_writelane_b32 v14, s33, 2")
    a("v_writelane_b32 v15, 16, 2")
    a("s_waitcnt lgkmcnt(0)")
    a.wait_vm(tagk0)
    a.stamp(7)
    TT = [S, S + 16, T2, P]
    patch(KB)
    a("s_nop 0")
    for t in range(4):
        a(f"{MF32} {vr(TT[t],16)}, {vr(KB,4)}, {vr(Q+8*t,4)}, 0")
        a(f"{MF32} {vr(TT[t],16)}, {vr(KB+4,4)}, {vr(Q+8*t+4,4)}, {vr(TT[t],16)}")
    a.nop(8)
    for tp in (0, 2):
        for i in range(8):
            for t in (tp, tp + 1):
                if i == 0:
                    a(f"v_max3_f32 v{MX+t}, v{TT[t]}, v{TT[t]+1}, v{TT[t]+2}")
                elif i < 7:
                    a(f"v_max3_f32 v{MX+t}, v{MX+t}, v{TT[t]+2*i+1}, v{TT[t]+2*i+2}")
                else:
                    a(f"v_max_f32 v{MX+t}, v{MX+t}, v{TT[t]+15}")
    a.label("A_SETMAX")
    for t in range(4):
        a(f"v_mov_b32 v{T2+t}, v{MX+t}")
    for r in range(2):
        a(f"v_mov_b32 v{P+8+r}, 0")
    for t in range(4):
        a(f"v_permlane32_swap_b32 v{T2+t}, v{MX+t}")
    for t in range(4):
        a(f"v_max_f32 v{MX+t}, v{MX+t}, v{T2+t}")
    for t in range(4):
        a(f"v_sub_f32 v{NM+t}, v{NM+t}, v{MX+t}")
    for t in range(4):
        a(f"v_and_b32 v{T2+t}, 0xffff0000, v{NM+t}")
    for t in range(4):
        a(f"v_sub_f32 v{T2+t}, v{NM+t}, v{T2+t}")
    for t in range(4):
        a(f"v_and_b32 v{T2+4+t}, 0xffff0000, v{T2+t}")
    for t in range(4):
        a(f"v_sub_f32 v{T2+4+t}, v{T2+t}, v{T2+4+t}")
    a("s_mov_b32 exec_lo, 0")
    for t in range(4):
        a(f"v_perm_b32 v{Q+8*t+6}, v{T2+t}, v{NM+t}, s42")
        a(f"v_lshrrev_b32 v{Q+8*t+7}, 16, v{T2+4+t}")
    a("s_mov_b32 exec_lo, -1")
    a(f"{MF32} {vr(S,16)}, {vr(KB,4)}, {vr(Q,4)}, 0")
    a(f"{MF32} {vr(S,16)}, {vr(KB+4,4)}, {vr(Q+4,4)}, {vr(S,16)}")
    for r in range(2, 8):
        a(f"v_mov_b32 v{P+8+r}, 0")
    a("s_mov_b32 s46, 4")
    a("s_setprio 0")
    a.nop(3)
    a.label("A_LOOP")
    for n in range(16):
        kt, t = n >> 2, n & 3
        n1 = (n + 1) & 15; kt1, t1 = n1 >> 2, n1 & 3
        n0 = (n - 1) & 15; kt0, t0 = n0 >> 2, n0 & 3
        sc = S + 16 * (n & 1); sn = S + 16 * (n1 & 1)
        pc = P + 8 * (n & 1); pp = P + 8 * (n0 & 1)
        mf = [f"{MF32} {vr(sn,16)}, {vr(KB+8*kt1,4)}, {vr(Q+8*t1,4)}, 0",
              f"{MF32} {vr(sn,16)}, {vr(KB+8*kt1+4,4)}, {vr(Q+8*t1+4,4)}, {vr(sn,16)}",
              f"{MF32} {vr(O+16*t0,16)}, {vr(VB+8*kt0,4)}, {vr(pp,4)}, {vr(O+16*t0,16)}",
              f"{MF32} {vr(O+16*t0,16)}, {vr(VB+8*kt0+4,4)}, {vr(pp+4,4)}, {vr(O+16*t0,16)}"]
        for m in range(4):
            if (m == 0 and t == 3) or (m == 2 and t == 1):
                a("s_waitcnt vmcnt(12)")
            a(mf[m])
            if m == 0 and t == 3:
                patch(KB + 8 * kt1)
            for e in range(4):
                a(f"v_exp_f32 v{sc+4*m+e}, v{sc+4*m+e}")
                if m == 1 and t == 2 and e in (0, 1):
                    a(f"buffer_load_dwordx4 {vr(KB+8*kt+4*e,4)}, v{VK0+e}, s[12:15], s44 offen{SC}")
                if m == 1 and t == 2 and e == 2:
                    a(f"s_addk_i32 s44, {KTS}")
                if m == 3 and t == 0 and e in (0, 1):
                    a(f"buffer_load_dwordx4 {vr(VB+8*kt0+4*e,4)}, v{VV0+e}, s[16:19], s45 offen{SC}")
                if m == 3 and t == 0 and e == 2:
                    a(f"s_addk_i32 s45, {VTS}")
                if n == 0 and m == 3 and e == 3:
                    a("s_cmp_lg_u32 s46, 1")
                    a("s_cbranch_scc1 A_NOFL")
                    late_load(a, 248, 14)
                    a.label("A_NOFL")
                if n == 15 and m == 3 and e == 0:
                    a("s_sub_u32 s46, s46, 1")
                if n == 15 and m == 3 and e == 1:
                    a("s_cmp_lg_u32 s46, 0")
            for c in range(2):
                a(f"v_cvt_pk_bf16_f32 v{pc+2*m+c}, v{sc+4*m+2*c}, v{sc+4*m+2*c+1}")
    a("s_cbranch_scc1 A_LOOP")
    a.stamp(8)
    a("s_nop 0")
    a(f"{MF32} {vr(O+48,16)}, {vr(VB+24,4)}, {vr(P+8,4)}, {vr(O+48,16)}")
    a(f"{MF32} {vr(O+48,16)}, {vr(VB+28,4)}, {vr(P+12,4)}, {vr(O+48,16)}")
    a("v_mov_b32 v3, 0x5f800000")
    a("s_mov_b32 exec_lo, 0")
    for t in range(3):
        a(f"v_cmp_nlt_f32 {sr(4+2*t,2)}, v{O+16*t+12}, v3")
    for t in range(1, 3):
        a(f"v_mov_b32 v{O+16*t+13}, v{NM+t}")
    a("s_mov_b32 exec_lo, -1")
    for t in range(1, 3):
        for q in range(4):
            a(f"ds_write_b128 v{3+t}, {vr(O+16*t+4*q,4)} offset:{1024*q}")
    a("s_mov_b32 exec_lo, 0")
    a(f"v_cmp_nlt_f32 vcc, v{O+48+12}, v3")
    a(f"v_mov_b32 v{O+48+13}, v{NM+3}")
    a("s_mov_b32 exec_lo, -1")
    a("s_or_b32 s5, s5, s7")
    a("s_or_b32 s5, s5, s9")
    a("s_or_b32 s5, s5, vcc_hi")
    a("s_andn2_b32 s5, s5, s41")
    a("s_cbranch_scc1 A_FALLBACK")
    for q in range(4):
        a(f"ds_write_b128 v6, {vr(O+48+4*q,4)} offset:{1024*q}")
    a(f"v_mov_b32 v{T2}, v{O+12}")
    a(f"v_mov_b32 v{T2+1}, v{O+12}")
    a("v_add_u32 v10, 4096, v2")
    a("s_lshl_b32 s33, s24, 13")
    a(f"s_add_u32 s33, s33, {WOF}")
    a("s_lshl_b32 s36, s50, 15")
    a("s_add_u32 s36, s36, s33")
    a("s_xor_b32 s37, s50, 1")
    a("s_lshl_b32 s37, s37, 15")
    a("s_add_u32 s37, s37, s33")
    a("v_lshrrev_b32 v11, 5, v1")
    a("v_lshlrev_b32 v12, 6, v11")
    a("s_lshl_b32 s38, s49, 7")
    a(f"s_add_u32 s38, s38, {GO}")
    a("v_and_b32 v13, 31, v1")
    a("v_lshlrev_b32 v3, 12, v13")
    a("v_lshl_add_u32 v3, v11, 4, v3")
    a("s_lshl_b32 s39, s50, 17")
    a("s_lshr_b32 s34, s49, 4")
    a("s_lshl_b32 s34, s34, 10")
    a("s_add_u32 s39, s39, s34")
    a("s_and_b32 s34, s49, 15")
    a("s_lshl_b32 s34, s34, 5")
    a("s_add_u32 s39, s39, s34")
    a(f"s_add_u32 s39, s39, {BT}")
    a("s_waitcnt lgkmcnt(0)")
    a("s_barrier")
    LM = T2 + 2
    for s in range(3):
        a(f"ds_read_b64 {vr(LM+2*s,2)}, v8 offset:{4096*s+3072}")
    RB = O + 16
    for s in range(3):
        for q in range(4):
            a(f"ds_read_b128 {vr(RB+16*s+4*q,4)}, v7 offset:{4096*s+1024*q}")
    a(f"v_permlane32_swap_b32 v{T2}, v{T2+1}")
    a("s_waitcnt lgkmcnt(12)")
    a(f"v_min3_f32 v{MX}, v{NM}, v{LM+1}, v{LM+3}")
    a(f"v_min_f32 v{MX}, v{MX}, v{LM+5}")
    a(f"v_sub_f32 v{S}, v{MX}, v{NM}")
    for s in range(3):
        a(f"v_sub_f32 v{S+2+2*s}, v{MX}, v{LM+2*s+1}")
    for s in range(4):
        a(f"v_exp_f32 v{S+2*s}, v{S+2*s}")
    a(f"v_mul_f32 v{MX+1}, v{S}, v{T2+1}")
    for s in range(3):
        a(f"v_fmac_f32 v{MX+1}, v{S+2+2*s}, v{LM+2*s}")
    a(f"v_rcp_f32 v{MX+1}, v{MX+1}")
    a("s_nop 0")
    for s in range(4):
        a(f"v_mul_f32 v{S+2*s}, v{S+2*s}, v{MX+1}")
    for r in range(0, 16, 2):
        a(f"v_pk_mul_f32 {vr(O+r,2)}, {vr(O+r,2)}, {vr(S,2)} op_sel_hi:[1,0]")
    for s in range(3):
        a(f"s_waitcnt lgkmcnt({8-4*s})")
        for r in range(0, 16, 2):
            a(f"v_pk_fma_f32 {vr(O+r,2)}, {vr(RB+16*s+r,2)}, {vr(S+2+2*s,2)}, {vr(O+r,2)} op_sel_hi:[1,0,1]")
    for r in range(0, 16, 2):
        a(f"v_cvt_pk_bf16_f32 v{P+r//2}, v{O+r}, v{O+r+1}")
    a("s_mov_b32 exec_lo, 0")
    a(f"v_mov_b32 v{P+6}, 0")
    a(f"v_mov_b32 v{P+7}, 0")
    a("s_mov_b32 exec_lo, -1")
    a.nvm = 0
    for f in range(2):
        tagos = a.vm(f"buffer_store_dwordx4 {vr(P+4*f,4)}, v9, s[20:23], s43 offen offset:{1024*f}{SC}")
    a.stamp(9)
    a("s_barrier")
    late_check(a, 248, 14, 15)
    WB, GG, BB = KB, Q, Q + 16
    NPRE = int(os.environ.get("NPRE", "4"))
    def wo_load(i):
        for x in range(2):
            a.vm(f"buffer_load_dwordx4 {vr(WB+8*i+4*x,4)}, v{2 if i<4 else 10}, s[20:23], s{36+x} offen offset:{1024*(i&3)}{SC}")
    for i in range(NPRE): wo_load(i)
    a("s_lshl_b32 s52, s47, 9")
    a("s_lshl_b32 s33, s24, 7")
    a("s_add_u32 s52, s52, s33")
    a(f"s_add_u32 s52, s52, {F_O}")
    a.wait_vm(tagos)
    cnt_add(a, 252, "s51")
    a("s_cmp_ge_u32 s32, 28")
    a("s_cbranch_scc1 L_END")
    for i in range(NPRE, 8): wo_load(i)
    for i in range(4):
        a.vm(f"buffer_load_dwordx4 {vr(GG+4*i,4)}, v12, s[20:23], s38 offen offset:{16*i}{SC}")
    for i in range(2):
        a.vm(f"buffer_load_dwordx4 {vr(BB+4*i,4)}, v3, s[20:23], s39 offen offset:{512*i}{SC}")
    cnt_load(a, 250, "s52")
    a("s_lshl_b32 s33, s24, 13")
    a(f"s_add_u32 s33, s33, {OF}")
    a("s_lshl_b32 s36, s49, 15")
    a("s_add_u32 s36, s36, s33")
    a("s_xor_b32 s37, s49, 1")
    a("s_lshl_b32 s37, s37, 15")
    a("s_add_u32 s37, s37, s33")
    a.srd(12, P_OUT, X_BYTES)
    a("v_mul_u32_u24 v12, 14336, v11")
    a("v_lshl_add_u32 v12, v13, 1, v12")
    a("s_mul_i32 s44, s49, 28672")
    a("s_lshl_b32 s33, s50, 6")
    a("s_add_u32 s44, s44, s33")
    for i in range(1, 4):
        a(f"s_add_u32 s{44+i}, s44, {3584*i}")
    a("s_waitcnt vmcnt(0)")
    BU = 232
    for i in range(8):
        a(f"v_lshlrev_b32 v{BU+2*i}, 16, v{BB+i}")
        a(f"v_and_b32 v{BU+2*i+1}, 0xffff0000, v{BB+i}")
    cnt_wait(a, 250, "s52", 8)
    a.stamp(10)
    AF = O
    tags = []
    for i in range(8):
        for x in range(2):
            t = a.vm(f"buffer_load_dwordx4 {vr(AF+8*i+4*x,4)}, v{2 if i<4 else 10}, s[20:23], s{36+x} offen offset:{1024*(i&3)}{SC}")
        tags.append(t)
    AC = [BB, S, S + 16, P]
    for i in range(8):
        a.wait_vm(tags[i])
        for t in (3, 2, 1, 0):
            sa, sb = t >> 1, t & 1
            c = "0" if i == 0 else vr(AC[t], 16)
            a(f"{MF32} {vr(AC[t],16)}, {vr(AF+8*i+4*sa,4)}, {vr(WB+8*i+4*sb,4)}, {c}")
    a.nop(9)
    a.stamp(11)
    for t in (3, 2, 1):
        for q in range(4):
            a(f"ds_write_b128 v{3+t}, {vr(AC[t]+4*q,4)} offset:{1024*q}")
    for r in range(0, 16, 2):
        a(f"v_pk_add_f32 {vr(AC[0]+r,2)}, {vr(AC[0]+r,2)}, {vr(BU+r,2)} neg_lo:[0,1] neg_hi:[0,1]")
    a("s_waitcnt lgkmcnt(0)")
    a("s_barrier")
    for s in range(3):
        for q in range(4):
            a(f"ds_read_b128 {vr(AF+16*s+4*q,4)}, v7 offset:{4096*s+1024*q}")
    for s in range(3):
        a(f"s_waitcnt lgkmcnt({8-4*s})")
        for r in range(0, 16, 2):
            a(f"v_pk_add_f32 {vr(AC[0]+r,2)}, {vr(AC[0]+r,2)}, {vr(AF+16*s+r,2)}")
    for r in range(0, 16, 2):
        a(f"v_pk_fma_f32 {vr(AC[0]+r,2)}, {vr(AC[0]+r,2)}, {vr(GG+r,2)}, {vr(BU+r,2)}")
    for r in range(0, 16, 2):
        a(f"v_cvt_pk_bf16_f32 v{AF+r//2}, v{AC[0]+r}, v{AC[0]+r+1}")
    for r in range(16):
        op = "buffer_store_short_d16_hi" if r & 1 else "buffer_store_short"
        a(f"{op} v{AF+r//2}, v12, s[12:15], s{44+(r>>2)} offen offset:{896*(r&3)}")
    fin(a, 12)
    a("s_endpgm")
    a.label("A_FALLBACK")
    a("s_mov_b32 s41, -1")
    for t in range(4):
        a(f"v_mov_b32 v{MX+t}, 0xff800000")
    a("s_mov_b32 s44, 0")
    a("s_waitcnt vmcnt(0) lgkmcnt(0)")
    a.label("A_FBLOOP")
    for f in range(2):
        a(f"buffer_load_dwordx4 {vr(KB+4*f,4)}, v{VK0+f}, s[12:15], s44 offen{SC}")
    a("s_waitcnt vmcnt(0)")
    patch(KB)
    a("s_nop 1")
    for t in range(4):
        a(f"{MF32} {vr(O+16*t,16)}, {vr(KB,4)}, {vr(Q+8*t,4)}, 0")
        a(f"{MF32} {vr(O+16*t,16)}, {vr(KB+4,4)}, {vr(Q+8*t+4,4)}, {vr(O+16*t,16)}")
    a.nop(16)
    for i in range(8):
        for t in range(4):
            a(f"v_max3_f32 v{MX+t}, v{MX+t}, v{O+16*t+2*i}, v{O+16*t+2*i+1}")
    a(f"s_addk_i32 s44, {KTS}")
    a(f"s_cmp_lt_u32 s44, {16*KTS}")
    a("s_cbranch_scc1 A_FBLOOP")
    for r in range(8):
        a(f"v_mov_b32 v{VB+24+r}, 0")
    first_loads()
    zero_acc()
    a("s_waitcnt vmcnt(0)")
    patch(KB)
    a("s_branch A_SETMAX")

def gen_B(a):
    a.label("L_B")
    a(f"s_setprio {PB}")
    a.stamp(1)
    if "noB" in EXP: a("s_endpgm")
    TS = 272; TW = 64 * TS
    UB = 4 * TW
    US = 4608
    YB, XB, KACC, FR, CT = 16, 80, 136, 152, 216
    Z1, Z256, TM = 224, 226, 226
    a(f"s_mul_i32 s29, s24, {TW}")
    a("s_mov_b32 m0, s29")
    a("v_mov_b32 v15, 0x3f80")
    a(f"ds_write_addtid_b32 v15 offset:{32*TS}")
    a("v_and_b32 v12, 31, v1")
    a(f"v_mul_u32_u24 v12, {TS}, v12")
    a("v_lshrrev_b32 v13, 5, v1")
    a("v_lshl_add_u32 v12, v13, 4, v12")
    a("v_add_u32 v240, s29, v12")
    for r in range(16):
        a(f"v_mov_b32 v{KACC+r}, 0")
    a(f"v_mul_u32_u24 v12, {US-512}, v13")
    a("v_add_u32 v12, v12, v2")
    a(f"v_add_u32 v12, {UB}, v12")
    a(f"ds_write_b128 v12, {vr(KACC,4)}")
    a("s_and_b32 s42, s2, 31")
    a("s_lshl_b32 s42, s42, 7")
    a(f"s_add_u32 s42, s42, {F_XT}")
    a("v_lshrrev_b32 v12, 1, v1")
    a("v_and_b32 v13, 1, v1")
    a(f"v_mul_u32_u24 v3, {XTS}, v12")
    a("v_lshl_add_u32 v3, v13, 4, v3")
    a(f"s_mul_i32 s43, s24, {64*XTS}")
    a("s_mul_i32 s33, s31, 896")
    a("s_add_u32 s43, s43, s33")
    a("s_lshl_b32 s33, s39, 4")
    a("s_add_u32 s43, s43, s33")
    a(f"s_add_u32 s43, s43, {XT}")
    a(f"s_add_u32 s44, s43, {32*XTS}")
    a(f"v_mul_u32_u24 v241, {US}, v13")
    a("v_lshl_add_u32 v241, v12, 4, v241")
    a("s_lshl_b32 s33, s24, 10")
    a(f"s_add_u32 s33, s33, {UB + 512}")
    a("v_add_u32 v241, s33, v241")
    a("s_waitcnt lgkmcnt(0)")
    a("s_and_b32 s33, s26, 1")
    a("s_lshl_b32 s33, s33, 4")
    a("s_lshr_b32 s28, s28, s33")
    a("s_lshl_b32 s28, s28, 16")
    a("s_lshr_b32 s38, s38, s33")
    a("s_lshl_b32 s38, s38, 16")
    hi = float(np.float32(LOG2E)); lo = float(np.float32(LOG2E - hi))
    a(f"v_mov_b32 v13, {hex(f2u(hi))}")
    a("v_mul_f32 v14, s28, v13")
    a("v_fma_f32 v13, s28, v13, -v14")
    a(f"v_mov_b32 v15, {hex(f2u(lo))}")
    a("v_fmac_f32 v13, s28, v15")
    a("v_exp_f32 v14, v14")
    a(f"v_mul_f32 v13, {hex(f2u(math.log(2)))}, v13")
    a("v_fmac_f32 v14, v14, v13")
    a("v_cvt_pk_bf16_f32 v14, v14, v14")
    a("v_and_b32 v14, 0xffff0000, v14")
    a(f"s_mov_b32 s48, {hex(f2u(LOG2E))}")
    a(f"s_mov_b32 s49, {hex(f2u(1/(2*math.pi)))}")
    a("s_mov_b32 s30, 2")
    a("s_waitcnt vmcnt(0)")
    a.stamp(2)
    a.label("B_PASS")
    a("s_cmp_eq_u32 s30, 2")
    for i in range(6):
        a(f"v_and_b32 v{8+i}, 0xffff0000, v{RAW+i}")
    for i in range(6):
        a(f"v_lshlrev_b32 v{RAW+i}, 16, v{RAW+i}")
    r1 = [0, 0, 2, 4, 4, 4, 6, 8, 8]
    P_ = {}
    for r in range(9): P_[(0, r)] = r; P_[(1, r)] = 256 + r1[r]
    for i, e in enumerate((0, 4, 8)): P_[(0, 9 + i)] = 512 + e; P_[(1, 9 + i)] = 768 + e
    for i, e in enumerate((0, 8)):
        P_[(0, 12 + i)] = 1024 + e; P_[(1, 12 + i)] = 1280 + e; P_[(0, 14 + i)] = 1536 + e; P_[(1, 14 + i)] = 1792 + e
    plist = sorted(set(P_.values()))
    xreg = {p: XB + 2 * i for i, p in enumerate(plist)}
    rows_of = {p: [8 * (r >> 2) + 4 * h + (r & 3) for (h, r), pp in P_.items() if pp == p] for p in plist}
    yreg = {j: YB + 2 * j for j in range(1, 32)}
    a("v_pk_mul_f32 v[8:9], v[8:9], v[14:15] op_sel_hi:[1,0]")
    cmul(a, xreg[0], 12, 10, 0)
    a("v_pk_mul_f32 v[8:9], v[8:9], s[48:49]")
    cmul(a, xreg[0], 12, 10, 1)
    a(f"v_mul_f32 v{TM+2}, 0x41000000, v8")
    a(f"v_mul_f32 v{TM+3}, 0x41000000, v9")
    a(f"v_mul_f32 v{TM+4}, 0x43800000, v8")
    a(f"v_mul_f32 v{TM+5}, 0x43800000, v9")
    a(f"v_pk_mul_f32 {vr(xreg[0],2)}, {vr(xreg[0],2)}, v[14:15] op_sel_hi:[1,0]")
    anchors = [(TM + 2, yreg[1]), (8, Z1), (TM + 4, Z256)]
    for s_, d_ in anchors:
        a(f"v_fract_f32 v{s_+1}, v{s_+1}")
        a(f"v_exp_f32 v{s_}, v{s_}")
    for s_, d_ in anchors:
        a(f"v_cos_f32 v{d_}, v{s_+1}")
        a(f"v_sin_f32 v{d_+1}, v{s_+1}")
    a("s_nop 0")
    for s_, d_ in anchors:
        a(f"v_pk_mul_f32 {vr(d_,2)}, {vr(d_,2)}, {vr(s_,2)} op_sel_hi:[1,0]")
    ops = []
    ops += [(("Y", 2), ("Y", 1), ("Y", 1)), (("Y", 3), ("Y", 2), ("Y", 1)), (("Y", 4), ("Y", 2), ("Y", 2))]
    ops += [(("Y", 4 + k), ("Y", 4), ("Y", k)) for k in (4, 1, 2, 3)]
    ops += [(("Y", 8 + k), ("Y", 8), ("Y", k)) for k in (8, 1, 2, 3, 4, 5, 6, 7)]
    ops += [(("Y", 16 + k), ("Y", 16), ("Y", k)) for k in range(1, 16)]
    xo = [(("X", 8), ("X", 0), ("Y", 1))]
    xo += [(("X", e + 1), ("X", e), ("Z", 1)) for e in range(7)]
    for base, es in ((256, (0, 8, 4, 2, 6)), (512, (0, 8, 4)), (768, (0, 8, 4)), (1024, (0, 8)), (1280, (0, 8)), (1536, (0, 8)), (1792, (0, 8))):
        xo += [(("X", base + e), ("X", base - 256 + e), ("Z", 256)) for e in es]
    def reg(n):
        return {"Y": yreg, "X": xreg, "Z": {1: Z1, 256: Z256}}[n[0]][n[1]]
    done = {("Y", 1), ("X", 0), ("Z", 1), ("Z", 256)}
    allops = xo + ops
    memo = {}
    def height(n):
        if n in memo: return memo[n]
        h = 0
        for (d, x, y) in allops:
            if x == n or y == n: h = max(h, 1 + height(d))
        memo[n] = h
        return h
    pending = sorted(allops, key=lambda o: -height(o[0]))
    towrite = [("Y", 1), ("X", 0)]
    ct = [0]
    WB = int(os.environ.get("WB", "64"))
    wq = []
    def flush_w():
        for ins in wq: a(ins)
        wq.clear()
    def emit_write(n):
        t = (CT + (ct[0] % 8)) if WB == 1 else (FR + ct[0]); ct[0] += 1
        r = reg(n)
        if n[0] == "Y":
            a(f"v_cvt_pk_bf16_f32 v{t}, v{r}, v{r+1}")
            wq.append(f"ds_write_addtid_b32 v{t} offset:{(32+n[1])*TS}")
        else:
            a(f"v_cvt_pk_bf16_f32 v{t}, v{r}, -v{r+1}")
            for m in rows_of[n[1]]:
                wq.append(f"ds_write_addtid_b32 v{t} offset:{m*TS}")
        if len(wq) >= WB: flush_w()
    nb = 0
    UL = XRW
    PB0 = int(os.environ.get('PB0', '9')); PB1 = int(os.environ.get('PB1', '14'))
    while pending:
        batch = [o for o in pending if o[1] in done and o[2] in done][:4]
        for o in batch: pending.remove(o)
        for (d, x, y) in batch: cmul(a, reg(d), reg(x), reg(y), 0)
        w = towrite; towrite = []
        for n in w[:2]: emit_write(n)
        for (d, x, y) in batch: cmul(a, reg(d), reg(x), reg(y), 1)
        for n in w[2:]: emit_write(n)
        for (d, x, y) in batch:
            done.add(d); towrite.append(d)
        nb += 1
        if nb == PB0:
            a("s_cbranch_scc1 B_P1")
            a("s_setprio 3")
            nonce_issue(a, 250)
            a(f"s_setprio {PB}")
            a.label("B_P1")
        if nb == PB1:
            a("s_lshl_b32 s33, s24, 1")
            a("s_add_u32 s33, s33, s30")
            a("s_cmp_lg_u32 s33, 1")
            a("s_cbranch_scc1 B_P3")
            a("s_waitcnt vmcnt(0)")
            nonce_take(a, 250)
            a("s_setprio 3")
            cnt_load(a, 250, "s42")
            a(f"s_setprio {PB}")
            a.label("B_P3")
    for n in towrite: emit_write(n)
    flush_w()
    for ks in range(8):
        a(f"ds_read_b128 {vr(FR+8*ks,4)}, v240 offset:{32*ks}")
        a(f"ds_read_b128 {vr(FR+8*ks+4,4)}, v240 offset:{32*TS+32*ks}")
    for ks in range(8):
        a(f"s_waitcnt lgkmcnt({14-2*ks})")
        a(f"{MF32} {vr(KACC,16)}, {vr(FR+8*ks,4)}, {vr(FR+8*ks+4,4)}, {vr(KACC,16)}")
    a("s_sub_u32 s30, s30, 1")
    a("s_cmp_lg_u32 s30, 0")
    a("s_cbranch_scc1 B_PASS")
    a.stamp(3)
    a("v_add_u32 v242, s29, v2")
    a("s_xor_b32 s33, s24, 1")
    a(f"s_mul_i32 s33, s33, {TW}")
    a("v_add_u32 v243, s33, v2")
    a("s_and_b32 s33, s24, 2")
    a(f"s_mul_i32 s48, s33, {TW}")
    a("s_add_u32 s48, s48, 4096")
    a("s_mul_i32 s33, s27, 4160")
    a("s_add_u32 s49, s33, s48")
    a("v_sub_u32 v6, 63, v1")
    a("v_lshlrev_b32 v6, 4, v6")
    a("v_add_u32 v6, s49, v6")
    a("v_and_b32 v7, 1, v1")
    a("v_cmp_eq_u32 vcc, 1, v7")
    for q in range(4):
        a(f"ds_write_b128 v242, {vr(KACC+4*q,4)} offset:{1024*q}")
    a("v_lshrrev_b32 v4, 4, v1")
    a("v_and_b32 v5, 15, v1")
    a("v_add_u32 v7, 1, v5")
    a("v_lshrrev_b32 v7, 1, v7")
    a("v_lshlrev_b32 v8, 2, v4")
    a("v_sub_u32 v8, v8, v7")
    a("v_and_b32 v7, 1, v5")
    a("v_mul_u32_u24 v7, 1040, v7")
    a("v_sub_u32 v8, v8, v7")
    a(f"v_add_u32 v8, {1016 + 1040 - 48 - 128}, v8")
    a("v_lshlrev_b32 v8, 2, v8")
    a("s_lshl_b32 s33, s27, 8")
    a("s_sub_u32 s33, s48, s33")
    a("v_add_u32 v8, s33, v8")
    for i in range(1, 4):
        a(f"v_subrev_u32 v{8+i}, {1024*i}, v8")
    a("s_cmp_lg_u32 s24, 0")
    a("s_cbranch_scc1 B_NOPOLL")
    a("s_waitcnt vmcnt(0)")
    cnt_wait(a, 250, "s42", 32, 6)
    a.label("B_NOPOLL")
    a("s_waitcnt lgkmcnt(0)")
    a("s_barrier")
    a.stamp(7)
    a("s_setprio 3")
    for i in range(2):
        a(f"buffer_load_dwordx4 {vr(UL+4*i,4)}, v3, s[20:23], s{43+i} offen{SC}")
    a(f"s_setprio {PC}")
    for q in range(4):
        a(f"ds_read_b128 {vr(FR+4*q,4)}, v243 offset:{1024*q}")
    a("s_lshr_b32 s33, s24, 1")
    a(f"s_mul_i32 s36, s33, {US}")
    a(f"s_add_u32 s36, s36, {UB + 512}")
    a("v_lshlrev_b32 v12, 5, v5")
    a("v_lshl_add_u32 v13, v4, 3, v12")
    a("v_lshl_add_u32 v12, v4, 4, v12")
    a("s_lshl_b32 s33, s27, 8")
    a("s_sub_u32 s33, s36, s33")
    a(f"s_sub_u32 s33, s33, {32 + 192}")
    a("v_add_u32 v12, s33, v12")
    a("s_lshl_b32 s33, s27, 11")
    a("s_add_u32 s33, s33, s36")
    a("v_add_u32 v13, s33, v13")
    a("s_lshl_b32 s40, s26, 1")
    a("s_add_u32 s40, s40, s27")
    a("s_lshl_b32 s41, s40, 11")
    a(f"s_add_u32 s41, s41, {BT}")
    a("s_lshr_b32 s40, s26, 5")
    a("s_lshl_b32 s40, s40, 7")
    a(f"s_add_u32 s40, s40, {F_B}")
    a("s_waitcnt lgkmcnt(0)")
    for r in range(0, 16, 2):
        a(f"v_pk_add_f32 {vr(KACC+r,2)}, {vr(KACC+r,2)}, {vr(FR+r,2)}")
    K_ = KACC; W_ = FR + 16
    a(f"v_cndmask_b32 v{CT}, v{K_+12}, v{K_+13}, vcc")
    a(f"v_cndmask_b32 v{CT+1}, v{K_+14}, v{K_+15}, vcc")
    for i in range(4):
        a(f"v_mov_b32 v{W_+16+i}, 0")
    def pk(d, lo_, hi_): a(f"v_cvt_pk_bf16_f32 v{d}, v{lo_}, v{hi_}")
    a("s_cmp_eq_u32 s27, 1")
    a("s_cbranch_scc1 B_ODD")
    A_, B_, C_ = K_ + 9, K_ + 10, K_ + 11
    for i in range(4): pk(W_ + i, K_ + 7 - 2 * i, K_ + 6 - 2 * i)
    for i, (x, y) in enumerate(((C_, C_), (B_, B_), (B_, A_), (A_, A_))): pk(W_ + 4 + i, x, y)
    for sl in range(2):
        A2, C2, M2 = K_ + 12 + 2 * sl, K_ + 13 + 2 * sl, CT + sl
        for i, (x, y) in enumerate(((C2, C2), (C2, M2), (A2, A2), (A2, A2))): pk(W_ + 8 + 4 * sl + i, x, y)
    a("s_branch B_IMG")
    a.label("B_ODD")
    for i in range(4): pk(W_ + i, K_ + 8 - 2 * i, K_ + 7 - 2 * i)
    for i, (x, y) in enumerate(((C_, C_), (C_, B_), (B_, B_), (A_, A_))): pk(W_ + 4 + i, x, y)
    for sl in range(2):
        A2, C2, M2 = K_ + 12 + 2 * sl, K_ + 13 + 2 * sl, CT + sl
        for i, (x, y) in enumerate(((C2, C2), (C2, C2), (M2, A2), (A2, A2))): pk(W_ + 8 + 4 * sl + i, x, y)
    a("s_mov_b64 exec, 1")
    pk(W_ + 16, K_, VZ)
    a("s_mov_b64 exec, -1")
    a.label("B_IMG")
    for sl in range(4):
        a(f"ds_write_b128 v6, {vr(W_+4*sl,4)} offset:{(3-sl)*1024}")
    a("v_add_u32 v7, s49, v2")
    a("s_mov_b64 exec, 3")
    a(f"ds_write_b128 v7, {vr(W_+16,4)} offset:4096")
    a("s_mov_b64 exec, -1")
    a("s_waitcnt vmcnt(0)")
    for i in range(2):
        a(f"ds_write_b128 v241, {vr(UL+4*i,4)} offset:{512*i}")
    a("s_waitcnt lgkmcnt(0)")
    a("s_barrier")
    a.stamp(4)
    FB, CAC = 16, 144
    a.nds = 0
    tg = {}
    def loadstep(stp):
        b = FB + 64 * (stp & 1)
        for i in range(8):
            o = 128 * (1 - (i & 1)) + 16 * (3 - stp)
            a.ds(f"ds_read2_b32 {vr(b+4*i,2)}, v{8+(i>>1)} offset0:{o} offset1:{o+1}")
            a.ds(f"ds_read2_b32 {vr(b+4*i+2,2)}, v{8+(i>>1)} offset0:{o+2} offset1:{o+3}")
            tg[(stp, i)] = a.ds(f"ds_read_b128 {vr(b+32+4*i,4)}, v12 offset:{512*i+64*(3-stp)}")
    loadstep(0)
    for stp in range(4):
        b = FB + 64 * (stp & 1)
        order = sorted([(i, tp) for i in range(8) for tp in range(8 - i)], key=lambda x: (max(x), x[0] + x[1]))
        nxt = []
        if stp < 3:
            b2 = FB + 64 * ((stp + 1) & 1)
            for i in range(8):
                o = 128 * (1 - (i & 1)) + 16 * (3 - stp - 1)
                nxt.append((None, f"ds_read2_b32 {vr(b2+4*i,2)}, v{8+(i>>1)} offset0:{o} offset1:{o+1}"))
                nxt.append((None, f"ds_read2_b32 {vr(b2+4*i+2,2)}, v{8+(i>>1)} offset0:{o+2} offset1:{o+3}"))
                nxt.append(((stp + 1, i), f"ds_read_b128 {vr(b2+32+4*i,4)}, v12 offset:{512*i+64*(3-stp-1)}"))
        waited = -1
        seen = set()
        for k, (i, tp) in enumerate(order):
            if max(i, tp) > waited:
                waited = max(i, tp)
                a.wait_ds(tg[(stp, waited)])
            t = i + tp
            c = vr(CAC + 4 * t, 4)
            if stp == 0 and t not in seen:
                c = "0"; seen.add(t)
            a(f"{MF16} {vr(CAC+4*t,4)}, {vr(b+4*i,4)}, {vr(b+32+4*tp,4)}, {c}")
            if k >= 8 and nxt:
                key, ins = nxt.pop(0)
                r = a.ds(ins)
                if key: tg[key] = r
        assert not nxt
    a.stamp(5)
    RR = 16
    for tl in range(4):
        a(f"ds_read_b64 {vr(80+2*tl,2)}, v13 offset:{512*tl}")
    a("s_cmp_eq_u32 s27, 1")
    a.nop(3)
    a("s_cbranch_scc1 B_R1")
    for par in range(2):
        if par: a.label("B_R1")
        for q in range(4):
            a(f"ds_write_b128 v242, {vr(CAC+16*(1-par)+4*q,4)} offset:{1024*q}")
        a("s_waitcnt lgkmcnt(0)")
        a("s_barrier")
        for q in range(4):
            a(f"ds_read_b128 {vr(RR+4*q,4)}, v243 offset:{1024*q}")
        a("s_waitcnt lgkmcnt(0)")
        for r in range(0, 16, 2):
            a(f"v_pk_add_f32 {vr(RR+r,2)}, {vr(RR+r,2)}, {vr(CAC+16*par+r,2)}")
        if not par: a("s_branch B_R2")
    a.label("B_R2")
    for t in range(4):
        for i in range(2):
            a(f"v_lshlrev_b32 v{88+2*i}, 16, v{80+2*t+i}")
            a(f"v_and_b32 v{88+2*i+1}, 0xffff0000, v{80+2*t+i}")
        for r in range(4):
            a(f"v_fmac_f32 v{RR+4*t+r}, s38, v{88+r}")
        for i in range(2):
            a(f"v_cvt_pk_bf16_f32 v{80+2*t+i}, v{RR+4*t+2*i}, v{RR+4*t+2*i+1}")
    a("s_nop 1")
    for p in range(2):
        for i in range(2):
            a(f"v_permlane16_swap_b32 v{80+4*p+i}, v{80+4*p+2+i}")
    for p in range(2):
        a(f"buffer_store_dwordx4 {vr(80+4*p,4)}, v2, s[20:23], s41 offen offset:{1024*p}{SC}")
    a("s_waitcnt vmcnt(0)")
    cnt_add(a, 4, "s40")
    fin(a, 6)
    a("s_endpgm")

def gen_C(a):
    a.label("L_C")
    a("s_setprio 3")
    R, U, GU, GW = 16, 80, 144, 160
    a("s_sub_u32 s25, s2, 224")
    a("s_lshl_b32 s26, s31, 2")
    a("s_sub_u32 s33, s32, 28")
    a("s_add_u32 s26, s26, s33")
    a("s_lshl_b32 s26, s26, 2")
    a("s_add_u32 s26, s26, s24")
    a("s_mul_i32 s36, s26, 14336")
    for i in range(1, 4):
        a(f"s_add_u32 s{36+i}, s36, {3584*i}")
    a("s_add_u32 s45, s25, s24")
    a("s_waitcnt lgkmcnt(0)")
    a.srd(20, P_WS, WS_SIZE)
    a.srd(12, P_X, X_BYTES)
    for r in range(16):
        a(f"buffer_load_dwordx4 {vr(R+4*r,4)}, v2, s[12:15], s{36+(r>>2)} offen offset:{896*(r&3)}")
    a.srd(16, P_GW, 896)
    a(f"buffer_load_dwordx4 {vr(GW,4)}, v2, s[16:19], 0 offen")
    a("v_mov_b32 v4, 1")
    a(f"s_mul_i32 s36, s26, {2*XTS}")
    a(f"s_add_u32 s36, s36, {XT}")
    a("s_add_u32 s37, s36, 3584")
    a(f"s_add_u32 s38, s36, {XTS}")
    a("s_add_u32 s39, s38, 3584")
    a("s_mov_b32 s46, 0x05040100")
    a("s_mov_b32 s47, 0x07060302")
    a("s_mov_b32 exec_hi, 0xffffff")
    for hb in range(2):
        a(f"s_waitcnt vmcnt({9 if hb == 0 else 8})")
        for cc in range(8):
            i, e = cc >> 1, cc & 1
            u = U + 32 * hb + 4 * cc
            for q in range(4):
                a(f"v_perm_b32 v{u+q}, v{R+32*hb+4*(2*q+1)+i}, v{R+32*hb+4*(2*q)+i}, s{46+e}")
            a(f"buffer_store_dwordx4 {vr(u,4)}, v2, s[20:23], s{36+2*hb+(cc>>2)} offen offset:{896*(cc&3)}{SC}")
    a.stamp(1)
    a("s_mov_b64 exec, -1")
    nonce_issue(a, 250)
    a("v_lshlrev_b32 v5, 7, v1")
    a(f"s_mov_b32 s41, {F_XT}")
    for r in range(16):
        a(f"v_mov_b32 v{GU+r}, 0")
    a("s_mov_b32 exec_hi, 0xffffff")
    for i in range(4):
        for r in range(16):
            a(f"v_dot2c_f32_bf16 v{GU+r}, v{R+4*r+i}, v{GW+i}")
    a("s_mov_b64 exec, -1")
    a("s_waitcnt vmcnt(0)")
    nonce_take(a, 250)
    a("s_barrier")
    a("s_cmp_lg_u32 s24, 0")
    a("s_cbranch_scc1 C_NOADD")
    a("s_mov_b32 exec_hi, 0")
    a("buffer_atomic_add v4, v5, s[20:23], s41 offen sc1")
    a("s_mov_b64 exec, -1")
    a.label("C_NOADD")
    a.stamp(2)
    a("s_setprio 1")
    a("s_min_u32 s45, s25, 15")
    a("s_mul_i32 s33, s45, 25088")
    a("s_mul_i32 s34, s24, 7168")
    a("s_add_u32 s33, s33, s34")
    a("v_add_u32 v3, 4096, v2")
    a.srd(12, P_WO, 448 * 896)
    a("s_mov_b32 m0, s34")
    a("s_nop 0")
    for i in range(4):
        a(f"buffer_load_dwordx4 v2, s[12:15], s33 offen offset:{1024*i} lds")
    a("s_add_u32 m0, s34, 4096")
    a("s_nop 0")
    for i in range(3):
        a(f"buffer_load_dwordx4 v3, s[12:15], s33 offen offset:{1024*i} lds")
    for sh in ("row_shr:1", "row_shr:2", "row_shr:4", "row_shr:8"):
        for r in range(16):
            a(f"v_add_f32_dpp v{GU+r}, v{GU+r}, v{GU+r} {sh} row_mask:0xf bank_mask:0xf bound_ctrl:0")
    for r in range(16):
        a(f"v_add_f32_dpp v{GU+r}, v{GU+r}, v{GU+r} row_bcast:15 row_mask:0xa bank_mask:0xf")
    for r in range(16):
        a(f"v_add_f32_dpp v{GU+r}, v{GU+r}, v{GU+r} row_bcast:31 row_mask:0xc bank_mask:0xf")
    for op in (f"v_mul_f32 vX, {hex(f2u(-LOG2E))}, vX", "v_exp_f32 vX, vX", "v_add_f32 vX, 1.0, vX", "v_rcp_f32 vX, vX"):
        for r in range(16):
            a(op.replace("vX", f"v{GU+r}"))
    a("s_lshl_b32 s35, s26, 6")
    a(f"s_add_u32 s35, s35, {GO}")
    a("s_lshr_b32 s37, s26, 1")
    a("s_lshl_b32 s37, s37, 7")
    a(f"s_add_u32 s37, s37, {F_G}")
    a("s_mov_b32 exec_lo, 0")
    a("s_mov_b32 exec_hi, 0x80000000")
    for i in range(4):
        a(f"buffer_store_dwordx4 {vr(GU+4*i,4)}, v{VZ}, s[20:23], s35 offen offset:{16*i}{SC}")
    a("s_mov_b64 exec, -1")
    a("v_lshrrev_b32 v15, 5, v1")
    a("v_bfe_u32 v13, v1, 2, 2")
    a("v_lshl_add_u32 v13, v15, 2, v13")
    a("v_mul_u32_u24 v13, 896, v13")
    a("v_bfe_u32 v14, v1, 4, 1")
    a("v_lshl_add_u32 v13, v14, 5, v13")
    a("v_and_b32 v14, 3, v1")
    a("v_lshl_add_u32 v12, v14, 3, v13")
    a("s_lshr_b32 s49, s24, 1")
    a("s_mul_i32 s36, s49, 14336")
    a("s_mul_i32 s38, s27, 448")
    a("s_add_u32 s36, s36, s38")
    a("v_add_u32 v12, s36, v12")
    a(f"s_mul_i32 s38, s27, {7*32768}")
    a("s_lshl_b32 s39, s45, 1")
    a("s_add_u32 s39, s39, s49")
    a("s_lshl_b32 s39, s39, 10")
    a("s_add_u32 s38, s38, s39")
    a(f"s_add_u32 s38, s38, {WOF}")
    a("s_lshr_b32 s40, s25, 2")
    a("s_lshl_b32 s40, s40, 7")
    a(f"s_add_u32 s40, s40, {F_WO}")
    a("s_waitcnt vmcnt(0)")
    cnt_add(a, 4, "s37")
    a("s_cmp_ge_u32 s25, 16")
    a("s_cbranch_scc1 C_END")
    a("s_barrier")
    for i in range(7):
        for hr in range(2):
            a(f"ds_read_b64_tr_b16 {vr(16+4*i+2*hr,2)}, v12 offset:{64*i+8*hr*896}")
    a("s_waitcnt lgkmcnt(0)")
    a("s_cmp_eq_u32 s49, 0")
    a("s_cbranch_scc1 C_WO2")
    a("s_mov_b32 exec_lo, 0")
    for i in range(7):
        a(f"v_mov_b32 v{16+4*i+2}, 0")
        a(f"v_mov_b32 v{16+4*i+3}, 0")
    a("s_mov_b32 exec_lo, -1")
    a.label("C_WO2")
    for i in range(7):
        a(f"buffer_store_dwordx4 {vr(16+4*i,4)}, v2, s[20:23], s38 offen{SC}")
        if i < 6: a("s_add_u32 s38, s38, 32768")
    a("s_waitcnt vmcnt(0)")
    cnt_add(a, 4, "s40")
    a.label("C_END")
    fin(a, 3)

def gen():
    a = Asm()
    gen_entry(a)
    gen_A(a)
    gen_B(a)
    gen_C(a)
    a.label("L_END")
    a("s_endpgm")
    return a.text()

HEADER = open("cdna_kernels/" + NAME + ".s.ref").read().split("; Override launch geometry")[0]

if __name__ == "__main__":
    name = NAME + "_kernel"
    out = HEADER + "; @launch grid=(512,1,1) block=(256,1,1) lds=81920\n"
    out += '.amdgcn_target "amdgcn-amd-amdhsa--gfx950"\n' + kernel_header(name) + gen() + kernel_desc(name, 256)
    dst = sys.argv[1] if len(sys.argv) > 1 else "cdna_kernels/" + NAME + ".s"
    open(dst, "w").write(out)
```

```python
import sys, math, os
import numpy as np
from dsl import *

NAME = "gated_mix__mha_block__ssm_conv_s4__prompt"
KTS = 28672; VTS = 32256; XTS = 7296
KF = 0x000000
VF = 0x200000
XT = 0x400000
GO = 0x5D0000
WOF = 0x5E0000
OF = 0x660000
BT = 0x860000
FL = 0xA40000
F_KV = FL
F_O = FL + 64 * 128
F_XT = FL + 192 * 128
F_G = FL + 256 * 128
F_B = FL + 320 * 128
F_WO = FL + 336 * 128
WS_SIZE = 0xA50000
X_BYTES = 2048 * 896
W_BYTES = 448 * 2688
LOG2E = 1.4426950408889634
QSCALE = LOG2E * 28 ** -0.5
MF32 = "v_mfma_f32_32x32x16_bf16"
MF16 = "v_mfma_f32_16x16x32_bf16"
SC = " sc1"
NON = 60
POLLMAX = 40000
EXP = os.environ.get("EXP", "")
DEPTH = int(os.environ.get("DEPTH", "3"))
PA = int(os.environ.get("PA", "1")); PB = int(os.environ.get("PB", "2")); PC = int(os.environ.get("PC", "0"))
P_X, P_W, P_WO, P_PAR, P_LDT, P_DSK, P_GW, P_OUT, P_DBG, P_WS = 64, 66, 68, 72, 84, 86, 88, 90, 92, 94
VZ = 255

uid = [0]
def fin(a, idx):
    if not os.environ.get("STAMP"): return
    a("s_waitcnt vmcnt(0)")
    a.stamp(idx)
    dw = os.environ.get("DBGWG")
    if dw:
        uid[0] += 1; u = uid[0]
        a("s_lshl_b32 s96, s2, 2")
        a("s_add_u32 s96, s96, s24")
        a(f"s_cmp_lg_u32 s96, {int(dw)*4}")
        a(f"s_cbranch_scc1 DG{u}")
        a("s_mov_b64 exec, -1")
        a("v_readlane_b32 s97, v254, 1")
        a("v_mbcnt_lo_u32_b32 v0, -1, 0")
        a("v_lshlrev_b32 v1, 1, v0")
        a("v_subrev_u32 v254, s97, v254")
        a("v_and_b32 v1, -4, v1")
        a("s_mov_b32 exec_lo, 0xaaaaaaa8")
        a("s_mov_b32 exec_hi, 0")
        a(f"global_store_dword v1, v254, {sr(P_DBG,2)}")
        a.label(f"DG{u}")
        return
    a.stamp_flush(P_WS)

def cmul(a, d, x, y, phase):
    if phase == 0:
        a(f"v_pk_mul_f32 {vr(d,2)}, {vr(x,2)}, {vr(y,2)} op_sel_hi:[0,1]")
    else:
        a(f"v_pk_fma_f32 {vr(d,2)}, {vr(x,2)}, {vr(y,2)}, {vr(d,2)} op_sel:[1,1,0] op_sel_hi:[1,0,1] neg_lo:[1,0,0]")

def nonce_issue(a, v):
    uid[0] += 1; u = uid[0]
    a("s_cmp_lg_u32 s24, 0")
    a(f"s_cbranch_scc1 NI{u}")
    a(f"global_load_dword v{v}, v{VZ}, {sr(P_DBG,2)}{os.environ.get('NSC', ' sc1')}")
    a.label(f"NI{u}")

def nonce_take(a, v):
    uid[0] += 1; u = uid[0]
    a("s_cmp_lg_u32 s24, 0")
    a(f"s_cbranch_scc1 ND{u}")
    a(f"s_mov_b32 s62, {POLLMAX}")
    a.label(f"NT{u}")
    a(f"v_readfirstlane_b32 s{NON}, v{v}")
    a("s_nop 1")
    a(f"s_cmp_lg_u32 s{NON}, 0")
    a(f"s_cbranch_scc1 ND{u}")
    a("s_sub_u32 s62, s62, 1")
    a(f"s_cbranch_scc1 ND{u}")
    a("s_sleep 8")
    a(f"global_load_dword v{v}, v{VZ}, {sr(P_DBG,2)} sc1")
    a("s_waitcnt vmcnt(0)")
    a(f"s_branch NT{u}")
    a.label(f"ND{u}")

def cnt_load(a, vd, soff):
    a(f"v_mov_b32 v{vd}, 0")
    a("s_mov_b64 exec, 1")
    t = a.vm(f"buffer_atomic_add v{vd}, v{VZ}, s[20:23], {soff} offen sc0 sc1")
    a("s_mov_b64 exec, -1")
    return t

def cnt_wait(a, vd, soff, target, sleep=1):
    uid[0] += 1; u = uid[0]
    a(f"s_mov_b32 s62, {POLLMAX}")
    a.label(f"FC{u}")
    a(f"v_readfirstlane_b32 s4, v{vd}")
    a("s_nop 1")
    a(f"s_cmp_eq_u32 s4, {target}")
    a(f"s_cbranch_scc1 FD{u}")
    a("s_sub_u32 s62, s62, 1")
    a(f"s_cbranch_scc1 FD{u}")
    a(f"s_sleep {sleep}")
    n0 = a.nvm
    cnt_load(a, vd, soff)
    a.nvm = n0
    a("s_waitcnt vmcnt(0)")
    a(f"s_branch FC{u}")
    a.label(f"FD{u}")

def cnt_add(a, vt, soff, va=None, mask="1"):
    a(f"v_mov_b32 v{vt}, 1")
    a(f"s_mov_b64 exec, {mask}")
    a.vm(f"buffer_atomic_add v{vt}, v{VZ if va is None else va}, s[20:23], {soff} offen sc1")
    a("s_mov_b64 exec, -1")

def late_load(a, vd, va):
    a("s_mov_b64 exec, 7")
    a(f"buffer_load_dword v{vd}, v{va}, s[20:23], 0 offen sc1")
    a("s_mov_b64 exec, -1")

def late_check(a, vd, va, vtgt):
    uid[0] += 1; u = uid[0]
    a(f"s_mov_b32 s62, {POLLMAX}")
    a.label(f"FC{u}")
    a(f"v_cmp_ne_u32 vcc, v{vd}, v{vtgt}")
    a("s_nop 1")
    a("s_and_b32 s4, vcc_lo, 7")
    a(f"s_cbranch_scc0 FD{u}")
    a("s_sub_u32 s62, s62, 1")
    a(f"s_cbranch_scc1 FD{u}")
    a("s_sleep 16")
    late_load(a, vd, va)
    a("s_waitcnt vmcnt(0)")
    a(f"s_branch FC{u}")
    a.label(f"FD{u}")

RAW = 244
XRW = 232

def gen_entry(a):
    a("s_cmp_ge_u32 s2, 512")
    a("s_cbranch_scc1 L_END")
    a.stamp(0)
    a("s_load_dwordx16 s[64:79], s[0:1], 0")
    a("s_load_dwordx16 s[80:95], s[0:1], 64")
    if "nopf" not in EXP:
        a(f"s_cmp_ge_u32 s2, {os.environ.get('PFN', '8')}")
        a("s_cbranch_scc1 E_NOPF")
        a("s_getpc_b64 s[4:5]")
        a.label("E_PC")
        a("v_lshlrev_b32 v4, 7, v0")
        a("v_min_u32 v4, L_END-E_PC, v4")
        a("v_mov_b32 v5, s5")
        a("v_add_co_u32 v4, vcc, s4, v4")
        a("s_nop 1")
        a("v_addc_co_u32 v5, vcc, 0, v5, vcc")
        a("global_load_dword v6, v[4:5], off")
        a.label("E_NOPF")
    a("v_lshrrev_b32 v13, 6, v0")
    a("v_and_b32 v1, 63, v0")
    a("v_lshlrev_b32 v2, 4, v1")
    a(f"v_mov_b32 v{VZ}, 0")
    a("v_readfirstlane_b32 s24, v13")
    a("s_and_b32 s31, s2, 7")
    a("s_bfe_u32 s32, s2, 0x50003")
    a("s_cmp_ge_u32 s2, 256")
    a("s_cbranch_scc1 L_A")
    a("s_and_b32 s27, s24, 1")
    a("s_cmp_ge_u32 s32, 28")
    a("s_cbranch_scc1 L_C")
    a("s_setprio 3")
    a("s_lshl_b32 s39, s32, 1")
    a("s_lshr_b32 s34, s24, 1")
    a("s_add_u32 s26, s39, s34")
    a("s_lshl_b32 s26, s26, 3")
    a("s_add_u32 s26, s26, s31")
    a("s_lshl_b32 s33, s26, 9")
    a("s_lshl_b32 s34, s27, 8")
    a("s_add_u32 s33, s33, s34")
    a("v_lshlrev_b32 v3, 2, v1")
    a("v_add_u32 v13, s33, v3")
    a("s_lshl_b32 s34, s26, 1")
    a("s_and_b32 s34, s34, -4")
    a("s_add_u32 s45, s2, s24")
    a("v_lshlrev_b32 v4, 7, v1")
    a(f"s_mov_b32 s33, {FL}")
    a("s_waitcnt lgkmcnt(0)")
    a.srd(20, P_WS, WS_SIZE)
    a("s_cmp_lg_u32 s45, 0")
    a("s_cbranch_scc1 E_NOINIT")
    for i in range(6):
        a(f"buffer_store_dword v{VZ}, v4, s[20:23], s33 offen sc1")
        if i < 5: a("s_addk_i32 s33, 8192")
    a.label("E_NOINIT")
    for i in range(6):
        a(f"global_load_dword v{RAW+i}, v13, {sr(P_PAR+2*i,2)}")
    a(f"s_load_dword s28, {sr(P_LDT,2)}, s34")
    a(f"s_load_dword s38, {sr(P_DSK,2)}, s34")
    a("s_cmp_lg_u32 s45, 0")
    a("s_cbranch_scc1 L_B")
    a("v_mov_b32 v4, 1")
    a("s_waitcnt vmcnt(6)")
    if "dI" in EXP: a("s_sleep 32")
    a("s_mov_b64 exec, 1")
    a(f"global_store_dword v{VZ}, v4, {sr(P_DBG,2)} sc1")
    a("s_mov_b64 exec, -1")
    a("s_branch L_B")

def gen_A(a):
    a.label("L_A")
    if "noA" in EXP: a("s_endpgm")
    a(f"s_setprio {PA}")
    if "dA" in EXP: a("s_sleep 32")
    a("s_lshr_b32 s33, s31, 1")
    a("s_lshl_b32 s33, s33, 2")
    a("s_and_b32 s34, s32, 3")
    a("s_add_u32 s25, s33, s34")
    a("s_and_b32 s27, s31, 1")
    a("s_lshr_b32 s54, s32, 2")
    a("s_lshl_b32 s33, s27, 3")
    a("s_add_u32 s26, s33, s54")
    XR, ACC, QACC, WF, NV, PK, T = 16, 128, 160, 176, 248, 224, 240
    XL = 32768
    a("s_lshl_b32 s33, s25, 2")
    a("s_add_u32 s35, s33, s24")
    a("s_mul_i32 s33, s35, 28672")
    a("v_lshrrev_b32 v13, 3, v1")
    a("v_mul_u32_u24 v12, 896, v13")
    a("v_and_b32 v14, 7, v1")
    a("v_lshrrev_b32 v15, 4, v1")
    a("v_xor_b32 v15, v15, v14")
    a("v_lshl_add_u32 v3, v15, 4, v12")
    a("v_add_u32 v3, s33, v3")
    a("v_xor_b32 v246, 64, v3")
    a(f"v_add_u32 v244, {6144}, v246")
    a(f"v_add_u32 v245, {6144*2}, v3")
    a(f"v_add_u32 v246, {6144*3}, v246")
    a("s_mul_i32 s40, s24, 12288")
    a(f"s_add_u32 s40, s40, {XL}")
    a("s_lshl_b32 s33, s34, 1")
    a("s_add_u32 s28, s33, s54")
    a("s_sub_u32 s33, s28, 7")
    a("s_cmp_ge_u32 s28, 7")
    a("s_cselect_b32 s28, s33, s28")
    if "norot" in EXP: a("s_mov_b32 s28, 0")
    a("s_mov_b32 s30, s28")
    a("v_bfe_u32 v15, v1, 4, 1")
    a("v_lshlrev_b32 v15, 2, v15")
    a("v_xor_b32 v15, v15, v14")
    a("v_mul_u32_u24 v4, 2688, v13")
    a("v_lshl_add_u32 v4, v15, 4, v4")
    a("s_min_u32 s55, s54, 6")
    a("s_mul_i32 s33, s24, 43008")
    a("s_mul_i32 s34, s27, 896")
    a("s_add_u32 s33, s33, s34")
    a("s_lshl_b32 s34, s55, 7")
    a("s_add_u32 s33, s33, s34")
    a("s_add_u32 s33, s33, 896")
    a("v_add_u32 v4, s33, v4")
    a(f"v_add_u32 v5, {21504-1024}, v4")
    a("s_lshl_b32 s36, s24, 11")
    a("s_waitcnt lgkmcnt(0)")
    a.stamp(1)
    a.srd(12, P_X, X_BYTES)
    a.srd(16, P_W, W_BYTES)
    def adv(r):
        a(f"s_add_u32 s{r}, s{r}, 1")
        a(f"s_cmp_eq_u32 s{r}, 7")
        a(f"s_cselect_b32 s{r}, 0, s{r}")
    QD = int(os.environ.get("QD", "14"))
    L = []
    for s_ in range(7):
        L += [("x", s_, 0), ("x", s_, 1), ("x", s_, 2), ("x", s_, 3), ("w", s_, 0), ("w", s_, 1)]
    L += [("n", 0, 0)] + [("q", i, 0) for i in range(7)]
    tag = {}; tagxf = {}
    lp = [0]; lastbar = [-1]; xfree = [-1]; light = [False]
    def issue():
        if lp[0] >= len(L): return
        while light[0] and L[lp[0]][0] == "w": lp[0] += 1
        k, s_, n = L[lp[0]]
        need = {"x": s_ - 3, "q": 4 + (s_ >> 2)}.get(k, -1)
        if need > xfree[0]: return
        if k == "w" and s_ >= 4 and lastbar[0] < s_ - 2: return
        lp[0] += 1
        if k == "x":
            if n == 0:
                if s_: adv(28)
                a(f"s_add_u32 m0, s40, {(s_%3)*4096}")
                a("s_lshl_b32 s29, s28, 7")
                a("s_mul_i32 s37, s28, 172032")
            tag[(k, s_, n)] = a.vm(f"buffer_load_dwordx4 v{3 if n == 0 else 243+n}, s[12:15], s29 offen offset:{1024*n} lds")
        elif k == "w":
            if n == 0:
                a(f"s_add_u32 m0, s36, {(s_%4)*8192}")
                a("s_nop 0")
            tag[(k, s_, n)] = a.vm(f"buffer_load_dwordx4 v{4+n}, s[16:19], s37 offen offset:{1024*n} lds")
        elif k == "n":
            nonce_issue(a, NV)
        else:
            a(f"s_add_u32 m0, s40, {4096 + 1024*s_}")
            a("s_mul_i32 s39, s30, 172032")
            a.vm(f"buffer_load_dwordx4 v14, s[16:19], s39 offen lds")
            if s_ < 6: adv(30)
    LSL = int(os.environ.get("LSL", "0"))
    if LSL:
        a("s_cmp_lg_u32 s54, 7")
        a("s_cbranch_scc1 A_GO")
        a(f"s_sleep {LSL}")
        a.label("A_GO")
    for _ in range(QD): issue()
    if "stopA" in EXP: a.stamp(7)
    a.srd(20, P_WS, WS_SIZE)
    if "Aload" in EXP:
        a("s_waitcnt vmcnt(0)"); a("s_endpgm")
    a("v_and_b32 v13, 31, v1")
    a("v_bfe_u32 v14, v1, 1, 3")
    a("v_lshrrev_b32 v15, 5, v1")
    a("v_xor_b32 v14, v14, v15")
    a("v_lshlrev_b32 v13, 7, v13")
    a("v_lshl_add_u32 v8, v14, 4, v13")
    a("v_add_u32 v8, s40, v8")
    for ks in range(1, 4):
        a(f"v_xor_b32 v{8+ks}, {32*ks}, v8")
    a(f"v_bfe_u32 v{T}, v1, 2, 2")
    a(f"v_lshl_add_u32 v{T+1}, v15, 3, v{T}")
    a(f"v_bfe_u32 v{T+2}, v1, 4, 1")
    a(f"v_and_b32 v{T+3}, 3, v1")
    a(f"v_lshl_add_u32 v{PK}, v{T+2}, 2, v{T+3}")
    a(f"v_and_b32 v{PK+1}, 1, v1")
    a(f"v_bfe_u32 v{PK+2}, v1, 1, 1")
    a(f"v_lshl_add_u32 v{PK+1}, v{PK+1}, 1, v{PK+2}")
    a(f"v_lshl_add_u32 v{PK+1}, v{T+2}, 2, v{PK+1}")
    a(f"v_bfe_u32 v{T+3}, v1, 3, 1")
    a(f"v_lshlrev_b32 v{T+3}, 6, v{T+3}")
    a(f"v_lshl_add_u32 v{T+3}, v{T+1}, 7, v{T+3}")
    a("s_cmp_eq_u32 s27, 1")
    a("s_cselect_b64 vcc, -1, 0")
    a(f"v_cndmask_b32 v12, v{PK+1}, v{PK}, vcc")
    a(f"v_lshl_add_u32 v12, v12, 3, v{T+3}")
    a("v_xor_b32 v13, 64, v12")
    a(f"v_add_u32 v{PK+2}, 2, v{PK+1}")
    a(f"v_sub_u32 v{PK+3}, 7, v{PK+1}")
    a(f"v_cmp_gt_u32 vcc, 6, v{PK+1}")
    a("s_bitcmp1_b32 s26, 0")
    a("s_cselect_b64 s[4:5], -1, 0")
    a(f"v_cndmask_b32 v{PK+2}, v{PK+3}, v{PK+2}, vcc")
    a(f"v_cndmask_b32 v{PK+2}, v{PK+1}, v{PK+2}, s[4:5]")
    a(f"v_lshlrev_b32 v15, 6, v{T+1}")
    a(f"v_lshl_add_u32 v15, v{PK+2}, 3, v15")
    a(f"v_add_u32 v15, {XL + 4096}, v15")
    a("v_lshrrev_b32 v14, 2, v1")
    a("v_mul_u32_u24 v14, 2688, v14")
    a(f"v_and_b32 v{T}, 3, v1")
    a(f"v_lshl_add_u32 v14, v{T}, 4, v14")
    a("s_mul_i32 s33, s26, 56")
    a("s_and_b32 s33, s33, -16")
    a(f"s_mul_i32 s34, s24, {16*2688}")
    a("s_add_u32 s33, s33, s34")
    a("v_add_u32 v14, s33, v14")
    a("s_mul_i32 s33, s54, 2341")
    a("s_lshr_b32 s33, s33, 10")
    a(f"v_add_u32 v{PK}, s33, v1")
    a(f"v_mul_u32_u24 v{PK+1}, 28, v{PK}")
    a(f"v_lshrrev_b32 v{PK+1}, 6, v{PK+1}")
    a(f"v_cmp_ge_u32 s[56:57], s54, v{PK+1}")
    a(f"v_lshlrev_b32 v243, 9, v{PK}")
    a("s_lshr_b32 s42, s25, 2")
    a("s_lshl_b32 s42, s42, 7")
    a(f"s_add_u32 s42, s42, {F_KV}")
    a("s_and_b64 s[56:57], s[56:57], 15")
    a("s_cmp_eq_u32 s54, 7")
    a("s_cbranch_scc1 A_LIGHT")
    a("s_cmp_eq_u32 s27, 1")
    a("s_cbranch_scc1 A_V")

    def pass1(vtype):
        tagtr = {}
        NB = 6; TD = 3
        NIS = int(os.environ.get("NIS", "2"))
        def trload(u):
            s, ks = u >> 2, u & 3
            for t in range(2):
                for hr in range(2):
                    off = (s % 4) * 8192 + (16 * ks + 4 * hr) * 128
                    tagtr[u] = a.ds(f"ds_read_b64_tr_b16 {vr(WF+(u%NB)*8+4*t+2*hr,2)}, v{12+t} offset:{off}")
        pend = None
        for u in range(-4, 28):
            if u >= 0:
                a.wait_ds(max(tagtr[u], tagxf[u >> 2]))
                for t in range(2):
                    wf = vr(WF + (u % NB) * 8 + 4 * t, 4); xf = vr(XR + 4 * u, 4)
                    c = "0" if u == 0 else vr(ACC + 16 * t, 16)
                    if vtype:
                        a(f"{MF32} {vr(ACC+16*t,16)}, {xf}, {wf}, {c}")
                    else:
                        a(f"{MF32} {vr(ACC+16*t,16)}, {wf}, {xf}, {c}")
            if (u + TD) % 4 == 0 and (u + TD) // 4 < 7:
                sb = (u + TD) // 4
                a.wait_vm(tag[("w", sb, 1)])
                a("s_barrier")
                lastbar[0] = sb
                if sb in (0, 6): a.stamp(2 + sb // 6)
            if pend is not None:
                a.wait_ds(tagxf[pend]); xfree[0] = pend; pend = None
            if 0 <= u + TD < 28:
                trload(u + TD)
            if u % 4 == 0 and u // 4 + 1 < 7:
                s = u // 4 + 1
                a.wait_vm(tag[("x", s, 3)])
                for ks in range(4):
                    tagxf[s] = a.ds(f"ds_read_b128 {vr(XR+16*s+4*ks,4)}, v{8+ks} offset:{(s%3)*4096}")
                pend = s
            for _ in range(NIS): issue()
        assert lp[0] == len(L), lp
    saved = (a.nvm, a.nds, lp[0])
    a("v_mov_b32 v247, v2")
    a(f"s_mul_i32 s38, s35, {KTS}")
    a("s_lshl_b32 s33, s55, 12")
    a("s_add_u32 s38, s38, s33")
    a("s_add_u32 s41, s38, 1024")
    a("s_add_u32 s43, s38, 2048")
    a("s_add_u32 s44, s38, 3072")
    pass1(False)
    a("s_branch A_ST")
    a.label("A_V")
    a.nvm, a.nds, lp[0] = saved; lastbar[0] = -1; xfree[0] = -1
    a("v_lshrrev_b32 v247, 5, v1")
    a(f"v_mul_u32_u24 v247, {8064-512}, v247")
    a("v_add_u32 v247, v247, v2")
    a(f"s_mul_i32 s38, s35, {VTS}")
    a("s_mul_i32 s33, s55, 1152")
    a("s_add_u32 s38, s38, s33")
    a(f"s_add_u32 s38, s38, {VF}")
    a("s_add_u32 s41, s38, 16128")
    a("s_add_u32 s43, s38, 512")
    a("s_add_u32 s44, s41, 512")
    a(f"v_lshrrev_b32 v{T}, 1, v1")
    a(f"v_mul_u32_u24 v{T}, 8064, v{T}")
    a(f"v_and_b32 v{T+1}, 1, v1")
    a(f"v_lshl_add_u32 v{T}, v{T+1}, 4, v{T}")
    a(f"v_subrev_u32 v{T+1}, 1, v{T+1}")
    for i in range(4):
        a(f"v_and_b32 v{PK+i}, 0x3f803f80, v{T+1}")
    a("s_mov_b64 exec, 0xff")
    a(f"buffer_store_dwordx4 {vr(PK,4)}, v{T}, s[20:23], s38 offen offset:1024{SC}")
    a("s_mov_b64 exec, -1")
    pass1(True)
    a.label("A_ST")
    a.nop(11)
    for t in range(2):
        for r in range(0, 16, 2):
            a(f"v_cvt_pk_bf16_f32 v{PK+8*t+r//2}, v{ACC+16*t+r}, v{ACC+16*t+r+1}")
        for f in range(2):
            a(f"buffer_store_dwordx4 {vr(PK+8*t+4*f,4)}, v247, s[20:23], s{(38,41,43,44)[2*t+f]} offen{SC}")
    a("s_waitcnt vmcnt(4)")
    a("s_branch A_P2")
    a.label("A_LIGHT")
    a.nvm, a.nds, lp[0] = saved; xfree[0] = -1; light[0] = True
    for _ in range(6): issue()
    for s_ in range(7):
        a.wait_vm(tag[("x", s_, 3)])
        for ks in range(4):
            a.ds(f"ds_read_b128 {vr(XR+16*s_+4*ks,4)}, v{8+ks} offset:{(s_%3)*4096}")
        a("s_waitcnt lgkmcnt(0)")
        xfree[0] = s_
        for _ in range(6): issue()
    assert lp[0] == len(L)
    a("s_waitcnt vmcnt(0)")
    a.label("A_P2")
    if "dP" in EXP: a("s_sleep 32")
    a.stamp(4)
    a("s_barrier")
    Q, O, S, P, KB, VB, NM, MX, T2 = 16, 48, 112, 144, 160, 192, 224, 228, 232
    VK0, VK1, VV0, VV1, C1, C2 = 10, 11, 12, 13, 252, 253
    class Rec:
        def __init__(self): self.ch = []
        def __call__(self, *ins): self.ch.append(list(ins))
    c = Rec()
    c("s_mul_i32 s33, s26, 28"); c("s_lshr_b32 s44, s33, 6"); c("s_add_u32 s34, s33, 27"); c("s_lshr_b32 s34, s34, 6")
    c("s_sub_u32 s34, s34, s44"); c("s_lshl_b32 s34, s34, 3"); c("s_add_u32 s58, s34, 8")
    c("v_lshrrev_b32 v4, 5, v1")
    c("s_lshl_b32 s34, s26, 9"); c("s_lshl_b32 s36, s24, 7"); c("s_add_u32 s34, s34, s36"); c(f"s_add_u32 s53, s34, {F_KV}")
    c(f"s_mov_b32 s46, {hex(f2u(QSCALE))}"); c("s_mov_b32 s47, s46")
    c("s_lshl_b32 s36, s24, 11"); c("v_add_u32 v6, s36, v2")
    for t in range(1, 4): c(f"v_xor_b32 v{6+t}, {2048*t}, v6")
    c("s_lshr_b32 s34, s26, 1"); c("s_mul_i32 s34, s34, 3584"); c("s_and_b32 s36, s26, 1"); c("s_lshl_b32 s37, s36, 11")
    c("s_add_u32 s34, s34, s37"); c(f"v_add_u32 v{VK0}, s34, v2"); c(f"v_add_u32 v{VK1}, 1024, v{VK0}")
    c(f"s_mul_i32 s37, s36, {2048-8}")
    c("s_mov_b32 exec_lo, 0", f"v_subrev_u32 v{VK1}, s37, v{VK1}", "s_mov_b32 exec_lo, -1")
    c("v_and_b32 v5, 31, v1"); c("v_add_u32 v3, s33, v5"); c("v_lshrrev_b32 v5, 6, v3"); c("v_lshlrev_b32 v5, 7, v5")
    c(f"v_lshl_add_u32 v{VV0}, v3, 4, v5")
    c("s_mul_i32 s34, s44, 1152"); c("s_add_u32 s34, s34, 1024"); c("s_add_u32 s37, s34, 16")
    c("s_mov_b32 exec_lo, 0xf0000000", "s_mov_b32 exec_hi, 0xf0000000", f"v_mov_b32 v{VV0}, s37", "s_mov_b64 exec, -1")
    c(f"v_writelane_b32 v{VV0}, s34, 28"); c(f"v_writelane_b32 v{VV0}, s34, 60")
    c("s_movk_i32 s34, 8064"); c(f"v_mad_u32_u24 v{VV0}, v4, s34, v{VV0}"); c(f"v_add_u32 v{VV1}, 16128, v{VV0}")
    c(f"s_mul_i32 s34, s24, {16*KTS}"); c(f"s_mul_i32 s37, s24, {16*VTS}"); c(f"s_add_u32 s37, s37, {VF}")
    for d, sz, off in ((12, 16 * KTS, "s34"), (16, 16 * VTS, "s37")):
        c(f"s_add_u32 s{d}, s{P_WS}, {off}", f"s_addc_u32 s{d+1}, s{P_WS+1}, 0")
        c(f"s_mov_b32 s{d+2}, {sz}"); c(f"s_mov_b32 s{d+3}, 0x00020000")
    c(f"v_mov_b32 v{C1}, 0x3f803f80"); c(f"v_mov_b32 v{C2}, 0x3f80")
    for r in range(8): c(f"v_mov_b32 v{VB+24+r}, 0")
    for t in range(4): c(f"v_mov_b32 v{NM+t}, 0")
    c("s_mov_b32 s41, 0")
    c("s_cmp_eq_u32 s54, 7", "s_cselect_b32 s59, 1, s24")
    tq = {}
    def trq(u):
        for hr in range(2):
            tq[u] = a.ds(f"ds_read_b64_tr_b16 {vr(WF+(u%8)*4+2*hr,2)}, v15 offset:{(u&3)*12288+(u>>2)*1024+256*hr}")
    for u in range(6): trq(u)
    nonce_take(a, NV)
    for u in range(28):
        if u + 6 < 28: trq(u + 6)
        a.wait_ds(tq[u])
        cc = "0" if u == 0 else vr(QACC, 16)
        a(f"{MF32} {vr(QACC,16)}, {vr(WF+(u%8)*4,4)}, {vr(XR+4*u,4)}, {cc}")
        n = 0
        while c.ch and n < 3:
            for ins in c.ch.pop(0): a(ins); n += 1
    assert not c.ch, len(c.ch)
    def zero_acc():
        for t in range(4):
            a(f"{MF32} {vr(O+16*t,16)}, {vr(VB+24,4)}, {vr(VB+24,4)}, 0")
    zero_acc()
    a("s_cmp_lg_u32 s59, 0")
    a("s_waitcnt vmcnt(0)")
    a("s_barrier")
    a("s_cbranch_scc1 A_NOPUB")
    cnt_add(a, NV, "s42", 243, "s[56:57]")
    a.label("A_NOPUB")
    a.stamp(5)
    if "stopA" in EXP:
        fin(a, 6); a("s_endpgm")
    a.nop(4)
    for r in range(0, 16, 2):
        a(f"v_pk_mul_f32 {vr(QACC+r,2)}, {vr(QACC+r,2)}, s[46:47]")
    for r in range(0, 16, 2):
        a(f"v_cvt_pk_bf16_f32 v{Q+r//2}, v{QACC+r}, v{QACC+r+1}")
    a("s_mov_b32 exec_lo, 0")
    a(f"v_mov_b32 v{Q+6}, 0")
    a(f"v_mov_b32 v{Q+7}, 0")
    a("s_mov_b32 exec_lo, -1")
    for f in range(2):
        a(f"ds_write_b128 v6, {vr(Q+4*f,4)} offset:{1024*f}")
    cnt_load(a, NV + 2, "s53")
    a("s_waitcnt lgkmcnt(0)")
    a("s_barrier")
    for t in range(1, 4):
        for f in range(2):
            a(f"ds_read_b128 {vr(Q+8*t+4*f,4)}, v{6+t} offset:{1024*f}")
    a("s_waitcnt vmcnt(0)")
    cnt_wait(a, NV + 2, "s53", "s58")
    a.stamp(6)
    def first_loads():
        a("s_mov_b32 s44, 0")
        a("s_mov_b32 s45, 0")
        for kt in range(4):
            for f in range(2):
                r = a.vm(f"buffer_load_dwordx4 {vr(KB+8*kt+4*f,4)}, v{VK0+f}, s[12:15], s44 offen{SC}")
            a(f"s_addk_i32 s44, {KTS}")
            if kt == 0: tag = r
            if kt < 3:
                for f in range(2):
                    a.vm(f"buffer_load_dwordx4 {vr(VB+8*kt+4*f,4)}, v{VV0+f}, s[16:19], s45 offen{SC}")
                a(f"s_addk_i32 s45, {VTS}")
        return tag
    def patch(kb):
        a(f"v_mov_b32_dpp v{kb+6}, v{C1} quad_perm:[0,1,2,3] row_mask:0xc bank_mask:0xf")
        a(f"v_mov_b32_dpp v{kb+7}, v{C2} quad_perm:[0,1,2,3] row_mask:0xc bank_mask:0xf")
    tagk0 = first_loads()
    a("s_mov_b32 s42, 0x07060302")
    a("s_min_u32 s33, s32, 27")
    a("s_and_b32 s34, s33, 3")
    a("s_lshl_b32 s47, s31, 2")
    a("s_add_u32 s47, s47, s34")
    a("s_lshr_b32 s48, s33, 2")
    a("s_lshr_b32 s49, s24, 1")
    a("s_lshl_b32 s33, s47, 1")
    a("s_add_u32 s49, s49, s33")
    a("s_and_b32 s50, s24, 1")
    a("s_lshl_b32 s33, s48, 1")
    a("s_add_u32 s50, s50, s33")
    a("v_bfe_u32 v5, v1, 2, 2")
    a("v_lshlrev_b32 v9, 7, v5")
    a("v_bfe_u32 v5, v1, 4, 1")
    a("v_lshl_add_u32 v9, v5, 6, v9")
    a("v_and_b32 v5, 3, v1")
    a("v_lshl_add_u32 v9, v5, 4, v9")
    a("v_lshl_add_u32 v9, v4, 9, v9")
    for t in range(1, 4):
        a(f"s_xor_b32 s33, s24, {t}")
        a("s_mul_i32 s33, s33, 12288")
        a(f"s_add_u32 s33, s33, {(t-1)*4096}")
        a(f"v_add_u32 v{3+t}, s33, v2")
    a("s_mul_i32 s33, s24, 12288")
    a("v_add_u32 v7, s33, v2")
    a("v_or_b32 v8, 512, v7")
    a("s_lshl_b32 s33, s35, 4")
    a("s_add_u32 s33, s33, s26")
    a("s_lshl_b32 s43, s33, 11")
    a(f"s_add_u32 s43, s43, {OF}")
    a("s_lshr_b32 s51, s35, 1")
    a("s_lshl_b32 s51, s51, 9")
    a("s_lshr_b32 s33, s26, 2")
    a("s_lshl_b32 s33, s33, 7")
    a("s_add_u32 s51, s51, s33")
    a(f"s_add_u32 s51, s51, {F_O}")
    a("s_lshl_b32 s33, s50, 7")
    a(f"s_add_u32 s33, s33, {F_B}")
    a("v_mov_b32 v14, s33")
    a("v_mov_b32 v15, 64")
    a("s_lshl_b32 s33, s49, 7")
    a(f"s_add_u32 s33, s33, {F_G}")
    a("v_writelane_b32 v14, s33, 1")
    a("v_writelane_b32 v15, 2, 1")
    a("s_lshl_b32 s33, s24, 7")
    a(f"s_add_u32 s33, s33, {F_WO}")
    a("v_writelane_b32 v14, s33, 2")
    a("v_writelane_b32 v15, 16, 2")
    a("s_waitcnt lgkmcnt(0)")
    a.wait_vm(tagk0)
    a.stamp(7)
    if "dL" in EXP: a("s_sleep 32")
    TT = [S, S + 16, T2, P]
    patch(KB)
    a("s_nop 0")
    for t in range(4):
        a(f"{MF32} {vr(TT[t],16)}, {vr(KB,4)}, {vr(Q+8*t,4)}, 0")
        a(f"{MF32} {vr(TT[t],16)}, {vr(KB+4,4)}, {vr(Q+8*t+4,4)}, {vr(TT[t],16)}")
    a.nop(8)
    for tp in (0, 2):
        for i in range(8):
            for t in (tp, tp + 1):
                if i == 0:
                    a(f"v_max3_f32 v{MX+t}, v{TT[t]}, v{TT[t]+1}, v{TT[t]+2}")
                elif i < 7:
                    a(f"v_max3_f32 v{MX+t}, v{MX+t}, v{TT[t]+2*i+1}, v{TT[t]+2*i+2}")
                else:
                    a(f"v_max_f32 v{MX+t}, v{MX+t}, v{TT[t]+15}")
    a.label("A_SETMAX")
    for t in range(4):
        a(f"v_mov_b32 v{T2+t}, v{MX+t}")
    for r in range(2):
        a(f"v_mov_b32 v{P+8+r}, 0")
    for t in range(4):
        a(f"v_permlane32_swap_b32 v{T2+t}, v{MX+t}")
    for t in range(4):
        a(f"v_max_f32 v{MX+t}, v{MX+t}, v{T2+t}")
    for t in range(4):
        a(f"v_sub_f32 v{NM+t}, v{NM+t}, v{MX+t}")
    for t in range(4):
        a(f"v_and_b32 v{T2+t}, 0xffff0000, v{NM+t}")
    for t in range(4):
        a(f"v_sub_f32 v{T2+t}, v{NM+t}, v{T2+t}")
    for t in range(4):
        a(f"v_and_b32 v{T2+4+t}, 0xffff0000, v{T2+t}")
    for t in range(4):
        a(f"v_sub_f32 v{T2+4+t}, v{T2+t}, v{T2+4+t}")
    a("s_mov_b32 exec_lo, 0")
    for t in range(4):
        a(f"v_perm_b32 v{Q+8*t+6}, v{T2+t}, v{NM+t}, s42")
        a(f"v_lshrrev_b32 v{Q+8*t+7}, 16, v{T2+4+t}")
    a("s_mov_b32 exec_lo, -1")
    a(f"{MF32} {vr(S,16)}, {vr(KB,4)}, {vr(Q,4)}, 0")
    a(f"{MF32} {vr(S,16)}, {vr(KB+4,4)}, {vr(Q+4,4)}, {vr(S,16)}")
    for r in range(2, 8):
        a(f"v_mov_b32 v{P+8+r}, 0")
    a("s_mov_b32 s46, 4")
    a("s_setprio 0")
    a.nop(3)
    a.label("A_LOOP")
    for n in range(16):
        kt, t = n >> 2, n & 3
        n1 = (n + 1) & 15; kt1, t1 = n1 >> 2, n1 & 3
        n0 = (n - 1) & 15; kt0, t0 = n0 >> 2, n0 & 3
        sc = S + 16 * (n & 1); sn = S + 16 * (n1 & 1)
        pc = P + 8 * (n & 1); pp = P + 8 * (n0 & 1)
        mf = [f"{MF32} {vr(sn,16)}, {vr(KB+8*kt1,4)}, {vr(Q+8*t1,4)}, 0",
              f"{MF32} {vr(sn,16)}, {vr(KB+8*kt1+4,4)}, {vr(Q+8*t1+4,4)}, {vr(sn,16)}",
              f"{MF32} {vr(O+16*t0,16)}, {vr(VB+8*kt0,4)}, {vr(pp,4)}, {vr(O+16*t0,16)}",
              f"{MF32} {vr(O+16*t0,16)}, {vr(VB+8*kt0+4,4)}, {vr(pp+4,4)}, {vr(O+16*t0,16)}"]
        for m in range(4):
            if (m == 0 and t == 3) or (m == 2 and t == 1):
                a("s_waitcnt vmcnt(12)")
            a(mf[m])
            if m == 0 and t == 3:
                patch(KB + 8 * kt1)
            for e in range(4):
                a(f"v_exp_f32 v{sc+4*m+e}, v{sc+4*m+e}")
                if m == 1 and t == 2 and e in (0, 1):
                    a(f"buffer_load_dwordx4 {vr(KB+8*kt+4*e,4)}, v{VK0+e}, s[12:15], s44 offen{SC}")
                if m == 1 and t == 2 and e == 2:
                    a(f"s_addk_i32 s44, {KTS}")
                if m == 3 and t == 0 and e in (0, 1):
                    a(f"buffer_load_dwordx4 {vr(VB+8*kt0+4*e,4)}, v{VV0+e}, s[16:19], s45 offen{SC}")
                if m == 3 and t == 0 and e == 2:
                    a(f"s_addk_i32 s45, {VTS}")
                if n == 0 and m == 3 and e == 3:
                    a("s_cmp_lg_u32 s46, 1")
                    a("s_cbranch_scc1 A_NOFL")
                    late_load(a, 248, 14)
                    a.label("A_NOFL")
                if n == 15 and m == 3 and e == 0:
                    a("s_sub_u32 s46, s46, 1")
                if n == 15 and m == 3 and e == 1:
                    a("s_cmp_lg_u32 s46, 0")
            for c in range(2):
                a(f"v_cvt_pk_bf16_f32 v{pc+2*m+c}, v{sc+4*m+2*c}, v{sc+4*m+2*c+1}")
    a("s_cbranch_scc1 A_LOOP")
    a.stamp(8)
    a("s_nop 0")
    a(f"{MF32} {vr(O+48,16)}, {vr(VB+24,4)}, {vr(P+8,4)}, {vr(O+48,16)}")
    a(f"{MF32} {vr(O+48,16)}, {vr(VB+28,4)}, {vr(P+12,4)}, {vr(O+48,16)}")
    a("v_mov_b32 v3, 0x5f800000")
    a("s_mov_b32 exec_lo, 0")
    for t in range(3):
        a(f"v_cmp_nlt_f32 {sr(4+2*t,2)}, v{O+16*t+12}, v3")
    for t in range(1, 3):
        a(f"v_mov_b32 v{O+16*t+13}, v{NM+t}")
    a("s_mov_b32 exec_lo, -1")
    for t in range(1, 3):
        for q in range(4):
            a(f"ds_write_b128 v{3+t}, {vr(O+16*t+4*q,4)} offset:{1024*q}")
    a("s_mov_b32 exec_lo, 0")
    a(f"v_cmp_nlt_f32 vcc, v{O+48+12}, v3")
    a(f"v_mov_b32 v{O+48+13}, v{NM+3}")
    a("s_mov_b32 exec_lo, -1")
    a("s_or_b32 s5, s5, s7")
    a("s_or_b32 s5, s5, s9")
    a("s_or_b32 s5, s5, vcc_hi")
    a("s_andn2_b32 s5, s5, s41")
    a("s_cbranch_scc1 A_FALLBACK")
    for q in range(4):
        a(f"ds_write_b128 v6, {vr(O+48+4*q,4)} offset:{1024*q}")
    a(f"v_mov_b32 v{T2}, v{O+12}")
    a(f"v_mov_b32 v{T2+1}, v{O+12}")
    a("v_add_u32 v10, 4096, v2")
    a("s_lshl_b32 s33, s24, 13")
    a(f"s_add_u32 s33, s33, {WOF}")
    a("s_lshl_b32 s36, s50, 15")
    a("s_add_u32 s36, s36, s33")
    a("s_xor_b32 s37, s50, 1")
    a("s_lshl_b32 s37, s37, 15")
    a("s_add_u32 s37, s37, s33")
    a("v_lshrrev_b32 v11, 5, v1")
    a("v_lshlrev_b32 v12, 6, v11")
    a("s_lshl_b32 s38, s49, 7")
    a(f"s_add_u32 s38, s38, {GO}")
    a("v_and_b32 v13, 31, v1")
    a("v_lshlrev_b32 v3, 12, v13")
    a("v_lshl_add_u32 v3, v11, 4, v3")
    a("s_lshl_b32 s39, s50, 17")
    a("s_lshr_b32 s34, s49, 4")
    a("s_lshl_b32 s34, s34, 10")
    a("s_add_u32 s39, s39, s34")
    a("s_and_b32 s34, s49, 15")
    a("s_lshl_b32 s34, s34, 5")
    a("s_add_u32 s39, s39, s34")
    a(f"s_add_u32 s39, s39, {BT}")
    a("s_waitcnt lgkmcnt(0)")
    a("s_barrier")
    LM = T2 + 2
    for s in range(3):
        a(f"ds_read_b64 {vr(LM+2*s,2)}, v8 offset:{4096*s+3072}")
    RB = O + 16
    for s in range(3):
        for q in range(4):
            a(f"ds_read_b128 {vr(RB+16*s+4*q,4)}, v7 offset:{4096*s+1024*q}")
    a(f"v_permlane32_swap_b32 v{T2}, v{T2+1}")
    a("s_waitcnt lgkmcnt(12)")
    a(f"v_min3_f32 v{MX}, v{NM}, v{LM+1}, v{LM+3}")
    a(f"v_min_f32 v{MX}, v{MX}, v{LM+5}")
    a(f"v_sub_f32 v{S}, v{MX}, v{NM}")
    for s in range(3):
        a(f"v_sub_f32 v{S+2+2*s}, v{MX}, v{LM+2*s+1}")
    for s in range(4):
        a(f"v_exp_f32 v{S+2*s}, v{S+2*s}")
    a(f"v_mul_f32 v{MX+1}, v{S}, v{T2+1}")
    for s in range(3):
        a(f"v_fmac_f32 v{MX+1}, v{S+2+2*s}, v{LM+2*s}")
    a(f"v_rcp_f32 v{MX+1}, v{MX+1}")
    a("s_nop 0")
    for s in range(4):
        a(f"v_mul_f32 v{S+2*s}, v{S+2*s}, v{MX+1}")
    for r in range(0, 16, 2):
        a(f"v_pk_mul_f32 {vr(O+r,2)}, {vr(O+r,2)}, {vr(S,2)} op_sel_hi:[1,0]")
    for s in range(3):
        a(f"s_waitcnt lgkmcnt({8-4*s})")
        for r in range(0, 16, 2):
            a(f"v_pk_fma_f32 {vr(O+r,2)}, {vr(RB+16*s+r,2)}, {vr(S+2+2*s,2)}, {vr(O+r,2)} op_sel_hi:[1,0,1]")
    for r in range(0, 16, 2):
        a(f"v_cvt_pk_bf16_f32 v{P+r//2}, v{O+r}, v{O+r+1}")
    a("s_mov_b32 exec_lo, 0")
    a(f"v_mov_b32 v{P+6}, 0")
    a(f"v_mov_b32 v{P+7}, 0")
    a("s_mov_b32 exec_lo, -1")
    a.nvm = 0
    for f in range(2):
        tagos = a.vm(f"buffer_store_dwordx4 {vr(P+4*f,4)}, v9, s[20:23], s43 offen offset:{1024*f}{SC}")
    a.stamp(9)
    a("s_barrier")
    late_check(a, 248, 14, 15)
    WB, GG, BB = KB, Q, Q + 16
    NPRE = int(os.environ.get("NPRE", "4"))
    def wo_load(i):
        for x in range(2):
            a.vm(f"buffer_load_dwordx4 {vr(WB+8*i+4*x,4)}, v{2 if i<4 else 10}, s[20:23], s{36+x} offen offset:{1024*(i&3)}{SC}")
    for i in range(NPRE): wo_load(i)
    a("s_lshl_b32 s52, s47, 9")
    a("s_lshl_b32 s33, s24, 7")
    a("s_add_u32 s52, s52, s33")
    a(f"s_add_u32 s52, s52, {F_O}")
    a.wait_vm(tagos)
    cnt_add(a, 252, "s51")
    a("s_cmp_ge_u32 s32, 28")
    a("s_cbranch_scc1 L_END")
    for i in range(NPRE, 8): wo_load(i)
    for i in range(4):
        a.vm(f"buffer_load_dwordx4 {vr(GG+4*i,4)}, v12, s[20:23], s38 offen offset:{16*i}{SC}")
    for i in range(2):
        a.vm(f"buffer_load_dwordx4 {vr(BB+4*i,4)}, v3, s[20:23], s39 offen offset:{512*i}{SC}")
    cnt_load(a, 250, "s52")
    a("s_lshl_b32 s33, s24, 13")
    a(f"s_add_u32 s33, s33, {OF}")
    a("s_lshl_b32 s36, s49, 15")
    a("s_add_u32 s36, s36, s33")
    a("s_xor_b32 s37, s49, 1")
    a("s_lshl_b32 s37, s37, 15")
    a("s_add_u32 s37, s37, s33")
    a.srd(12, P_OUT, X_BYTES)
    a("v_mul_u32_u24 v12, 14336, v11")
    a("v_lshl_add_u32 v12, v13, 1, v12")
    a("s_mul_i32 s44, s49, 28672")
    a("s_lshl_b32 s33, s50, 6")
    a("s_add_u32 s44, s44, s33")
    for i in range(1, 4):
        a(f"s_add_u32 s{44+i}, s44, {3584*i}")
    a("s_waitcnt vmcnt(0)")
    BU = 232
    for i in range(8):
        a(f"v_lshlrev_b32 v{BU+2*i}, 16, v{BB+i}")
        a(f"v_and_b32 v{BU+2*i+1}, 0xffff0000, v{BB+i}")
    cnt_wait(a, 250, "s52", 8)
    a.stamp(10)
    AF = O
    tags = []
    for i in range(8):
        for x in range(2):
            t = a.vm(f"buffer_load_dwordx4 {vr(AF+8*i+4*x,4)}, v{2 if i<4 else 10}, s[20:23], s{36+x} offen offset:{1024*(i&3)}{SC}")
        tags.append(t)
    AC = [BB, S, S + 16, P]
    for i in range(8):
        a.wait_vm(tags[i])
        for t in (3, 2, 1, 0):
            sa, sb = t >> 1, t & 1
            c = "0" if i == 0 else vr(AC[t], 16)
            a(f"{MF32} {vr(AC[t],16)}, {vr(AF+8*i+4*sa,4)}, {vr(WB+8*i+4*sb,4)}, {c}")
    a.nop(9)
    a.stamp(11)
    for t in (3, 2, 1):
        for q in range(4):
            a(f"ds_write_b128 v{3+t}, {vr(AC[t]+4*q,4)} offset:{1024*q}")
    for r in range(0, 16, 2):
        a(f"v_pk_add_f32 {vr(AC[0]+r,2)}, {vr(AC[0]+r,2)}, {vr(BU+r,2)} neg_lo:[0,1] neg_hi:[0,1]")
    a("s_waitcnt lgkmcnt(0)")
    a("s_barrier")
    for s in range(3):
        for q in range(4):
            a(f"ds_read_b128 {vr(AF+16*s+4*q,4)}, v7 offset:{4096*s+1024*q}")
    for s in range(3):
        a(f"s_waitcnt lgkmcnt({8-4*s})")
        for r in range(0, 16, 2):
            a(f"v_pk_add_f32 {vr(AC[0]+r,2)}, {vr(AC[0]+r,2)}, {vr(AF+16*s+r,2)}")
    for r in range(0, 16, 2):
        a(f"v_pk_fma_f32 {vr(AC[0]+r,2)}, {vr(AC[0]+r,2)}, {vr(GG+r,2)}, {vr(BU+r,2)}")
    for r in range(0, 16, 2):
        a(f"v_cvt_pk_bf16_f32 v{AF+r//2}, v{AC[0]+r}, v{AC[0]+r+1}")
    for r in range(16):
        op = "buffer_store_short_d16_hi" if r & 1 else "buffer_store_short"
        a(f"{op} v{AF+r//2}, v12, s[12:15], s{44+(r>>2)} offen offset:{896*(r&3)}")
    fin(a, 12)
    a("s_endpgm")
    a.label("A_FALLBACK")
    a("s_mov_b32 s41, -1")
    for t in range(4):
        a(f"v_mov_b32 v{MX+t}, 0xff800000")
    a("s_mov_b32 s44, 0")
    a("s_waitcnt vmcnt(0) lgkmcnt(0)")
    a.label("A_FBLOOP")
    for f in range(2):
        a(f"buffer_load_dwordx4 {vr(KB+4*f,4)}, v{VK0+f}, s[12:15], s44 offen{SC}")
    a("s_waitcnt vmcnt(0)")
    patch(KB)
    a("s_nop 1")
    for t in range(4):
        a(f"{MF32} {vr(O+16*t,16)}, {vr(KB,4)}, {vr(Q+8*t,4)}, 0")
        a(f"{MF32} {vr(O+16*t,16)}, {vr(KB+4,4)}, {vr(Q+8*t+4,4)}, {vr(O+16*t,16)}")
    a.nop(16)
    for i in range(8):
        for t in range(4):
            a(f"v_max3_f32 v{MX+t}, v{MX+t}, v{O+16*t+2*i}, v{O+16*t+2*i+1}")
    a(f"s_addk_i32 s44, {KTS}")
    a(f"s_cmp_lt_u32 s44, {16*KTS}")
    a("s_cbranch_scc1 A_FBLOOP")
    for r in range(8):
        a(f"v_mov_b32 v{VB+24+r}, 0")
    first_loads()
    zero_acc()
    a("s_waitcnt vmcnt(0)")
    patch(KB)
    a("s_branch A_SETMAX")

def gen_B(a):
    a.label("L_B")
    a(f"s_setprio {PB}")
    a.stamp(1)
    if "noB" in EXP: a("s_endpgm")
    if "dB" in EXP:
        a("s_waitcnt vmcnt(0)"); a("s_sleep 32")
    TS = 272; TW = 64 * TS
    UB = 4 * TW
    US = 4608
    YB, XB, KACC, FR, CT = 16, 80, 136, 152, 216
    Z1, Z256, TM = 224, 226, 226
    a(f"s_mul_i32 s29, s24, {TW}")
    a("s_mov_b32 m0, s29")
    a("v_mov_b32 v15, 0x3f80")
    a(f"ds_write_addtid_b32 v15 offset:{32*TS}")
    a("v_and_b32 v12, 31, v1")
    a(f"v_mul_u32_u24 v12, {TS}, v12")
    a("v_lshrrev_b32 v13, 5, v1")
    a("v_lshl_add_u32 v12, v13, 4, v12")
    a("v_add_u32 v240, s29, v12")
    for r in range(16):
        a(f"v_mov_b32 v{KACC+r}, 0")
    a(f"v_mul_u32_u24 v12, {US-512}, v13")
    a("v_add_u32 v12, v12, v2")
    a(f"v_add_u32 v12, {UB}, v12")
    a(f"ds_write_b128 v12, {vr(KACC,4)}")
    a("s_and_b32 s42, s2, 31")
    a("s_lshl_b32 s42, s42, 7")
    a(f"s_add_u32 s42, s42, {F_XT}")
    a("v_lshrrev_b32 v12, 1, v1")
    a("v_and_b32 v13, 1, v1")
    a(f"v_mul_u32_u24 v3, {XTS}, v12")
    a("v_lshl_add_u32 v3, v13, 4, v3")
    a(f"s_mul_i32 s43, s24, {64*XTS}")
    a("s_mul_i32 s33, s31, 896")
    a("s_add_u32 s43, s43, s33")
    a("s_lshl_b32 s33, s39, 4")
    a("s_add_u32 s43, s43, s33")
    a(f"s_add_u32 s43, s43, {XT}")
    a(f"s_add_u32 s44, s43, {32*XTS}")
    a(f"v_mul_u32_u24 v241, {US}, v13")
    a("v_lshl_add_u32 v241, v12, 4, v241")
    a("s_lshl_b32 s33, s24, 10")
    a(f"s_add_u32 s33, s33, {UB + 512}")
    a("v_add_u32 v241, s33, v241")
    a("s_waitcnt lgkmcnt(0)")
    a("s_and_b32 s33, s26, 1")
    a("s_lshl_b32 s33, s33, 4")
    a("s_lshr_b32 s28, s28, s33")
    a("s_lshl_b32 s28, s28, 16")
    a("s_lshr_b32 s38, s38, s33")
    a("s_lshl_b32 s38, s38, 16")
    hi = float(np.float32(LOG2E)); lo = float(np.float32(LOG2E - hi))
    a(f"v_mov_b32 v13, {hex(f2u(hi))}")
    a("v_mul_f32 v14, s28, v13")
    a("v_fma_f32 v13, s28, v13, -v14")
    a(f"v_mov_b32 v15, {hex(f2u(lo))}")
    a("v_fmac_f32 v13, s28, v15")
    a("v_exp_f32 v14, v14")
    a(f"v_mul_f32 v13, {hex(f2u(math.log(2)))}, v13")
    a("v_fmac_f32 v14, v14, v13")
    a("v_cvt_pk_bf16_f32 v14, v14, v14")
    a("v_and_b32 v14, 0xffff0000, v14")
    a(f"s_mov_b32 s48, {hex(f2u(LOG2E))}")
    a(f"s_mov_b32 s49, {hex(f2u(1/(2*math.pi)))}")
    a("s_mov_b32 s30, 2")
    a("s_waitcnt vmcnt(0)")
    a.stamp(2)
    a.label("B_PASS")
    a("s_cmp_eq_u32 s30, 2")
    for i in range(6):
        a(f"v_and_b32 v{8+i}, 0xffff0000, v{RAW+i}")
    for i in range(6):
        a(f"v_lshlrev_b32 v{RAW+i}, 16, v{RAW+i}")
    r1 = [0, 0, 2, 4, 4, 4, 6, 8, 8]
    P_ = {}
    for r in range(9): P_[(0, r)] = r; P_[(1, r)] = 256 + r1[r]
    for i, e in enumerate((0, 4, 8)): P_[(0, 9 + i)] = 512 + e; P_[(1, 9 + i)] = 768 + e
    for i, e in enumerate((0, 8)):
        P_[(0, 12 + i)] = 1024 + e; P_[(1, 12 + i)] = 1280 + e; P_[(0, 14 + i)] = 1536 + e; P_[(1, 14 + i)] = 1792 + e
    plist = sorted(set(P_.values()))
    xreg = {p: XB + 2 * i for i, p in enumerate(plist)}
    rows_of = {p: [8 * (r >> 2) + 4 * h + (r & 3) for (h, r), pp in P_.items() if pp == p] for p in plist}
    yreg = {j: YB + 2 * j for j in range(1, 32)}
    a("v_pk_mul_f32 v[8:9], v[8:9], v[14:15] op_sel_hi:[1,0]")
    cmul(a, xreg[0], 12, 10, 0)
    a("v_pk_mul_f32 v[8:9], v[8:9], s[48:49]")
    cmul(a, xreg[0], 12, 10, 1)
    a(f"v_mul_f32 v{TM+2}, 0x41000000, v8")
    a(f"v_mul_f32 v{TM+3}, 0x41000000, v9")
    a(f"v_mul_f32 v{TM+4}, 0x43800000, v8")
    a(f"v_mul_f32 v{TM+5}, 0x43800000, v9")
    a(f"v_pk_mul_f32 {vr(xreg[0],2)}, {vr(xreg[0],2)}, v[14:15] op_sel_hi:[1,0]")
    anchors = [(TM + 2, yreg[1]), (8, Z1), (TM + 4, Z256)]
    for s_, d_ in anchors:
        a(f"v_fract_f32 v{s_+1}, v{s_+1}")
        a(f"v_exp_f32 v{s_}, v{s_}")
    for s_, d_ in anchors:
        a(f"v_cos_f32 v{d_}, v{s_+1}")
        a(f"v_sin_f32 v{d_+1}, v{s_+1}")
    a("s_nop 0")
    for s_, d_ in anchors:
        a(f"v_pk_mul_f32 {vr(d_,2)}, {vr(d_,2)}, {vr(s_,2)} op_sel_hi:[1,0]")
    ops = []
    ops += [(("Y", 2), ("Y", 1), ("Y", 1)), (("Y", 3), ("Y", 2), ("Y", 1)), (("Y", 4), ("Y", 2), ("Y", 2))]
    ops += [(("Y", 4 + k), ("Y", 4), ("Y", k)) for k in (4, 1, 2, 3)]
    ops += [(("Y", 8 + k), ("Y", 8), ("Y", k)) for k in (8, 1, 2, 3, 4, 5, 6, 7)]
    ops += [(("Y", 16 + k), ("Y", 16), ("Y", k)) for k in range(1, 16)]
    xo = [(("X", 8), ("X", 0), ("Y", 1))]
    xo += [(("X", e + 1), ("X", e), ("Z", 1)) for e in range(7)]
    for base, es in ((256, (0, 8, 4, 2, 6)), (512, (0, 8, 4)), (768, (0, 8, 4)), (1024, (0, 8)), (1280, (0, 8)), (1536, (0, 8)), (1792, (0, 8))):
        xo += [(("X", base + e), ("X", base - 256 + e), ("Z", 256)) for e in es]
    def reg(n):
        return {"Y": yreg, "X": xreg, "Z": {1: Z1, 256: Z256}}[n[0]][n[1]]
    done = {("Y", 1), ("X", 0), ("Z", 1), ("Z", 256)}
    allops = xo + ops
    memo = {}
    def height(n):
        if n in memo: return memo[n]
        h = 0
        for (d, x, y) in allops:
            if x == n or y == n: h = max(h, 1 + height(d))
        memo[n] = h
        return h
    pending = sorted(allops, key=lambda o: -height(o[0]))
    towrite = [("Y", 1), ("X", 0)]
    ct = [0]
    WB = int(os.environ.get("WB", "16"))
    wq = []
    def flush_w():
        for ins in wq: a(ins)
        wq.clear()
    def emit_write(n):
        t = (CT + (ct[0] % 8)) if WB == 1 else (FR + ct[0]); ct[0] += 1
        r = reg(n)
        if n[0] == "Y":
            a(f"v_cvt_pk_bf16_f32 v{t}, v{r}, v{r+1}")
            wq.append(f"ds_write_addtid_b32 v{t} offset:{(32+n[1])*TS}")
        else:
            a(f"v_cvt_pk_bf16_f32 v{t}, v{r}, -v{r+1}")
            for m in rows_of[n[1]]:
                wq.append(f"ds_write_addtid_b32 v{t} offset:{m*TS}")
        if len(wq) >= WB: flush_w()
    nb = 0
    UL = XRW
    PB0 = int(os.environ.get('PB0', '9')); PB1 = int(os.environ.get('PB1', '14'))
    while pending:
        batch = [o for o in pending if o[1] in done and o[2] in done][:4]
        for o in batch: pending.remove(o)
        for (d, x, y) in batch: cmul(a, reg(d), reg(x), reg(y), 0)
        w = towrite; towrite = []
        for n in w[:2]: emit_write(n)
        for (d, x, y) in batch: cmul(a, reg(d), reg(x), reg(y), 1)
        for n in w[2:]: emit_write(n)
        for (d, x, y) in batch:
            done.add(d); towrite.append(d)
        nb += 1
        if nb == PB0:
            a("s_cbranch_scc1 B_P1")
            a("s_setprio 3")
            nonce_issue(a, 250)
            a(f"s_setprio {PB}")
            a.label("B_P1")
        if nb == PB1:
            a("s_lshl_b32 s33, s24, 1")
            a("s_add_u32 s33, s33, s30")
            a("s_cmp_lg_u32 s33, 1")
            a("s_cbranch_scc1 B_P3")
            a("s_waitcnt vmcnt(0)")
            nonce_take(a, 250)
            a("s_setprio 3")
            cnt_load(a, 250, "s42")
            a(f"s_setprio {PB}")
            a.label("B_P3")
    for n in towrite: emit_write(n)
    flush_w()
    for ks in range(8):
        a(f"ds_read_b128 {vr(FR+8*ks,4)}, v240 offset:{32*ks}")
        a(f"ds_read_b128 {vr(FR+8*ks+4,4)}, v240 offset:{32*TS+32*ks}")
    for ks in range(8):
        a(f"s_waitcnt lgkmcnt({14-2*ks})")
        a(f"{MF32} {vr(KACC,16)}, {vr(FR+8*ks,4)}, {vr(FR+8*ks+4,4)}, {vr(KACC,16)}")
    a("s_sub_u32 s30, s30, 1")
    a("s_cmp_lg_u32 s30, 0")
    a("s_cbranch_scc1 B_PASS")
    a.stamp(3)
    a("v_add_u32 v242, s29, v2")
    a("s_xor_b32 s33, s24, 1")
    a(f"s_mul_i32 s33, s33, {TW}")
    a("v_add_u32 v243, s33, v2")
    a("s_and_b32 s33, s24, 2")
    a(f"s_mul_i32 s48, s33, {TW}")
    a("s_add_u32 s48, s48, 4096")
    a("s_mul_i32 s33, s27, 4160")
    a("s_add_u32 s49, s33, s48")
    a("v_sub_u32 v6, 63, v1")
    a("v_lshlrev_b32 v6, 4, v6")
    a("v_add_u32 v6, s49, v6")
    a("v_and_b32 v7, 1, v1")
    a("v_cmp_eq_u32 vcc, 1, v7")
    for q in range(4):
        a(f"ds_write_b128 v242, {vr(KACC+4*q,4)} offset:{1024*q}")
    a("v_lshrrev_b32 v4, 4, v1")
    a("v_and_b32 v5, 15, v1")
    a("v_add_u32 v7, 1, v5")
    a("v_lshrrev_b32 v7, 1, v7")
    a("v_lshlrev_b32 v8, 2, v4")
    a("v_sub_u32 v8, v8, v7")
    a("v_and_b32 v7, 1, v5")
    a("v_mul_u32_u24 v7, 1040, v7")
    a("v_sub_u32 v8, v8, v7")
    a(f"v_add_u32 v8, {1016 + 1040 - 48 - 128}, v8")
    a("v_lshlrev_b32 v8, 2, v8")
    a("s_lshl_b32 s33, s27, 8")
    a("s_sub_u32 s33, s48, s33")
    a("v_add_u32 v8, s33, v8")
    for i in range(1, 4):
        a(f"v_subrev_u32 v{8+i}, {1024*i}, v8")
    a("s_cmp_lg_u32 s24, 0")
    a("s_cbranch_scc1 B_NOPOLL")
    a("s_waitcnt vmcnt(0)")
    cnt_wait(a, 250, "s42", 32, 6)
    a.label("B_NOPOLL")
    a("s_waitcnt lgkmcnt(0)")
    a("s_barrier")
    a.stamp(7)
    a("s_setprio 3")
    for i in range(2):
        a(f"buffer_load_dwordx4 {vr(UL+4*i,4)}, v3, s[20:23], s{43+i} offen{SC}")
    a(f"s_setprio {PC}")
    for q in range(4):
        a(f"ds_read_b128 {vr(FR+4*q,4)}, v243 offset:{1024*q}")
    a("s_lshr_b32 s33, s24, 1")
    a(f"s_mul_i32 s36, s33, {US}")
    a(f"s_add_u32 s36, s36, {UB + 512}")
    a("v_lshlrev_b32 v12, 5, v5")
    a("v_lshl_add_u32 v13, v4, 3, v12")
    a("v_lshl_add_u32 v12, v4, 4, v12")
    a("s_lshl_b32 s33, s27, 8")
    a("s_sub_u32 s33, s36, s33")
    a(f"s_sub_u32 s33, s33, {32 + 192}")
    a("v_add_u32 v12, s33, v12")
    a("s_lshl_b32 s33, s27, 11")
    a("s_add_u32 s33, s33, s36")
    a("v_add_u32 v13, s33, v13")
    a("s_lshl_b32 s40, s26, 1")
    a("s_add_u32 s40, s40, s27")
    a("s_lshl_b32 s41, s40, 11")
    a(f"s_add_u32 s41, s41, {BT}")
    a("s_lshr_b32 s40, s26, 5")
    a("s_lshl_b32 s40, s40, 7")
    a(f"s_add_u32 s40, s40, {F_B}")
    a("s_waitcnt lgkmcnt(0)")
    for r in range(0, 16, 2):
        a(f"v_pk_add_f32 {vr(KACC+r,2)}, {vr(KACC+r,2)}, {vr(FR+r,2)}")
    K_ = KACC; W_ = FR + 16
    a(f"v_cndmask_b32 v{CT}, v{K_+12}, v{K_+13}, vcc")
    a(f"v_cndmask_b32 v{CT+1}, v{K_+14}, v{K_+15}, vcc")
    for i in range(4):
        a(f"v_mov_b32 v{W_+16+i}, 0")
    def pk(d, lo_, hi_): a(f"v_cvt_pk_bf16_f32 v{d}, v{lo_}, v{hi_}")
    a("s_cmp_eq_u32 s27, 1")
    a("s_cbranch_scc1 B_ODD")
    A_, B_, C_ = K_ + 9, K_ + 10, K_ + 11
    for i in range(4): pk(W_ + i, K_ + 7 - 2 * i, K_ + 6 - 2 * i)
    for i, (x, y) in enumerate(((C_, C_), (B_, B_), (B_, A_), (A_, A_))): pk(W_ + 4 + i, x, y)
    for sl in range(2):
        A2, C2, M2 = K_ + 12 + 2 * sl, K_ + 13 + 2 * sl, CT + sl
        for i, (x, y) in enumerate(((C2, C2), (C2, M2), (A2, A2), (A2, A2))): pk(W_ + 8 + 4 * sl + i, x, y)
    a("s_branch B_IMG")
    a.label("B_ODD")
    for i in range(4): pk(W_ + i, K_ + 8 - 2 * i, K_ + 7 - 2 * i)
    for i, (x, y) in enumerate(((C_, C_), (C_, B_), (B_, B_), (A_, A_))): pk(W_ + 4 + i, x, y)
    for sl in range(2):
        A2, C2, M2 = K_ + 12 + 2 * sl, K_ + 13 + 2 * sl, CT + sl
        for i, (x, y) in enumerate(((C2, C2), (C2, C2), (M2, A2), (A2, A2))): pk(W_ + 8 + 4 * sl + i, x, y)
    a("s_mov_b64 exec, 1")
    pk(W_ + 16, K_, VZ)
    a("s_mov_b64 exec, -1")
    a.label("B_IMG")
    for sl in range(4):
        a(f"ds_write_b128 v6, {vr(W_+4*sl,4)} offset:{(3-sl)*1024}")
    a("v_add_u32 v7, s49, v2")
    a("s_mov_b64 exec, 3")
    a(f"ds_write_b128 v7, {vr(W_+16,4)} offset:4096")
    a("s_mov_b64 exec, -1")
    a("s_waitcnt vmcnt(0)")
    for i in range(2):
        a(f"ds_write_b128 v241, {vr(UL+4*i,4)} offset:{512*i}")
    a("s_waitcnt lgkmcnt(0)")
    a("s_barrier")
    a.stamp(4)
    FB, CAC = 16, 144
    a.nds = 0
    tg = {}
    def loadstep(stp):
        b = FB + 64 * (stp & 1)
        for i in range(8):
            o = 128 * (1 - (i & 1)) + 16 * (3 - stp)
            a.ds(f"ds_read2_b32 {vr(b+4*i,2)}, v{8+(i>>1)} offset0:{o} offset1:{o+1}")
            a.ds(f"ds_read2_b32 {vr(b+4*i+2,2)}, v{8+(i>>1)} offset0:{o+2} offset1:{o+3}")
            tg[(stp, i)] = a.ds(f"ds_read_b128 {vr(b+32+4*i,4)}, v12 offset:{512*i+64*(3-stp)}")
    loadstep(0)
    for stp in range(4):
        b = FB + 64 * (stp & 1)
        order = sorted([(i, tp) for i in range(8) for tp in range(8 - i)], key=lambda x: (max(x), x[0] + x[1]))
        nxt = []
        if stp < 3:
            b2 = FB + 64 * ((stp + 1) & 1)
            for i in range(8):
                o = 128 * (1 - (i & 1)) + 16 * (3 - stp - 1)
                nxt.append((None, f"ds_read2_b32 {vr(b2+4*i,2)}, v{8+(i>>1)} offset0:{o} offset1:{o+1}"))
                nxt.append((None, f"ds_read2_b32 {vr(b2+4*i+2,2)}, v{8+(i>>1)} offset0:{o+2} offset1:{o+3}"))
                nxt.append(((stp + 1, i), f"ds_read_b128 {vr(b2+32+4*i,4)}, v12 offset:{512*i+64*(3-stp-1)}"))
        waited = -1
        seen = set()
        for k, (i, tp) in enumerate(order):
            if max(i, tp) > waited:
                waited = max(i, tp)
                a.wait_ds(tg[(stp, waited)])
            t = i + tp
            c = vr(CAC + 4 * t, 4)
            if stp == 0 and t not in seen:
                c = "0"; seen.add(t)
            a(f"{MF16} {vr(CAC+4*t,4)}, {vr(b+4*i,4)}, {vr(b+32+4*tp,4)}, {c}")
            if k >= 8 and nxt:
                key, ins = nxt.pop(0)
                r = a.ds(ins)
                if key: tg[key] = r
        assert not nxt
    a.stamp(5)
    RR = 16
    for tl in range(4):
        a(f"ds_read_b64 {vr(80+2*tl,2)}, v13 offset:{512*tl}")
    a("s_cmp_eq_u32 s27, 1")
    a.nop(3)
    a("s_cbranch_scc1 B_R1")
    for par in range(2):
        if par: a.label("B_R1")
        for q in range(4):
            a(f"ds_write_b128 v242, {vr(CAC+16*(1-par)+4*q,4)} offset:{1024*q}")
        a("s_waitcnt lgkmcnt(0)")
        a("s_barrier")
        for q in range(4):
            a(f"ds_read_b128 {vr(RR+4*q,4)}, v243 offset:{1024*q}")
        a("s_waitcnt lgkmcnt(0)")
        for r in range(0, 16, 2):
            a(f"v_pk_add_f32 {vr(RR+r,2)}, {vr(RR+r,2)}, {vr(CAC+16*par+r,2)}")
        if not par: a("s_branch B_R2")
    a.label("B_R2")
    for t in range(4):
        for i in range(2):
            a(f"v_lshlrev_b32 v{88+2*i}, 16, v{80+2*t+i}")
            a(f"v_and_b32 v{88+2*i+1}, 0xffff0000, v{80+2*t+i}")
        for r in range(4):
            a(f"v_fmac_f32 v{RR+4*t+r}, s38, v{88+r}")
        for i in range(2):
            a(f"v_cvt_pk_bf16_f32 v{80+2*t+i}, v{RR+4*t+2*i}, v{RR+4*t+2*i+1}")
    a("s_nop 1")
    for p in range(2):
        for i in range(2):
            a(f"v_permlane16_swap_b32 v{80+4*p+i}, v{80+4*p+2+i}")
    for p in range(2):
        a(f"buffer_store_dwordx4 {vr(80+4*p,4)}, v2, s[20:23], s41 offen offset:{1024*p}{SC}")
    a("s_waitcnt vmcnt(0)")
    cnt_add(a, 4, "s40")
    fin(a, 6)
    a("s_endpgm")

def gen_C(a):
    a.label("L_C")
    if "dC" in EXP: a("s_sleep 32")
    a("s_setprio 3")
    R, U, GU, GW = 16, 80, 144, 160
    a("s_sub_u32 s25, s2, 224")
    a("s_lshl_b32 s26, s31, 2")
    a("s_sub_u32 s33, s32, 28")
    a("s_add_u32 s26, s26, s33")
    a("s_lshl_b32 s26, s26, 2")
    a("s_add_u32 s26, s26, s24")
    a("s_mul_i32 s36, s26, 14336")
    for i in range(1, 4):
        a(f"s_add_u32 s{36+i}, s36, {3584*i}")
    a("s_add_u32 s45, s25, s24")
    a("s_waitcnt lgkmcnt(0)")
    a.srd(20, P_WS, WS_SIZE)
    a.srd(12, P_X, X_BYTES)
    for r in range(16):
        a(f"buffer_load_dwordx4 {vr(R+4*r,4)}, v2, s[12:15], s{36+(r>>2)} offen offset:{896*(r&3)}")
    a.srd(16, P_GW, 896)
    a(f"buffer_load_dwordx4 {vr(GW,4)}, v2, s[16:19], 0 offen")
    a("v_mov_b32 v4, 1")
    a(f"s_mul_i32 s36, s26, {2*XTS}")
    a(f"s_add_u32 s36, s36, {XT}")
    a("s_add_u32 s37, s36, 3584")
    a(f"s_add_u32 s38, s36, {XTS}")
    a("s_add_u32 s39, s38, 3584")
    a("s_mov_b32 s46, 0x05040100")
    a("s_mov_b32 s47, 0x07060302")
    a("s_mov_b32 exec_hi, 0xffffff")
    for hb in range(2):
        a(f"s_waitcnt vmcnt({9 if hb == 0 else 8})")
        for cc in range(8):
            i, e = cc >> 1, cc & 1
            u = U + 32 * hb + 4 * cc
            for q in range(4):
                a(f"v_perm_b32 v{u+q}, v{R+32*hb+4*(2*q+1)+i}, v{R+32*hb+4*(2*q)+i}, s{46+e}")
            a(f"buffer_store_dwordx4 {vr(u,4)}, v2, s[20:23], s{36+2*hb+(cc>>2)} offen offset:{896*(cc&3)}{SC}")
    a.stamp(1)
    a("s_mov_b64 exec, -1")
    nonce_issue(a, 250)
    a("v_lshlrev_b32 v5, 7, v1")
    a(f"s_mov_b32 s41, {F_XT}")
    for r in range(16):
        a(f"v_mov_b32 v{GU+r}, 0")
    a("s_mov_b32 exec_hi, 0xffffff")
    for i in range(4):
        for r in range(16):
            a(f"v_dot2c_f32_bf16 v{GU+r}, v{R+4*r+i}, v{GW+i}")
    a("s_mov_b64 exec, -1")
    a("s_waitcnt vmcnt(0)")
    nonce_take(a, 250)
    a("s_barrier")
    a("s_cmp_lg_u32 s24, 0")
    a("s_cbranch_scc1 C_NOADD")
    a("s_mov_b32 exec_hi, 0")
    a("buffer_atomic_add v4, v5, s[20:23], s41 offen sc1")
    a("s_mov_b64 exec, -1")
    a.label("C_NOADD")
    a.stamp(2)
    a("s_setprio 1")
    a("s_min_u32 s45, s25, 15")
    a("s_mul_i32 s33, s45, 25088")
    a("s_mul_i32 s34, s24, 7168")
    a("s_add_u32 s33, s33, s34")
    a("v_add_u32 v3, 4096, v2")
    a.srd(12, P_WO, 448 * 896)
    a("s_mov_b32 m0, s34")
    a("s_nop 0")
    for i in range(4):
        a(f"buffer_load_dwordx4 v2, s[12:15], s33 offen offset:{1024*i} lds")
    a("s_add_u32 m0, s34, 4096")
    a("s_nop 0")
    for i in range(3):
        a(f"buffer_load_dwordx4 v3, s[12:15], s33 offen offset:{1024*i} lds")
    for sh in ("row_shr:1", "row_shr:2", "row_shr:4", "row_shr:8"):
        for r in range(16):
            a(f"v_add_f32_dpp v{GU+r}, v{GU+r}, v{GU+r} {sh} row_mask:0xf bank_mask:0xf bound_ctrl:0")
    for r in range(16):
        a(f"v_add_f32_dpp v{GU+r}, v{GU+r}, v{GU+r} row_bcast:15 row_mask:0xa bank_mask:0xf")
    for r in range(16):
        a(f"v_add_f32_dpp v{GU+r}, v{GU+r}, v{GU+r} row_bcast:31 row_mask:0xc bank_mask:0xf")
    for op in (f"v_mul_f32 vX, {hex(f2u(-LOG2E))}, vX", "v_exp_f32 vX, vX", "v_add_f32 vX, 1.0, vX", "v_rcp_f32 vX, vX"):
        for r in range(16):
            a(op.replace("vX", f"v{GU+r}"))
    a("s_lshl_b32 s35, s26, 6")
    a(f"s_add_u32 s35, s35, {GO}")
    a("s_lshr_b32 s37, s26, 1")
    a("s_lshl_b32 s37, s37, 7")
    a(f"s_add_u32 s37, s37, {F_G}")
    a("s_mov_b32 exec_lo, 0")
    a("s_mov_b32 exec_hi, 0x80000000")
    for i in range(4):
        a(f"buffer_store_dwordx4 {vr(GU+4*i,4)}, v{VZ}, s[20:23], s35 offen offset:{16*i}{SC}")
    a("s_mov_b64 exec, -1")
    a("v_lshrrev_b32 v15, 5, v1")
    a("v_bfe_u32 v13, v1, 2, 2")
    a("v_lshl_add_u32 v13, v15, 2, v13")
    a("v_mul_u32_u24 v13, 896, v13")
    a("v_bfe_u32 v14, v1, 4, 1")
    a("v_lshl_add_u32 v13, v14, 5, v13")
    a("v_and_b32 v14, 3, v1")
    a("v_lshl_add_u32 v12, v14, 3, v13")
    a("s_lshr_b32 s49, s24, 1")
    a("s_mul_i32 s36, s49, 14336")
    a("s_mul_i32 s38, s27, 448")
    a("s_add_u32 s36, s36, s38")
    a("v_add_u32 v12, s36, v12")
    a(f"s_mul_i32 s38, s27, {7*32768}")
    a("s_lshl_b32 s39, s45, 1")
    a("s_add_u32 s39, s39, s49")
    a("s_lshl_b32 s39, s39, 10")
    a("s_add_u32 s38, s38, s39")
    a(f"s_add_u32 s38, s38, {WOF}")
    a("s_lshr_b32 s40, s25, 2")
    a("s_lshl_b32 s40, s40, 7")
    a(f"s_add_u32 s40, s40, {F_WO}")
    a("s_waitcnt vmcnt(0)")
    cnt_add(a, 4, "s37")
    a("s_cmp_ge_u32 s25, 16")
    a("s_cbranch_scc1 C_END")
    a("s_barrier")
    for i in range(7):
        for hr in range(2):
            a(f"ds_read_b64_tr_b16 {vr(16+4*i+2*hr,2)}, v12 offset:{64*i+8*hr*896}")
    a("s_waitcnt lgkmcnt(0)")
    a("s_cmp_eq_u32 s49, 0")
    a("s_cbranch_scc1 C_WO2")
    a("s_mov_b32 exec_lo, 0")
    for i in range(7):
        a(f"v_mov_b32 v{16+4*i+2}, 0")
        a(f"v_mov_b32 v{16+4*i+3}, 0")
    a("s_mov_b32 exec_lo, -1")
    a.label("C_WO2")
    for i in range(7):
        a(f"buffer_store_dwordx4 {vr(16+4*i,4)}, v2, s[20:23], s38 offen{SC}")
        if i < 6: a("s_add_u32 s38, s38, 32768")
    a("s_waitcnt vmcnt(0)")
    cnt_add(a, 4, "s40")
    a.label("C_END")
    fin(a, 3)

def gen():
    a = Asm()
    gen_entry(a)
    gen_A(a)
    gen_B(a)
    gen_C(a)
    a.label("L_END")
    a("s_endpgm")
    return a.text()

HEADER = open("cdna_kernels/" + NAME + ".s.ref").read().split("; Override launch geometry")[0]

if __name__ == "__main__":
    name = NAME + "_kernel"
    out = HEADER + "; @launch grid=(512,1,1) block=(256,1,1) lds=81920\n"
    out += '.amdgcn_target "amdgcn-amd-amdhsa--gfx950"\n' + kernel_header(name) + gen() + kernel_desc(name, 256)
    dst = sys.argv[1] if len(sys.argv) > 1 else "cdna_kernels/" + NAME + ".s"
    open(dst, "w").write(out)
```

```python
import sys, math, os
import numpy as np
from dsl import *

NAME = "gated_mix__mha_block__ssm_conv_s4__prompt"
KTS = 28672; VTS = 32256; XTS = 7296
KF = 0x000000
VF = 0x200000
XT = 0x400000
GO = 0x5D0000
WOF = 0x5E0000
OF = 0x660000
BT = 0x860000
FL = 0xA40000
F_KV = FL
F_O = FL + 64 * 128
F_XT = FL + 192 * 128
F_G = FL + 256 * 128
F_B = FL + 320 * 128
F_WO = FL + 336 * 128
WS_SIZE = 0xA50000
X_BYTES = 2048 * 896
W_BYTES = 448 * 2688
LOG2E = 1.4426950408889634
QSCALE = LOG2E * 28 ** -0.5
MF32 = "v_mfma_f32_32x32x16_bf16"
MF16 = "v_mfma_f32_16x16x32_bf16"
SC = " sc1"
NON = 60
POLLMAX = 40000
EXP = os.environ.get("EXP", "")
DEPTH = int(os.environ.get("DEPTH", "3"))
PA = int(os.environ.get("PA", "1")); PB = int(os.environ.get("PB", "2")); PC = int(os.environ.get("PC", "0"))
P_X, P_W, P_WO, P_PAR, P_LDT, P_DSK, P_GW, P_OUT, P_DBG, P_WS = 64, 66, 68, 72, 84, 86, 88, 90, 92, 94
VZ = 255

uid = [0]
def fin(a, idx):
    if not os.environ.get("STAMP"): return
    a("s_waitcnt vmcnt(0)")
    a.stamp(idx)
    dw = os.environ.get("DBGWG")
    if dw:
        uid[0] += 1; u = uid[0]
        a("s_lshl_b32 s96, s2, 2")
        a("s_add_u32 s96, s96, s24")
        a(f"s_cmp_lg_u32 s96, {int(dw)*4}")
        a(f"s_cbranch_scc1 DG{u}")
        a("s_mov_b64 exec, -1")
        a("v_readlane_b32 s97, v254, 1")
        a("v_mbcnt_lo_u32_b32 v0, -1, 0")
        a("v_lshlrev_b32 v1, 1, v0")
        a("v_subrev_u32 v254, s97, v254")
        a("v_and_b32 v1, -4, v1")
        a("s_mov_b32 exec_lo, 0xaaaaaaa8")
        a("s_mov_b32 exec_hi, 0")
        a(f"global_store_dword v1, v254, {sr(P_DBG,2)}")
        a.label(f"DG{u}")
        return
    a.stamp_flush(P_WS)

def cmul(a, d, x, y, phase):
    if phase == 0:
        a(f"v_pk_mul_f32 {vr(d,2)}, {vr(x,2)}, {vr(y,2)} op_sel_hi:[0,1]")
    else:
        a(f"v_pk_fma_f32 {vr(d,2)}, {vr(x,2)}, {vr(y,2)}, {vr(d,2)} op_sel:[1,1,0] op_sel_hi:[1,0,1] neg_lo:[1,0,0]")

def nonce_issue(a, v):
    uid[0] += 1; u = uid[0]
    a("s_cmp_lg_u32 s24, 0")
    a(f"s_cbranch_scc1 NI{u}")
    a(f"global_load_dword v{v}, v{VZ}, {sr(P_DBG,2)}{os.environ.get('NSC', ' sc1')}")
    a.label(f"NI{u}")

def nonce_take(a, v):
    uid[0] += 1; u = uid[0]
    a("s_cmp_lg_u32 s24, 0")
    a(f"s_cbranch_scc1 ND{u}")
    a(f"s_mov_b32 s62, {POLLMAX}")
    a.label(f"NT{u}")
    a(f"v_readfirstlane_b32 s{NON}, v{v}")
    a("s_nop 1")
    a(f"s_cmp_lg_u32 s{NON}, 0")
    a(f"s_cbranch_scc1 ND{u}")
    a("s_sub_u32 s62, s62, 1")
    a(f"s_cbranch_scc1 ND{u}")
    a("s_sleep 8")
    a(f"global_load_dword v{v}, v{VZ}, {sr(P_DBG,2)} sc1")
    a("s_waitcnt vmcnt(0)")
    a(f"s_branch NT{u}")
    a.label(f"ND{u}")

def cnt_load(a, vd, soff):
    a(f"v_mov_b32 v{vd}, 0")
    a("s_mov_b64 exec, 1")
    t = a.vm(f"buffer_atomic_add v{vd}, v{VZ}, s[20:23], {soff} offen sc0 sc1")
    a("s_mov_b64 exec, -1")
    return t

def cnt_wait(a, vd, soff, target, sleep=1):
    uid[0] += 1; u = uid[0]
    a(f"s_mov_b32 s62, {POLLMAX}")
    a.label(f"FC{u}")
    a(f"v_readfirstlane_b32 s4, v{vd}")
    a("s_nop 1")
    a(f"s_cmp_eq_u32 s4, {target}")
    a(f"s_cbranch_scc1 FD{u}")
    a("s_sub_u32 s62, s62, 1")
    a(f"s_cbranch_scc1 FD{u}")
    a(f"s_sleep {sleep}")
    n0 = a.nvm
    cnt_load(a, vd, soff)
    a.nvm = n0
    a("s_waitcnt vmcnt(0)")
    a(f"s_branch FC{u}")
    a.label(f"FD{u}")

def cnt_add(a, vt, soff, va=None, mask="1"):
    a(f"v_mov_b32 v{vt}, 1")
    a(f"s_mov_b64 exec, {mask}")
    a.vm(f"buffer_atomic_add v{vt}, v{VZ if va is None else va}, s[20:23], {soff} offen sc1")
    a("s_mov_b64 exec, -1")

def late_load(a, vd, va):
    a("s_mov_b64 exec, 7")
    a(f"buffer_load_dword v{vd}, v{va}, s[20:23], 0 offen sc1")
    a("s_mov_b64 exec, -1")

def late_check(a, vd, va, vtgt):
    uid[0] += 1; u = uid[0]
    a(f"s_mov_b32 s62, {POLLMAX}")
    a.label(f"FC{u}")
    a(f"v_cmp_ne_u32 vcc, v{vd}, v{vtgt}")
    a("s_nop 1")
    a("s_and_b32 s4, vcc_lo, 7")
    a(f"s_cbranch_scc0 FD{u}")
    a("s_sub_u32 s62, s62, 1")
    a(f"s_cbranch_scc1 FD{u}")
    a("s_sleep 16")
    late_load(a, vd, va)
    a("s_waitcnt vmcnt(0)")
    a(f"s_branch FC{u}")
    a.label(f"FD{u}")

RAW = 244
XRW = 232

def gen_entry(a):
    a("s_cmp_ge_u32 s2, 512")
    a("s_cbranch_scc1 L_END")
    a.stamp(0)
    a("s_load_dwordx16 s[64:79], s[0:1], 0")
    a("s_load_dwordx16 s[80:95], s[0:1], 64")
    if "nopf" not in EXP:
        a(f"s_cmp_ge_u32 s2, {os.environ.get('PFN', '8')}")
        a("s_cbranch_scc1 E_NOPF")
        a("s_getpc_b64 s[4:5]")
        a.label("E_PC")
        a("v_lshlrev_b32 v4, 7, v0")
        a("v_min_u32 v4, L_END-E_PC, v4")
        a("v_mov_b32 v5, s5")
        a("v_add_co_u32 v4, vcc, s4, v4")
        a("s_nop 1")
        a("v_addc_co_u32 v5, vcc, 0, v5, vcc")
        a("global_load_dword v6, v[4:5], off")
        a.label("E_NOPF")
    a("v_lshrrev_b32 v13, 6, v0")
    a("v_and_b32 v1, 63, v0")
    a("v_lshlrev_b32 v2, 4, v1")
    a(f"v_mov_b32 v{VZ}, 0")
    a("v_readfirstlane_b32 s24, v13")
    a("s_and_b32 s31, s2, 7")
    a("s_bfe_u32 s32, s2, 0x50003")
    a("s_cmp_ge_u32 s2, 256")
    a("s_cbranch_scc1 L_A")
    a("s_and_b32 s27, s24, 1")
    a("s_cmp_ge_u32 s32, 28")
    a("s_cbranch_scc1 L_C")
    a("s_setprio 3")
    a("s_lshl_b32 s39, s32, 1")
    a("s_lshr_b32 s34, s24, 1")
    a("s_add_u32 s26, s39, s34")
    a("s_lshl_b32 s26, s26, 3")
    a("s_add_u32 s26, s26, s31")
    a("s_lshl_b32 s33, s26, 9")
    a("s_lshl_b32 s34, s27, 8")
    a("s_add_u32 s33, s33, s34")
    a("v_lshlrev_b32 v3, 2, v1")
    a("v_add_u32 v13, s33, v3")
    a("s_lshl_b32 s34, s26, 1")
    a("s_and_b32 s34, s34, -4")
    a("s_add_u32 s45, s2, s24")
    a("v_lshlrev_b32 v4, 7, v1")
    a(f"s_mov_b32 s33, {FL}")
    a("s_waitcnt lgkmcnt(0)")
    a.srd(20, P_WS, WS_SIZE)
    a("s_cmp_lg_u32 s45, 0")
    a("s_cbranch_scc1 E_NOINIT")
    for i in range(6):
        a(f"buffer_store_dword v{VZ}, v4, s[20:23], s33 offen sc1")
        if i < 5: a("s_addk_i32 s33, 8192")
    a.label("E_NOINIT")
    for i in range(6):
        a(f"global_load_dword v{RAW+i}, v13, {sr(P_PAR+2*i,2)}")
    a(f"s_load_dword s28, {sr(P_LDT,2)}, s34")
    a(f"s_load_dword s38, {sr(P_DSK,2)}, s34")
    a("s_cmp_lg_u32 s45, 0")
    a("s_cbranch_scc1 L_B")
    a("v_mov_b32 v4, 1")
    a("s_waitcnt vmcnt(6)")
    if "dI" in EXP: a("s_sleep 32")
    a("s_mov_b64 exec, 1")
    a(f"global_store_dword v{VZ}, v4, {sr(P_DBG,2)} sc1")
    a("s_mov_b64 exec, -1")
    a("s_branch L_B")

def gen_A(a):
    a.label("L_A")
    if "noA" in EXP: a("s_endpgm")
    a(f"s_setprio {PA}")
    if "dA" in EXP: a("s_sleep 32")
    a("s_lshr_b32 s33, s31, 1")
    a("s_lshl_b32 s33, s33, 2")
    a("s_and_b32 s34, s32, 3")
    a("s_add_u32 s25, s33, s34")
    a("s_and_b32 s27, s31, 1")
    a("s_lshr_b32 s54, s32, 2")
    a("s_lshl_b32 s33, s27, 3")
    a("s_add_u32 s26, s33, s54")
    XR, ACC, QACC, WF, NV, PK, T = 16, 128, 160, 176, 248, 224, 240
    XL = 32768
    a("s_lshl_b32 s33, s25, 2")
    a("s_add_u32 s35, s33, s24")
    a("s_mul_i32 s33, s35, 28672")
    a("v_lshrrev_b32 v13, 3, v1")
    a("v_mul_u32_u24 v12, 896, v13")
    a("v_and_b32 v14, 7, v1")
    a("v_lshrrev_b32 v15, 4, v1")
    a("v_xor_b32 v15, v15, v14")
    a("v_lshl_add_u32 v3, v15, 4, v12")
    a("v_add_u32 v3, s33, v3")
    a("v_xor_b32 v246, 64, v3")
    a(f"v_add_u32 v244, {6144}, v246")
    a(f"v_add_u32 v245, {6144*2}, v3")
    a(f"v_add_u32 v246, {6144*3}, v246")
    a("s_mul_i32 s40, s24, 12288")
    a(f"s_add_u32 s40, s40, {XL}")
    a("s_lshl_b32 s33, s34, 1")
    a("s_add_u32 s28, s33, s54")
    a("s_sub_u32 s33, s28, 7")
    a("s_cmp_ge_u32 s28, 7")
    a("s_cselect_b32 s28, s33, s28")
    if "norot" in EXP: a("s_mov_b32 s28, 0")
    a("s_mov_b32 s30, s28")
    a("v_bfe_u32 v15, v1, 4, 1")
    a("v_lshlrev_b32 v15, 2, v15")
    a("v_xor_b32 v15, v15, v14")
    a("v_mul_u32_u24 v4, 2688, v13")
    a("v_lshl_add_u32 v4, v15, 4, v4")
    a("s_min_u32 s55, s54, 6")
    a("s_mul_i32 s33, s24, 43008")
    a("s_mul_i32 s34, s27, 896")
    a("s_add_u32 s33, s33, s34")
    a("s_lshl_b32 s34, s55, 7")
    a("s_add_u32 s33, s33, s34")
    a("s_add_u32 s33, s33, 896")
    a("v_add_u32 v4, s33, v4")
    a(f"v_add_u32 v5, {21504-1024}, v4")
    a("s_lshl_b32 s36, s24, 11")
    a("s_waitcnt lgkmcnt(0)")
    a.stamp(1)
    if "dK1" in EXP: a("s_sleep 32")
    if "dK2" in EXP: a("s_sleep 64")
    if "dK4" in EXP: a("s_sleep 127")
    a.srd(12, P_X, X_BYTES)
    a.srd(16, P_W, W_BYTES)
    def adv(r):
        a(f"s_add_u32 s{r}, s{r}, 1")
        a(f"s_cmp_eq_u32 s{r}, 7")
        a(f"s_cselect_b32 s{r}, 0, s{r}")
    QD = int(os.environ.get("QD", "14"))
    L = []
    for s_ in range(7):
        L += [("x", s_, 0), ("x", s_, 1), ("x", s_, 2), ("x", s_, 3), ("w", s_, 0), ("w", s_, 1)]
    L += [("n", 0, 0)] + [("q", i, 0) for i in range(7)]
    tag = {}; tagxf = {}
    lp = [0]; lastbar = [-1]; xfree = [-1]; light = [False]
    def issue():
        if lp[0] >= len(L): return
        while light[0] and L[lp[0]][0] == "w": lp[0] += 1
        k, s_, n = L[lp[0]]
        need = {"x": s_ - 3, "q": 4 + (s_ >> 2)}.get(k, -1)
        if need > xfree[0]: return
        if k == "w" and s_ >= 4 and lastbar[0] < s_ - 2: return
        lp[0] += 1
        if k == "x":
            if n == 0:
                if s_: adv(28)
                a(f"s_add_u32 m0, s40, {(s_%3)*4096}")
                a("s_lshl_b32 s29, s28, 7")
                a("s_mul_i32 s37, s28, 172032")
            tag[(k, s_, n)] = a.vm(f"buffer_load_dwordx4 v{3 if n == 0 else 243+n}, s[12:15], s29 offen offset:{1024*n} lds")
        elif k == "w":
            if n == 0:
                a(f"s_add_u32 m0, s36, {(s_%4)*8192}")
                a("s_nop 0")
            tag[(k, s_, n)] = a.vm(f"buffer_load_dwordx4 v{4+n}, s[16:19], s37 offen offset:{1024*n} lds")
        elif k == "n":
            nonce_issue(a, NV)
        else:
            a(f"s_add_u32 m0, s40, {4096 + 1024*s_}")
            a("s_mul_i32 s39, s30, 172032")
            a.vm(f"buffer_load_dwordx4 v14, s[16:19], s39 offen lds")
            if s_ < 6: adv(30)
    LSL = int(os.environ.get("LSL", "0"))
    if LSL:
        a("s_cmp_lg_u32 s54, 7")
        a("s_cbranch_scc1 A_GO")
        a(f"s_sleep {LSL}")
        a.label("A_GO")
    for _ in range(QD): issue()
    if "stopA" in EXP: a.stamp(7)
    a.srd(20, P_WS, WS_SIZE)
    if "Aload" in EXP:
        a("s_waitcnt vmcnt(0)"); a("s_endpgm")
    a("v_and_b32 v13, 31, v1")
    a("v_bfe_u32 v14, v1, 1, 3")
    a("v_lshrrev_b32 v15, 5, v1")
    a("v_xor_b32 v14, v14, v15")
    a("v_lshlrev_b32 v13, 7, v13")
    a("v_lshl_add_u32 v8, v14, 4, v13")
    a("v_add_u32 v8, s40, v8")
    for ks in range(1, 4):
        a(f"v_xor_b32 v{8+ks}, {32*ks}, v8")
    a(f"v_bfe_u32 v{T}, v1, 2, 2")
    a(f"v_lshl_add_u32 v{T+1}, v15, 3, v{T}")
    a(f"v_bfe_u32 v{T+2}, v1, 4, 1")
    a(f"v_and_b32 v{T+3}, 3, v1")
    a(f"v_lshl_add_u32 v{PK}, v{T+2}, 2, v{T+3}")
    a(f"v_and_b32 v{PK+1}, 1, v1")
    a(f"v_bfe_u32 v{PK+2}, v1, 1, 1")
    a(f"v_lshl_add_u32 v{PK+1}, v{PK+1}, 1, v{PK+2}")
    a(f"v_lshl_add_u32 v{PK+1}, v{T+2}, 2, v{PK+1}")
    a(f"v_bfe_u32 v{T+3}, v1, 3, 1")
    a(f"v_lshlrev_b32 v{T+3}, 6, v{T+3}")
    a(f"v_lshl_add_u32 v{T+3}, v{T+1}, 7, v{T+3}")
    a("s_cmp_eq_u32 s27, 1")
    a("s_cselect_b64 vcc, -1, 0")
    a(f"v_cndmask_b32 v12, v{PK+1}, v{PK}, vcc")
    a(f"v_lshl_add_u32 v12, v12, 3, v{T+3}")
    a("v_xor_b32 v13, 64, v12")
    a(f"v_add_u32 v{PK+2}, 2, v{PK+1}")
    a(f"v_sub_u32 v{PK+3}, 7, v{PK+1}")
    a(f"v_cmp_gt_u32 vcc, 6, v{PK+1}")
    a("s_bitcmp1_b32 s26, 0")
    a("s_cselect_b64 s[4:5], -1, 0")
    a(f"v_cndmask_b32 v{PK+2}, v{PK+3}, v{PK+2}, vcc")
    a(f"v_cndmask_b32 v{PK+2}, v{PK+1}, v{PK+2}, s[4:5]")
    a(f"v_lshlrev_b32 v15, 6, v{T+1}")
    a(f"v_lshl_add_u32 v15, v{PK+2}, 3, v15")
    a(f"v_add_u32 v15, {XL + 4096}, v15")
    a("v_lshrrev_b32 v14, 2, v1")
    a("v_mul_u32_u24 v14, 2688, v14")
    a(f"v_and_b32 v{T}, 3, v1")
    a(f"v_lshl_add_u32 v14, v{T}, 4, v14")
    a("s_mul_i32 s33, s26, 56")
    a("s_and_b32 s33, s33, -16")
    a(f"s_mul_i32 s34, s24, {16*2688}")
    a("s_add_u32 s33, s33, s34")
    a("v_add_u32 v14, s33, v14")
    a("s_mul_i32 s33, s54, 2341")
    a("s_lshr_b32 s33, s33, 10")
    a(f"v_add_u32 v{PK}, s33, v1")
    a(f"v_mul_u32_u24 v{PK+1}, 28, v{PK}")
    a(f"v_lshrrev_b32 v{PK+1}, 6, v{PK+1}")
    a(f"v_cmp_ge_u32 s[56:57], s54, v{PK+1}")
    a(f"v_lshlrev_b32 v243, 9, v{PK}")
    a("s_lshr_b32 s42, s25, 2")
    a("s_lshl_b32 s42, s42, 7")
    a(f"s_add_u32 s42, s42, {F_KV}")
    a("s_and_b64 s[56:57], s[56:57], 15")
    a("s_cmp_eq_u32 s54, 7")
    a("s_cbranch_scc1 A_LIGHT")
    a("s_cmp_eq_u32 s27, 1")
    a("s_cbranch_scc1 A_V")

    def pass1(vtype):
        tagtr = {}
        NB = 6; TD = 3
        NIS = int(os.environ.get("NIS", "2"))
        def trload(u):
            s, ks = u >> 2, u & 3
            for t in range(2):
                for hr in range(2):
                    off = (s % 4) * 8192 + (16 * ks + 4 * hr) * 128
                    tagtr[u] = a.ds(f"ds_read_b64_tr_b16 {vr(WF+(u%NB)*8+4*t+2*hr,2)}, v{12+t} offset:{off}")
        pend = None
        for u in range(-4, 28):
            if u >= 0:
                a.wait_ds(max(tagtr[u], tagxf[u >> 2]))
                for t in range(2):
                    wf = vr(WF + (u % NB) * 8 + 4 * t, 4); xf = vr(XR + 4 * u, 4)
                    c = "0" if u == 0 else vr(ACC + 16 * t, 16)
                    if vtype:
                        a(f"{MF32} {vr(ACC+16*t,16)}, {xf}, {wf}, {c}")
                    else:
                        a(f"{MF32} {vr(ACC+16*t,16)}, {wf}, {xf}, {c}")
            if (u + TD) % 4 == 0 and (u + TD) // 4 < 7:
                sb = (u + TD) // 4
                a.wait_vm(tag[("w", sb, 1)])
                a("s_barrier")
                lastbar[0] = sb
                if sb in (0, 6): a.stamp(2 + sb // 6)
                if sb == 0 and "dS" in EXP: a("s_sleep 32")
            if pend is not None:
                a.wait_ds(tagxf[pend]); xfree[0] = pend; pend = None
            if 0 <= u + TD < 28:
                trload(u + TD)
            if u % 4 == 0 and u // 4 + 1 < 7:
                s = u // 4 + 1
                a.wait_vm(tag[("x", s, 3)])
                for ks in range(4):
                    tagxf[s] = a.ds(f"ds_read_b128 {vr(XR+16*s+4*ks,4)}, v{8+ks} offset:{(s%3)*4096}")
                pend = s
            for _ in range(NIS): issue()
        assert lp[0] == len(L), lp
    saved = (a.nvm, a.nds, lp[0])
    a("v_mov_b32 v247, v2")
    a(f"s_mul_i32 s38, s35, {KTS}")
    a("s_lshl_b32 s33, s55, 12")
    a("s_add_u32 s38, s38, s33")
    a("s_add_u32 s41, s38, 1024")
    a("s_add_u32 s43, s38, 2048")
    a("s_add_u32 s44, s38, 3072")
    pass1(False)
    a("s_branch A_ST")
    a.label("A_V")
    a.nvm, a.nds, lp[0] = saved; lastbar[0] = -1; xfree[0] = -1
    a("v_lshrrev_b32 v247, 5, v1")
    a(f"v_mul_u32_u24 v247, {8064-512}, v247")
    a("v_add_u32 v247, v247, v2")
    a(f"s_mul_i32 s38, s35, {VTS}")
    a("s_mul_i32 s33, s55, 1152")
    a("s_add_u32 s38, s38, s33")
    a(f"s_add_u32 s38, s38, {VF}")
    a("s_add_u32 s41, s38, 16128")
    a("s_add_u32 s43, s38, 512")
    a("s_add_u32 s44, s41, 512")
    a(f"v_lshrrev_b32 v{T}, 1, v1")
    a(f"v_mul_u32_u24 v{T}, 8064, v{T}")
    a(f"v_and_b32 v{T+1}, 1, v1")
    a(f"v_lshl_add_u32 v{T}, v{T+1}, 4, v{T}")
    a(f"v_subrev_u32 v{T+1}, 1, v{T+1}")
    for i in range(4):
        a(f"v_and_b32 v{PK+i}, 0x3f803f80, v{T+1}")
    a("s_mov_b64 exec, 0xff")
    a(f"buffer_store_dwordx4 {vr(PK,4)}, v{T}, s[20:23], s38 offen offset:1024{SC}")
    a("s_mov_b64 exec, -1")
    pass1(True)
    a.label("A_ST")
    a.nop(11)
    for t in range(2):
        for r in range(0, 16, 2):
            a(f"v_cvt_pk_bf16_f32 v{PK+8*t+r//2}, v{ACC+16*t+r}, v{ACC+16*t+r+1}")
        for f in range(2):
            a(f"buffer_store_dwordx4 {vr(PK+8*t+4*f,4)}, v247, s[20:23], s{(38,41,43,44)[2*t+f]} offen{SC}")
    a("s_waitcnt vmcnt(4)")
    a("s_branch A_P2")
    a.label("A_LIGHT")
    a.nvm, a.nds, lp[0] = saved; xfree[0] = -1; light[0] = True
    for _ in range(6): issue()
    for s_ in range(7):
        a.wait_vm(tag[("x", s_, 3)])
        for ks in range(4):
            a.ds(f"ds_read_b128 {vr(XR+16*s_+4*ks,4)}, v{8+ks} offset:{(s_%3)*4096}")
        a("s_waitcnt lgkmcnt(0)")
        xfree[0] = s_
        for _ in range(6): issue()
    assert lp[0] == len(L)
    a("s_waitcnt vmcnt(0)")
    a.label("A_P2")
    if "dP" in EXP: a("s_sleep 32")
    a.stamp(4)
    a("s_barrier")
    Q, O, S, P, KB, VB, NM, MX, T2 = 16, 48, 112, 144, 160, 192, 224, 228, 232
    VK0, VK1, VV0, VV1, C1, C2 = 10, 11, 12, 13, 252, 253
    class Rec:
        def __init__(self): self.ch = []
        def __call__(self, *ins): self.ch.append(list(ins))
    c = Rec()
    c("s_mul_i32 s33, s26, 28"); c("s_lshr_b32 s44, s33, 6"); c("s_add_u32 s34, s33, 27"); c("s_lshr_b32 s34, s34, 6")
    c("s_sub_u32 s34, s34, s44"); c("s_lshl_b32 s34, s34, 3"); c("s_add_u32 s58, s34, 8")
    c("v_lshrrev_b32 v4, 5, v1")
    c("s_lshl_b32 s34, s26, 9"); c("s_lshl_b32 s36, s24, 7"); c("s_add_u32 s34, s34, s36"); c(f"s_add_u32 s53, s34, {F_KV}")
    c(f"s_mov_b32 s46, {hex(f2u(QSCALE))}"); c("s_mov_b32 s47, s46")
    c("s_lshl_b32 s36, s24, 11"); c("v_add_u32 v6, s36, v2")
    for t in range(1, 4): c(f"v_xor_b32 v{6+t}, {2048*t}, v6")
    c("s_lshr_b32 s34, s26, 1"); c("s_mul_i32 s34, s34, 3584"); c("s_and_b32 s36, s26, 1"); c("s_lshl_b32 s37, s36, 11")
    c("s_add_u32 s34, s34, s37"); c(f"v_add_u32 v{VK0}, s34, v2"); c(f"v_add_u32 v{VK1}, 1024, v{VK0}")
    c(f"s_mul_i32 s37, s36, {2048-8}")
    c("s_mov_b32 exec_lo, 0", f"v_subrev_u32 v{VK1}, s37, v{VK1}", "s_mov_b32 exec_lo, -1")
    c("v_and_b32 v5, 31, v1"); c("v_add_u32 v3, s33, v5"); c("v_lshrrev_b32 v5, 6, v3"); c("v_lshlrev_b32 v5, 7, v5")
    c(f"v_lshl_add_u32 v{VV0}, v3, 4, v5")
    c("s_mul_i32 s34, s44, 1152"); c("s_add_u32 s34, s34, 1024"); c("s_add_u32 s37, s34, 16")
    c("s_mov_b32 exec_lo, 0xf0000000", "s_mov_b32 exec_hi, 0xf0000000", f"v_mov_b32 v{VV0}, s37", "s_mov_b64 exec, -1")
    c(f"v_writelane_b32 v{VV0}, s34, 28"); c(f"v_writelane_b32 v{VV0}, s34, 60")
    c("s_movk_i32 s34, 8064"); c(f"v_mad_u32_u24 v{VV0}, v4, s34, v{VV0}"); c(f"v_add_u32 v{VV1}, 16128, v{VV0}")
    c(f"s_mul_i32 s34, s24, {16*KTS}"); c(f"s_mul_i32 s37, s24, {16*VTS}"); c(f"s_add_u32 s37, s37, {VF}")
    for d, sz, off in ((12, 16 * KTS, "s34"), (16, 16 * VTS, "s37")):
        c(f"s_add_u32 s{d}, s{P_WS}, {off}", f"s_addc_u32 s{d+1}, s{P_WS+1}, 0")
        c(f"s_mov_b32 s{d+2}, {sz}"); c(f"s_mov_b32 s{d+3}, 0x00020000")
    c(f"v_mov_b32 v{C1}, 0x3f803f80"); c(f"v_mov_b32 v{C2}, 0x3f80")
    for r in range(8): c(f"v_mov_b32 v{VB+24+r}, 0")
    for t in range(4): c(f"v_mov_b32 v{NM+t}, 0")
    c("s_mov_b32 s41, 0")
    c("s_cmp_eq_u32 s54, 7", "s_cselect_b32 s59, 1, s24")
    tq = {}
    def trq(u):
        for hr in range(2):
            tq[u] = a.ds(f"ds_read_b64_tr_b16 {vr(WF+(u%8)*4+2*hr,2)}, v15 offset:{(u&3)*12288+(u>>2)*1024+256*hr}")
    for u in range(6): trq(u)
    nonce_take(a, NV)
    for u in range(28):
        if u + 6 < 28: trq(u + 6)
        a.wait_ds(tq[u])
        cc = "0" if u == 0 else vr(QACC, 16)
        a(f"{MF32} {vr(QACC,16)}, {vr(WF+(u%8)*4,4)}, {vr(XR+4*u,4)}, {cc}")
        n = 0
        while c.ch and n < 3:
            for ins in c.ch.pop(0): a(ins); n += 1
    assert not c.ch, len(c.ch)
    def zero_acc():
        for t in range(4):
            a(f"{MF32} {vr(O+16*t,16)}, {vr(VB+24,4)}, {vr(VB+24,4)}, 0")
    zero_acc()
    a("s_cmp_lg_u32 s59, 0")
    a("s_waitcnt vmcnt(0)")
    a("s_barrier")
    a("s_cbranch_scc1 A_NOPUB")
    cnt_add(a, NV, "s42", 243, "s[56:57]")
    a.label("A_NOPUB")
    a.stamp(5)
    if "stopA" in EXP:
        fin(a, 6); a("s_endpgm")
    a.nop(4)
    for r in range(0, 16, 2):
        a(f"v_pk_mul_f32 {vr(QACC+r,2)}, {vr(QACC+r,2)}, s[46:47]")
    for r in range(0, 16, 2):
        a(f"v_cvt_pk_bf16_f32 v{Q+r//2}, v{QACC+r}, v{QACC+r+1}")
    a("s_mov_b32 exec_lo, 0")
    a(f"v_mov_b32 v{Q+6}, 0")
    a(f"v_mov_b32 v{Q+7}, 0")
    a("s_mov_b32 exec_lo, -1")
    for f in range(2):
        a(f"ds_write_b128 v6, {vr(Q+4*f,4)} offset:{1024*f}")
    cnt_load(a, NV + 2, "s53")
    a("s_waitcnt lgkmcnt(0)")
    a("s_barrier")
    for t in range(1, 4):
        for f in range(2):
            a(f"ds_read_b128 {vr(Q+8*t+4*f,4)}, v{6+t} offset:{1024*f}")
    a("s_waitcnt vmcnt(0)")
    cnt_wait(a, NV + 2, "s53", "s58")
    a.stamp(6)
    def first_loads():
        a("s_mov_b32 s44, 0")
        a("s_mov_b32 s45, 0")
        for kt in range(4):
            for f in range(2):
                r = a.vm(f"buffer_load_dwordx4 {vr(KB+8*kt+4*f,4)}, v{VK0+f}, s[12:15], s44 offen{SC}")
            a(f"s_addk_i32 s44, {KTS}")
            if kt == 0: tag = r
            if kt < 3:
                for f in range(2):
                    a.vm(f"buffer_load_dwordx4 {vr(VB+8*kt+4*f,4)}, v{VV0+f}, s[16:19], s45 offen{SC}")
                a(f"s_addk_i32 s45, {VTS}")
        return tag
    def patch(kb):
        a(f"v_mov_b32_dpp v{kb+6}, v{C1} quad_perm:[0,1,2,3] row_mask:0xc bank_mask:0xf")
        a(f"v_mov_b32_dpp v{kb+7}, v{C2} quad_perm:[0,1,2,3] row_mask:0xc bank_mask:0xf")
    tagk0 = first_loads()
    a("s_mov_b32 s42, 0x07060302")
    a("s_min_u32 s33, s32, 27")
    a("s_and_b32 s34, s33, 3")
    a("s_lshl_b32 s47, s31, 2")
    a("s_add_u32 s47, s47, s34")
    a("s_lshr_b32 s48, s33, 2")
    a("s_lshr_b32 s49, s24, 1")
    a("s_lshl_b32 s33, s47, 1")
    a("s_add_u32 s49, s49, s33")
    a("s_and_b32 s50, s24, 1")
    a("s_lshl_b32 s33, s48, 1")
    a("s_add_u32 s50, s50, s33")
    a("v_bfe_u32 v5, v1, 2, 2")
    a("v_lshlrev_b32 v9, 7, v5")
    a("v_bfe_u32 v5, v1, 4, 1")
    a("v_lshl_add_u32 v9, v5, 6, v9")
    a("v_and_b32 v5, 3, v1")
    a("v_lshl_add_u32 v9, v5, 4, v9")
    a("v_lshl_add_u32 v9, v4, 9, v9")
    for t in range(1, 4):
        a(f"s_xor_b32 s33, s24, {t}")
        a("s_mul_i32 s33, s33, 12288")
        a(f"s_add_u32 s33, s33, {(t-1)*4096}")
        a(f"v_add_u32 v{3+t}, s33, v2")
    a("s_mul_i32 s33, s24, 12288")
    a("v_add_u32 v7, s33, v2")
    a("v_or_b32 v8, 512, v7")
    a("s_lshl_b32 s33, s35, 4")
    a("s_add_u32 s33, s33, s26")
    a("s_lshl_b32 s43, s33, 11")
    a(f"s_add_u32 s43, s43, {OF}")
    a("s_lshr_b32 s51, s35, 1")
    a("s_lshl_b32 s51, s51, 9")
    a("s_lshr_b32 s33, s26, 2")
    a("s_lshl_b32 s33, s33, 7")
    a("s_add_u32 s51, s51, s33")
    a(f"s_add_u32 s51, s51, {F_O}")
    a("s_lshl_b32 s33, s50, 7")
    a(f"s_add_u32 s33, s33, {F_B}")
    a("v_mov_b32 v14, s33")
    a("v_mov_b32 v15, 64")
    a("s_lshl_b32 s33, s49, 7")
    a(f"s_add_u32 s33, s33, {F_G}")
    a("v_writelane_b32 v14, s33, 1")
    a("v_writelane_b32 v15, 2, 1")
    a("s_lshl_b32 s33, s24, 7")
    a(f"s_add_u32 s33, s33, {F_WO}")
    a("v_writelane_b32 v14, s33, 2")
    a("v_writelane_b32 v15, 16, 2")
    a("s_waitcnt lgkmcnt(0)")
    a.wait_vm(tagk0)
    a.stamp(7)
    if "dL" in EXP: a("s_sleep 32")
    TT = [S, S + 16, T2, P]
    patch(KB)
    a("s_nop 0")
    for t in range(4):
        a(f"{MF32} {vr(TT[t],16)}, {vr(KB,4)}, {vr(Q+8*t,4)}, 0")
        a(f"{MF32} {vr(TT[t],16)}, {vr(KB+4,4)}, {vr(Q+8*t+4,4)}, {vr(TT[t],16)}")
    a.nop(8)
    for tp in (0, 2):
        for i in range(8):
            for t in (tp, tp + 1):
                if i == 0:
                    a(f"v_max3_f32 v{MX+t}, v{TT[t]}, v{TT[t]+1}, v{TT[t]+2}")
                elif i < 7:
                    a(f"v_max3_f32 v{MX+t}, v{MX+t}, v{TT[t]+2*i+1}, v{TT[t]+2*i+2}")
                else:
                    a(f"v_max_f32 v{MX+t}, v{MX+t}, v{TT[t]+15}")
    a.label("A_SETMAX")
    for t in range(4):
        a(f"v_mov_b32 v{T2+t}, v{MX+t}")
    for r in range(2):
        a(f"v_mov_b32 v{P+8+r}, 0")
    for t in range(4):
        a(f"v_permlane32_swap_b32 v{T2+t}, v{MX+t}")
    for t in range(4):
        a(f"v_max_f32 v{MX+t}, v{MX+t}, v{T2+t}")
    for t in range(4):
        a(f"v_sub_f32 v{NM+t}, v{NM+t}, v{MX+t}")
    for t in range(4):
        a(f"v_and_b32 v{T2+t}, 0xffff0000, v{NM+t}")
    for t in range(4):
        a(f"v_sub_f32 v{T2+t}, v{NM+t}, v{T2+t}")
    for t in range(4):
        a(f"v_and_b32 v{T2+4+t}, 0xffff0000, v{T2+t}")
    for t in range(4):
        a(f"v_sub_f32 v{T2+4+t}, v{T2+t}, v{T2+4+t}")
    a("s_mov_b32 exec_lo, 0")
    for t in range(4):
        a(f"v_perm_b32 v{Q+8*t+6}, v{T2+t}, v{NM+t}, s42")
        a(f"v_lshrrev_b32 v{Q+8*t+7}, 16, v{T2+4+t}")
    a("s_mov_b32 exec_lo, -1")
    a(f"{MF32} {vr(S,16)}, {vr(KB,4)}, {vr(Q,4)}, 0")
    a(f"{MF32} {vr(S,16)}, {vr(KB+4,4)}, {vr(Q+4,4)}, {vr(S,16)}")
    for r in range(2, 8):
        a(f"v_mov_b32 v{P+8+r}, 0")
    a("s_mov_b32 s46, 4")
    a("s_setprio 0")
    a.nop(3)
    a.label("A_LOOP")
    for n in range(16):
        kt, t = n >> 2, n & 3
        n1 = (n + 1) & 15; kt1, t1 = n1 >> 2, n1 & 3
        n0 = (n - 1) & 15; kt0, t0 = n0 >> 2, n0 & 3
        sc = S + 16 * (n & 1); sn = S + 16 * (n1 & 1)
        pc = P + 8 * (n & 1); pp = P + 8 * (n0 & 1)
        mf = [f"{MF32} {vr(sn,16)}, {vr(KB+8*kt1,4)}, {vr(Q+8*t1,4)}, 0",
              f"{MF32} {vr(sn,16)}, {vr(KB+8*kt1+4,4)}, {vr(Q+8*t1+4,4)}, {vr(sn,16)}",
              f"{MF32} {vr(O+16*t0,16)}, {vr(VB+8*kt0,4)}, {vr(pp,4)}, {vr(O+16*t0,16)}",
              f"{MF32} {vr(O+16*t0,16)}, {vr(VB+8*kt0+4,4)}, {vr(pp+4,4)}, {vr(O+16*t0,16)}"]
        for m in range(4):
            if (m == 0 and t == 3) or (m == 2 and t == 1):
                a("s_waitcnt vmcnt(12)")
            a(mf[m])
            if m == 0 and t == 3:
                patch(KB + 8 * kt1)
            for e in range(4):
                a(f"v_exp_f32 v{sc+4*m+e}, v{sc+4*m+e}")
                if m == 1 and t == 2 and e in (0, 1):
                    a(f"buffer_load_dwordx4 {vr(KB+8*kt+4*e,4)}, v{VK0+e}, s[12:15], s44 offen{SC}")
                if m == 1 and t == 2 and e == 2:
                    a(f"s_addk_i32 s44, {KTS}")
                if m == 3 and t == 0 and e in (0, 1):
                    a(f"buffer_load_dwordx4 {vr(VB+8*kt0+4*e,4)}, v{VV0+e}, s[16:19], s45 offen{SC}")
                if m == 3 and t == 0 and e == 2:
                    a(f"s_addk_i32 s45, {VTS}")
                if n == 0 and m == 3 and e == 3:
                    a("s_cmp_lg_u32 s46, 1")
                    a("s_cbranch_scc1 A_NOFL")
                    late_load(a, 248, 14)
                    a.label("A_NOFL")
                if n == 15 and m == 3 and e == 0:
                    a("s_sub_u32 s46, s46, 1")
                if n == 15 and m == 3 and e == 1:
                    a("s_cmp_lg_u32 s46, 0")
            for c in range(2):
                a(f"v_cvt_pk_bf16_f32 v{pc+2*m+c}, v{sc+4*m+2*c}, v{sc+4*m+2*c+1}")
    a("s_cbranch_scc1 A_LOOP")
    a.stamp(8)
    a("s_nop 0")
    a(f"{MF32} {vr(O+48,16)}, {vr(VB+24,4)}, {vr(P+8,4)}, {vr(O+48,16)}")
    a(f"{MF32} {vr(O+48,16)}, {vr(VB+28,4)}, {vr(P+12,4)}, {vr(O+48,16)}")
    a("v_mov_b32 v3, 0x5f800000")
    a("s_mov_b32 exec_lo, 0")
    for t in range(3):
        a(f"v_cmp_nlt_f32 {sr(4+2*t,2)}, v{O+16*t+12}, v3")
    for t in range(1, 3):
        a(f"v_mov_b32 v{O+16*t+13}, v{NM+t}")
    a("s_mov_b32 exec_lo, -1")
    for t in range(1, 3):
        for q in range(4):
            a(f"ds_write_b128 v{3+t}, {vr(O+16*t+4*q,4)} offset:{1024*q}")
    a("s_mov_b32 exec_lo, 0")
    a(f"v_cmp_nlt_f32 vcc, v{O+48+12}, v3")
    a(f"v_mov_b32 v{O+48+13}, v{NM+3}")
    a("s_mov_b32 exec_lo, -1")
    a("s_or_b32 s5, s5, s7")
    a("s_or_b32 s5, s5, s9")
    a("s_or_b32 s5, s5, vcc_hi")
    a("s_andn2_b32 s5, s5, s41")
    a("s_cbranch_scc1 A_FALLBACK")
    for q in range(4):
        a(f"ds_write_b128 v6, {vr(O+48+4*q,4)} offset:{1024*q}")
    a(f"v_mov_b32 v{T2}, v{O+12}")
    a(f"v_mov_b32 v{T2+1}, v{O+12}")
    a("v_add_u32 v10, 4096, v2")
    a("s_lshl_b32 s33, s24, 13")
    a(f"s_add_u32 s33, s33, {WOF}")
    a("s_lshl_b32 s36, s50, 15")
    a("s_add_u32 s36, s36, s33")
    a("s_xor_b32 s37, s50, 1")
    a("s_lshl_b32 s37, s37, 15")
    a("s_add_u32 s37, s37, s33")
    a("v_lshrrev_b32 v11, 5, v1")
    a("v_lshlrev_b32 v12, 6, v11")
    a("s_lshl_b32 s38, s49, 7")
    a(f"s_add_u32 s38, s38, {GO}")
    a("v_and_b32 v13, 31, v1")
    a("v_lshlrev_b32 v3, 12, v13")
    a("v_lshl_add_u32 v3, v11, 4, v3")
    a("s_lshl_b32 s39, s50, 17")
    a("s_lshr_b32 s34, s49, 4")
    a("s_lshl_b32 s34, s34, 10")
    a("s_add_u32 s39, s39, s34")
    a("s_and_b32 s34, s49, 15")
    a("s_lshl_b32 s34, s34, 5")
    a("s_add_u32 s39, s39, s34")
    a(f"s_add_u32 s39, s39, {BT}")
    a("s_waitcnt lgkmcnt(0)")
    a("s_barrier")
    LM = T2 + 2
    for s in range(3):
        a(f"ds_read_b64 {vr(LM+2*s,2)}, v8 offset:{4096*s+3072}")
    RB = O + 16
    for s in range(3):
        for q in range(4):
            a(f"ds_read_b128 {vr(RB+16*s+4*q,4)}, v7 offset:{4096*s+1024*q}")
    a(f"v_permlane32_swap_b32 v{T2}, v{T2+1}")
    a("s_waitcnt lgkmcnt(12)")
    a(f"v_min3_f32 v{MX}, v{NM}, v{LM+1}, v{LM+3}")
    a(f"v_min_f32 v{MX}, v{MX}, v{LM+5}")
    a(f"v_sub_f32 v{S}, v{MX}, v{NM}")
    for s in range(3):
        a(f"v_sub_f32 v{S+2+2*s}, v{MX}, v{LM+2*s+1}")
    for s in range(4):
        a(f"v_exp_f32 v{S+2*s}, v{S+2*s}")
    a(f"v_mul_f32 v{MX+1}, v{S}, v{T2+1}")
    for s in range(3):
        a(f"v_fmac_f32 v{MX+1}, v{S+2+2*s}, v{LM+2*s}")
    a(f"v_rcp_f32 v{MX+1}, v{MX+1}")
    a("s_nop 0")
    for s in range(4):
        a(f"v_mul_f32 v{S+2*s}, v{S+2*s}, v{MX+1}")
    for r in range(0, 16, 2):
        a(f"v_pk_mul_f32 {vr(O+r,2)}, {vr(O+r,2)}, {vr(S,2)} op_sel_hi:[1,0]")
    for s in range(3):
        a(f"s_waitcnt lgkmcnt({8-4*s})")
        for r in range(0, 16, 2):
            a(f"v_pk_fma_f32 {vr(O+r,2)}, {vr(RB+16*s+r,2)}, {vr(S+2+2*s,2)}, {vr(O+r,2)} op_sel_hi:[1,0,1]")
    for r in range(0, 16, 2):
        a(f"v_cvt_pk_bf16_f32 v{P+r//2}, v{O+r}, v{O+r+1}")
    a("s_mov_b32 exec_lo, 0")
    a(f"v_mov_b32 v{P+6}, 0")
    a(f"v_mov_b32 v{P+7}, 0")
    a("s_mov_b32 exec_lo, -1")
    a.nvm = 0
    for f in range(2):
        tagos = a.vm(f"buffer_store_dwordx4 {vr(P+4*f,4)}, v9, s[20:23], s43 offen offset:{1024*f}{SC}")
    a.stamp(9)
    a("s_barrier")
    late_check(a, 248, 14, 15)
    WB, GG, BB = KB, Q, Q + 16
    NPRE = int(os.environ.get("NPRE", "4"))
    def wo_load(i):
        for x in range(2):
            a.vm(f"buffer_load_dwordx4 {vr(WB+8*i+4*x,4)}, v{2 if i<4 else 10}, s[20:23], s{36+x} offen offset:{1024*(i&3)}{SC}")
    for i in range(NPRE): wo_load(i)
    a("s_lshl_b32 s52, s47, 9")
    a("s_lshl_b32 s33, s24, 7")
    a("s_add_u32 s52, s52, s33")
    a(f"s_add_u32 s52, s52, {F_O}")
    a.wait_vm(tagos)
    cnt_add(a, 252, "s51")
    a("s_cmp_ge_u32 s32, 28")
    a("s_cbranch_scc1 L_END")
    for i in range(NPRE, 8): wo_load(i)
    for i in range(4):
        a.vm(f"buffer_load_dwordx4 {vr(GG+4*i,4)}, v12, s[20:23], s38 offen offset:{16*i}{SC}")
    for i in range(2):
        a.vm(f"buffer_load_dwordx4 {vr(BB+4*i,4)}, v3, s[20:23], s39 offen offset:{512*i}{SC}")
    cnt_load(a, 250, "s52")
    a("s_lshl_b32 s33, s24, 13")
    a(f"s_add_u32 s33, s33, {OF}")
    a("s_lshl_b32 s36, s49, 15")
    a("s_add_u32 s36, s36, s33")
    a("s_xor_b32 s37, s49, 1")
    a("s_lshl_b32 s37, s37, 15")
    a("s_add_u32 s37, s37, s33")
    a.srd(12, P_OUT, X_BYTES)
    a("v_mul_u32_u24 v12, 14336, v11")
    a("v_lshl_add_u32 v12, v13, 1, v12")
    a("s_mul_i32 s44, s49, 28672")
    a("s_lshl_b32 s33, s50, 6")
    a("s_add_u32 s44, s44, s33")
    for i in range(1, 4):
        a(f"s_add_u32 s{44+i}, s44, {3584*i}")
    a("s_waitcnt vmcnt(0)")
    BU = 232
    for i in range(8):
        a(f"v_lshlrev_b32 v{BU+2*i}, 16, v{BB+i}")
        a(f"v_and_b32 v{BU+2*i+1}, 0xffff0000, v{BB+i}")
    cnt_wait(a, 250, "s52", 8)
    a.stamp(10)
    AF = O
    tags = []
    for i in range(8):
        for x in range(2):
            t = a.vm(f"buffer_load_dwordx4 {vr(AF+8*i+4*x,4)}, v{2 if i<4 else 10}, s[20:23], s{36+x} offen offset:{1024*(i&3)}{SC}")
        tags.append(t)
    AC = [BB, S, S + 16, P]
    for i in range(8):
        a.wait_vm(tags[i])
        for t in (3, 2, 1, 0):
            sa, sb = t >> 1, t & 1
            c = "0" if i == 0 else vr(AC[t], 16)
            a(f"{MF32} {vr(AC[t],16)}, {vr(AF+8*i+4*sa,4)}, {vr(WB+8*i+4*sb,4)}, {c}")
    a.nop(9)
    a.stamp(11)
    for t in (3, 2, 1):
        for q in range(4):
            a(f"ds_write_b128 v{3+t}, {vr(AC[t]+4*q,4)} offset:{1024*q}")
    for r in range(0, 16, 2):
        a(f"v_pk_add_f32 {vr(AC[0]+r,2)}, {vr(AC[0]+r,2)}, {vr(BU+r,2)} neg_lo:[0,1] neg_hi:[0,1]")
    a("s_waitcnt lgkmcnt(0)")
    a("s_barrier")
    for s in range(3):
        for q in range(4):
            a(f"ds_read_b128 {vr(AF+16*s+4*q,4)}, v7 offset:{4096*s+1024*q}")
    for s in range(3):
        a(f"s_waitcnt lgkmcnt({8-4*s})")
        for r in range(0, 16, 2):
            a(f"v_pk_add_f32 {vr(AC[0]+r,2)}, {vr(AC[0]+r,2)}, {vr(AF+16*s+r,2)}")
    for r in range(0, 16, 2):
        a(f"v_pk_fma_f32 {vr(AC[0]+r,2)}, {vr(AC[0]+r,2)}, {vr(GG+r,2)}, {vr(BU+r,2)}")
    for r in range(0, 16, 2):
        a(f"v_cvt_pk_bf16_f32 v{AF+r//2}, v{AC[0]+r}, v{AC[0]+r+1}")
    for r in range(16):
        op = "buffer_store_short_d16_hi" if r & 1 else "buffer_store_short"
        a(f"{op} v{AF+r//2}, v12, s[12:15], s{44+(r>>2)} offen offset:{896*(r&3)}")
    fin(a, 12)
    a("s_endpgm")
    a.label("A_FALLBACK")
    a("s_mov_b32 s41, -1")
    for t in range(4):
        a(f"v_mov_b32 v{MX+t}, 0xff800000")
    a("s_mov_b32 s44, 0")
    a("s_waitcnt vmcnt(0) lgkmcnt(0)")
    a.label("A_FBLOOP")
    for f in range(2):
        a(f"buffer_load_dwordx4 {vr(KB+4*f,4)}, v{VK0+f}, s[12:15], s44 offen{SC}")
    a("s_waitcnt vmcnt(0)")
    patch(KB)
    a("s_nop 1")
    for t in range(4):
        a(f"{MF32} {vr(O+16*t,16)}, {vr(KB,4)}, {vr(Q+8*t,4)}, 0")
        a(f"{MF32} {vr(O+16*t,16)}, {vr(KB+4,4)}, {vr(Q+8*t+4,4)}, {vr(O+16*t,16)}")
    a.nop(16)
    for i in range(8):
        for t in range(4):
            a(f"v_max3_f32 v{MX+t}, v{MX+t}, v{O+16*t+2*i}, v{O+16*t+2*i+1}")
    a(f"s_addk_i32 s44, {KTS}")
    a(f"s_cmp_lt_u32 s44, {16*KTS}")
    a("s_cbranch_scc1 A_FBLOOP")
    for r in range(8):
        a(f"v_mov_b32 v{VB+24+r}, 0")
    first_loads()
    zero_acc()
    a("s_waitcnt vmcnt(0)")
    patch(KB)
    a("s_branch A_SETMAX")

def gen_B(a):
    a.label("L_B")
    a(f"s_setprio {PB}")
    a.stamp(1)
    if "noB" in EXP: a("s_endpgm")
    if "dB" in EXP:
        a("s_waitcnt vmcnt(0)"); a("s_sleep 32")
    TS = 272; TW = 64 * TS
    UB = 4 * TW
    US = 4608
    YB, XB, KACC, FR, CT = 16, 80, 136, 152, 216
    Z1, Z256, TM = 224, 226, 226
    a(f"s_mul_i32 s29, s24, {TW}")
    a("s_mov_b32 m0, s29")
    a("v_mov_b32 v15, 0x3f80")
    a(f"ds_write_addtid_b32 v15 offset:{32*TS}")
    a("v_and_b32 v12, 31, v1")
    a(f"v_mul_u32_u24 v12, {TS}, v12")
    a("v_lshrrev_b32 v13, 5, v1")
    a("v_lshl_add_u32 v12, v13, 4, v12")
    a("v_add_u32 v240, s29, v12")
    for r in range(16):
        a(f"v_mov_b32 v{KACC+r}, 0")
    a(f"v_mul_u32_u24 v12, {US-512}, v13")
    a("v_add_u32 v12, v12, v2")
    a(f"v_add_u32 v12, {UB}, v12")
    a(f"ds_write_b128 v12, {vr(KACC,4)}")
    a("s_and_b32 s42, s2, 31")
    a("s_lshl_b32 s42, s42, 7")
    a(f"s_add_u32 s42, s42, {F_XT}")
    a("v_lshrrev_b32 v12, 1, v1")
    a("v_and_b32 v13, 1, v1")
    a(f"v_mul_u32_u24 v3, {XTS}, v12")
    a("v_lshl_add_u32 v3, v13, 4, v3")
    a(f"s_mul_i32 s43, s24, {64*XTS}")
    a("s_mul_i32 s33, s31, 896")
    a("s_add_u32 s43, s43, s33")
    a("s_lshl_b32 s33, s39, 4")
    a("s_add_u32 s43, s43, s33")
    a(f"s_add_u32 s43, s43, {XT}")
    a(f"s_add_u32 s44, s43, {32*XTS}")
    a(f"v_mul_u32_u24 v241, {US}, v13")
    a("v_lshl_add_u32 v241, v12, 4, v241")
    a("s_lshl_b32 s33, s24, 10")
    a(f"s_add_u32 s33, s33, {UB + 512}")
    a("v_add_u32 v241, s33, v241")
    a("s_waitcnt lgkmcnt(0)")
    a("s_and_b32 s33, s26, 1")
    a("s_lshl_b32 s33, s33, 4")
    a("s_lshr_b32 s28, s28, s33")
    a("s_lshl_b32 s28, s28, 16")
    a("s_lshr_b32 s38, s38, s33")
    a("s_lshl_b32 s38, s38, 16")
    hi = float(np.float32(LOG2E)); lo = float(np.float32(LOG2E - hi))
    a(f"v_mov_b32 v13, {hex(f2u(hi))}")
    a("v_mul_f32 v14, s28, v13")
    a("v_fma_f32 v13, s28, v13, -v14")
    a(f"v_mov_b32 v15, {hex(f2u(lo))}")
    a("v_fmac_f32 v13, s28, v15")
    a("v_exp_f32 v14, v14")
    a(f"v_mul_f32 v13, {hex(f2u(math.log(2)))}, v13")
    a("v_fmac_f32 v14, v14, v13")
    a("v_cvt_pk_bf16_f32 v14, v14, v14")
    a("v_and_b32 v14, 0xffff0000, v14")
    a(f"s_mov_b32 s48, {hex(f2u(LOG2E))}")
    a(f"s_mov_b32 s49, {hex(f2u(1/(2*math.pi)))}")
    a("s_mov_b32 s30, 2")
    a("s_waitcnt vmcnt(0)")
    a.stamp(2)
    a.label("B_PASS")
    a("s_cmp_eq_u32 s30, 2")
    for i in range(6):
        a(f"v_and_b32 v{8+i}, 0xffff0000, v{RAW+i}")
    for i in range(6):
        a(f"v_lshlrev_b32 v{RAW+i}, 16, v{RAW+i}")
    r1 = [0, 0, 2, 4, 4, 4, 6, 8, 8]
    P_ = {}
    for r in range(9): P_[(0, r)] = r; P_[(1, r)] = 256 + r1[r]
    for i, e in enumerate((0, 4, 8)): P_[(0, 9 + i)] = 512 + e; P_[(1, 9 + i)] = 768 + e
    for i, e in enumerate((0, 8)):
        P_[(0, 12 + i)] = 1024 + e; P_[(1, 12 + i)] = 1280 + e; P_[(0, 14 + i)] = 1536 + e; P_[(1, 14 + i)] = 1792 + e
    plist = sorted(set(P_.values()))
    xreg = {p: XB + 2 * i for i, p in enumerate(plist)}
    rows_of = {p: [8 * (r >> 2) + 4 * h + (r & 3) for (h, r), pp in P_.items() if pp == p] for p in plist}
    yreg = {j: YB + 2 * j for j in range(1, 32)}
    a("v_pk_mul_f32 v[8:9], v[8:9], v[14:15] op_sel_hi:[1,0]")
    cmul(a, xreg[0], 12, 10, 0)
    a("v_pk_mul_f32 v[8:9], v[8:9], s[48:49]")
    cmul(a, xreg[0], 12, 10, 1)
    a(f"v_mul_f32 v{TM+2}, 0x41000000, v8")
    a(f"v_mul_f32 v{TM+3}, 0x41000000, v9")
    a(f"v_mul_f32 v{TM+4}, 0x43800000, v8")
    a(f"v_mul_f32 v{TM+5}, 0x43800000, v9")
    a(f"v_pk_mul_f32 {vr(xreg[0],2)}, {vr(xreg[0],2)}, v[14:15] op_sel_hi:[1,0]")
    anchors = [(TM + 2, yreg[1]), (8, Z1), (TM + 4, Z256)]
    for s_, d_ in anchors:
        a(f"v_fract_f32 v{s_+1}, v{s_+1}")
        a(f"v_exp_f32 v{s_}, v{s_}")
    for s_, d_ in anchors:
        a(f"v_cos_f32 v{d_}, v{s_+1}")
        a(f"v_sin_f32 v{d_+1}, v{s_+1}")
    a("s_nop 0")
    for s_, d_ in anchors:
        a(f"v_pk_mul_f32 {vr(d_,2)}, {vr(d_,2)}, {vr(s_,2)} op_sel_hi:[1,0]")
    ops = []
    ops += [(("Y", 2), ("Y", 1), ("Y", 1)), (("Y", 3), ("Y", 2), ("Y", 1)), (("Y", 4), ("Y", 2), ("Y", 2))]
    ops += [(("Y", 4 + k), ("Y", 4), ("Y", k)) for k in (4, 1, 2, 3)]
    ops += [(("Y", 8 + k), ("Y", 8), ("Y", k)) for k in (8, 1, 2, 3, 4, 5, 6, 7)]
    ops += [(("Y", 16 + k), ("Y", 16), ("Y", k)) for k in range(1, 16)]
    xo = [(("X", 8), ("X", 0), ("Y", 1))]
    xo += [(("X", e + 1), ("X", e), ("Z", 1)) for e in range(7)]
    for base, es in ((256, (0, 8, 4, 2, 6)), (512, (0, 8, 4)), (768, (0, 8, 4)), (1024, (0, 8)), (1280, (0, 8)), (1536, (0, 8)), (1792, (0, 8))):
        xo += [(("X", base + e), ("X", base - 256 + e), ("Z", 256)) for e in es]
    def reg(n):
        return {"Y": yreg, "X": xreg, "Z": {1: Z1, 256: Z256}}[n[0]][n[1]]
    done = {("Y", 1), ("X", 0), ("Z", 1), ("Z", 256)}
    allops = xo + ops
    memo = {}
    def height(n):
        if n in memo: return memo[n]
        h = 0
        for (d, x, y) in allops:
            if x == n or y == n: h = max(h, 1 + height(d))
        memo[n] = h
        return h
    pending = sorted(allops, key=lambda o: -height(o[0]))
    towrite = [("Y", 1), ("X", 0)]
    ct = [0]
    WB = int(os.environ.get("WB", "16"))
    wq = []
    def flush_w():
        for ins in wq: a(ins)
        wq.clear()
    def emit_write(n):
        t = (CT + (ct[0] % 8)) if WB == 1 else (FR + ct[0]); ct[0] += 1
        r = reg(n)
        if n[0] == "Y":
            a(f"v_cvt_pk_bf16_f32 v{t}, v{r}, v{r+1}")
            wq.append(f"ds_write_addtid_b32 v{t} offset:{(32+n[1])*TS}")
        else:
            a(f"v_cvt_pk_bf16_f32 v{t}, v{r}, -v{r+1}")
            for m in rows_of[n[1]]:
                wq.append(f"ds_write_addtid_b32 v{t} offset:{m*TS}")
        if len(wq) >= WB: flush_w()
    nb = 0
    UL = XRW
    PB0 = int(os.environ.get('PB0', '9')); PB1 = int(os.environ.get('PB1', '14'))
    while pending:
        batch = [o for o in pending if o[1] in done and o[2] in done][:4]
        for o in batch: pending.remove(o)
        for (d, x, y) in batch: cmul(a, reg(d), reg(x), reg(y), 0)
        w = towrite; towrite = []
        for n in w[:2]: emit_write(n)
        for (d, x, y) in batch: cmul(a, reg(d), reg(x), reg(y), 1)
        for n in w[2:]: emit_write(n)
        for (d, x, y) in batch:
            done.add(d); towrite.append(d)
        nb += 1
        if nb == PB0:
            a("s_cbranch_scc1 B_P1")
            a("s_setprio 3")
            nonce_issue(a, 250)
            a(f"s_setprio {PB}")
            a.label("B_P1")
        if nb == PB1:
            a("s_lshl_b32 s33, s24, 1")
            a("s_add_u32 s33, s33, s30")
            a("s_cmp_lg_u32 s33, 1")
            a("s_cbranch_scc1 B_P3")
            a("s_waitcnt vmcnt(0)")
            nonce_take(a, 250)
            a("s_setprio 3")
            cnt_load(a, 250, "s42")
            a(f"s_setprio {PB}")
            a.label("B_P3")
    for n in towrite: emit_write(n)
    flush_w()
    for ks in range(8):
        a(f"ds_read_b128 {vr(FR+8*ks,4)}, v240 offset:{32*ks}")
        a(f"ds_read_b128 {vr(FR+8*ks+4,4)}, v240 offset:{32*TS+32*ks}")
    for ks in range(8):
        a(f"s_waitcnt lgkmcnt({14-2*ks})")
        a(f"{MF32} {vr(KACC,16)}, {vr(FR+8*ks,4)}, {vr(FR+8*ks+4,4)}, {vr(KACC,16)}")
    a("s_sub_u32 s30, s30, 1")
    a("s_cmp_lg_u32 s30, 0")
    a("s_cbranch_scc1 B_PASS")
    a.stamp(3)
    a("v_add_u32 v242, s29, v2")
    a("s_xor_b32 s33, s24, 1")
    a(f"s_mul_i32 s33, s33, {TW}")
    a("v_add_u32 v243, s33, v2")
    a("s_and_b32 s33, s24, 2")
    a(f"s_mul_i32 s48, s33, {TW}")
    a("s_add_u32 s48, s48, 4096")
    a("s_mul_i32 s33, s27, 4160")
    a("s_add_u32 s49, s33, s48")
    a("v_sub_u32 v6, 63, v1")
    a("v_lshlrev_b32 v6, 4, v6")
    a("v_add_u32 v6, s49, v6")
    a("v_and_b32 v7, 1, v1")
    a("v_cmp_eq_u32 vcc, 1, v7")
    for q in range(4):
        a(f"ds_write_b128 v242, {vr(KACC+4*q,4)} offset:{1024*q}")
    a("v_lshrrev_b32 v4, 4, v1")
    a("v_and_b32 v5, 15, v1")
    a("v_add_u32 v7, 1, v5")
    a("v_lshrrev_b32 v7, 1, v7")
    a("v_lshlrev_b32 v8, 2, v4")
    a("v_sub_u32 v8, v8, v7")
    a("v_and_b32 v7, 1, v5")
    a("v_mul_u32_u24 v7, 1040, v7")
    a("v_sub_u32 v8, v8, v7")
    a(f"v_add_u32 v8, {1016 + 1040 - 48 - 128}, v8")
    a("v_lshlrev_b32 v8, 2, v8")
    a("s_lshl_b32 s33, s27, 8")
    a("s_sub_u32 s33, s48, s33")
    a("v_add_u32 v8, s33, v8")
    for i in range(1, 4):
        a(f"v_subrev_u32 v{8+i}, {1024*i}, v8")
    a("s_cmp_lg_u32 s24, 0")
    a("s_cbranch_scc1 B_NOPOLL")
    a("s_waitcnt vmcnt(0)")
    cnt_wait(a, 250, "s42", 32, 6)
    a.label("B_NOPOLL")
    a("s_waitcnt lgkmcnt(0)")
    a("s_barrier")
    a.stamp(7)
    a("s_setprio 3")
    for i in range(2):
        a(f"buffer_load_dwordx4 {vr(UL+4*i,4)}, v3, s[20:23], s{43+i} offen{SC}")
    a(f"s_setprio {PC}")
    for q in range(4):
        a(f"ds_read_b128 {vr(FR+4*q,4)}, v243 offset:{1024*q}")
    a("s_lshr_b32 s33, s24, 1")
    a(f"s_mul_i32 s36, s33, {US}")
    a(f"s_add_u32 s36, s36, {UB + 512}")
    a("v_lshlrev_b32 v12, 5, v5")
    a("v_lshl_add_u32 v13, v4, 3, v12")
    a("v_lshl_add_u32 v12, v4, 4, v12")
    a("s_lshl_b32 s33, s27, 8")
    a("s_sub_u32 s33, s36, s33")
    a(f"s_sub_u32 s33, s33, {32 + 192}")
    a("v_add_u32 v12, s33, v12")
    a("s_lshl_b32 s33, s27, 11")
    a("s_add_u32 s33, s33, s36")
    a("v_add_u32 v13, s33, v13")
    a("s_lshl_b32 s40, s26, 1")
    a("s_add_u32 s40, s40, s27")
    a("s_lshl_b32 s41, s40, 11")
    a(f"s_add_u32 s41, s41, {BT}")
    a("s_lshr_b32 s40, s26, 5")
    a("s_lshl_b32 s40, s40, 7")
    a(f"s_add_u32 s40, s40, {F_B}")
    a("s_waitcnt lgkmcnt(0)")
    for r in range(0, 16, 2):
        a(f"v_pk_add_f32 {vr(KACC+r,2)}, {vr(KACC+r,2)}, {vr(FR+r,2)}")
    K_ = KACC; W_ = FR + 16
    a(f"v_cndmask_b32 v{CT}, v{K_+12}, v{K_+13}, vcc")
    a(f"v_cndmask_b32 v{CT+1}, v{K_+14}, v{K_+15}, vcc")
    for i in range(4):
        a(f"v_mov_b32 v{W_+16+i}, 0")
    def pk(d, lo_, hi_): a(f"v_cvt_pk_bf16_f32 v{d}, v{lo_}, v{hi_}")
    a("s_cmp_eq_u32 s27, 1")
    a("s_cbranch_scc1 B_ODD")
    A_, B_, C_ = K_ + 9, K_ + 10, K_ + 11
    for i in range(4): pk(W_ + i, K_ + 7 - 2 * i, K_ + 6 - 2 * i)
    for i, (x, y) in enumerate(((C_, C_), (B_, B_), (B_, A_), (A_, A_))): pk(W_ + 4 + i, x, y)
    for sl in range(2):
        A2, C2, M2 = K_ + 12 + 2 * sl, K_ + 13 + 2 * sl, CT + sl
        for i, (x, y) in enumerate(((C2, C2), (C2, M2), (A2, A2), (A2, A2))): pk(W_ + 8 + 4 * sl + i, x, y)
    a("s_branch B_IMG")
    a.label("B_ODD")
    for i in range(4): pk(W_ + i, K_ + 8 - 2 * i, K_ + 7 - 2 * i)
    for i, (x, y) in enumerate(((C_, C_), (C_, B_), (B_, B_), (A_, A_))): pk(W_ + 4 + i, x, y)
    for sl in range(2):
        A2, C2, M2 = K_ + 12 + 2 * sl, K_ + 13 + 2 * sl, CT + sl
        for i, (x, y) in enumerate(((C2, C2), (C2, C2), (M2, A2), (A2, A2))): pk(W_ + 8 + 4 * sl + i, x, y)
    a("s_mov_b64 exec, 1")
    pk(W_ + 16, K_, VZ)
    a("s_mov_b64 exec, -1")
    a.label("B_IMG")
    for sl in range(4):
        a(f"ds_write_b128 v6, {vr(W_+4*sl,4)} offset:{(3-sl)*1024}")
    a("v_add_u32 v7, s49, v2")
    a("s_mov_b64 exec, 3")
    a(f"ds_write_b128 v7, {vr(W_+16,4)} offset:4096")
    a("s_mov_b64 exec, -1")
    a("s_waitcnt vmcnt(0)")
    for i in range(2):
        a(f"ds_write_b128 v241, {vr(UL+4*i,4)} offset:{512*i}")
    a("s_waitcnt lgkmcnt(0)")
    a("s_barrier")
    a.stamp(4)
    FB, CAC = 16, 144
    a.nds = 0
    tg = {}
    def loadstep(stp):
        b = FB + 64 * (stp & 1)
        for i in range(8):
            o = 128 * (1 - (i & 1)) + 16 * (3 - stp)
            a.ds(f"ds_read2_b32 {vr(b+4*i,2)}, v{8+(i>>1)} offset0:{o} offset1:{o+1}")
            a.ds(f"ds_read2_b32 {vr(b+4*i+2,2)}, v{8+(i>>1)} offset0:{o+2} offset1:{o+3}")
            tg[(stp, i)] = a.ds(f"ds_read_b128 {vr(b+32+4*i,4)}, v12 offset:{512*i+64*(3-stp)}")
    loadstep(0)
    for stp in range(4):
        b = FB + 64 * (stp & 1)
        order = sorted([(i, tp) for i in range(8) for tp in range(8 - i)], key=lambda x: (max(x), x[0] + x[1]))
        nxt = []
        if stp < 3:
            b2 = FB + 64 * ((stp + 1) & 1)
            for i in range(8):
                o = 128 * (1 - (i & 1)) + 16 * (3 - stp - 1)
                nxt.append((None, f"ds_read2_b32 {vr(b2+4*i,2)}, v{8+(i>>1)} offset0:{o} offset1:{o+1}"))
                nxt.append((None, f"ds_read2_b32 {vr(b2+4*i+2,2)}, v{8+(i>>1)} offset0:{o+2} offset1:{o+3}"))
                nxt.append(((stp + 1, i), f"ds_read_b128 {vr(b2+32+4*i,4)}, v12 offset:{512*i+64*(3-stp-1)}"))
        waited = -1
        seen = set()
        for k, (i, tp) in enumerate(order):
            if max(i, tp) > waited:
                waited = max(i, tp)
                a.wait_ds(tg[(stp, waited)])
            t = i + tp
            c = vr(CAC + 4 * t, 4)
            if stp == 0 and t not in seen:
                c = "0"; seen.add(t)
            a(f"{MF16} {vr(CAC+4*t,4)}, {vr(b+4*i,4)}, {vr(b+32+4*tp,4)}, {c}")
            if k >= 8 and nxt:
                key, ins = nxt.pop(0)
                r = a.ds(ins)
                if key: tg[key] = r
        assert not nxt
    a.stamp(5)
    RR = 16
    for tl in range(4):
        a(f"ds_read_b64 {vr(80+2*tl,2)}, v13 offset:{512*tl}")
    a("s_cmp_eq_u32 s27, 1")
    a.nop(3)
    a("s_cbranch_scc1 B_R1")
    for par in range(2):
        if par: a.label("B_R1")
        for q in range(4):
            a(f"ds_write_b128 v242, {vr(CAC+16*(1-par)+4*q,4)} offset:{1024*q}")
        a("s_waitcnt lgkmcnt(0)")
        a("s_barrier")
        for q in range(4):
            a(f"ds_read_b128 {vr(RR+4*q,4)}, v243 offset:{1024*q}")
        a("s_waitcnt lgkmcnt(0)")
        for r in range(0, 16, 2):
            a(f"v_pk_add_f32 {vr(RR+r,2)}, {vr(RR+r,2)}, {vr(CAC+16*par+r,2)}")
        if not par: a("s_branch B_R2")
    a.label("B_R2")
    for t in range(4):
        for i in range(2):
            a(f"v_lshlrev_b32 v{88+2*i}, 16, v{80+2*t+i}")
            a(f"v_and_b32 v{88+2*i+1}, 0xffff0000, v{80+2*t+i}")
        for r in range(4):
            a(f"v_fmac_f32 v{RR+4*t+r}, s38, v{88+r}")
        for i in range(2):
            a(f"v_cvt_pk_bf16_f32 v{80+2*t+i}, v{RR+4*t+2*i}, v{RR+4*t+2*i+1}")
    a("s_nop 1")
    for p in range(2):
        for i in range(2):
            a(f"v_permlane16_swap_b32 v{80+4*p+i}, v{80+4*p+2+i}")
    for p in range(2):
        a(f"buffer_store_dwordx4 {vr(80+4*p,4)}, v2, s[20:23], s41 offen offset:{1024*p}{SC}")
    a("s_waitcnt vmcnt(0)")
    cnt_add(a, 4, "s40")
    fin(a, 6)
    a("s_endpgm")

def gen_C(a):
    a.label("L_C")
    if "dC" in EXP: a("s_sleep 32")
    a("s_setprio 3")
    R, U, GU, GW = 16, 80, 144, 160
    a("s_sub_u32 s25, s2, 224")
    a("s_lshl_b32 s26, s31, 2")
    a("s_sub_u32 s33, s32, 28")
    a("s_add_u32 s26, s26, s33")
    a("s_lshl_b32 s26, s26, 2")
    a("s_add_u32 s26, s26, s24")
    a("s_mul_i32 s36, s26, 14336")
    for i in range(1, 4):
        a(f"s_add_u32 s{36+i}, s36, {3584*i}")
    a("s_add_u32 s45, s25, s24")
    a("s_waitcnt lgkmcnt(0)")
    a.srd(20, P_WS, WS_SIZE)
    a.srd(12, P_X, X_BYTES)
    for r in range(16):
        a(f"buffer_load_dwordx4 {vr(R+4*r,4)}, v2, s[12:15], s{36+(r>>2)} offen offset:{896*(r&3)}")
    a.srd(16, P_GW, 896)
    a(f"buffer_load_dwordx4 {vr(GW,4)}, v2, s[16:19], 0 offen")
    a("v_mov_b32 v4, 1")
    a(f"s_mul_i32 s36, s26, {2*XTS}")
    a(f"s_add_u32 s36, s36, {XT}")
    a("s_add_u32 s37, s36, 3584")
    a(f"s_add_u32 s38, s36, {XTS}")
    a("s_add_u32 s39, s38, 3584")
    a("s_mov_b32 s46, 0x05040100")
    a("s_mov_b32 s47, 0x07060302")
    a("s_mov_b32 exec_hi, 0xffffff")
    for hb in range(2):
        a(f"s_waitcnt vmcnt({9 if hb == 0 else 8})")
        for cc in range(8):
            i, e = cc >> 1, cc & 1
            u = U + 32 * hb + 4 * cc
            for q in range(4):
                a(f"v_perm_b32 v{u+q}, v{R+32*hb+4*(2*q+1)+i}, v{R+32*hb+4*(2*q)+i}, s{46+e}")
            a(f"buffer_store_dwordx4 {vr(u,4)}, v2, s[20:23], s{36+2*hb+(cc>>2)} offen offset:{896*(cc&3)}{SC}")
    a.stamp(1)
    a("s_mov_b64 exec, -1")
    nonce_issue(a, 250)
    a("v_lshlrev_b32 v5, 7, v1")
    a(f"s_mov_b32 s41, {F_XT}")
    for r in range(16):
        a(f"v_mov_b32 v{GU+r}, 0")
    a("s_mov_b32 exec_hi, 0xffffff")
    for i in range(4):
        for r in range(16):
            a(f"v_dot2c_f32_bf16 v{GU+r}, v{R+4*r+i}, v{GW+i}")
    a("s_mov_b64 exec, -1")
    a("s_waitcnt vmcnt(0)")
    nonce_take(a, 250)
    a("s_barrier")
    a("s_cmp_lg_u32 s24, 0")
    a("s_cbranch_scc1 C_NOADD")
    a("s_mov_b32 exec_hi, 0")
    a("buffer_atomic_add v4, v5, s[20:23], s41 offen sc1")
    a("s_mov_b64 exec, -1")
    a.label("C_NOADD")
    a.stamp(2)
    a("s_setprio 1")
    a("s_min_u32 s45, s25, 15")
    a("s_mul_i32 s33, s45, 25088")
    a("s_mul_i32 s34, s24, 7168")
    a("s_add_u32 s33, s33, s34")
    a("v_add_u32 v3, 4096, v2")
    a.srd(12, P_WO, 448 * 896)
    a("s_mov_b32 m0, s34")
    a("s_nop 0")
    for i in range(4):
        a(f"buffer_load_dwordx4 v2, s[12:15], s33 offen offset:{1024*i} lds")
    a("s_add_u32 m0, s34, 4096")
    a("s_nop 0")
    for i in range(3):
        a(f"buffer_load_dwordx4 v3, s[12:15], s33 offen offset:{1024*i} lds")
    for sh in ("row_shr:1", "row_shr:2", "row_shr:4", "row_shr:8"):
        for r in range(16):
            a(f"v_add_f32_dpp v{GU+r}, v{GU+r}, v{GU+r} {sh} row_mask:0xf bank_mask:0xf bound_ctrl:0")
    for r in range(16):
        a(f"v_add_f32_dpp v{GU+r}, v{GU+r}, v{GU+r} row_bcast:15 row_mask:0xa bank_mask:0xf")
    for r in range(16):
        a(f"v_add_f32_dpp v{GU+r}, v{GU+r}, v{GU+r} row_bcast:31 row_mask:0xc bank_mask:0xf")
    for op in (f"v_mul_f32 vX, {hex(f2u(-LOG2E))}, vX", "v_exp_f32 vX, vX", "v_add_f32 vX, 1.0, vX", "v_rcp_f32 vX, vX"):
        for r in range(16):
            a(op.replace("vX", f"v{GU+r}"))
    a("s_lshl_b32 s35, s26, 6")
    a(f"s_add_u32 s35, s35, {GO}")
    a("s_lshr_b32 s37, s26, 1")
    a("s_lshl_b32 s37, s37, 7")
    a(f"s_add_u32 s37, s37, {F_G}")
    a("s_mov_b32 exec_lo, 0")
    a("s_mov_b32 exec_hi, 0x80000000")
    for i in range(4):
        a(f"buffer_store_dwordx4 {vr(GU+4*i,4)}, v{VZ}, s[20:23], s35 offen offset:{16*i}{SC}")
    a("s_mov_b64 exec, -1")
    a("v_lshrrev_b32 v15, 5, v1")
    a("v_bfe_u32 v13, v1, 2, 2")
    a("v_lshl_add_u32 v13, v15, 2, v13")
    a("v_mul_u32_u24 v13, 896, v13")
    a("v_bfe_u32 v14, v1, 4, 1")
    a("v_lshl_add_u32 v13, v14, 5, v13")
    a("v_and_b32 v14, 3, v1")
    a("v_lshl_add_u32 v12, v14, 3, v13")
    a("s_lshr_b32 s49, s24, 1")
    a("s_mul_i32 s36, s49, 14336")
    a("s_mul_i32 s38, s27, 448")
    a("s_add_u32 s36, s36, s38")
    a("v_add_u32 v12, s36, v12")
    a(f"s_mul_i32 s38, s27, {7*32768}")
    a("s_lshl_b32 s39, s45, 1")
    a("s_add_u32 s39, s39, s49")
    a("s_lshl_b32 s39, s39, 10")
    a("s_add_u32 s38, s38, s39")
    a(f"s_add_u32 s38, s38, {WOF}")
    a("s_lshr_b32 s40, s25, 2")
    a("s_lshl_b32 s40, s40, 7")
    a(f"s_add_u32 s40, s40, {F_WO}")
    a("s_waitcnt vmcnt(0)")
    cnt_add(a, 4, "s37")
    a("s_cmp_ge_u32 s25, 16")
    a("s_cbranch_scc1 C_END")
    a("s_barrier")
    for i in range(7):
        for hr in range(2):
            a(f"ds_read_b64_tr_b16 {vr(16+4*i+2*hr,2)}, v12 offset:{64*i+8*hr*896}")
    a("s_waitcnt lgkmcnt(0)")
    a("s_cmp_eq_u32 s49, 0")
    a("s_cbranch_scc1 C_WO2")
    a("s_mov_b32 exec_lo, 0")
    for i in range(7):
        a(f"v_mov_b32 v{16+4*i+2}, 0")
        a(f"v_mov_b32 v{16+4*i+3}, 0")
    a("s_mov_b32 exec_lo, -1")
    a.label("C_WO2")
    for i in range(7):
        a(f"buffer_store_dwordx4 {vr(16+4*i,4)}, v2, s[20:23], s38 offen{SC}")
        if i < 6: a("s_add_u32 s38, s38, 32768")
    a("s_waitcnt vmcnt(0)")
    cnt_add(a, 4, "s40")
    a.label("C_END")
    fin(a, 3)

def gen():
    a = Asm()
    gen_entry(a)
    gen_A(a)
    gen_B(a)
    gen_C(a)
    a.label("L_END")
    a("s_endpgm")
    return a.text()

HEADER = open("cdna_kernels/" + NAME + ".s.ref").read().split("; Override launch geometry")[0]

if __name__ == "__main__":
    name = NAME + "_kernel"
    out = HEADER + "; @launch grid=(512,1,1) block=(256,1,1) lds=81920\n"
    out += '.amdgcn_target "amdgcn-amd-amdhsa--gfx950"\n' + kernel_header(name) + gen() + kernel_desc(name, 256)
    dst = sys.argv[1] if len(sys.argv) > 1 else "cdna_kernels/" + NAME + ".s"
    open(dst, "w").write(out)
```

```python
import sys, math, os
import numpy as np
from dsl import *

NAME = "gated_mix__mha_block__ssm_conv_s4__prompt"
KTS = 28672; VTS = 32256; XTS = 7296
KF = 0x000000
VF = 0x200000
XT = 0x400000
GO = 0x5D0000
WOF = 0x5E0000
OF = 0x660000
BT = 0x860000
FL = 0xA40000
F_KV = FL
F_O = FL + 256 * 128
F_XT = FL + 384 * 128
F_G = FL + 416 * 128
F_B = FL + 480 * 128
F_WO = FL + 496 * 128
WS_SIZE = 0xA50000
X_BYTES = 2048 * 896
W_BYTES = 448 * 2688
LOG2E = 1.4426950408889634
QSCALE = LOG2E * 28 ** -0.5
MF32 = "v_mfma_f32_32x32x16_bf16"
MF16 = "v_mfma_f32_16x16x32_bf16"
SC = " sc1"
NON = 60
POLLMAX = 40000
EXP = os.environ.get("EXP", "")
DLY = int(os.environ.get("DLY", "32"))
DEPTH = int(os.environ.get("DEPTH", "3"))
PA = int(os.environ.get("PA", "2")); PB = int(os.environ.get("PB", "1")); PC = int(os.environ.get("PC", "2"))
P_X, P_W, P_WO, P_PAR, P_LDT, P_DSK, P_GW, P_OUT, P_DBG, P_WS = 64, 66, 68, 72, 84, 86, 88, 90, 92, 94
VZ = 255

uid = [0]
def fin(a, idx):
    if not os.environ.get("STAMP"): return
    a("s_waitcnt vmcnt(0)")
    a.stamp(idx)
    dw = os.environ.get("DBGWG")
    if dw:
        uid[0] += 1; u = uid[0]
        a("s_lshl_b32 s96, s2, 2")
        a("s_add_u32 s96, s96, s24")
        a(f"s_cmp_lg_u32 s96, {int(dw)*4}")
        a(f"s_cbranch_scc1 DG{u}")
        a("s_mov_b64 exec, -1")
        a("v_readlane_b32 s97, v254, 1")
        a("v_mbcnt_lo_u32_b32 v0, -1, 0")
        a("v_lshlrev_b32 v1, 1, v0")
        a("v_subrev_u32 v254, s97, v254")
        a("v_and_b32 v1, -4, v1")
        a("s_mov_b32 exec_lo, 0xaaaaaaa8")
        a("s_mov_b32 exec_hi, 0")
        a(f"global_store_dword v1, v254, {sr(P_DBG,2)}")
        a.label(f"DG{u}")
        return
    a.stamp_flush(P_WS)

def cmul(a, d, x, y, phase):
    if phase == 0:
        a(f"v_pk_mul_f32 {vr(d,2)}, {vr(x,2)}, {vr(y,2)} op_sel_hi:[0,1]")
    else:
        a(f"v_pk_fma_f32 {vr(d,2)}, {vr(x,2)}, {vr(y,2)}, {vr(d,2)} op_sel:[1,1,0] op_sel_hi:[1,0,1] neg_lo:[1,0,0]")

def nonce_issue(a, v):
    uid[0] += 1; u = uid[0]
    a("s_cmp_lg_u32 s24, 0")
    a(f"s_cbranch_scc1 NI{u}")
    a(f"global_load_dword v{v}, v{VZ}, {sr(P_DBG,2)}{os.environ.get('NSC', ' sc1')}")
    a.label(f"NI{u}")

def nonce_take(a, v):
    uid[0] += 1; u = uid[0]
    a("s_cmp_lg_u32 s24, 0")
    a(f"s_cbranch_scc1 ND{u}")
    a(f"s_mov_b32 s62, {POLLMAX}")
    a.label(f"NT{u}")
    a(f"v_readfirstlane_b32 s{NON}, v{v}")
    a("s_nop 1")
    a(f"s_cmp_eq_u32 s{NON}, 8")
    a(f"s_cbranch_scc1 ND{u}")
    a("s_sub_u32 s62, s62, 1")
    a(f"s_cbranch_scc1 ND{u}")
    a("s_sleep 8")
    a(f"global_load_dword v{v}, v{VZ}, {sr(P_DBG,2)} sc1")
    a("s_waitcnt vmcnt(0)")
    a(f"s_branch NT{u}")
    a.label(f"ND{u}")

def cnt_load(a, vd, soff):
    a(f"v_mov_b32 v{vd}, 0")
    a("s_mov_b64 exec, 1")
    t = a.vm(f"buffer_atomic_add v{vd}, v{VZ}, s[20:23], {soff} offen sc0 sc1")
    a("s_mov_b64 exec, -1")
    return t

def cnt_wait(a, vd, soff, target, sleep=1):
    uid[0] += 1; u = uid[0]
    a(f"s_mov_b32 s62, {POLLMAX}")
    a.label(f"FC{u}")
    a(f"v_readfirstlane_b32 s4, v{vd}")
    a("s_nop 1")
    a(f"s_cmp_eq_u32 s4, {target}")
    a(f"s_cbranch_scc1 FD{u}")
    a("s_sub_u32 s62, s62, 1")
    a(f"s_cbranch_scc1 FD{u}")
    a(f"s_sleep {sleep}")
    n0 = a.nvm
    cnt_load(a, vd, soff)
    a.nvm = n0
    a("s_waitcnt vmcnt(0)")
    a(f"s_branch FC{u}")
    a.label(f"FD{u}")

def cnt_add(a, vt, soff, va=None, mask="1"):
    a(f"v_mov_b32 v{vt}, 1")
    a(f"s_mov_b64 exec, {mask}")
    a.vm(f"buffer_atomic_add v{vt}, v{VZ if va is None else va}, s[20:23], {soff} offen sc1")
    a("s_mov_b64 exec, -1")

def late_load(a, vd, va):
    a("s_mov_b64 exec, 7")
    a(f"buffer_load_dword v{vd}, v{va}, s[20:23], 0 offen sc1")
    a("s_mov_b64 exec, -1")

def late_check(a, vd, va, vtgt):
    uid[0] += 1; u = uid[0]
    a(f"s_mov_b32 s62, {POLLMAX}")
    a.label(f"FC{u}")
    a(f"v_cmp_ne_u32 vcc, v{vd}, v{vtgt}")
    a("s_nop 1")
    a("s_and_b32 s4, vcc_lo, 7")
    a(f"s_cbranch_scc0 FD{u}")
    a("s_sub_u32 s62, s62, 1")
    a(f"s_cbranch_scc1 FD{u}")
    a("s_sleep 16")
    late_load(a, vd, va)
    a("s_waitcnt vmcnt(0)")
    a(f"s_branch FC{u}")
    a.label(f"FD{u}")

RAW = 244
XRW = 232

def gen_entry(a):
    a("s_cmp_ge_u32 s2, 512")
    a("s_cbranch_scc1 L_END")
    a.stamp(0)
    a("s_load_dwordx16 s[64:79], s[0:1], 0")
    a("s_load_dwordx16 s[80:95], s[0:1], 64")
    if "nopf" not in EXP:
        a(f"s_cmp_ge_u32 s2, {os.environ.get('PFN', '8')}")
        a("s_cbranch_scc1 E_NOPF")
        a("s_getpc_b64 s[4:5]")
        a.label("E_PC")
        a("v_lshlrev_b32 v4, 7, v0")
        a("v_min_u32 v4, L_END-E_PC, v4")
        a("v_mov_b32 v5, s5")
        a("v_add_co_u32 v4, vcc, s4, v4")
        a("s_nop 1")
        a("v_addc_co_u32 v5, vcc, 0, v5, vcc")
        a("global_load_dword v6, v[4:5], off")
        a.label("E_NOPF")
    a("v_lshrrev_b32 v13, 6, v0")
    a("v_and_b32 v1, 63, v0")
    a("v_lshlrev_b32 v2, 4, v1")
    a(f"v_mov_b32 v{VZ}, 0")
    a("v_readfirstlane_b32 s24, v13")
    a("s_and_b32 s31, s2, 7")
    a("s_bfe_u32 s32, s2, 0x50003")
    a("s_cmp_ge_u32 s2, 256")
    a("s_cbranch_scc1 L_A")
    a("s_and_b32 s27, s24, 1")
    a("s_cmp_ge_u32 s32, 28")
    a("s_cbranch_scc1 L_C")
    a("s_setprio 3")
    a("s_lshl_b32 s39, s32, 1")
    a("s_lshr_b32 s34, s24, 1")
    a("s_add_u32 s26, s39, s34")
    a("s_lshl_b32 s26, s26, 3")
    a("s_add_u32 s26, s26, s31")
    a("s_lshl_b32 s33, s26, 9")
    a("s_lshl_b32 s34, s27, 8")
    a("s_add_u32 s33, s33, s34")
    a("v_lshlrev_b32 v3, 2, v1")
    a("v_add_u32 v13, s33, v3")
    a("s_lshl_b32 s34, s26, 1")
    a("s_and_b32 s34, s34, -4")
    a("v_lshlrev_b32 v4, 7, v0")
    a("s_sub_u32 s45, s2, 8")
    a("s_lshl_b32 s33, s45, 15")
    a(f"s_add_u32 s33, s33, {FL}")
    a("s_waitcnt lgkmcnt(0)")
    a.srd(20, P_WS, WS_SIZE)
    a("s_cmp_ge_u32 s45, 2")
    a("s_cbranch_scc1 E_NOINIT")
    a(f"buffer_store_dword v{VZ}, v4, s[20:23], s33 offen sc1")
    a.label("E_NOINIT")
    for i in range(6):
        a(f"global_load_dword v{RAW+i}, v13, {sr(P_PAR+2*i,2)}")
    a(f"s_load_dword s28, {sr(P_LDT,2)}, s34")
    a(f"s_load_dword s38, {sr(P_DSK,2)}, s34")
    a("s_cbranch_scc1 L_B")
    a("v_mov_b32 v4, 1")
    a("s_waitcnt vmcnt(6)")
    a("s_mov_b64 exec, 1")
    a(f"global_atomic_add v{VZ}, v4, {sr(P_DBG,2)} sc1")
    a("s_mov_b64 exec, -1")
    a("s_branch L_B")

def gen_A(a):
    a.label("L_A")
    if "noA" in EXP: a("s_endpgm")
    a(f"s_setprio {PA}")
    if "dA" in EXP: a(f"s_sleep {DLY}")
    a("s_lshr_b32 s33, s31, 1")
    a("s_lshl_b32 s33, s33, 2")
    a("s_and_b32 s34, s32, 3")
    a("s_add_u32 s25, s33, s34")
    a("s_and_b32 s27, s31, 1")
    a("s_lshr_b32 s54, s32, 2")
    a("s_lshl_b32 s33, s27, 3")
    a("s_add_u32 s26, s33, s54")
    XR, ACC, QACC, WF, NV, PK, T = 16, 128, 128, 176, 248, 224, 240
    XL = 32768
    a("s_lshl_b32 s33, s25, 2")
    a("s_add_u32 s35, s33, s24")
    a("s_mul_i32 s33, s35, 28672")
    a("v_lshrrev_b32 v13, 3, v1")
    a("v_mul_u32_u24 v12, 896, v13")
    a("v_and_b32 v14, 7, v1")
    a("v_lshrrev_b32 v15, 4, v1")
    a("v_xor_b32 v15, v15, v14")
    a("v_lshl_add_u32 v3, v15, 4, v12")
    a("v_add_u32 v3, s33, v3")
    a("v_xor_b32 v246, 64, v3")
    a(f"v_add_u32 v244, {6144}, v246")
    a(f"v_add_u32 v245, {6144*2}, v3")
    a(f"v_add_u32 v246, {6144*3}, v246")
    a("s_mul_i32 s40, s24, 12288")
    a(f"s_add_u32 s40, s40, {XL}")
    a("s_lshl_b32 s33, s34, 1")
    a("s_add_u32 s28, s33, s54")
    a("s_sub_u32 s33, s28, 7")
    a("s_cmp_ge_u32 s28, 7")
    a("s_cselect_b32 s28, s33, s28")
    if "norot" in EXP: a("s_mov_b32 s28, 0")
    a("s_mov_b32 s30, s28")
    a("v_bfe_u32 v15, v1, 4, 1")
    a("v_lshlrev_b32 v15, 2, v15")
    a("v_xor_b32 v15, v15, v14")
    a("v_mul_u32_u24 v4, 2688, v13")
    a("v_lshl_add_u32 v4, v15, 4, v4")
    a("s_min_u32 s55, s54, 6")
    a("s_mul_i32 s33, s24, 43008")
    a("s_mul_i32 s34, s27, 896")
    a("s_add_u32 s33, s33, s34")
    a("s_lshl_b32 s34, s55, 7")
    a("s_add_u32 s33, s33, s34")
    a("s_add_u32 s33, s33, 896")
    a("v_add_u32 v4, s33, v4")
    a(f"v_add_u32 v5, {21504-1024}, v4")
    a("s_lshl_b32 s36, s24, 11")
    a("s_waitcnt lgkmcnt(0)")
    a.stamp(1)
    if "dK1" in EXP: a(f"s_sleep {DLY}")
    if "dK2" in EXP: a("s_sleep 64")
    if "dK4" in EXP: a("s_sleep 127")
    a.srd(12, P_X, X_BYTES)
    a.srd(16, P_W, W_BYTES)
    def adv(r):
        a(f"s_add_u32 s{r}, s{r}, 1")
        a(f"s_cmp_eq_u32 s{r}, 7")
        a(f"s_cselect_b32 s{r}, 0, s{r}")
    QD = int(os.environ.get("QD", "14"))
    L = []
    for s_ in range(7):
        L += [("x", s_, 0), ("x", s_, 1), ("x", s_, 2), ("x", s_, 3), ("w", s_, 0), ("w", s_, 1)]
    L += [("n", 0, 0)] + [("q", i, 0) for i in range(7)]
    tag = {}; tagxf = {}
    lp = [0]; lastbar = [-1]; xfree = [-1]; light = [False]
    def issue():
        if lp[0] >= len(L): return
        while light[0] and L[lp[0]][0] == "w": lp[0] += 1
        k, s_, n = L[lp[0]]
        need = {"x": s_ - 3, "q": 4 + (s_ >> 2)}.get(k, -1)
        if need > xfree[0]: return
        if k == "w" and s_ >= 4 and lastbar[0] < s_ - 2: return
        lp[0] += 1
        if k == "x":
            if n == 0:
                if s_: adv(28)
                a(f"s_add_u32 m0, s40, {(s_%3)*4096}")
                a("s_lshl_b32 s29, s28, 7")
                a("s_mul_i32 s37, s28, 172032")
            tag[(k, s_, n)] = a.vm(f"buffer_load_dwordx4 v{3 if n == 0 else 243+n}, s[12:15], s29 offen offset:{1024*n} lds")
        elif k == "w":
            if n == 0:
                a(f"s_add_u32 m0, s36, {(s_%4)*8192}")
                a("s_nop 0")
            tag[(k, s_, n)] = a.vm(f"buffer_load_dwordx4 v{4+n}, s[16:19], s37 offen offset:{1024*n} lds")
        elif k == "n":
            nonce_issue(a, NV)
        else:
            a(f"s_add_u32 m0, s40, {4096 + 1024*s_}")
            a("s_mul_i32 s39, s30, 172032")
            a.vm(f"buffer_load_dwordx4 v14, s[16:19], s39 offen lds")
            if s_ < 6: adv(30)
    nvm_light = a.nvm
    a("s_cmp_eq_u32 s54, 7")
    a("s_cbranch_scc1 A_GO")
    for _ in range(QD): issue()
    a.label("A_GO")
    if "stopA" in EXP: a.stamp(7)
    a.srd(20, P_WS, WS_SIZE)
    if "Aload" in EXP:
        a("s_waitcnt vmcnt(0)"); a("s_endpgm")
    a("v_and_b32 v13, 31, v1")
    a("v_bfe_u32 v14, v1, 1, 3")
    a("v_lshrrev_b32 v15, 5, v1")
    a("v_xor_b32 v14, v14, v15")
    a("v_lshlrev_b32 v13, 7, v13")
    a("v_lshl_add_u32 v8, v14, 4, v13")
    a("v_add_u32 v8, s40, v8")
    for ks in range(1, 4):
        a(f"v_xor_b32 v{8+ks}, {32*ks}, v8")
    a(f"v_bfe_u32 v{T}, v1, 2, 2")
    a(f"v_lshl_add_u32 v{T+1}, v15, 3, v{T}")
    a(f"v_bfe_u32 v{T+2}, v1, 4, 1")
    a(f"v_and_b32 v{T+3}, 3, v1")
    a(f"v_lshl_add_u32 v{PK}, v{T+2}, 2, v{T+3}")
    a(f"v_and_b32 v{PK+1}, 1, v1")
    a(f"v_bfe_u32 v{PK+2}, v1, 1, 1")
    a(f"v_lshl_add_u32 v{PK+1}, v{PK+1}, 1, v{PK+2}")
    a(f"v_lshl_add_u32 v{PK+1}, v{T+2}, 2, v{PK+1}")
    a(f"v_bfe_u32 v{T+3}, v1, 3, 1")
    a(f"v_lshlrev_b32 v{T+3}, 6, v{T+3}")
    a(f"v_lshl_add_u32 v{T+3}, v{T+1}, 7, v{T+3}")
    a("s_cmp_eq_u32 s27, 1")
    a("s_cselect_b64 vcc, -1, 0")
    a(f"v_cndmask_b32 v12, v{PK+1}, v{PK}, vcc")
    a(f"v_lshl_add_u32 v12, v12, 3, v{T+3}")
    a("v_xor_b32 v13, 64, v12")
    a(f"v_add_u32 v{PK+2}, 2, v{PK+1}")
    a(f"v_sub_u32 v{PK+3}, 7, v{PK+1}")
    a(f"v_cmp_gt_u32 vcc, 6, v{PK+1}")
    a("s_bitcmp1_b32 s26, 0")
    a("s_cselect_b64 s[4:5], -1, 0")
    a(f"v_cndmask_b32 v{PK+2}, v{PK+3}, v{PK+2}, vcc")
    a(f"v_cndmask_b32 v{PK+2}, v{PK+1}, v{PK+2}, s[4:5]")
    a(f"v_lshlrev_b32 v15, 6, v{T+1}")
    a(f"v_lshl_add_u32 v15, v{PK+2}, 3, v15")
    a(f"v_add_u32 v15, {XL + 4096}, v15")
    a("v_lshrrev_b32 v14, 2, v1")
    a("v_mul_u32_u24 v14, 2688, v14")
    a(f"v_and_b32 v{T}, 3, v1")
    a(f"v_lshl_add_u32 v14, v{T}, 4, v14")
    a("s_mul_i32 s33, s26, 56")
    a("s_and_b32 s33, s33, -16")
    a(f"s_mul_i32 s34, s24, {16*2688}")
    a("s_add_u32 s33, s33, s34")
    a("v_add_u32 v14, s33, v14")
    a("s_mul_i32 s33, s54, 2341")
    a("s_lshr_b32 s33, s33, 10")
    a(f"v_add_u32 v{PK}, s33, v1")
    a(f"v_mul_u32_u24 v{PK+1}, 28, v{PK}")
    a(f"v_lshrrev_b32 v{PK+1}, 6, v{PK+1}")
    a(f"v_cmp_ge_u32 s[56:57], s54, v{PK+1}")
    a(f"v_lshlrev_b32 v243, 11, v{PK}")
    a("s_lshl_b32 s42, s25, 7")
    a(f"s_add_u32 s42, s42, {F_KV}")
    a("s_and_b64 s[56:57], s[56:57], 15")
    a("s_cmp_eq_u32 s54, 7")
    a("s_cbranch_scc1 A_LIGHT")
    a("s_cmp_eq_u32 s27, 1")
    a("s_cbranch_scc1 A_V")

    def pass1(vtype):
        tagtr = {}
        NB = 6; TD = 3
        NIS = int(os.environ.get("NIS", "2"))
        def trload(u):
            s, ks = u >> 2, u & 3
            for t in range(2):
                for hr in range(2):
                    off = (s % 4) * 8192 + (16 * ks + 4 * hr) * 128
                    tagtr[u] = a.ds(f"ds_read_b64_tr_b16 {vr(WF+(u%NB)*8+4*t+2*hr,2)}, v{12+t} offset:{off}")
        pend = None
        for u in range(-4, 28):
            if u >= 0:
                a.wait_ds(max(tagtr[u], tagxf[u >> 2]))
                for t in range(2):
                    wf = vr(WF + (u % NB) * 8 + 4 * t, 4); xf = vr(XR + 4 * u, 4)
                    c = "0" if u == 0 else vr(ACC + 16 * t, 16)
                    if vtype:
                        a(f"{MF32} {vr(ACC+16*t,16)}, {xf}, {wf}, {c}")
                    else:
                        a(f"{MF32} {vr(ACC+16*t,16)}, {wf}, {xf}, {c}")
            if (u + TD) % 4 == 0 and (u + TD) // 4 < 7:
                sb = (u + TD) // 4
                a.wait_vm(tag[("w", sb, 1)])
                a("s_barrier")
                lastbar[0] = sb
                if sb in (0, 6): a.stamp(2 + sb // 6)
                if sb == 0 and "dS" in EXP: a(f"s_sleep {DLY}")
            if pend is not None:
                a.wait_ds(tagxf[pend]); xfree[0] = pend; pend = None
            if 0 <= u + TD < 28:
                trload(u + TD)
            if u % 4 == 0 and u // 4 + 1 < 7:
                s = u // 4 + 1
                a.wait_vm(tag[("x", s, 3)])
                for ks in range(4):
                    tagxf[s] = a.ds(f"ds_read_b128 {vr(XR+16*s+4*ks,4)}, v{8+ks} offset:{(s%3)*4096}")
                pend = s
            for _ in range(NIS): issue()
        assert lp[0] == len(L), lp
    saved = (a.nvm, a.nds, lp[0])
    a("v_mov_b32 v247, v2")
    a(f"s_mul_i32 s38, s35, {KTS}")
    a("s_lshl_b32 s33, s55, 12")
    a("s_add_u32 s38, s38, s33")
    a("s_add_u32 s41, s38, 1024")
    a("s_add_u32 s43, s38, 2048")
    a("s_add_u32 s44, s38, 3072")
    pass1(False)
    a("s_branch A_ST")
    a.label("A_V")
    a.nvm, a.nds, lp[0] = saved; lastbar[0] = -1; xfree[0] = -1
    a("v_lshrrev_b32 v247, 5, v1")
    a(f"v_mul_u32_u24 v247, {8064-512}, v247")
    a("v_add_u32 v247, v247, v2")
    a(f"s_mul_i32 s38, s35, {VTS}")
    a("s_mul_i32 s33, s55, 1152")
    a("s_add_u32 s38, s38, s33")
    a(f"s_add_u32 s38, s38, {VF}")
    a("s_add_u32 s41, s38, 16128")
    a("s_add_u32 s43, s38, 512")
    a("s_add_u32 s44, s41, 512")
    a(f"v_lshrrev_b32 v{T}, 1, v1")
    a(f"v_mul_u32_u24 v{T}, 8064, v{T}")
    a(f"v_and_b32 v{T+1}, 1, v1")
    a(f"v_lshl_add_u32 v{T}, v{T+1}, 4, v{T}")
    a(f"v_subrev_u32 v{T+1}, 1, v{T+1}")
    for i in range(4):
        a(f"v_and_b32 v{PK+i}, 0x3f803f80, v{T+1}")
    a("s_mov_b64 exec, 0xff")
    a(f"buffer_store_dwordx4 {vr(PK,4)}, v{T}, s[20:23], s38 offen offset:1024{SC}")
    a("s_mov_b64 exec, -1")
    pass1(True)
    a.label("A_ST")
    a.nop(11)
    for t in range(2):
        for r in range(0, 16, 2):
            a(f"v_cvt_pk_bf16_f32 v{PK+8*t+r//2}, v{ACC+16*t+r}, v{ACC+16*t+r+1}")
        for f in range(2):
            a(f"buffer_store_dwordx4 {vr(PK+8*t+4*f,4)}, v247, s[20:23], s{(38,41,43,44)[2*t+f]} offen{SC}")
    a("s_waitcnt vmcnt(4)")
    a("s_branch A_P2")
    a.label("A_LIGHT")
    a.nvm, a.nds, lp[0] = nvm_light, saved[1], 0; xfree[0] = -1; light[0] = True
    for _ in range(int(os.environ.get("LQ", "4"))): issue()
    for s_ in range(7):
        a.wait_vm(tag[("x", s_, 3)])
        for ks in range(4):
            a.ds(f"ds_read_b128 {vr(XR+16*s_+4*ks,4)}, v{8+ks} offset:{(s_%3)*4096}")
        a("s_waitcnt lgkmcnt(0)")
        xfree[0] = s_
        for _ in range(6): issue()
    assert lp[0] == len(L)
    a("s_waitcnt vmcnt(0)")
    a.label("A_P2")
    if "dP" in EXP: a(f"s_sleep {DLY}")
    a.stamp(4)
    nonce_take(a, NV)
    a("s_barrier")
    Q, O, S, P, KB, VB, NM, MX, T2 = 16, 48, 112, 144, 160, 192, 224, 228, 232
    VK0, VK1, VV0, VV1, C1, C2 = 10, 11, 12, 13, 252, 253
    class Rec:
        def __init__(self): self.ch = []
        def __call__(self, *ins): self.ch.append(list(ins))
    c = Rec()
    c("s_mul_i32 s33, s26, 28"); c("s_lshr_b32 s44, s33, 6"); c("s_add_u32 s34, s33, 27"); c("s_lshr_b32 s34, s34, 6")
    c("s_sub_u32 s34, s34, s44"); c("s_lshl_b32 s34, s34, 1"); c("s_add_u32 s58, s34, 2")
    c("v_lshrrev_b32 v4, 5, v1")
    c("v_lshlrev_b32 v249, 9, v1"); c(f"v_mov_b32 v{NV+2}, 0")
    c("s_lshl_b32 s34, s26, 11"); c("s_lshl_b32 s36, s24, 7"); c("s_add_u32 s34, s34, s36"); c(f"s_add_u32 s53, s34, {F_KV}")
    c(f"s_mov_b32 s46, {hex(f2u(QSCALE))}"); c("s_mov_b32 s47, s46")
    c("s_lshl_b32 s36, s24, 11"); c("v_add_u32 v6, s36, v2")
    for t in range(1, 4): c(f"v_xor_b32 v{6+t}, {2048*t}, v6")
    c("s_lshr_b32 s34, s26, 1"); c("s_mul_i32 s34, s34, 3584"); c("s_and_b32 s36, s26, 1"); c("s_lshl_b32 s37, s36, 11")
    c("s_add_u32 s34, s34, s37"); c(f"v_add_u32 v{VK0}, s34, v2"); c(f"v_add_u32 v{VK1}, 1024, v{VK0}")
    c(f"s_mul_i32 s37, s36, {2048-8}")
    c("s_mov_b32 exec_lo, 0", f"v_subrev_u32 v{VK1}, s37, v{VK1}", "s_mov_b32 exec_lo, -1")
    c("v_and_b32 v5, 31, v1"); c("v_add_u32 v3, s33, v5"); c("v_lshrrev_b32 v5, 6, v3"); c("v_lshlrev_b32 v5, 7, v5")
    c(f"v_lshl_add_u32 v{VV0}, v3, 4, v5")
    c("s_mul_i32 s34, s44, 1152"); c("s_add_u32 s34, s34, 1024"); c("s_add_u32 s37, s34, 16")
    c("s_mov_b32 exec_lo, 0xf0000000", "s_mov_b32 exec_hi, 0xf0000000", f"v_mov_b32 v{VV0}, s37", "s_mov_b64 exec, -1")
    c(f"v_writelane_b32 v{VV0}, s34, 28"); c(f"v_writelane_b32 v{VV0}, s34, 60")
    c("s_movk_i32 s34, 8064"); c(f"v_mad_u32_u24 v{VV0}, v4, s34, v{VV0}"); c(f"v_add_u32 v{VV1}, 16128, v{VV0}")
    c(f"s_mul_i32 s34, s24, {4*KTS}"); c(f"s_mul_i32 s37, s24, {4*VTS}"); c(f"s_add_u32 s37, s37, {VF}")
    for d, sz, off in ((12, 52 * KTS, "s34"), (16, 52 * VTS, "s37")):
        c(f"s_add_u32 s{d}, s{P_WS}, {off}", f"s_addc_u32 s{d+1}, s{P_WS+1}, 0")
        c(f"s_mov_b32 s{d+2}, {sz}"); c(f"s_mov_b32 s{d+3}, 0x00020000")
    c("s_mov_b32 s63, 15")
    c(f"v_mov_b32 v{C1}, 0x3f803f80"); c(f"v_mov_b32 v{C2}, 0x3f80")
    for r in range(8): c(f"v_mov_b32 v{VB+24+r}, 0")
    for t in range(4): c(f"v_mov_b32 v{NM+t}, 0")
    c("s_mov_b32 s41, 0")
    c("s_cmp_eq_u32 s54, 7", "s_cselect_b32 s59, 1, s24")
    PV_ = NV + 2
    def kv_poll():
        a("s_mov_b64 exec, 15")
        a(f"buffer_atomic_umax v{PV_}, v249, s[20:23], s53 offen sc0 sc1")
        a("s_mov_b64 exec, -1")
    def kv_pick(tagname):
        a(f"s_mov_b32 s62, {POLLMAX}")
        a.label(f"KP{tagname}")
        a(f"v_cmp_eq_u32 vcc, s58, v{PV_}")
        a("s_nop 1")
        a("s_and_b32 s5, vcc_lo, s63")
        a(f"s_cbranch_scc1 KD{tagname}")
        a("s_mov_b32 s5, s63")
        a("s_sub_u32 s62, s62, 1")
        a(f"s_cbranch_scc1 KD{tagname}")
        a("s_sleep 1")
        kv_poll()
        a("s_waitcnt vmcnt(0)")
        a(f"s_branch KP{tagname}")
        a.label(f"KD{tagname}")
        a("s_ff1_i32_b32 s59, s5")
        a("s_bitset0_b32 s63, s59")
        a("s_bitset0_b32 s5, s59")
    def first_loads():
        a(f"s_mul_i32 s44, s59, {16*KTS}")
        a(f"s_mul_i32 s45, s59, {16*VTS}")
        for kt in range(4):
            for f in range(2):
                r = a.vm(f"buffer_load_dwordx4 {vr(KB+8*kt+4*f,4)}, v{VK0+f}, s[12:15], s44 offen{SC}")
            if kt < 3: a(f"s_addk_i32 s44, {KTS}")
            if kt == 0: tag = r
            if kt < 3:
                for f in range(2):
                    a.vm(f"buffer_load_dwordx4 {vr(VB+8*kt+4*f,4)}, v{VV0+f}, s[16:19], s45 offen{SC}")
                a(f"s_addk_i32 s45, {VTS}")
        return tag
    def patch(kb):
        a(f"v_mov_b32_dpp v{kb+6}, v{C1} quad_perm:[0,1,2,3] row_mask:0xc bank_mask:0xf")
        a(f"v_mov_b32_dpp v{kb+7}, v{C2} quad_perm:[0,1,2,3] row_mask:0xc bank_mask:0xf")
    tq = {}
    def trq(u):
        for hr in range(2):
            tq[u] = a.ds(f"ds_read_b64_tr_b16 {vr(WF+(u%8)*4+2*hr,2)}, v15 offset:{(u&3)*12288+(u>>2)*1024+256*hr}")
    for u in range(6): trq(u)
    for u in range(28):
        if u + 6 < 28: trq(u + 6)
        a.wait_ds(tq[u])
        cc = "0" if u == 0 else vr(QACC, 16)
        a(f"{MF32} {vr(QACC,16)}, {vr(WF+(u%8)*4,4)}, {vr(XR+4*u,4)}, {cc}")
        n = 0
        while c.ch and n < (3 if u < 22 else 5):
            for ins in c.ch.pop(0): a(ins); n += 1
    assert not c.ch, len(c.ch)
    def zero_acc():
        for t in range(4):
            a(f"{MF32} {vr(O+16*t,16)}, {vr(VB+24,4)}, {vr(VB+24,4)}, 0")
    zero_acc()
    a("s_cmp_lg_u32 s59, 0")
    a("s_waitcnt vmcnt(0)")
    a("s_barrier")
    a("s_cbranch_scc1 A_NOPUB")
    cnt_add(a, NV, "s42", 243, "s[56:57]")
    a.label("A_NOPUB")
    a.stamp(5)
    if "stopA" in EXP:
        fin(a, 6); a("s_endpgm")
    kv_poll()
    a.nop(1)
    for r in range(0, 16, 2):
        a(f"v_pk_mul_f32 {vr(QACC+r,2)}, {vr(QACC+r,2)}, s[46:47]")
    for r in range(0, 16, 2):
        a(f"v_cvt_pk_bf16_f32 v{Q+r//2}, v{QACC+r}, v{QACC+r+1}")
    a("s_mov_b32 exec_lo, 0")
    a(f"v_mov_b32 v{Q+6}, 0")
    a(f"v_mov_b32 v{Q+7}, 0")
    a("s_mov_b32 exec_lo, -1")
    for f in range(2):
        a(f"ds_write_b128 v6, {vr(Q+4*f,4)} offset:{1024*f}")
    a("s_waitcnt lgkmcnt(0)")
    a("s_barrier")
    for t in range(1, 4):
        for f in range(2):
            a(f"ds_read_b128 {vr(Q+8*t+4*f,4)}, v{6+t} offset:{1024*f}")
    a("s_waitcnt vmcnt(0)")
    kv_pick("A")
    a.stamp(6)
    tagk0 = first_loads()
    kv_poll()
    a.nvm += 1
    a("s_mov_b32 s42, 0x07060302")
    a("s_min_u32 s33, s32, 27")
    a("s_and_b32 s34, s33, 3")
    a("s_lshl_b32 s47, s31, 2")
    a("s_add_u32 s47, s47, s34")
    a("s_lshr_b32 s48, s33, 2")
    a("s_lshr_b32 s49, s24, 1")
    a("s_lshl_b32 s33, s47, 1")
    a("s_add_u32 s49, s49, s33")
    a("s_and_b32 s50, s24, 1")
    a("s_lshl_b32 s33, s48, 1")
    a("s_add_u32 s50, s50, s33")
    a("v_bfe_u32 v5, v1, 2, 2")
    a("v_lshlrev_b32 v9, 7, v5")
    a("v_bfe_u32 v5, v1, 4, 1")
    a("v_lshl_add_u32 v9, v5, 6, v9")
    a("v_and_b32 v5, 3, v1")
    a("v_lshl_add_u32 v9, v5, 4, v9")
    a("v_lshl_add_u32 v9, v4, 9, v9")
    for t in range(1, 4):
        a(f"s_xor_b32 s33, s24, {t}")
        a("s_mul_i32 s33, s33, 12288")
        a(f"s_add_u32 s33, s33, {(t-1)*4096}")
        a(f"v_add_u32 v{3+t}, s33, v2")
    a("s_mul_i32 s33, s24, 12288")
    a("v_add_u32 v7, s33, v2")
    a("v_or_b32 v8, 512, v7")
    a("s_lshl_b32 s33, s35, 4")
    a("s_add_u32 s33, s33, s26")
    a("s_lshl_b32 s43, s33, 11")
    a(f"s_add_u32 s43, s43, {OF}")
    a("s_lshr_b32 s51, s35, 1")
    a("s_lshl_b32 s51, s51, 9")
    a("s_lshr_b32 s33, s26, 2")
    a("s_lshl_b32 s33, s33, 7")
    a("s_add_u32 s51, s51, s33")
    a(f"s_add_u32 s51, s51, {F_O}")
    a("s_lshl_b32 s33, s50, 7")
    a(f"s_add_u32 s33, s33, {F_B}")
    a("v_mov_b32 v14, s33")
    a("v_mov_b32 v15, 64")
    a("s_lshl_b32 s33, s49, 7")
    a(f"s_add_u32 s33, s33, {F_G}")
    a("v_writelane_b32 v14, s33, 1")
    a("v_writelane_b32 v15, 2, 1")
    a("s_lshl_b32 s33, s24, 7")
    a(f"s_add_u32 s33, s33, {F_WO}")
    a("v_writelane_b32 v14, s33, 2")
    a("v_writelane_b32 v15, 16, 2")
    a("s_waitcnt lgkmcnt(0)")
    a.wait_vm(tagk0)
    a.stamp(7)
    if "dL" in EXP: a(f"s_sleep {DLY}")
    TT = [S, S + 16, T2, P]
    patch(KB)
    a("s_nop 0")
    for t in range(4):
        a(f"{MF32} {vr(TT[t],16)}, {vr(KB,4)}, {vr(Q+8*t,4)}, 0")
        a(f"{MF32} {vr(TT[t],16)}, {vr(KB+4,4)}, {vr(Q+8*t+4,4)}, {vr(TT[t],16)}")
    a.nop(8)
    for tp in (0, 2):
        for i in range(8):
            for t in (tp, tp + 1):
                if i == 0:
                    a(f"v_max3_f32 v{MX+t}, v{TT[t]}, v{TT[t]+1}, v{TT[t]+2}")
                elif i < 7:
                    a(f"v_max3_f32 v{MX+t}, v{MX+t}, v{TT[t]+2*i+1}, v{TT[t]+2*i+2}")
                else:
                    a(f"v_max_f32 v{MX+t}, v{MX+t}, v{TT[t]+15}")
    a.label("A_SETMAX")
    for t in range(4):
        a(f"v_mov_b32 v{T2+t}, v{MX+t}")
    for r in range(2):
        a(f"v_mov_b32 v{P+8+r}, 0")
    for t in range(4):
        a(f"v_permlane32_swap_b32 v{T2+t}, v{MX+t}")
    for t in range(4):
        a(f"v_max_f32 v{MX+t}, v{MX+t}, v{T2+t}")
    for t in range(4):
        a(f"v_sub_f32 v{NM+t}, v{NM+t}, v{MX+t}")
    for t in range(4):
        a(f"v_and_b32 v{T2+t}, 0xffff0000, v{NM+t}")
    for t in range(4):
        a(f"v_sub_f32 v{T2+t}, v{NM+t}, v{T2+t}")
    for t in range(4):
        a(f"v_and_b32 v{T2+4+t}, 0xffff0000, v{T2+t}")
    for t in range(4):
        a(f"v_sub_f32 v{T2+4+t}, v{T2+t}, v{T2+4+t}")
    a("s_mov_b32 exec_lo, 0")
    for t in range(4):
        a(f"v_perm_b32 v{Q+8*t+6}, v{T2+t}, v{NM+t}, s42")
        a(f"v_lshrrev_b32 v{Q+8*t+7}, 16, v{T2+4+t}")
    a("s_mov_b32 exec_lo, -1")
    a(f"{MF32} {vr(S,16)}, {vr(KB,4)}, {vr(Q,4)}, 0")
    a(f"{MF32} {vr(S,16)}, {vr(KB+4,4)}, {vr(Q+4,4)}, {vr(S,16)}")
    for r in range(2, 8):
        a(f"v_mov_b32 v{P+8+r}, 0")
    a("s_mov_b32 s46, 4")
    a(f"s_setprio {os.environ.get('PL', '1')}")
    a.label("A_LOOP")
    a("s_mov_b32 s59, 7")
    a("s_cmp_eq_u32 s63, 0")
    a("s_cbranch_scc1 A_NOPICK")
    kv_pick("L")
    a("s_cmp_eq_u32 s5, s63")
    a("s_cbranch_scc1 A_NOPICK")
    kv_poll()
    a.label("A_NOPICK")
    a(f"s_mul_i32 s44, s59, {16*KTS}")
    if os.environ.get("STAMP") and "itst" in EXP:
        a("s_memtime s[96:97]")
        a("s_memrealtime s[98:99]")
        a("s_lshl_b32 s100, s46, 1")
        a("s_sub_u32 s100, 10, s100")
        a("s_add_u32 s101, s100, 1")
        a("s_waitcnt lgkmcnt(0)")
        a("s_mov_b32 m0, s100")
        a("s_nop 3")
        a("v_writelane_b32 v254, s96, m0")
        a("s_mov_b32 m0, s101")
        a("s_nop 3")
        a("v_writelane_b32 v254, s98, m0")
    for n in range(16):
        kt, t = n >> 2, n & 3
        n1 = (n + 1) & 15; kt1, t1 = n1 >> 2, n1 & 3
        n0 = (n - 1) & 15; kt0, t0 = n0 >> 2, n0 & 3
        sc = S + 16 * (n & 1); sn = S + 16 * (n1 & 1)
        pc = P + 8 * (n & 1); pp = P + 8 * (n0 & 1)
        mf = [f"{MF32} {vr(sn,16)}, {vr(KB+8*kt1,4)}, {vr(Q+8*t1,4)}, 0",
              f"{MF32} {vr(sn,16)}, {vr(KB+8*kt1+4,4)}, {vr(Q+8*t1+4,4)}, {vr(sn,16)}",
              f"{MF32} {vr(O+16*t0,16)}, {vr(VB+8*kt0,4)}, {vr(pp,4)}, {vr(O+16*t0,16)}",
              f"{MF32} {vr(O+16*t0,16)}, {vr(VB+8*kt0+4,4)}, {vr(pp+4,4)}, {vr(O+16*t0,16)}"]
        for m in range(4):
            if (m == 0 and t == 3) or (m == 2 and t == 1):
                a("s_waitcnt vmcnt(12)")
            a(mf[m])
            if m == 0 and t == 3:
                patch(KB + 8 * kt1)
            for e in range(4):
                a(f"v_exp_f32 v{sc+4*m+e}, v{sc+4*m+e}")
                if m == 1 and t == 2 and e in (0, 1):
                    a(f"buffer_load_dwordx4 {vr(KB+8*kt+4*e,4)}, v{VK0+e}, s[12:15], s44 offen{SC}")
                if m == 1 and t == 2 and e == 2 and n < 14:
                    a(f"s_addk_i32 s44, {KTS}")
                if m == 3 and t == 0 and e in (0, 1):
                    a(f"buffer_load_dwordx4 {vr(VB+8*kt0+4*e,4)}, v{VV0+e}, s[16:19], s45 offen{SC}")
                if m == 3 and t == 0 and e == 2:
                    a(f"s_addk_i32 s45, {VTS}" if n else f"s_mul_i32 s45, s59, {16*VTS}")
                if n == 0 and m == 3 and e == 3:
                    a("s_cmp_lg_u32 s46, 1")
                    a("s_cbranch_scc1 A_NOFL")
                    late_load(a, 248, 14)
                    a.label("A_NOFL")
                if n == 15 and m == 3 and e == 0:
                    a("s_sub_u32 s46, s46, 1")
                if n == 15 and m == 3 and e == 1:
                    a("s_cmp_lg_u32 s46, 0")
            for c in range(2):
                a(f"v_cvt_pk_bf16_f32 v{pc+2*m+c}, v{sc+4*m+2*c}, v{sc+4*m+2*c+1}")
    a("s_cbranch_scc1 A_LOOP")
    a.stamp(8)
    if "dT" in EXP: a(f"s_sleep {DLY}")
    a("s_nop 0")
    a(f"{MF32} {vr(O+48,16)}, {vr(VB+24,4)}, {vr(P+8,4)}, {vr(O+48,16)}")
    a(f"{MF32} {vr(O+48,16)}, {vr(VB+28,4)}, {vr(P+12,4)}, {vr(O+48,16)}")
    a("v_mov_b32 v3, 0x5f800000")
    a("s_mov_b32 exec_lo, 0")
    for t in range(3):
        a(f"v_cmp_nlt_f32 {sr(4+2*t,2)}, v{O+16*t+12}, v3")
    for t in range(1, 3):
        a(f"v_mov_b32 v{O+16*t+13}, v{NM+t}")
    a("s_mov_b32 exec_lo, -1")
    for t in range(1, 3):
        for q in range(4):
            a(f"ds_write_b128 v{3+t}, {vr(O+16*t+4*q,4)} offset:{1024*q}")
    a("s_mov_b32 exec_lo, 0")
    a(f"v_cmp_nlt_f32 vcc, v{O+48+12}, v3")
    a(f"v_mov_b32 v{O+48+13}, v{NM+3}")
    a("s_mov_b32 exec_lo, -1")
    a("s_or_b32 s5, s5, s7")
    a("s_or_b32 s5, s5, s9")
    a("s_or_b32 s5, s5, vcc_hi")
    a("s_andn2_b32 s5, s5, s41")
    a("s_cbranch_scc1 A_FALLBACK")
    for q in range(4):
        a(f"ds_write_b128 v6, {vr(O+48+4*q,4)} offset:{1024*q}")
    a(f"v_mov_b32 v{T2}, v{O+12}")
    a(f"v_mov_b32 v{T2+1}, v{O+12}")
    a("v_add_u32 v10, 4096, v2")
    a("s_lshl_b32 s33, s24, 13")
    a(f"s_add_u32 s33, s33, {WOF}")
    a("s_lshl_b32 s36, s50, 15")
    a("s_add_u32 s36, s36, s33")
    a("s_xor_b32 s37, s50, 1")
    a("s_lshl_b32 s37, s37, 15")
    a("s_add_u32 s37, s37, s33")
    a("v_lshrrev_b32 v11, 5, v1")
    a("v_lshlrev_b32 v12, 6, v11")
    a("s_lshl_b32 s38, s49, 7")
    a(f"s_add_u32 s38, s38, {GO}")
    a("v_and_b32 v13, 31, v1")
    a("v_lshlrev_b32 v3, 12, v13")
    a("v_lshl_add_u32 v3, v11, 4, v3")
    a("s_lshl_b32 s39, s50, 17")
    a("s_lshr_b32 s34, s49, 4")
    a("s_lshl_b32 s34, s34, 10")
    a("s_add_u32 s39, s39, s34")
    a("s_and_b32 s34, s49, 15")
    a("s_lshl_b32 s34, s34, 5")
    a("s_add_u32 s39, s39, s34")
    a(f"s_add_u32 s39, s39, {BT}")
    a("s_waitcnt lgkmcnt(0)")
    a("s_barrier")
    LM = T2 + 2
    for s in range(3):
        a(f"ds_read_b64 {vr(LM+2*s,2)}, v8 offset:{4096*s+3072}")
    RB = O + 16
    for s in range(3):
        for q in range(4):
            a(f"ds_read_b128 {vr(RB+16*s+4*q,4)}, v7 offset:{4096*s+1024*q}")
    a(f"v_permlane32_swap_b32 v{T2}, v{T2+1}")
    a("s_waitcnt lgkmcnt(12)")
    a(f"v_min3_f32 v{MX}, v{NM}, v{LM+1}, v{LM+3}")
    a(f"v_min_f32 v{MX}, v{MX}, v{LM+5}")
    a(f"v_sub_f32 v{S}, v{MX}, v{NM}")
    for s in range(3):
        a(f"v_sub_f32 v{S+2+2*s}, v{MX}, v{LM+2*s+1}")
    for s in range(4):
        a(f"v_exp_f32 v{S+2*s}, v{S+2*s}")
    a(f"v_mul_f32 v{MX+1}, v{S}, v{T2+1}")
    for s in range(3):
        a(f"v_fmac_f32 v{MX+1}, v{S+2+2*s}, v{LM+2*s}")
    a(f"v_rcp_f32 v{MX+1}, v{MX+1}")
    a("s_nop 0")
    for s in range(4):
        a(f"v_mul_f32 v{S+2*s}, v{S+2*s}, v{MX+1}")
    for r in range(0, 16, 2):
        a(f"v_pk_mul_f32 {vr(O+r,2)}, {vr(O+r,2)}, {vr(S,2)} op_sel_hi:[1,0]")
    for s in range(3):
        a(f"s_waitcnt lgkmcnt({8-4*s})")
        for r in range(0, 16, 2):
            a(f"v_pk_fma_f32 {vr(O+r,2)}, {vr(RB+16*s+r,2)}, {vr(S+2+2*s,2)}, {vr(O+r,2)} op_sel_hi:[1,0,1]")
    for r in range(0, 16, 2):
        a(f"v_cvt_pk_bf16_f32 v{P+r//2}, v{O+r}, v{O+r+1}")
    a("s_mov_b32 exec_lo, 0")
    a(f"v_mov_b32 v{P+6}, 0")
    a(f"v_mov_b32 v{P+7}, 0")
    a("s_mov_b32 exec_lo, -1")
    a.nvm = 0
    for f in range(2):
        tagos = a.vm(f"buffer_store_dwordx4 {vr(P+4*f,4)}, v9, s[20:23], s43 offen offset:{1024*f}{SC}")
    a.stamp(9)
    a("s_barrier")
    late_check(a, 248, 14, 15)
    WB, GG, BB = KB, Q, Q + 16
    NPRE = int(os.environ.get("NPRE", "4"))
    def wo_load(i):
        for x in range(2):
            a.vm(f"buffer_load_dwordx4 {vr(WB+8*i+4*x,4)}, v{2 if i<4 else 10}, s[20:23], s{36+x} offen offset:{1024*(i&3)}{SC}")
    for i in range(NPRE): wo_load(i)
    a("s_lshl_b32 s52, s47, 9")
    a("s_lshl_b32 s33, s24, 7")
    a("s_add_u32 s52, s52, s33")
    a(f"s_add_u32 s52, s52, {F_O}")
    a.wait_vm(tagos)
    cnt_add(a, 252, "s51")
    a("s_cmp_ge_u32 s32, 28")
    a("s_cbranch_scc1 L_END")
    for i in range(NPRE, 8): wo_load(i)
    for i in range(4):
        a.vm(f"buffer_load_dwordx4 {vr(GG+4*i,4)}, v12, s[20:23], s38 offen offset:{16*i}{SC}")
    for i in range(2):
        a.vm(f"buffer_load_dwordx4 {vr(BB+4*i,4)}, v3, s[20:23], s39 offen offset:{512*i}{SC}")
    cnt_load(a, 250, "s52")
    a("s_lshl_b32 s33, s24, 13")
    a(f"s_add_u32 s33, s33, {OF}")
    a("s_lshl_b32 s36, s49, 15")
    a("s_add_u32 s36, s36, s33")
    a("s_xor_b32 s37, s49, 1")
    a("s_lshl_b32 s37, s37, 15")
    a("s_add_u32 s37, s37, s33")
    a.srd(12, P_OUT, X_BYTES)
    a("v_mul_u32_u24 v12, 14336, v11")
    a("v_lshl_add_u32 v12, v13, 1, v12")
    a("s_mul_i32 s44, s49, 28672")
    a("s_lshl_b32 s33, s50, 6")
    a("s_add_u32 s44, s44, s33")
    for i in range(1, 4):
        a(f"s_add_u32 s{44+i}, s44, {3584*i}")
    a("s_waitcnt vmcnt(0)")
    BU = 232
    for i in range(8):
        a(f"v_lshlrev_b32 v{BU+2*i}, 16, v{BB+i}")
        a(f"v_and_b32 v{BU+2*i+1}, 0xffff0000, v{BB+i}")
    cnt_wait(a, 250, "s52", 8)
    a.stamp(10)
    AF = O
    tags = []
    for i in range(8):
        for x in range(2):
            t = a.vm(f"buffer_load_dwordx4 {vr(AF+8*i+4*x,4)}, v{2 if i<4 else 10}, s[20:23], s{36+x} offen offset:{1024*(i&3)}{SC}")
        tags.append(t)
    AC = [BB, S, S + 16, P]
    for i in range(8):
        a.wait_vm(tags[i])
        for t in (3, 2, 1, 0):
            sa, sb = t >> 1, t & 1
            c = "0" if i == 0 else vr(AC[t], 16)
            a(f"{MF32} {vr(AC[t],16)}, {vr(AF+8*i+4*sa,4)}, {vr(WB+8*i+4*sb,4)}, {c}")
    a.nop(9)
    a.stamp(11)
    if "dE" in EXP: a(f"s_sleep {DLY}")
    for t in (3, 2, 1):
        for q in range(4):
            a(f"ds_write_b128 v{3+t}, {vr(AC[t]+4*q,4)} offset:{1024*q}")
    for r in range(0, 16, 2):
        a(f"v_pk_add_f32 {vr(AC[0]+r,2)}, {vr(AC[0]+r,2)}, {vr(BU+r,2)} neg_lo:[0,1] neg_hi:[0,1]")
    a("s_waitcnt lgkmcnt(0)")
    a("s_barrier")
    for s in range(3):
        for q in range(4):
            a(f"ds_read_b128 {vr(AF+16*s+4*q,4)}, v7 offset:{4096*s+1024*q}")
    for s in range(3):
        a(f"s_waitcnt lgkmcnt({8-4*s})")
        for r in range(0, 16, 2):
            a(f"v_pk_add_f32 {vr(AC[0]+r,2)}, {vr(AC[0]+r,2)}, {vr(AF+16*s+r,2)}")
    for r in range(0, 16, 2):
        a(f"v_pk_fma_f32 {vr(AC[0]+r,2)}, {vr(AC[0]+r,2)}, {vr(GG+r,2)}, {vr(BU+r,2)}")
    for r in range(0, 16, 2):
        a(f"v_cvt_pk_bf16_f32 v{AF+r//2}, v{AC[0]+r}, v{AC[0]+r+1}")
    for r in range(16):
        op = "buffer_store_short_d16_hi" if r & 1 else "buffer_store_short"
        a(f"{op} v{AF+r//2}, v12, s[12:15], s{44+(r>>2)} offen offset:{896*(r&3)}")
    fin(a, 12)
    a("s_endpgm")
    a.label("A_FALLBACK")
    a("s_mov_b32 s41, -1")
    for t in range(4):
        a(f"v_mov_b32 v{MX+t}, 0xff800000")
    a("s_mov_b32 s44, 0")
    a("s_mov_b32 s45, 0")
    a("s_waitcnt vmcnt(0) lgkmcnt(0)")
    a.label("A_FBLOOP")
    for f in range(2):
        a(f"buffer_load_dwordx4 {vr(KB+4*f,4)}, v{VK0+f}, s[12:15], s44 offen{SC}")
    a("s_waitcnt vmcnt(0)")
    patch(KB)
    a("s_nop 1")
    for t in range(4):
        a(f"{MF32} {vr(O+16*t,16)}, {vr(KB,4)}, {vr(Q+8*t,4)}, 0")
        a(f"{MF32} {vr(O+16*t,16)}, {vr(KB+4,4)}, {vr(Q+8*t+4,4)}, {vr(O+16*t,16)}")
    a.nop(16)
    for i in range(8):
        for t in range(4):
            a(f"v_max3_f32 v{MX+t}, v{MX+t}, v{O+16*t+2*i}, v{O+16*t+2*i+1}")
    a(f"s_addk_i32 s44, {KTS}")
    a("s_add_u32 s45, s45, 1")
    a("s_and_b32 s4, s45, 3")
    a("s_cbranch_scc1 A_FBLOOP")
    a(f"s_add_u32 s44, s44, {12*KTS}")
    a("s_cmp_lt_u32 s45, 16")
    a("s_cbranch_scc1 A_FBLOOP")
    a("s_mov_b32 s59, 0")
    a("s_mov_b32 s63, 14")
    a(f"v_mov_b32 v{PV_}, s58")
    for r in range(8):
        a(f"v_mov_b32 v{VB+24+r}, 0")
    first_loads()
    zero_acc()
    a("s_waitcnt vmcnt(0)")
    patch(KB)
    a("s_branch A_SETMAX")

def gen_B(a):
    a.label("L_B")
    a(f"s_setprio {PB}")
    a.stamp(1)
    if "noB" in EXP: a("s_endpgm")
    if "dB" in EXP:
        a("s_waitcnt vmcnt(0)"); a(f"s_sleep {DLY}")
    TS = 272; TW = 64 * TS
    UB = 4 * TW
    US = 4608
    YB, XB, KACC, FR, CT = 16, 80, 136, 152, 216
    Z1, Z256, TM = 224, 226, 226
    a(f"s_mul_i32 s29, s24, {TW}")
    a("s_mov_b32 m0, s29")
    a("v_mov_b32 v15, 0x3f80")
    a(f"ds_write_addtid_b32 v15 offset:{32*TS}")
    a("v_and_b32 v12, 31, v1")
    a(f"v_mul_u32_u24 v12, {TS}, v12")
    a("v_lshrrev_b32 v13, 5, v1")
    a("v_lshl_add_u32 v12, v13, 4, v12")
    a("v_add_u32 v240, s29, v12")
    for r in range(16):
        a(f"v_mov_b32 v{KACC+r}, 0")
    a(f"v_mul_u32_u24 v12, {US-512}, v13")
    a("v_add_u32 v12, v12, v2")
    a(f"v_add_u32 v12, {UB}, v12")
    a(f"ds_write_b128 v12, {vr(KACC,4)}")
    a("s_and_b32 s42, s2, 31")
    a("s_lshl_b32 s42, s42, 7")
    a(f"s_add_u32 s42, s42, {F_XT}")
    a("v_lshrrev_b32 v12, 1, v1")
    a("v_and_b32 v13, 1, v1")
    a(f"v_mul_u32_u24 v3, {XTS}, v12")
    a("v_lshl_add_u32 v3, v13, 4, v3")
    a(f"s_mul_i32 s43, s24, {64*XTS}")
    a("s_mul_i32 s33, s31, 896")
    a("s_add_u32 s43, s43, s33")
    a("s_lshl_b32 s33, s39, 4")
    a("s_add_u32 s43, s43, s33")
    a(f"s_add_u32 s43, s43, {XT}")
    a(f"s_add_u32 s44, s43, {32*XTS}")
    a(f"v_mul_u32_u24 v241, {US}, v13")
    a("v_lshl_add_u32 v241, v12, 4, v241")
    a("s_lshl_b32 s33, s24, 10")
    a(f"s_add_u32 s33, s33, {UB + 512}")
    a("v_add_u32 v241, s33, v241")
    a("s_waitcnt lgkmcnt(0)")
    a("s_and_b32 s33, s26, 1")
    a("s_lshl_b32 s33, s33, 4")
    a("s_lshr_b32 s28, s28, s33")
    a("s_lshl_b32 s28, s28, 16")
    a("s_lshr_b32 s38, s38, s33")
    a("s_lshl_b32 s38, s38, 16")
    hi = float(np.float32(LOG2E)); lo = float(np.float32(LOG2E - hi))
    a(f"v_mov_b32 v13, {hex(f2u(hi))}")
    a("v_mul_f32 v14, s28, v13")
    a("v_fma_f32 v13, s28, v13, -v14")
    a(f"v_mov_b32 v15, {hex(f2u(lo))}")
    a("v_fmac_f32 v13, s28, v15")
    a("v_exp_f32 v14, v14")
    a(f"v_mul_f32 v13, {hex(f2u(math.log(2)))}, v13")
    a("v_fmac_f32 v14, v14, v13")
    a("v_cvt_pk_bf16_f32 v14, v14, v14")
    a("v_and_b32 v14, 0xffff0000, v14")
    a(f"s_mov_b32 s48, {hex(f2u(LOG2E))}")
    a(f"s_mov_b32 s49, {hex(f2u(1/(2*math.pi)))}")
    a("s_mov_b32 s30, 2")
    a("s_waitcnt vmcnt(4)")
    a.stamp(2)
    a.label("B_PASS")
    a("s_cmp_eq_u32 s30, 2")
    for i in range(2):
        a(f"v_and_b32 v{8+i}, 0xffff0000, v{RAW+i}")
    for i in range(2):
        a(f"v_lshlrev_b32 v{RAW+i}, 16, v{RAW+i}")
    r1 = [0, 0, 2, 4, 4, 4, 6, 8, 8]
    P_ = {}
    for r in range(9): P_[(0, r)] = r; P_[(1, r)] = 256 + r1[r]
    for i, e in enumerate((0, 4, 8)): P_[(0, 9 + i)] = 512 + e; P_[(1, 9 + i)] = 768 + e
    for i, e in enumerate((0, 8)):
        P_[(0, 12 + i)] = 1024 + e; P_[(1, 12 + i)] = 1280 + e; P_[(0, 14 + i)] = 1536 + e; P_[(1, 14 + i)] = 1792 + e
    plist = sorted(set(P_.values()))
    xreg = {p: XB + 2 * i for i, p in enumerate(plist)}
    rows_of = {p: [8 * (r >> 2) + 4 * h + (r & 3) for (h, r), pp in P_.items() if pp == p] for p in plist}
    yreg = {j: YB + 2 * j for j in range(1, 32)}
    a("v_pk_mul_f32 v[8:9], v[8:9], v[14:15] op_sel_hi:[1,0]")
    a("v_pk_mul_f32 v[8:9], v[8:9], s[48:49]")
    a(f"v_mul_f32 v{TM+2}, 0x41000000, v8")
    a(f"v_mul_f32 v{TM+3}, 0x41000000, v9")
    a(f"v_mul_f32 v{TM+4}, 0x43800000, v8")
    a(f"v_mul_f32 v{TM+5}, 0x43800000, v9")
    def kmf(lo, hi):
        for ks in range(lo, hi):
            a(f"{MF32} {vr(KACC,16)}, {vr(FR+8*ks,4)}, {vr(FR+8*ks+4,4)}, {vr(KACC,16)}")
    def make_w():
        a("s_waitcnt vmcnt(0)")
        for i in range(2, 6):
            a(f"v_and_b32 v{8+i}, 0xffff0000, v{RAW+i}")
        for i in range(2, 6):
            a(f"v_lshlrev_b32 v{RAW+i}, 16, v{RAW+i}")
        cmul(a, xreg[0], 12, 10, 0)
        cmul(a, xreg[0], 12, 10, 1)
        a(f"v_pk_mul_f32 {vr(xreg[0],2)}, {vr(xreg[0],2)}, v[14:15] op_sel_hi:[1,0]")
    anchors = [(TM + 2, yreg[1]), (8, Z1), (TM + 4, Z256)]
    for s_, d_ in anchors:
        a(f"v_fract_f32 v{s_+1}, v{s_+1}")
        a(f"v_exp_f32 v{s_}, v{s_}")
    for s_, d_ in anchors:
        a(f"v_cos_f32 v{d_}, v{s_+1}")
        a(f"v_sin_f32 v{d_+1}, v{s_+1}")
    a("s_nop 0")
    for s_, d_ in anchors:
        a(f"v_pk_mul_f32 {vr(d_,2)}, {vr(d_,2)}, {vr(s_,2)} op_sel_hi:[1,0]")
    ops = []
    ops += [(("Y", 2), ("Y", 1), ("Y", 1)), (("Y", 3), ("Y", 2), ("Y", 1)), (("Y", 4), ("Y", 2), ("Y", 2))]
    ops += [(("Y", 4 + k), ("Y", 4), ("Y", k)) for k in (4, 1, 2, 3)]
    ops += [(("Y", 8 + k), ("Y", 8), ("Y", k)) for k in (8, 1, 2, 3, 4, 5, 6, 7)]
    ops += [(("Y", 16 + k), ("Y", 16), ("Y", k)) for k in range(1, 16)]
    xo = [(("X", 8), ("X", 0), ("Y", 1))]
    xo += [(("X", e + 1), ("X", e), ("Z", 1)) for e in range(7)]
    for base, es in ((256, (0, 8, 4, 2, 6)), (512, (0, 8, 4)), (768, (0, 8, 4)), (1024, (0, 8)), (1280, (0, 8)), (1536, (0, 8)), (1792, (0, 8))):
        xo += [(("X", base + e), ("X", base - 256 + e), ("Z", 256)) for e in es]
    def reg(n):
        return {"Y": yreg, "X": xreg, "Z": {1: Z1, 256: Z256}}[n[0]][n[1]]
    done = {("Y", 1), ("Z", 1), ("Z", 256)}
    XAT = int(os.environ.get("XAT", "6"))
    allops = xo + ops
    memo = {}
    def height(n):
        if n in memo: return memo[n]
        h = 0
        for (d, x, y) in allops:
            if x == n or y == n: h = max(h, 1 + height(d))
        memo[n] = h
        return h
    pending = sorted(allops, key=lambda o: -height(o[0]))
    towrite = [("Y", 1)]
    ct = [0]
    WB = int(os.environ.get("WB", "16"))
    wq = []
    def flush_w():
        for ins in wq: a(ins)
        wq.clear()
    def emit_write(n):
        ring = list(range(CT, CT + 8)) + list(range(XRW, XRW + 8))
        assert WB <= 16
        t = ring[ct[0] % 16]; ct[0] += 1
        r = reg(n)
        if n[0] == "Y":
            a(f"v_cvt_pk_bf16_f32 v{t}, v{r}, v{r+1}")
            wq.append(f"ds_write_addtid_b32 v{t} offset:{(32+n[1])*TS}")
        else:
            a(f"v_cvt_pk_bf16_f32 v{t}, v{r}, -v{r+1}")
            for m in rows_of[n[1]]:
                wq.append(f"ds_write_addtid_b32 v{t} offset:{m*TS}")
        if len(wq) >= WB: flush_w()
    nb = 0
    UL = XRW
    PB0 = int(os.environ.get('PB0', '9')); PB1 = int(os.environ.get('PB1', '15'))
    while pending:
        batch = [o for o in pending if o[1] in done and o[2] in done][:4]
        for o in batch: pending.remove(o)
        for (d, x, y) in batch: cmul(a, reg(d), reg(x), reg(y), 0)
        w = towrite; towrite = []
        for n in w[:2]: emit_write(n)
        for (d, x, y) in batch: cmul(a, reg(d), reg(x), reg(y), 1)
        for n in w[2:]: emit_write(n)
        for (d, x, y) in batch:
            done.add(d); towrite.append(d)
        nb += 1
        if nb <= 4:
            a(f"s_cbranch_scc1 B_M{nb}")
            if nb == 1: a("s_waitcnt lgkmcnt(0)")
            kmf(2 * nb - 2, 2 * nb)
            a.label(f"B_M{nb}")
        if nb == XAT:
            make_w()
            done.add(("X", 0)); towrite.append(("X", 0))
        if nb == PB0:
            a("s_cbranch_scc1 B_P1")
            a("s_setprio 3")
            nonce_issue(a, 250)
            a(f"s_setprio {PB}")
            a.label("B_P1")
        if nb == PB1:
            a("s_lshl_b32 s33, s24, 1")
            a("s_add_u32 s33, s33, s30")
            a("s_cmp_lg_u32 s33, 1")
            a("s_cbranch_scc1 B_P3")
            a("s_waitcnt vmcnt(0)")
            nonce_take(a, 250)
            a("s_setprio 3")
            cnt_load(a, 250, "s42")
            a(f"s_setprio {PB}")
            a.label("B_P3")
    for n in towrite: emit_write(n)
    flush_w()
    for ks in range(8):
        a(f"ds_read_b128 {vr(FR+8*ks,4)}, v240 offset:{32*ks}")
        a(f"ds_read_b128 {vr(FR+8*ks+4,4)}, v240 offset:{32*TS+32*ks}")
    a("s_sub_u32 s30, s30, 1")
    a("s_cmp_lg_u32 s30, 0")
    a("s_cbranch_scc1 B_PASS")
    print("K-gen batches", nb, file=sys.stderr)
    for ks in range(8):
        a(f"s_waitcnt lgkmcnt({14-2*ks})")
        kmf(ks, ks + 1)
    a.stamp(3)
    a("v_add_u32 v242, s29, v2")
    a("s_xor_b32 s33, s24, 1")
    a(f"s_mul_i32 s33, s33, {TW}")
    a("v_add_u32 v243, s33, v2")
    a("s_and_b32 s33, s24, 2")
    a(f"s_mul_i32 s48, s33, {TW}")
    a("s_add_u32 s48, s48, 4096")
    a("s_mul_i32 s33, s27, 4160")
    a("s_add_u32 s49, s33, s48")
    a("v_sub_u32 v6, 63, v1")
    a("v_lshlrev_b32 v6, 4, v6")
    a("v_add_u32 v6, s49, v6")
    a("v_and_b32 v7, 1, v1")
    a("v_cmp_eq_u32 vcc, 1, v7")
    for q in range(4):
        a(f"ds_write_b128 v242, {vr(KACC+4*q,4)} offset:{1024*q}")
    a("v_lshrrev_b32 v4, 4, v1")
    a("v_and_b32 v5, 15, v1")
    a("v_add_u32 v7, 1, v5")
    a("v_lshrrev_b32 v7, 1, v7")
    a("v_lshlrev_b32 v8, 2, v4")
    a("v_sub_u32 v8, v8, v7")
    a("v_and_b32 v7, 1, v5")
    a("v_mul_u32_u24 v7, 1040, v7")
    a("v_sub_u32 v8, v8, v7")
    a(f"v_add_u32 v8, {1016 + 1040 - 48 - 128}, v8")
    a("v_lshlrev_b32 v8, 2, v8")
    a("s_lshl_b32 s33, s27, 8")
    a("s_sub_u32 s33, s48, s33")
    a("v_add_u32 v8, s33, v8")
    for i in range(1, 4):
        a(f"v_subrev_u32 v{8+i}, {1024*i}, v8")
    a(f"v_mov_b32 v251, {UB + 2 * US}")
    a("s_cmp_lg_u32 s24, 0")
    a("s_cbranch_scc1 B_NOPOLL")
    a("s_waitcnt vmcnt(0)")
    a("s_mov_b64 exec, 1")
    a("ds_write_b32 v251, v250")
    a("s_mov_b64 exec, -1")
    a.label("B_NOPOLL")
    a("s_waitcnt lgkmcnt(0)")
    a("s_barrier")
    a("ds_read_b32 v252, v251")
    for q in range(4):
        a(f"ds_read_b128 {vr(FR+4*q,4)}, v243 offset:{1024*q}")
    def u_loads():
        a("s_setprio 3")
        for i in range(2):
            a(f"buffer_load_dwordx4 {vr(UL+4*i,4)}, v3, s[20:23], s{43+i} offen{SC}")
        a(f"s_setprio {PC}")
    a("s_waitcnt lgkmcnt(4)")
    a("v_readfirstlane_b32 s45, v252")
    a("s_nop 1")
    a("s_cmp_lg_u32 s45, 32")
    a("s_cbranch_scc1 B_NOU")
    u_loads()
    a.label("B_NOU")
    a("s_lshr_b32 s33, s24, 1")
    a(f"s_mul_i32 s36, s33, {US}")
    a(f"s_add_u32 s36, s36, {UB + 512}")
    a("v_lshlrev_b32 v12, 5, v5")
    a("v_lshl_add_u32 v13, v4, 3, v12")
    a("v_lshl_add_u32 v12, v4, 4, v12")
    a("s_lshl_b32 s33, s27, 8")
    a("s_sub_u32 s33, s36, s33")
    a(f"s_sub_u32 s33, s33, {32 + 192}")
    a("v_add_u32 v12, s33, v12")
    a("s_lshl_b32 s33, s27, 11")
    a("s_add_u32 s33, s33, s36")
    a("v_add_u32 v13, s33, v13")
    a("s_lshl_b32 s40, s26, 1")
    a("s_add_u32 s40, s40, s27")
    a("s_lshl_b32 s41, s40, 11")
    a(f"s_add_u32 s41, s41, {BT}")
    a("s_lshr_b32 s40, s26, 5")
    a("s_lshl_b32 s40, s40, 7")
    a(f"s_add_u32 s40, s40, {F_B}")
    a("s_waitcnt lgkmcnt(0)")
    for r in range(0, 16, 2):
        a(f"v_pk_add_f32 {vr(KACC+r,2)}, {vr(KACC+r,2)}, {vr(FR+r,2)}")
    K_ = KACC; W_ = FR + 16
    a(f"v_cndmask_b32 v{CT}, v{K_+12}, v{K_+13}, vcc")
    a(f"v_cndmask_b32 v{CT+1}, v{K_+14}, v{K_+15}, vcc")
    for i in range(4):
        a(f"v_mov_b32 v{W_+16+i}, 0")
    def pk(d, lo_, hi_): a(f"v_cvt_pk_bf16_f32 v{d}, v{lo_}, v{hi_}")
    a("s_cmp_eq_u32 s27, 1")
    a("s_cbranch_scc1 B_ODD")
    A_, B_, C_ = K_ + 9, K_ + 10, K_ + 11
    for i in range(4): pk(W_ + i, K_ + 7 - 2 * i, K_ + 6 - 2 * i)
    for i, (x, y) in enumerate(((C_, C_), (B_, B_), (B_, A_), (A_, A_))): pk(W_ + 4 + i, x, y)
    for sl in range(2):
        A2, C2, M2 = K_ + 12 + 2 * sl, K_ + 13 + 2 * sl, CT + sl
        for i, (x, y) in enumerate(((C2, C2), (C2, M2), (A2, A2), (A2, A2))): pk(W_ + 8 + 4 * sl + i, x, y)
    a("s_branch B_IMG")
    a.label("B_ODD")
    for i in range(4): pk(W_ + i, K_ + 8 - 2 * i, K_ + 7 - 2 * i)
    for i, (x, y) in enumerate(((C_, C_), (C_, B_), (B_, B_), (A_, A_))): pk(W_ + 4 + i, x, y)
    for sl in range(2):
        A2, C2, M2 = K_ + 12 + 2 * sl, K_ + 13 + 2 * sl, CT + sl
        for i, (x, y) in enumerate(((C2, C2), (C2, C2), (M2, A2), (A2, A2))): pk(W_ + 8 + 4 * sl + i, x, y)
    a("s_mov_b64 exec, 1")
    pk(W_ + 16, K_, VZ)
    a("s_mov_b64 exec, -1")
    a.label("B_IMG")
    for sl in range(4):
        a(f"ds_write_b128 v6, {vr(W_+4*sl,4)} offset:{(3-sl)*1024}")
    a("v_add_u32 v7, s49, v2")
    a("s_mov_b64 exec, 3")
    a(f"ds_write_b128 v7, {vr(W_+16,4)} offset:4096")
    a("s_mov_b64 exec, -1")
    a("s_cmp_eq_u32 s45, 32")
    a("s_cbranch_scc1 B_UOK")
    a("s_cmp_lg_u32 s24, 0")
    a("s_cbranch_scc1 B_NOPOLL2")
    cnt_wait(a, 250, "s42", 32, 3)
    a.label("B_NOPOLL2")
    a("s_barrier")
    u_loads()
    a.label("B_UOK")
    a.stamp(7)
    a("s_waitcnt vmcnt(0)")
    for i in range(2):
        a(f"ds_write_b128 v241, {vr(UL+4*i,4)} offset:{512*i}")
    a("s_waitcnt lgkmcnt(0)")
    a("s_barrier")
    a.stamp(4)
    a(f"s_setprio {os.environ.get('PV', '0')}")
    FB, CAC = 16, 144
    a.nds = 0
    tg = {}
    def loadstep(stp):
        b = FB + 64 * (stp & 1)
        for i in range(8):
            o = 128 * (1 - (i & 1)) + 16 * (3 - stp)
            a.ds(f"ds_read2_b32 {vr(b+4*i,2)}, v{8+(i>>1)} offset0:{o} offset1:{o+1}")
            a.ds(f"ds_read2_b32 {vr(b+4*i+2,2)}, v{8+(i>>1)} offset0:{o+2} offset1:{o+3}")
            tg[(stp, i)] = a.ds(f"ds_read_b128 {vr(b+32+4*i,4)}, v12 offset:{512*i+64*(3-stp)}")
    loadstep(0)
    for stp in range(4):
        b = FB + 64 * (stp & 1)
        order = sorted([(i, tp) for i in range(8) for tp in range(8 - i)], key=lambda x: (max(x), x[0] + x[1]))
        nxt = []
        if stp < 3:
            b2 = FB + 64 * ((stp + 1) & 1)
            for i in range(8):
                o = 128 * (1 - (i & 1)) + 16 * (3 - stp - 1)
                nxt.append((None, f"ds_read2_b32 {vr(b2+4*i,2)}, v{8+(i>>1)} offset0:{o} offset1:{o+1}"))
                nxt.append((None, f"ds_read2_b32 {vr(b2+4*i+2,2)}, v{8+(i>>1)} offset0:{o+2} offset1:{o+3}"))
                nxt.append(((stp + 1, i), f"ds_read_b128 {vr(b2+32+4*i,4)}, v12 offset:{512*i+64*(3-stp-1)}"))
        waited = -1
        seen = set()
        for k, (i, tp) in enumerate(order):
            if max(i, tp) > waited:
                waited = max(i, tp)
                a.wait_ds(tg[(stp, waited)])
            t = i + tp
            c = vr(CAC + 4 * t, 4)
            if stp == 0 and t not in seen:
                c = "0"; seen.add(t)
            a(f"{MF16} {vr(CAC+4*t,4)}, {vr(b+4*i,4)}, {vr(b+32+4*tp,4)}, {c}")
            if k >= 8 and nxt:
                key, ins = nxt.pop(0)
                r = a.ds(ins)
                if key: tg[key] = r
        assert not nxt
    a.stamp(5)
    a(f"s_setprio {os.environ.get('PT', '2')}")
    RR = 16
    for tl in range(4):
        a(f"ds_read_b64 {vr(80+2*tl,2)}, v13 offset:{512*tl}")
    a("s_cmp_eq_u32 s27, 1")
    a.nop(3)
    a("s_cbranch_scc1 B_R1")
    for par in range(2):
        if par: a.label("B_R1")
        for q in range(4):
            a(f"ds_write_b128 v242, {vr(CAC+16*(1-par)+4*q,4)} offset:{1024*q}")
        a("s_waitcnt lgkmcnt(0)")
        a("s_barrier")
        for q in range(4):
            a(f"ds_read_b128 {vr(RR+4*q,4)}, v243 offset:{1024*q}")
        a("s_waitcnt lgkmcnt(0)")
        for r in range(0, 16, 2):
            a(f"v_pk_add_f32 {vr(RR+r,2)}, {vr(RR+r,2)}, {vr(CAC+16*par+r,2)}")
        if not par: a("s_branch B_R2")
    a.label("B_R2")
    for t in range(4):
        for i in range(2):
            a(f"v_lshlrev_b32 v{88+2*i}, 16, v{80+2*t+i}")
            a(f"v_and_b32 v{88+2*i+1}, 0xffff0000, v{80+2*t+i}")
        for r in range(4):
            a(f"v_fmac_f32 v{RR+4*t+r}, s38, v{88+r}")
        for i in range(2):
            a(f"v_cvt_pk_bf16_f32 v{80+2*t+i}, v{RR+4*t+2*i}, v{RR+4*t+2*i+1}")
    a("s_nop 1")
    for p in range(2):
        for i in range(2):
            a(f"v_permlane16_swap_b32 v{80+4*p+i}, v{80+4*p+2+i}")
    for p in range(2):
        a(f"buffer_store_dwordx4 {vr(80+4*p,4)}, v2, s[20:23], s41 offen offset:{1024*p}{SC}")
    a("s_waitcnt vmcnt(0)")
    cnt_add(a, 4, "s40")
    fin(a, 6)
    a("s_endpgm")

def gen_C(a):
    a.label("L_C")
    if "dC" in EXP: a(f"s_sleep {DLY}")
    a("s_setprio 3")
    R, U, GU, GW = 16, 80, 144, 160
    a("s_sub_u32 s25, s2, 224")
    a("s_lshl_b32 s26, s31, 2")
    a("s_sub_u32 s33, s32, 28")
    a("s_add_u32 s26, s26, s33")
    a("s_lshl_b32 s26, s26, 2")
    a("s_add_u32 s26, s26, s24")
    a("s_mul_i32 s36, s26, 14336")
    for i in range(1, 4):
        a(f"s_add_u32 s{36+i}, s36, {3584*i}")
    a("s_add_u32 s45, s25, s24")
    a("s_waitcnt lgkmcnt(0)")
    a.srd(20, P_WS, WS_SIZE)
    a.srd(12, P_X, X_BYTES)
    for r in range(16):
        a(f"buffer_load_dwordx4 {vr(R+4*r,4)}, v2, s[12:15], s{36+(r>>2)} offen offset:{896*(r&3)}")
    a.srd(16, P_GW, 896)
    a(f"buffer_load_dwordx4 {vr(GW,4)}, v2, s[16:19], 0 offen")
    a("v_mov_b32 v4, 1")
    a(f"s_mul_i32 s36, s26, {2*XTS}")
    a(f"s_add_u32 s36, s36, {XT}")
    a("s_add_u32 s37, s36, 3584")
    a(f"s_add_u32 s38, s36, {XTS}")
    a("s_add_u32 s39, s38, 3584")
    a("s_mov_b32 s46, 0x05040100")
    a("s_mov_b32 s47, 0x07060302")
    a("s_mov_b32 exec_hi, 0xffffff")
    for hb in range(2):
        a(f"s_waitcnt vmcnt({9 if hb == 0 else 8})")
        for cc in range(8):
            i, e = cc >> 1, cc & 1
            u = U + 32 * hb + 4 * cc
            for q in range(4):
                a(f"v_perm_b32 v{u+q}, v{R+32*hb+4*(2*q+1)+i}, v{R+32*hb+4*(2*q)+i}, s{46+e}")
            a(f"buffer_store_dwordx4 {vr(u,4)}, v2, s[20:23], s{36+2*hb+(cc>>2)} offen offset:{896*(cc&3)}{SC}")
    a.stamp(1)
    a("s_mov_b64 exec, -1")
    nonce_issue(a, 250)
    a("v_lshlrev_b32 v5, 7, v1")
    a(f"s_mov_b32 s41, {F_XT}")
    for r in range(16):
        a(f"v_mov_b32 v{GU+r}, 0")
    a("s_mov_b32 exec_hi, 0xffffff")
    for i in range(4):
        for r in range(16):
            a(f"v_dot2c_f32_bf16 v{GU+r}, v{R+4*r+i}, v{GW+i}")
    a("s_mov_b64 exec, -1")
    a("s_waitcnt vmcnt(0)")
    nonce_take(a, 250)
    a("s_barrier")
    a("s_cmp_lg_u32 s24, 0")
    a("s_cbranch_scc1 C_NOADD")
    a("s_mov_b32 exec_hi, 0")
    a("buffer_atomic_add v4, v5, s[20:23], s41 offen sc1")
    a("s_mov_b64 exec, -1")
    a.label("C_NOADD")
    a.stamp(2)
    a("s_setprio 1")
    a("s_min_u32 s45, s25, 15")
    a("s_mul_i32 s33, s45, 25088")
    a("s_mul_i32 s34, s24, 7168")
    a("s_add_u32 s33, s33, s34")
    a("v_add_u32 v3, 4096, v2")
    a.srd(12, P_WO, 448 * 896)
    a("s_mov_b32 m0, s34")
    a("s_nop 0")
    for i in range(4):
        a(f"buffer_load_dwordx4 v2, s[12:15], s33 offen offset:{1024*i} lds")
    a("s_add_u32 m0, s34, 4096")
    a("s_nop 0")
    for i in range(3):
        a(f"buffer_load_dwordx4 v3, s[12:15], s33 offen offset:{1024*i} lds")
    for sh in ("row_shr:1", "row_shr:2", "row_shr:4", "row_shr:8"):
        for r in range(16):
            a(f"v_add_f32_dpp v{GU+r}, v{GU+r}, v{GU+r} {sh} row_mask:0xf bank_mask:0xf bound_ctrl:0")
    for r in range(16):
        a(f"v_add_f32_dpp v{GU+r}, v{GU+r}, v{GU+r} row_bcast:15 row_mask:0xa bank_mask:0xf")
    for r in range(16):
        a(f"v_add_f32_dpp v{GU+r}, v{GU+r}, v{GU+r} row_bcast:31 row_mask:0xc bank_mask:0xf")
    for op in (f"v_mul_f32 vX, {hex(f2u(-LOG2E))}, vX", "v_exp_f32 vX, vX", "v_add_f32 vX, 1.0, vX", "v_rcp_f32 vX, vX"):
        for r in range(16):
            a(op.replace("vX", f"v{GU+r}"))
    a("s_lshl_b32 s35, s26, 6")
    a(f"s_add_u32 s35, s35, {GO}")
    a("s_lshr_b32 s37, s26, 1")
    a("s_lshl_b32 s37, s37, 7")
    a(f"s_add_u32 s37, s37, {F_G}")
    a("s_mov_b32 exec_lo, 0")
    a("s_mov_b32 exec_hi, 0x80000000")
    for i in range(4):
        a(f"buffer_store_dwordx4 {vr(GU+4*i,4)}, v{VZ}, s[20:23], s35 offen offset:{16*i}{SC}")
    a("s_mov_b64 exec, -1")
    a("v_lshrrev_b32 v15, 5, v1")
    a("v_bfe_u32 v13, v1, 2, 2")
    a("v_lshl_add_u32 v13, v15, 2, v13")
    a("v_mul_u32_u24 v13, 896, v13")
    a("v_bfe_u32 v14, v1, 4, 1")
    a("v_lshl_add_u32 v13, v14, 5, v13")
    a("v_and_b32 v14, 3, v1")
    a("v_lshl_add_u32 v12, v14, 3, v13")
    a("s_lshr_b32 s49, s24, 1")
    a("s_mul_i32 s36, s49, 14336")
    a("s_mul_i32 s38, s27, 448")
    a("s_add_u32 s36, s36, s38")
    a("v_add_u32 v12, s36, v12")
    a(f"s_mul_i32 s38, s27, {7*32768}")
    a("s_lshl_b32 s39, s45, 1")
    a("s_add_u32 s39, s39, s49")
    a("s_lshl_b32 s39, s39, 10")
    a("s_add_u32 s38, s38, s39")
    a(f"s_add_u32 s38, s38, {WOF}")
    a("s_lshr_b32 s40, s25, 2")
    a("s_lshl_b32 s40, s40, 7")
    a(f"s_add_u32 s40, s40, {F_WO}")
    a("s_waitcnt vmcnt(0)")
    cnt_add(a, 4, "s37")
    a("s_cmp_ge_u32 s25, 16")
    a("s_cbranch_scc1 C_END")
    a("s_barrier")
    for i in range(7):
        for hr in range(2):
            a(f"ds_read_b64_tr_b16 {vr(16+4*i+2*hr,2)}, v12 offset:{64*i+8*hr*896}")
    a("s_waitcnt lgkmcnt(0)")
    a("s_cmp_eq_u32 s49, 0")
    a("s_cbranch_scc1 C_WO2")
    a("s_mov_b32 exec_lo, 0")
    for i in range(7):
        a(f"v_mov_b32 v{16+4*i+2}, 0")
        a(f"v_mov_b32 v{16+4*i+3}, 0")
    a("s_mov_b32 exec_lo, -1")
    a.label("C_WO2")
    for i in range(7):
        a(f"buffer_store_dwordx4 {vr(16+4*i,4)}, v2, s[20:23], s38 offen{SC}")
        if i < 6: a("s_add_u32 s38, s38, 32768")
    a("s_waitcnt vmcnt(0)")
    cnt_add(a, 4, "s40")
    a.label("C_END")
    fin(a, 3)

def gen():
    a = Asm()
    gen_entry(a)
    gen_A(a)
    gen_B(a)
    gen_C(a)
    a.label("L_END")
    a("s_endpgm")
    return a.text()

HEADER = open("cdna_kernels/" + NAME + ".s.ref").read().split("; Override launch geometry")[0]

if __name__ == "__main__":
    name = NAME + "_kernel"
    out = HEADER + "; @launch grid=(512,1,1) block=(256,1,1) lds=81920\n"
    out += '.amdgcn_target "amdgcn-amd-amdhsa--gfx950"\n' + kernel_header(name) + gen() + kernel_desc(name, 256)
    dst = sys.argv[1] if len(sys.argv) > 1 else "cdna_kernels/" + NAME + ".s"
    open(dst, "w").write(out)
```

```python
import sys, math, os
import numpy as np
from dsl import *

NAME = "gated_mix__mha_block__ssm_conv_s4__prompt"
KTS = 28672; VTS = 32256; XTS = 7296
KF = 0x000000
VF = 0x200000
XT = 0x400000
GO = 0x5D0000
WOF = 0x5E0000
OF = 0x660000
BT = 0x860000
FL = 0xA40000
F_KV = FL
F_O = FL + 256 * 128
F_XT = FL + 384 * 128
F_G = FL + 416 * 128
F_B = FL + 480 * 128
F_WO = FL + 496 * 128
WS_SIZE = 0xA50000
X_BYTES = 2048 * 896
W_BYTES = 448 * 2688
LOG2E = 1.4426950408889634
QSCALE = LOG2E * 28 ** -0.5
MF32 = "v_mfma_f32_32x32x16_bf16"
MF16 = "v_mfma_f32_16x16x32_bf16"
SC = " sc1"
NON = 60
POLLMAX = 40000
EXP = os.environ.get("EXP", "")
DLY = int(os.environ.get("DLY", "32"))
DEPTH = int(os.environ.get("DEPTH", "3"))
PA = int(os.environ.get("PA", "2")); PB = int(os.environ.get("PB", "1")); PC = int(os.environ.get("PC", "2"))
P_X, P_W, P_WO, P_PAR, P_LDT, P_DSK, P_GW, P_OUT, P_DBG, P_WS = 64, 66, 68, 72, 84, 86, 88, 90, 92, 94
VZ = 255

uid = [0]
def fin(a, idx):
    if not os.environ.get("STAMP"): return
    a("s_waitcnt vmcnt(0)")
    a.stamp(idx)
    dw = os.environ.get("DBGWG")
    if dw:
        uid[0] += 1; u = uid[0]
        a("s_lshl_b32 s96, s2, 2")
        a("s_add_u32 s96, s96, s24")
        a(f"s_cmp_lg_u32 s96, {int(dw)*4}")
        a(f"s_cbranch_scc1 DG{u}")
        a("s_mov_b64 exec, -1")
        a("v_readlane_b32 s97, v254, 1")
        a("v_mbcnt_lo_u32_b32 v0, -1, 0")
        a("v_lshlrev_b32 v1, 1, v0")
        a("v_subrev_u32 v254, s97, v254")
        a("v_and_b32 v1, -4, v1")
        a("s_mov_b32 exec_lo, 0xaaaaaaa8")
        a("s_mov_b32 exec_hi, 0")
        a(f"global_store_dword v1, v254, {sr(P_DBG,2)}")
        a.label(f"DG{u}")
        return
    a.stamp_flush(P_WS)

def cmul(a, d, x, y, phase):
    if phase == 0:
        a(f"v_pk_mul_f32 {vr(d,2)}, {vr(x,2)}, {vr(y,2)} op_sel_hi:[0,1]")
    else:
        a(f"v_pk_fma_f32 {vr(d,2)}, {vr(x,2)}, {vr(y,2)}, {vr(d,2)} op_sel:[1,1,0] op_sel_hi:[1,0,1] neg_lo:[1,0,0]")

def nonce_issue(a, v):
    uid[0] += 1; u = uid[0]
    a("s_cmp_lg_u32 s24, 0")
    a(f"s_cbranch_scc1 NI{u}")
    a(f"global_load_dword v{v}, v{VZ}, {sr(P_DBG,2)}{os.environ.get('NSC', ' sc1')}")
    a.label(f"NI{u}")

def nonce_take(a, v):
    uid[0] += 1; u = uid[0]
    a("s_cmp_lg_u32 s24, 0")
    a(f"s_cbranch_scc1 ND{u}")
    a(f"s_mov_b32 s62, {POLLMAX}")
    a.label(f"NT{u}")
    a(f"v_readfirstlane_b32 s{NON}, v{v}")
    a("s_nop 1")
    a(f"s_cmp_ge_u32 s{NON}, 8")
    a(f"s_cbranch_scc1 ND{u}")
    a("s_sub_u32 s62, s62, 1")
    a(f"s_cbranch_scc1 ND{u}")
    a("s_sleep 8")
    a(f"global_load_dword v{v}, v{VZ}, {sr(P_DBG,2)} sc1")
    a("s_waitcnt vmcnt(0)")
    a(f"s_branch NT{u}")
    a.label(f"ND{u}")

def cnt_load(a, vd, soff):
    a(f"v_mov_b32 v{vd}, 0")
    a("s_mov_b64 exec, 1")
    t = a.vm(f"buffer_atomic_add v{vd}, v{VZ}, s[20:23], {soff} offen sc0 sc1")
    a("s_mov_b64 exec, -1")
    return t

def cnt_wait(a, vd, soff, target, sleep=1):
    uid[0] += 1; u = uid[0]
    a(f"s_mov_b32 s62, {POLLMAX}")
    a.label(f"FC{u}")
    a(f"v_readfirstlane_b32 s4, v{vd}")
    a("s_nop 1")
    a(f"s_cmp_eq_u32 s4, {target}")
    a(f"s_cbranch_scc1 FD{u}")
    a("s_sub_u32 s62, s62, 1")
    a(f"s_cbranch_scc1 FD{u}")
    a(f"s_sleep {sleep}")
    n0 = a.nvm
    cnt_load(a, vd, soff)
    a.nvm = n0
    a("s_waitcnt vmcnt(0)")
    a(f"s_branch FC{u}")
    a.label(f"FD{u}")

def cnt_add(a, vt, soff, va=None, mask="1"):
    a(f"v_mov_b32 v{vt}, 1")
    a(f"s_mov_b64 exec, {mask}")
    a.vm(f"buffer_atomic_add v{vt}, v{VZ if va is None else va}, s[20:23], {soff} offen sc1")
    a("s_mov_b64 exec, -1")

def late_load(a, vd, va):
    a("s_mov_b64 exec, 7")
    a(f"buffer_load_dword v{vd}, v{va}, s[20:23], 0 offen sc1")
    a("s_mov_b64 exec, -1")

def late_check(a, vd, va, vtgt):
    uid[0] += 1; u = uid[0]
    a(f"s_mov_b32 s62, {POLLMAX}")
    a.label(f"FC{u}")
    a(f"v_cmp_ne_u32 vcc, v{vd}, v{vtgt}")
    a("s_nop 1")
    a("s_and_b32 s4, vcc_lo, 7")
    a(f"s_cbranch_scc0 FD{u}")
    a("s_sub_u32 s62, s62, 1")
    a(f"s_cbranch_scc1 FD{u}")
    a("s_sleep 16")
    late_load(a, vd, va)
    a("s_waitcnt vmcnt(0)")
    a(f"s_branch FC{u}")
    a.label(f"FD{u}")

RAW = 244
XRW = 232

def gen_entry(a):
    a("s_cmp_ge_u32 s2, 512")
    a("s_cbranch_scc1 L_END")
    a.stamp(0)
    a("s_load_dwordx16 s[64:79], s[0:1], 0")
    a("s_load_dwordx16 s[80:95], s[0:1], 64")
    if "nopf" not in EXP:
        a("s_cmp_lt_u32 s2, 504")
        a("s_cbranch_scc1 E_NOPF")
        a("s_getpc_b64 s[4:5]")
        a.label("E_PC")
        a("v_lshlrev_b32 v4, 7, v0")
        a("v_min_u32 v4, L_END-E_PC, v4")
        a("v_mov_b32 v5, s5")
        a("v_add_co_u32 v4, vcc, s4, v4")
        a("s_nop 1")
        a("v_addc_co_u32 v5, vcc, 0, v5, vcc")
        a("global_load_dword v6, v[4:5], off")
        a.label("E_NOPF")
    a("v_lshrrev_b32 v13, 6, v0")
    a("v_and_b32 v1, 63, v0")
    a("v_lshlrev_b32 v2, 4, v1")
    a(f"v_mov_b32 v{VZ}, 0")
    a("v_readfirstlane_b32 s24, v13")
    a("s_and_b32 s31, s2, 7")
    a("s_bfe_u32 s32, s2, 0x50003")
    a("s_cmp_ge_u32 s2, 256")
    a("s_cbranch_scc1 L_A")
    a("s_and_b32 s27, s24, 1")
    a("s_cmp_ge_u32 s32, 28")
    a("s_cbranch_scc1 L_C")
    a("s_setprio 3")
    a("s_lshl_b32 s39, s32, 1")
    a("s_lshr_b32 s34, s24, 1")
    a("s_add_u32 s26, s39, s34")
    a("s_lshl_b32 s26, s26, 3")
    a("s_add_u32 s26, s26, s31")
    a("s_lshl_b32 s33, s26, 9")
    a("s_lshl_b32 s34, s27, 8")
    a("s_add_u32 s33, s33, s34")
    a("v_lshlrev_b32 v3, 2, v1")
    a("v_add_u32 v13, s33, v3")
    a("s_lshl_b32 s34, s26, 1")
    a("s_and_b32 s34, s34, -4")
    a("v_lshlrev_b32 v4, 7, v0")
    a("s_lshl_b32 s33, s2, 15")
    a(f"s_add_u32 s33, s33, {FL}")
    a("s_waitcnt lgkmcnt(0)")
    a.srd(20, P_WS, WS_SIZE)
    a("s_cmp_ge_u32 s2, 2")
    a("s_cbranch_scc1 E_NOINIT")
    a(f"buffer_store_dword v{VZ}, v4, s[20:23], s33 offen sc1")
    a.label("E_NOINIT")
    for i in range(6):
        a(f"global_load_dword v{RAW+i}, v13, {sr(P_PAR+2*i,2)}")
    a(f"s_load_dword s28, {sr(P_LDT,2)}, s34")
    a(f"s_load_dword s38, {sr(P_DSK,2)}, s34")
    a("s_branch L_B")

def gen_A(a):
    a.label("L_A")
    if "noA" in EXP: a("s_endpgm")
    a(f"s_setprio {PA}")
    if "dA" in EXP: a(f"s_sleep {DLY}")
    a("s_lshr_b32 s33, s31, 1")
    a("s_lshl_b32 s33, s33, 2")
    a("s_and_b32 s34, s32, 3")
    a("s_add_u32 s25, s33, s34")
    a("s_and_b32 s27, s31, 1")
    a("s_lshr_b32 s54, s32, 2")
    a("s_lshl_b32 s33, s27, 3")
    a("s_add_u32 s26, s33, s54")
    XR, ACC, QACC, WF, NV, PK, T = 16, 128, 128, 176, 248, 224, 240
    XL = 32768
    a("s_lshl_b32 s33, s25, 2")
    a("s_add_u32 s35, s33, s24")
    a("s_mul_i32 s33, s35, 28672")
    a("v_lshrrev_b32 v13, 3, v1")
    a("v_mul_u32_u24 v12, 896, v13")
    a("v_and_b32 v14, 7, v1")
    a("v_lshrrev_b32 v15, 4, v1")
    a("v_xor_b32 v15, v15, v14")
    a("v_lshl_add_u32 v3, v15, 4, v12")
    a("v_add_u32 v3, s33, v3")
    a("v_xor_b32 v246, 64, v3")
    a(f"v_add_u32 v244, {6144}, v246")
    a(f"v_add_u32 v245, {6144*2}, v3")
    a(f"v_add_u32 v246, {6144*3}, v246")
    a("s_mul_i32 s40, s24, 12288")
    a(f"s_add_u32 s40, s40, {XL}")
    a("s_lshl_b32 s33, s34, 1")
    a("s_add_u32 s28, s33, s54")
    a("s_sub_u32 s33, s28, 7")
    a("s_cmp_ge_u32 s28, 7")
    a("s_cselect_b32 s28, s33, s28")
    if "norot" in EXP: a("s_mov_b32 s28, 0")
    a("s_lshl_b32 s29, s28, 7")
    a("s_mul_i32 s37, s28, 172032")
    a("s_mov_b32 s39, s37")
    a("v_bfe_u32 v15, v1, 4, 1")
    a("v_lshlrev_b32 v15, 2, v15")
    a("v_xor_b32 v15, v15, v14")
    a("v_mul_u32_u24 v4, 2688, v13")
    a("v_lshl_add_u32 v4, v15, 4, v4")
    a("s_min_u32 s55, s54, 6")
    a("s_mul_i32 s33, s24, 43008")
    a("s_mul_i32 s34, s27, 896")
    a("s_add_u32 s33, s33, s34")
    a("s_lshl_b32 s34, s55, 7")
    a("s_add_u32 s33, s33, s34")
    a("s_add_u32 s33, s33, 896")
    a("v_add_u32 v4, s33, v4")
    a(f"v_add_u32 v5, {21504-1024}, v4")
    a("s_lshl_b32 s36, s24, 11")
    a("s_waitcnt lgkmcnt(0)")
    a.stamp(1)
    if "dK1" in EXP: a(f"s_sleep {DLY}")
    if "dK2" in EXP: a("s_sleep 64")
    if "dK4" in EXP: a("s_sleep 127")
    a.srd(12, P_X, X_BYTES)
    a.srd(16, P_W, W_BYTES)
    def adv(r):
        a(f"s_add_u32 s{r}, s{r}, 1")
        a(f"s_cmp_eq_u32 s{r}, 7")
        a(f"s_cselect_b32 s{r}, 0, s{r}")
    QD = int(os.environ.get("QD", "14"))
    L = []
    for s_ in range(7):
        L += [("x", s_, 0), ("x", s_, 1), ("x", s_, 2), ("x", s_, 3), ("w", s_, 0), ("w", s_, 1)]
    L += [("n", 0, 0)] + [("q", i, 0) for i in range(7)]
    tag = {}; tagxf = {}
    L0 = list(L)
    lastbar = [-1]; xfree = [-1]; light = [False]; m0 = [None]
    def setm0(base, off):
        if m0[0] != (base, off):
            a(f"s_add_u32 m0, {base}, {off}")
            m0[0] = (base, off)
            return True
        return False
    def issue():
        seen = set()
        for e in L:
            k, s_, n = e
            if k in seen: continue
            seen.add(k)
            if k in "nq" and ("x" in seen or "w" in seen): return
            need = {"x": s_ - 3, "q": 4 + (s_ >> 2)}.get(k, -1)
            if need > xfree[0]: continue
            if k == "w" and s_ >= 4 and lastbar[0] < s_ - 2: continue
            break
        else:
            return
        L.remove(e)
        if k == "x":
            ch = setm0("s40", (s_ % 3) * 4096)
            if n == 0 and s_:
                a("s_add_u32 s29, s29, 128")
                a("s_cmp_eq_u32 s29, 896")
                a("s_cselect_b32 s29, 0, s29")
            elif ch: a("s_nop 0")
            tag[e] = a.vm(f"buffer_load_dwordx4 v{3 if n == 0 else 243+n}, s[12:15], s29 offen offset:{1024*n} lds")
        elif k == "w":
            ch = setm0("s36", (s_ % 4) * 8192)
            if n == 0 and s_:
                a("s_add_u32 s37, s37, 172032")
                a(f"s_cmp_eq_u32 s37, {7*172032}")
                a("s_cselect_b32 s37, 0, s37")
            elif ch: a("s_nop 0")
            tag[e] = a.vm(f"buffer_load_dwordx4 v{4+n}, s[16:19], s37 offen offset:{1024*n} lds")
        elif k == "n":
            nonce_issue(a, NV)
        else:
            setm0("s40", 4096 + 1024 * s_)
            if s_:
                a("s_add_u32 s39, s39, 172032")
                a(f"s_cmp_eq_u32 s39, {7*172032}")
                a("s_cselect_b32 s39, 0, s39")
            else: a("s_nop 0")
            a.vm(f"buffer_load_dwordx4 v14, s[16:19], s39 offen lds")
    nvm_light = a.nvm
    a.srd(20, P_WS, WS_SIZE)
    a("s_cmp_eq_u32 s54, 7")
    a("s_cbranch_scc1 A_GO")
    for _ in range(QD): issue()
    a.label("A_GO")
    if "stopA" in EXP: a.stamp(7)
    if "Aload" in EXP:
        a("s_waitcnt vmcnt(0)"); a("s_endpgm")
    a("v_and_b32 v13, 31, v1")
    a("v_bfe_u32 v14, v1, 1, 3")
    a("v_lshrrev_b32 v15, 5, v1")
    a("v_xor_b32 v14, v14, v15")
    a("v_lshlrev_b32 v13, 7, v13")
    a("v_lshl_add_u32 v8, v14, 4, v13")
    a("v_add_u32 v8, s40, v8")
    for ks in range(1, 4):
        a(f"v_xor_b32 v{8+ks}, {32*ks}, v8")
    a(f"v_bfe_u32 v{T}, v1, 2, 2")
    a(f"v_lshl_add_u32 v{T+1}, v15, 3, v{T}")
    a(f"v_bfe_u32 v{T+2}, v1, 4, 1")
    a(f"v_and_b32 v{T+3}, 3, v1")
    a(f"v_lshl_add_u32 v{PK}, v{T+2}, 2, v{T+3}")
    a(f"v_and_b32 v{PK+1}, 1, v1")
    a(f"v_bfe_u32 v{PK+2}, v1, 1, 1")
    a(f"v_lshl_add_u32 v{PK+1}, v{PK+1}, 1, v{PK+2}")
    a(f"v_lshl_add_u32 v{PK+1}, v{T+2}, 2, v{PK+1}")
    a(f"v_bfe_u32 v{T+3}, v1, 3, 1")
    a(f"v_lshlrev_b32 v{T+3}, 6, v{T+3}")
    a(f"v_lshl_add_u32 v{T+3}, v{T+1}, 7, v{T+3}")
    a("s_cmp_eq_u32 s27, 1")
    a("s_cselect_b64 vcc, -1, 0")
    a(f"v_cndmask_b32 v12, v{PK+1}, v{PK}, vcc")
    a(f"v_lshl_add_u32 v12, v12, 3, v{T+3}")
    a("v_xor_b32 v13, 64, v12")
    a(f"v_add_u32 v{PK+2}, 2, v{PK+1}")
    a(f"v_sub_u32 v{PK+3}, 7, v{PK+1}")
    a(f"v_cmp_gt_u32 vcc, 6, v{PK+1}")
    a("s_bitcmp1_b32 s26, 0")
    a("s_cselect_b64 s[4:5], -1, 0")
    a(f"v_cndmask_b32 v{PK+2}, v{PK+3}, v{PK+2}, vcc")
    a(f"v_cndmask_b32 v{PK+2}, v{PK+1}, v{PK+2}, s[4:5]")
    a(f"v_lshlrev_b32 v15, 6, v{T+1}")
    a(f"v_lshl_add_u32 v15, v{PK+2}, 3, v15")
    a(f"v_add_u32 v15, {XL + 4096}, v15")
    a("v_lshrrev_b32 v14, 2, v1")
    a("v_mul_u32_u24 v14, 2688, v14")
    a(f"v_and_b32 v{T}, 3, v1")
    a(f"v_lshl_add_u32 v14, v{T}, 4, v14")
    a("s_mul_i32 s33, s26, 56")
    a("s_and_b32 s33, s33, -16")
    a(f"s_mul_i32 s34, s24, {16*2688}")
    a("s_add_u32 s33, s33, s34")
    a("v_add_u32 v14, s33, v14")
    a("s_mul_i32 s33, s54, 2341")
    a("s_lshr_b32 s33, s33, 10")
    a(f"v_add_u32 v{PK}, s33, v1")
    a(f"v_mul_u32_u24 v{PK+1}, 28, v{PK}")
    a(f"v_lshrrev_b32 v{PK+1}, 6, v{PK+1}")
    a(f"v_cmp_ge_u32 s[56:57], s54, v{PK+1}")
    a(f"v_lshlrev_b32 v243, 11, v{PK}")
    a("s_lshl_b32 s42, s25, 7")
    a(f"s_add_u32 s42, s42, {F_KV}")
    a("s_and_b64 s[56:57], s[56:57], 15")
    a("s_cmp_eq_u32 s54, 7")
    a("s_cbranch_scc1 A_LIGHT")
    a("s_cmp_eq_u32 s27, 1")
    a("s_cbranch_scc1 A_V")

    def pass1(vtype):
        tagtr = {}
        NB = 6; TD = 3
        NIS = int(os.environ.get("NIS", "2"))
        def trload(u, t):
            s, ks = u >> 2, u & 3
            for hr in range(2):
                off = (s % 4) * 8192 + (16 * ks + 4 * hr) * 128
                tagtr[u] = a.ds(f"ds_read_b64_tr_b16 {vr(WF+(u%NB)*8+4*t+2*hr,2)}, v{12+t} offset:{off}")
        def mfma(u, t):
            wf = vr(WF + (u % NB) * 8 + 4 * t, 4); xf = vr(XR + 4 * u, 4)
            c = "0" if u == 0 else vr(ACC + 16 * t, 16)
            a(f"{MF32} {vr(ACC+16*t,16)}, {xf}, {wf}, {c}" if vtype else f"{MF32} {vr(ACC+16*t,16)}, {wf}, {xf}, {c}")
        pend = None
        for u in range(-4, 28):
            if u >= 0:
                a.wait_ds(max(tagtr[u], tagxf[u >> 2]))
                mfma(u, 0)
            issue()
            if (u + TD) % 4 == 0 and (u + TD) // 4 < 7:
                sb = (u + TD) // 4
                a.wait_vm(tag[("w", sb, 1)])
                a("s_barrier")
                lastbar[0] = sb
                if sb in (0, 6): a.stamp(2 + sb // 6)
            if 0 <= u + TD < 28: trload(u + TD, 0)
            if u >= 0: mfma(u, 1)
            if pend is not None:
                a.wait_ds(tagxf[pend]); xfree[0] = pend; pend = None
            for _ in range(NIS - 1): issue()
            if 0 <= u + TD < 28: trload(u + TD, 1)
            if u % 4 == 0 and u // 4 + 1 < 7:
                s = u // 4 + 1
                a.wait_vm(tag[("x", s, 3)])
                for ks in range(4):
                    tagxf[s] = a.ds(f"ds_read_b128 {vr(XR+16*s+4*ks,4)}, v{8+ks} offset:{(s%3)*4096}")
                pend = s
        assert not L, L
    saved = (a.nvm, a.nds, list(L), m0[0])
    a("v_mov_b32 v247, v2")
    a(f"s_mul_i32 s38, s35, {KTS}")
    a("s_lshl_b32 s33, s55, 12")
    a("s_add_u32 s38, s38, s33")
    a("s_add_u32 s41, s38, 1024")
    a("s_add_u32 s43, s38, 2048")
    a("s_add_u32 s44, s38, 3072")
    pass1(False)
    a("s_branch A_ST")
    a.label("A_V")
    a.nvm, a.nds, L[:], m0[0] = saved; lastbar[0] = -1; xfree[0] = -1
    a("v_lshrrev_b32 v247, 5, v1")
    a(f"v_mul_u32_u24 v247, {8064-512}, v247")
    a("v_add_u32 v247, v247, v2")
    a(f"s_mul_i32 s38, s35, {VTS}")
    a("s_mul_i32 s33, s55, 1152")
    a("s_add_u32 s38, s38, s33")
    a(f"s_add_u32 s38, s38, {VF}")
    a("s_add_u32 s41, s38, 16128")
    a("s_add_u32 s43, s38, 512")
    a("s_add_u32 s44, s41, 512")
    a(f"v_lshrrev_b32 v{T}, 1, v1")
    a(f"v_mul_u32_u24 v{T}, 8064, v{T}")
    a(f"v_and_b32 v{T+1}, 1, v1")
    a(f"v_lshl_add_u32 v{T}, v{T+1}, 4, v{T}")
    a(f"v_subrev_u32 v{T+1}, 1, v{T+1}")
    for i in range(4):
        a(f"v_and_b32 v{PK+i}, 0x3f803f80, v{T+1}")
    a("s_mov_b64 exec, 0xff")
    a(f"buffer_store_dwordx4 {vr(PK,4)}, v{T}, s[20:23], s38 offen offset:1024{SC}")
    a("s_mov_b64 exec, -1")
    pass1(True)
    a.label("A_ST")
    a.nop(11)
    for t in range(2):
        for r in range(0, 16, 2):
            a(f"v_cvt_pk_bf16_f32 v{PK+8*t+r//2}, v{ACC+16*t+r}, v{ACC+16*t+r+1}")
        for f in range(2):
            a(f"buffer_store_dwordx4 {vr(PK+8*t+4*f,4)}, v247, s[20:23], s{(38,41,43,44)[2*t+f]} offen{SC}")
    a("s_waitcnt vmcnt(4)")
    a("s_branch A_P2")
    a.label("A_LIGHT")
    a.nvm, a.nds = nvm_light, saved[1]; L[:] = [e for e in L0 if e[0] != 'w']; m0[0] = None; xfree[0] = -1
    for _ in range(int(os.environ.get("LQ", "4"))): issue()
    for s_ in range(7):
        a.wait_vm(tag[("x", s_, 3)])
        for ks in range(4):
            a.ds(f"ds_read_b128 {vr(XR+16*s_+4*ks,4)}, v{8+ks} offset:{(s_%3)*4096}")
        a("s_waitcnt lgkmcnt(0)")
        xfree[0] = s_
        for _ in range(6): issue()
    assert not L
    a("s_waitcnt vmcnt(0)")
    a.label("A_P2")
    if "dP" in EXP: a(f"s_sleep {DLY}")
    a.stamp(4)
    nonce_take(a, NV)
    a("s_barrier")
    Q, O, S, P, KB, VB, NM, MX, T2 = 16, 48, 112, 144, 160, 192, 224, 228, 232
    VK0, VK1, VV0, VV1, C1, C2 = 10, 11, 12, 13, 252, 253
    class Rec:
        def __init__(self): self.ch = []
        def __call__(self, *ins): self.ch.append(list(ins))
    c = Rec()
    c("s_mul_i32 s33, s26, 28"); c("s_lshr_b32 s44, s33, 6"); c("s_add_u32 s34, s33, 27"); c("s_lshr_b32 s34, s34, 6")
    c("s_sub_u32 s34, s34, s44"); c("s_lshl_b32 s34, s34, 1"); c("s_add_u32 s58, s34, 2")
    c("v_lshrrev_b32 v4, 5, v1")
    c("v_lshlrev_b32 v249, 9, v1"); c(f"v_mov_b32 v{NV+2}, 0")
    c("s_lshl_b32 s34, s26, 11"); c("s_lshl_b32 s36, s24, 7"); c("s_add_u32 s34, s34, s36"); c(f"s_add_u32 s53, s34, {F_KV}")
    c(f"s_mov_b32 s46, {hex(f2u(QSCALE))}"); c("s_mov_b32 s47, s46")
    c("s_lshl_b32 s36, s24, 11"); c("v_add_u32 v6, s36, v2")
    for t in range(1, 4): c(f"v_xor_b32 v{6+t}, {2048*t}, v6")
    c("s_lshr_b32 s34, s26, 1"); c("s_mul_i32 s34, s34, 3584"); c("s_and_b32 s36, s26, 1"); c("s_lshl_b32 s37, s36, 11")
    c("s_add_u32 s34, s34, s37"); c(f"v_add_u32 v{VK0}, s34, v2"); c(f"v_add_u32 v{VK1}, 1024, v{VK0}")
    c(f"s_mul_i32 s37, s36, {2048-8}")
    c("s_mov_b32 exec_lo, 0", f"v_subrev_u32 v{VK1}, s37, v{VK1}", "s_mov_b32 exec_lo, -1")
    c("v_and_b32 v5, 31, v1"); c("v_add_u32 v3, s33, v5"); c("v_lshrrev_b32 v5, 6, v3"); c("v_lshlrev_b32 v5, 7, v5")
    c(f"v_lshl_add_u32 v{VV0}, v3, 4, v5")
    c("s_mul_i32 s34, s44, 1152"); c("s_add_u32 s34, s34, 1024"); c("s_add_u32 s37, s34, 16")
    c("s_mov_b32 exec_lo, 0xf0000000", "s_mov_b32 exec_hi, 0xf0000000", f"v_mov_b32 v{VV0}, s37", "s_mov_b64 exec, -1")
    c(f"v_writelane_b32 v{VV0}, s34, 28"); c(f"v_writelane_b32 v{VV0}, s34, 60")
    c("s_movk_i32 s34, 8064"); c(f"v_mad_u32_u24 v{VV0}, v4, s34, v{VV0}"); c(f"v_add_u32 v{VV1}, 16128, v{VV0}")
    c(f"s_mul_i32 s34, s24, {4*KTS}"); c(f"s_mul_i32 s37, s24, {4*VTS}"); c(f"s_add_u32 s37, s37, {VF}")
    for d, sz, off in ((12, 52 * KTS, "s34"), (16, 52 * VTS, "s37")):
        c(f"s_add_u32 s{d}, s{P_WS}, {off}", f"s_addc_u32 s{d+1}, s{P_WS+1}, 0")
        c(f"s_mov_b32 s{d+2}, {sz}"); c(f"s_mov_b32 s{d+3}, 0x00020000")
    c("s_mov_b32 s63, 15")
    c(f"v_mov_b32 v{C1}, 0x3f803f80"); c(f"v_mov_b32 v{C2}, 0x3f80")
    for r in range(8): c(f"v_mov_b32 v{VB+24+r}, 0")
    for t in range(4): c(f"v_mov_b32 v{NM+t}, 0")
    c("s_mov_b32 s41, 0")
    c("s_cmp_eq_u32 s54, 7", "s_cselect_b32 s59, 1, s24")
    PV_ = NV + 2
    def kv_poll():
        a("s_mov_b64 exec, 15")
        a(f"buffer_atomic_umax v{PV_}, v249, s[20:23], s53 offen sc0 sc1")
        a("s_mov_b64 exec, -1")
    def kv_pick(tagname):
        a(f"s_mov_b32 s62, {POLLMAX}")
        a.label(f"KP{tagname}")
        a(f"v_cmp_eq_u32 vcc, s58, v{PV_}")
        a("s_nop 1")
        a("s_and_b32 s5, vcc_lo, s63")
        a(f"s_cbranch_scc1 KD{tagname}")
        a("s_mov_b32 s5, s63")
        a("s_sub_u32 s62, s62, 1")
        a(f"s_cbranch_scc1 KD{tagname}")
        a("s_sleep 1")
        kv_poll()
        a("s_waitcnt vmcnt(0)")
        a(f"s_branch KP{tagname}")
        a.label(f"KD{tagname}")
        a("s_ff1_i32_b32 s59, s5")
        a("s_bitset0_b32 s63, s59")
        a("s_bitset0_b32 s5, s59")
    def first_loads():
        a(f"s_mul_i32 s44, s59, {16*KTS}")
        a(f"s_mul_i32 s45, s59, {16*VTS}")
        for kt in range(4):
            for f in range(2):
                r = a.vm(f"buffer_load_dwordx4 {vr(KB+8*kt+4*f,4)}, v{VK0+f}, s[12:15], s44 offen{SC}")
            if kt < 3: a(f"s_addk_i32 s44, {KTS}")
            if kt == 0: tag = r
            if kt < 3:
                for f in range(2):
                    a.vm(f"buffer_load_dwordx4 {vr(VB+8*kt+4*f,4)}, v{VV0+f}, s[16:19], s45 offen{SC}")
                a(f"s_addk_i32 s45, {VTS}")
        return tag
    def patch(kb):
        a(f"v_mov_b32_dpp v{kb+6}, v{C1} quad_perm:[0,1,2,3] row_mask:0xc bank_mask:0xf")
        a(f"v_mov_b32_dpp v{kb+7}, v{C2} quad_perm:[0,1,2,3] row_mask:0xc bank_mask:0xf")
    tq = {}
    def trq(u):
        for hr in range(2):
            tq[u] = a.ds(f"ds_read_b64_tr_b16 {vr(WF+(u%8)*4+2*hr,2)}, v15 offset:{(u&3)*12288+(u>>2)*1024+256*hr}")
    for u in range(6): trq(u)
    for u in range(28):
        if u + 6 < 28: trq(u + 6)
        a.wait_ds(tq[u])
        cc = "0" if u == 0 else vr(QACC, 16)
        a(f"{MF32} {vr(QACC,16)}, {vr(WF+(u%8)*4,4)}, {vr(XR+4*u,4)}, {cc}")
        n = 0
        while c.ch and n < (3 if u < 22 else 5):
            for ins in c.ch.pop(0): a(ins); n += 1
    assert not c.ch, len(c.ch)
    def zero_acc():
        for t in range(4):
            a(f"{MF32} {vr(O+16*t,16)}, {vr(VB+24,4)}, {vr(VB+24,4)}, 0")
    zero_acc()
    a("s_cmp_lg_u32 s59, 0")
    a("s_waitcnt vmcnt(0)")
    a("s_barrier")
    a("s_cbranch_scc1 A_NOPUB")
    cnt_add(a, NV, "s42", 243, "s[56:57]")
    a.label("A_NOPUB")
    a.stamp(5)
    if "stopA" in EXP:
        fin(a, 6); a("s_endpgm")
    kv_poll()
    a.nop(1)
    for r in range(0, 16, 2):
        a(f"v_pk_mul_f32 {vr(QACC+r,2)}, {vr(QACC+r,2)}, s[46:47]")
    for r in range(0, 16, 2):
        a(f"v_cvt_pk_bf16_f32 v{Q+r//2}, v{QACC+r}, v{QACC+r+1}")
    a("s_mov_b32 exec_lo, 0")
    a(f"v_mov_b32 v{Q+6}, 0")
    a(f"v_mov_b32 v{Q+7}, 0")
    a("s_mov_b32 exec_lo, -1")
    for f in range(2):
        a(f"ds_write_b128 v6, {vr(Q+4*f,4)} offset:{1024*f}")
    a("s_waitcnt lgkmcnt(0)")
    a("s_barrier")
    for t in range(1, 4):
        for f in range(2):
            a(f"ds_read_b128 {vr(Q+8*t+4*f,4)}, v{6+t} offset:{1024*f}")
    a("s_waitcnt vmcnt(0)")
    kv_pick("A")
    a.stamp(6)
    tagk0 = first_loads()
    kv_poll()
    a.nvm += 1
    a("s_mov_b32 s42, 0x07060302")
    a("s_min_u32 s33, s32, 27")
    a("s_and_b32 s34, s33, 3")
    a("s_lshl_b32 s47, s31, 2")
    a("s_add_u32 s47, s47, s34")
    a("s_lshr_b32 s48, s33, 2")
    a("s_lshr_b32 s49, s24, 1")
    a("s_lshl_b32 s33, s47, 1")
    a("s_add_u32 s49, s49, s33")
    a("s_and_b32 s50, s24, 1")
    a("s_lshl_b32 s33, s48, 1")
    a("s_add_u32 s50, s50, s33")
    a("v_bfe_u32 v5, v1, 2, 2")
    a("v_lshlrev_b32 v9, 7, v5")
    a("v_bfe_u32 v5, v1, 4, 1")
    a("v_lshl_add_u32 v9, v5, 6, v9")
    a("v_and_b32 v5, 3, v1")
    a("v_lshl_add_u32 v9, v5, 4, v9")
    a("v_lshl_add_u32 v9, v4, 9, v9")
    for t in range(1, 4):
        a(f"s_xor_b32 s33, s24, {t}")
        a("s_mul_i32 s33, s33, 12288")
        a(f"s_add_u32 s33, s33, {(t-1)*4096}")
        a(f"v_add_u32 v{3+t}, s33, v2")
    a("s_mul_i32 s33, s24, 12288")
    a("v_add_u32 v7, s33, v2")
    a("v_or_b32 v8, 512, v7")
    a("s_lshl_b32 s33, s35, 4")
    a("s_add_u32 s33, s33, s26")
    a("s_lshl_b32 s43, s33, 11")
    a(f"s_add_u32 s43, s43, {OF}")
    a("s_lshr_b32 s51, s35, 1")
    a("s_lshl_b32 s51, s51, 9")
    a("s_lshr_b32 s33, s26, 2")
    a("s_lshl_b32 s33, s33, 7")
    a("s_add_u32 s51, s51, s33")
    a(f"s_add_u32 s51, s51, {F_O}")
    a("s_lshl_b32 s33, s50, 7")
    a(f"s_add_u32 s33, s33, {F_B}")
    a("v_mov_b32 v14, s33")
    a("v_mov_b32 v15, 64")
    a("s_lshl_b32 s33, s49, 7")
    a(f"s_add_u32 s33, s33, {F_G}")
    a("v_writelane_b32 v14, s33, 1")
    a("v_writelane_b32 v15, 2, 1")
    a("s_lshl_b32 s33, s24, 7")
    a(f"s_add_u32 s33, s33, {F_WO}")
    a("v_writelane_b32 v14, s33, 2")
    a("v_writelane_b32 v15, 16, 2")
    a("s_waitcnt lgkmcnt(0)")
    a.wait_vm(tagk0)
    a.stamp(7)
    if "dL" in EXP: a(f"s_sleep {DLY}")
    TT = [S + 16, T2, P, S]
    patch(KB)
    a("s_nop 0")
    def mx(t):
        a(f"v_max3_f32 v{MX+t}, v{TT[t]}, v{TT[t]+1}, v{TT[t]+2}")
        for i in range(1, 4):
            a(f"v_max3_f32 v{MX+t}, v{MX+t}, v{TT[t]+2*i+1}, v{TT[t]+2*i+2}")
    for t in range(4):
        a(f"{MF32} {vr(TT[t],16)}, {vr(KB,4)}, {vr(Q+8*t,4)}, 0")
        a(f"{MF32} {vr(TT[t],16)}, {vr(KB+4,4)}, {vr(Q+8*t+4,4)}, {vr(TT[t],16)}")
    a.nop(6)
    mx(0); mx(1); mx(2)
    mx(3)
    a.label("A_SETMAX")
    def setm(ts):
        for t in ts: a(f"v_sub_f32 v{NM+t}, v{NM+t}, v{MX+t}")
        for t in ts: a(f"v_and_b32 v{T2+t}, 0xffff0000, v{NM+t}")
        for t in ts: a(f"v_sub_f32 v{T2+t}, v{NM+t}, v{T2+t}")
        for t in ts: a(f"v_and_b32 v{T2+4+t}, 0xffff0000, v{T2+t}")
        for t in ts: a(f"v_sub_f32 v{T2+4+t}, v{T2+t}, v{T2+4+t}")
        for t in ts:
            a(f"v_perm_b32 v{Q+8*t+6}, v{T2+t}, v{NM+t}, s42")
            a(f"v_lshrrev_b32 v{Q+8*t+7}, 16, v{T2+4+t}")
    a("s_mov_b32 exec_lo, 0")
    setm((0, 1))
    a("s_mov_b32 exec_lo, -1")
    a(f"{MF32} {vr(S,16)}, {vr(KB,4)}, {vr(Q,4)}, 0")
    a(f"{MF32} {vr(S,16)}, {vr(KB+4,4)}, {vr(Q+4,4)}, {vr(S,16)}")
    a("s_mov_b32 exec_lo, 0")
    setm((2, 3))
    a("s_mov_b32 exec_lo, -1")
    for r in range(0, 8, 2):
        a(f"v_pk_mov_b32 {vr(P+8+r,2)}, {vr(VB+24,2)}, {vr(VB+24,2)}")
    a("s_mov_b32 s46, 4")
    a(f"s_setprio {os.environ.get('PL', '1')}")
    a.label("A_LOOP")
    sh = {}
    for kt in range(4):
        b = 4 * kt
        for f in range(2):
            sh[(b, 2 + f)] = [f"buffer_load_dwordx4 {vr(VB+8*((kt-1)&3)+4*f,4)}, v{VV0+f}, s[16:19], s45 offen{SC}"]
            sh[(b + 2, 1 + f)] = [f"buffer_load_dwordx4 {vr(KB+8*kt+4*f,4)}, v{VK0+f}, s[12:15], s44 offen{SC}"]
        sh[(b + 1, 1)] = ["s_waitcnt vmcnt(12)"]
        sh[(b + 2, 3)] = ["s_waitcnt vmcnt(12)"]
        if kt: sh[(b + 1, 0)] = [f"s_addk_i32 s45, {VTS}"]
        if kt < 3: sh[(b + 3, 1)] = [f"s_addk_i32 s44, {KTS}"]
    sh[(0, 0)] = ["s_cmp_lt_u32 s5, 128"]
    sh[(0, 1)] = ["s_cbranch_scc1 A_SLOW", "A_SLOWR:"]
    sh[(1, 0)] = ["s_ff1_i32_b32 s59, s5"]
    sh[(1, 2)] = [f"s_mul_i32 s44, s59, {16*KTS}"]
    sh[(1, 3)] = ["s_bitset0_b32 s5, s59"]
    sh[(2, 0)] = [f"s_mul_i32 s45, s59, {16*VTS}"]
    sh[(3, 2)] = ["s_bitset0_b32 s63, s59"]
    sh[(4, 0)] = ["s_cmp_eq_u32 s46, 1"]
    sh[(4, 1)] = ["s_cbranch_scc1 A_LLOAD", "A_LLOADR:"]
    sh[(15, 2)] = ["s_sub_u32 s46, s46, 1"]
    sh[(15, 3)] = ["s_cmp_lg_u32 s46, 0"]
    for n in range(16):
        kt, t = n >> 2, n & 3
        n1 = (n + 1) & 15; kt1, t1 = n1 >> 2, n1 & 3
        n0 = (n - 1) & 15; kt0, t0 = n0 >> 2, n0 & 3
        sc = S + 16 * (n & 1); sn = S + 16 * (n1 & 1)
        pc = P + 8 * (n & 1); pp = P + 8 * (n0 & 1)
        mf = [f"{MF32} {vr(sn,16)}, {vr(KB+8*kt1,4)}, {vr(Q+8*t1,4)}, 0",
              f"{MF32} {vr(sn,16)}, {vr(KB+8*kt1+4,4)}, {vr(Q+8*t1+4,4)}, {vr(sn,16)}",
              f"{MF32} {vr(O+16*t0,16)}, {vr(VB+8*kt0,4)}, {vr(pp,4)}, {vr(O+16*t0,16)}",
              f"{MF32} {vr(O+16*t0,16)}, {vr(VB+8*kt0+4,4)}, {vr(pp+4,4)}, {vr(O+16*t0,16)}"]
        for m in range(4):
            a(mf[m])
            for ins in sh.get((n, m), []):
                if ins.endswith(":"): a.label(ins[:-1])
                else: a(ins)
            if m == 0 and t == 3:
                patch(KB + 8 * kt1)
            for e in range(4):
                a(f"v_exp_f32 v{sc+4*m+e}, v{sc+4*m+e}")
            for c_ in range(2):
                a(f"v_cvt_pk_bf16_f32 v{pc+2*m+c_}, v{sc+4*m+2*c_}, v{sc+4*m+2*c_+1}")
    a("s_cbranch_scc1 A_LOOP")
    a.stamp(8)
    if "dT" in EXP: a(f"s_sleep {DLY}")
    a("s_nop 0")
    a(f"{MF32} {vr(O+48,16)}, {vr(VB+24,4)}, {vr(P+8,4)}, {vr(O+48,16)}")
    a(f"{MF32} {vr(O+48,16)}, {vr(VB+28,4)}, {vr(P+12,4)}, {vr(O+48,16)}")
    a("v_mov_b32 v3, 0x5f800000")
    a("s_mov_b32 exec_lo, 0")
    for t in range(3):
        a(f"v_cmp_nlt_f32 {sr(4+2*t,2)}, v{O+16*t+12}, v3")
    for t in range(1, 3):
        a(f"v_mov_b32 v{O+16*t+13}, v{NM+t}")
    a("s_mov_b32 exec_lo, -1")
    for t in range(1, 3):
        for q in range(4):
            a(f"ds_write_b128 v{3+t}, {vr(O+16*t+4*q,4)} offset:{1024*q}")
    a("s_mov_b32 exec_lo, 0")
    a(f"v_cmp_nlt_f32 vcc, v{O+48+12}, v3")
    a(f"v_mov_b32 v{O+48+13}, v{NM+3}")
    a("s_mov_b32 exec_lo, -1")
    a("s_or_b32 s5, s5, s7")
    a("s_or_b32 s5, s5, s9")
    a("s_or_b32 s5, s5, vcc_hi")
    a("s_andn2_b32 s5, s5, s41")
    a("s_cbranch_scc1 A_FALLBACK")
    for q in range(4):
        a(f"ds_write_b128 v6, {vr(O+48+4*q,4)} offset:{1024*q}")
    a(f"v_mov_b32 v{T2}, v{O+12}")
    a(f"v_mov_b32 v{T2+1}, v{O+12}")
    a(f"v_mov_b32 v{T2+8}, v{NM}")
    a("v_add_u32 v10, 4096, v2")
    a("s_lshl_b32 s33, s24, 13")
    a(f"s_add_u32 s33, s33, {WOF}")
    a("s_lshl_b32 s36, s50, 15")
    a("s_add_u32 s36, s36, s33")
    a("s_xor_b32 s37, s50, 1")
    a("s_lshl_b32 s37, s37, 15")
    a("s_add_u32 s37, s37, s33")
    a("v_lshrrev_b32 v11, 5, v1")
    a("v_lshlrev_b32 v12, 6, v11")
    a("s_lshl_b32 s38, s49, 7")
    a(f"s_add_u32 s38, s38, {GO}")
    a("v_and_b32 v13, 31, v1")
    a("v_lshlrev_b32 v3, 12, v13")
    a("v_lshl_add_u32 v3, v11, 4, v3")
    a("s_lshl_b32 s39, s50, 17")
    a("s_lshr_b32 s34, s49, 4")
    a("s_lshl_b32 s34, s34, 10")
    a("s_add_u32 s39, s39, s34")
    a("s_and_b32 s34, s49, 15")
    a("s_lshl_b32 s34, s34, 5")
    a("s_add_u32 s39, s39, s34")
    a(f"s_add_u32 s39, s39, {BT}")
    a("s_waitcnt lgkmcnt(0)")
    a("s_barrier")
    LM = T2 + 2
    for s in range(3):
        a(f"ds_read_b64 {vr(LM+2*s,2)}, v8 offset:{4096*s+3072}")
    RB = O + 16
    for s in range(3):
        for q in range(4):
            a(f"ds_read_b128 {vr(RB+16*s+4*q,4)}, v7 offset:{4096*s+1024*q}")
    a(f"v_permlane32_swap_b32 v{T2}, v{T2+1}")
    a(f"v_permlane32_swap_b32 v{T2+8}, v{NM}")
    a("s_waitcnt lgkmcnt(12)")
    a(f"v_min3_f32 v{MX}, v{NM}, v{LM+1}, v{LM+3}")
    a(f"v_min_f32 v{MX}, v{MX}, v{LM+5}")
    a(f"v_sub_f32 v{S}, v{MX}, v{NM}")
    for s in range(3):
        a(f"v_sub_f32 v{S+2+2*s}, v{MX}, v{LM+2*s+1}")
    for s in range(4):
        a(f"v_exp_f32 v{S+2*s}, v{S+2*s}")
    a(f"v_mul_f32 v{MX+1}, v{S}, v{T2+1}")
    for s in range(3):
        a(f"v_fmac_f32 v{MX+1}, v{S+2+2*s}, v{LM+2*s}")
    a(f"v_rcp_f32 v{MX+1}, v{MX+1}")
    a("s_nop 0")
    for s in range(4):
        a(f"v_mul_f32 v{S+2*s}, v{S+2*s}, v{MX+1}")
    for r in range(0, 16, 2):
        a(f"v_pk_mul_f32 {vr(O+r,2)}, {vr(O+r,2)}, {vr(S,2)} op_sel_hi:[1,0]")
    for s in range(3):
        a(f"s_waitcnt lgkmcnt({8-4*s})")
        for r in range(0, 16, 2):
            a(f"v_pk_fma_f32 {vr(O+r,2)}, {vr(RB+16*s+r,2)}, {vr(S+2+2*s,2)}, {vr(O+r,2)} op_sel_hi:[1,0,1]")
    for r in range(0, 16, 2):
        a(f"v_cvt_pk_bf16_f32 v{P+r//2}, v{O+r}, v{O+r+1}")
    a("s_mov_b32 exec_lo, 0")
    a(f"v_mov_b32 v{P+6}, 0")
    a(f"v_mov_b32 v{P+7}, 0")
    a("s_mov_b32 exec_lo, -1")
    a.nvm = 0
    for f in range(2):
        tagos = a.vm(f"buffer_store_dwordx4 {vr(P+4*f,4)}, v9, s[20:23], s43 offen offset:{1024*f}{SC}")
    a.stamp(9)
    a("s_barrier")
    late_check(a, 248, 14, 15)
    WB, GG, BB = KB, Q, Q + 16
    NPRE = int(os.environ.get("NPRE", "4"))
    def wo_load(i):
        for x in range(2):
            a.vm(f"buffer_load_dwordx4 {vr(WB+8*i+4*x,4)}, v{2 if i<4 else 10}, s[20:23], s{36+x} offen offset:{1024*(i&3)}{SC}")
    for i in range(NPRE): wo_load(i)
    a("s_lshl_b32 s52, s47, 9")
    a("s_lshl_b32 s33, s24, 7")
    a("s_add_u32 s52, s52, s33")
    a(f"s_add_u32 s52, s52, {F_O}")
    a.wait_vm(tagos)
    cnt_add(a, 252, "s51")
    a("s_cmp_ge_u32 s32, 28")
    a("s_cbranch_scc1 L_END")
    for i in range(NPRE, 8): wo_load(i)
    for i in range(4):
        a.vm(f"buffer_load_dwordx4 {vr(GG+4*i,4)}, v12, s[20:23], s38 offen offset:{16*i}{SC}")
    for i in range(2):
        a.vm(f"buffer_load_dwordx4 {vr(BB+4*i,4)}, v3, s[20:23], s39 offen offset:{512*i}{SC}")
    cnt_load(a, 250, "s52")
    a("s_lshl_b32 s33, s24, 13")
    a(f"s_add_u32 s33, s33, {OF}")
    a("s_lshl_b32 s36, s49, 15")
    a("s_add_u32 s36, s36, s33")
    a("s_xor_b32 s37, s49, 1")
    a("s_lshl_b32 s37, s37, 15")
    a("s_add_u32 s37, s37, s33")
    a.srd(12, P_OUT, X_BYTES)
    a("v_mul_u32_u24 v12, 14336, v11")
    a("v_lshl_add_u32 v12, v13, 1, v12")
    a("s_mul_i32 s44, s49, 28672")
    a("s_lshl_b32 s33, s50, 6")
    a("s_add_u32 s44, s44, s33")
    for i in range(1, 4):
        a(f"s_add_u32 s{44+i}, s44, {3584*i}")
    a("s_waitcnt vmcnt(0)")
    BU = 232
    for i in range(8):
        a(f"v_lshlrev_b32 v{BU+2*i}, 16, v{BB+i}")
        a(f"v_and_b32 v{BU+2*i+1}, 0xffff0000, v{BB+i}")
    cnt_wait(a, 250, "s52", 8)
    a.stamp(10)
    AF = O
    tags = []
    for i in range(8):
        for x in range(2):
            t = a.vm(f"buffer_load_dwordx4 {vr(AF+8*i+4*x,4)}, v{2 if i<4 else 10}, s[20:23], s{36+x} offen offset:{1024*(i&3)}{SC}")
        tags.append(t)
    AC = [BB, S, S + 16, P]
    for i in range(8):
        a.wait_vm(tags[i])
        for t in (3, 2, 1, 0):
            sa, sb = t >> 1, t & 1
            c = "0" if i == 0 else vr(AC[t], 16)
            a(f"{MF32} {vr(AC[t],16)}, {vr(AF+8*i+4*sa,4)}, {vr(WB+8*i+4*sb,4)}, {c}")
    a.nop(9)
    a.stamp(11)
    if "dE" in EXP: a(f"s_sleep {DLY}")
    for t in (3, 2, 1):
        for q in range(4):
            a(f"ds_write_b128 v{3+t}, {vr(AC[t]+4*q,4)} offset:{1024*q}")
    for r in range(0, 16, 2):
        a(f"v_pk_add_f32 {vr(AC[0]+r,2)}, {vr(AC[0]+r,2)}, {vr(BU+r,2)} neg_lo:[0,1] neg_hi:[0,1]")
    a("s_waitcnt lgkmcnt(0)")
    a("s_barrier")
    for s in range(3):
        for q in range(4):
            a(f"ds_read_b128 {vr(AF+16*s+4*q,4)}, v7 offset:{4096*s+1024*q}")
    for s in range(3):
        a(f"s_waitcnt lgkmcnt({8-4*s})")
        for r in range(0, 16, 2):
            a(f"v_pk_add_f32 {vr(AC[0]+r,2)}, {vr(AC[0]+r,2)}, {vr(AF+16*s+r,2)}")
    for r in range(0, 16, 2):
        a(f"v_pk_fma_f32 {vr(AC[0]+r,2)}, {vr(AC[0]+r,2)}, {vr(GG+r,2)}, {vr(BU+r,2)}")
    for r in range(0, 16, 2):
        a(f"v_cvt_pk_bf16_f32 v{AF+r//2}, v{AC[0]+r}, v{AC[0]+r+1}")
    for r in range(16):
        op = "buffer_store_short_d16_hi" if r & 1 else "buffer_store_short"
        a(f"{op} v{AF+r//2}, v12, s[12:15], s{44+(r>>2)} offen offset:{896*(r&3)}")
    fin(a, 12)
    a("s_endpgm")
    a.label("A_SLOW")
    a(f"s_mov_b32 s62, {POLLMAX}")
    a.label("A_SLOW1")
    a(f"v_cmp_eq_u32 vcc, s58, v{PV_}")
    a("s_nop 1")
    a("s_and_b32 s5, vcc_lo, s63")
    a("s_cmp_eq_u32 s5, s63")
    a("s_cbranch_scc1 A_SLOW2")
    kv_poll()
    a("s_cmp_lg_u32 s5, 0")
    a("s_cbranch_scc1 A_SLOWR")
    a("s_sub_u32 s62, s62, 1")
    a("s_cbranch_scc1 A_SLOW2")
    a("s_waitcnt vmcnt(0)")
    a("s_branch A_SLOW1")
    a.label("A_SLOW2")
    a("s_or_b32 s5, s63, 128")
    a("s_branch A_SLOWR")
    a.label("A_LLOAD")
    late_load(a, 248, 14)
    a("s_branch A_LLOADR")
    a.label("A_FALLBACK")
    a("s_mov_b32 s41, -1")
    for t in range(4):
        a(f"v_mov_b32 v{MX+t}, 0xff800000")
    a("s_mov_b32 s44, 0")
    a("s_mov_b32 s45, 0")
    a("s_waitcnt vmcnt(0) lgkmcnt(0)")
    a.label("A_FBLOOP")
    for f in range(2):
        a(f"buffer_load_dwordx4 {vr(KB+4*f,4)}, v{VK0+f}, s[12:15], s44 offen{SC}")
    a("s_waitcnt vmcnt(0)")
    patch(KB)
    a("s_nop 1")
    for t in range(4):
        a(f"{MF32} {vr(O+16*t,16)}, {vr(KB,4)}, {vr(Q+8*t,4)}, 0")
        a(f"{MF32} {vr(O+16*t,16)}, {vr(KB+4,4)}, {vr(Q+8*t+4,4)}, {vr(O+16*t,16)}")
    a.nop(16)
    for i in range(8):
        for t in range(4):
            a(f"v_max3_f32 v{MX+t}, v{MX+t}, v{O+16*t+2*i}, v{O+16*t+2*i+1}")
    a(f"s_addk_i32 s44, {KTS}")
    a("s_add_u32 s45, s45, 1")
    a("s_and_b32 s4, s45, 3")
    a("s_cbranch_scc1 A_FBLOOP")
    a(f"s_add_u32 s44, s44, {12*KTS}")
    a("s_cmp_lt_u32 s45, 16")
    a("s_cbranch_scc1 A_FBLOOP")
    for t in range(4):
        a(f"v_mov_b32 v{T2+t}, v{MX+t}")
    a("s_nop 1")
    for t in range(4):
        a(f"v_permlane32_swap_b32 v{T2+t}, v{MX+t}")
    for t in range(4):
        a(f"v_max_f32 v{MX+t}, v{MX+t}, v{T2+t}")
    a("s_mov_b32 s59, 0")
    a("s_mov_b32 s63, 14")
    a("s_movk_i32 s5, 0x8e")
    a(f"v_mov_b32 v{PV_}, s58")
    for r in range(8):
        a(f"v_mov_b32 v{VB+24+r}, 0")
    first_loads()
    zero_acc()
    a("s_waitcnt vmcnt(0)")
    patch(KB)
    a("s_branch A_SETMAX")

def gen_B(a):
    a.label("L_B")
    a(f"s_setprio {PB}")
    a.stamp(1)
    if "noB" in EXP: a("s_endpgm")
    if "dB" in EXP:
        a("s_waitcnt vmcnt(0)"); a(f"s_sleep {DLY}")
    TS = 272; TW = 64 * TS
    UB = 4 * TW
    US = 4608
    YB, XB, KACC, FR, CT = 16, 80, 136, 152, 216
    Z1, Z256, TM = 224, 226, 226
    a(f"s_mul_i32 s29, s24, {TW}")
    a("s_mov_b32 m0, s29")
    a("v_mov_b32 v15, 0x3f80")
    a(f"ds_write_addtid_b32 v15 offset:{32*TS}")
    a("v_and_b32 v12, 31, v1")
    a(f"v_mul_u32_u24 v12, {TS}, v12")
    a("v_lshrrev_b32 v13, 5, v1")
    a("v_lshl_add_u32 v12, v13, 4, v12")
    a("v_add_u32 v240, s29, v12")
    for r in range(16):
        a(f"v_mov_b32 v{KACC+r}, 0")
    a(f"v_mul_u32_u24 v12, {US-512}, v13")
    a("v_add_u32 v12, v12, v2")
    a(f"v_add_u32 v12, {UB}, v12")
    a(f"ds_write_b128 v12, {vr(KACC,4)}")
    a("s_and_b32 s42, s2, 31")
    a("s_lshl_b32 s42, s42, 7")
    a(f"s_add_u32 s42, s42, {F_XT}")
    a("v_lshrrev_b32 v12, 1, v1")
    a("v_and_b32 v13, 1, v1")
    a(f"v_mul_u32_u24 v3, {XTS}, v12")
    a("v_lshl_add_u32 v3, v13, 4, v3")
    a(f"s_mul_i32 s43, s24, {64*XTS}")
    a("s_mul_i32 s33, s31, 896")
    a("s_add_u32 s43, s43, s33")
    a("s_lshl_b32 s33, s39, 4")
    a("s_add_u32 s43, s43, s33")
    a(f"s_add_u32 s43, s43, {XT}")
    a(f"s_add_u32 s44, s43, {32*XTS}")
    a(f"v_mul_u32_u24 v241, {US}, v13")
    a("v_lshl_add_u32 v241, v12, 4, v241")
    a("s_lshl_b32 s33, s24, 10")
    a(f"s_add_u32 s33, s33, {UB + 512}")
    a("v_add_u32 v241, s33, v241")
    a("s_waitcnt lgkmcnt(0)")
    a("s_and_b32 s33, s26, 1")
    a("s_lshl_b32 s33, s33, 4")
    a("s_lshr_b32 s28, s28, s33")
    a("s_lshl_b32 s28, s28, 16")
    a("s_lshr_b32 s38, s38, s33")
    a("s_lshl_b32 s38, s38, 16")
    hi = float(np.float32(LOG2E)); lo = float(np.float32(LOG2E - hi))
    a(f"v_mov_b32 v13, {hex(f2u(hi))}")
    a("v_mul_f32 v14, s28, v13")
    a("v_fma_f32 v13, s28, v13, -v14")
    a(f"v_mov_b32 v15, {hex(f2u(lo))}")
    a("v_fmac_f32 v13, s28, v15")
    a("v_exp_f32 v14, v14")
    a(f"v_mul_f32 v13, {hex(f2u(math.log(2)))}, v13")
    a("v_fmac_f32 v14, v14, v13")
    a("v_cvt_pk_bf16_f32 v14, v14, v14")
    a("v_and_b32 v14, 0xffff0000, v14")
    a(f"s_mov_b32 s48, {hex(f2u(LOG2E))}")
    a(f"s_mov_b32 s49, {hex(f2u(1/(2*math.pi)))}")
    a("s_mov_b32 s30, 2")
    a("s_cmp_ge_u32 s2, 2")
    a("s_cbranch_scc1 B_NORDY")
    a("v_mov_b32 v4, 1")
    a("s_setprio 3")
    a("s_waitcnt vmcnt(6)")
    a("s_mov_b64 exec, 1")
    a(f"global_atomic_add v{VZ}, v4, {sr(P_DBG,2)} sc1")
    a("s_mov_b64 exec, -1")
    a(f"s_setprio {PB}")
    a.label("B_NORDY")
    a("s_waitcnt vmcnt(4)")
    a.stamp(2)
    a.label("B_PASS")
    a("s_cmp_eq_u32 s30, 2")
    for i in range(2):
        a(f"v_and_b32 v{8+i}, 0xffff0000, v{RAW+i}")
    for i in range(2):
        a(f"v_lshlrev_b32 v{RAW+i}, 16, v{RAW+i}")
    r1 = [0, 0, 2, 4, 4, 4, 6, 8, 8]
    P_ = {}
    for r in range(9): P_[(0, r)] = r; P_[(1, r)] = 256 + r1[r]
    for i, e in enumerate((0, 4, 8)): P_[(0, 9 + i)] = 512 + e; P_[(1, 9 + i)] = 768 + e
    for i, e in enumerate((0, 8)):
        P_[(0, 12 + i)] = 1024 + e; P_[(1, 12 + i)] = 1280 + e; P_[(0, 14 + i)] = 1536 + e; P_[(1, 14 + i)] = 1792 + e
    plist = sorted(set(P_.values()))
    xreg = {p: XB + 2 * i for i, p in enumerate(plist)}
    rows_of = {p: [8 * (r >> 2) + 4 * h + (r & 3) for (h, r), pp in P_.items() if pp == p] for p in plist}
    yreg = {j: YB + 2 * j for j in range(1, 32)}
    a("v_pk_mul_f32 v[8:9], v[8:9], v[14:15] op_sel_hi:[1,0]")
    a("v_pk_mul_f32 v[8:9], v[8:9], s[48:49]")
    a(f"v_mul_f32 v{TM+2}, 0x41000000, v8")
    a(f"v_mul_f32 v{TM+3}, 0x41000000, v9")
    a(f"v_mul_f32 v{TM+4}, 0x43800000, v8")
    a(f"v_mul_f32 v{TM+5}, 0x43800000, v9")
    def kmf(lo, hi):
        for ks in range(lo, hi):
            a(f"{MF32} {vr(KACC,16)}, {vr(FR+8*ks,4)}, {vr(FR+8*ks+4,4)}, {vr(KACC,16)}")
    def make_w():
        a("s_waitcnt vmcnt(0)")
        for i in range(2, 6):
            a(f"v_and_b32 v{8+i}, 0xffff0000, v{RAW+i}")
        for i in range(2, 6):
            a(f"v_lshlrev_b32 v{RAW+i}, 16, v{RAW+i}")
        cmul(a, xreg[0], 12, 10, 0)
        cmul(a, xreg[0], 12, 10, 1)
        a(f"v_pk_mul_f32 {vr(xreg[0],2)}, {vr(xreg[0],2)}, v[14:15] op_sel_hi:[1,0]")
    anchors = [(TM + 2, yreg[1]), (8, Z1), (TM + 4, Z256)]
    for s_, d_ in anchors:
        a(f"v_fract_f32 v{s_+1}, v{s_+1}")
        a(f"v_exp_f32 v{s_}, v{s_}")
    for s_, d_ in anchors:
        a(f"v_cos_f32 v{d_}, v{s_+1}")
        a(f"v_sin_f32 v{d_+1}, v{s_+1}")
    a("s_nop 0")
    for s_, d_ in anchors:
        a(f"v_pk_mul_f32 {vr(d_,2)}, {vr(d_,2)}, {vr(s_,2)} op_sel_hi:[1,0]")
    ops = []
    ops += [(("Y", 2), ("Y", 1), ("Y", 1)), (("Y", 3), ("Y", 2), ("Y", 1)), (("Y", 4), ("Y", 2), ("Y", 2))]
    ops += [(("Y", 4 + k), ("Y", 4), ("Y", k)) for k in (4, 1, 2, 3)]
    ops += [(("Y", 8 + k), ("Y", 8), ("Y", k)) for k in (8, 1, 2, 3, 4, 5, 6, 7)]
    ops += [(("Y", 16 + k), ("Y", 16), ("Y", k)) for k in range(1, 16)]
    xo = [(("X", 8), ("X", 0), ("Y", 1))]
    xo += [(("X", e + 1), ("X", e), ("Z", 1)) for e in range(7)]
    for base, es in ((256, (0, 8, 4, 2, 6)), (512, (0, 8, 4)), (768, (0, 8, 4)), (1024, (0, 8)), (1280, (0, 8)), (1536, (0, 8)), (1792, (0, 8))):
        xo += [(("X", base + e), ("X", base - 256 + e), ("Z", 256)) for e in es]
    def reg(n):
        return {"Y": yreg, "X": xreg, "Z": {1: Z1, 256: Z256}}[n[0]][n[1]]
    done = {("Y", 1), ("Z", 1), ("Z", 256)}
    XAT = int(os.environ.get("XAT", "6"))
    allops = xo + ops
    memo = {}
    def height(n):
        if n in memo: return memo[n]
        h = 0
        for (d, x, y) in allops:
            if x == n or y == n: h = max(h, 1 + height(d))
        memo[n] = h
        return h
    pending = sorted(allops, key=lambda o: -height(o[0]))
    towrite = [("Y", 1)]
    ct = [0]
    WB = int(os.environ.get("WB", "16"))
    wq = []
    def flush_w():
        for ins in wq: a(ins)
        wq.clear()
    def emit_write(n):
        ring = list(range(CT, CT + 8)) + list(range(XRW, XRW + 8))
        assert WB <= 16
        t = ring[ct[0] % 16]; ct[0] += 1
        r = reg(n)
        if n[0] == "Y":
            a(f"v_cvt_pk_bf16_f32 v{t}, v{r}, v{r+1}")
            wq.append(f"ds_write_addtid_b32 v{t} offset:{(32+n[1])*TS}")
        else:
            a(f"v_cvt_pk_bf16_f32 v{t}, v{r}, -v{r+1}")
            for m in rows_of[n[1]]:
                wq.append(f"ds_write_addtid_b32 v{t} offset:{m*TS}")
        if len(wq) >= WB: flush_w()
    nb = 0
    UL = XRW
    PB0 = int(os.environ.get('PB0', '9')); PB1 = int(os.environ.get('PB1', '15'))
    while pending:
        batch = [o for o in pending if o[1] in done and o[2] in done][:4]
        for o in batch: pending.remove(o)
        for (d, x, y) in batch: cmul(a, reg(d), reg(x), reg(y), 0)
        w = towrite; towrite = []
        for n in w[:2]: emit_write(n)
        for (d, x, y) in batch: cmul(a, reg(d), reg(x), reg(y), 1)
        for n in w[2:]: emit_write(n)
        for (d, x, y) in batch:
            done.add(d); towrite.append(d)
        nb += 1
        if nb <= 4:
            a(f"s_cbranch_scc1 B_M{nb}")
            if nb == 1: a("s_waitcnt lgkmcnt(0)")
            kmf(2 * nb - 2, 2 * nb)
            a.label(f"B_M{nb}")
        if nb == XAT:
            make_w()
            done.add(("X", 0)); towrite.append(("X", 0))
        if nb == PB0:
            a("s_cbranch_scc1 B_P1")
            a("s_setprio 3")
            nonce_issue(a, 250)
            a(f"s_setprio {PB}")
            a.label("B_P1")
        if nb == PB1:
            a("s_lshl_b32 s33, s24, 1")
            a("s_add_u32 s33, s33, s30")
            a("s_cmp_lg_u32 s33, 1")
            a("s_cbranch_scc1 B_P3")
            a("s_waitcnt vmcnt(0)")
            nonce_take(a, 250)
            a("s_setprio 3")
            cnt_load(a, 250, "s42")
            a(f"s_setprio {PB}")
            a.label("B_P3")
    for n in towrite: emit_write(n)
    flush_w()
    for ks in range(8):
        a(f"ds_read_b128 {vr(FR+8*ks,4)}, v240 offset:{32*ks}")
        a(f"ds_read_b128 {vr(FR+8*ks+4,4)}, v240 offset:{32*TS+32*ks}")
    a("s_sub_u32 s30, s30, 1")
    a("s_cmp_lg_u32 s30, 0")
    a("s_cbranch_scc1 B_PASS")
    print("K-gen batches", nb, file=sys.stderr)
    for ks in range(8):
        a(f"s_waitcnt lgkmcnt({14-2*ks})")
        kmf(ks, ks + 1)
    a.stamp(3)
    a("v_add_u32 v242, s29, v2")
    a("s_xor_b32 s33, s24, 1")
    a(f"s_mul_i32 s33, s33, {TW}")
    a("v_add_u32 v243, s33, v2")
    a("s_and_b32 s33, s24, 2")
    a(f"s_mul_i32 s48, s33, {TW}")
    a("s_add_u32 s48, s48, 4096")
    a("s_mul_i32 s33, s27, 4160")
    a("s_add_u32 s49, s33, s48")
    a("v_sub_u32 v6, 63, v1")
    a("v_lshlrev_b32 v6, 4, v6")
    a("v_add_u32 v6, s49, v6")
    a("v_and_b32 v7, 1, v1")
    a("v_cmp_eq_u32 vcc, 1, v7")
    for q in range(4):
        a(f"ds_write_b128 v242, {vr(KACC+4*q,4)} offset:{1024*q}")
    a("v_lshrrev_b32 v4, 4, v1")
    a("v_and_b32 v5, 15, v1")
    a("v_add_u32 v7, 1, v5")
    a("v_lshrrev_b32 v7, 1, v7")
    a("v_lshlrev_b32 v8, 2, v4")
    a("v_sub_u32 v8, v8, v7")
    a("v_and_b32 v7, 1, v5")
    a("v_mul_u32_u24 v7, 1040, v7")
    a("v_sub_u32 v8, v8, v7")
    a(f"v_add_u32 v8, {1016 + 1040 - 48 - 128}, v8")
    a("v_lshlrev_b32 v8, 2, v8")
    a("s_lshl_b32 s33, s27, 8")
    a("s_sub_u32 s33, s48, s33")
    a("v_add_u32 v8, s33, v8")
    for i in range(1, 4):
        a(f"v_subrev_u32 v{8+i}, {1024*i}, v8")
    a(f"v_mov_b32 v251, {UB + 2 * US}")
    a("s_cmp_lg_u32 s24, 0")
    a("s_cbranch_scc1 B_NOPOLL")
    a("s_waitcnt vmcnt(0)")
    a("s_mov_b64 exec, 1")
    a("ds_write_b32 v251, v250")
    a("s_mov_b64 exec, -1")
    a.label("B_NOPOLL")
    a("s_waitcnt lgkmcnt(0)")
    a("s_barrier")
    a("ds_read_b32 v252, v251")
    for q in range(4):
        a(f"ds_read_b128 {vr(FR+4*q,4)}, v243 offset:{1024*q}")
    def u_loads():
        a("s_setprio 3")
        for i in range(2):
            a(f"buffer_load_dwordx4 {vr(UL+4*i,4)}, v3, s[20:23], s{43+i} offen{SC}")
        a(f"s_setprio {PC}")
    a("s_waitcnt lgkmcnt(4)")
    a("v_readfirstlane_b32 s45, v252")
    a("s_nop 1")
    a("s_cmp_lg_u32 s45, 32")
    a("s_cbranch_scc1 B_NOU")
    u_loads()
    a.label("B_NOU")
    a("s_lshr_b32 s33, s24, 1")
    a(f"s_mul_i32 s36, s33, {US}")
    a(f"s_add_u32 s36, s36, {UB + 512}")
    a("v_lshlrev_b32 v12, 5, v5")
    a("v_lshl_add_u32 v13, v4, 3, v12")
    a("v_lshl_add_u32 v12, v4, 4, v12")
    a("s_lshl_b32 s33, s27, 8")
    a("s_sub_u32 s33, s36, s33")
    a(f"s_sub_u32 s33, s33, {32 + 192}")
    a("v_add_u32 v12, s33, v12")
    a("s_lshl_b32 s33, s27, 11")
    a("s_add_u32 s33, s33, s36")
    a("v_add_u32 v13, s33, v13")
    a("s_lshl_b32 s40, s26, 1")
    a("s_add_u32 s40, s40, s27")
    a("s_lshl_b32 s41, s40, 11")
    a(f"s_add_u32 s41, s41, {BT}")
    a("s_lshr_b32 s40, s26, 5")
    a("s_lshl_b32 s40, s40, 7")
    a(f"s_add_u32 s40, s40, {F_B}")
    a("s_waitcnt lgkmcnt(0)")
    for r in range(0, 16, 2):
        a(f"v_pk_add_f32 {vr(KACC+r,2)}, {vr(KACC+r,2)}, {vr(FR+r,2)}")
    K_ = KACC; W_ = FR + 16
    a(f"v_cndmask_b32 v{CT}, v{K_+12}, v{K_+13}, vcc")
    a(f"v_cndmask_b32 v{CT+1}, v{K_+14}, v{K_+15}, vcc")
    for i in range(4):
        a(f"v_mov_b32 v{W_+16+i}, 0")
    def pk(d, lo_, hi_): a(f"v_cvt_pk_bf16_f32 v{d}, v{lo_}, v{hi_}")
    a("s_cmp_eq_u32 s27, 1")
    a("s_cbranch_scc1 B_ODD")
    A_, B_, C_ = K_ + 9, K_ + 10, K_ + 11
    for i in range(4): pk(W_ + i, K_ + 7 - 2 * i, K_ + 6 - 2 * i)
    for i, (x, y) in enumerate(((C_, C_), (B_, B_), (B_, A_), (A_, A_))): pk(W_ + 4 + i, x, y)
    for sl in range(2):
        A2, C2, M2 = K_ + 12 + 2 * sl, K_ + 13 + 2 * sl, CT + sl
        for i, (x, y) in enumerate(((C2, C2), (C2, M2), (A2, A2), (A2, A2))): pk(W_ + 8 + 4 * sl + i, x, y)
    a("s_branch B_IMG")
    a.label("B_ODD")
    for i in range(4): pk(W_ + i, K_ + 8 - 2 * i, K_ + 7 - 2 * i)
    for i, (x, y) in enumerate(((C_, C_), (C_, B_), (B_, B_), (A_, A_))): pk(W_ + 4 + i, x, y)
    for sl in range(2):
        A2, C2, M2 = K_ + 12 + 2 * sl, K_ + 13 + 2 * sl, CT + sl
        for i, (x, y) in enumerate(((C2, C2), (C2, C2), (M2, A2), (A2, A2))): pk(W_ + 8 + 4 * sl + i, x, y)
    a("s_mov_b64 exec, 1")
    pk(W_ + 16, K_, VZ)
    a("s_mov_b64 exec, -1")
    a.label("B_IMG")
    for sl in range(4):
        a(f"ds_write_b128 v6, {vr(W_+4*sl,4)} offset:{(3-sl)*1024}")
    a("v_add_u32 v7, s49, v2")
    a("s_mov_b64 exec, 3")
    a(f"ds_write_b128 v7, {vr(W_+16,4)} offset:4096")
    a("s_mov_b64 exec, -1")
    a("s_cmp_eq_u32 s45, 32")
    a("s_cbranch_scc1 B_UOK")
    a("s_cmp_lg_u32 s24, 0")
    a("s_cbranch_scc1 B_NOPOLL2")
    cnt_wait(a, 250, "s42", 32, 3)
    a.label("B_NOPOLL2")
    a("s_barrier")
    u_loads()
    a.label("B_UOK")
    a.stamp(7)
    a("s_waitcnt vmcnt(0)")
    for i in range(2):
        a(f"ds_write_b128 v241, {vr(UL+4*i,4)} offset:{512*i}")
    a("s_waitcnt lgkmcnt(0)")
    a("s_barrier")
    a.stamp(4)
    a(f"s_setprio {os.environ.get('PV', '0')}")
    FB, CAC = 16, 144
    a.nds = 0
    tg = {}
    def loadstep(stp):
        b = FB + 64 * (stp & 1)
        for i in range(8):
            o = 128 * (1 - (i & 1)) + 16 * (3 - stp)
            a.ds(f"ds_read2_b32 {vr(b+4*i,2)}, v{8+(i>>1)} offset0:{o} offset1:{o+1}")
            a.ds(f"ds_read2_b32 {vr(b+4*i+2,2)}, v{8+(i>>1)} offset0:{o+2} offset1:{o+3}")
            tg[(stp, i)] = a.ds(f"ds_read_b128 {vr(b+32+4*i,4)}, v12 offset:{512*i+64*(3-stp)}")
    loadstep(0)
    for stp in range(4):
        b = FB + 64 * (stp & 1)
        order = sorted([(i, tp) for i in range(8) for tp in range(8 - i)], key=lambda x: (max(x), x[0] + x[1]))
        nxt = []
        if stp < 3:
            b2 = FB + 64 * ((stp + 1) & 1)
            for i in range(8):
                o = 128 * (1 - (i & 1)) + 16 * (3 - stp - 1)
                nxt.append((None, f"ds_read2_b32 {vr(b2+4*i,2)}, v{8+(i>>1)} offset0:{o} offset1:{o+1}"))
                nxt.append((None, f"ds_read2_b32 {vr(b2+4*i+2,2)}, v{8+(i>>1)} offset0:{o+2} offset1:{o+3}"))
                nxt.append(((stp + 1, i), f"ds_read_b128 {vr(b2+32+4*i,4)}, v12 offset:{512*i+64*(3-stp-1)}"))
        waited = -1
        seen = set()
        for k, (i, tp) in enumerate(order):
            if max(i, tp) > waited:
                waited = max(i, tp)
                a.wait_ds(tg[(stp, waited)])
            t = i + tp
            c = vr(CAC + 4 * t, 4)
            if stp == 0 and t not in seen:
                c = "0"; seen.add(t)
            a(f"{MF16} {vr(CAC+4*t,4)}, {vr(b+4*i,4)}, {vr(b+32+4*tp,4)}, {c}")
            if k >= 8 and nxt:
                key, ins = nxt.pop(0)
                r = a.ds(ins)
                if key: tg[key] = r
        assert not nxt
    a.stamp(5)
    a(f"s_setprio {os.environ.get('PT', '2')}")
    RR = 16
    for tl in range(4):
        a(f"ds_read_b64 {vr(80+2*tl,2)}, v13 offset:{512*tl}")
    a("s_cmp_eq_u32 s27, 1")
    a.nop(3)
    a("s_cbranch_scc1 B_R1")
    for par in range(2):
        if par: a.label("B_R1")
        for q in range(4):
            a(f"ds_write_b128 v242, {vr(CAC+16*(1-par)+4*q,4)} offset:{1024*q}")
        a("s_waitcnt lgkmcnt(0)")
        a("s_barrier")
        for q in range(4):
            a(f"ds_read_b128 {vr(RR+4*q,4)}, v243 offset:{1024*q}")
        a("s_waitcnt lgkmcnt(0)")
        for r in range(0, 16, 2):
            a(f"v_pk_add_f32 {vr(RR+r,2)}, {vr(RR+r,2)}, {vr(CAC+16*par+r,2)}")
        if not par: a("s_branch B_R2")
    a.label("B_R2")
    for t in range(4):
        for i in range(2):
            a(f"v_lshlrev_b32 v{88+2*i}, 16, v{80+2*t+i}")
            a(f"v_and_b32 v{88+2*i+1}, 0xffff0000, v{80+2*t+i}")
        for r in range(4):
            a(f"v_fmac_f32 v{RR+4*t+r}, s38, v{88+r}")
        for i in range(2):
            a(f"v_cvt_pk_bf16_f32 v{80+2*t+i}, v{RR+4*t+2*i}, v{RR+4*t+2*i+1}")
    a("s_nop 1")
    for p in range(2):
        for i in range(2):
            a(f"v_permlane16_swap_b32 v{80+4*p+i}, v{80+4*p+2+i}")
    for p in range(2):
        a(f"buffer_store_dwordx4 {vr(80+4*p,4)}, v2, s[20:23], s41 offen offset:{1024*p}{SC}")
    a("s_waitcnt vmcnt(0)")
    cnt_add(a, 4, "s40")
    fin(a, 6)
    a("s_endpgm")

def gen_C(a):
    a.label("L_C")
    if "dC" in EXP: a(f"s_sleep {DLY}")
    a("s_setprio 3")
    R, U, GU, GW = 16, 80, 144, 160
    a("s_sub_u32 s25, s2, 224")
    a("s_lshl_b32 s26, s31, 2")
    a("s_sub_u32 s33, s32, 28")
    a("s_add_u32 s26, s26, s33")
    a("s_lshl_b32 s26, s26, 2")
    a("s_add_u32 s26, s26, s24")
    a("s_mul_i32 s36, s26, 14336")
    for i in range(1, 4):
        a(f"s_add_u32 s{36+i}, s36, {3584*i}")
    a("s_add_u32 s45, s25, s24")
    a("s_waitcnt lgkmcnt(0)")
    a.srd(20, P_WS, WS_SIZE)
    a.srd(12, P_X, X_BYTES)
    for r in range(16):
        a(f"buffer_load_dwordx4 {vr(R+4*r,4)}, v2, s[12:15], s{36+(r>>2)} offen offset:{896*(r&3)}")
    a.srd(16, P_GW, 896)
    a(f"buffer_load_dwordx4 {vr(GW,4)}, v2, s[16:19], 0 offen")
    a("v_mov_b32 v4, 1")
    a(f"s_mul_i32 s36, s26, {2*XTS}")
    a(f"s_add_u32 s36, s36, {XT}")
    a("s_add_u32 s37, s36, 3584")
    a(f"s_add_u32 s38, s36, {XTS}")
    a("s_add_u32 s39, s38, 3584")
    a("s_mov_b32 s46, 0x05040100")
    a("s_mov_b32 s47, 0x07060302")
    a("s_mov_b32 exec_hi, 0xffffff")
    for hb in range(2):
        a(f"s_waitcnt vmcnt({9 if hb == 0 else 8})")
        for cc in range(8):
            i, e = cc >> 1, cc & 1
            u = U + 32 * hb + 4 * cc
            for q in range(4):
                a(f"v_perm_b32 v{u+q}, v{R+32*hb+4*(2*q+1)+i}, v{R+32*hb+4*(2*q)+i}, s{46+e}")
            a(f"buffer_store_dwordx4 {vr(u,4)}, v2, s[20:23], s{36+2*hb+(cc>>2)} offen offset:{896*(cc&3)}{SC}")
    a.stamp(1)
    a("s_mov_b64 exec, -1")
    nonce_issue(a, 250)
    a("v_lshlrev_b32 v5, 7, v1")
    a(f"s_mov_b32 s41, {F_XT}")
    for r in range(16):
        a(f"v_mov_b32 v{GU+r}, 0")
    a("s_mov_b32 exec_hi, 0xffffff")
    for i in range(4):
        for r in range(16):
            a(f"v_dot2c_f32_bf16 v{GU+r}, v{R+4*r+i}, v{GW+i}")
    a("s_mov_b64 exec, -1")
    a("s_waitcnt vmcnt(0)")
    nonce_take(a, 250)
    a("s_barrier")
    a("s_cmp_lg_u32 s24, 0")
    a("s_cbranch_scc1 C_NOADD")
    a("s_mov_b32 exec_hi, 0")
    a("buffer_atomic_add v4, v5, s[20:23], s41 offen sc1")
    a("s_mov_b64 exec, -1")
    a.label("C_NOADD")
    a.stamp(2)
    a("s_setprio 1")
    a("s_min_u32 s45, s25, 15")
    a("s_mul_i32 s33, s45, 25088")
    a("s_mul_i32 s34, s24, 7168")
    a("s_add_u32 s33, s33, s34")
    a("v_add_u32 v3, 4096, v2")
    a.srd(12, P_WO, 448 * 896)
    a("s_mov_b32 m0, s34")
    a("s_nop 0")
    for i in range(4):
        a(f"buffer_load_dwordx4 v2, s[12:15], s33 offen offset:{1024*i} lds")
    a("s_add_u32 m0, s34, 4096")
    a("s_nop 0")
    for i in range(3):
        a(f"buffer_load_dwordx4 v3, s[12:15], s33 offen offset:{1024*i} lds")
    for sh in ("row_shr:1", "row_shr:2", "row_shr:4", "row_shr:8"):
        for r in range(16):
            a(f"v_add_f32_dpp v{GU+r}, v{GU+r}, v{GU+r} {sh} row_mask:0xf bank_mask:0xf bound_ctrl:0")
    for r in range(16):
        a(f"v_add_f32_dpp v{GU+r}, v{GU+r}, v{GU+r} row_bcast:15 row_mask:0xa bank_mask:0xf")
    for r in range(16):
        a(f"v_add_f32_dpp v{GU+r}, v{GU+r}, v{GU+r} row_bcast:31 row_mask:0xc bank_mask:0xf")
    for op in (f"v_mul_f32 vX, {hex(f2u(-LOG2E))}, vX", "v_exp_f32 vX, vX", "v_add_f32 vX, 1.0, vX", "v_rcp_f32 vX, vX"):
        for r in range(16):
            a(op.replace("vX", f"v{GU+r}"))
    a("s_lshl_b32 s35, s26, 6")
    a(f"s_add_u32 s35, s35, {GO}")
    a("s_lshr_b32 s37, s26, 1")
    a("s_lshl_b32 s37, s37, 7")
    a(f"s_add_u32 s37, s37, {F_G}")
    a("s_mov_b32 exec_lo, 0")
    a("s_mov_b32 exec_hi, 0x80000000")
    for i in range(4):
        a(f"buffer_store_dwordx4 {vr(GU+4*i,4)}, v{VZ}, s[20:23], s35 offen offset:{16*i}{SC}")
    a("s_mov_b64 exec, -1")
    a("v_lshrrev_b32 v15, 5, v1")
    a("v_bfe_u32 v13, v1, 2, 2")
    a("v_lshl_add_u32 v13, v15, 2, v13")
    a("v_mul_u32_u24 v13, 896, v13")
    a("v_bfe_u32 v14, v1, 4, 1")
    a("v_lshl_add_u32 v13, v14, 5, v13")
    a("v_and_b32 v14, 3, v1")
    a("v_lshl_add_u32 v12, v14, 3, v13")
    a("s_lshr_b32 s49, s24, 1")
    a("s_mul_i32 s36, s49, 14336")
    a("s_mul_i32 s38, s27, 448")
    a("s_add_u32 s36, s36, s38")
    a("v_add_u32 v12, s36, v12")
    a(f"s_mul_i32 s38, s27, {7*32768}")
    a("s_lshl_b32 s39, s45, 1")
    a("s_add_u32 s39, s39, s49")
    a("s_lshl_b32 s39, s39, 10")
    a("s_add_u32 s38, s38, s39")
    a(f"s_add_u32 s38, s38, {WOF}")
    a("s_lshr_b32 s40, s25, 2")
    a("s_lshl_b32 s40, s40, 7")
    a(f"s_add_u32 s40, s40, {F_WO}")
    a("s_waitcnt vmcnt(0)")
    cnt_add(a, 4, "s37")
    a("s_cmp_ge_u32 s25, 16")
    a("s_cbranch_scc1 C_END")
    a("s_barrier")
    for i in range(7):
        for hr in range(2):
            a(f"ds_read_b64_tr_b16 {vr(16+4*i+2*hr,2)}, v12 offset:{64*i+8*hr*896}")
    a("s_waitcnt lgkmcnt(0)")
    a("s_cmp_eq_u32 s49, 0")
    a("s_cbranch_scc1 C_WO2")
    a("s_mov_b32 exec_lo, 0")
    for i in range(7):
        a(f"v_mov_b32 v{16+4*i+2}, 0")
        a(f"v_mov_b32 v{16+4*i+3}, 0")
    a("s_mov_b32 exec_lo, -1")
    a.label("C_WO2")
    for i in range(7):
        a(f"buffer_store_dwordx4 {vr(16+4*i,4)}, v2, s[20:23], s38 offen{SC}")
        if i < 6: a("s_add_u32 s38, s38, 32768")
    a("s_waitcnt vmcnt(0)")
    cnt_add(a, 4, "s40")
    a.label("C_END")
    fin(a, 3)

def gen():
    a = Asm()
    gen_entry(a)
    gen_A(a)
    gen_B(a)
    gen_C(a)
    a.label("L_END")
    a("s_endpgm")
    return a.text()

HEADER = open("cdna_kernels/" + NAME + ".s.ref").read().split("; Override launch geometry")[0]

if __name__ == "__main__":
    name = NAME + "_kernel"
    out = HEADER + "; @launch grid=(512,1,1) block=(256,1,1) lds=81920\n"
    out += '.amdgcn_target "amdgcn-amd-amdhsa--gfx950"\n' + kernel_header(name) + gen() + kernel_desc(name, 256)
    dst = sys.argv[1] if len(sys.argv) > 1 else "cdna_kernels/" + NAME + ".s"
    open(dst, "w").write(out)
```

```python
import sys, math, os
import numpy as np
from dsl import *

NAME = "gated_mix__mha_block__ssm_conv_s4__prompt"
KTS = 28672; VTS = 32256; XTS = 7296
KF = 0x000000
VF = 0x200000
XT = 0x400000
GO = 0x5D0000
WOF = 0x5E0000
OF = 0x660000
BT = 0x860000
FL = 0xA40000
F_KV = FL
F_O = FL + 256 * 128
F_XT = FL + 384 * 128
F_G = FL + 416 * 128
F_B = FL + 480 * 128
F_WO = FL + 496 * 128
WS_SIZE = 0xA50000
X_BYTES = 2048 * 896
W_BYTES = 448 * 2688
LOG2E = 1.4426950408889634
QSCALE = LOG2E * 28 ** -0.5
MF32 = "v_mfma_f32_32x32x16_bf16"
MF16 = "v_mfma_f32_16x16x32_bf16"
SC = " sc1"
NON = 60
POLLMAX = 40000
EXP = os.environ.get("EXP", "")
DLY = int(os.environ.get("DLY", "32"))
DEPTH = int(os.environ.get("DEPTH", "3"))
PA = int(os.environ.get("PA", "2")); PB = int(os.environ.get("PB", "1")); PC = int(os.environ.get("PC", "2"))
P_X, P_W, P_WO, P_PAR, P_LDT, P_DSK, P_GW, P_OUT, P_DBG, P_WS = 64, 66, 68, 72, 84, 86, 88, 90, 92, 94
VZ = 255

uid = [0]
def fin(a, idx):
    if not os.environ.get("STAMP"): return
    a("s_waitcnt vmcnt(0)")
    a.stamp(idx)
    dw = os.environ.get("DBGWG")
    if dw:
        uid[0] += 1; u = uid[0]
        a("s_lshl_b32 s96, s2, 2")
        a("s_add_u32 s96, s96, s24")
        a(f"s_cmp_lg_u32 s96, {int(dw)*4}")
        a(f"s_cbranch_scc1 DG{u}")
        a("s_mov_b64 exec, -1")
        a("v_readlane_b32 s97, v254, 1")
        a("v_mbcnt_lo_u32_b32 v0, -1, 0")
        a("v_lshlrev_b32 v1, 1, v0")
        a("v_subrev_u32 v254, s97, v254")
        a("v_and_b32 v1, -4, v1")
        a("s_mov_b32 exec_lo, 0xaaaaaaa8")
        a("s_mov_b32 exec_hi, 0")
        a(f"global_store_dword v1, v254, {sr(P_DBG,2)}")
        a.label(f"DG{u}")
        return
    a.stamp_flush(P_WS)

def cmul(a, d, x, y, phase):
    if phase == 0:
        a(f"v_pk_mul_f32 {vr(d,2)}, {vr(x,2)}, {vr(y,2)} op_sel_hi:[0,1]")
    else:
        a(f"v_pk_fma_f32 {vr(d,2)}, {vr(x,2)}, {vr(y,2)}, {vr(d,2)} op_sel:[1,1,0] op_sel_hi:[1,0,1] neg_lo:[1,0,0]")

def nonce_issue(a, v):
    uid[0] += 1; u = uid[0]
    a("s_cmp_lg_u32 s24, 0")
    a(f"s_cbranch_scc1 NI{u}")
    a(f"global_load_dword v{v}, v{VZ}, {sr(P_DBG,2)}{os.environ.get('NSC', ' sc1')}")
    a.label(f"NI{u}")

def nonce_take(a, v):
    uid[0] += 1; u = uid[0]
    a("s_cmp_lg_u32 s24, 0")
    a(f"s_cbranch_scc1 ND{u}")
    a(f"s_mov_b32 s62, {POLLMAX}")
    a.label(f"NT{u}")
    a(f"v_readfirstlane_b32 s{NON}, v{v}")
    a("s_nop 1")
    a(f"s_cmp_ge_u32 s{NON}, 8")
    a(f"s_cbranch_scc1 ND{u}")
    a("s_sub_u32 s62, s62, 1")
    a(f"s_cbranch_scc1 ND{u}")
    a("s_sleep 8")
    a(f"global_load_dword v{v}, v{VZ}, {sr(P_DBG,2)} sc1")
    a("s_waitcnt vmcnt(0)")
    a(f"s_branch NT{u}")
    a.label(f"ND{u}")

def cnt_load(a, vd, soff):
    a(f"v_mov_b32 v{vd}, 0")
    a("s_mov_b64 exec, 1")
    t = a.vm(f"buffer_atomic_add v{vd}, v{VZ}, s[20:23], {soff} offen sc0 sc1")
    a("s_mov_b64 exec, -1")
    return t

def cnt_wait(a, vd, soff, target, sleep=1):
    uid[0] += 1; u = uid[0]
    a(f"s_mov_b32 s62, {POLLMAX}")
    a.label(f"FC{u}")
    a(f"v_readfirstlane_b32 s4, v{vd}")
    a("s_nop 1")
    a(f"s_cmp_eq_u32 s4, {target}")
    a(f"s_cbranch_scc1 FD{u}")
    a("s_sub_u32 s62, s62, 1")
    a(f"s_cbranch_scc1 FD{u}")
    a(f"s_sleep {sleep}")
    n0 = a.nvm
    cnt_load(a, vd, soff)
    a.nvm = n0
    a("s_waitcnt vmcnt(0)")
    a(f"s_branch FC{u}")
    a.label(f"FD{u}")

def cnt_add(a, vt, soff, va=None, mask="1"):
    a(f"v_mov_b32 v{vt}, 1")
    a(f"s_mov_b64 exec, {mask}")
    a.vm(f"buffer_atomic_add v{vt}, v{VZ if va is None else va}, s[20:23], {soff} offen sc1")
    a("s_mov_b64 exec, -1")

def late_load(a, vd, va):
    a("s_mov_b64 exec, 7")
    a(f"buffer_load_dword v{vd}, v{va}, s[20:23], 0 offen sc1")
    a("s_mov_b64 exec, -1")

def late_check(a, vd, va, vtgt):
    uid[0] += 1; u = uid[0]
    a(f"s_mov_b32 s62, {POLLMAX}")
    a.label(f"FC{u}")
    a(f"v_cmp_ne_u32 vcc, v{vd}, v{vtgt}")
    a("s_nop 1")
    a("s_and_b32 s4, vcc_lo, 7")
    a(f"s_cbranch_scc0 FD{u}")
    a("s_sub_u32 s62, s62, 1")
    a(f"s_cbranch_scc1 FD{u}")
    a("s_sleep 16")
    late_load(a, vd, va)
    a("s_waitcnt vmcnt(0)")
    a(f"s_branch FC{u}")
    a.label(f"FD{u}")

RAW = 244
XRW = 232

def gen_entry(a):
    a("s_cmp_ge_u32 s2, 512")
    a("s_cbranch_scc1 L_END")
    a.stamp(0)
    if "dblspan" in EXP: a("s_memrealtime s[100:101]")
    a("s_load_dwordx16 s[64:79], s[0:1], 0")
    a("s_load_dwordx16 s[80:95], s[0:1], 64")
    if "nopf" not in EXP:
        a("s_cmp_lt_u32 s2, 504")
        a("s_cbranch_scc1 E_NOPF")
        a("s_getpc_b64 s[4:5]")
        a.label("E_PC")
        a("v_lshlrev_b32 v4, 7, v0")
        a("v_min_u32 v4, L_END-E_PC, v4")
        a("v_mov_b32 v5, s5")
        a("v_add_co_u32 v4, vcc, s4, v4")
        a("s_nop 1")
        a("v_addc_co_u32 v5, vcc, 0, v5, vcc")
        a("global_load_dword v6, v[4:5], off")
        a.label("E_NOPF")
    a("v_lshrrev_b32 v13, 6, v0")
    a("v_and_b32 v1, 63, v0")
    a("v_lshlrev_b32 v2, 4, v1")
    a(f"v_mov_b32 v{VZ}, 0")
    a("v_readfirstlane_b32 s24, v13")
    a("s_and_b32 s31, s2, 7")
    a("s_bfe_u32 s32, s2, 0x50003")
    a("s_cmp_ge_u32 s2, 256")
    a("s_cbranch_scc1 L_A")
    a("s_and_b32 s27, s24, 1")
    a("s_cmp_ge_u32 s32, 28")
    a("s_cbranch_scc1 L_C")
    a("s_setprio 3")
    a("s_lshl_b32 s39, s32, 1")
    a("s_lshr_b32 s34, s24, 1")
    a("s_add_u32 s26, s39, s34")
    a("s_lshl_b32 s26, s26, 3")
    a("s_add_u32 s26, s26, s31")
    a("s_lshl_b32 s33, s26, 9")
    a("s_lshl_b32 s34, s27, 8")
    a("s_add_u32 s33, s33, s34")
    a("v_lshlrev_b32 v3, 2, v1")
    a("v_add_u32 v13, s33, v3")
    a("s_lshl_b32 s34, s26, 1")
    a("s_and_b32 s34, s34, -4")
    a("v_lshlrev_b32 v4, 7, v0")
    a("s_lshl_b32 s33, s2, 15")
    a(f"s_add_u32 s33, s33, {FL}")
    a("s_waitcnt lgkmcnt(0)")
    a.srd(20, P_WS, WS_SIZE)
    a("s_cmp_ge_u32 s2, 2")
    a("s_cbranch_scc1 E_NOINIT")
    a(f"buffer_store_dword v{VZ}, v4, s[20:23], s33 offen sc1")
    a.label("E_NOINIT")
    for i in range(6):
        a(f"global_load_dword v{RAW+i}, v13, {sr(P_PAR+2*i,2)}")
    a(f"s_load_dword s28, {sr(P_LDT,2)}, s34")
    a(f"s_load_dword s38, {sr(P_DSK,2)}, s34")
    a("s_branch L_B")

def gen_A(a):
    a.label("L_A")
    if "noA" in EXP: a("s_endpgm")
    a(f"s_setprio {PA}")
    if "dA" in EXP: a(f"s_sleep {DLY}")
    a("s_lshr_b32 s33, s31, 1")
    a("s_lshl_b32 s33, s33, 2")
    a("s_and_b32 s34, s32, 3")
    a("s_add_u32 s25, s33, s34")
    a("s_and_b32 s27, s31, 1")
    a("s_lshr_b32 s54, s32, 2")
    a("s_lshl_b32 s33, s27, 3")
    a("s_add_u32 s26, s33, s54")
    XR, ACC, QACC, WF, NV, PK, T = 16, 128, 128, 176, 248, 224, 240
    XL = 32768
    a("s_lshl_b32 s33, s25, 2")
    a("s_add_u32 s35, s33, s24")
    a("s_mul_i32 s33, s35, 28672")
    a("v_lshrrev_b32 v13, 3, v1")
    a("v_mul_u32_u24 v12, 896, v13")
    a("v_and_b32 v14, 7, v1")
    a("v_lshrrev_b32 v15, 4, v1")
    a("v_xor_b32 v15, v15, v14")
    a("v_lshl_add_u32 v3, v15, 4, v12")
    a("v_add_u32 v3, s33, v3")
    a("v_xor_b32 v246, 64, v3")
    a(f"v_add_u32 v244, {6144}, v246")
    a(f"v_add_u32 v245, {6144*2}, v3")
    a(f"v_add_u32 v246, {6144*3}, v246")
    a("s_mul_i32 s40, s24, 12288")
    a(f"s_add_u32 s40, s40, {XL}")
    a("s_lshl_b32 s33, s34, 1")
    a("s_add_u32 s28, s33, s54")
    a("s_sub_u32 s33, s28, 7")
    a("s_cmp_ge_u32 s28, 7")
    a("s_cselect_b32 s28, s33, s28")
    if "norot" in EXP: a("s_mov_b32 s28, 0")
    a("s_lshl_b32 s29, s28, 7")
    a("s_mul_i32 s37, s28, 172032")
    a("s_mov_b32 s39, s37")
    a("v_bfe_u32 v15, v1, 4, 1")
    a("v_lshlrev_b32 v15, 2, v15")
    a("v_xor_b32 v15, v15, v14")
    a("v_mul_u32_u24 v4, 2688, v13")
    a("v_lshl_add_u32 v4, v15, 4, v4")
    a("s_min_u32 s55, s54, 6")
    a("s_mul_i32 s33, s24, 43008")
    a("s_mul_i32 s34, s27, 896")
    a("s_add_u32 s33, s33, s34")
    a("s_lshl_b32 s34, s55, 7")
    a("s_add_u32 s33, s33, s34")
    a("s_add_u32 s33, s33, 896")
    a("v_add_u32 v4, s33, v4")
    a(f"v_add_u32 v5, {21504-1024}, v4")
    a("s_lshl_b32 s36, s24, 11")
    a("s_waitcnt lgkmcnt(0)")
    a.stamp(1)
    if "dK1" in EXP: a(f"s_sleep {DLY}")
    if "dK2" in EXP: a("s_sleep 64")
    if "dK4" in EXP: a("s_sleep 127")
    a.srd(12, P_X, X_BYTES)
    a.srd(16, P_W, W_BYTES)
    def adv(r):
        a(f"s_add_u32 s{r}, s{r}, 1")
        a(f"s_cmp_eq_u32 s{r}, 7")
        a(f"s_cselect_b32 s{r}, 0, s{r}")
    QD = int(os.environ.get("QD", "14"))
    L = []
    for s_ in range(7):
        L += [("x", s_, 0), ("x", s_, 1), ("x", s_, 2), ("x", s_, 3), ("w", s_, 0), ("w", s_, 1)]
    L += [("n", 0, 0)] + [("q", i, 0) for i in range(7)]
    tag = {}; tagxf = {}
    L0 = list(L)
    lastbar = [-1]; xfree = [-1]; light = [False]; m0 = [None]
    def setm0(base, off):
        if m0[0] != (base, off):
            a(f"s_add_u32 m0, {base}, {off}")
            m0[0] = (base, off)
            return True
        return False
    def issue():
        seen = set()
        for e in L:
            k, s_, n = e
            if k in seen: continue
            seen.add(k)
            if k in "nq" and ("x" in seen or "w" in seen): return
            need = {"x": s_ - 3, "q": 4 + (s_ >> 2)}.get(k, -1)
            if need > xfree[0]: continue
            if k == "w" and s_ >= 4 and lastbar[0] < s_ - 2: continue
            break
        else:
            return
        L.remove(e)
        if k == "x":
            ch = setm0("s40", (s_ % 3) * 4096)
            if n == 0 and s_:
                a("s_add_u32 s29, s29, 128")
                a("s_cmp_eq_u32 s29, 896")
                a("s_cselect_b32 s29, 0, s29")
            elif ch: a("s_nop 0")
            tag[e] = a.vm(f"buffer_load_dwordx4 v{3 if n == 0 else 243+n}, s[12:15], s29 offen offset:{1024*n} lds")
        elif k == "w":
            ch = setm0("s36", (s_ % 4) * 8192)
            if n == 0 and s_:
                a("s_add_u32 s37, s37, 172032")
                a(f"s_cmp_eq_u32 s37, {7*172032}")
                a("s_cselect_b32 s37, 0, s37")
            elif ch: a("s_nop 0")
            tag[e] = a.vm(f"buffer_load_dwordx4 v{4+n}, s[16:19], s37 offen offset:{1024*n} lds")
        elif k == "n":
            nonce_issue(a, NV)
        else:
            setm0("s40", 4096 + 1024 * s_)
            if s_:
                a("s_add_u32 s39, s39, 172032")
                a(f"s_cmp_eq_u32 s39, {7*172032}")
                a("s_cselect_b32 s39, 0, s39")
            else: a("s_nop 0")
            a.vm(f"buffer_load_dwordx4 v14, s[16:19], s39 offen lds")
    nvm_light = a.nvm
    a.srd(20, P_WS, WS_SIZE)
    a("s_cmp_eq_u32 s54, 7")
    a("s_cbranch_scc1 A_GO")
    for _ in range(QD): issue()
    a.label("A_GO")
    if "stopA" in EXP: a.stamp(7)
    if "Aload" in EXP:
        a("s_waitcnt vmcnt(0)"); a("s_endpgm")
    a("v_and_b32 v13, 31, v1")
    a("v_bfe_u32 v14, v1, 1, 3")
    a("v_lshrrev_b32 v15, 5, v1")
    a("v_xor_b32 v14, v14, v15")
    a("v_lshlrev_b32 v13, 7, v13")
    a("v_lshl_add_u32 v8, v14, 4, v13")
    a("v_add_u32 v8, s40, v8")
    for ks in range(1, 4):
        a(f"v_xor_b32 v{8+ks}, {32*ks}, v8")
    a(f"v_bfe_u32 v{T}, v1, 2, 2")
    a(f"v_lshl_add_u32 v{T+1}, v15, 3, v{T}")
    a(f"v_bfe_u32 v{T+2}, v1, 4, 1")
    a(f"v_and_b32 v{T+3}, 3, v1")
    a(f"v_lshl_add_u32 v{PK}, v{T+2}, 2, v{T+3}")
    a(f"v_and_b32 v{PK+1}, 1, v1")
    a(f"v_bfe_u32 v{PK+2}, v1, 1, 1")
    a(f"v_lshl_add_u32 v{PK+1}, v{PK+1}, 1, v{PK+2}")
    a(f"v_lshl_add_u32 v{PK+1}, v{T+2}, 2, v{PK+1}")
    a(f"v_bfe_u32 v{T+3}, v1, 3, 1")
    a(f"v_lshlrev_b32 v{T+3}, 6, v{T+3}")
    a(f"v_lshl_add_u32 v{T+3}, v{T+1}, 7, v{T+3}")
    a("s_cmp_eq_u32 s27, 1")
    a("s_cselect_b64 vcc, -1, 0")
    a(f"v_cndmask_b32 v12, v{PK+1}, v{PK}, vcc")
    a(f"v_lshl_add_u32 v12, v12, 3, v{T+3}")
    a("v_xor_b32 v13, 64, v12")
    a(f"v_add_u32 v{PK+2}, 2, v{PK+1}")
    a(f"v_sub_u32 v{PK+3}, 7, v{PK+1}")
    a(f"v_cmp_gt_u32 vcc, 6, v{PK+1}")
    a("s_bitcmp1_b32 s26, 0")
    a("s_cselect_b64 s[4:5], -1, 0")
    a(f"v_cndmask_b32 v{PK+2}, v{PK+3}, v{PK+2}, vcc")
    a(f"v_cndmask_b32 v{PK+2}, v{PK+1}, v{PK+2}, s[4:5]")
    a(f"v_lshlrev_b32 v15, 6, v{T+1}")
    a(f"v_lshl_add_u32 v15, v{PK+2}, 3, v15")
    a(f"v_add_u32 v15, {XL + 4096}, v15")
    a("v_lshrrev_b32 v14, 2, v1")
    a("v_mul_u32_u24 v14, 2688, v14")
    a(f"v_and_b32 v{T}, 3, v1")
    a(f"v_lshl_add_u32 v14, v{T}, 4, v14")
    a("s_mul_i32 s33, s26, 56")
    a("s_and_b32 s33, s33, -16")
    a(f"s_mul_i32 s34, s24, {16*2688}")
    a("s_add_u32 s33, s33, s34")
    a("v_add_u32 v14, s33, v14")
    a("s_mul_i32 s33, s54, 2341")
    a("s_lshr_b32 s33, s33, 10")
    a(f"v_add_u32 v{PK}, s33, v1")
    a(f"v_mul_u32_u24 v{PK+1}, 28, v{PK}")
    a(f"v_lshrrev_b32 v{PK+1}, 6, v{PK+1}")
    a(f"v_cmp_ge_u32 s[56:57], s54, v{PK+1}")
    a(f"v_lshlrev_b32 v243, 11, v{PK}")
    a("s_lshl_b32 s42, s25, 7")
    a(f"s_add_u32 s42, s42, {F_KV}")
    a("s_and_b64 s[56:57], s[56:57], 15")
    a("s_cmp_eq_u32 s54, 7")
    a("s_cbranch_scc1 A_LIGHT")
    a("s_cmp_eq_u32 s27, 1")
    a("s_cbranch_scc1 A_V")

    def pass1(vtype):
        tagtr = {}
        NB = 6; TD = 3
        NIS = int(os.environ.get("NIS", "2"))
        def trload(u, t):
            s, ks = u >> 2, u & 3
            for hr in range(2):
                off = (s % 4) * 8192 + (16 * ks + 4 * hr) * 128
                tagtr[u] = a.ds(f"ds_read_b64_tr_b16 {vr(WF+(u%NB)*8+4*t+2*hr,2)}, v{12+t} offset:{off}")
        def mfma(u, t):
            wf = vr(WF + (u % NB) * 8 + 4 * t, 4); xf = vr(XR + 4 * u, 4)
            c = "0" if u == 0 else vr(ACC + 16 * t, 16)
            a(f"{MF32} {vr(ACC+16*t,16)}, {xf}, {wf}, {c}" if vtype else f"{MF32} {vr(ACC+16*t,16)}, {wf}, {xf}, {c}")
        pend = None
        for u in range(-4, 28):
            if u >= 0:
                a.wait_ds(max(tagtr[u], tagxf[u >> 2]))
                mfma(u, 0)
            issue()
            if (u + TD) % 4 == 0 and (u + TD) // 4 < 7:
                sb = (u + TD) // 4
                a.wait_vm(tag[("w", sb, 1)])
                a("s_barrier")
                lastbar[0] = sb
                if sb in (0, 6): a.stamp(2 + sb // 6)
            if 0 <= u + TD < 28: trload(u + TD, 0)
            if u >= 0: mfma(u, 1)
            if pend is not None:
                a.wait_ds(tagxf[pend]); xfree[0] = pend; pend = None
            for _ in range(NIS - 1): issue()
            if 0 <= u + TD < 28: trload(u + TD, 1)
            if u % 4 == 0 and u // 4 + 1 < 7:
                s = u // 4 + 1
                a.wait_vm(tag[("x", s, 3)])
                for ks in range(4):
                    tagxf[s] = a.ds(f"ds_read_b128 {vr(XR+16*s+4*ks,4)}, v{8+ks} offset:{(s%3)*4096}")
                pend = s
        assert not L, L
    saved = (a.nvm, a.nds, list(L), m0[0])
    a("v_mov_b32 v247, v2")
    a(f"s_mul_i32 s38, s35, {KTS}")
    a("s_lshl_b32 s33, s55, 12")
    a("s_add_u32 s38, s38, s33")
    a("s_add_u32 s41, s38, 1024")
    a("s_add_u32 s43, s38, 2048")
    a("s_add_u32 s44, s38, 3072")
    pass1(False)
    a("s_branch A_ST")
    a.label("A_V")
    a.nvm, a.nds, L[:], m0[0] = saved; lastbar[0] = -1; xfree[0] = -1
    a("v_lshrrev_b32 v247, 5, v1")
    a(f"v_mul_u32_u24 v247, {8064-512}, v247")
    a("v_add_u32 v247, v247, v2")
    a(f"s_mul_i32 s38, s35, {VTS}")
    a("s_mul_i32 s33, s55, 1152")
    a("s_add_u32 s38, s38, s33")
    a(f"s_add_u32 s38, s38, {VF}")
    a("s_add_u32 s41, s38, 16128")
    a("s_add_u32 s43, s38, 512")
    a("s_add_u32 s44, s41, 512")
    a(f"v_lshrrev_b32 v{T}, 1, v1")
    a(f"v_mul_u32_u24 v{T}, 8064, v{T}")
    a(f"v_and_b32 v{T+1}, 1, v1")
    a(f"v_lshl_add_u32 v{T}, v{T+1}, 4, v{T}")
    a(f"v_subrev_u32 v{T+1}, 1, v{T+1}")
    for i in range(4):
        a(f"v_and_b32 v{PK+i}, 0x3f803f80, v{T+1}")
    a("s_mov_b64 exec, 0xff")
    a(f"buffer_store_dwordx4 {vr(PK,4)}, v{T}, s[20:23], s38 offen offset:1024{SC}")
    a("s_mov_b64 exec, -1")
    pass1(True)
    a.label("A_ST")
    a.nop(11)
    for t in range(2):
        for r in range(0, 16, 2):
            a(f"v_cvt_pk_bf16_f32 v{PK+8*t+r//2}, v{ACC+16*t+r}, v{ACC+16*t+r+1}")
        for f in range(2):
            a(f"buffer_store_dwordx4 {vr(PK+8*t+4*f,4)}, v247, s[20:23], s{(38,41,43,44)[2*t+f]} offen{SC}")
    a("s_waitcnt vmcnt(4)")
    a("s_branch A_P2")
    a.label("A_LIGHT")
    a.nvm, a.nds = nvm_light, saved[1]; L[:] = [e for e in L0 if e[0] != 'w']; m0[0] = None; xfree[0] = -1
    for _ in range(int(os.environ.get("LQ", "4"))): issue()
    for s_ in range(7):
        a.wait_vm(tag[("x", s_, 3)])
        for ks in range(4):
            a.ds(f"ds_read_b128 {vr(XR+16*s_+4*ks,4)}, v{8+ks} offset:{(s_%3)*4096}")
        a("s_waitcnt lgkmcnt(0)")
        xfree[0] = s_
        for _ in range(6): issue()
    assert not L
    a("s_waitcnt vmcnt(0)")
    a.label("A_P2")
    if "dP" in EXP: a(f"s_sleep {DLY}")
    a.stamp(4)
    nonce_take(a, NV)
    a("s_barrier")
    Q, O, S, P, KB, VB, NM, MX, T2 = 16, 48, 112, 144, 160, 192, 224, 228, 232
    VK0, VK1, VV0, VV1, C1, C2 = 10, 11, 12, 13, 252, 253
    class Rec:
        def __init__(self): self.ch = []
        def __call__(self, *ins): self.ch.append(list(ins))
    c = Rec()
    c("s_mul_i32 s33, s26, 28"); c("s_lshr_b32 s44, s33, 6"); c("s_add_u32 s34, s33, 27"); c("s_lshr_b32 s34, s34, 6")
    c("s_sub_u32 s34, s34, s44"); c("s_lshl_b32 s34, s34, 1"); c("s_add_u32 s58, s34, 2")
    c("v_lshrrev_b32 v4, 5, v1")
    c("v_lshlrev_b32 v249, 9, v1"); c(f"v_mov_b32 v{NV+2}, 0")
    c("s_lshl_b32 s34, s26, 11"); c("s_lshl_b32 s36, s24, 7"); c("s_add_u32 s34, s34, s36"); c(f"s_add_u32 s53, s34, {F_KV}")
    c(f"s_mov_b32 s46, {hex(f2u(QSCALE))}"); c("s_mov_b32 s47, s46")
    c("s_lshl_b32 s36, s24, 11"); c("v_add_u32 v6, s36, v2")
    for t in range(1, 4): c(f"v_xor_b32 v{6+t}, {2048*t}, v6")
    c("s_lshr_b32 s34, s26, 1"); c("s_mul_i32 s34, s34, 3584"); c("s_and_b32 s36, s26, 1"); c("s_lshl_b32 s37, s36, 11")
    c("s_add_u32 s34, s34, s37"); c(f"v_add_u32 v{VK0}, s34, v2"); c(f"v_add_u32 v{VK1}, 1024, v{VK0}")
    c(f"s_mul_i32 s37, s36, {2048-8}")
    c("s_mov_b32 exec_lo, 0", f"v_subrev_u32 v{VK1}, s37, v{VK1}", "s_mov_b32 exec_lo, -1")
    c("v_and_b32 v5, 31, v1"); c("v_add_u32 v3, s33, v5"); c("v_lshrrev_b32 v5, 6, v3"); c("v_lshlrev_b32 v5, 7, v5")
    c(f"v_lshl_add_u32 v{VV0}, v3, 4, v5")
    c("s_mul_i32 s34, s44, 1152"); c("s_add_u32 s34, s34, 1024"); c("s_add_u32 s37, s34, 16")
    c("s_mov_b32 exec_lo, 0xf0000000", "s_mov_b32 exec_hi, 0xf0000000", f"v_mov_b32 v{VV0}, s37", "s_mov_b64 exec, -1")
    c(f"v_writelane_b32 v{VV0}, s34, 28"); c(f"v_writelane_b32 v{VV0}, s34, 60")
    c("s_movk_i32 s34, 8064"); c(f"v_mad_u32_u24 v{VV0}, v4, s34, v{VV0}"); c(f"v_add_u32 v{VV1}, 16128, v{VV0}")
    c(f"s_mul_i32 s34, s24, {4*KTS}"); c(f"s_mul_i32 s37, s24, {4*VTS}"); c(f"s_add_u32 s37, s37, {VF}")
    for d, sz, off in ((12, 52 * KTS, "s34"), (16, 52 * VTS, "s37")):
        c(f"s_add_u32 s{d}, s{P_WS}, {off}", f"s_addc_u32 s{d+1}, s{P_WS+1}, 0")
        c(f"s_mov_b32 s{d+2}, {sz}"); c(f"s_mov_b32 s{d+3}, 0x00020000")
    c("s_mov_b32 s63, 15")
    c(f"v_mov_b32 v{C1}, 0x3f803f80"); c(f"v_mov_b32 v{C2}, 0x3f80")
    for r in range(8): c(f"v_mov_b32 v{VB+24+r}, 0")
    for t in range(4): c(f"v_mov_b32 v{NM+t}, 0")
    c("s_mov_b32 s41, 0")
    c("s_cmp_eq_u32 s54, 7", "s_cselect_b32 s59, 1, s24")
    PV_ = NV + 2
    def kv_poll():
        a("s_mov_b64 exec, 15")
        a(f"buffer_atomic_umax v{PV_}, v249, s[20:23], s53 offen sc0 sc1")
        a("s_mov_b64 exec, -1")
    def kv_pick(tagname):
        a(f"s_mov_b32 s62, {POLLMAX}")
        a.label(f"KP{tagname}")
        a(f"v_cmp_eq_u32 vcc, s58, v{PV_}")
        a("s_nop 1")
        a("s_and_b32 s5, vcc_lo, s63")
        a(f"s_cbranch_scc1 KD{tagname}")
        a("s_mov_b32 s5, s63")
        a("s_sub_u32 s62, s62, 1")
        a(f"s_cbranch_scc1 KD{tagname}")
        a("s_sleep 1")
        kv_poll()
        a("s_waitcnt vmcnt(0)")
        a(f"s_branch KP{tagname}")
        a.label(f"KD{tagname}")
        a("s_ff1_i32_b32 s59, s5")
        a("s_bitset0_b32 s63, s59")
        a("s_bitset0_b32 s5, s59")
    def first_loads():
        a(f"s_mul_i32 s44, s59, {16*KTS}")
        a(f"s_mul_i32 s45, s59, {16*VTS}")
        for kt in range(4):
            for f in range(2):
                r = a.vm(f"buffer_load_dwordx4 {vr(KB+8*kt+4*f,4)}, v{VK0+f}, s[12:15], s44 offen{SC}")
            if kt < 3: a(f"s_addk_i32 s44, {KTS}")
            if kt == 0: tag = r
            if kt < 3:
                for f in range(2):
                    a.vm(f"buffer_load_dwordx4 {vr(VB+8*kt+4*f,4)}, v{VV0+f}, s[16:19], s45 offen{SC}")
                a(f"s_addk_i32 s45, {VTS}")
        return tag
    def patch(kb):
        a(f"v_mov_b32_dpp v{kb+6}, v{C1} quad_perm:[0,1,2,3] row_mask:0xc bank_mask:0xf")
        a(f"v_mov_b32_dpp v{kb+7}, v{C2} quad_perm:[0,1,2,3] row_mask:0xc bank_mask:0xf")
    tq = {}
    def trq(u):
        for hr in range(2):
            tq[u] = a.ds(f"ds_read_b64_tr_b16 {vr(WF+(u%8)*4+2*hr,2)}, v15 offset:{(u&3)*12288+(u>>2)*1024+256*hr}")
    for u in range(6): trq(u)
    for u in range(28):
        if u + 6 < 28: trq(u + 6)
        a.wait_ds(tq[u])
        cc = "0" if u == 0 else vr(QACC, 16)
        a(f"{MF32} {vr(QACC,16)}, {vr(WF+(u%8)*4,4)}, {vr(XR+4*u,4)}, {cc}")
        n = 0
        while c.ch and n < (3 if u < 22 else 5):
            for ins in c.ch.pop(0): a(ins); n += 1
    assert not c.ch, len(c.ch)
    def zero_acc():
        for t in range(4):
            a(f"{MF32} {vr(O+16*t,16)}, {vr(VB+24,4)}, {vr(VB+24,4)}, 0")
    zero_acc()
    a("s_cmp_lg_u32 s59, 0")
    a("s_waitcnt vmcnt(0)")
    a("s_barrier")
    a("s_cbranch_scc1 A_NOPUB")
    cnt_add(a, NV, "s42", 243, "s[56:57]")
    a.label("A_NOPUB")
    a.stamp(5)
    if "stopA" in EXP:
        fin(a, 6); a("s_endpgm")
    kv_poll()
    a.nop(1)
    for r in range(0, 16, 2):
        a(f"v_pk_mul_f32 {vr(QACC+r,2)}, {vr(QACC+r,2)}, s[46:47]")
    for r in range(0, 16, 2):
        a(f"v_cvt_pk_bf16_f32 v{Q+r//2}, v{QACC+r}, v{QACC+r+1}")
    a("s_mov_b32 exec_lo, 0")
    a(f"v_mov_b32 v{Q+6}, 0")
    a(f"v_mov_b32 v{Q+7}, 0")
    a("s_mov_b32 exec_lo, -1")
    for f in range(2):
        a(f"ds_write_b128 v6, {vr(Q+4*f,4)} offset:{1024*f}")
    a("s_waitcnt lgkmcnt(0)")
    a("s_barrier")
    for t in range(1, 4):
        for f in range(2):
            a(f"ds_read_b128 {vr(Q+8*t+4*f,4)}, v{6+t} offset:{1024*f}")
    a("s_waitcnt vmcnt(0)")
    kv_pick("A")
    a.stamp(6)
    tagk0 = first_loads()
    kv_poll()
    a.nvm += 1
    a("s_mov_b32 s42, 0x07060302")
    a("s_min_u32 s33, s32, 27")
    a("s_and_b32 s34, s33, 3")
    a("s_lshl_b32 s47, s31, 2")
    a("s_add_u32 s47, s47, s34")
    a("s_lshr_b32 s48, s33, 2")
    a("s_lshr_b32 s49, s24, 1")
    a("s_lshl_b32 s33, s47, 1")
    a("s_add_u32 s49, s49, s33")
    a("s_and_b32 s50, s24, 1")
    a("s_lshl_b32 s33, s48, 1")
    a("s_add_u32 s50, s50, s33")
    a("v_bfe_u32 v5, v1, 2, 2")
    a("v_lshlrev_b32 v9, 7, v5")
    a("v_bfe_u32 v5, v1, 4, 1")
    a("v_lshl_add_u32 v9, v5, 6, v9")
    a("v_and_b32 v5, 3, v1")
    a("v_lshl_add_u32 v9, v5, 4, v9")
    a("v_lshl_add_u32 v9, v4, 9, v9")
    for t in range(1, 4):
        a(f"s_xor_b32 s33, s24, {t}")
        a("s_mul_i32 s33, s33, 12288")
        a(f"s_add_u32 s33, s33, {(t-1)*4096}")
        a(f"v_add_u32 v{3+t}, s33, v2")
    a("s_mul_i32 s33, s24, 12288")
    a("v_add_u32 v7, s33, v2")
    a("v_or_b32 v8, 512, v7")
    a("s_lshl_b32 s33, s35, 4")
    a("s_add_u32 s33, s33, s26")
    a("s_lshl_b32 s43, s33, 11")
    a(f"s_add_u32 s43, s43, {OF}")
    a("s_lshr_b32 s51, s35, 1")
    a("s_lshl_b32 s51, s51, 9")
    a("s_lshr_b32 s33, s26, 2")
    a("s_lshl_b32 s33, s33, 7")
    a("s_add_u32 s51, s51, s33")
    a(f"s_add_u32 s51, s51, {F_O}")
    a("s_lshl_b32 s33, s50, 7")
    a(f"s_add_u32 s33, s33, {F_B}")
    a("v_mov_b32 v14, s33")
    a("v_mov_b32 v15, 64")
    a("s_lshl_b32 s33, s49, 7")
    a(f"s_add_u32 s33, s33, {F_G}")
    a("v_writelane_b32 v14, s33, 1")
    a("v_writelane_b32 v15, 2, 1")
    a("s_lshl_b32 s33, s24, 7")
    a(f"s_add_u32 s33, s33, {F_WO}")
    a("v_writelane_b32 v14, s33, 2")
    a("v_writelane_b32 v15, 16, 2")
    a("s_waitcnt lgkmcnt(0)")
    a.wait_vm(tagk0)
    a.stamp(7)
    if "dL" in EXP: a(f"s_sleep {DLY}")
    TT = [S + 16, T2, P, S]
    patch(KB)
    a("s_nop 0")
    def mx(t):
        a(f"v_max3_f32 v{MX+t}, v{TT[t]}, v{TT[t]+1}, v{TT[t]+2}")
        for i in range(1, 4):
            a(f"v_max3_f32 v{MX+t}, v{MX+t}, v{TT[t]+2*i+1}, v{TT[t]+2*i+2}")
    for t in range(4):
        a(f"{MF32} {vr(TT[t],16)}, {vr(KB,4)}, {vr(Q+8*t,4)}, 0")
        a(f"{MF32} {vr(TT[t],16)}, {vr(KB+4,4)}, {vr(Q+8*t+4,4)}, {vr(TT[t],16)}")
    a.nop(6)
    mx(0); mx(1); mx(2)
    mx(3)
    a.label("A_SETMAX")
    def setm(ts):
        for t in ts: a(f"v_sub_f32 v{NM+t}, v{NM+t}, v{MX+t}")
        for t in ts: a(f"v_and_b32 v{T2+t}, 0xffff0000, v{NM+t}")
        for t in ts: a(f"v_sub_f32 v{T2+t}, v{NM+t}, v{T2+t}")
        for t in ts: a(f"v_and_b32 v{T2+4+t}, 0xffff0000, v{T2+t}")
        for t in ts: a(f"v_sub_f32 v{T2+4+t}, v{T2+t}, v{T2+4+t}")
        for t in ts:
            a(f"v_perm_b32 v{Q+8*t+6}, v{T2+t}, v{NM+t}, s42")
            a(f"v_lshrrev_b32 v{Q+8*t+7}, 16, v{T2+4+t}")
    a("s_mov_b32 exec_lo, 0")
    setm((0, 1))
    a("s_mov_b32 exec_lo, -1")
    a(f"{MF32} {vr(S,16)}, {vr(KB,4)}, {vr(Q,4)}, 0")
    a(f"{MF32} {vr(S,16)}, {vr(KB+4,4)}, {vr(Q+4,4)}, {vr(S,16)}")
    a("s_mov_b32 exec_lo, 0")
    setm((2, 3))
    a("s_mov_b32 exec_lo, -1")
    for r in range(0, 8, 2):
        a(f"v_pk_mov_b32 {vr(P+8+r,2)}, {vr(VB+24,2)}, {vr(VB+24,2)}")
    a("s_mov_b32 s46, 4")
    a(f"s_setprio {os.environ.get('PL', '1')}")
    a.label("A_LOOP")
    sh = {}
    for kt in range(4):
        b = 4 * kt
        for f in range(2):
            sh[(b, 2 + f)] = [f"buffer_load_dwordx4 {vr(VB+8*((kt-1)&3)+4*f,4)}, v{VV0+f}, s[16:19], s45 offen{SC}"]
            sh[(b + 2, 1 + f)] = [f"buffer_load_dwordx4 {vr(KB+8*kt+4*f,4)}, v{VK0+f}, s[12:15], s44 offen{SC}"]
        sh[(b + 1, 1)] = ["s_waitcnt vmcnt(12)"]
        sh[(b + 2, 3)] = ["s_waitcnt vmcnt(12)"]
        if kt: sh[(b + 1, 0)] = [f"s_addk_i32 s45, {VTS}"]
        if kt < 3: sh[(b + 3, 1)] = [f"s_addk_i32 s44, {KTS}"]
    sh[(0, 0)] = ["s_cmp_lt_u32 s5, 128"]
    sh[(0, 1)] = ["s_cbranch_scc1 A_SLOW", "A_SLOWR:"]
    sh[(1, 0)] = ["s_ff1_i32_b32 s59, s5"]
    sh[(1, 2)] = [f"s_mul_i32 s44, s59, {16*KTS}"]
    sh[(1, 3)] = ["s_bitset0_b32 s5, s59"]
    sh[(2, 0)] = [f"s_mul_i32 s45, s59, {16*VTS}"]
    sh[(3, 2)] = ["s_bitset0_b32 s63, s59"]
    sh[(4, 0)] = ["s_cmp_eq_u32 s46, 1"]
    sh[(4, 1)] = ["s_cbranch_scc1 A_LLOAD", "A_LLOADR:"]
    sh[(15, 2)] = ["s_sub_u32 s46, s46, 1"]
    sh[(15, 3)] = ["s_cmp_lg_u32 s46, 0"]
    for n in range(16):
        kt, t = n >> 2, n & 3
        n1 = (n + 1) & 15; kt1, t1 = n1 >> 2, n1 & 3
        n0 = (n - 1) & 15; kt0, t0 = n0 >> 2, n0 & 3
        sc = S + 16 * (n & 1); sn = S + 16 * (n1 & 1)
        pc = P + 8 * (n & 1); pp = P + 8 * (n0 & 1)
        mf = [f"{MF32} {vr(sn,16)}, {vr(KB+8*kt1,4)}, {vr(Q+8*t1,4)}, 0",
              f"{MF32} {vr(sn,16)}, {vr(KB+8*kt1+4,4)}, {vr(Q+8*t1+4,4)}, {vr(sn,16)}",
              f"{MF32} {vr(O+16*t0,16)}, {vr(VB+8*kt0,4)}, {vr(pp,4)}, {vr(O+16*t0,16)}",
              f"{MF32} {vr(O+16*t0,16)}, {vr(VB+8*kt0+4,4)}, {vr(pp+4,4)}, {vr(O+16*t0,16)}"]
        for m in range(4):
            a(mf[m])
            for ins in sh.get((n, m), []):
                if ins.endswith(":"): a.label(ins[:-1])
                else: a(ins)
            if m == 0 and t == 3:
                patch(KB + 8 * kt1)
            for e in range(4):
                a(f"v_exp_f32 v{sc+4*m+e}, v{sc+4*m+e}")
            for c_ in range(2):
                a(f"v_cvt_pk_bf16_f32 v{pc+2*m+c_}, v{sc+4*m+2*c_}, v{sc+4*m+2*c_+1}")
    a("s_cbranch_scc1 A_LOOP")
    a.stamp(8)
    if "dT" in EXP: a(f"s_sleep {DLY}")
    a("s_nop 0")
    a(f"{MF32} {vr(O+48,16)}, {vr(VB+24,4)}, {vr(P+8,4)}, {vr(O+48,16)}")
    a(f"{MF32} {vr(O+48,16)}, {vr(VB+28,4)}, {vr(P+12,4)}, {vr(O+48,16)}")
    a("v_mov_b32 v3, 0x5f800000")
    a("s_mov_b32 exec_lo, 0")
    for t in range(3):
        a(f"v_cmp_nlt_f32 {sr(4+2*t,2)}, v{O+16*t+12}, v3")
    for t in range(1, 3):
        a(f"v_mov_b32 v{O+16*t+13}, v{NM+t}")
    a("s_mov_b32 exec_lo, -1")
    for t in range(1, 3):
        for q in range(4):
            a(f"ds_write_b128 v{3+t}, {vr(O+16*t+4*q,4)} offset:{1024*q}")
    a("s_mov_b32 exec_lo, 0")
    a(f"v_cmp_nlt_f32 vcc, v{O+48+12}, v3")
    a(f"v_mov_b32 v{O+48+13}, v{NM+3}")
    a("s_mov_b32 exec_lo, -1")
    a("s_or_b32 s5, s5, s7")
    a("s_or_b32 s5, s5, s9")
    a("s_or_b32 s5, s5, vcc_hi")
    a("s_andn2_b32 s5, s5, s41")
    a("s_cbranch_scc1 A_FALLBACK")
    for q in range(4):
        a(f"ds_write_b128 v6, {vr(O+48+4*q,4)} offset:{1024*q}")
    a(f"v_mov_b32 v{T2}, v{O+12}")
    a(f"v_mov_b32 v{T2+1}, v{O+12}")
    a(f"v_mov_b32 v{T2+8}, v{NM}")
    a("v_add_u32 v10, 4096, v2")
    a("s_lshl_b32 s33, s24, 13")
    a(f"s_add_u32 s33, s33, {WOF}")
    a("s_lshl_b32 s36, s50, 15")
    a("s_add_u32 s36, s36, s33")
    a("s_xor_b32 s37, s50, 1")
    a("s_lshl_b32 s37, s37, 15")
    a("s_add_u32 s37, s37, s33")
    a("v_lshrrev_b32 v11, 5, v1")
    a("v_lshlrev_b32 v12, 6, v11")
    a("s_lshl_b32 s38, s49, 7")
    a(f"s_add_u32 s38, s38, {GO}")
    a("v_and_b32 v13, 31, v1")
    a("v_lshlrev_b32 v3, 12, v13")
    a("v_lshl_add_u32 v3, v11, 4, v3")
    a("s_lshl_b32 s39, s50, 17")
    a("s_lshr_b32 s34, s49, 4")
    a("s_lshl_b32 s34, s34, 10")
    a("s_add_u32 s39, s39, s34")
    a("s_and_b32 s34, s49, 15")
    a("s_lshl_b32 s34, s34, 5")
    a("s_add_u32 s39, s39, s34")
    a(f"s_add_u32 s39, s39, {BT}")
    a("s_waitcnt lgkmcnt(0)")
    a("s_barrier")
    LM = T2 + 2
    for s in range(3):
        a(f"ds_read_b64 {vr(LM+2*s,2)}, v8 offset:{4096*s+3072}")
    RB = O + 16
    for s in range(3):
        for q in range(4):
            a(f"ds_read_b128 {vr(RB+16*s+4*q,4)}, v7 offset:{4096*s+1024*q}")
    a(f"v_permlane32_swap_b32 v{T2}, v{T2+1}")
    a(f"v_permlane32_swap_b32 v{T2+8}, v{NM}")
    a("s_waitcnt lgkmcnt(12)")
    a(f"v_min3_f32 v{MX}, v{NM}, v{LM+1}, v{LM+3}")
    a(f"v_min_f32 v{MX}, v{MX}, v{LM+5}")
    a(f"v_sub_f32 v{S}, v{MX}, v{NM}")
    for s in range(3):
        a(f"v_sub_f32 v{S+2+2*s}, v{MX}, v{LM+2*s+1}")
    for s in range(4):
        a(f"v_exp_f32 v{S+2*s}, v{S+2*s}")
    a(f"v_mul_f32 v{MX+1}, v{S}, v{T2+1}")
    for s in range(3):
        a(f"v_fmac_f32 v{MX+1}, v{S+2+2*s}, v{LM+2*s}")
    a(f"v_rcp_f32 v{MX+1}, v{MX+1}")
    a("s_nop 0")
    for s in range(4):
        a(f"v_mul_f32 v{S+2*s}, v{S+2*s}, v{MX+1}")
    for r in range(0, 16, 2):
        a(f"v_pk_mul_f32 {vr(O+r,2)}, {vr(O+r,2)}, {vr(S,2)} op_sel_hi:[1,0]")
    for s in range(3):
        a(f"s_waitcnt lgkmcnt({8-4*s})")
        for r in range(0, 16, 2):
            a(f"v_pk_fma_f32 {vr(O+r,2)}, {vr(RB+16*s+r,2)}, {vr(S+2+2*s,2)}, {vr(O+r,2)} op_sel_hi:[1,0,1]")
    for r in range(0, 16, 2):
        a(f"v_cvt_pk_bf16_f32 v{P+r//2}, v{O+r}, v{O+r+1}")
    a("s_mov_b32 exec_lo, 0")
    a(f"v_mov_b32 v{P+6}, 0")
    a(f"v_mov_b32 v{P+7}, 0")
    a("s_mov_b32 exec_lo, -1")
    a.nvm = 0
    for f in range(2):
        tagos = a.vm(f"buffer_store_dwordx4 {vr(P+4*f,4)}, v9, s[20:23], s43 offen offset:{1024*f}{SC}")
    a.stamp(9)
    a("s_barrier")
    late_check(a, 248, 14, 15)
    WB, GG, BB = KB, Q, Q + 16
    NPRE = int(os.environ.get("NPRE", "4"))
    def wo_load(i):
        for x in range(2):
            a.vm(f"buffer_load_dwordx4 {vr(WB+8*i+4*x,4)}, v{2 if i<4 else 10}, s[20:23], s{36+x} offen offset:{1024*(i&3)}{SC}")
    for i in range(NPRE): wo_load(i)
    a("s_lshl_b32 s52, s47, 9")
    a("s_lshl_b32 s33, s24, 7")
    a("s_add_u32 s52, s52, s33")
    a(f"s_add_u32 s52, s52, {F_O}")
    a.wait_vm(tagos)
    cnt_add(a, 252, "s51")
    a("s_cmp_ge_u32 s32, 28")
    a("s_cbranch_scc1 L_END")
    for i in range(NPRE, 8): wo_load(i)
    for i in range(4):
        a.vm(f"buffer_load_dwordx4 {vr(GG+4*i,4)}, v12, s[20:23], s38 offen offset:{16*i}{SC}")
    for i in range(2):
        a.vm(f"buffer_load_dwordx4 {vr(BB+4*i,4)}, v3, s[20:23], s39 offen offset:{512*i}{SC}")
    cnt_load(a, 250, "s52")
    a("s_lshl_b32 s33, s24, 13")
    a(f"s_add_u32 s33, s33, {OF}")
    a("s_lshl_b32 s36, s49, 15")
    a("s_add_u32 s36, s36, s33")
    a("s_xor_b32 s37, s49, 1")
    a("s_lshl_b32 s37, s37, 15")
    a("s_add_u32 s37, s37, s33")
    a.srd(12, P_OUT, X_BYTES)
    a("v_mul_u32_u24 v12, 14336, v11")
    a("v_lshl_add_u32 v12, v13, 1, v12")
    a("s_mul_i32 s44, s49, 28672")
    a("s_lshl_b32 s33, s50, 6")
    a("s_add_u32 s44, s44, s33")
    for i in range(1, 4):
        a(f"s_add_u32 s{44+i}, s44, {3584*i}")
    a("s_waitcnt vmcnt(0)")
    BU = 232
    for i in range(8):
        a(f"v_lshlrev_b32 v{BU+2*i}, 16, v{BB+i}")
        a(f"v_and_b32 v{BU+2*i+1}, 0xffff0000, v{BB+i}")
    cnt_wait(a, 250, "s52", 8)
    a.stamp(10)
    AF = O
    tags = []
    for i in range(8):
        for x in range(2):
            t = a.vm(f"buffer_load_dwordx4 {vr(AF+8*i+4*x,4)}, v{2 if i<4 else 10}, s[20:23], s{36+x} offen offset:{1024*(i&3)}{SC}")
        tags.append(t)
    AC = [BB, S, S + 16, P]
    for i in range(8):
        a.wait_vm(tags[i])
        for t in (3, 2, 1, 0):
            sa, sb = t >> 1, t & 1
            c = "0" if i == 0 else vr(AC[t], 16)
            a(f"{MF32} {vr(AC[t],16)}, {vr(AF+8*i+4*sa,4)}, {vr(WB+8*i+4*sb,4)}, {c}")
    a.nop(9)
    a.stamp(11)
    if "dE" in EXP: a(f"s_sleep {DLY}")
    for t in (3, 2, 1):
        for q in range(4):
            a(f"ds_write_b128 v{3+t}, {vr(AC[t]+4*q,4)} offset:{1024*q}")
    for r in range(0, 16, 2):
        a(f"v_pk_add_f32 {vr(AC[0]+r,2)}, {vr(AC[0]+r,2)}, {vr(BU+r,2)} neg_lo:[0,1] neg_hi:[0,1]")
    a("s_waitcnt lgkmcnt(0)")
    a("s_barrier")
    for s in range(3):
        for q in range(4):
            a(f"ds_read_b128 {vr(AF+16*s+4*q,4)}, v7 offset:{4096*s+1024*q}")
    for s in range(3):
        a(f"s_waitcnt lgkmcnt({8-4*s})")
        for r in range(0, 16, 2):
            a(f"v_pk_add_f32 {vr(AC[0]+r,2)}, {vr(AC[0]+r,2)}, {vr(AF+16*s+r,2)}")
    for r in range(0, 16, 2):
        a(f"v_pk_fma_f32 {vr(AC[0]+r,2)}, {vr(AC[0]+r,2)}, {vr(GG+r,2)}, {vr(BU+r,2)}")
    for r in range(0, 16, 2):
        a(f"v_cvt_pk_bf16_f32 v{AF+r//2}, v{AC[0]+r}, v{AC[0]+r+1}")
    for r in range(16):
        op = "buffer_store_short_d16_hi" if r & 1 else "buffer_store_short"
        a(f"{op} v{AF+r//2}, v12, s[12:15], s{44+(r>>2)} offen offset:{896*(r&3)}{os.environ.get('OST', '')}")
    fin(a, 12)
    if "dblspan" in EXP:
        sel = os.environ.get("SELX")
        if sel:
            a(f"s_cmp_lg_u32 s31, {sel}")
            a("s_cbranch_scc1 L_END")
        a("s_memrealtime s[96:97]")
        a("s_waitcnt lgkmcnt(0)")
        a("s_sub_u32 s98, s96, s100")
        a("s_add_u32 s98, s98, s96")
        a.label("DBL")
        a("s_memrealtime s[96:97]")
        a("s_waitcnt lgkmcnt(0)")
        a("s_sub_u32 s99, s96, s98")
        a("s_cmp_lt_i32 s99, 0")
        a("s_cbranch_scc1 DBL")
    a("s_endpgm")
    a.label("A_SLOW")
    a(f"s_mov_b32 s62, {POLLMAX}")
    a.label("A_SLOW1")
    a(f"v_cmp_eq_u32 vcc, s58, v{PV_}")
    a("s_nop 1")
    a("s_and_b32 s5, vcc_lo, s63")
    a("s_cmp_eq_u32 s5, s63")
    a("s_cbranch_scc1 A_SLOW2")
    kv_poll()
    a("s_cmp_lg_u32 s5, 0")
    a("s_cbranch_scc1 A_SLOWR")
    a("s_sub_u32 s62, s62, 1")
    a("s_cbranch_scc1 A_SLOW2")
    a("s_waitcnt vmcnt(0)")
    a("s_branch A_SLOW1")
    a.label("A_SLOW2")
    a("s_or_b32 s5, s63, 128")
    a("s_branch A_SLOWR")
    a.label("A_LLOAD")
    late_load(a, 248, 14)
    a("s_branch A_LLOADR")
    a.label("A_FALLBACK")
    a("s_mov_b32 s41, -1")
    for t in range(4):
        a(f"v_mov_b32 v{MX+t}, 0xff800000")
    a("s_mov_b32 s44, 0")
    a("s_mov_b32 s45, 0")
    a("s_waitcnt vmcnt(0) lgkmcnt(0)")
    a.label("A_FBLOOP")
    for f in range(2):
        a(f"buffer_load_dwordx4 {vr(KB+4*f,4)}, v{VK0+f}, s[12:15], s44 offen{SC}")
    a("s_waitcnt vmcnt(0)")
    patch(KB)
    a("s_nop 1")
    for t in range(4):
        a(f"{MF32} {vr(O+16*t,16)}, {vr(KB,4)}, {vr(Q+8*t,4)}, 0")
        a(f"{MF32} {vr(O+16*t,16)}, {vr(KB+4,4)}, {vr(Q+8*t+4,4)}, {vr(O+16*t,16)}")
    a.nop(16)
    for i in range(8):
        for t in range(4):
            a(f"v_max3_f32 v{MX+t}, v{MX+t}, v{O+16*t+2*i}, v{O+16*t+2*i+1}")
    a(f"s_addk_i32 s44, {KTS}")
    a("s_add_u32 s45, s45, 1")
    a("s_and_b32 s4, s45, 3")
    a("s_cbranch_scc1 A_FBLOOP")
    a(f"s_add_u32 s44, s44, {12*KTS}")
    a("s_cmp_lt_u32 s45, 16")
    a("s_cbranch_scc1 A_FBLOOP")
    for t in range(4):
        a(f"v_mov_b32 v{T2+t}, v{MX+t}")
    a("s_nop 1")
    for t in range(4):
        a(f"v_permlane32_swap_b32 v{T2+t}, v{MX+t}")
    for t in range(4):
        a(f"v_max_f32 v{MX+t}, v{MX+t}, v{T2+t}")
    a("s_mov_b32 s59, 0")
    a("s_mov_b32 s63, 14")
    a("s_movk_i32 s5, 0x8e")
    a(f"v_mov_b32 v{PV_}, s58")
    for r in range(8):
        a(f"v_mov_b32 v{VB+24+r}, 0")
    first_loads()
    zero_acc()
    a("s_waitcnt vmcnt(0)")
    patch(KB)
    a("s_branch A_SETMAX")

def gen_B(a):
    a.label("L_B")
    a(f"s_setprio {PB}")
    a.stamp(1)
    if "noB" in EXP: a("s_endpgm")
    if "dB" in EXP:
        a("s_waitcnt vmcnt(0)"); a(f"s_sleep {DLY}")
    TS = 272; TW = 64 * TS
    UB = 4 * TW
    US = 4608
    YB, XB, KACC, FR, CT = 16, 80, 136, 152, 216
    Z1, Z256, TM = 224, 226, 226
    a(f"s_mul_i32 s29, s24, {TW}")
    a("s_mov_b32 m0, s29")
    a("v_mov_b32 v15, 0x3f80")
    a(f"ds_write_addtid_b32 v15 offset:{32*TS}")
    a("v_and_b32 v12, 31, v1")
    a(f"v_mul_u32_u24 v12, {TS}, v12")
    a("v_lshrrev_b32 v13, 5, v1")
    a("v_lshl_add_u32 v12, v13, 4, v12")
    a("v_add_u32 v240, s29, v12")
    for r in range(16):
        a(f"v_mov_b32 v{KACC+r}, 0")
    a(f"v_mul_u32_u24 v12, {US-512}, v13")
    a("v_add_u32 v12, v12, v2")
    a(f"v_add_u32 v12, {UB}, v12")
    a(f"ds_write_b128 v12, {vr(KACC,4)}")
    a("s_and_b32 s42, s2, 31")
    a("s_lshl_b32 s42, s42, 7")
    a(f"s_add_u32 s42, s42, {F_XT}")
    a("v_lshrrev_b32 v12, 1, v1")
    a("v_and_b32 v13, 1, v1")
    a(f"v_mul_u32_u24 v3, {XTS}, v12")
    a("v_lshl_add_u32 v3, v13, 4, v3")
    a(f"s_mul_i32 s43, s24, {64*XTS}")
    a("s_mul_i32 s33, s31, 896")
    a("s_add_u32 s43, s43, s33")
    a("s_lshl_b32 s33, s39, 4")
    a("s_add_u32 s43, s43, s33")
    a(f"s_add_u32 s43, s43, {XT}")
    a(f"s_add_u32 s44, s43, {32*XTS}")
    a(f"v_mul_u32_u24 v241, {US}, v13")
    a("v_lshl_add_u32 v241, v12, 4, v241")
    a("s_lshl_b32 s33, s24, 10")
    a(f"s_add_u32 s33, s33, {UB + 512}")
    a("v_add_u32 v241, s33, v241")
    a("s_waitcnt lgkmcnt(0)")
    a("s_and_b32 s33, s26, 1")
    a("s_lshl_b32 s33, s33, 4")
    a("s_lshr_b32 s28, s28, s33")
    a("s_lshl_b32 s28, s28, 16")
    a("s_lshr_b32 s38, s38, s33")
    a("s_lshl_b32 s38, s38, 16")
    hi = float(np.float32(LOG2E)); lo = float(np.float32(LOG2E - hi))
    a(f"v_mov_b32 v13, {hex(f2u(hi))}")
    a("v_mul_f32 v14, s28, v13")
    a("v_fma_f32 v13, s28, v13, -v14")
    a(f"v_mov_b32 v15, {hex(f2u(lo))}")
    a("v_fmac_f32 v13, s28, v15")
    a("v_exp_f32 v14, v14")
    a(f"v_mul_f32 v13, {hex(f2u(math.log(2)))}, v13")
    a("v_fmac_f32 v14, v14, v13")
    a("v_cvt_pk_bf16_f32 v14, v14, v14")
    a("v_and_b32 v14, 0xffff0000, v14")
    a(f"s_mov_b32 s48, {hex(f2u(LOG2E))}")
    a(f"s_mov_b32 s49, {hex(f2u(1/(2*math.pi)))}")
    a("s_mov_b32 s30, 2")
    a("s_cmp_ge_u32 s2, 2")
    a("s_cbranch_scc1 B_NORDY")
    a("v_mov_b32 v4, 1")
    a("s_setprio 3")
    a("s_waitcnt vmcnt(6)")
    a("s_mov_b64 exec, 1")
    a(f"global_atomic_add v{VZ}, v4, {sr(P_DBG,2)} sc1")
    a("s_mov_b64 exec, -1")
    a(f"s_setprio {PB}")
    a.label("B_NORDY")
    a("s_waitcnt vmcnt(4)")
    a.stamp(2)
    a.label("B_PASS")
    a("s_cmp_eq_u32 s30, 2")
    for i in range(2):
        a(f"v_and_b32 v{8+i}, 0xffff0000, v{RAW+i}")
    for i in range(2):
        a(f"v_lshlrev_b32 v{RAW+i}, 16, v{RAW+i}")
    r1 = [0, 0, 2, 4, 4, 4, 6, 8, 8]
    P_ = {}
    for r in range(9): P_[(0, r)] = r; P_[(1, r)] = 256 + r1[r]
    for i, e in enumerate((0, 4, 8)): P_[(0, 9 + i)] = 512 + e; P_[(1, 9 + i)] = 768 + e
    for i, e in enumerate((0, 8)):
        P_[(0, 12 + i)] = 1024 + e; P_[(1, 12 + i)] = 1280 + e; P_[(0, 14 + i)] = 1536 + e; P_[(1, 14 + i)] = 1792 + e
    plist = sorted(set(P_.values()))
    xreg = {p: XB + 2 * i for i, p in enumerate(plist)}
    rows_of = {p: [8 * (r >> 2) + 4 * h + (r & 3) for (h, r), pp in P_.items() if pp == p] for p in plist}
    yreg = {j: YB + 2 * j for j in range(1, 32)}
    a("v_pk_mul_f32 v[8:9], v[8:9], v[14:15] op_sel_hi:[1,0]")
    a("v_pk_mul_f32 v[8:9], v[8:9], s[48:49]")
    a(f"v_mul_f32 v{TM+2}, 0x41000000, v8")
    a(f"v_mul_f32 v{TM+3}, 0x41000000, v9")
    a(f"v_mul_f32 v{TM+4}, 0x43800000, v8")
    a(f"v_mul_f32 v{TM+5}, 0x43800000, v9")
    def kmf(lo, hi):
        for ks in range(lo, hi):
            a(f"{MF32} {vr(KACC,16)}, {vr(FR+8*ks,4)}, {vr(FR+8*ks+4,4)}, {vr(KACC,16)}")
    def make_w():
        a("s_waitcnt vmcnt(0)")
        for i in range(2, 6):
            a(f"v_and_b32 v{8+i}, 0xffff0000, v{RAW+i}")
        for i in range(2, 6):
            a(f"v_lshlrev_b32 v{RAW+i}, 16, v{RAW+i}")
        cmul(a, xreg[0], 12, 10, 0)
        cmul(a, xreg[0], 12, 10, 1)
        a(f"v_pk_mul_f32 {vr(xreg[0],2)}, {vr(xreg[0],2)}, v[14:15] op_sel_hi:[1,0]")
    anchors = [(TM + 2, yreg[1]), (8, Z1), (TM + 4, Z256)]
    for s_, d_ in anchors:
        a(f"v_fract_f32 v{s_+1}, v{s_+1}")
        a(f"v_exp_f32 v{s_}, v{s_}")
    for s_, d_ in anchors:
        a(f"v_cos_f32 v{d_}, v{s_+1}")
        a(f"v_sin_f32 v{d_+1}, v{s_+1}")
    a("s_nop 0")
    for s_, d_ in anchors:
        a(f"v_pk_mul_f32 {vr(d_,2)}, {vr(d_,2)}, {vr(s_,2)} op_sel_hi:[1,0]")
    ops = []
    ops += [(("Y", 2), ("Y", 1), ("Y", 1)), (("Y", 3), ("Y", 2), ("Y", 1)), (("Y", 4), ("Y", 2), ("Y", 2))]
    ops += [(("Y", 4 + k), ("Y", 4), ("Y", k)) for k in (4, 1, 2, 3)]
    ops += [(("Y", 8 + k), ("Y", 8), ("Y", k)) for k in (8, 1, 2, 3, 4, 5, 6, 7)]
    ops += [(("Y", 16 + k), ("Y", 16), ("Y", k)) for k in range(1, 16)]
    xo = [(("X", 8), ("X", 0), ("Y", 1))]
    xo += [(("X", e + 1), ("X", e), ("Z", 1)) for e in range(7)]
    for base, es in ((256, (0, 8, 4, 2, 6)), (512, (0, 8, 4)), (768, (0, 8, 4)), (1024, (0, 8)), (1280, (0, 8)), (1536, (0, 8)), (1792, (0, 8))):
        xo += [(("X", base + e), ("X", base - 256 + e), ("Z", 256)) for e in es]
    def reg(n):
        return {"Y": yreg, "X": xreg, "Z": {1: Z1, 256: Z256}}[n[0]][n[1]]
    done = {("Y", 1), ("Z", 1), ("Z", 256)}
    XAT = int(os.environ.get("XAT", "6"))
    allops = xo + ops
    memo = {}
    def height(n):
        if n in memo: return memo[n]
        h = 0
        for (d, x, y) in allops:
            if x == n or y == n: h = max(h, 1 + height(d))
        memo[n] = h
        return h
    pending = sorted(allops, key=lambda o: -height(o[0]))
    towrite = [("Y", 1)]
    ct = [0]
    WB = int(os.environ.get("WB", "16"))
    wq = []
    def flush_w():
        for ins in wq: a(ins)
        wq.clear()
    def emit_write(n):
        ring = list(range(CT, CT + 8)) + list(range(XRW, XRW + 8))
        assert WB <= 16
        t = ring[ct[0] % 16]; ct[0] += 1
        r = reg(n)
        if n[0] == "Y":
            a(f"v_cvt_pk_bf16_f32 v{t}, v{r}, v{r+1}")
            wq.append(f"ds_write_addtid_b32 v{t} offset:{(32+n[1])*TS}")
        else:
            a(f"v_cvt_pk_bf16_f32 v{t}, v{r}, -v{r+1}")
            for m in rows_of[n[1]]:
                wq.append(f"ds_write_addtid_b32 v{t} offset:{m*TS}")
        if len(wq) >= WB: flush_w()
    nb = 0
    UL = XRW
    PB0 = int(os.environ.get('PB0', '9')); PB1 = int(os.environ.get('PB1', '15'))
    while pending:
        batch = [o for o in pending if o[1] in done and o[2] in done][:4]
        for o in batch: pending.remove(o)
        for (d, x, y) in batch: cmul(a, reg(d), reg(x), reg(y), 0)
        w = towrite; towrite = []
        for n in w[:2]: emit_write(n)
        for (d, x, y) in batch: cmul(a, reg(d), reg(x), reg(y), 1)
        for n in w[2:]: emit_write(n)
        for (d, x, y) in batch:
            done.add(d); towrite.append(d)
        nb += 1
        if nb <= 4:
            a(f"s_cbranch_scc1 B_M{nb}")
            if nb == 1: a("s_waitcnt lgkmcnt(0)")
            kmf(2 * nb - 2, 2 * nb)
            a.label(f"B_M{nb}")
        if nb == XAT:
            make_w()
            done.add(("X", 0)); towrite.append(("X", 0))
        if nb == PB0:
            a("s_cbranch_scc1 B_P1")
            a("s_setprio 3")
            nonce_issue(a, 250)
            a(f"s_setprio {PB}")
            a.label("B_P1")
        if nb == PB1:
            a("s_lshl_b32 s33, s24, 1")
            a("s_add_u32 s33, s33, s30")
            a("s_cmp_lg_u32 s33, 1")
            a("s_cbranch_scc1 B_P3")
            a("s_waitcnt vmcnt(0)")
            nonce_take(a, 250)
            a("s_setprio 3")
            cnt_load(a, 250, "s42")
            a(f"s_setprio {PB}")
            a.label("B_P3")
    for n in towrite: emit_write(n)
    flush_w()
    for ks in range(8):
        a(f"ds_read_b128 {vr(FR+8*ks,4)}, v240 offset:{32*ks}")
        a(f"ds_read_b128 {vr(FR+8*ks+4,4)}, v240 offset:{32*TS+32*ks}")
    a("s_sub_u32 s30, s30, 1")
    a("s_cmp_lg_u32 s30, 0")
    a("s_cbranch_scc1 B_PASS")
    print("K-gen batches", nb, file=sys.stderr)
    for ks in range(8):
        a(f"s_waitcnt lgkmcnt({14-2*ks})")
        kmf(ks, ks + 1)
    a.stamp(3)
    a("v_add_u32 v242, s29, v2")
    a("s_xor_b32 s33, s24, 1")
    a(f"s_mul_i32 s33, s33, {TW}")
    a("v_add_u32 v243, s33, v2")
    a("s_and_b32 s33, s24, 2")
    a(f"s_mul_i32 s48, s33, {TW}")
    a("s_add_u32 s48, s48, 4096")
    a("s_mul_i32 s33, s27, 4160")
    a("s_add_u32 s49, s33, s48")
    a("v_sub_u32 v6, 63, v1")
    a("v_lshlrev_b32 v6, 4, v6")
    a("v_add_u32 v6, s49, v6")
    a("v_and_b32 v7, 1, v1")
    a("v_cmp_eq_u32 vcc, 1, v7")
    for q in range(4):
        a(f"ds_write_b128 v242, {vr(KACC+4*q,4)} offset:{1024*q}")
    a("v_lshrrev_b32 v4, 4, v1")
    a("v_and_b32 v5, 15, v1")
    a("v_add_u32 v7, 1, v5")
    a("v_lshrrev_b32 v7, 1, v7")
    a("v_lshlrev_b32 v8, 2, v4")
    a("v_sub_u32 v8, v8, v7")
    a("v_and_b32 v7, 1, v5")
    a("v_mul_u32_u24 v7, 1040, v7")
    a("v_sub_u32 v8, v8, v7")
    a(f"v_add_u32 v8, {1016 + 1040 - 48 - 128}, v8")
    a("v_lshlrev_b32 v8, 2, v8")
    a("s_lshl_b32 s33, s27, 8")
    a("s_sub_u32 s33, s48, s33")
    a("v_add_u32 v8, s33, v8")
    for i in range(1, 4):
        a(f"v_subrev_u32 v{8+i}, {1024*i}, v8")
    a(f"v_mov_b32 v251, {UB + 2 * US}")
    a("s_cmp_lg_u32 s24, 0")
    a("s_cbranch_scc1 B_NOPOLL")
    a("s_waitcnt vmcnt(0)")
    a("s_mov_b64 exec, 1")
    a("ds_write_b32 v251, v250")
    a("s_mov_b64 exec, -1")
    a.label("B_NOPOLL")
    a("s_waitcnt lgkmcnt(0)")
    a("s_barrier")
    a("ds_read_b32 v252, v251")
    for q in range(4):
        a(f"ds_read_b128 {vr(FR+4*q,4)}, v243 offset:{1024*q}")
    def u_loads():
        a("s_setprio 3")
        for i in range(2):
            a(f"buffer_load_dwordx4 {vr(UL+4*i,4)}, v3, s[20:23], s{43+i} offen{SC}")
        a(f"s_setprio {PC}")
    a("s_waitcnt lgkmcnt(4)")
    a("v_readfirstlane_b32 s45, v252")
    a("s_nop 1")
    a("s_cmp_lg_u32 s45, 32")
    a("s_cbranch_scc1 B_NOU")
    u_loads()
    a.label("B_NOU")
    a("s_lshr_b32 s33, s24, 1")
    a(f"s_mul_i32 s36, s33, {US}")
    a(f"s_add_u32 s36, s36, {UB + 512}")
    a("v_lshlrev_b32 v12, 5, v5")
    a("v_lshl_add_u32 v13, v4, 3, v12")
    a("v_lshl_add_u32 v12, v4, 4, v12")
    a("s_lshl_b32 s33, s27, 8")
    a("s_sub_u32 s33, s36, s33")
    a(f"s_sub_u32 s33, s33, {32 + 192}")
    a("v_add_u32 v12, s33, v12")
    a("s_lshl_b32 s33, s27, 11")
    a("s_add_u32 s33, s33, s36")
    a("v_add_u32 v13, s33, v13")
    a("s_lshl_b32 s40, s26, 1")
    a("s_add_u32 s40, s40, s27")
    a("s_lshl_b32 s41, s40, 11")
    a(f"s_add_u32 s41, s41, {BT}")
    a("s_lshr_b32 s40, s26, 5")
    a("s_lshl_b32 s40, s40, 7")
    a(f"s_add_u32 s40, s40, {F_B}")
    a("s_waitcnt lgkmcnt(0)")
    for r in range(0, 16, 2):
        a(f"v_pk_add_f32 {vr(KACC+r,2)}, {vr(KACC+r,2)}, {vr(FR+r,2)}")
    K_ = KACC; W_ = FR + 16
    a(f"v_cndmask_b32 v{CT}, v{K_+12}, v{K_+13}, vcc")
    a(f"v_cndmask_b32 v{CT+1}, v{K_+14}, v{K_+15}, vcc")
    for i in range(4):
        a(f"v_mov_b32 v{W_+16+i}, 0")
    def pk(d, lo_, hi_): a(f"v_cvt_pk_bf16_f32 v{d}, v{lo_}, v{hi_}")
    a("s_cmp_eq_u32 s27, 1")
    a("s_cbranch_scc1 B_ODD")
    A_, B_, C_ = K_ + 9, K_ + 10, K_ + 11
    for i in range(4): pk(W_ + i, K_ + 7 - 2 * i, K_ + 6 - 2 * i)
    for i, (x, y) in enumerate(((C_, C_), (B_, B_), (B_, A_), (A_, A_))): pk(W_ + 4 + i, x, y)
    for sl in range(2):
        A2, C2, M2 = K_ + 12 + 2 * sl, K_ + 13 + 2 * sl, CT + sl
        for i, (x, y) in enumerate(((C2, C2), (C2, M2), (A2, A2), (A2, A2))): pk(W_ + 8 + 4 * sl + i, x, y)
    a("s_branch B_IMG")
    a.label("B_ODD")
    for i in range(4): pk(W_ + i, K_ + 8 - 2 * i, K_ + 7 - 2 * i)
    for i, (x, y) in enumerate(((C_, C_), (C_, B_), (B_, B_), (A_, A_))): pk(W_ + 4 + i, x, y)
    for sl in range(2):
        A2, C2, M2 = K_ + 12 + 2 * sl, K_ + 13 + 2 * sl, CT + sl
        for i, (x, y) in enumerate(((C2, C2), (C2, C2), (M2, A2), (A2, A2))): pk(W_ + 8 + 4 * sl + i, x, y)
    a("s_mov_b64 exec, 1")
    pk(W_ + 16, K_, VZ)
    a("s_mov_b64 exec, -1")
    a.label("B_IMG")
    for sl in range(4):
        a(f"ds_write_b128 v6, {vr(W_+4*sl,4)} offset:{(3-sl)*1024}")
    a("v_add_u32 v7, s49, v2")
    a("s_mov_b64 exec, 3")
    a(f"ds_write_b128 v7, {vr(W_+16,4)} offset:4096")
    a("s_mov_b64 exec, -1")
    a("s_cmp_eq_u32 s45, 32")
    a("s_cbranch_scc1 B_UOK")
    a("s_cmp_lg_u32 s24, 0")
    a("s_cbranch_scc1 B_NOPOLL2")
    cnt_wait(a, 250, "s42", 32, 3)
    a.label("B_NOPOLL2")
    a("s_barrier")
    u_loads()
    a.label("B_UOK")
    a.stamp(7)
    a("s_waitcnt vmcnt(0)")
    for i in range(2):
        a(f"ds_write_b128 v241, {vr(UL+4*i,4)} offset:{512*i}")
    a("s_waitcnt lgkmcnt(0)")
    a("s_barrier")
    a.stamp(4)
    a(f"s_setprio {os.environ.get('PV', '0')}")
    FB, CAC = 16, 144
    a.nds = 0
    tg = {}
    def loadstep(stp):
        b = FB + 64 * (stp & 1)
        for i in range(8):
            o = 128 * (1 - (i & 1)) + 16 * (3 - stp)
            a.ds(f"ds_read2_b32 {vr(b+4*i,2)}, v{8+(i>>1)} offset0:{o} offset1:{o+1}")
            a.ds(f"ds_read2_b32 {vr(b+4*i+2,2)}, v{8+(i>>1)} offset0:{o+2} offset1:{o+3}")
            tg[(stp, i)] = a.ds(f"ds_read_b128 {vr(b+32+4*i,4)}, v12 offset:{512*i+64*(3-stp)}")
    loadstep(0)
    for stp in range(4):
        b = FB + 64 * (stp & 1)
        order = sorted([(i, tp) for i in range(8) for tp in range(8 - i)], key=lambda x: (max(x), x[0] + x[1]))
        nxt = []
        if stp < 3:
            b2 = FB + 64 * ((stp + 1) & 1)
            for i in range(8):
                o = 128 * (1 - (i & 1)) + 16 * (3 - stp - 1)
                nxt.append((None, f"ds_read2_b32 {vr(b2+4*i,2)}, v{8+(i>>1)} offset0:{o} offset1:{o+1}"))
                nxt.append((None, f"ds_read2_b32 {vr(b2+4*i+2,2)}, v{8+(i>>1)} offset0:{o+2} offset1:{o+3}"))
                nxt.append(((stp + 1, i), f"ds_read_b128 {vr(b2+32+4*i,4)}, v12 offset:{512*i+64*(3-stp-1)}"))
        waited = -1
        seen = set()
        for k, (i, tp) in enumerate(order):
            if max(i, tp) > waited:
                waited = max(i, tp)
                a.wait_ds(tg[(stp, waited)])
            t = i + tp
            c = vr(CAC + 4 * t, 4)
            if stp == 0 and t not in seen:
                c = "0"; seen.add(t)
            a(f"{MF16} {vr(CAC+4*t,4)}, {vr(b+4*i,4)}, {vr(b+32+4*tp,4)}, {c}")
            if k >= 8 and nxt:
                key, ins = nxt.pop(0)
                r = a.ds(ins)
                if key: tg[key] = r
        assert not nxt
    a.stamp(5)
    a(f"s_setprio {os.environ.get('PT', '2')}")
    RR = 16
    for tl in range(4):
        a(f"ds_read_b64 {vr(80+2*tl,2)}, v13 offset:{512*tl}")
    a("s_cmp_eq_u32 s27, 1")
    a.nop(3)
    a("s_cbranch_scc1 B_R1")
    for par in range(2):
        if par: a.label("B_R1")
        for q in range(4):
            a(f"ds_write_b128 v242, {vr(CAC+16*(1-par)+4*q,4)} offset:{1024*q}")
        a("s_waitcnt lgkmcnt(0)")
        a("s_barrier")
        for q in range(4):
            a(f"ds_read_b128 {vr(RR+4*q,4)}, v243 offset:{1024*q}")
        a("s_waitcnt lgkmcnt(0)")
        for r in range(0, 16, 2):
            a(f"v_pk_add_f32 {vr(RR+r,2)}, {vr(RR+r,2)}, {vr(CAC+16*par+r,2)}")
        if not par: a("s_branch B_R2")
    a.label("B_R2")
    for t in range(4):
        for i in range(2):
            a(f"v_lshlrev_b32 v{88+2*i}, 16, v{80+2*t+i}")
            a(f"v_and_b32 v{88+2*i+1}, 0xffff0000, v{80+2*t+i}")
        for r in range(4):
            a(f"v_fmac_f32 v{RR+4*t+r}, s38, v{88+r}")
        for i in range(2):
            a(f"v_cvt_pk_bf16_f32 v{80+2*t+i}, v{RR+4*t+2*i}, v{RR+4*t+2*i+1}")
    a("s_nop 1")
    for p in range(2):
        for i in range(2):
            a(f"v_permlane16_swap_b32 v{80+4*p+i}, v{80+4*p+2+i}")
    for p in range(2):
        a(f"buffer_store_dwordx4 {vr(80+4*p,4)}, v2, s[20:23], s41 offen offset:{1024*p}{SC}")
    a("s_waitcnt vmcnt(0)")
    cnt_add(a, 4, "s40")
    fin(a, 6)
    a("s_endpgm")

def gen_C(a):
    a.label("L_C")
    if "dC" in EXP: a(f"s_sleep {DLY}")
    a("s_setprio 3")
    R, U, GU, GW = 16, 80, 144, 160
    a("s_sub_u32 s25, s2, 224")
    a("s_lshl_b32 s26, s31, 2")
    a("s_sub_u32 s33, s32, 28")
    a("s_add_u32 s26, s26, s33")
    a("s_lshl_b32 s26, s26, 2")
    a("s_add_u32 s26, s26, s24")
    a("s_mul_i32 s36, s26, 14336")
    for i in range(1, 4):
        a(f"s_add_u32 s{36+i}, s36, {3584*i}")
    a("s_add_u32 s45, s25, s24")
    a("s_waitcnt lgkmcnt(0)")
    a.srd(20, P_WS, WS_SIZE)
    a.srd(12, P_X, X_BYTES)
    for r in range(16):
        a(f"buffer_load_dwordx4 {vr(R+4*r,4)}, v2, s[12:15], s{36+(r>>2)} offen offset:{896*(r&3)}")
    a.srd(16, P_GW, 896)
    a(f"buffer_load_dwordx4 {vr(GW,4)}, v2, s[16:19], 0 offen")
    a("v_mov_b32 v4, 1")
    a(f"s_mul_i32 s36, s26, {2*XTS}")
    a(f"s_add_u32 s36, s36, {XT}")
    a("s_add_u32 s37, s36, 3584")
    a(f"s_add_u32 s38, s36, {XTS}")
    a("s_add_u32 s39, s38, 3584")
    a("s_mov_b32 s46, 0x05040100")
    a("s_mov_b32 s47, 0x07060302")
    a("s_mov_b32 exec_hi, 0xffffff")
    for hb in range(2):
        a(f"s_waitcnt vmcnt({9 if hb == 0 else 8})")
        for cc in range(8):
            i, e = cc >> 1, cc & 1
            u = U + 32 * hb + 4 * cc
            for q in range(4):
                a(f"v_perm_b32 v{u+q}, v{R+32*hb+4*(2*q+1)+i}, v{R+32*hb+4*(2*q)+i}, s{46+e}")
            a(f"buffer_store_dwordx4 {vr(u,4)}, v2, s[20:23], s{36+2*hb+(cc>>2)} offen offset:{896*(cc&3)}{SC}")
    a.stamp(1)
    a("s_mov_b64 exec, -1")
    nonce_issue(a, 250)
    a("v_lshlrev_b32 v5, 7, v1")
    a(f"s_mov_b32 s41, {F_XT}")
    for r in range(16):
        a(f"v_mov_b32 v{GU+r}, 0")
    a("s_mov_b32 exec_hi, 0xffffff")
    for i in range(4):
        for r in range(16):
            a(f"v_dot2c_f32_bf16 v{GU+r}, v{R+4*r+i}, v{GW+i}")
    a("s_mov_b64 exec, -1")
    a("s_waitcnt vmcnt(0)")
    nonce_take(a, 250)
    a("s_barrier")
    a("s_cmp_lg_u32 s24, 0")
    a("s_cbranch_scc1 C_NOADD")
    a("s_mov_b32 exec_hi, 0")
    a("buffer_atomic_add v4, v5, s[20:23], s41 offen sc1")
    a("s_mov_b64 exec, -1")
    a.label("C_NOADD")
    a.stamp(2)
    a("s_setprio 1")
    a("s_min_u32 s45, s25, 15")
    a("s_mul_i32 s33, s45, 25088")
    a("s_mul_i32 s34, s24, 7168")
    a("s_add_u32 s33, s33, s34")
    a("v_add_u32 v3, 4096, v2")
    a.srd(12, P_WO, 448 * 896)
    a("s_mov_b32 m0, s34")
    a("s_nop 0")
    for i in range(4):
        a(f"buffer_load_dwordx4 v2, s[12:15], s33 offen offset:{1024*i} lds")
    a("s_add_u32 m0, s34, 4096")
    a("s_nop 0")
    for i in range(3):
        a(f"buffer_load_dwordx4 v3, s[12:15], s33 offen offset:{1024*i} lds")
    for sh in ("row_shr:1", "row_shr:2", "row_shr:4", "row_shr:8"):
        for r in range(16):
            a(f"v_add_f32_dpp v{GU+r}, v{GU+r}, v{GU+r} {sh} row_mask:0xf bank_mask:0xf bound_ctrl:0")
    for r in range(16):
        a(f"v_add_f32_dpp v{GU+r}, v{GU+r}, v{GU+r} row_bcast:15 row_mask:0xa bank_mask:0xf")
    for r in range(16):
        a(f"v_add_f32_dpp v{GU+r}, v{GU+r}, v{GU+r} row_bcast:31 row_mask:0xc bank_mask:0xf")
    for op in (f"v_mul_f32 vX, {hex(f2u(-LOG2E))}, vX", "v_exp_f32 vX, vX", "v_add_f32 vX, 1.0, vX", "v_rcp_f32 vX, vX"):
        for r in range(16):
            a(op.replace("vX", f"v{GU+r}"))
    a("s_lshl_b32 s35, s26, 6")
    a(f"s_add_u32 s35, s35, {GO}")
    a("s_lshr_b32 s37, s26, 1")
    a("s_lshl_b32 s37, s37, 7")
    a(f"s_add_u32 s37, s37, {F_G}")
    a("s_mov_b32 exec_lo, 0")
    a("s_mov_b32 exec_hi, 0x80000000")
    for i in range(4):
        a(f"buffer_store_dwordx4 {vr(GU+4*i,4)}, v{VZ}, s[20:23], s35 offen offset:{16*i}{SC}")
    a("s_mov_b64 exec, -1")
    a("v_lshrrev_b32 v15, 5, v1")
    a("v_bfe_u32 v13, v1, 2, 2")
    a("v_lshl_add_u32 v13, v15, 2, v13")
    a("v_mul_u32_u24 v13, 896, v13")
    a("v_bfe_u32 v14, v1, 4, 1")
    a("v_lshl_add_u32 v13, v14, 5, v13")
    a("v_and_b32 v14, 3, v1")
    a("v_lshl_add_u32 v12, v14, 3, v13")
    a("s_lshr_b32 s49, s24, 1")
    a("s_mul_i32 s36, s49, 14336")
    a("s_mul_i32 s38, s27, 448")
    a("s_add_u32 s36, s36, s38")
    a("v_add_u32 v12, s36, v12")
    a(f"s_mul_i32 s38, s27, {7*32768}")
    a("s_lshl_b32 s39, s45, 1")
    a("s_add_u32 s39, s39, s49")
    a("s_lshl_b32 s39, s39, 10")
    a("s_add_u32 s38, s38, s39")
    a(f"s_add_u32 s38, s38, {WOF}")
    a("s_lshr_b32 s40, s25, 2")
    a("s_lshl_b32 s40, s40, 7")
    a(f"s_add_u32 s40, s40, {F_WO}")
    a("s_waitcnt vmcnt(0)")
    cnt_add(a, 4, "s37")
    a("s_cmp_ge_u32 s25, 16")
    a("s_cbranch_scc1 C_END")
    a("s_barrier")
    for i in range(7):
        for hr in range(2):
            a(f"ds_read_b64_tr_b16 {vr(16+4*i+2*hr,2)}, v12 offset:{64*i+8*hr*896}")
    a("s_waitcnt lgkmcnt(0)")
    a("s_cmp_eq_u32 s49, 0")
    a("s_cbranch_scc1 C_WO2")
    a("s_mov_b32 exec_lo, 0")
    for i in range(7):
        a(f"v_mov_b32 v{16+4*i+2}, 0")
        a(f"v_mov_b32 v{16+4*i+3}, 0")
    a("s_mov_b32 exec_lo, -1")
    a.label("C_WO2")
    for i in range(7):
        a(f"buffer_store_dwordx4 {vr(16+4*i,4)}, v2, s[20:23], s38 offen{SC}")
        if i < 6: a("s_add_u32 s38, s38, 32768")
    a("s_waitcnt vmcnt(0)")
    cnt_add(a, 4, "s40")
    a.label("C_END")
    fin(a, 3)

def gen():
    a = Asm()
    gen_entry(a)
    gen_A(a)
    gen_B(a)
    gen_C(a)
    a.label("L_END")
    a("s_endpgm")
    return a.text()

HEADER = open("cdna_kernels/" + NAME + ".s.ref").read().split("; Override launch geometry")[0]

if __name__ == "__main__":
    name = NAME + "_kernel"
    out = HEADER + "; @launch grid=(512,1,1) block=(256,1,1) lds=81920\n"
    out += '.amdgcn_target "amdgcn-amd-amdhsa--gfx950"\n' + kernel_header(name) + gen() + kernel_desc(name, 256)
    dst = sys.argv[1] if len(sys.argv) > 1 else "cdna_kernels/" + NAME + ".s"
    open(dst, "w").write(out)
```

```python
import sys, math, os
import numpy as np
from dsl import *

NAME = "gated_mix__mha_block__ssm_conv_s4__prompt"
KTS = 28672; VTS = 32256; XTS = 7296
KF = 0x000000
VF = 0x200000
XT = 0x400000
GO = 0x5D0000
WOF = 0x600000
OF = 0x880000
BT = 0x690000
FL = 0x670000
F_KV = FL
F_O = FL + 256 * 128
F_XT = FL + 384 * 128
F_G = FL + 416 * 128
F_B = FL + 480 * 128
F_WO = FL + 496 * 128
WS_SIZE = 0xA90000
X_BYTES = 2048 * 896
W_BYTES = 448 * 2688
LOG2E = 1.4426950408889634
QSCALE = LOG2E * 28 ** -0.5
MF32 = "v_mfma_f32_32x32x16_bf16"
MF16 = "v_mfma_f32_16x16x32_bf16"
SC = " sc1"
NON = 60
POLLMAX = 40000
EXP = os.environ.get("EXP", "")
DLY = int(os.environ.get("DLY", "32"))
DEPTH = int(os.environ.get("DEPTH", "3"))
PA = int(os.environ.get("PA", "2")); PB = int(os.environ.get("PB", "1")); PC = int(os.environ.get("PC", "3"))
P_X, P_W, P_WO, P_PAR, P_LDT, P_DSK, P_GW, P_OUT, P_DBG, P_WS = 64, 66, 68, 72, 84, 86, 88, 90, 92, 94
VZ = 255

uid = [0]
def fin(a, idx):
    if not os.environ.get("STAMP"): return
    a("s_waitcnt vmcnt(0)")
    a.stamp(idx)
    dw = os.environ.get("DBGWG")
    if dw:
        uid[0] += 1; u = uid[0]
        a("s_lshl_b32 s96, s2, 2")
        a("s_add_u32 s96, s96, s24")
        a(f"s_cmp_lg_u32 s96, {int(dw)*4}")
        a(f"s_cbranch_scc1 DG{u}")
        a("s_mov_b64 exec, -1")
        a("v_readlane_b32 s97, v254, 1")
        a("v_mbcnt_lo_u32_b32 v0, -1, 0")
        a("v_lshlrev_b32 v1, 1, v0")
        a("v_subrev_u32 v254, s97, v254")
        a("v_and_b32 v1, -4, v1")
        a("s_mov_b32 exec_lo, 0xaaaaaaa8")
        a("s_mov_b32 exec_hi, 0")
        a(f"global_store_dword v1, v254, {sr(P_DBG,2)}")
        a.label(f"DG{u}")
        return
    a.stamp_flush(P_WS)

def cmul(a, d, x, y, phase):
    if phase == 0:
        a(f"v_pk_mul_f32 {vr(d,2)}, {vr(x,2)}, {vr(y,2)} op_sel_hi:[0,1]")
    else:
        a(f"v_pk_fma_f32 {vr(d,2)}, {vr(x,2)}, {vr(y,2)}, {vr(d,2)} op_sel:[1,1,0] op_sel_hi:[1,0,1] neg_lo:[1,0,0]")

def nonce_issue(a, v, allw=False):
    uid[0] += 1; u = uid[0]
    if not allw:
        a("s_cmp_lg_u32 s24, 0")
        a(f"s_cbranch_scc1 NI{u}")
    a(f"global_load_dword v{v}, v{VZ}, {sr(P_DBG,2)}{os.environ.get('NSC', ' sc1')}")
    a.label(f"NI{u}")

def nonce_take(a, v, allw=False):
    uid[0] += 1; u = uid[0]
    if not allw:
        a("s_cmp_lg_u32 s24, 0")
        a(f"s_cbranch_scc1 ND{u}")
    a(f"s_mov_b32 s62, {POLLMAX}")
    a.label(f"NT{u}")
    a(f"v_readfirstlane_b32 s{NON}, v{v}")
    a("s_nop 1")
    a(f"s_cmp_ge_u32 s{NON}, 8")
    a(f"s_cbranch_scc1 ND{u}")
    a("s_sub_u32 s62, s62, 1")
    a(f"s_cbranch_scc1 ND{u}")
    a("s_sleep 8")
    a(f"global_load_dword v{v}, v{VZ}, {sr(P_DBG,2)} sc1")
    a("s_waitcnt vmcnt(0)")
    a(f"s_branch NT{u}")
    a.label(f"ND{u}")

def cnt_load(a, vd, soff):
    a(f"v_mov_b32 v{vd}, 0")
    a("s_mov_b64 exec, 1")
    t = a.vm(f"buffer_atomic_add v{vd}, v{VZ}, s[20:23], {soff} offen sc0 sc1")
    a("s_mov_b64 exec, -1")
    return t

def cnt_wait(a, vd, soff, target, sleep=1):
    uid[0] += 1; u = uid[0]
    a(f"s_mov_b32 s62, {POLLMAX}")
    a.label(f"FC{u}")
    a(f"v_readfirstlane_b32 s4, v{vd}")
    a("s_nop 1")
    a(f"s_cmp_eq_u32 s4, {target}")
    a(f"s_cbranch_scc1 FD{u}")
    a("s_sub_u32 s62, s62, 1")
    a(f"s_cbranch_scc1 FD{u}")
    a(f"s_sleep {sleep}")
    n0 = a.nvm
    cnt_load(a, vd, soff)
    a.nvm = n0
    a("s_waitcnt vmcnt(0)")
    a(f"s_branch FC{u}")
    a.label(f"FD{u}")

def cnt_add(a, vt, soff, va=None, mask="1"):
    a(f"v_mov_b32 v{vt}, 1")
    a(f"s_mov_b64 exec, {mask}")
    a.vm(f"buffer_atomic_add v{vt}, v{VZ if va is None else va}, s[20:23], {soff} offen sc1")
    a("s_mov_b64 exec, -1")

def late_load(a, vd, va):
    a("s_mov_b64 exec, 7")
    a(f"buffer_load_dword v{vd}, v{va}, s[20:23], 0 offen sc1")
    a("s_mov_b64 exec, -1")

def late_check(a, vd, va, vtgt):
    uid[0] += 1; u = uid[0]
    a(f"s_mov_b32 s62, {POLLMAX}")
    a.label(f"FC{u}")
    a(f"v_cmp_ne_u32 vcc, v{vd}, v{vtgt}")
    a("s_nop 1")
    a("s_and_b32 s4, vcc_lo, 7")
    a(f"s_cbranch_scc0 FD{u}")
    a("s_sub_u32 s62, s62, 1")
    a(f"s_cbranch_scc1 FD{u}")
    a("s_sleep 16")
    late_load(a, vd, va)
    a("s_waitcnt vmcnt(0)")
    a(f"s_branch FC{u}")
    a.label(f"FD{u}")

RAW = 244
XRW = 232

def gen_entry(a):
    a("s_cmp_ge_u32 s2, 512")
    a("s_cbranch_scc1 L_END")
    a.stamp(0)
    if "dblspan" in EXP: a("s_memrealtime s[100:101]")
    a("s_load_dwordx16 s[64:79], s[0:1], 0")
    a("s_load_dwordx16 s[80:95], s[0:1], 64")
    if "nopf" not in EXP:
        a("s_cmp_lt_u32 s2, 504")
        a("s_cbranch_scc1 E_NOPF")
        a("s_getpc_b64 s[4:5]")
        a.label("E_PC")
        a("v_lshlrev_b32 v4, 7, v0")
        a("v_min_u32 v4, L_END-E_PC, v4")
        a("v_mov_b32 v5, s5")
        a("v_add_co_u32 v4, vcc, s4, v4")
        a("s_nop 1")
        a("v_addc_co_u32 v5, vcc, 0, v5, vcc")
        a("global_load_dword v6, v[4:5], off")
        a.label("E_NOPF")
    a("v_lshrrev_b32 v13, 6, v0")
    a("v_and_b32 v1, 63, v0")
    a("v_lshlrev_b32 v2, 4, v1")
    a(f"v_mov_b32 v{VZ}, 0")
    a("v_readfirstlane_b32 s24, v13")
    a("s_and_b32 s31, s2, 7")
    a("s_bfe_u32 s32, s2, 0x50003")
    a("s_cmp_ge_u32 s2, 256")
    a("s_cbranch_scc1 L_A")
    a("s_and_b32 s27, s24, 1")
    a("s_cmp_ge_u32 s32, 28")
    a("s_cbranch_scc1 L_C")
    a("s_setprio 3")
    a("s_lshl_b32 s39, s32, 1")
    a("s_lshr_b32 s34, s24, 1")
    a("s_add_u32 s26, s39, s34")
    a("s_lshl_b32 s26, s26, 3")
    a("s_add_u32 s26, s26, s31")
    a("s_lshl_b32 s33, s26, 9")
    a("s_lshl_b32 s34, s27, 8")
    a("s_add_u32 s33, s33, s34")
    a("v_lshlrev_b32 v3, 2, v1")
    a("v_add_u32 v13, s33, v3")
    a("s_lshl_b32 s34, s26, 1")
    a("s_and_b32 s34, s34, -4")
    a("v_lshlrev_b32 v4, 7, v0")
    a("s_lshl_b32 s33, s2, 15")
    a(f"s_add_u32 s33, s33, {FL}")
    a("s_waitcnt lgkmcnt(0)")
    a.srd(20, P_WS, WS_SIZE)
    a("s_cmp_ge_u32 s2, 2")
    a("s_cbranch_scc1 E_NOINIT")
    a(f"buffer_store_dword v{VZ}, v4, s[20:23], s33 offen sc1")
    a.label("E_NOINIT")
    for i in range(6):
        a(f"global_load_dword v{RAW+i}, v13, {sr(P_PAR+2*i,2)}")
    a(f"s_load_dword s28, {sr(P_LDT,2)}, s34")
    a(f"s_load_dword s38, {sr(P_DSK,2)}, s34")
    a("s_branch L_B")

def gen_A(a):
    a.label("L_A")
    if "noA" in EXP: a("s_endpgm")
    a(f"s_setprio {PA}")
    if "dA" in EXP: a(f"s_sleep {DLY}")
    a("s_lshr_b32 s33, s31, 1")
    a("s_lshl_b32 s33, s33, 2")
    a("s_and_b32 s34, s32, 3")
    a("s_add_u32 s25, s33, s34")
    a("s_and_b32 s27, s31, 1")
    a("s_lshr_b32 s54, s32, 2")
    a("s_lshl_b32 s33, s27, 3")
    a("s_add_u32 s26, s33, s54")
    XR, ACC, QACC, WF, NV, PK, T = 16, 128, 128, 176, 248, 224, 240
    XL = 32768
    a("s_lshl_b32 s33, s25, 2")
    a("s_add_u32 s35, s33, s24")
    a("s_mul_i32 s33, s35, 28672")
    a("v_lshrrev_b32 v13, 3, v1")
    a("v_mul_u32_u24 v12, 896, v13")
    a("v_and_b32 v14, 7, v1")
    a("v_lshrrev_b32 v15, 4, v1")
    a("v_xor_b32 v15, v15, v14")
    a("v_lshl_add_u32 v3, v15, 4, v12")
    a("v_add_u32 v3, s33, v3")
    a("v_xor_b32 v246, 64, v3")
    a(f"v_add_u32 v244, {6144}, v246")
    a(f"v_add_u32 v245, {6144*2}, v3")
    a(f"v_add_u32 v246, {6144*3}, v246")
    a("s_mul_i32 s40, s24, 12288")
    a(f"s_add_u32 s40, s40, {XL}")
    a("s_lshl_b32 s33, s34, 1")
    a("s_add_u32 s28, s33, s54")
    a("s_sub_u32 s33, s28, 7")
    a("s_cmp_ge_u32 s28, 7")
    a("s_cselect_b32 s28, s33, s28")
    if "norot" in EXP: a("s_mov_b32 s28, 0")
    a("s_lshl_b32 s29, s28, 7")
    a("s_mul_i32 s37, s28, 172032")
    a("s_mov_b32 s39, s37")
    a("v_bfe_u32 v15, v1, 4, 1")
    a("v_lshlrev_b32 v15, 2, v15")
    a("v_xor_b32 v15, v15, v14")
    a("v_mul_u32_u24 v4, 2688, v13")
    a("v_lshl_add_u32 v4, v15, 4, v4")
    a("s_min_u32 s55, s54, 6")
    a("s_mul_i32 s33, s24, 43008")
    a("s_mul_i32 s34, s27, 896")
    a("s_add_u32 s33, s33, s34")
    a("s_lshl_b32 s34, s55, 7")
    a("s_add_u32 s33, s33, s34")
    a("s_add_u32 s33, s33, 896")
    a("v_add_u32 v4, s33, v4")
    a(f"v_add_u32 v5, {21504-1024}, v4")
    a("s_lshl_b32 s36, s24, 11")
    a("s_waitcnt lgkmcnt(0)")
    a.stamp(1)
    if "dK1" in EXP: a(f"s_sleep {DLY}")
    if "dK2" in EXP: a("s_sleep 64")
    if "dK4" in EXP: a("s_sleep 127")
    a.srd(12, P_X, X_BYTES)
    a.srd(16, P_W, W_BYTES)
    def adv(r):
        a(f"s_add_u32 s{r}, s{r}, 1")
        a(f"s_cmp_eq_u32 s{r}, 7")
        a(f"s_cselect_b32 s{r}, 0, s{r}")
    QD = int(os.environ.get("QD", "14"))
    L = []
    for s_ in range(7):
        L += [("x", s_, 0), ("x", s_, 1), ("x", s_, 2), ("x", s_, 3), ("w", s_, 0), ("w", s_, 1)]
    L += [("n", 0, 0)] + [("q", i, 0) for i in range(7)]
    tag = {}; tagxf = {}
    L0 = list(L)
    lastbar = [-1]; xfree = [-1]; light = [False]; m0 = [None]
    def setm0(base, off):
        if m0[0] != (base, off):
            a(f"s_add_u32 m0, {base}, {off}")
            m0[0] = (base, off)
            return True
        return False
    def issue():
        seen = set()
        for e in L:
            k, s_, n = e
            if k in seen: continue
            seen.add(k)
            if k in "nq" and ("x" in seen or "w" in seen): return
            need = {"x": s_ - 3, "q": 4 + (s_ >> 2)}.get(k, -1)
            if need > xfree[0]: continue
            if k == "w" and s_ >= 4 and lastbar[0] < s_ - 2: continue
            break
        else:
            return
        L.remove(e)
        if k == "x":
            ch = setm0("s40", (s_ % 3) * 4096)
            if n == 0 and s_:
                a("s_add_u32 s29, s29, 128")
                a("s_cmp_eq_u32 s29, 896")
                a("s_cselect_b32 s29, 0, s29")
            elif ch: a("s_nop 0")
            tag[e] = a.vm(f"buffer_load_dwordx4 v{3 if n == 0 else 243+n}, s[12:15], s29 offen offset:{1024*n} lds")
        elif k == "w":
            ch = setm0("s36", (s_ % 4) * 8192)
            if n == 0 and s_:
                a("s_add_u32 s37, s37, 172032")
                a(f"s_cmp_eq_u32 s37, {7*172032}")
                a("s_cselect_b32 s37, 0, s37")
            elif ch: a("s_nop 0")
            tag[e] = a.vm(f"buffer_load_dwordx4 v{4+n}, s[16:19], s37 offen offset:{1024*n} lds")
        elif k == "n":
            nonce_issue(a, NV)
        else:
            setm0("s40", 4096 + 1024 * s_)
            if s_:
                a("s_add_u32 s39, s39, 172032")
                a(f"s_cmp_eq_u32 s39, {7*172032}")
                a("s_cselect_b32 s39, 0, s39")
            else: a("s_nop 0")
            a.vm(f"buffer_load_dwordx4 v14, s[16:19], s39 offen lds")
    nvm_light = a.nvm
    a.srd(20, P_WS, WS_SIZE)
    a("s_cmp_eq_u32 s54, 7")
    a("s_cbranch_scc1 A_GO")
    for _ in range(QD): issue()
    a.label("A_GO")
    if "tlb" in EXP:
        a("s_cmp_lg_u32 s24, 0")
        a("s_cbranch_scc1 A_NOTLB")
        for i, ad in enumerate((0x1fff80, 0x3fff80, 0x5fff80, 0x680000, 0x860000, 0xA80000)):
            a(f"s_mov_b32 s33, {hex(ad)}")
            a(f"v_writelane_b32 v6, s33, {i}")
        a("s_mov_b64 exec, 63")
        a("buffer_load_dword v7, v6, s[20:23], 0 offen")
        a("s_mov_b64 exec, 1")
        a(f"global_load_dword v7, v{VZ}, {sr(P_OUT,2)}")
        a("s_mov_b64 exec, -1")
        a.label("A_NOTLB")
    if "stopA" in EXP: a.stamp(7)
    if "Aload" in EXP:
        a("s_waitcnt vmcnt(0)"); a("s_endpgm")
    a("v_and_b32 v13, 31, v1")
    a("v_bfe_u32 v14, v1, 1, 3")
    a("v_lshrrev_b32 v15, 5, v1")
    a("v_xor_b32 v14, v14, v15")
    a("v_lshlrev_b32 v13, 7, v13")
    a("v_lshl_add_u32 v8, v14, 4, v13")
    a("v_add_u32 v8, s40, v8")
    for ks in range(1, 4):
        a(f"v_xor_b32 v{8+ks}, {32*ks}, v8")
    a(f"v_bfe_u32 v{T}, v1, 2, 2")
    a(f"v_lshl_add_u32 v{T+1}, v15, 3, v{T}")
    a(f"v_bfe_u32 v{T+2}, v1, 4, 1")
    a(f"v_and_b32 v{T+3}, 3, v1")
    a(f"v_lshl_add_u32 v{PK}, v{T+2}, 2, v{T+3}")
    a(f"v_and_b32 v{PK+1}, 1, v1")
    a(f"v_bfe_u32 v{PK+2}, v1, 1, 1")
    a(f"v_lshl_add_u32 v{PK+1}, v{PK+1}, 1, v{PK+2}")
    a(f"v_lshl_add_u32 v{PK+1}, v{T+2}, 2, v{PK+1}")
    a(f"v_bfe_u32 v{T+3}, v1, 3, 1")
    a(f"v_lshlrev_b32 v{T+3}, 6, v{T+3}")
    a(f"v_lshl_add_u32 v{T+3}, v{T+1}, 7, v{T+3}")
    a("s_cmp_eq_u32 s27, 1")
    a("s_cselect_b64 vcc, -1, 0")
    a(f"v_cndmask_b32 v12, v{PK+1}, v{PK}, vcc")
    a(f"v_lshl_add_u32 v12, v12, 3, v{T+3}")
    a("v_xor_b32 v13, 64, v12")
    a(f"v_add_u32 v{PK+2}, 2, v{PK+1}")
    a(f"v_sub_u32 v{PK+3}, 7, v{PK+1}")
    a(f"v_cmp_gt_u32 vcc, 6, v{PK+1}")
    a("s_bitcmp1_b32 s26, 0")
    a("s_cselect_b64 s[4:5], -1, 0")
    a(f"v_cndmask_b32 v{PK+2}, v{PK+3}, v{PK+2}, vcc")
    a(f"v_cndmask_b32 v{PK+2}, v{PK+1}, v{PK+2}, s[4:5]")
    a(f"v_lshlrev_b32 v15, 6, v{T+1}")
    a(f"v_lshl_add_u32 v15, v{PK+2}, 3, v15")
    a(f"v_add_u32 v15, {XL + 4096}, v15")
    a("v_lshrrev_b32 v14, 2, v1")
    a("v_mul_u32_u24 v14, 2688, v14")
    a(f"v_and_b32 v{T}, 3, v1")
    a(f"v_lshl_add_u32 v14, v{T}, 4, v14")
    a("s_mul_i32 s33, s26, 56")
    a("s_and_b32 s33, s33, -16")
    a(f"s_mul_i32 s34, s24, {16*2688}")
    a("s_add_u32 s33, s33, s34")
    a("v_add_u32 v14, s33, v14")
    a("s_mul_i32 s33, s54, 2341")
    a("s_lshr_b32 s33, s33, 10")
    a(f"v_add_u32 v{PK}, s33, v1")
    a(f"v_mul_u32_u24 v{PK+1}, 28, v{PK}")
    a(f"v_lshrrev_b32 v{PK+1}, 6, v{PK+1}")
    a(f"v_cmp_ge_u32 s[56:57], s54, v{PK+1}")
    a(f"v_lshlrev_b32 v243, 11, v{PK}")
    a("s_lshl_b32 s42, s25, 7")
    a(f"s_add_u32 s42, s42, {F_KV}")
    a("s_and_b64 s[56:57], s[56:57], 15")
    a("s_cmp_eq_u32 s54, 7")
    a("s_cbranch_scc1 A_LIGHT")
    a("s_cmp_eq_u32 s27, 1")
    a("s_cbranch_scc1 A_V")

    def pass1(vtype):
        tagtr = {}
        NB = 6; TD = 3
        NIS = int(os.environ.get("NIS", "2"))
        def trload(u, t):
            s, ks = u >> 2, u & 3
            for hr in range(2):
                off = (s % 4) * 8192 + (16 * ks + 4 * hr) * 128
                tagtr[u] = a.ds(f"ds_read_b64_tr_b16 {vr(WF+(u%NB)*8+4*t+2*hr,2)}, v{12+t} offset:{off}")
        def mfma(u, t):
            wf = vr(WF + (u % NB) * 8 + 4 * t, 4); xf = vr(XR + 4 * u, 4)
            c = "0" if u == 0 else vr(ACC + 16 * t, 16)
            a(f"{MF32} {vr(ACC+16*t,16)}, {xf}, {wf}, {c}" if vtype else f"{MF32} {vr(ACC+16*t,16)}, {wf}, {xf}, {c}")
        pend = None
        for u in range(-4, 28):
            if u >= 0:
                a.wait_ds(max(tagtr[u], tagxf[u >> 2]))
                mfma(u, 0)
            issue()
            if (u + TD) % 4 == 0 and (u + TD) // 4 < 7:
                sb = (u + TD) // 4
                a.wait_vm(tag[("w", sb, 1)])
                a("s_barrier")
                lastbar[0] = sb
                if sb in (0, 6): a.stamp(2 + sb // 6)
            if 0 <= u + TD < 28: trload(u + TD, 0)
            if u >= 0: mfma(u, 1)
            if pend is not None:
                a.wait_ds(tagxf[pend]); xfree[0] = pend; pend = None
            for _ in range(NIS - 1): issue()
            if 0 <= u + TD < 28: trload(u + TD, 1)
            if u % 4 == 0 and u // 4 + 1 < 7:
                s = u // 4 + 1
                a.wait_vm(tag[("x", s, 3)])
                for ks in range(4):
                    tagxf[s] = a.ds(f"ds_read_b128 {vr(XR+16*s+4*ks,4)}, v{8+ks} offset:{(s%3)*4096}")
                pend = s
        assert not L, L
    saved = (a.nvm, a.nds, list(L), m0[0])
    a("v_mov_b32 v247, v2")
    a(f"s_mul_i32 s38, s35, {KTS}")
    a("s_lshl_b32 s33, s55, 12")
    a("s_add_u32 s38, s38, s33")
    a("s_add_u32 s41, s38, 1024")
    a("s_add_u32 s43, s38, 2048")
    a("s_add_u32 s44, s38, 3072")
    pass1(False)
    a("s_branch A_ST")
    a.label("A_V")
    a.nvm, a.nds, L[:], m0[0] = saved; lastbar[0] = -1; xfree[0] = -1
    a("v_lshrrev_b32 v247, 5, v1")
    a(f"v_mul_u32_u24 v247, {8064-512}, v247")
    a("v_add_u32 v247, v247, v2")
    a(f"s_mul_i32 s38, s35, {VTS}")
    a("s_mul_i32 s33, s55, 1152")
    a("s_add_u32 s38, s38, s33")
    a(f"s_add_u32 s38, s38, {VF}")
    a("s_add_u32 s41, s38, 16128")
    a("s_add_u32 s43, s38, 512")
    a("s_add_u32 s44, s41, 512")
    a(f"v_lshrrev_b32 v{T}, 1, v1")
    a(f"v_mul_u32_u24 v{T}, 8064, v{T}")
    a(f"v_and_b32 v{T+1}, 1, v1")
    a(f"v_lshl_add_u32 v{T}, v{T+1}, 4, v{T}")
    a(f"v_subrev_u32 v{T+1}, 1, v{T+1}")
    for i in range(4):
        a(f"v_and_b32 v{PK+i}, 0x3f803f80, v{T+1}")
    a("s_mov_b64 exec, 0xff")
    a(f"buffer_store_dwordx4 {vr(PK,4)}, v{T}, s[20:23], s38 offen offset:1024{SC}")
    a("s_mov_b64 exec, -1")
    pass1(True)
    a.label("A_ST")
    a.nop(11)
    for t in range(2):
        for r in range(0, 16, 2):
            a(f"v_cvt_pk_bf16_f32 v{PK+8*t+r//2}, v{ACC+16*t+r}, v{ACC+16*t+r+1}")
        for f in range(2):
            a(f"buffer_store_dwordx4 {vr(PK+8*t+4*f,4)}, v247, s[20:23], s{(38,41,43,44)[2*t+f]} offen{SC}")
    a("s_waitcnt vmcnt(4)")
    a("s_branch A_P2")
    a.label("A_LIGHT")
    a(f"s_setprio {os.environ.get('PLT', '2')}")
    if "dLt" in EXP: a(f"s_sleep {DLY}")
    a.nvm, a.nds = nvm_light, saved[1]; L[:] = [e for e in L0 if e[0] != 'w']; m0[0] = None; xfree[0] = -1
    for _ in range(int(os.environ.get("LQ", "8"))): issue()
    for s_ in range(7):
        a.wait_vm(tag[("x", s_, 3)])
        for ks in range(4):
            a.ds(f"ds_read_b128 {vr(XR+16*s_+4*ks,4)}, v{8+ks} offset:{(s_%3)*4096}")
        a("s_waitcnt lgkmcnt(0)")
        xfree[0] = s_
        for _ in range(int(os.environ.get("LN", "8")) if s_ < 2 else 8): issue()
    assert not L
    a("s_waitcnt vmcnt(0)")
    a.label("A_P2")
    if "dP" in EXP: a(f"s_sleep {DLY}")
    a.stamp(4)
    nonce_take(a, NV)
    a("s_barrier")
    Q, O, S, P, KB, VB, NM, MX, T2 = 16, 48, 112, 144, 160, 192, 224, 228, 232
    VK0, VK1, VV0, VV1, C1, C2 = 10, 11, 12, 13, 252, 253
    class Rec:
        def __init__(self): self.ch = []
        def __call__(self, *ins): self.ch.append(list(ins))
    c = Rec()
    c("s_mul_i32 s33, s26, 28"); c("s_lshr_b32 s44, s33, 6"); c("s_add_u32 s34, s33, 27"); c("s_lshr_b32 s34, s34, 6")
    c("s_sub_u32 s34, s34, s44"); c("s_lshl_b32 s34, s34, 1"); c("s_add_u32 s58, s34, 2")
    c("v_lshrrev_b32 v4, 5, v1")
    c("v_lshlrev_b32 v249, 9, v1"); c(f"v_mov_b32 v{NV+2}, 0")
    c("s_lshl_b32 s34, s26, 11"); c("s_lshl_b32 s36, s24, 7"); c("s_add_u32 s34, s34, s36"); c(f"s_add_u32 s53, s34, {F_KV}")
    c(f"s_mov_b32 s46, {hex(f2u(QSCALE))}"); c("s_mov_b32 s47, s46")
    c("s_lshl_b32 s36, s24, 11"); c("s_add_u32 s36, s36, 49152"); c("v_add_u32 v6, s36, v2")
    for t in range(1, 4): c(f"v_xor_b32 v{6+t}, {2048*t}, v6")
    c("s_lshr_b32 s34, s26, 1"); c("s_mul_i32 s34, s34, 3584"); c("s_and_b32 s36, s26, 1"); c("s_lshl_b32 s37, s36, 11")
    c("s_add_u32 s34, s34, s37"); c(f"v_add_u32 v{VK0}, s34, v2"); c(f"v_add_u32 v{VK1}, 1024, v{VK0}")
    c(f"s_mul_i32 s37, s36, {2048-8}")
    c("s_mov_b32 exec_lo, 0", f"v_subrev_u32 v{VK1}, s37, v{VK1}", "s_mov_b32 exec_lo, -1")
    c("v_and_b32 v5, 31, v1"); c("v_add_u32 v3, s33, v5"); c("v_lshrrev_b32 v5, 6, v3"); c("v_lshlrev_b32 v5, 7, v5")
    c(f"v_lshl_add_u32 v{VV0}, v3, 4, v5")
    c("s_mul_i32 s34, s44, 1152"); c("s_add_u32 s34, s34, 1024"); c("s_add_u32 s37, s34, 16")
    c("s_mov_b32 exec_lo, 0xf0000000", "s_mov_b32 exec_hi, 0xf0000000", f"v_mov_b32 v{VV0}, s37", "s_mov_b64 exec, -1")
    c(f"v_writelane_b32 v{VV0}, s34, 28"); c(f"v_writelane_b32 v{VV0}, s34, 60")
    c("s_movk_i32 s34, 8064"); c(f"v_mad_u32_u24 v{VV0}, v4, s34, v{VV0}"); c(f"v_add_u32 v{VV1}, 16128, v{VV0}")
    c(f"s_mul_i32 s34, s24, {4*KTS}"); c(f"s_mul_i32 s37, s24, {4*VTS}"); c(f"s_add_u32 s37, s37, {VF}")
    for d, sz, off in ((12, 52 * KTS, "s34"), (16, 52 * VTS, "s37")):
        c(f"s_add_u32 s{d}, s{P_WS}, {off}", f"s_addc_u32 s{d+1}, s{P_WS+1}, 0")
        c(f"s_mov_b32 s{d+2}, {sz}"); c(f"s_mov_b32 s{d+3}, 0x00020000")
    c("s_mov_b32 s63, 15")
    c(f"v_mov_b32 v{C1}, 0x3f803f80"); c(f"v_mov_b32 v{C2}, 0x3f80")
    for r in range(8): c(f"v_mov_b32 v{VB+24+r}, 0")
    for t in range(4): c(f"v_mov_b32 v{NM+t}, 0")
    c("s_mov_b32 s41, 0")
    c("s_cmp_eq_u32 s54, 7", "s_cselect_b32 s59, 1, s24")
    PV_ = NV + 2
    def kv_poll():
        a("s_mov_b64 exec, 15")
        a(f"buffer_atomic_umax v{PV_}, v249, s[20:23], s53 offen sc0 sc1")
        a("s_mov_b64 exec, -1")
    def kv_pick(tagname):
        a(f"s_mov_b32 s62, {POLLMAX}")
        a.label(f"KP{tagname}")
        a(f"v_cmp_eq_u32 vcc, s58, v{PV_}")
        a("s_nop 1")
        a("s_and_b32 s5, vcc_lo, s63")
        a(f"s_cbranch_scc1 KD{tagname}")
        a("s_mov_b32 s5, s63")
        a("s_sub_u32 s62, s62, 1")
        a(f"s_cbranch_scc1 KD{tagname}")
        a("s_sleep 1")
        kv_poll()
        a("s_waitcnt vmcnt(0)")
        a(f"s_branch KP{tagname}")
        a.label(f"KD{tagname}")
        a("s_ff1_i32_b32 s59, s5")
        a("s_bitset0_b32 s63, s59")
        a("s_bitset0_b32 s5, s59")
    def first_loads():
        a(f"s_mul_i32 s44, s59, {16*KTS}")
        a(f"s_mul_i32 s45, s59, {16*VTS}")
        for kt in range(4):
            for f in range(2):
                r = a.vm(f"buffer_load_dwordx4 {vr(KB+8*kt+4*f,4)}, v{VK0+f}, s[12:15], s44 offen{SC}")
            if kt < 3: a(f"s_addk_i32 s44, {KTS}")
            if kt == 0: tag = r
            if kt < 3:
                for f in range(2):
                    a.vm(f"buffer_load_dwordx4 {vr(VB+8*kt+4*f,4)}, v{VV0+f}, s[16:19], s45 offen{SC}")
                a(f"s_addk_i32 s45, {VTS}")
        return tag
    def patch(kb):
        a(f"v_mov_b32_dpp v{kb+6}, v{C1} quad_perm:[0,1,2,3] row_mask:0xc bank_mask:0xf")
        a(f"v_mov_b32_dpp v{kb+7}, v{C2} quad_perm:[0,1,2,3] row_mask:0xc bank_mask:0xf")
    tq = {}
    def trq(u):
        for hr in range(2):
            tq[u] = a.ds(f"ds_read_b64_tr_b16 {vr(WF+(u%8)*4+2*hr,2)}, v15 offset:{(u&3)*12288+(u>>2)*1024+256*hr}")
    for u in range(6): trq(u)
    for u in range(28):
        if u + 6 < 28: trq(u + 6)
        a.wait_ds(tq[u])
        cc = "0" if u == 0 else vr(QACC, 16)
        a(f"{MF32} {vr(QACC,16)}, {vr(WF+(u%8)*4,4)}, {vr(XR+4*u,4)}, {cc}")
        n = 0
        while c.ch and n < (3 if u < 22 else 5):
            for ins in c.ch.pop(0): a(ins); n += 1
    assert not c.ch, len(c.ch)
    def zero_acc():
        for t in range(4):
            a(f"{MF32} {vr(O+16*t,16)}, {vr(VB+24,4)}, {vr(VB+24,4)}, 0")
    zero_acc()
    a("s_cmp_lg_u32 s59, 0")
    a("s_waitcnt vmcnt(0)")
    a("s_barrier")
    a("s_cbranch_scc1 A_NOPUB")
    cnt_add(a, NV, "s42", 243, "s[56:57]")
    a.label("A_NOPUB")
    a(f"s_setprio {os.environ.get('PQ', '2')}")
    a.stamp(5)
    if "stopA" in EXP:
        fin(a, 6); a("s_endpgm")
    kv_poll()
    a.nop(1)
    for r in range(16):
        a(f"v_mul_f32 v{QACC+r}, s46, v{QACC+r}")
    for r in range(0, 16, 2):
        a(f"v_cvt_pk_bf16_f32 v{Q+r//2}, v{QACC+r}, v{QACC+r+1}")
    a("s_mov_b32 exec_lo, 0")
    a(f"v_mov_b32 v{Q+6}, 0")
    a(f"v_mov_b32 v{Q+7}, 0")
    a("s_mov_b32 exec_lo, -1")
    for f in range(2):
        a(f"ds_write_b128 v6, {vr(Q+4*f,4)} offset:{1024*f}")
    a("s_waitcnt lgkmcnt(0)")
    a("s_barrier")
    for t in range(1, 4):
        for f in range(2):
            a(f"ds_read_b128 {vr(Q+8*t+4*f,4)}, v{6+t} offset:{1024*f}")
    a("s_mov_b32 s42, 0x07060302")
    a("s_min_u32 s33, s32, 27")
    a("s_and_b32 s34, s33, 3")
    a("s_lshl_b32 s47, s31, 2")
    a("s_add_u32 s47, s47, s34")
    a("s_lshr_b32 s48, s33, 2")
    a("s_lshr_b32 s49, s24, 1")
    a("s_lshl_b32 s33, s47, 1")
    a("s_add_u32 s49, s49, s33")
    a("s_and_b32 s50, s24, 1")
    a("s_lshl_b32 s33, s48, 1")
    a("s_add_u32 s50, s50, s33")
    a("v_bfe_u32 v5, v1, 2, 2")
    a("v_lshlrev_b32 v9, 7, v5")
    a("v_bfe_u32 v5, v1, 4, 1")
    a("v_lshl_add_u32 v9, v5, 6, v9")
    a("v_and_b32 v5, 3, v1")
    a("v_lshl_add_u32 v9, v5, 4, v9")
    a("v_lshl_add_u32 v9, v4, 9, v9")
    for t in range(1, 4):
        a(f"s_xor_b32 s33, s24, {t}")
        a("s_mul_i32 s33, s33, 12288")
        a(f"s_add_u32 s33, s33, {(t-1)*4096}")
        a(f"v_add_u32 v{3+t}, s33, v2")
    a("s_mul_i32 s33, s24, 12288")
    a("v_add_u32 v7, s33, v2")
    a("v_or_b32 v8, 512, v7")
    a("s_lshl_b32 s33, s35, 4")
    a("s_add_u32 s33, s33, s26")
    a("s_lshl_b32 s43, s33, 11")
    a(f"s_add_u32 s43, s43, {OF}")
    a("s_lshr_b32 s51, s35, 1")
    a("s_lshl_b32 s51, s51, 9")
    a("s_lshr_b32 s33, s26, 2")
    a("s_lshl_b32 s33, s33, 7")
    a("s_add_u32 s51, s51, s33")
    a(f"s_add_u32 s51, s51, {F_O}")
    a("s_lshl_b32 s33, s50, 7")
    a(f"s_add_u32 s33, s33, {F_B}")
    a("v_mov_b32 v14, s33")
    a("v_mov_b32 v15, 64")
    a("s_lshl_b32 s33, s49, 7")
    a(f"s_add_u32 s33, s33, {F_G}")
    a("v_writelane_b32 v14, s33, 1")
    a("v_writelane_b32 v15, 2, 1")
    a("s_lshl_b32 s33, s24, 7")
    a(f"s_add_u32 s33, s33, {F_WO}")
    a("v_writelane_b32 v14, s33, 2")
    a("v_writelane_b32 v15, 16, 2")
    a("s_waitcnt vmcnt(0)")
    kv_pick("A")
    a.stamp(6)
    tagk0 = first_loads()
    kv_poll()
    a.nvm += 1
    a("s_waitcnt lgkmcnt(0)")
    a.wait_vm(tagk0)
    a.stamp(7)
    if "dL" in EXP: a(f"s_sleep {DLY}")
    TT = [S + 16, T2, P, S]
    patch(KB)
    a("s_nop 0")
    def mx(t):
        a(f"v_max3_f32 v{MX+t}, v{TT[t]}, v{TT[t]+1}, v{TT[t]+2}")
        for i in range(1, 4):
            a(f"v_max3_f32 v{MX+t}, v{MX+t}, v{TT[t]+2*i+1}, v{TT[t]+2*i+2}")
    for t in range(4):
        a(f"{MF32} {vr(TT[t],16)}, {vr(KB,4)}, {vr(Q+8*t,4)}, 0")
        a(f"{MF32} {vr(TT[t],16)}, {vr(KB+4,4)}, {vr(Q+8*t+4,4)}, {vr(TT[t],16)}")
    a.nop(6)
    mx(0); mx(1); mx(2)
    mx(3)
    a.label("A_SETMAX")
    def setm(ts):
        for t in ts: a(f"v_sub_f32 v{NM+t}, v{NM+t}, v{MX+t}")
        for t in ts: a(f"v_and_b32 v{T2+t}, 0xffff0000, v{NM+t}")
        for t in ts: a(f"v_sub_f32 v{T2+t}, v{NM+t}, v{T2+t}")
        for t in ts: a(f"v_and_b32 v{T2+4+t}, 0xffff0000, v{T2+t}")
        for t in ts: a(f"v_sub_f32 v{T2+4+t}, v{T2+t}, v{T2+4+t}")
        for t in ts:
            a(f"v_perm_b32 v{Q+8*t+6}, v{T2+t}, v{NM+t}, s42")
            a(f"v_lshrrev_b32 v{Q+8*t+7}, 16, v{T2+4+t}")
    a("s_mov_b32 exec_lo, 0")
    setm((0, 1))
    a("s_mov_b32 exec_lo, -1")
    a(f"{MF32} {vr(S,16)}, {vr(KB,4)}, {vr(Q,4)}, 0")
    a(f"{MF32} {vr(S,16)}, {vr(KB+4,4)}, {vr(Q+4,4)}, {vr(S,16)}")
    a("s_mov_b32 exec_lo, 0")
    setm((2, 3))
    a("s_mov_b32 exec_lo, -1")
    for r in range(8):
        a(f"v_mov_b32 v{P+8+r}, 0")
    a("s_mov_b32 s46, 4")
    a(f"s_setprio {os.environ.get('PL', '1')}")
    a.label("A_LOOP")
    sh = {}
    for kt in range(4):
        b = 4 * kt
        for f in range(2):
            sh[(b, 2 + f)] = [f"buffer_load_dwordx4 {vr(VB+8*((kt-1)&3)+4*f,4)}, v{VV0+f}, s[16:19], s45 offen{SC}"]
            sh[(b + 2, 1 + f)] = [f"buffer_load_dwordx4 {vr(KB+8*kt+4*f,4)}, v{VK0+f}, s[12:15], s44 offen{SC}"]
        sh[(b + 1, 1)] = ["s_waitcnt vmcnt(12)"]
        sh[(b + 2, 3)] = ["s_waitcnt vmcnt(12)"]
        if kt: sh[(b + 1, 0)] = [f"s_addk_i32 s45, {VTS}"]
        if kt < 3: sh[(b + 3, 1)] = [f"s_addk_i32 s44, {KTS}"]
    sh[(0, 0)] = ["s_cmp_lt_u32 s5, 128"]
    sh[(0, 1)] = ["s_cbranch_scc1 A_SLOW", "A_SLOWR:"]
    sh[(1, 0)] = ["s_ff1_i32_b32 s59, s5"]
    sh[(1, 2)] = [f"s_mul_i32 s44, s59, {16*KTS}"]
    sh[(1, 3)] = ["s_bitset0_b32 s5, s59"]
    sh[(2, 0)] = [f"s_mul_i32 s45, s59, {16*VTS}"]
    sh[(3, 2)] = ["s_bitset0_b32 s63, s59"]
    sh[(4, 0)] = ["s_cmp_eq_u32 s46, 1"]
    sh[(4, 1)] = ["s_cbranch_scc1 A_LLOAD", "A_LLOADR:"]
    sh[(15, 2)] = ["s_sub_u32 s46, s46, 1"]
    sh[(15, 3)] = ["s_cmp_lg_u32 s46, 0"]
    for n in range(16):
        kt, t = n >> 2, n & 3
        n1 = (n + 1) & 15; kt1, t1 = n1 >> 2, n1 & 3
        n0 = (n - 1) & 15; kt0, t0 = n0 >> 2, n0 & 3
        sc = S + 16 * (n & 1); sn = S + 16 * (n1 & 1)
        pc = P + 8 * (n & 1); pp = P + 8 * (n0 & 1)
        mf = [f"{MF32} {vr(sn,16)}, {vr(KB+8*kt1,4)}, {vr(Q+8*t1,4)}, 0",
              f"{MF32} {vr(sn,16)}, {vr(KB+8*kt1+4,4)}, {vr(Q+8*t1+4,4)}, {vr(sn,16)}",
              f"{MF32} {vr(O+16*t0,16)}, {vr(VB+8*kt0,4)}, {vr(pp,4)}, {vr(O+16*t0,16)}",
              f"{MF32} {vr(O+16*t0,16)}, {vr(VB+8*kt0+4,4)}, {vr(pp+4,4)}, {vr(O+16*t0,16)}"]
        for m in range(4):
            a(mf[m])
            for ins in sh.get((n, m), []):
                if ins.endswith(":"): a.label(ins[:-1])
                else: a(ins)
            if m == 0 and t == 3:
                patch(KB + 8 * kt1)
            for e in range(4):
                a(f"v_exp_f32 v{sc+4*m+e}, v{sc+4*m+e}")
            for c_ in range(2):
                a(f"v_cvt_pk_bf16_f32 v{pc+2*m+c_}, v{sc+4*m+2*c_}, v{sc+4*m+2*c_+1}")
    a("s_cbranch_scc1 A_LOOP")
    a.stamp(8)
    if "dT" in EXP: a(f"s_sleep {DLY}")
    a("s_nop 0")
    a(f"{MF32} {vr(O+48,16)}, {vr(VB+24,4)}, {vr(P+8,4)}, {vr(O+48,16)}")
    a(f"{MF32} {vr(O+48,16)}, {vr(VB+28,4)}, {vr(P+12,4)}, {vr(O+48,16)}")
    a("v_mov_b32 v3, 0x5f800000")
    a("s_mov_b32 exec_lo, 0")
    for t in range(3):
        a(f"v_cmp_nlt_f32 {sr(4+2*t,2)}, v{O+16*t+12}, v3")
    for t in range(1, 3):
        a(f"v_mov_b32 v{O+16*t+13}, v{NM+t}")
    a("s_mov_b32 exec_lo, -1")
    for t in range(1, 3):
        for q in range(4):
            a(f"ds_write_b128 v{3+t}, {vr(O+16*t+4*q,4)} offset:{1024*q}")
    a("s_mov_b32 exec_lo, 0")
    a(f"v_cmp_nlt_f32 vcc, v{O+48+12}, v3")
    a(f"v_mov_b32 v{O+48+13}, v{NM+3}")
    a("s_mov_b32 exec_lo, -1")
    a("s_or_b32 s5, s5, s7")
    a("s_or_b32 s5, s5, s9")
    a("s_or_b32 s5, s5, vcc_hi")
    a("s_andn2_b32 s5, s5, s41")
    a("s_cbranch_scc1 A_FALLBACK")
    for q in range(4):
        a(f"ds_write_b128 v6, {vr(O+48+4*q,4)} offset:{1024*q}")
    a(f"v_mov_b32 v{T2}, v{O+12}")
    a(f"v_mov_b32 v{T2+1}, v{O+12}")
    a(f"v_mov_b32 v{T2+8}, v{NM}")
    a("v_add_u32 v10, 4096, v2")
    a("s_lshl_b32 s33, s24, 13")
    a(f"s_add_u32 s33, s33, {WOF}")
    a("s_lshl_b32 s36, s50, 15")
    a("s_add_u32 s36, s36, s33")
    a("s_xor_b32 s37, s50, 1")
    a("s_lshl_b32 s37, s37, 15")
    a("s_add_u32 s37, s37, s33")
    a("v_lshrrev_b32 v11, 5, v1")
    a("v_lshlrev_b32 v12, 6, v11")
    a("s_lshl_b32 s38, s49, 7")
    a(f"s_add_u32 s38, s38, {GO}")
    a("v_and_b32 v13, 31, v1")
    a("v_lshlrev_b32 v3, 12, v13")
    a("v_lshl_add_u32 v3, v11, 4, v3")
    a("s_lshl_b32 s39, s50, 17")
    a("s_lshr_b32 s34, s49, 4")
    a("s_lshl_b32 s34, s34, 10")
    a("s_add_u32 s39, s39, s34")
    a("s_and_b32 s34, s49, 15")
    a("s_lshl_b32 s34, s34, 5")
    a("s_add_u32 s39, s39, s34")
    a(f"s_add_u32 s39, s39, {BT}")
    a("s_waitcnt lgkmcnt(0)")
    a("s_barrier")
    LM = T2 + 2
    for s in range(3):
        a(f"ds_read_b64 {vr(LM+2*s,2)}, v8 offset:{4096*s+3072}")
    RB = O + 16
    for s in range(3):
        for q in range(4):
            a(f"ds_read_b128 {vr(RB+16*s+4*q,4)}, v7 offset:{4096*s+1024*q}")
    a(f"v_permlane32_swap_b32 v{T2}, v{T2+1}")
    a(f"v_permlane32_swap_b32 v{T2+8}, v{NM}")
    a("s_waitcnt lgkmcnt(12)")
    a(f"v_min3_f32 v{MX}, v{NM}, v{LM+1}, v{LM+3}")
    a(f"v_min_f32 v{MX}, v{MX}, v{LM+5}")
    a(f"v_sub_f32 v{S}, v{MX}, v{NM}")
    for s in range(3):
        a(f"v_sub_f32 v{S+2+2*s}, v{MX}, v{LM+2*s+1}")
    for s in range(4):
        a(f"v_exp_f32 v{S+2*s}, v{S+2*s}")
    a(f"v_mul_f32 v{MX+1}, v{S}, v{T2+1}")
    for s in range(3):
        a(f"v_fmac_f32 v{MX+1}, v{S+2+2*s}, v{LM+2*s}")
    a(f"v_rcp_f32 v{MX+1}, v{MX+1}")
    a("s_nop 0")
    for s in range(4):
        a(f"v_mul_f32 v{S+2*s}, v{S+2*s}, v{MX+1}")
    for r in range(0, 16, 2):
        a(f"v_pk_mul_f32 {vr(O+r,2)}, {vr(O+r,2)}, {vr(S,2)} op_sel_hi:[1,0]")
    for s in range(3):
        a(f"s_waitcnt lgkmcnt({8-4*s})")
        for r in range(0, 16, 2):
            a(f"v_pk_fma_f32 {vr(O+r,2)}, {vr(RB+16*s+r,2)}, {vr(S+2+2*s,2)}, {vr(O+r,2)} op_sel_hi:[1,0,1]")
    for r in range(0, 16, 2):
        a(f"v_cvt_pk_bf16_f32 v{P+r//2}, v{O+r}, v{O+r+1}")
    a("s_mov_b32 exec_lo, 0")
    a(f"v_mov_b32 v{P+6}, 0")
    a(f"v_mov_b32 v{P+7}, 0")
    a("s_mov_b32 exec_lo, -1")
    a.nvm = 0
    for f in range(2):
        tagos = a.vm(f"buffer_store_dwordx4 {vr(P+4*f,4)}, v9, s[20:23], s43 offen offset:{1024*f}{SC}")
    a.stamp(9)
    a("s_barrier")
    late_check(a, 248, 14, 15)
    WB, GG, BB = KB, Q, Q + 16
    NPRE = int(os.environ.get("NPRE", "4"))
    def wo_load(i):
        for x in range(2):
            a.vm(f"buffer_load_dwordx4 {vr(WB+8*i+4*x,4)}, v{2 if i<4 else 10}, s[20:23], s{36+x} offen offset:{1024*(i&3)}{SC}")
    for i in range(NPRE): wo_load(i)
    a("s_lshl_b32 s52, s47, 9")
    a("s_lshl_b32 s33, s24, 7")
    a("s_add_u32 s52, s52, s33")
    a(f"s_add_u32 s52, s52, {F_O}")
    a.wait_vm(tagos)
    cnt_add(a, 252, "s51")
    a("s_cmp_ge_u32 s32, 28")
    a("s_cbranch_scc1 L_END")
    for i in range(NPRE, 8): wo_load(i)
    for i in range(4):
        a.vm(f"buffer_load_dwordx4 {vr(GG+4*i,4)}, v12, s[20:23], s38 offen offset:{16*i}{SC}")
    for i in range(2):
        a.vm(f"buffer_load_dwordx4 {vr(BB+4*i,4)}, v3, s[20:23], s39 offen offset:{512*i}{SC}")
    cnt_load(a, 250, "s52")
    a("s_lshl_b32 s33, s24, 13")
    a(f"s_add_u32 s33, s33, {OF}")
    a("s_lshl_b32 s36, s49, 15")
    a("s_add_u32 s36, s36, s33")
    a("s_xor_b32 s37, s49, 1")
    a("s_lshl_b32 s37, s37, 15")
    a("s_add_u32 s37, s37, s33")
    a.srd(12, P_OUT, X_BYTES)
    a("v_mul_u32_u24 v12, 14336, v11")
    a("v_lshl_add_u32 v12, v13, 1, v12")
    a("s_mul_i32 s44, s49, 28672")
    a("s_lshl_b32 s33, s50, 6")
    a("s_add_u32 s44, s44, s33")
    for i in range(1, 4):
        a(f"s_add_u32 s{44+i}, s44, {3584*i}")
    a("s_waitcnt vmcnt(0)")
    BU = 232
    for i in range(8):
        a(f"v_lshlrev_b32 v{BU+2*i}, 16, v{BB+i}")
        a(f"v_and_b32 v{BU+2*i+1}, 0xffff0000, v{BB+i}")
    cnt_wait(a, 250, "s52", 8)
    a.stamp(10)
    AF = O
    tags = []
    for i in range(8):
        for x in range(2):
            t = a.vm(f"buffer_load_dwordx4 {vr(AF+8*i+4*x,4)}, v{2 if i<4 else 10}, s[20:23], s{36+x} offen offset:{1024*(i&3)}{SC}")
        tags.append(t)
    AC = [BB, S, S + 16, P]
    for i in range(8):
        a.wait_vm(tags[i])
        for t in (3, 2, 1, 0):
            sa, sb = t >> 1, t & 1
            c = "0" if i == 0 else vr(AC[t], 16)
            a(f"{MF32} {vr(AC[t],16)}, {vr(AF+8*i+4*sa,4)}, {vr(WB+8*i+4*sb,4)}, {c}")
    a.nop(9)
    a.stamp(11)
    if "dE" in EXP: a(f"s_sleep {DLY}")
    for t in (3, 2, 1):
        for q in range(4):
            a(f"ds_write_b128 v{3+t}, {vr(AC[t]+4*q,4)} offset:{1024*q}")
    for r in range(0, 16, 2):
        a(f"v_pk_add_f32 {vr(AC[0]+r,2)}, {vr(AC[0]+r,2)}, {vr(BU+r,2)} neg_lo:[0,1] neg_hi:[0,1]")
    a("s_waitcnt lgkmcnt(0)")
    a("s_barrier")
    for s in range(3):
        for q in range(4):
            a(f"ds_read_b128 {vr(AF+16*s+4*q,4)}, v7 offset:{4096*s+1024*q}")
    for s in range(3):
        a(f"s_waitcnt lgkmcnt({8-4*s})")
        for r in range(0, 16, 2):
            a(f"v_pk_add_f32 {vr(AC[0]+r,2)}, {vr(AC[0]+r,2)}, {vr(AF+16*s+r,2)}")
    for r in range(0, 16, 2):
        a(f"v_pk_fma_f32 {vr(AC[0]+r,2)}, {vr(AC[0]+r,2)}, {vr(GG+r,2)}, {vr(BU+r,2)}")
    for r in range(0, 16, 2):
        a(f"v_cvt_pk_bf16_f32 v{AF+r//2}, v{AC[0]+r}, v{AC[0]+r+1}")
    for r in range(16):
        op = "buffer_store_short_d16_hi" if r & 1 else "buffer_store_short"
        a(f"{op} v{AF+r//2}, v12, s[12:15], s{44+(r>>2)} offen offset:{896*(r&3)}{os.environ.get('OST', '')}")
    fin(a, 12)
    if "dblspan" in EXP:
        sel = os.environ.get("SELX")
        if sel:
            a(f"s_cmp_lg_u32 s31, {sel}")
            a("s_cbranch_scc1 L_END")
        a("s_memrealtime s[96:97]")
        a("s_waitcnt lgkmcnt(0)")
        a("s_sub_u32 s98, s96, s100")
        a("s_add_u32 s98, s98, s96")
        a.label("DBL")
        a("s_memrealtime s[96:97]")
        a("s_waitcnt lgkmcnt(0)")
        a("s_sub_u32 s99, s96, s98")
        a("s_cmp_lt_i32 s99, 0")
        a("s_cbranch_scc1 DBL")
    a("s_endpgm")
    a.label("A_SLOW")
    a(f"s_mov_b32 s62, {POLLMAX}")
    a.label("A_SLOW1")
    a(f"v_cmp_eq_u32 vcc, s58, v{PV_}")
    a("s_nop 1")
    a("s_and_b32 s5, vcc_lo, s63")
    a("s_cmp_eq_u32 s5, s63")
    a("s_cbranch_scc1 A_SLOW2")
    kv_poll()
    a("s_cmp_lg_u32 s5, 0")
    a("s_cbranch_scc1 A_SLOWR")
    a("s_sub_u32 s62, s62, 1")
    a("s_cbranch_scc1 A_SLOW2")
    a("s_waitcnt vmcnt(0)")
    a("s_branch A_SLOW1")
    a.label("A_SLOW2")
    a("s_or_b32 s5, s63, 128")
    a("s_branch A_SLOWR")
    a.label("A_LLOAD")
    late_load(a, 248, 14)
    a("s_branch A_LLOADR")
    a.label("A_FALLBACK")
    a("s_mov_b32 s41, -1")
    for t in range(4):
        a(f"v_mov_b32 v{MX+t}, 0xff800000")
    a("s_mov_b32 s44, 0")
    a("s_mov_b32 s45, 0")
    a("s_waitcnt vmcnt(0) lgkmcnt(0)")
    a.label("A_FBLOOP")
    for f in range(2):
        a(f"buffer_load_dwordx4 {vr(KB+4*f,4)}, v{VK0+f}, s[12:15], s44 offen{SC}")
    a("s_waitcnt vmcnt(0)")
    patch(KB)
    a("s_nop 1")
    for t in range(4):
        a(f"{MF32} {vr(O+16*t,16)}, {vr(KB,4)}, {vr(Q+8*t,4)}, 0")
        a(f"{MF32} {vr(O+16*t,16)}, {vr(KB+4,4)}, {vr(Q+8*t+4,4)}, {vr(O+16*t,16)}")
    a.nop(16)
    for i in range(8):
        for t in range(4):
            a(f"v_max3_f32 v{MX+t}, v{MX+t}, v{O+16*t+2*i}, v{O+16*t+2*i+1}")
    a(f"s_addk_i32 s44, {KTS}")
    a("s_add_u32 s45, s45, 1")
    a("s_and_b32 s4, s45, 3")
    a("s_cbranch_scc1 A_FBLOOP")
    a(f"s_add_u32 s44, s44, {12*KTS}")
    a("s_cmp_lt_u32 s45, 16")
    a("s_cbranch_scc1 A_FBLOOP")
    for t in range(4):
        a(f"v_mov_b32 v{T2+t}, v{MX+t}")
    a("s_nop 1")
    for t in range(4):
        a(f"v_permlane32_swap_b32 v{T2+t}, v{MX+t}")
    for t in range(4):
        a(f"v_max_f32 v{MX+t}, v{MX+t}, v{T2+t}")
    a("s_mov_b32 s59, 0")
    a("s_mov_b32 s63, 14")
    a("s_movk_i32 s5, 0x8e")
    a(f"v_mov_b32 v{PV_}, s58")
    for r in range(8):
        a(f"v_mov_b32 v{VB+24+r}, 0")
    first_loads()
    zero_acc()
    a("s_waitcnt vmcnt(0)")
    patch(KB)
    a("s_branch A_SETMAX")

def gen_B(a):
    a.label("L_B")
    a(f"s_setprio {PB}")
    a.stamp(1)
    if "noB" in EXP: a("s_endpgm")
    if "dB" in EXP:
        a("s_waitcnt vmcnt(0)"); a(f"s_sleep {DLY}")
    TS = 272; TW = 64 * TS
    UB = 4 * TW
    US = 4608
    SEL, ACT, INY, WY, KACC, WX = 16, 48, 112, 144, 176, 192
    Z8, Z1, Z256, TM = 236, 238, 242, 2
    FR, CT, UL = 48, 112, 192
    a(f"s_mul_i32 s29, s24, {TW}")
    a("s_mov_b32 m0, s29")
    a("v_mov_b32 v15, 0x3f80")
    a(f"ds_write_addtid_b32 v15 offset:{32*TS}")
    a("v_and_b32 v12, 1, v1")
    a("v_lshlrev_b32 v12, 4, v12")
    a("v_lshlrev_b32 v12, v12, v15" if False else "v_mov_b32 v15, 0x3f80")
    a("v_lshlrev_b32 v12, v12, v15")
    a("s_mov_b64 s[4:5], 3")
    for i in range(32):
        a(f"v_cndmask_b32 v{SEL+i}, 0, v12, s[4:5]")
        if i < 31: a("s_lshl_b64 s[4:5], s[4:5], 2")
    a("v_lshrrev_b32 v13, 5, v1")
    for r in range(4):
        a(f"v_mov_b32 v{KACC+r}, 0")
    a(f"v_mul_u32_u24 v12, {US-512}, v13")
    a("v_add_u32 v12, v12, v2")
    a(f"v_add_u32 v12, {UB}, v12")
    a(f"ds_write_b128 v12, {vr(KACC,4)}")
    a("s_and_b32 s42, s2, 31")
    a("s_lshl_b32 s42, s42, 7")
    a(f"s_add_u32 s42, s42, {F_XT}")
    a("v_lshrrev_b32 v12, 1, v1")
    a("v_and_b32 v13, 1, v1")
    a(f"v_mul_u32_u24 v3, {XTS}, v12")
    a("v_lshl_add_u32 v3, v13, 4, v3")
    a(f"s_mul_i32 s43, s24, {64*XTS}")
    a("s_mul_i32 s33, s31, 896")
    a("s_add_u32 s43, s43, s33")
    a("s_lshl_b32 s33, s39, 4")
    a("s_add_u32 s43, s43, s33")
    a(f"s_add_u32 s43, s43, {XT}")
    a(f"s_add_u32 s44, s43, {32*XTS}")
    a(f"v_mul_u32_u24 v241, {US}, v13")
    a("v_lshl_add_u32 v241, v12, 4, v241")
    a("s_lshl_b32 s33, s24, 10")
    a(f"s_add_u32 s33, s33, {UB + 512}")
    a("v_add_u32 v241, s33, v241")
    a("s_waitcnt lgkmcnt(0)")
    a("s_and_b32 s33, s26, 1")
    a("s_lshl_b32 s33, s33, 4")
    a("s_lshr_b32 s28, s28, s33")
    a("s_lshl_b32 s28, s28, 16")
    a("s_lshr_b32 s38, s38, s33")
    a("s_lshl_b32 s38, s38, 16")
    hi = float(np.float32(LOG2E)); lo = float(np.float32(LOG2E - hi))
    a(f"v_mov_b32 v13, {hex(f2u(hi))}")
    a("v_mul_f32 v14, s28, v13")
    a("v_fma_f32 v13, s28, v13, -v14")
    a(f"v_mov_b32 v15, {hex(f2u(lo))}")
    a("v_fmac_f32 v13, s28, v15")
    a("v_exp_f32 v14, v14")
    a(f"v_mul_f32 v13, {hex(f2u(math.log(2)))}, v13")
    a("v_fmac_f32 v14, v14, v13")
    a("v_cvt_pk_bf16_f32 v14, v14, v14")
    a("v_and_b32 v14, 0xffff0000, v14")
    a(f"s_mov_b32 s48, {hex(f2u(LOG2E))}")
    a(f"s_mov_b32 s49, {hex(f2u(1/(2*math.pi)))}")
    a("s_mov_b32 s47, 0x07060302")
    a("s_brev_b32 s46, 1")
    a("s_cmp_ge_u32 s2, 2")
    a("s_cbranch_scc1 B_NORDY")
    a("v_mov_b32 v4, 1")
    a("s_setprio 3")
    a("s_waitcnt vmcnt(6)")
    a("s_mov_b64 exec, 1")
    a(f"global_atomic_add v{VZ}, v4, {sr(P_DBG,2)} sc1")
    a("s_mov_b64 exec, -1")
    a(f"s_setprio {PB}")
    a.label("B_NORDY")
    a("s_waitcnt vmcnt(4)")
    a.stamp(2)
    r1 = [0, 0, 2, 4, 4, 4, 6, 8, 8]
    P_ = {}
    for r in range(9): P_[(0, r)] = r; P_[(1, r)] = 256 + r1[r]
    for i, e in enumerate((0, 4, 8)): P_[(0, 9 + i)] = 512 + e; P_[(1, 9 + i)] = 768 + e
    for i, e in enumerate((0, 8)):
        P_[(0, 12 + i)] = 1024 + e; P_[(1, 12 + i)] = 1280 + e; P_[(0, 14 + i)] = 1536 + e; P_[(1, 14 + i)] = 1792 + e
    EX = [None] * 32
    for (h, r), p in P_.items(): EX[8 * (r >> 2) + 4 * h + (r & 3)] = ("X", p)
    EY = [("Y", j) for j in range(32)]
    yops = [(("Y", 2), ("Y", 1), ("Y", 1)), (("Y", 3), ("Y", 2), ("Y", 1)), (("Y", 4), ("Y", 2), ("Y", 2))]
    yops += [(("Y", 4 + k), ("Y", 4), ("Y", k)) for k in (4, 1, 2, 3)]
    yops += [(("Y", 8 + k), ("Y", 8), ("Y", k)) for k in (8, 1, 2, 3, 4, 5, 6, 7)]
    yops += [(("Y", 16 + k), ("Y", 16), ("Y", k)) for k in range(1, 16)]
    xops = [(("X", 8), ("X", 0), ("Y", 1))]
    xops += [(("X", e + 1), ("X", e), ("Z", 1)) for e in range(7)]
    for base, es in ((256, (0, 8, 4, 2, 6)), (512, (0, 8, 4)), (768, (0, 8, 4)), (1024, (0, 8)), (1280, (0, 8)), (1536, (0, 8)), (1792, (0, 8))):
        xops += [(("X", base + e), ("X", base - 256 + e), ("Z", 256)) for e in es]
    def pass0():
        YB, XB = 48, 112
        plist = sorted(set(P_.values()))
        xreg = {p: XB + 2 * i for i, p in enumerate(plist)}
        row_of = {p: min(8 * (r >> 2) + 4 * h + (r & 3) for (h, r), pp in P_.items() if pp == p) for p in plist}
        yreg = {j: YB + 2 * j for j in range(1, 32)}
        def reg(n): return {"Y": yreg, "X": xreg, "Z": {1: Z1, 256: Z256}}[n[0]][n[1]]
        allops = xops + yops
        memo = {}
        def height(n):
            if n not in memo:
                memo[n] = max([0] + [1 + height(d) for (d, x, y) in allops if n in (x, y)])
            return memo[n]
        WB = int(os.environ.get("WB", "16")); XAT = int(os.environ.get("XAT", "6"))
        ring = list(range(WX, WX + 32))
        wq = []; ct = [0]
        def emit_write(n):
            t = ring[ct[0] % len(ring)]; ct[0] += 1
            r = reg(n)
            if n[0] == "Y":
                a(f"v_cvt_pk_bf16_f32 v{t}, v{r}, v{r+1}")
                wq.append(f"ds_write_addtid_b32 v{t} offset:{(32+n[1])*TS}")
            else:
                a(f"v_cvt_pk_bf16_f32 v{t}, v{r}, -v{r+1}")
                wq.append(f"ds_write_addtid_b32 v{t} offset:{row_of[n[1]]*TS}")
            if len(wq) >= WB:
                for ins in wq: a(ins)
                wq.clear()
        for i in range(2): a(f"v_lshlrev_b32 v{8+i}, 16, v{RAW+i}")
        a("v_pk_mul_f32 v[8:9], v[8:9], v[14:15] op_sel_hi:[1,0]")
        a("v_pk_mul_f32 v[8:9], v[8:9], s[48:49]")
        a(f"v_mul_f32 v{TM+2}, 0x41000000, v8")
        a(f"v_mul_f32 v{TM+3}, 0x41000000, v9")
        a(f"v_mul_f32 v{TM+4}, 0x43800000, v8")
        a(f"v_mul_f32 v{TM+5}, 0x43800000, v9")
        anch = [(TM + 2, yreg[1]), (8, Z1), (TM + 4, Z256)]
        for s_, d_ in anch:
            a(f"v_fract_f32 v{s_+1}, v{s_+1}")
            a(f"v_exp_f32 v{s_}, v{s_}")
        for s_, d_ in anch:
            a(f"v_cos_f32 v{d_}, v{s_+1}")
            a(f"v_sin_f32 v{d_+1}, v{s_+1}")
        a("s_nop 0")
        for s_, d_ in anch:
            a(f"v_pk_mul_f32 {vr(d_,2)}, {vr(d_,2)}, {vr(s_,2)} op_sel_hi:[1,0]")
        done = {("Y", 1), ("Z", 1), ("Z", 256)}
        towrite = [("Y", 1)]
        pending = sorted(allops, key=lambda o: -height(o[0]))
        nb = 0
        while pending:
            batch = [o for o in pending if o[1] in done and o[2] in done][:4]
            for o in batch: pending.remove(o)
            for (d, x, y) in batch: cmul(a, reg(d), reg(x), reg(y), 0)
            w = towrite; towrite = []
            for n in w[:2]: emit_write(n)
            for (d, x, y) in batch: cmul(a, reg(d), reg(x), reg(y), 1)
            for n in w[2:]: emit_write(n)
            for (d, x, y) in batch:
                done.add(d); towrite.append(d)
            nb += 1
            if nb == XAT:
                a("s_waitcnt vmcnt(0)")
                for i in range(2, 6): a(f"v_lshlrev_b32 v{8+i}, 16, v{RAW+i}")
                cmul(a, xreg[0], 12, 10, 0)
                cmul(a, xreg[0], 12, 10, 1)
                a(f"v_pk_mul_f32 {vr(xreg[0],2)}, {vr(xreg[0],2)}, v[14:15] op_sel_hi:[1,0]")
                done.add(("X", 0)); towrite.append(("X", 0))
        for n in towrite: emit_write(n)
        for ins in wq: a(ins)
    pass0()
    a.stamp(8)
    loc = {("Y", 1): Z8, ("Z", 1): Z1, ("Z", 256): Z256}
    for j in range(2, 17): loc[("Y", j)] = WY + 2 * (j - 1)
    free = list(range(WX, WX + 44, 2))
    mq = []
    since = [99]
    MG = int(os.environ.get("MG", "6"))
    def v(ins):
        a(ins); since[0] += 1
        if mq and since[0] >= MG and mq[0][1] <= cnt[0] - 2:
            a(mq.pop(0)[0]); since[0] = 0; cnt[0] += 1; lastm[0] = cnt[0]
        cnt[0] += 1
    cnt = [0]; lastm = [0]
    class V:
        def __call__(self, x): v(x)
    va = V()
    NEG = {("Y", 1): 240, ("Y", 2): 251, ("Y", 4): 252, ("Y", 8): 253, ("Y", 16): WY, ("Z", 1): WY + 1, ("Z", 256): 15}
    NEG[("Z", 1)] = 251
    def smul(d, x, y, phase):
        if y not in NEG: x, y = y, x
        D, X_, Y_ = loc[d], loc[x], loc[y]
        if phase == 0:
            v(f"v_mul_f32 v{D}, v{X_}, v{Y_}")
            v(f"v_mul_f32 v{D+1}, v{X_}, v{Y_+1}")
        else:
            v(f"v_fmac_f32 v{D}, v{X_+1}, v{NEG[y]}")
            v(f"v_fmac_f32 v{D+1}, v{X_+1}, v{Y_}")
            if d in NEG: v(f"v_xor_b32 v{NEG[d]}, s46, v{D+1}")
    def table(ops, E, IN, neg, done, pre=None):
        uses = {}
        for (d, x, y) in ops:
            for n in (x, y): uses[n] = uses.get(n, 0) + 1
        for n in E: uses[n] = uses.get(n, 0) + 1
        def release(n):
            uses[n] -= 1
            if uses[n] == 0 and n in loc and WX <= loc[n] < WX + 44: free.append(loc[n])
        memo = {}
        def height(n):
            if n not in memo:
                memo[n] = max([0] + [1 + height(d) for (d, x, y) in ops if n in (x, y)])
            return memo[n]
        first = {n: i for i, n in reversed(list(enumerate(E)))}
        pending = sorted(ops, key=lambda o: (-height(o[0]), first.get(o[0], 99)))
        pairs = list(range(16)); gdone = [0] * 4; gseq = [0]
        def cvts(avail):
            for q in list(pairs):
                n0, n1 = E[2 * q], E[2 * q + 1]
                if n0 in avail and n1 in avail:
                    pairs.remove(q)
                    for part in range(2):
                        sg = "-" if (neg and part) else ""
                        s0 = (("1.0", "0")[part]) if n0 == ("Y", 0) else f"{sg}v{loc[n0]+part}"
                        v(f"v_cvt_pk_bf16_f32 v{IN+16*part+q}, {s0}, {sg}v{loc[n1]+part}")
                    release(n0); release(n1)
                    g = q >> 2; gdone[g] += 1
                    if gdone[g] == 4:
                        for hs in range(2):
                            for part in range(2):
                                acc = vr(ACT + 32 * hs + 16 * part, 16)
                                mq.append((f"{MF32} {acc}, {vr(IN+16*part+4*g,4)}, {vr(SEL+16*hs+4*g,4)}, {'0' if gseq[0] == 0 else acc}", cnt[0]))
                        gseq[0] += 1
        nb = 0
        while pending:
            batch = [o for o in pending if o[1] in done and o[2] in done][:4]
            for o in batch:
                pending.remove(o)
                if o[0] not in loc: loc[o[0]] = free.pop(0)
            for (d, x, y) in batch: smul(d, y, x, 0) if x in NEG else smul(d, x, y, 0)
            for (d, x, y) in batch: smul(d, y, x, 1) if x in NEG else smul(d, x, y, 1)
            for (d, x, y) in batch: release(x); release(y)
            if pre and pre(nb): pre = None
            if pre is None: cvts(set(done))
            for (d, x, y) in batch: done.add(d)
            nb += 1
        assert pre is None
        cvts(done)
        assert not pairs
    def packs(OUT, hs):
        for r in range(16):
            v(f"v_perm_b32 v{OUT+16*hs+r}, v{ACT+32*hs+16+r}, v{ACT+32*hs+r}, s47")
    def drain():
        while mq:
            if mq[0][1] > cnt[0] - 2: a("s_nop 1"); cnt[0] += 2
            a(mq.pop(0)[0]); cnt[0] += 1; lastm[0] = cnt[0]
    for i in range(2): v(f"v_and_b32 v{8+i}, 0xffff0000, v{RAW+i}")
    v("v_mul_f32 v8, v8, v14"); v("v_mul_f32 v9, v9, v14")
    v("v_mul_f32 v8, s48, v8"); v("v_mul_f32 v9, s49, v9")
    v(f"v_mul_f32 v{TM+2}, 0x41000000, v8")
    v(f"v_mul_f32 v{TM+3}, 0x41000000, v9")
    v(f"v_mul_f32 v{TM+4}, 0x43800000, v8")
    v(f"v_mul_f32 v{TM+5}, 0x43800000, v9")
    anchors = [(TM + 2, Z8), (8, Z1), (TM + 4, Z256)]
    for s_, d_ in anchors:
        v(f"v_fract_f32 v{s_+1}, v{s_+1}")
        v(f"v_exp_f32 v{s_}, v{s_}")
    for s_, d_ in anchors:
        v(f"v_cos_f32 v{d_}, v{s_+1}")
        v(f"v_sin_f32 v{d_+1}, v{s_+1}")
    a("s_nop 0")
    for s_, d_ in anchors:
        v(f"v_mul_f32 v{d_}, v{d_}, v{s_}")
        v(f"v_mul_f32 v{d_+1}, v{d_+1}, v{s_}")
    v(f"v_xor_b32 v{NEG[('Y',1)]}, s46, v{Z8+1}")
    v(f"v_xor_b32 v{NEG[('Z',256)]}, s46, v{Z256+1}")
    table(yops, EY, INY, False, {("Y", 0), ("Y", 1)})
    a("s_setprio 3")
    nonce_issue(a, 250, True)
    a(f"s_setprio {PB}")
    for i in range(2, 6): v(f"v_and_b32 v{8+i}, 0xffff0000, v{RAW+i}")
    loc[("X", 0)] = free.pop(0)
    X0 = loc[("X", 0)]
    v(f"v_xor_b32 v{NEG[('Z',1)]}, s46, v{Z1+1}")
    v("v_mul_f32 v10, v10, v14"); v("v_mul_f32 v11, v11, v14")
    v(f"v_mul_f32 v{X0}, v12, v10"); v(f"v_mul_f32 v{X0+1}, v12, v11")
    v(f"v_fma_f32 v{X0}, -v13, v11, v{X0}"); v(f"v_fmac_f32 v{X0+1}, v13, v10")
    def ypack(nb):
        if mq or cnt[0] - lastm[0] < 13: return False
        packs(INY, 0); packs(INY, 1)
        return True
    table(xops, EX, WY, True, {("X", 0), ("Y", 1), ("Z", 1), ("Z", 256)}, ypack)
    drain()
    a("v_and_b32 v4, 31, v1")
    a(f"v_mul_u32_u24 v4, {TS}, v4")
    a("v_lshrrev_b32 v5, 5, v1")
    a("v_lshl_add_u32 v4, v5, 4, v4")
    a("v_add_u32 v4, s29, v4")
    a("v_mov_b32 v5, v4")
    for (m, src) in ((5, 4), (12, 7), (13, 7), (20, 15)):
        a(f"s_add_u32 s33, s29, {src*TS}")
        a(f"v_writelane_b32 v5, s33, {m}")
        a("s_add_u32 s33, s33, 16")
        a(f"v_writelane_b32 v5, s33, {m+32}")
    F0 = [SEL + 8 * i for i in range(4)] + [WX + 8 + 8 * i for i in range(4)]
    for ks in range(8):
        a(f"ds_read_b128 {vr(F0[ks],4)}, v5 offset:{32*ks}")
        a(f"ds_read_b128 {vr(F0[ks]+4,4)}, v4 offset:{32*TS+32*ks}")
    a("s_setprio 3")
    a("s_waitcnt vmcnt(0)")
    nonce_take(a, 250, True)
    cnt_load(a, 250, "s42")
    a(f"s_setprio {PB}")
    MG = 4
    packs(WY, 0)
    for ks in range(4):
        mq.append((f"{MF32} {vr(KACC,16)}, {vr(WY+4*ks,4)}, {vr(INY+4*ks,4)}, {vr(KACC,16) if ks else '0'}", cnt[0]))
    packs(WY, 1)
    drain()
    a("s_waitcnt lgkmcnt(0)")
    for ks in range(8):
        a(f"{MF32} {vr(KACC,16)}, {vr(F0[ks],4)}, {vr(F0[ks]+4,4)}, {vr(KACC,16)}")
    for ks in range(4, 8):
        a(f"{MF32} {vr(KACC,16)}, {vr(WY+4*ks,4)}, {vr(INY+4*ks,4)}, {vr(KACC,16)}")
    def u_loads():
        for i in range(2):
            a(f"buffer_load_dwordx4 {vr(UL+4*i,4)}, v3, s[20:23], s{43+i} offen{SC}")
    a(f"s_setprio {PC}")
    a.stamp(3)
    a("v_add_u32 v242, s29, v2")
    a("s_xor_b32 s33, s24, 1")
    a(f"s_mul_i32 s33, s33, {TW}")
    a("v_add_u32 v243, s33, v2")
    a("s_and_b32 s33, s24, 2")
    a(f"s_mul_i32 s48, s33, {TW}")
    a("s_add_u32 s48, s48, 4096")
    a("s_mul_i32 s33, s27, 4160")
    a("s_add_u32 s49, s33, s48")
    a("v_sub_u32 v6, 63, v1")
    a("v_lshlrev_b32 v6, 4, v6")
    a("v_add_u32 v6, s49, v6")
    a("v_and_b32 v7, 1, v1")
    a("v_cmp_eq_u32 vcc, 1, v7")
    for q in range(4):
        a(f"ds_write_b128 v242, {vr(KACC+4*q,4)} offset:{1024*q}")
    a("v_lshrrev_b32 v4, 4, v1")
    a("v_and_b32 v5, 15, v1")
    a("v_add_u32 v7, 1, v5")
    a("v_lshrrev_b32 v7, 1, v7")
    a("v_lshlrev_b32 v8, 2, v4")
    a("v_sub_u32 v8, v8, v7")
    a("v_and_b32 v7, 1, v5")
    a("v_mul_u32_u24 v7, 1040, v7")
    a("v_sub_u32 v8, v8, v7")
    a(f"v_add_u32 v8, {1016 + 1040 - 48 - 128}, v8")
    a("v_lshlrev_b32 v8, 2, v8")
    a("s_lshl_b32 s33, s27, 8")
    a("s_sub_u32 s33, s48, s33")
    a("v_add_u32 v8, s33, v8")
    for i in range(1, 4):
        a(f"v_subrev_u32 v{8+i}, {1024*i}, v8")
    a("s_waitcnt lgkmcnt(0)")
    a.stamp(10)
    a("s_barrier")
    a.stamp(11)

    for q in range(4):
        a(f"ds_read_b128 {vr(FR+4*q,4)}, v243 offset:{1024*q}")
    a("s_waitcnt vmcnt(0)")
    a("v_readfirstlane_b32 s45, v250")
    a("s_nop 1")
    a("s_cmp_lg_u32 s45, 32")
    a("s_cbranch_scc1 B_NOU")
    u_loads()
    a("s_branch B_NOU2")
    a.label("B_NOU")
    cnt_load(a, 250, "s42")
    a.label("B_NOU2")
    a("s_lshr_b32 s33, s24, 1")
    a(f"s_mul_i32 s36, s33, {US}")
    a(f"s_add_u32 s36, s36, {UB + 512}")
    a("v_lshlrev_b32 v12, 5, v5")
    a("v_lshl_add_u32 v13, v4, 3, v12")
    a("v_lshl_add_u32 v12, v4, 4, v12")
    a("s_lshl_b32 s33, s27, 8")
    a("s_sub_u32 s33, s36, s33")
    a(f"s_sub_u32 s33, s33, {32 + 192}")
    a("v_add_u32 v12, s33, v12")
    a("s_lshl_b32 s33, s27, 11")
    a("s_add_u32 s33, s33, s36")
    a("v_add_u32 v13, s33, v13")
    a("s_lshl_b32 s40, s26, 1")
    a("s_add_u32 s40, s40, s27")
    a("s_lshl_b32 s41, s40, 11")
    a(f"s_add_u32 s41, s41, {BT}")
    a("s_lshr_b32 s40, s26, 5")
    a("s_lshl_b32 s40, s40, 7")
    a(f"s_add_u32 s40, s40, {F_B}")
    a("s_waitcnt lgkmcnt(0)")
    for r in range(16):
        a(f"v_add_f32 v{KACC+r}, v{KACC+r}, v{FR+r}")
    K_ = KACC; W_ = FR + 16
    a(f"v_cndmask_b32 v{CT}, v{K_+12}, v{K_+13}, vcc")
    a(f"v_cndmask_b32 v{CT+1}, v{K_+14}, v{K_+15}, vcc")
    for i in range(4):
        a(f"v_mov_b32 v{W_+16+i}, 0")
    def pk(d, lo_, hi_): a(f"v_cvt_pk_bf16_f32 v{d}, v{lo_}, v{hi_}")
    a("s_cmp_eq_u32 s27, 1")
    a("s_cbranch_scc1 B_ODD")
    A_, B_, C_ = K_ + 9, K_ + 10, K_ + 11
    for i in range(4): pk(W_ + i, K_ + 7 - 2 * i, K_ + 6 - 2 * i)
    for i, (x, y) in enumerate(((C_, C_), (B_, B_), (B_, A_), (A_, A_))): pk(W_ + 4 + i, x, y)
    for sl in range(2):
        A2, C2, M2 = K_ + 12 + 2 * sl, K_ + 13 + 2 * sl, CT + sl
        for i, (x, y) in enumerate(((C2, C2), (C2, M2), (A2, A2), (A2, A2))): pk(W_ + 8 + 4 * sl + i, x, y)
    a("s_branch B_IMG")
    a.label("B_ODD")
    for i in range(4): pk(W_ + i, K_ + 8 - 2 * i, K_ + 7 - 2 * i)
    for i, (x, y) in enumerate(((C_, C_), (C_, B_), (B_, B_), (A_, A_))): pk(W_ + 4 + i, x, y)
    for sl in range(2):
        A2, C2, M2 = K_ + 12 + 2 * sl, K_ + 13 + 2 * sl, CT + sl
        for i, (x, y) in enumerate(((C2, C2), (C2, C2), (M2, A2), (A2, A2))): pk(W_ + 8 + 4 * sl + i, x, y)
    a("s_mov_b64 exec, 1")
    pk(W_ + 16, K_, VZ)
    a("s_mov_b64 exec, -1")
    a.label("B_IMG")
    for sl in range(4):
        a(f"ds_write_b128 v6, {vr(W_+4*sl,4)} offset:{(3-sl)*1024}")
    a("v_add_u32 v7, s49, v2")
    a("s_mov_b64 exec, 3")
    a(f"ds_write_b128 v7, {vr(W_+16,4)} offset:4096")
    a("s_mov_b64 exec, -1")
    a("s_cmp_eq_u32 s45, 32")
    a("s_cbranch_scc1 B_UOK")
    a("s_waitcnt vmcnt(0)")
    cnt_wait(a, 250, "s42", 32, 4)
    u_loads()
    a.label("B_UOK")
    a.stamp(7)
    a("s_waitcnt vmcnt(0)")
    for i in range(2):
        a(f"ds_write_b128 v241, {vr(UL+4*i,4)} offset:{512*i}")
    a("s_waitcnt lgkmcnt(0)")
    a("s_barrier")
    a.stamp(4)
    a(f"s_setprio {os.environ.get('PV', '0')}")
    FB, CAC = 16, 144
    a.nds = 0
    tg = {}
    def loadstep(stp):
        b = FB + 64 * (stp & 1)
        for i in range(8):
            o = 128 * (1 - (i & 1)) + 16 * (3 - stp)
            a.ds(f"ds_read2_b32 {vr(b+4*i,2)}, v{8+(i>>1)} offset0:{o} offset1:{o+1}")
            a.ds(f"ds_read2_b32 {vr(b+4*i+2,2)}, v{8+(i>>1)} offset0:{o+2} offset1:{o+3}")
            tg[(stp, i)] = a.ds(f"ds_read_b128 {vr(b+32+4*i,4)}, v12 offset:{512*i+64*(3-stp)}")
    loadstep(0)
    for stp in range(4):
        b = FB + 64 * (stp & 1)
        order = sorted([(i, tp) for i in range(8) for tp in range(8 - i)], key=lambda x: (max(x), x[0] + x[1]))
        nxt = []
        if stp < 3:
            b2 = FB + 64 * ((stp + 1) & 1)
            for i in range(8):
                o = 128 * (1 - (i & 1)) + 16 * (3 - stp - 1)
                nxt.append((None, f"ds_read2_b32 {vr(b2+4*i,2)}, v{8+(i>>1)} offset0:{o} offset1:{o+1}"))
                nxt.append((None, f"ds_read2_b32 {vr(b2+4*i+2,2)}, v{8+(i>>1)} offset0:{o+2} offset1:{o+3}"))
                nxt.append(((stp + 1, i), f"ds_read_b128 {vr(b2+32+4*i,4)}, v12 offset:{512*i+64*(3-stp-1)}"))
        waited = -1
        seen = set()
        for k, (i, tp) in enumerate(order):
            if max(i, tp) > waited:
                waited = max(i, tp)
                a.wait_ds(tg[(stp, waited)])
            t = i + tp
            c = vr(CAC + 4 * t, 4)
            if stp == 0 and t not in seen:
                c = "0"; seen.add(t)
            a(f"{MF16} {vr(CAC+4*t,4)}, {vr(b+4*i,4)}, {vr(b+32+4*tp,4)}, {c}")
            if k >= 8 and nxt:
                key, ins = nxt.pop(0)
                r = a.ds(ins)
                if key: tg[key] = r
        assert not nxt
    a.stamp(5)
    a(f"s_setprio {os.environ.get('PT', '2')}")
    RR = 16
    for tl in range(4):
        a(f"ds_read_b64 {vr(80+2*tl,2)}, v13 offset:{512*tl}")
    a("s_cmp_eq_u32 s27, 1")
    a.nop(3)
    a("s_cbranch_scc1 B_R1")
    for par in range(2):
        if par: a.label("B_R1")
        for q in range(4):
            a(f"ds_write_b128 v242, {vr(CAC+16*(1-par)+4*q,4)} offset:{1024*q}")
        a("s_waitcnt lgkmcnt(0)")
        a("s_barrier")
        for q in range(4):
            a(f"ds_read_b128 {vr(RR+4*q,4)}, v243 offset:{1024*q}")
        a("s_waitcnt lgkmcnt(0)")
        for r in range(16):
            a(f"v_add_f32 v{RR+r}, v{RR+r}, v{CAC+16*par+r}")
        if not par: a("s_branch B_R2")
    a.label("B_R2")
    for t in range(4):
        for i in range(2):
            a(f"v_lshlrev_b32 v{88+2*i}, 16, v{80+2*t+i}")
            a(f"v_and_b32 v{88+2*i+1}, 0xffff0000, v{80+2*t+i}")
        for r in range(4):
            a(f"v_fmac_f32 v{RR+4*t+r}, s38, v{88+r}")
        for i in range(2):
            a(f"v_cvt_pk_bf16_f32 v{80+2*t+i}, v{RR+4*t+2*i}, v{RR+4*t+2*i+1}")
    a("s_nop 1")
    for p in range(2):
        for i in range(2):
            a(f"v_permlane16_swap_b32 v{80+4*p+i}, v{80+4*p+2+i}")
    for p in range(2):
        a(f"buffer_store_dwordx4 {vr(80+4*p,4)}, v2, s[20:23], s41 offen offset:{1024*p}{SC}")
    a("s_waitcnt vmcnt(0)")
    cnt_add(a, 4, "s40")
    fin(a, 6)
    a("s_endpgm")

def gen_C(a):
    a.label("L_C")
    if "dC" in EXP: a(f"s_sleep {DLY}")
    a("s_setprio 3")
    R, U, GU, GW = 16, 80, 144, 160
    a("s_sub_u32 s25, s2, 224")
    a("s_lshl_b32 s26, s31, 2")
    a("s_sub_u32 s33, s32, 28")
    a("s_add_u32 s26, s26, s33")
    a("s_lshl_b32 s26, s26, 2")
    a("s_add_u32 s26, s26, s24")
    a("s_mul_i32 s36, s26, 14336")
    for i in range(1, 4):
        a(f"s_add_u32 s{36+i}, s36, {3584*i}")
    a("s_add_u32 s45, s25, s24")
    a("s_waitcnt lgkmcnt(0)")
    a.srd(20, P_WS, WS_SIZE)
    a.srd(12, P_X, X_BYTES)
    for r in range(16):
        a(f"buffer_load_dwordx4 {vr(R+4*r,4)}, v2, s[12:15], s{36+(r>>2)} offen offset:{896*(r&3)}")
    a.srd(16, P_GW, 896)
    a(f"buffer_load_dwordx4 {vr(GW,4)}, v2, s[16:19], 0 offen")
    a("v_mov_b32 v4, 1")
    a(f"s_mul_i32 s36, s26, {2*XTS}")
    a(f"s_add_u32 s36, s36, {XT}")
    a("s_add_u32 s37, s36, 3584")
    a(f"s_add_u32 s38, s36, {XTS}")
    a("s_add_u32 s39, s38, 3584")
    a("s_mov_b32 s46, 0x05040100")
    a("s_mov_b32 s47, 0x07060302")
    a("s_mov_b32 exec_hi, 0xffffff")
    for hb in range(2):
        a(f"s_waitcnt vmcnt({9 if hb == 0 else 8})")
        for cc in range(8):
            i, e = cc >> 1, cc & 1
            u = U + 32 * hb + 4 * cc
            for q in range(4):
                a(f"v_perm_b32 v{u+q}, v{R+32*hb+4*(2*q+1)+i}, v{R+32*hb+4*(2*q)+i}, s{46+e}")
            a(f"buffer_store_dwordx4 {vr(u,4)}, v2, s[20:23], s{36+2*hb+(cc>>2)} offen offset:{896*(cc&3)}{SC}")
    a.stamp(1)
    a("s_mov_b64 exec, -1")
    nonce_issue(a, 250)
    a("v_lshlrev_b32 v5, 7, v1")
    a(f"s_mov_b32 s41, {F_XT}")
    for r in range(16):
        a(f"v_mov_b32 v{GU+r}, 0")
    a("s_mov_b32 exec_hi, 0xffffff")
    for i in range(4):
        for r in range(16):
            a(f"v_dot2c_f32_bf16 v{GU+r}, v{R+4*r+i}, v{GW+i}")
    a("s_mov_b64 exec, -1")
    a("s_waitcnt vmcnt(0)")
    nonce_take(a, 250)
    a("s_barrier")
    a("s_cmp_lg_u32 s24, 0")
    a("s_cbranch_scc1 C_NOADD")
    a("s_mov_b32 exec_hi, 0")
    a("buffer_atomic_add v4, v5, s[20:23], s41 offen sc1")
    a("s_mov_b64 exec, -1")
    a.label("C_NOADD")
    a.stamp(2)
    a("s_setprio 1")
    a("s_min_u32 s45, s25, 15")
    a("s_mul_i32 s33, s45, 25088")
    a("s_mul_i32 s34, s24, 7168")
    a("s_add_u32 s33, s33, s34")
    a("v_add_u32 v3, 4096, v2")
    a.srd(12, P_WO, 448 * 896)
    a("s_mov_b32 m0, s34")
    a("s_nop 0")
    for i in range(4):
        a(f"buffer_load_dwordx4 v2, s[12:15], s33 offen offset:{1024*i} lds")
    a("s_add_u32 m0, s34, 4096")
    a("s_nop 0")
    for i in range(3):
        a(f"buffer_load_dwordx4 v3, s[12:15], s33 offen offset:{1024*i} lds")
    for sh in ("row_shr:1", "row_shr:2", "row_shr:4", "row_shr:8"):
        for r in range(16):
            a(f"v_add_f32_dpp v{GU+r}, v{GU+r}, v{GU+r} {sh} row_mask:0xf bank_mask:0xf bound_ctrl:0")
    for r in range(16):
        a(f"v_add_f32_dpp v{GU+r}, v{GU+r}, v{GU+r} row_bcast:15 row_mask:0xa bank_mask:0xf")
    for r in range(16):
        a(f"v_add_f32_dpp v{GU+r}, v{GU+r}, v{GU+r} row_bcast:31 row_mask:0xc bank_mask:0xf")
    for op in (f"v_mul_f32 vX, {hex(f2u(-LOG2E))}, vX", "v_exp_f32 vX, vX", "v_add_f32 vX, 1.0, vX", "v_rcp_f32 vX, vX"):
        for r in range(16):
            a(op.replace("vX", f"v{GU+r}"))
    a("s_lshl_b32 s35, s26, 6")
    a(f"s_add_u32 s35, s35, {GO}")
    a("s_lshr_b32 s37, s26, 1")
    a("s_lshl_b32 s37, s37, 7")
    a(f"s_add_u32 s37, s37, {F_G}")
    a("s_mov_b32 exec_lo, 0")
    a("s_mov_b32 exec_hi, 0x80000000")
    for i in range(4):
        a(f"buffer_store_dwordx4 {vr(GU+4*i,4)}, v{VZ}, s[20:23], s35 offen offset:{16*i}{SC}")
    a("s_mov_b64 exec, -1")
    a("v_lshrrev_b32 v15, 5, v1")
    a("v_bfe_u32 v13, v1, 2, 2")
    a("v_lshl_add_u32 v13, v15, 2, v13")
    a("v_mul_u32_u24 v13, 896, v13")
    a("v_bfe_u32 v14, v1, 4, 1")
    a("v_lshl_add_u32 v13, v14, 5, v13")
    a("v_and_b32 v14, 3, v1")
    a("v_lshl_add_u32 v12, v14, 3, v13")
    a("s_lshr_b32 s49, s24, 1")
    a("s_mul_i32 s36, s49, 14336")
    a("s_mul_i32 s38, s27, 448")
    a("s_add_u32 s36, s36, s38")
    a("v_add_u32 v12, s36, v12")
    a(f"s_mul_i32 s38, s27, {7*32768}")
    a("s_lshl_b32 s39, s45, 1")
    a("s_add_u32 s39, s39, s49")
    a("s_lshl_b32 s39, s39, 10")
    a("s_add_u32 s38, s38, s39")
    a(f"s_add_u32 s38, s38, {WOF}")
    a("s_lshr_b32 s40, s25, 2")
    a("s_lshl_b32 s40, s40, 7")
    a(f"s_add_u32 s40, s40, {F_WO}")
    a("s_waitcnt vmcnt(0)")
    cnt_add(a, 4, "s37")
    a("s_cmp_ge_u32 s25, 16")
    a("s_cbranch_scc1 C_END")
    a("s_barrier")
    for i in range(7):
        for hr in range(2):
            a(f"ds_read_b64_tr_b16 {vr(16+4*i+2*hr,2)}, v12 offset:{64*i+8*hr*896}")
    a("s_waitcnt lgkmcnt(0)")
    a("s_cmp_eq_u32 s49, 0")
    a("s_cbranch_scc1 C_WO2")
    a("s_mov_b32 exec_lo, 0")
    for i in range(7):
        a(f"v_mov_b32 v{16+4*i+2}, 0")
        a(f"v_mov_b32 v{16+4*i+3}, 0")
    a("s_mov_b32 exec_lo, -1")
    a.label("C_WO2")
    for i in range(7):
        a(f"buffer_store_dwordx4 {vr(16+4*i,4)}, v2, s[20:23], s38 offen{SC}")
        if i < 6: a("s_add_u32 s38, s38, 32768")
    a("s_waitcnt vmcnt(0)")
    cnt_add(a, 4, "s40")
    a.label("C_END")
    fin(a, 3)

def gen():
    a = Asm()
    gen_entry(a)
    gen_A(a)
    gen_B(a)
    gen_C(a)
    a.label("L_END")
    a("s_endpgm")
    return a.text()

HEADER = open("cdna_kernels/" + NAME + ".s.ref").read().split("; Override launch geometry")[0]

if __name__ == "__main__":
    name = NAME + "_kernel"
    out = HEADER + "; @launch grid=(512,1,1) block=(256,1,1) lds=81920\n"
    out += '.amdgcn_target "amdgcn-amd-amdhsa--gfx950"\n' + kernel_header(name) + gen() + kernel_desc(name, 256)
    dst = sys.argv[1] if len(sys.argv) > 1 else "cdna_kernels/" + NAME + ".s"
    open(dst, "w").write(out)
```

```python
import sys, math, os
import numpy as np
from dsl import *

NAME = "gated_mix__mha_block__ssm_conv_s4__prompt"
KTS = 28672; VTS = 32256; XTS = 7296
KF = 0x000000
VF = 0x200000
XT = 0x400000
GO = 0x5D0000
WOF = 0x600000
OF = 0x880000
BT = 0x690000
FL = 0x670000
F_KV = FL
F_O = FL + 256 * 128
F_XT = FL + 384 * 128
F_G = FL + 416 * 128
F_B = FL + 480 * 128
F_WO = FL + 496 * 128
WS_SIZE = 0xA90000
X_BYTES = 2048 * 896
W_BYTES = 448 * 2688
LOG2E = 1.4426950408889634
QSCALE = LOG2E * 28 ** -0.5
MF32 = "v_mfma_f32_32x32x16_bf16"
MF16 = "v_mfma_f32_16x16x32_bf16"
SC = " sc1"
NON = 60
POLLMAX = 40000
EXP = os.environ.get("EXP", "")
DLY = int(os.environ.get("DLY", "32"))
DEPTH = int(os.environ.get("DEPTH", "3"))
PA = int(os.environ.get("PA", "2")); PB = int(os.environ.get("PB", "3")); PC = int(os.environ.get("PC", "3"))
P_X, P_W, P_WO, P_PAR, P_LDT, P_DSK, P_GW, P_OUT, P_DBG, P_WS = 64, 66, 68, 72, 84, 86, 88, 90, 92, 94
VZ = 255

uid = [0]
def fin(a, idx):
    if not os.environ.get("STAMP"): return
    a("s_waitcnt vmcnt(0)")
    a.stamp(idx)
    dw = os.environ.get("DBGWG")
    if dw:
        uid[0] += 1; u = uid[0]
        a("s_lshl_b32 s96, s2, 2")
        a("s_add_u32 s96, s96, s24")
        a(f"s_cmp_lg_u32 s96, {int(dw)*4}")
        a(f"s_cbranch_scc1 DG{u}")
        a("s_mov_b64 exec, -1")
        a("v_readlane_b32 s97, v254, 1")
        a("v_mbcnt_lo_u32_b32 v0, -1, 0")
        a("v_lshlrev_b32 v1, 1, v0")
        a("v_subrev_u32 v254, s97, v254")
        a("v_and_b32 v1, -4, v1")
        a("s_mov_b32 exec_lo, 0xaaaaaaa8")
        a("s_mov_b32 exec_hi, 0")
        a(f"global_store_dword v1, v254, {sr(P_DBG,2)}")
        a.label(f"DG{u}")
        return
    a.stamp_flush(P_WS)

def cmul(a, d, x, y, phase):
    if phase == 0:
        a(f"v_pk_mul_f32 {vr(d,2)}, {vr(x,2)}, {vr(y,2)} op_sel_hi:[0,1]")
    else:
        a(f"v_pk_fma_f32 {vr(d,2)}, {vr(x,2)}, {vr(y,2)}, {vr(d,2)} op_sel:[1,1,0] op_sel_hi:[1,0,1] neg_lo:[1,0,0]")

def nonce_issue(a, v, allw=False):
    uid[0] += 1; u = uid[0]
    if not allw:
        a("s_cmp_lg_u32 s24, 0")
        a(f"s_cbranch_scc1 NI{u}")
    a(f"global_load_dword v{v}, v{VZ}, {sr(P_DBG,2)}{os.environ.get('NSC', ' sc1')}")
    a.label(f"NI{u}")

def nonce_take(a, v, allw=False):
    uid[0] += 1; u = uid[0]
    if not allw:
        a("s_cmp_lg_u32 s24, 0")
        a(f"s_cbranch_scc1 ND{u}")
    a(f"s_mov_b32 s62, {POLLMAX}")
    a.label(f"NT{u}")
    a(f"v_readfirstlane_b32 s{NON}, v{v}")
    a("s_nop 1")
    a(f"s_cmp_ge_u32 s{NON}, 8")
    a(f"s_cbranch_scc1 ND{u}")
    a("s_sub_u32 s62, s62, 1")
    a(f"s_cbranch_scc1 ND{u}")
    a("s_sleep 8")
    a(f"global_load_dword v{v}, v{VZ}, {sr(P_DBG,2)} sc1")
    a("s_waitcnt vmcnt(0)")
    a(f"s_branch NT{u}")
    a.label(f"ND{u}")

def cnt_load(a, vd, soff):
    a(f"v_mov_b32 v{vd}, 0")
    a("s_mov_b64 exec, 1")
    t = a.vm(f"buffer_atomic_add v{vd}, v{VZ}, s[20:23], {soff} offen sc0 sc1")
    a("s_mov_b64 exec, -1")
    return t

def cnt_wait(a, vd, soff, target, sleep=1):
    uid[0] += 1; u = uid[0]
    a(f"s_mov_b32 s62, {POLLMAX}")
    a.label(f"FC{u}")
    a(f"v_readfirstlane_b32 s4, v{vd}")
    a("s_nop 1")
    a(f"s_cmp_eq_u32 s4, {target}")
    a(f"s_cbranch_scc1 FD{u}")
    a("s_sub_u32 s62, s62, 1")
    a(f"s_cbranch_scc1 FD{u}")
    a(f"s_sleep {sleep}")
    n0 = a.nvm
    cnt_load(a, vd, soff)
    a.nvm = n0
    a("s_waitcnt vmcnt(0)")
    a(f"s_branch FC{u}")
    a.label(f"FD{u}")

def cnt_add(a, vt, soff, va=None, mask="1"):
    a(f"v_mov_b32 v{vt}, 1")
    a(f"s_mov_b64 exec, {mask}")
    a.vm(f"buffer_atomic_add v{vt}, v{VZ if va is None else va}, s[20:23], {soff} offen sc1")
    a("s_mov_b64 exec, -1")

def late_load(a, vd, va):
    a("s_mov_b64 exec, 7")
    a(f"buffer_load_dword v{vd}, v{va}, s[20:23], 0 offen sc1")
    a("s_mov_b64 exec, -1")

def late_check(a, vd, va, vtgt):
    uid[0] += 1; u = uid[0]
    a(f"s_mov_b32 s62, {POLLMAX}")
    a.label(f"FC{u}")
    a(f"v_cmp_ne_u32 vcc, v{vd}, v{vtgt}")
    a("s_nop 1")
    a("s_and_b32 s4, vcc_lo, 7")
    a(f"s_cbranch_scc0 FD{u}")
    a("s_sub_u32 s62, s62, 1")
    a(f"s_cbranch_scc1 FD{u}")
    a("s_sleep 16")
    late_load(a, vd, va)
    a("s_waitcnt vmcnt(0)")
    a(f"s_branch FC{u}")
    a.label(f"FD{u}")

RAW = 244
XRW = 232

def gen_entry(a):
    a("s_cmp_ge_u32 s2, 512")
    a("s_cbranch_scc1 L_END")
    a.stamp(0)
    if "dblspan" in EXP: a("s_memrealtime s[100:101]")
    a("s_load_dwordx16 s[64:79], s[0:1], 0")
    a("s_load_dwordx16 s[80:95], s[0:1], 64")
    if "nopf" not in EXP:
        a("s_cmp_lt_u32 s2, 504")
        a("s_cbranch_scc1 E_NOPF")
        a("s_getpc_b64 s[4:5]")
        a.label("E_PC")
        a("v_lshlrev_b32 v4, 7, v0")
        a("v_min_u32 v4, L_END-E_PC, v4")
        a("v_mov_b32 v5, s5")
        a("v_add_co_u32 v4, vcc, s4, v4")
        a("s_nop 1")
        a("v_addc_co_u32 v5, vcc, 0, v5, vcc")
        a("global_load_dword v6, v[4:5], off")
        a.label("E_NOPF")
    a("v_lshrrev_b32 v13, 6, v0")
    a("v_and_b32 v1, 63, v0")
    a("v_lshlrev_b32 v2, 4, v1")
    a(f"v_mov_b32 v{VZ}, 0")
    a("v_readfirstlane_b32 s24, v13")
    a("s_and_b32 s31, s2, 7")
    a("s_bfe_u32 s32, s2, 0x50003")
    a("s_cmp_ge_u32 s2, 256")
    a("s_cbranch_scc1 L_A")
    a("s_and_b32 s27, s24, 1")
    a("s_cmp_ge_u32 s32, 28")
    a("s_cbranch_scc1 L_C")
    a("s_setprio 3")
    a("s_lshl_b32 s39, s32, 1")
    a("s_lshr_b32 s34, s24, 1")
    a("s_add_u32 s26, s39, s34")
    a("s_lshl_b32 s26, s26, 3")
    a("s_add_u32 s26, s26, s31")
    a("s_lshl_b32 s33, s26, 9")
    a("s_lshl_b32 s34, s27, 8")
    a("s_add_u32 s33, s33, s34")
    a("v_lshlrev_b32 v3, 2, v1")
    a("v_add_u32 v13, s33, v3")
    a("s_lshl_b32 s34, s26, 1")
    a("s_and_b32 s34, s34, -4")
    a("v_lshlrev_b32 v4, 7, v0")
    a("s_lshl_b32 s33, s2, 15")
    a(f"s_add_u32 s33, s33, {FL}")
    a("s_waitcnt lgkmcnt(0)")
    a.srd(20, P_WS, WS_SIZE)
    a("s_cmp_ge_u32 s2, 2")
    a("s_cbranch_scc1 E_NOINIT")
    a(f"buffer_store_dword v{VZ}, v4, s[20:23], s33 offen sc1")
    a.label("E_NOINIT")
    for i in range(6):
        a(f"global_load_dword v{RAW+i}, v13, {sr(P_PAR+2*i,2)}")
    a(f"s_load_dword s28, {sr(P_LDT,2)}, s34")
    a(f"s_load_dword s38, {sr(P_DSK,2)}, s34")
    a("s_branch L_B")

def gen_A(a):
    a.label("L_A")
    if "noA" in EXP: a("s_endpgm")
    a(f"s_setprio {PA}")
    if "dA" in EXP: a(f"s_sleep {DLY}")
    a("s_lshr_b32 s33, s31, 1")
    a("s_lshl_b32 s33, s33, 2")
    a("s_and_b32 s34, s32, 3")
    a("s_add_u32 s25, s33, s34")
    a("s_and_b32 s27, s31, 1")
    a("s_lshr_b32 s54, s32, 2")
    a("s_lshl_b32 s33, s27, 3")
    a("s_add_u32 s26, s33, s54")
    XR, ACC, QACC, WF, NV, PK, T = 16, 128, 128, 176, 248, 224, 240
    XL = 32768
    a("s_lshl_b32 s33, s25, 2")
    a("s_add_u32 s35, s33, s24")
    a("s_mul_i32 s33, s35, 28672")
    a("v_lshrrev_b32 v13, 3, v1")
    a("v_mul_u32_u24 v12, 896, v13")
    a("v_and_b32 v14, 7, v1")
    a("v_lshrrev_b32 v15, 4, v1")
    a("v_xor_b32 v15, v15, v14")
    a("v_lshl_add_u32 v3, v15, 4, v12")
    a("v_add_u32 v3, s33, v3")
    a("v_xor_b32 v246, 64, v3")
    a(f"v_add_u32 v244, {6144}, v246")
    a(f"v_add_u32 v245, {6144*2}, v3")
    a(f"v_add_u32 v246, {6144*3}, v246")
    a("s_mul_i32 s40, s24, 12288")
    a(f"s_add_u32 s40, s40, {XL}")
    a("s_lshl_b32 s33, s34, 1")
    a("s_add_u32 s28, s33, s54")
    a("s_sub_u32 s33, s28, 7")
    a("s_cmp_ge_u32 s28, 7")
    a("s_cselect_b32 s28, s33, s28")
    if "norot" in EXP: a("s_mov_b32 s28, 0")
    a("s_lshl_b32 s29, s28, 7")
    a("s_mul_i32 s37, s28, 172032")
    a("s_mov_b32 s39, s37")
    a("v_bfe_u32 v15, v1, 4, 1")
    a("v_lshlrev_b32 v15, 2, v15")
    a("v_xor_b32 v15, v15, v14")
    a("v_mul_u32_u24 v4, 2688, v13")
    a("v_lshl_add_u32 v4, v15, 4, v4")
    a("s_min_u32 s55, s54, 6")
    a("s_mul_i32 s33, s24, 43008")
    a("s_mul_i32 s34, s27, 896")
    a("s_add_u32 s33, s33, s34")
    a("s_lshl_b32 s34, s55, 7")
    a("s_add_u32 s33, s33, s34")
    a("s_add_u32 s33, s33, 896")
    a("v_add_u32 v4, s33, v4")
    a(f"v_add_u32 v5, {21504-1024}, v4")
    a("s_lshl_b32 s36, s24, 11")
    a("s_waitcnt lgkmcnt(0)")
    a.stamp(1)
    if "dK1" in EXP: a(f"s_sleep {DLY}")
    if "dK2" in EXP: a("s_sleep 64")
    if "dK4" in EXP: a("s_sleep 127")
    a.srd(12, P_X, X_BYTES)
    a.srd(16, P_W, W_BYTES)
    def adv(r):
        a(f"s_add_u32 s{r}, s{r}, 1")
        a(f"s_cmp_eq_u32 s{r}, 7")
        a(f"s_cselect_b32 s{r}, 0, s{r}")
    QD = int(os.environ.get("QD", "14"))
    L = []
    for s_ in range(7):
        L += [("x", s_, 0), ("x", s_, 1), ("x", s_, 2), ("x", s_, 3), ("w", s_, 0), ("w", s_, 1)]
    L += [("n", 0, 0)] + [("q", i, 0) for i in range(7)]
    tag = {}; tagxf = {}
    L0 = list(L)
    lastbar = [-1]; xfree = [-1]; light = [False]; m0 = [None]
    def setm0(base, off):
        if m0[0] != (base, off):
            a(f"s_add_u32 m0, {base}, {off}")
            m0[0] = (base, off)
            return True
        return False
    def issue():
        seen = set()
        for e in L:
            k, s_, n = e
            if k in seen: continue
            seen.add(k)
            if k in "nq" and ("x" in seen or "w" in seen): return
            need = {"x": s_ - 3, "q": 4 + (s_ >> 2)}.get(k, -1)
            if need > xfree[0]: continue
            if k == "w" and s_ >= 4 and lastbar[0] < s_ - 2: continue
            break
        else:
            return
        L.remove(e)
        if k == "x":
            ch = setm0("s40", (s_ % 3) * 4096)
            if n == 0 and s_:
                a("s_add_u32 s29, s29, 128")
                a("s_cmp_eq_u32 s29, 896")
                a("s_cselect_b32 s29, 0, s29")
            elif ch: a("s_nop 0")
            tag[e] = a.vm(f"buffer_load_dwordx4 v{3 if n == 0 else 243+n}, s[12:15], s29 offen offset:{1024*n} lds")
        elif k == "w":
            ch = setm0("s36", (s_ % 4) * 8192)
            if n == 0 and s_:
                a("s_add_u32 s37, s37, 172032")
                a(f"s_cmp_eq_u32 s37, {7*172032}")
                a("s_cselect_b32 s37, 0, s37")
            elif ch: a("s_nop 0")
            tag[e] = a.vm(f"buffer_load_dwordx4 v{4+n}, s[16:19], s37 offen offset:{1024*n} lds")
        elif k == "n":
            nonce_issue(a, NV)
        else:
            setm0("s40", 4096 + 1024 * s_)
            if s_:
                a("s_add_u32 s39, s39, 172032")
                a(f"s_cmp_eq_u32 s39, {7*172032}")
                a("s_cselect_b32 s39, 0, s39")
            else: a("s_nop 0")
            a.vm(f"buffer_load_dwordx4 v14, s[16:19], s39 offen lds")
    nvm_light = a.nvm
    a.srd(20, P_WS, WS_SIZE)
    a("s_cmp_eq_u32 s54, 7")
    a("s_cbranch_scc1 A_GO")
    for _ in range(QD): issue()
    a.label("A_GO")
    if "tlb" in EXP:
        a("s_cmp_lg_u32 s24, 0")
        a("s_cbranch_scc1 A_NOTLB")
        for i, ad in enumerate((0x1fff80, 0x3fff80, 0x5fff80, 0x680000, 0x860000, 0xA80000)):
            a(f"s_mov_b32 s33, {hex(ad)}")
            a(f"v_writelane_b32 v6, s33, {i}")
        a("s_mov_b64 exec, 63")
        a("buffer_load_dword v7, v6, s[20:23], 0 offen")
        a("s_mov_b64 exec, 1")
        a(f"global_load_dword v7, v{VZ}, {sr(P_OUT,2)}")
        a("s_mov_b64 exec, -1")
        a.label("A_NOTLB")
    if "stopA" in EXP: a.stamp(7)
    if "Aload" in EXP:
        a("s_waitcnt vmcnt(0)"); a("s_endpgm")
    a("v_and_b32 v13, 31, v1")
    a("v_bfe_u32 v14, v1, 1, 3")
    a("v_lshrrev_b32 v15, 5, v1")
    a("v_xor_b32 v14, v14, v15")
    a("v_lshlrev_b32 v13, 7, v13")
    a("v_lshl_add_u32 v8, v14, 4, v13")
    a("v_add_u32 v8, s40, v8")
    for ks in range(1, 4):
        a(f"v_xor_b32 v{8+ks}, {32*ks}, v8")
    a(f"v_bfe_u32 v{T}, v1, 2, 2")
    a(f"v_lshl_add_u32 v{T+1}, v15, 3, v{T}")
    a(f"v_bfe_u32 v{T+2}, v1, 4, 1")
    a(f"v_and_b32 v{T+3}, 3, v1")
    a(f"v_lshl_add_u32 v{PK}, v{T+2}, 2, v{T+3}")
    a(f"v_and_b32 v{PK+1}, 1, v1")
    a(f"v_bfe_u32 v{PK+2}, v1, 1, 1")
    a(f"v_lshl_add_u32 v{PK+1}, v{PK+1}, 1, v{PK+2}")
    a(f"v_lshl_add_u32 v{PK+1}, v{T+2}, 2, v{PK+1}")
    a(f"v_bfe_u32 v{T+3}, v1, 3, 1")
    a(f"v_lshlrev_b32 v{T+3}, 6, v{T+3}")
    a(f"v_lshl_add_u32 v{T+3}, v{T+1}, 7, v{T+3}")
    a("s_cmp_eq_u32 s27, 1")
    a("s_cselect_b64 vcc, -1, 0")
    a(f"v_cndmask_b32 v12, v{PK+1}, v{PK}, vcc")
    a(f"v_lshl_add_u32 v12, v12, 3, v{T+3}")
    a("v_xor_b32 v13, 64, v12")
    a(f"v_add_u32 v{PK+2}, 2, v{PK+1}")
    a(f"v_sub_u32 v{PK+3}, 7, v{PK+1}")
    a(f"v_cmp_gt_u32 vcc, 6, v{PK+1}")
    a("s_bitcmp1_b32 s26, 0")
    a("s_cselect_b64 s[4:5], -1, 0")
    a(f"v_cndmask_b32 v{PK+2}, v{PK+3}, v{PK+2}, vcc")
    a(f"v_cndmask_b32 v{PK+2}, v{PK+1}, v{PK+2}, s[4:5]")
    a(f"v_lshlrev_b32 v15, 6, v{T+1}")
    a(f"v_lshl_add_u32 v15, v{PK+2}, 3, v15")
    a(f"v_add_u32 v15, {XL + 4096}, v15")
    a("v_lshrrev_b32 v14, 2, v1")
    a("v_mul_u32_u24 v14, 2688, v14")
    a(f"v_and_b32 v{T}, 3, v1")
    a(f"v_lshl_add_u32 v14, v{T}, 4, v14")
    a("s_mul_i32 s33, s26, 56")
    a("s_and_b32 s33, s33, -16")
    a(f"s_mul_i32 s34, s24, {16*2688}")
    a("s_add_u32 s33, s33, s34")
    a("v_add_u32 v14, s33, v14")
    a("s_mul_i32 s33, s54, 2341")
    a("s_lshr_b32 s33, s33, 10")
    a(f"v_add_u32 v{PK}, s33, v1")
    a(f"v_mul_u32_u24 v{PK+1}, 28, v{PK}")
    a(f"v_lshrrev_b32 v{PK+1}, 6, v{PK+1}")
    a(f"v_cmp_ge_u32 s[56:57], s54, v{PK+1}")
    a(f"v_lshlrev_b32 v243, 11, v{PK}")
    a("s_lshl_b32 s42, s25, 7")
    a(f"s_add_u32 s42, s42, {F_KV}")
    a("s_and_b64 s[56:57], s[56:57], 15")
    a("s_cmp_eq_u32 s54, 7")
    a("s_cbranch_scc1 A_LIGHT")
    a("s_cmp_eq_u32 s27, 1")
    a("s_cbranch_scc1 A_V")

    def pass1(vtype):
        tagtr = {}
        NB = 6; TD = 3
        NIS = int(os.environ.get("NIS", "2"))
        def trload(u, t):
            s, ks = u >> 2, u & 3
            for hr in range(2):
                off = (s % 4) * 8192 + (16 * ks + 4 * hr) * 128
                tagtr[u] = a.ds(f"ds_read_b64_tr_b16 {vr(WF+(u%NB)*8+4*t+2*hr,2)}, v{12+t} offset:{off}")
        def mfma(u, t):
            wf = vr(WF + (u % NB) * 8 + 4 * t, 4); xf = vr(XR + 4 * u, 4)
            c = "0" if u == 0 else vr(ACC + 16 * t, 16)
            a(f"{MF32} {vr(ACC+16*t,16)}, {xf}, {wf}, {c}" if vtype else f"{MF32} {vr(ACC+16*t,16)}, {wf}, {xf}, {c}")
        pend = None
        for u in range(-4, 28):
            if u >= 0:
                a.wait_ds(max(tagtr[u], tagxf[u >> 2]))
                mfma(u, 0)
            issue()
            if (u + TD) % 4 == 0 and (u + TD) // 4 < 7:
                sb = (u + TD) // 4
                a.wait_vm(tag[("w", sb, 1)])
                a("s_barrier")
                lastbar[0] = sb
                if sb in (0, 6): a.stamp(2 + sb // 6)
            if 0 <= u + TD < 28: trload(u + TD, 0)
            if u >= 0: mfma(u, 1)
            if pend is not None:
                a.wait_ds(tagxf[pend]); xfree[0] = pend; pend = None
            for _ in range(NIS - 1): issue()
            if 0 <= u + TD < 28: trload(u + TD, 1)
            if u % 4 == 0 and u // 4 + 1 < 7:
                s = u // 4 + 1
                a.wait_vm(tag[("x", s, 3)])
                for ks in range(4):
                    tagxf[s] = a.ds(f"ds_read_b128 {vr(XR+16*s+4*ks,4)}, v{8+ks} offset:{(s%3)*4096}")
                pend = s
        assert not L, L
    saved = (a.nvm, a.nds, list(L), m0[0])
    a("v_mov_b32 v247, v2")
    a(f"s_mul_i32 s38, s35, {KTS}")
    a("s_lshl_b32 s33, s55, 12")
    a("s_add_u32 s38, s38, s33")
    a("s_add_u32 s41, s38, 1024")
    a("s_add_u32 s43, s38, 2048")
    a("s_add_u32 s44, s38, 3072")
    pass1(False)
    a("s_branch A_ST")
    a.label("A_V")
    a.nvm, a.nds, L[:], m0[0] = saved; lastbar[0] = -1; xfree[0] = -1
    a("v_lshrrev_b32 v247, 5, v1")
    a(f"v_mul_u32_u24 v247, {8064-512}, v247")
    a("v_add_u32 v247, v247, v2")
    a(f"s_mul_i32 s38, s35, {VTS}")
    a("s_mul_i32 s33, s55, 1152")
    a("s_add_u32 s38, s38, s33")
    a(f"s_add_u32 s38, s38, {VF}")
    a("s_add_u32 s41, s38, 16128")
    a("s_add_u32 s43, s38, 512")
    a("s_add_u32 s44, s41, 512")
    a(f"v_lshrrev_b32 v{T}, 1, v1")
    a(f"v_mul_u32_u24 v{T}, 8064, v{T}")
    a(f"v_and_b32 v{T+1}, 1, v1")
    a(f"v_lshl_add_u32 v{T}, v{T+1}, 4, v{T}")
    a(f"v_subrev_u32 v{T+1}, 1, v{T+1}")
    for i in range(4):
        a(f"v_and_b32 v{PK+i}, 0x3f803f80, v{T+1}")
    a("s_mov_b64 exec, 0xff")
    a(f"buffer_store_dwordx4 {vr(PK,4)}, v{T}, s[20:23], s38 offen offset:1024{SC}")
    a("s_mov_b64 exec, -1")
    pass1(True)
    a.label("A_ST")
    a.nop(11)
    for t in range(2):
        for r in range(0, 16, 2):
            a(f"v_cvt_pk_bf16_f32 v{PK+8*t+r//2}, v{ACC+16*t+r}, v{ACC+16*t+r+1}")
        for f in range(2):
            a(f"buffer_store_dwordx4 {vr(PK+8*t+4*f,4)}, v247, s[20:23], s{(38,41,43,44)[2*t+f]} offen{SC}")
    a("s_waitcnt vmcnt(4)")
    a("s_branch A_P2")
    a.label("A_LIGHT")
    a(f"s_setprio {os.environ.get('PLT', '2')}")
    if "dLt" in EXP: a(f"s_sleep {DLY}")
    a.nvm, a.nds = nvm_light, saved[1]; L[:] = [e for e in L0 if e[0] != 'w']; m0[0] = None; xfree[0] = -1
    for _ in range(int(os.environ.get("LQ", "8"))): issue()
    for s_ in range(7):
        a.wait_vm(tag[("x", s_, 3)])
        for ks in range(4):
            a.ds(f"ds_read_b128 {vr(XR+16*s_+4*ks,4)}, v{8+ks} offset:{(s_%3)*4096}")
        a("s_waitcnt lgkmcnt(0)")
        xfree[0] = s_
        for _ in range(int(os.environ.get("LN", "8")) if s_ < 2 else 8): issue()
    assert not L
    a("s_waitcnt vmcnt(0)")
    a.label("A_P2")
    if "dP" in EXP: a(f"s_sleep {DLY}")
    a.stamp(4)
    nonce_take(a, NV)
    a("s_barrier")
    Q, O, S, P, KB, VB, NM, MX, T2 = 16, 48, 112, 144, 160, 192, 224, 228, 232
    VK0, VK1, VV0, VV1, C1, C2 = 10, 11, 12, 13, 252, 253
    class Rec:
        def __init__(self): self.ch = []
        def __call__(self, *ins): self.ch.append(list(ins))
    c = Rec()
    c("s_mul_i32 s33, s26, 28"); c("s_lshr_b32 s44, s33, 6"); c("s_add_u32 s34, s33, 27"); c("s_lshr_b32 s34, s34, 6")
    c("s_sub_u32 s34, s34, s44"); c("s_lshl_b32 s34, s34, 1"); c("s_add_u32 s58, s34, 2")
    c("v_lshrrev_b32 v4, 5, v1")
    c("v_lshlrev_b32 v249, 9, v1"); c(f"v_mov_b32 v{NV+2}, 0")
    c("s_lshl_b32 s34, s26, 11"); c("s_lshl_b32 s36, s24, 7"); c("s_add_u32 s34, s34, s36"); c(f"s_add_u32 s53, s34, {F_KV}")
    c(f"s_mov_b32 s46, {hex(f2u(QSCALE))}"); c("s_mov_b32 s47, s46")
    c("s_lshl_b32 s36, s24, 11"); c("s_add_u32 s36, s36, 49152"); c("v_add_u32 v6, s36, v2")
    for t in range(1, 4): c(f"v_xor_b32 v{6+t}, {2048*t}, v6")
    c("s_lshr_b32 s34, s26, 1"); c("s_mul_i32 s34, s34, 3584"); c("s_and_b32 s36, s26, 1"); c("s_lshl_b32 s37, s36, 11")
    c("s_add_u32 s34, s34, s37"); c(f"v_add_u32 v{VK0}, s34, v2"); c(f"v_add_u32 v{VK1}, 1024, v{VK0}")
    c(f"s_mul_i32 s37, s36, {2048-8}")
    c("s_mov_b32 exec_lo, 0", f"v_subrev_u32 v{VK1}, s37, v{VK1}", "s_mov_b32 exec_lo, -1")
    c("v_and_b32 v5, 31, v1"); c("v_add_u32 v3, s33, v5"); c("v_lshrrev_b32 v5, 6, v3"); c("v_lshlrev_b32 v5, 7, v5")
    c(f"v_lshl_add_u32 v{VV0}, v3, 4, v5")
    c("s_mul_i32 s34, s44, 1152"); c("s_add_u32 s34, s34, 1024"); c("s_add_u32 s37, s34, 16")
    c("s_mov_b32 exec_lo, 0xf0000000", "s_mov_b32 exec_hi, 0xf0000000", f"v_mov_b32 v{VV0}, s37", "s_mov_b64 exec, -1")
    c(f"v_writelane_b32 v{VV0}, s34, 28"); c(f"v_writelane_b32 v{VV0}, s34, 60")
    c("s_movk_i32 s34, 8064"); c(f"v_mad_u32_u24 v{VV0}, v4, s34, v{VV0}"); c(f"v_add_u32 v{VV1}, 16128, v{VV0}")
    c(f"s_mul_i32 s34, s24, {4*KTS}"); c(f"s_mul_i32 s37, s24, {4*VTS}"); c(f"s_add_u32 s37, s37, {VF}")
    for d, sz, off in ((12, 52 * KTS, "s34"), (16, 52 * VTS, "s37")):
        c(f"s_add_u32 s{d}, s{P_WS}, {off}", f"s_addc_u32 s{d+1}, s{P_WS+1}, 0")
        c(f"s_mov_b32 s{d+2}, {sz}"); c(f"s_mov_b32 s{d+3}, 0x00020000")
    c("s_mov_b32 s63, 15")
    c(f"v_mov_b32 v{C1}, 0x3f803f80"); c(f"v_mov_b32 v{C2}, 0x3f80")
    for r in range(8): c(f"v_mov_b32 v{VB+24+r}, 0")
    for t in range(4): c(f"v_mov_b32 v{NM+t}, 0")
    c("s_mov_b32 s41, 0")
    c("s_cmp_eq_u32 s54, 7", "s_cselect_b32 s59, 1, s24")
    PV_ = NV + 2
    def kv_poll():
        a("s_mov_b64 exec, 15")
        a(f"buffer_atomic_umax v{PV_}, v249, s[20:23], s53 offen sc0 sc1")
        a("s_mov_b64 exec, -1")
    def kv_pick(tagname):
        a(f"s_mov_b32 s62, {POLLMAX}")
        a.label(f"KP{tagname}")
        a(f"v_cmp_eq_u32 vcc, s58, v{PV_}")
        a("s_nop 1")
        a("s_and_b32 s5, vcc_lo, s63")
        a(f"s_cbranch_scc1 KD{tagname}")
        a("s_mov_b32 s5, s63")
        a("s_sub_u32 s62, s62, 1")
        a(f"s_cbranch_scc1 KD{tagname}")
        a("s_sleep 1")
        kv_poll()
        a("s_waitcnt vmcnt(0)")
        a(f"s_branch KP{tagname}")
        a.label(f"KD{tagname}")
        a("s_ff1_i32_b32 s59, s5")
        a("s_bitset0_b32 s63, s59")
        a("s_bitset0_b32 s5, s59")
    def first_loads():
        a(f"s_mul_i32 s44, s59, {16*KTS}")
        a(f"s_mul_i32 s45, s59, {16*VTS}")
        for kt in range(4):
            for f in range(2):
                r = a.vm(f"buffer_load_dwordx4 {vr(KB+8*kt+4*f,4)}, v{VK0+f}, s[12:15], s44 offen{SC}")
            if kt < 3: a(f"s_addk_i32 s44, {KTS}")
            if kt == 0: tag = r
            if kt < 3:
                for f in range(2):
                    a.vm(f"buffer_load_dwordx4 {vr(VB+8*kt+4*f,4)}, v{VV0+f}, s[16:19], s45 offen{SC}")
                a(f"s_addk_i32 s45, {VTS}")
        return tag
    def patch(kb):
        a(f"v_mov_b32_dpp v{kb+6}, v{C1} quad_perm:[0,1,2,3] row_mask:0xc bank_mask:0xf")
        a(f"v_mov_b32_dpp v{kb+7}, v{C2} quad_perm:[0,1,2,3] row_mask:0xc bank_mask:0xf")
    tq = {}
    def trq(u):
        for hr in range(2):
            tq[u] = a.ds(f"ds_read_b64_tr_b16 {vr(WF+(u%8)*4+2*hr,2)}, v15 offset:{(u&3)*12288+(u>>2)*1024+256*hr}")
    for u in range(6): trq(u)
    for u in range(28):
        if u + 6 < 28: trq(u + 6)
        a.wait_ds(tq[u])
        cc = "0" if u == 0 else vr(QACC, 16)
        a(f"{MF32} {vr(QACC,16)}, {vr(WF+(u%8)*4,4)}, {vr(XR+4*u,4)}, {cc}")
        n = 0
        while c.ch and n < (3 if u < 22 else 5):
            for ins in c.ch.pop(0): a(ins); n += 1
    assert not c.ch, len(c.ch)
    def zero_acc():
        for t in range(4):
            a(f"{MF32} {vr(O+16*t,16)}, {vr(VB+24,4)}, {vr(VB+24,4)}, 0")
    zero_acc()
    a("s_cmp_lg_u32 s59, 0")
    a("s_waitcnt vmcnt(0)")
    a("s_barrier")
    a("s_cbranch_scc1 A_NOPUB")
    cnt_add(a, NV, "s42", 243, "s[56:57]")
    a.label("A_NOPUB")
    a(f"s_setprio {os.environ.get('PQ', '2')}")
    a.stamp(5)
    if "stopA" in EXP:
        fin(a, 6); a("s_endpgm")
    kv_poll()
    a.nop(1)
    for r in range(16):
        a(f"v_mul_f32 v{QACC+r}, s46, v{QACC+r}")
    for r in range(0, 16, 2):
        a(f"v_cvt_pk_bf16_f32 v{Q+r//2}, v{QACC+r}, v{QACC+r+1}")
    a("s_mov_b32 exec_lo, 0")
    a(f"v_mov_b32 v{Q+6}, 0")
    a(f"v_mov_b32 v{Q+7}, 0")
    a("s_mov_b32 exec_lo, -1")
    for f in range(2):
        a(f"ds_write_b128 v6, {vr(Q+4*f,4)} offset:{1024*f}")
    a("s_waitcnt lgkmcnt(0)")
    a("s_barrier")
    for t in range(1, 4):
        for f in range(2):
            a(f"ds_read_b128 {vr(Q+8*t+4*f,4)}, v{6+t} offset:{1024*f}")
    a("s_mov_b32 s42, 0x07060302")
    a("s_min_u32 s33, s32, 27")
    a("s_and_b32 s34, s33, 3")
    a("s_lshl_b32 s47, s31, 2")
    a("s_add_u32 s47, s47, s34")
    a("s_lshr_b32 s48, s33, 2")
    a("s_lshr_b32 s49, s24, 1")
    a("s_lshl_b32 s33, s47, 1")
    a("s_add_u32 s49, s49, s33")
    a("s_and_b32 s50, s24, 1")
    a("s_lshl_b32 s33, s48, 1")
    a("s_add_u32 s50, s50, s33")
    a("v_bfe_u32 v5, v1, 2, 2")
    a("v_lshlrev_b32 v9, 7, v5")
    a("v_bfe_u32 v5, v1, 4, 1")
    a("v_lshl_add_u32 v9, v5, 6, v9")
    a("v_and_b32 v5, 3, v1")
    a("v_lshl_add_u32 v9, v5, 4, v9")
    a("v_lshl_add_u32 v9, v4, 9, v9")
    for t in range(1, 4):
        a(f"s_xor_b32 s33, s24, {t}")
        a("s_mul_i32 s33, s33, 12288")
        a(f"s_add_u32 s33, s33, {(t-1)*4096}")
        a(f"v_add_u32 v{3+t}, s33, v2")
    a("s_mul_i32 s33, s24, 12288")
    a("v_add_u32 v7, s33, v2")
    a("v_or_b32 v8, 512, v7")
    a("s_lshl_b32 s33, s35, 4")
    a("s_add_u32 s33, s33, s26")
    a("s_lshl_b32 s43, s33, 11")
    a(f"s_add_u32 s43, s43, {OF}")
    a("s_lshr_b32 s51, s35, 1")
    a("s_lshl_b32 s51, s51, 9")
    a("s_lshr_b32 s33, s26, 2")
    a("s_lshl_b32 s33, s33, 7")
    a("s_add_u32 s51, s51, s33")
    a(f"s_add_u32 s51, s51, {F_O}")
    a("s_lshl_b32 s33, s50, 7")
    a(f"s_add_u32 s33, s33, {F_B}")
    a("v_mov_b32 v14, s33")
    a("v_mov_b32 v15, 64")
    a("s_lshl_b32 s33, s49, 7")
    a(f"s_add_u32 s33, s33, {F_G}")
    a("v_writelane_b32 v14, s33, 1")
    a("v_writelane_b32 v15, 2, 1")
    a("s_lshl_b32 s33, s24, 7")
    a(f"s_add_u32 s33, s33, {F_WO}")
    a("v_writelane_b32 v14, s33, 2")
    a("v_writelane_b32 v15, 16, 2")
    a("s_waitcnt vmcnt(0)")
    kv_pick("A")
    a.stamp(6)
    tagk0 = first_loads()
    kv_poll()
    a.nvm += 1
    a("s_waitcnt lgkmcnt(0)")
    a.wait_vm(tagk0)
    a.stamp(7)
    if "dL" in EXP: a(f"s_sleep {DLY}")
    TT = [S + 16, T2, P, S]
    patch(KB)
    a("s_nop 0")
    def mx(t):
        a(f"v_max3_f32 v{MX+t}, v{TT[t]}, v{TT[t]+1}, v{TT[t]+2}")
        for i in range(1, 4):
            a(f"v_max3_f32 v{MX+t}, v{MX+t}, v{TT[t]+2*i+1}, v{TT[t]+2*i+2}")
    for t in range(4):
        a(f"{MF32} {vr(TT[t],16)}, {vr(KB,4)}, {vr(Q+8*t,4)}, 0")
        a(f"{MF32} {vr(TT[t],16)}, {vr(KB+4,4)}, {vr(Q+8*t+4,4)}, {vr(TT[t],16)}")
    a.nop(6)
    mx(0); mx(1); mx(2)
    mx(3)
    a.label("A_SETMAX")
    def setm(ts):
        for t in ts: a(f"v_sub_f32 v{NM+t}, v{NM+t}, v{MX+t}")
        for t in ts: a(f"v_and_b32 v{T2+t}, 0xffff0000, v{NM+t}")
        for t in ts: a(f"v_sub_f32 v{T2+t}, v{NM+t}, v{T2+t}")
        for t in ts: a(f"v_and_b32 v{T2+4+t}, 0xffff0000, v{T2+t}")
        for t in ts: a(f"v_sub_f32 v{T2+4+t}, v{T2+t}, v{T2+4+t}")
        for t in ts:
            a(f"v_perm_b32 v{Q+8*t+6}, v{T2+t}, v{NM+t}, s42")
            a(f"v_lshrrev_b32 v{Q+8*t+7}, 16, v{T2+4+t}")
    a("s_mov_b32 exec_lo, 0")
    setm((0, 1))
    a("s_mov_b32 exec_lo, -1")
    a(f"{MF32} {vr(S,16)}, {vr(KB,4)}, {vr(Q,4)}, 0")
    a(f"{MF32} {vr(S,16)}, {vr(KB+4,4)}, {vr(Q+4,4)}, {vr(S,16)}")
    a("s_mov_b32 exec_lo, 0")
    setm((2, 3))
    a("s_mov_b32 exec_lo, -1")
    for r in range(8):
        a(f"v_mov_b32 v{P+8+r}, 0")
    a("s_mov_b32 s46, 4")
    a(f"s_movk_i32 s60, {KTS}")
    a(f"s_movk_i32 s61, {VTS}")
    a(f"s_setprio {os.environ.get('PL', '1')}")
    a.label("A_LOOP")
    sh = {}
    for kt in range(4):
        b = 4 * kt
        for f in range(2):
            sh[(b, 2 + f)] = [f"buffer_load_dwordx4 {vr(VB+8*((kt-1)&3)+4*f,4)}, v{VV0+f}, s[16:19], s45 offen{SC}"]
            sh[(b + 2, 1 + f)] = [f"buffer_load_dwordx4 {vr(KB+8*kt+4*f,4)}, v{VK0+f}, s[12:15], s44 offen{SC}"]
        sh[(b + 1, 1)] = ["s_waitcnt vmcnt(12)"]
        sh[(b + 2, 3)] = ["s_waitcnt vmcnt(12)"]
        if kt: sh[(b + 1, 0)] = ["s_add_u32 s45, s45, s61"]
        if kt < 3: sh[(b + 3, 1)] = ["s_add_u32 s44, s44, s60"]
    sh[(1, 0)] = ["s_cmp_le_u32 s5, 128"]
    sh[(1, 2)] = ["s_cbranch_scc1 A_SLOW", "A_SLOWR:"]
    sh[(1, 3)] = ["s_ff1_i32_b32 s59, s5"]
    sh[(2, 0)] = [f"s_mul_i32 s44, s59, {16*KTS}"]
    sh[(3, 0)] = [f"s_mul_i32 s45, s59, {16*VTS}"]
    sh[(3, 2)] = ["s_bitset0_b32 s63, s59"]
    sh[(3, 3)] = ["s_bitset0_b32 s5, s59"]
    sh[(4, 0)] = ["s_cmp_le_u32 s46, 2"]
    sh[(4, 1)] = ["s_cbranch_scc1 A_LLOAD", "A_LLOADR:"]
    sh[(15, 2)] = ["s_sub_u32 s46, s46, 1"]
    sh[(15, 3)] = ["s_cmp_lg_u32 s46, 0"]
    for n in range(16):
        kt, t = n >> 2, n & 3
        n1 = (n + 1) & 15; kt1, t1 = n1 >> 2, n1 & 3
        n0 = (n - 1) & 15; kt0, t0 = n0 >> 2, n0 & 3
        sc = S + 16 * (n & 1); sn = S + 16 * (n1 & 1)
        pc = P + 8 * (n & 1); pp = P + 8 * (n0 & 1)
        mf = [f"{MF32} {vr(sn,16)}, {vr(KB+8*kt1,4)}, {vr(Q+8*t1,4)}, 0",
              f"{MF32} {vr(sn,16)}, {vr(KB+8*kt1+4,4)}, {vr(Q+8*t1+4,4)}, {vr(sn,16)}",
              f"{MF32} {vr(O+16*t0,16)}, {vr(VB+8*kt0,4)}, {vr(pp,4)}, {vr(O+16*t0,16)}",
              f"{MF32} {vr(O+16*t0,16)}, {vr(VB+8*kt0+4,4)}, {vr(pp+4,4)}, {vr(O+16*t0,16)}"]
        for m in range(4):
            a(mf[m])
            for ins in sh.get((n, m), []):
                if ins.endswith(":"): a.label(ins[:-1])
                else: a(ins)
            if m == 0 and t == 3:
                patch(KB + 8 * kt1)
            for e in range(4):
                a(f"v_exp_f32 v{sc+4*m+e}, v{sc+4*m+e}")
            for c_ in range(2):
                a(f"v_cvt_pk_bf16_f32 v{pc+2*m+c_}, v{sc+4*m+2*c_}, v{sc+4*m+2*c_+1}")
    a("s_cbranch_scc1 A_LOOP")
    a.stamp(8)
    if "dT" in EXP: a(f"s_sleep {DLY}")
    a("s_nop 0")
    a(f"{MF32} {vr(O+48,16)}, {vr(VB+24,4)}, {vr(P+8,4)}, {vr(O+48,16)}")
    a(f"{MF32} {vr(O+48,16)}, {vr(VB+28,4)}, {vr(P+12,4)}, {vr(O+48,16)}")
    a("v_mov_b32 v3, 0x5f800000")
    a("s_mov_b32 exec_lo, 0")
    for t in range(3):
        a(f"v_cmp_nlt_f32 {sr(4+2*t,2)}, v{O+16*t+12}, v3")
    for t in range(1, 3):
        a(f"v_mov_b32 v{O+16*t+13}, v{NM+t}")
    a("s_mov_b32 exec_lo, -1")
    for t in range(1, 3):
        for q in range(4):
            a(f"ds_write_b128 v{3+t}, {vr(O+16*t+4*q,4)} offset:{1024*q}")
    a("s_mov_b32 exec_lo, 0")
    a(f"v_cmp_nlt_f32 vcc, v{O+48+12}, v3")
    a(f"v_mov_b32 v{O+48+13}, v{NM+3}")
    a("s_mov_b32 exec_lo, -1")
    a("s_or_b32 s5, s5, s7")
    a("s_or_b32 s5, s5, s9")
    a("s_or_b32 s5, s5, vcc_hi")
    a("s_andn2_b32 s5, s5, s41")
    a("s_cbranch_scc1 A_FALLBACK")
    for q in range(4):
        a(f"ds_write_b128 v6, {vr(O+48+4*q,4)} offset:{1024*q}")
    a(f"v_mov_b32 v{T2}, v{O+12}")
    a(f"v_mov_b32 v{T2+1}, v{O+12}")
    a(f"v_mov_b32 v{T2+8}, v{NM}")
    a("v_add_u32 v10, 4096, v2")
    a("s_lshl_b32 s33, s24, 13")
    a(f"s_add_u32 s33, s33, {WOF}")
    a("s_lshl_b32 s36, s50, 15")
    a("s_add_u32 s36, s36, s33")
    a("s_xor_b32 s37, s50, 1")
    a("s_lshl_b32 s37, s37, 15")
    a("s_add_u32 s37, s37, s33")
    a("v_lshrrev_b32 v11, 5, v1")
    a("v_lshlrev_b32 v12, 6, v11")
    a("s_lshl_b32 s38, s49, 7")
    a(f"s_add_u32 s38, s38, {GO}")
    a("v_and_b32 v13, 31, v1")
    a("v_lshlrev_b32 v3, 12, v13")
    a("v_lshl_add_u32 v3, v11, 4, v3")
    a("s_lshl_b32 s39, s50, 17")
    a("s_lshr_b32 s34, s49, 4")
    a("s_lshl_b32 s34, s34, 10")
    a("s_add_u32 s39, s39, s34")
    a("s_and_b32 s34, s49, 15")
    a("s_lshl_b32 s34, s34, 5")
    a("s_add_u32 s39, s39, s34")
    a(f"s_add_u32 s39, s39, {BT}")
    WB, GG, BB = KB, Q, Q + 16
    def wbuf(i): return WB + 8 * ((i - 1) & 7)
    def wo_load(i):
        for x in range(2):
            a(f"buffer_load_dwordx4 {vr(wbuf(i)+4*x,4)}, v{2 if i<4 else 10}, s[20:23], s{36+x} offen offset:{1024*(i&3)}{SC}")
    TE = int(os.environ.get('TE', '1'))
    def tail_loads():
        late_check(a, 248, 14, 15)
        wo_load(0)
        for i in range(4):
            a(f"buffer_load_dwordx4 {vr(GG+4*i,4)}, v12, s[20:23], s38 offen offset:{16*i}{SC}")
        for i in range(2):
            a(f"buffer_load_dwordx4 {vr(BB+4*i,4)}, v3, s[20:23], s39 offen offset:{512*i}{SC}")
        a.nvm += 8
    if TE: tail_loads()
    a("s_waitcnt lgkmcnt(0)")
    a("s_barrier")
    LM = T2 + 2
    for s in range(3):
        a(f"ds_read_b64 {vr(LM+2*s,2)}, v8 offset:{4096*s+3072}")
    RB = O + 16
    for s in range(3):
        for q in range(4):
            a(f"ds_read_b128 {vr(RB+16*s+4*q,4)}, v7 offset:{4096*s+1024*q}")
    a(f"v_permlane32_swap_b32 v{T2}, v{T2+1}")
    a(f"v_permlane32_swap_b32 v{T2+8}, v{NM}")
    a("s_waitcnt lgkmcnt(12)")
    a(f"v_min3_f32 v{MX}, v{NM}, v{LM+1}, v{LM+3}")
    a(f"v_min_f32 v{MX}, v{MX}, v{LM+5}")
    a(f"v_sub_f32 v{S}, v{MX}, v{NM}")
    for s in range(3):
        a(f"v_sub_f32 v{S+2+2*s}, v{MX}, v{LM+2*s+1}")
    for s in range(4):
        a(f"v_exp_f32 v{S+2*s}, v{S+2*s}")
    a(f"v_mul_f32 v{MX+1}, v{S}, v{T2+1}")
    for s in range(3):
        a(f"v_fmac_f32 v{MX+1}, v{S+2+2*s}, v{LM+2*s}")
    a(f"v_rcp_f32 v{MX+1}, v{MX+1}")
    a("s_nop 0")
    for s in range(4):
        a(f"v_mul_f32 v{S+2*s}, v{S+2*s}, v{MX+1}")
    for r in range(0, 16, 2):
        a(f"v_pk_mul_f32 {vr(O+r,2)}, {vr(O+r,2)}, {vr(S,2)} op_sel_hi:[1,0]")
    for s in range(3):
        a(f"s_waitcnt lgkmcnt({8-4*s})")
        for r in range(0, 16, 2):
            a(f"v_pk_fma_f32 {vr(O+r,2)}, {vr(RB+16*s+r,2)}, {vr(S+2+2*s,2)}, {vr(O+r,2)} op_sel_hi:[1,0,1]")
    for r in range(0, 16, 2):
        a(f"v_cvt_pk_bf16_f32 v{P+r//2}, v{O+r}, v{O+r+1}")
    a("s_mov_b32 exec_lo, 0")
    a(f"v_mov_b32 v{P+6}, 0")
    a(f"v_mov_b32 v{P+7}, 0")
    a("s_mov_b32 exec_lo, -1")
    a.nvm = 0
    for f in range(2):
        tagos = a.vm(f"buffer_store_dwordx4 {vr(P+4*f,4)}, v9, s[20:23], s43 offen offset:{1024*f}{SC}")
    a.stamp(9)
    if not TE: tail_loads()
    a("s_barrier")
    a("s_lshl_b32 s52, s47, 9")
    a("s_lshl_b32 s33, s24, 7")
    a("s_add_u32 s52, s52, s33")
    a(f"s_add_u32 s52, s52, {F_O}")
    a.wait_vm(tagos)
    cnt_add(a, 252, "s51")
    a("s_cmp_ge_u32 s32, 28")
    a("s_cbranch_scc1 L_END")
    a("s_cmp_eq_u32 s60, 1024")
    a("s_cbranch_scc1 A_WOK")
    for i in range(1, 8): wo_load(i)
    a.label("A_WOK")
    cnt_load(a, 250, "s52")
    a("s_lshl_b32 s33, s24, 13")
    a(f"s_add_u32 s33, s33, {OF}")
    a("s_lshl_b32 s36, s49, 15")
    a("s_add_u32 s36, s36, s33")
    a("s_xor_b32 s37, s49, 1")
    a("s_lshl_b32 s37, s37, 15")
    a("s_add_u32 s37, s37, s33")
    a.srd(12, P_OUT, X_BYTES)
    a("v_mul_u32_u24 v12, 14336, v11")
    a("v_lshl_add_u32 v12, v13, 1, v12")
    a("s_mul_i32 s44, s49, 28672")
    a("s_lshl_b32 s33, s50, 6")
    a("s_add_u32 s44, s44, s33")
    for i in range(1, 4):
        a(f"s_add_u32 s{44+i}, s44, {3584*i}")
    a("s_waitcnt vmcnt(0)")
    BU = 232
    for i in range(8):
        a(f"v_lshlrev_b32 v{BU+2*i}, 16, v{BB+i}")
        a(f"v_and_b32 v{BU+2*i+1}, 0xffff0000, v{BB+i}")
    cnt_wait(a, 250, "s52", 8)
    a.stamp(10)
    AF = O
    tags = {}
    for x in (1, 0):
        for i in range(8):
            tags[(x, i)] = a.vm(f"buffer_load_dwordx4 {vr(AF+8*i+4*x,4)}, v{2 if i<4 else 10}, s[20:23], s{36+x} offen offset:{1024*(i&3)}{SC}")
    AC = [BB, S, S + 16, P]
    wr = [f"ds_write_b128 v{3+t}, {vr(AC[t]+4*q,4)} offset:{1024*q}" for t in (3, 2) for q in range(4)]
    for sa in (1, 0):
        for i in range(8):
            a.wait_vm(tags[(sa, i)])
            for sb in (1, 0):
                t = 2 * sa + sb
                c = "0" if i == 0 else vr(AC[t], 16)
                a(f"{MF32} {vr(AC[t],16)}, {vr(AF+8*i+4*sa,4)}, {vr(wbuf(i)+4*sb,4)}, {c}")
                if sa == 0 and i >= 4: a(wr.pop(0))
    assert not wr
    a.nop(9)
    a.stamp(11)
    if "dE" in EXP: a(f"s_sleep {DLY}")
    for q in range(4):
        a(f"ds_write_b128 v4, {vr(AC[1]+4*q,4)} offset:{1024*q}")
    for r in range(0, 16, 2):
        a(f"v_pk_add_f32 {vr(AC[0]+r,2)}, {vr(AC[0]+r,2)}, {vr(BU+r,2)} neg_lo:[0,1] neg_hi:[0,1]")
    a("s_waitcnt lgkmcnt(0)")
    a("s_barrier")
    for s in range(3):
        for q in range(4):
            a(f"ds_read_b128 {vr(AF+16*s+4*q,4)}, v7 offset:{4096*s+1024*q}")
    for s in range(3):
        a(f"s_waitcnt lgkmcnt({8-4*s})")
        for r in range(0, 16, 2):
            a(f"v_pk_add_f32 {vr(AC[0]+r,2)}, {vr(AC[0]+r,2)}, {vr(AF+16*s+r,2)}")
    for r in range(0, 16, 2):
        a(f"v_pk_fma_f32 {vr(AC[0]+r,2)}, {vr(AC[0]+r,2)}, {vr(GG+r,2)}, {vr(BU+r,2)}")
    for r in range(0, 16, 2):
        a(f"v_cvt_pk_bf16_f32 v{AF+r//2}, v{AC[0]+r}, v{AC[0]+r+1}")
    for r in range(16):
        op = "buffer_store_short_d16_hi" if r & 1 else "buffer_store_short"
        a(f"{op} v{AF+r//2}, v12, s[12:15], s{44+(r>>2)} offen offset:{896*(r&3)}{os.environ.get('OST', '')}")
    fin(a, 12)
    if "dblspan" in EXP:
        sel = os.environ.get("SELX")
        if sel:
            a(f"s_cmp_lg_u32 s31, {sel}")
            a("s_cbranch_scc1 L_END")
        a("s_memrealtime s[96:97]")
        a("s_waitcnt lgkmcnt(0)")
        a("s_sub_u32 s98, s96, s100")
        a("s_add_u32 s98, s98, s96")
        a.label("DBL")
        a("s_memrealtime s[96:97]")
        a("s_waitcnt lgkmcnt(0)")
        a("s_sub_u32 s99, s96, s98")
        a("s_cmp_lt_i32 s99, 0")
        a("s_cbranch_scc1 DBL")
    a("s_endpgm")
    a.label("A_SLOW")
    a(f"s_mov_b32 s62, {POLLMAX}")
    a.label("A_SLOW1")
    a(f"v_cmp_eq_u32 vcc, s58, v{PV_}")
    a("s_nop 1")
    a("s_and_b32 s5, vcc_lo, s63")
    a("s_cmp_eq_u32 s5, s63")
    a("s_cbranch_scc1 A_SLOW2")
    kv_poll()
    a("s_cmp_lg_u32 s5, 0")
    a("s_cbranch_scc1 A_SLOWR")
    a("s_sub_u32 s62, s62, 1")
    a("s_cbranch_scc1 A_SLOW2")
    a("s_waitcnt vmcnt(0)")
    a("s_branch A_SLOW1")
    a.label("A_SLOW2")
    a("s_or_b32 s5, s63, 128")
    a("s_cmp_lg_u32 s63, 0")
    a("s_cbranch_scc1 A_SLOWR")
    a("v_readlane_b32 s4, v248, 2")
    a("s_nop 1")
    a("s_cmp_lg_u32 s4, 16")
    a("s_cbranch_scc1 A_SLOWR")
    for i in range(4):
        a(f"v_mov_b32 v{T2+12+i}, v{VK0+i}")
    a("s_lshl_b32 s4, s50, 15")
    a(f"v_add_u32 v{VK0}, s4, v2")
    a(f"v_xor_b32 v{VK1}, 32768, v{VK0}")
    a(f"v_mov_b32 v{VV0}, v{VK0}")
    a(f"v_mov_b32 v{VV1}, v{VK1}")
    a("s_lshl_b32 s4, s24, 13")
    a(f"s_add_u32 s6, s4, {WOF + 1024 - 7*16*KTS}")
    a(f"s_add_u32 s7, s4, {WOF + 5120 - 7*16*VTS}")
    a.srd(12, P_WS, 0x400000, "s6")
    a.srd(16, P_WS, 0x400000, "s7")
    a("s_movk_i32 s60, 1024")
    a("s_movk_i32 s61, 1024")
    a("s_branch A_SLOWR")
    a.label("A_LLOAD")
    late_load(a, 248, 14)
    a("s_branch A_LLOADR")
    a.label("A_FALLBACK")
    a("s_mov_b32 s41, -1")
    a("s_cmp_lg_u32 s60, 1024")
    a("s_cbranch_scc1 A_FB0")
    for i in range(4):
        a(f"v_mov_b32 v{VK0+i}, v{T2+12+i}")
    a(f"s_mul_i32 s34, s24, {4*KTS}")
    a(f"s_mul_i32 s37, s24, {4*VTS}")
    a(f"s_add_u32 s37, s37, {VF}")
    a.srd(12, P_WS, 52 * KTS, "s34")
    a.srd(16, P_WS, 52 * VTS, "s37")
    a.label("A_FB0")
    for t in range(4):
        a(f"v_mov_b32 v{MX+t}, 0xff800000")
    a("s_mov_b32 s44, 0")
    a("s_mov_b32 s45, 0")
    a("s_waitcnt vmcnt(0) lgkmcnt(0)")
    a.label("A_FBLOOP")
    for f in range(2):
        a(f"buffer_load_dwordx4 {vr(KB+4*f,4)}, v{VK0+f}, s[12:15], s44 offen{SC}")
    a("s_waitcnt vmcnt(0)")
    patch(KB)
    a("s_nop 1")
    for t in range(4):
        a(f"{MF32} {vr(O+16*t,16)}, {vr(KB,4)}, {vr(Q+8*t,4)}, 0")
        a(f"{MF32} {vr(O+16*t,16)}, {vr(KB+4,4)}, {vr(Q+8*t+4,4)}, {vr(O+16*t,16)}")
    a.nop(16)
    for i in range(8):
        for t in range(4):
            a(f"v_max3_f32 v{MX+t}, v{MX+t}, v{O+16*t+2*i}, v{O+16*t+2*i+1}")
    a(f"s_addk_i32 s44, {KTS}")
    a("s_add_u32 s45, s45, 1")
    a("s_and_b32 s4, s45, 3")
    a("s_cbranch_scc1 A_FBLOOP")
    a(f"s_add_u32 s44, s44, {12*KTS}")
    a("s_cmp_lt_u32 s45, 16")
    a("s_cbranch_scc1 A_FBLOOP")
    for t in range(4):
        a(f"v_mov_b32 v{T2+t}, v{MX+t}")
    a("s_nop 1")
    for t in range(4):
        a(f"v_permlane32_swap_b32 v{T2+t}, v{MX+t}")
    for t in range(4):
        a(f"v_max_f32 v{MX+t}, v{MX+t}, v{T2+t}")
    a("s_mov_b32 s59, 0")
    a("s_mov_b32 s63, 14")
    a("s_movk_i32 s5, 0x8e")
    a(f"v_mov_b32 v{PV_}, s58")
    for r in range(8):
        a(f"v_mov_b32 v{VB+24+r}, 0")
    first_loads()
    zero_acc()
    a("s_waitcnt vmcnt(0)")
    patch(KB)
    a("s_branch A_SETMAX")

def gen_B(a):
    a.label("L_B")
    a(f"s_setprio {PB}")
    a.stamp(1)
    if "noB" in EXP: a("s_endpgm")
    if "dB" in EXP:
        a("s_waitcnt vmcnt(0)"); a(f"s_sleep {DLY}")
    TS = 272; TW = 64 * TS
    UB = 4 * TW
    US = 4608
    SEL, ACT, INY, WY, KACC, WX = 16, 48, 112, 144, 176, 192
    Z8, Z1, Z256, TM = 236, 238, 242, 2
    FR, CT, UL = 48, 112, 192
    a(f"s_mul_i32 s29, s24, {TW}")
    a("s_mov_b32 m0, s29")
    a("v_mov_b32 v15, 0x3f80")
    a(f"ds_write_addtid_b32 v15 offset:{32*TS}")
    a("v_and_b32 v12, 1, v1")
    a("v_lshlrev_b32 v12, 4, v12")
    a("v_lshlrev_b32 v12, v12, v15" if False else "v_mov_b32 v15, 0x3f80")
    a("v_lshlrev_b32 v12, v12, v15")
    a("s_mov_b64 s[4:5], 3")
    for i in range(32):
        a(f"v_cndmask_b32 v{SEL+i}, 0, v12, s[4:5]")
        if i < 31: a("s_lshl_b64 s[4:5], s[4:5], 2")
    a("v_lshrrev_b32 v13, 5, v1")
    for r in range(4):
        a(f"v_mov_b32 v{KACC+r}, 0")
    a(f"v_mul_u32_u24 v12, {US-512}, v13")
    a("v_add_u32 v12, v12, v2")
    a(f"v_add_u32 v12, {UB}, v12")
    a(f"ds_write_b128 v12, {vr(KACC,4)}")
    a("s_and_b32 s42, s2, 31")
    a("s_lshl_b32 s42, s42, 7")
    a(f"s_add_u32 s42, s42, {F_XT}")
    a("v_lshrrev_b32 v12, 1, v1")
    a("v_and_b32 v13, 1, v1")
    a(f"v_mul_u32_u24 v3, {XTS}, v12")
    a("v_lshl_add_u32 v3, v13, 4, v3")
    a(f"s_mul_i32 s43, s24, {64*XTS}")
    a("s_mul_i32 s33, s31, 896")
    a("s_add_u32 s43, s43, s33")
    a("s_lshl_b32 s33, s39, 4")
    a("s_add_u32 s43, s43, s33")
    a(f"s_add_u32 s43, s43, {XT}")
    a(f"s_add_u32 s44, s43, {32*XTS}")
    a(f"v_mul_u32_u24 v241, {US}, v13")
    a("v_lshl_add_u32 v241, v12, 4, v241")
    a("s_lshl_b32 s33, s24, 10")
    a(f"s_add_u32 s33, s33, {UB + 512}")
    a("v_add_u32 v241, s33, v241")
    a("s_waitcnt lgkmcnt(0)")
    a("s_and_b32 s33, s26, 1")
    a("s_lshl_b32 s33, s33, 4")
    a("s_lshr_b32 s28, s28, s33")
    a("s_lshl_b32 s28, s28, 16")
    a("s_lshr_b32 s38, s38, s33")
    a("s_lshl_b32 s38, s38, 16")
    hi = float(np.float32(LOG2E)); lo = float(np.float32(LOG2E - hi))
    a(f"v_mov_b32 v13, {hex(f2u(hi))}")
    a("v_mul_f32 v14, s28, v13")
    a("v_fma_f32 v13, s28, v13, -v14")
    a(f"v_mov_b32 v15, {hex(f2u(lo))}")
    a("v_fmac_f32 v13, s28, v15")
    a("v_exp_f32 v14, v14")
    a(f"v_mul_f32 v13, {hex(f2u(math.log(2)))}, v13")
    a("v_fmac_f32 v14, v14, v13")
    a("v_cvt_pk_bf16_f32 v14, v14, v14")
    a("v_and_b32 v14, 0xffff0000, v14")
    a(f"s_mov_b32 s48, {hex(f2u(LOG2E))}")
    a(f"s_mov_b32 s49, {hex(f2u(1/(2*math.pi)))}")
    a("s_mov_b32 s47, 0x07060302")
    a("s_brev_b32 s46, 1")
    a("s_cmp_ge_u32 s2, 2")
    a("s_cbranch_scc1 B_NORDY")
    a("v_mov_b32 v4, 1")
    a("s_setprio 3")
    a("s_waitcnt vmcnt(6)")
    a("s_mov_b64 exec, 1")
    a(f"global_atomic_add v{VZ}, v4, {sr(P_DBG,2)} sc1")
    a("s_mov_b64 exec, -1")
    a(f"s_setprio {PB}")
    a.label("B_NORDY")
    a("s_waitcnt vmcnt(4)")
    a.stamp(2)
    r1 = [0, 0, 2, 4, 4, 4, 6, 8, 8]
    P_ = {}
    for r in range(9): P_[(0, r)] = r; P_[(1, r)] = 256 + r1[r]
    for i, e in enumerate((0, 4, 8)): P_[(0, 9 + i)] = 512 + e; P_[(1, 9 + i)] = 768 + e
    for i, e in enumerate((0, 8)):
        P_[(0, 12 + i)] = 1024 + e; P_[(1, 12 + i)] = 1280 + e; P_[(0, 14 + i)] = 1536 + e; P_[(1, 14 + i)] = 1792 + e
    EX = [None] * 32
    for (h, r), p in P_.items(): EX[8 * (r >> 2) + 4 * h + (r & 3)] = ("X", p)
    EY = [("Y", j) for j in range(32)]
    yops = [(("Y", 2), ("Y", 1), ("Y", 1)), (("Y", 3), ("Y", 2), ("Y", 1)), (("Y", 4), ("Y", 2), ("Y", 2))]
    yops += [(("Y", 4 + k), ("Y", 4), ("Y", k)) for k in (4, 1, 2, 3)]
    yops += [(("Y", 8 + k), ("Y", 8), ("Y", k)) for k in (8, 1, 2, 3, 4, 5, 6, 7)]
    yops += [(("Y", 16 + k), ("Y", 16), ("Y", k)) for k in range(1, 16)]
    xops = [(("X", 8), ("X", 0), ("Y", 1))]
    xops += [(("X", e + 1), ("X", e), ("Z", 1)) for e in range(7)]
    for base, es in ((256, (0, 8, 4, 2, 6)), (512, (0, 8, 4)), (768, (0, 8, 4)), (1024, (0, 8)), (1280, (0, 8)), (1536, (0, 8)), (1792, (0, 8))):
        xops += [(("X", base + e), ("X", base - 256 + e), ("Z", 256)) for e in es]
    def pass0():
        YB, XB = 48, 112
        plist = sorted(set(P_.values()))
        xreg = {p: XB + 2 * i for i, p in enumerate(plist)}
        row_of = {p: min(8 * (r >> 2) + 4 * h + (r & 3) for (h, r), pp in P_.items() if pp == p) for p in plist}
        yreg = {j: YB + 2 * j for j in range(1, 32)}
        def reg(n): return {"Y": yreg, "X": xreg, "Z": {1: Z1, 256: Z256}}[n[0]][n[1]]
        allops = xops + yops
        memo = {}
        def height(n):
            if n not in memo:
                memo[n] = max([0] + [1 + height(d) for (d, x, y) in allops if n in (x, y)])
            return memo[n]
        WB = int(os.environ.get("WB", "16")); XAT = int(os.environ.get("XAT", "6"))
        ring = list(range(WX, WX + 32))
        wq = []; ct = [0]
        def emit_write(n):
            t = ring[ct[0] % len(ring)]; ct[0] += 1
            r = reg(n)
            if n[0] == "Y":
                a(f"v_cvt_pk_bf16_f32 v{t}, v{r}, v{r+1}")
                wq.append(f"ds_write_addtid_b32 v{t} offset:{(32+n[1])*TS}")
            else:
                a(f"v_cvt_pk_bf16_f32 v{t}, v{r}, -v{r+1}")
                wq.append(f"ds_write_addtid_b32 v{t} offset:{row_of[n[1]]*TS}")
            if len(wq) >= WB:
                for ins in wq: a(ins)
                wq.clear()
        for i in range(2): a(f"v_lshlrev_b32 v{8+i}, 16, v{RAW+i}")
        a("v_pk_mul_f32 v[8:9], v[8:9], v[14:15] op_sel_hi:[1,0]")
        a("v_pk_mul_f32 v[8:9], v[8:9], s[48:49]")
        a(f"v_mul_f32 v{TM+2}, 0x41000000, v8")
        a(f"v_mul_f32 v{TM+3}, 0x41000000, v9")
        a(f"v_mul_f32 v{TM+4}, 0x43800000, v8")
        a(f"v_mul_f32 v{TM+5}, 0x43800000, v9")
        anch = [(TM + 2, yreg[1]), (8, Z1), (TM + 4, Z256)]
        for s_, d_ in anch:
            a(f"v_fract_f32 v{s_+1}, v{s_+1}")
            a(f"v_exp_f32 v{s_}, v{s_}")
        for s_, d_ in anch:
            a(f"v_cos_f32 v{d_}, v{s_+1}")
            a(f"v_sin_f32 v{d_+1}, v{s_+1}")
        a("s_nop 0")
        for s_, d_ in anch:
            a(f"v_pk_mul_f32 {vr(d_,2)}, {vr(d_,2)}, {vr(s_,2)} op_sel_hi:[1,0]")
        done = {("Y", 1), ("Z", 1), ("Z", 256)}
        towrite = [("Y", 1)]
        pending = sorted(allops, key=lambda o: -height(o[0]))
        nb = 0
        while pending:
            batch = [o for o in pending if o[1] in done and o[2] in done][:4]
            for o in batch: pending.remove(o)
            for (d, x, y) in batch: cmul(a, reg(d), reg(x), reg(y), 0)
            w = towrite; towrite = []
            for n in w[:2]: emit_write(n)
            for (d, x, y) in batch: cmul(a, reg(d), reg(x), reg(y), 1)
            for n in w[2:]: emit_write(n)
            for (d, x, y) in batch:
                done.add(d); towrite.append(d)
            nb += 1
            if nb == XAT:
                a("s_waitcnt vmcnt(0)")
                for i in range(2, 6): a(f"v_lshlrev_b32 v{8+i}, 16, v{RAW+i}")
                cmul(a, xreg[0], 12, 10, 0)
                cmul(a, xreg[0], 12, 10, 1)
                a(f"v_pk_mul_f32 {vr(xreg[0],2)}, {vr(xreg[0],2)}, v[14:15] op_sel_hi:[1,0]")
                done.add(("X", 0)); towrite.append(("X", 0))
        for n in towrite: emit_write(n)
        for ins in wq: a(ins)
    pass0()
    a.stamp(8)
    loc = {("Y", 1): Z8, ("Z", 1): Z1, ("Z", 256): Z256}
    for j in range(2, 17): loc[("Y", j)] = WY + 2 * (j - 1)
    free = list(range(WX, WX + 44, 2))
    mq = []
    since = [99]
    MG = int(os.environ.get("MG", "6"))
    def v(ins):
        a(ins); since[0] += 1
        if mq and since[0] >= MG and mq[0][1] <= cnt[0] - 2:
            a(mq.pop(0)[0]); since[0] = 0; cnt[0] += 1; lastm[0] = cnt[0]
        cnt[0] += 1
    cnt = [0]; lastm = [0]
    class V:
        def __call__(self, x): v(x)
    va = V()
    NEG = {("Y", 1): 240, ("Y", 2): 251, ("Y", 4): 252, ("Y", 8): 253, ("Y", 16): WY, ("Z", 1): WY + 1, ("Z", 256): 15}
    NEG[("Z", 1)] = 251
    def smul(d, x, y, phase):
        if y not in NEG: x, y = y, x
        D, X_, Y_ = loc[d], loc[x], loc[y]
        if phase == 0:
            v(f"v_mul_f32 v{D}, v{X_}, v{Y_}")
            v(f"v_mul_f32 v{D+1}, v{X_}, v{Y_+1}")
        else:
            v(f"v_fmac_f32 v{D}, v{X_+1}, v{NEG[y]}")
            v(f"v_fmac_f32 v{D+1}, v{X_+1}, v{Y_}")
            if d in NEG: v(f"v_xor_b32 v{NEG[d]}, s46, v{D+1}")
    def table(ops, E, IN, neg, done, pre=None):
        uses = {}
        for (d, x, y) in ops:
            for n in (x, y): uses[n] = uses.get(n, 0) + 1
        for n in E: uses[n] = uses.get(n, 0) + 1
        def release(n):
            uses[n] -= 1
            if uses[n] == 0 and n in loc and WX <= loc[n] < WX + 44: free.append(loc[n])
        memo = {}
        def height(n):
            if n not in memo:
                memo[n] = max([0] + [1 + height(d) for (d, x, y) in ops if n in (x, y)])
            return memo[n]
        first = {n: i for i, n in reversed(list(enumerate(E)))}
        pending = sorted(ops, key=lambda o: (-height(o[0]), first.get(o[0], 99)))
        pairs = list(range(16)); gdone = [0] * 4; gseq = [0]
        def cvts(avail):
            for q in list(pairs):
                n0, n1 = E[2 * q], E[2 * q + 1]
                if n0 in avail and n1 in avail:
                    pairs.remove(q)
                    for part in range(2):
                        sg = "-" if (neg and part) else ""
                        s0 = (("1.0", "0")[part]) if n0 == ("Y", 0) else f"{sg}v{loc[n0]+part}"
                        v(f"v_cvt_pk_bf16_f32 v{IN+16*part+q}, {s0}, {sg}v{loc[n1]+part}")
                    release(n0); release(n1)
                    g = q >> 2; gdone[g] += 1
                    if gdone[g] == 4:
                        for hs in range(2):
                            for part in range(2):
                                acc = vr(ACT + 32 * hs + 16 * part, 16)
                                mq.append((f"{MF32} {acc}, {vr(IN+16*part+4*g,4)}, {vr(SEL+16*hs+4*g,4)}, {'0' if gseq[0] == 0 else acc}", cnt[0]))
                        gseq[0] += 1
        nb = 0
        while pending:
            batch = [o for o in pending if o[1] in done and o[2] in done][:4]
            for o in batch:
                pending.remove(o)
                if o[0] not in loc: loc[o[0]] = free.pop(0)
            for (d, x, y) in batch: smul(d, y, x, 0) if x in NEG else smul(d, x, y, 0)
            for (d, x, y) in batch: smul(d, y, x, 1) if x in NEG else smul(d, x, y, 1)
            for (d, x, y) in batch: release(x); release(y)
            if pre and pre(nb): pre = None
            if pre is None: cvts(set(done))
            for (d, x, y) in batch: done.add(d)
            nb += 1
        assert pre is None
        cvts(done)
        assert not pairs
    def packs(OUT, hs):
        for r in range(16):
            v(f"v_perm_b32 v{OUT+16*hs+r}, v{ACT+32*hs+16+r}, v{ACT+32*hs+r}, s47")
    def drain():
        while mq:
            if mq[0][1] > cnt[0] - 2: a("s_nop 1"); cnt[0] += 2
            a(mq.pop(0)[0]); cnt[0] += 1; lastm[0] = cnt[0]
    for i in range(2): v(f"v_and_b32 v{8+i}, 0xffff0000, v{RAW+i}")
    v("v_mul_f32 v8, v8, v14"); v("v_mul_f32 v9, v9, v14")
    v("v_mul_f32 v8, s48, v8"); v("v_mul_f32 v9, s49, v9")
    v(f"v_mul_f32 v{TM+2}, 0x41000000, v8")
    v(f"v_mul_f32 v{TM+3}, 0x41000000, v9")
    v(f"v_mul_f32 v{TM+4}, 0x43800000, v8")
    v(f"v_mul_f32 v{TM+5}, 0x43800000, v9")
    anchors = [(TM + 2, Z8), (8, Z1), (TM + 4, Z256)]
    for s_, d_ in anchors:
        v(f"v_fract_f32 v{s_+1}, v{s_+1}")
        v(f"v_exp_f32 v{s_}, v{s_}")
    for s_, d_ in anchors:
        v(f"v_cos_f32 v{d_}, v{s_+1}")
        v(f"v_sin_f32 v{d_+1}, v{s_+1}")
    a("s_nop 0")
    for s_, d_ in anchors:
        v(f"v_mul_f32 v{d_}, v{d_}, v{s_}")
        v(f"v_mul_f32 v{d_+1}, v{d_+1}, v{s_}")
    v(f"v_xor_b32 v{NEG[('Y',1)]}, s46, v{Z8+1}")
    v(f"v_xor_b32 v{NEG[('Z',256)]}, s46, v{Z256+1}")
    table(yops, EY, INY, False, {("Y", 0), ("Y", 1)})
    a("s_setprio 3")
    nonce_issue(a, 250, True)
    a(f"s_setprio {PB}")
    for i in range(2, 6): v(f"v_and_b32 v{8+i}, 0xffff0000, v{RAW+i}")
    loc[("X", 0)] = free.pop(0)
    X0 = loc[("X", 0)]
    v(f"v_xor_b32 v{NEG[('Z',1)]}, s46, v{Z1+1}")
    v("v_mul_f32 v10, v10, v14"); v("v_mul_f32 v11, v11, v14")
    v(f"v_mul_f32 v{X0}, v12, v10"); v(f"v_mul_f32 v{X0+1}, v12, v11")
    v(f"v_fma_f32 v{X0}, -v13, v11, v{X0}"); v(f"v_fmac_f32 v{X0+1}, v13, v10")
    def ypack(nb):
        if mq or cnt[0] - lastm[0] < 13: return False
        packs(INY, 0); packs(INY, 1)
        return True
    table(xops, EX, WY, True, {("X", 0), ("Y", 1), ("Z", 1), ("Z", 256)}, ypack)
    drain()
    a("v_and_b32 v4, 31, v1")
    a(f"v_mul_u32_u24 v4, {TS}, v4")
    a("v_lshrrev_b32 v5, 5, v1")
    a("v_lshl_add_u32 v4, v5, 4, v4")
    a("v_add_u32 v4, s29, v4")
    a("v_mov_b32 v5, v4")
    for (m, src) in ((5, 4), (12, 7), (13, 7), (20, 15)):
        a(f"s_add_u32 s33, s29, {src*TS}")
        a(f"v_writelane_b32 v5, s33, {m}")
        a("s_add_u32 s33, s33, 16")
        a(f"v_writelane_b32 v5, s33, {m+32}")
    F0 = [SEL + 8 * i for i in range(4)] + [WX + 8 + 8 * i for i in range(4)]
    for ks in range(8):
        a(f"ds_read_b128 {vr(F0[ks],4)}, v5 offset:{32*ks}")
        a(f"ds_read_b128 {vr(F0[ks]+4,4)}, v4 offset:{32*TS+32*ks}")
    a("s_setprio 3")
    a("s_waitcnt vmcnt(0)")
    nonce_take(a, 250, True)
    cnt_load(a, 250, "s42")
    a(f"s_setprio {PB}")
    MG = 4
    packs(WY, 0)
    for ks in range(4):
        mq.append((f"{MF32} {vr(KACC,16)}, {vr(WY+4*ks,4)}, {vr(INY+4*ks,4)}, {vr(KACC,16) if ks else '0'}", cnt[0]))
    packs(WY, 1)
    drain()
    a("s_waitcnt lgkmcnt(0)")
    for ks in range(8):
        a(f"{MF32} {vr(KACC,16)}, {vr(F0[ks],4)}, {vr(F0[ks]+4,4)}, {vr(KACC,16)}")
    for ks in range(4, 8):
        a(f"{MF32} {vr(KACC,16)}, {vr(WY+4*ks,4)}, {vr(INY+4*ks,4)}, {vr(KACC,16)}")
    def u_loads():
        for i in range(2):
            a(f"buffer_load_dwordx4 {vr(UL+4*i,4)}, v3, s[20:23], s{43+i} offen{SC}")
    a(f"s_setprio {PC}")
    a.stamp(3)
    a("v_add_u32 v242, s29, v2")
    a("s_xor_b32 s33, s24, 1")
    a(f"s_mul_i32 s33, s33, {TW}")
    a("v_add_u32 v243, s33, v2")
    a("s_and_b32 s33, s24, 2")
    a(f"s_mul_i32 s48, s33, {TW}")
    a("s_add_u32 s48, s48, 4096")
    a("s_mul_i32 s33, s27, 4160")
    a("s_add_u32 s49, s33, s48")
    a("v_sub_u32 v6, 63, v1")
    a("v_lshlrev_b32 v6, 4, v6")
    a("v_add_u32 v6, s49, v6")
    a("v_and_b32 v7, 1, v1")
    a("v_cmp_eq_u32 vcc, 1, v7")
    for q in range(4):
        a(f"ds_write_b128 v242, {vr(KACC+4*q,4)} offset:{1024*q}")
    a("v_lshrrev_b32 v4, 4, v1")
    a("v_and_b32 v5, 15, v1")
    a("v_add_u32 v7, 1, v5")
    a("v_lshrrev_b32 v7, 1, v7")
    a("v_lshlrev_b32 v8, 2, v4")
    a("v_sub_u32 v8, v8, v7")
    a("v_and_b32 v7, 1, v5")
    a("v_mul_u32_u24 v7, 1040, v7")
    a("v_sub_u32 v8, v8, v7")
    a(f"v_add_u32 v8, {1016 + 1040 - 48 - 128}, v8")
    a("v_lshlrev_b32 v8, 2, v8")
    a("s_lshl_b32 s33, s27, 8")
    a("s_sub_u32 s33, s48, s33")
    a("v_add_u32 v8, s33, v8")
    for i in range(1, 4):
        a(f"v_subrev_u32 v{8+i}, {1024*i}, v8")
    a("s_waitcnt lgkmcnt(0)")
    a.stamp(10)
    a("s_barrier")
    a.stamp(11)

    for q in range(4):
        a(f"ds_read_b128 {vr(FR+4*q,4)}, v243 offset:{1024*q}")
    a("s_waitcnt vmcnt(0)")
    a("v_readfirstlane_b32 s45, v250")
    a("s_nop 1")
    a("s_cmp_lg_u32 s45, 32")
    a("s_cbranch_scc1 B_NOU")
    u_loads()
    a("s_branch B_NOU2")
    a.label("B_NOU")
    cnt_load(a, 250, "s42")
    a.label("B_NOU2")
    a("s_lshr_b32 s33, s24, 1")
    a(f"s_mul_i32 s36, s33, {US}")
    a(f"s_add_u32 s36, s36, {UB + 512}")
    a("v_lshlrev_b32 v12, 5, v5")
    a("v_lshl_add_u32 v13, v4, 3, v12")
    a("v_lshl_add_u32 v12, v4, 4, v12")
    a("s_lshl_b32 s33, s27, 8")
    a("s_sub_u32 s33, s36, s33")
    a(f"s_sub_u32 s33, s33, {32 + 192}")
    a("v_add_u32 v12, s33, v12")
    a("s_lshl_b32 s33, s27, 11")
    a("s_add_u32 s33, s33, s36")
    a("v_add_u32 v13, s33, v13")
    a("s_lshl_b32 s40, s26, 1")
    a("s_add_u32 s40, s40, s27")
    a("s_lshl_b32 s41, s40, 11")
    a(f"s_add_u32 s41, s41, {BT}")
    a("s_lshr_b32 s40, s26, 5")
    a("s_lshl_b32 s40, s40, 7")
    a(f"s_add_u32 s40, s40, {F_B}")
    a("s_waitcnt lgkmcnt(0)")
    for r in range(16):
        a(f"v_add_f32 v{KACC+r}, v{KACC+r}, v{FR+r}")
    K_ = KACC; W_ = FR + 16
    a(f"v_cndmask_b32 v{CT}, v{K_+12}, v{K_+13}, vcc")
    a(f"v_cndmask_b32 v{CT+1}, v{K_+14}, v{K_+15}, vcc")
    for i in range(4):
        a(f"v_mov_b32 v{W_+16+i}, 0")
    def pk(d, lo_, hi_): a(f"v_cvt_pk_bf16_f32 v{d}, v{lo_}, v{hi_}")
    a("s_cmp_eq_u32 s27, 1")
    a("s_cbranch_scc1 B_ODD")
    A_, B_, C_ = K_ + 9, K_ + 10, K_ + 11
    for i in range(4): pk(W_ + i, K_ + 7 - 2 * i, K_ + 6 - 2 * i)
    for i, (x, y) in enumerate(((C_, C_), (B_, B_), (B_, A_), (A_, A_))): pk(W_ + 4 + i, x, y)
    for sl in range(2):
        A2, C2, M2 = K_ + 12 + 2 * sl, K_ + 13 + 2 * sl, CT + sl
        for i, (x, y) in enumerate(((C2, C2), (C2, M2), (A2, A2), (A2, A2))): pk(W_ + 8 + 4 * sl + i, x, y)
    a("s_branch B_IMG")
    a.label("B_ODD")
    for i in range(4): pk(W_ + i, K_ + 8 - 2 * i, K_ + 7 - 2 * i)
    for i, (x, y) in enumerate(((C_, C_), (C_, B_), (B_, B_), (A_, A_))): pk(W_ + 4 + i, x, y)
    for sl in range(2):
        A2, C2, M2 = K_ + 12 + 2 * sl, K_ + 13 + 2 * sl, CT + sl
        for i, (x, y) in enumerate(((C2, C2), (C2, C2), (M2, A2), (A2, A2))): pk(W_ + 8 + 4 * sl + i, x, y)
    a("s_mov_b64 exec, 1")
    pk(W_ + 16, K_, VZ)
    a("s_mov_b64 exec, -1")
    a.label("B_IMG")
    for sl in range(4):
        a(f"ds_write_b128 v6, {vr(W_+4*sl,4)} offset:{(3-sl)*1024}")
    a("v_add_u32 v7, s49, v2")
    a("s_mov_b64 exec, 3")
    a(f"ds_write_b128 v7, {vr(W_+16,4)} offset:4096")
    a("s_mov_b64 exec, -1")
    a("s_cmp_eq_u32 s45, 32")
    a("s_cbranch_scc1 B_UOK")
    a("s_waitcnt vmcnt(0)")
    cnt_wait(a, 250, "s42", 32, 4)
    u_loads()
    a.label("B_UOK")
    a.stamp(7)
    a("s_waitcnt vmcnt(0)")
    for i in range(2):
        a(f"ds_write_b128 v241, {vr(UL+4*i,4)} offset:{512*i}")
    a("s_waitcnt lgkmcnt(0)")
    a("s_barrier")
    a.stamp(4)
    a(f"s_setprio {os.environ.get('PV', '0')}")
    FB, CAC = 16, 144
    a.nds = 0
    tg = {}
    def loadstep(stp):
        b = FB + 64 * (stp & 1)
        for i in range(8):
            o = 128 * (1 - (i & 1)) + 16 * (3 - stp)
            a.ds(f"ds_read2_b32 {vr(b+4*i,2)}, v{8+(i>>1)} offset0:{o} offset1:{o+1}")
            a.ds(f"ds_read2_b32 {vr(b+4*i+2,2)}, v{8+(i>>1)} offset0:{o+2} offset1:{o+3}")
            tg[(stp, i)] = a.ds(f"ds_read_b128 {vr(b+32+4*i,4)}, v12 offset:{512*i+64*(3-stp)}")
    loadstep(0)
    for stp in range(4):
        b = FB + 64 * (stp & 1)
        order = sorted([(i, tp) for i in range(8) for tp in range(8 - i)], key=lambda x: (max(x), x[0] + x[1]))
        nxt = []
        if stp < 3:
            b2 = FB + 64 * ((stp + 1) & 1)
            for i in range(8):
                o = 128 * (1 - (i & 1)) + 16 * (3 - stp - 1)
                nxt.append((None, f"ds_read2_b32 {vr(b2+4*i,2)}, v{8+(i>>1)} offset0:{o} offset1:{o+1}"))
                nxt.append((None, f"ds_read2_b32 {vr(b2+4*i+2,2)}, v{8+(i>>1)} offset0:{o+2} offset1:{o+3}"))
                nxt.append(((stp + 1, i), f"ds_read_b128 {vr(b2+32+4*i,4)}, v12 offset:{512*i+64*(3-stp-1)}"))
        waited = -1
        seen = set()
        for k, (i, tp) in enumerate(order):
            if max(i, tp) > waited:
                waited = max(i, tp)
                a.wait_ds(tg[(stp, waited)])
            t = i + tp
            c = vr(CAC + 4 * t, 4)
            if stp == 0 and t not in seen:
                c = "0"; seen.add(t)
            a(f"{MF16} {vr(CAC+4*t,4)}, {vr(b+4*i,4)}, {vr(b+32+4*tp,4)}, {c}")
            if k >= 8 and nxt:
                key, ins = nxt.pop(0)
                r = a.ds(ins)
                if key: tg[key] = r
        assert not nxt
    a.stamp(5)
    a(f"s_setprio {os.environ.get('PT', '2')}")
    RR = 16
    for tl in range(4):
        a(f"ds_read_b64 {vr(80+2*tl,2)}, v13 offset:{512*tl}")
    a("s_cmp_eq_u32 s27, 1")
    a.nop(3)
    a("s_cbranch_scc1 B_R1")
    for par in range(2):
        if par: a.label("B_R1")
        for q in range(4):
            a(f"ds_write_b128 v242, {vr(CAC+16*(1-par)+4*q,4)} offset:{1024*q}")
        a("s_waitcnt lgkmcnt(0)")
        a("s_barrier")
        for q in range(4):
            a(f"ds_read_b128 {vr(RR+4*q,4)}, v243 offset:{1024*q}")
        a("s_waitcnt lgkmcnt(0)")
        for r in range(16):
            a(f"v_add_f32 v{RR+r}, v{RR+r}, v{CAC+16*par+r}")
        if not par: a("s_branch B_R2")
    a.label("B_R2")
    for t in range(4):
        for i in range(2):
            a(f"v_lshlrev_b32 v{88+2*i}, 16, v{80+2*t+i}")
            a(f"v_and_b32 v{88+2*i+1}, 0xffff0000, v{80+2*t+i}")
        for r in range(4):
            a(f"v_fmac_f32 v{RR+4*t+r}, s38, v{88+r}")
        for i in range(2):
            a(f"v_cvt_pk_bf16_f32 v{80+2*t+i}, v{RR+4*t+2*i}, v{RR+4*t+2*i+1}")
    a("s_nop 1")
    for p in range(2):
        for i in range(2):
            a(f"v_permlane16_swap_b32 v{80+4*p+i}, v{80+4*p+2+i}")
    for p in range(2):
        a(f"buffer_store_dwordx4 {vr(80+4*p,4)}, v2, s[20:23], s41 offen offset:{1024*p}{SC}")
    a("s_waitcnt vmcnt(0)")
    cnt_add(a, 4, "s40")
    fin(a, 6)
    a("s_endpgm")

def gen_C(a):
    a.label("L_C")
    if "dC" in EXP: a(f"s_sleep {DLY}")
    a("s_setprio 3")
    R, U, GU, GW = 16, 80, 144, 160
    a("s_sub_u32 s25, s2, 224")
    a("s_lshl_b32 s26, s31, 2")
    a("s_sub_u32 s33, s32, 28")
    a("s_add_u32 s26, s26, s33")
    a("s_lshl_b32 s26, s26, 2")
    a("s_add_u32 s26, s26, s24")
    a("s_mul_i32 s36, s26, 14336")
    for i in range(1, 4):
        a(f"s_add_u32 s{36+i}, s36, {3584*i}")
    a("s_add_u32 s45, s25, s24")
    a("s_waitcnt lgkmcnt(0)")
    a.srd(20, P_WS, WS_SIZE)
    a.srd(12, P_X, X_BYTES)
    for r in range(16):
        a(f"buffer_load_dwordx4 {vr(R+4*r,4)}, v2, s[12:15], s{36+(r>>2)} offen offset:{896*(r&3)}")
    a.srd(16, P_GW, 896)
    a(f"buffer_load_dwordx4 {vr(GW,4)}, v2, s[16:19], 0 offen")
    a("v_mov_b32 v4, 1")
    a(f"s_mul_i32 s36, s26, {2*XTS}")
    a(f"s_add_u32 s36, s36, {XT}")
    a("s_add_u32 s37, s36, 3584")
    a(f"s_add_u32 s38, s36, {XTS}")
    a("s_add_u32 s39, s38, 3584")
    a("s_mov_b32 s46, 0x05040100")
    a("s_mov_b32 s47, 0x07060302")
    a("s_mov_b32 exec_hi, 0xffffff")
    for hb in range(2):
        a(f"s_waitcnt vmcnt({9 if hb == 0 else 8})")
        for cc in range(8):
            i, e = cc >> 1, cc & 1
            u = U + 32 * hb + 4 * cc
            for q in range(4):
                a(f"v_perm_b32 v{u+q}, v{R+32*hb+4*(2*q+1)+i}, v{R+32*hb+4*(2*q)+i}, s{46+e}")
            a(f"buffer_store_dwordx4 {vr(u,4)}, v2, s[20:23], s{36+2*hb+(cc>>2)} offen offset:{896*(cc&3)}{SC}")
    a.stamp(1)
    a("s_mov_b64 exec, -1")
    nonce_issue(a, 250)
    a("v_lshlrev_b32 v5, 7, v1")
    a(f"s_mov_b32 s41, {F_XT}")
    for r in range(16):
        a(f"v_mov_b32 v{GU+r}, 0")
    a("s_mov_b32 exec_hi, 0xffffff")
    for i in range(4):
        for r in range(16):
            a(f"v_dot2c_f32_bf16 v{GU+r}, v{R+4*r+i}, v{GW+i}")
    a("s_mov_b64 exec, -1")
    a("s_waitcnt vmcnt(0)")
    nonce_take(a, 250)
    a("s_barrier")
    a("s_cmp_lg_u32 s24, 0")
    a("s_cbranch_scc1 C_NOADD")
    a("s_mov_b32 exec_hi, 0")
    a("buffer_atomic_add v4, v5, s[20:23], s41 offen sc1")
    a("s_mov_b64 exec, -1")
    a.label("C_NOADD")
    a.stamp(2)
    a("s_setprio 1")
    a("s_min_u32 s45, s25, 15")
    a("s_mul_i32 s33, s45, 25088")
    a("s_mul_i32 s34, s24, 7168")
    a("s_add_u32 s33, s33, s34")
    a("v_add_u32 v3, 4096, v2")
    a.srd(12, P_WO, 448 * 896)
    a("s_mov_b32 m0, s34")
    a("s_nop 0")
    for i in range(4):
        a(f"buffer_load_dwordx4 v2, s[12:15], s33 offen offset:{1024*i} lds")
    a("s_add_u32 m0, s34, 4096")
    a("s_nop 0")
    for i in range(3):
        a(f"buffer_load_dwordx4 v3, s[12:15], s33 offen offset:{1024*i} lds")
    for sh in ("row_shr:1", "row_shr:2", "row_shr:4", "row_shr:8"):
        for r in range(16):
            a(f"v_add_f32_dpp v{GU+r}, v{GU+r}, v{GU+r} {sh} row_mask:0xf bank_mask:0xf bound_ctrl:0")
    for r in range(16):
        a(f"v_add_f32_dpp v{GU+r}, v{GU+r}, v{GU+r} row_bcast:15 row_mask:0xa bank_mask:0xf")
    for r in range(16):
        a(f"v_add_f32_dpp v{GU+r}, v{GU+r}, v{GU+r} row_bcast:31 row_mask:0xc bank_mask:0xf")
    for op in (f"v_mul_f32 vX, {hex(f2u(-LOG2E))}, vX", "v_exp_f32 vX, vX", "v_add_f32 vX, 1.0, vX", "v_rcp_f32 vX, vX"):
        for r in range(16):
            a(op.replace("vX", f"v{GU+r}"))
    a("s_lshl_b32 s35, s26, 6")
    a(f"s_add_u32 s35, s35, {GO}")
    a("s_lshr_b32 s37, s26, 1")
    a("s_lshl_b32 s37, s37, 7")
    a(f"s_add_u32 s37, s37, {F_G}")
    a("s_mov_b32 exec_lo, 0")
    a("s_mov_b32 exec_hi, 0x80000000")
    for i in range(4):
        a(f"buffer_store_dwordx4 {vr(GU+4*i,4)}, v{VZ}, s[20:23], s35 offen offset:{16*i}{SC}")
    a("s_mov_b64 exec, -1")
    a("v_lshrrev_b32 v15, 5, v1")
    a("v_bfe_u32 v13, v1, 2, 2")
    a("v_lshl_add_u32 v13, v15, 2, v13")
    a("v_mul_u32_u24 v13, 896, v13")
    a("v_bfe_u32 v14, v1, 4, 1")
    a("v_lshl_add_u32 v13, v14, 5, v13")
    a("v_and_b32 v14, 3, v1")
    a("v_lshl_add_u32 v12, v14, 3, v13")
    a("s_lshr_b32 s49, s24, 1")
    a("s_mul_i32 s36, s49, 14336")
    a("s_mul_i32 s38, s27, 448")
    a("s_add_u32 s36, s36, s38")
    a("v_add_u32 v12, s36, v12")
    a(f"s_mul_i32 s38, s27, {7*32768}")
    a("s_lshl_b32 s39, s45, 1")
    a("s_add_u32 s39, s39, s49")
    a("s_lshl_b32 s39, s39, 10")
    a("s_add_u32 s38, s38, s39")
    a(f"s_add_u32 s38, s38, {WOF}")
    a("s_lshr_b32 s40, s25, 2")
    a("s_lshl_b32 s40, s40, 7")
    a(f"s_add_u32 s40, s40, {F_WO}")
    a("s_waitcnt vmcnt(0)")
    cnt_add(a, 4, "s37")
    a("s_cmp_ge_u32 s25, 16")
    a("s_cbranch_scc1 C_END")
    a("s_barrier")
    for i in range(7):
        for hr in range(2):
            a(f"ds_read_b64_tr_b16 {vr(16+4*i+2*hr,2)}, v12 offset:{64*i+8*hr*896}")
    a("s_waitcnt lgkmcnt(0)")
    a("s_cmp_eq_u32 s49, 0")
    a("s_cbranch_scc1 C_WO2")
    a("s_mov_b32 exec_lo, 0")
    for i in range(7):
        a(f"v_mov_b32 v{16+4*i+2}, 0")
        a(f"v_mov_b32 v{16+4*i+3}, 0")
    a("s_mov_b32 exec_lo, -1")
    a.label("C_WO2")
    for i in range(7):
        a(f"buffer_store_dwordx4 {vr(16+4*i,4)}, v2, s[20:23], s38 offen{SC}")
        if i < 6: a("s_add_u32 s38, s38, 32768")
    a("s_waitcnt vmcnt(0)")
    cnt_add(a, 4, "s40")
    a.label("C_END")
    fin(a, 3)

def gen():
    a = Asm()
    gen_entry(a)
    gen_A(a)
    gen_B(a)
    gen_C(a)
    a.label("L_END")
    a("s_endpgm")
    return a.text()

HEADER = open("cdna_kernels/" + NAME + ".s.ref").read().split("; Override launch geometry")[0]

if __name__ == "__main__":
    name = NAME + "_kernel"
    out = HEADER + "; @launch grid=(512,1,1) block=(256,1,1) lds=81920\n"
    out += '.amdgcn_target "amdgcn-amd-amdhsa--gfx950"\n' + kernel_header(name) + gen() + kernel_desc(name, 256)
    dst = sys.argv[1] if len(sys.argv) > 1 else "cdna_kernels/" + NAME + ".s"
    open(dst, "w").write(out)
```

```python
import sys, math, os
import numpy as np
from dsl import *

NAME = "gated_mix__mha_block__ssm_conv_s4__prompt"
KTS = 28672; VTS = 32256; XTS = 7296
KF = 0x000000
VF = 0x200000
XT = 0x400000
GO = 0x5D0000
WOF = 0x600000
OF = 0x880000
BT = 0x690000
FL = 0x670000
F_KV = FL
F_O = FL + 256 * 128
F_XT = FL + 384 * 128
F_G = FL + 416 * 128
F_B = FL + 480 * 128
F_WO = FL + 496 * 128
WS_SIZE = 0xA90000
X_BYTES = 2048 * 896
W_BYTES = 448 * 2688
LOG2E = 1.4426950408889634
QSCALE = LOG2E * 28 ** -0.5
MF32 = "v_mfma_f32_32x32x16_bf16"
MF16 = "v_mfma_f32_16x16x32_bf16"
SC = " sc1"
NON = 60
POLLMAX = 40000
EXP = os.environ.get("EXP", "")
DLY = int(os.environ.get("DLY", "32"))
DEPTH = int(os.environ.get("DEPTH", "3"))
PA = int(os.environ.get("PA", "2")); PB = int(os.environ.get("PB", "3")); PC = int(os.environ.get("PC", "3"))
P_X, P_W, P_WO, P_PAR, P_LDT, P_DSK, P_GW, P_OUT, P_DBG, P_WS = 64, 66, 68, 72, 84, 86, 88, 90, 92, 94
VZ = 255

uid = [0]
def fin(a, idx):
    if not os.environ.get("STAMP"): return
    a("s_waitcnt vmcnt(0)")
    a.stamp(idx)
    dw = os.environ.get("DBGWG")
    if dw:
        uid[0] += 1; u = uid[0]
        a("s_lshl_b32 s96, s2, 2")
        a("s_add_u32 s96, s96, s24")
        a(f"s_cmp_lg_u32 s96, {int(dw)*4}")
        a(f"s_cbranch_scc1 DG{u}")
        a("s_mov_b64 exec, -1")
        a("v_readlane_b32 s97, v254, 1")
        a("v_mbcnt_lo_u32_b32 v0, -1, 0")
        a("v_lshlrev_b32 v1, 1, v0")
        a("v_subrev_u32 v254, s97, v254")
        a("v_and_b32 v1, -4, v1")
        a("s_mov_b32 exec_lo, 0xaaaaaaa8")
        a("s_mov_b32 exec_hi, 0")
        a(f"global_store_dword v1, v254, {sr(P_DBG,2)}")
        a.label(f"DG{u}")
        return
    a.stamp_flush(P_WS)

def cmul(a, d, x, y, phase):
    if phase == 0:
        a(f"v_pk_mul_f32 {vr(d,2)}, {vr(x,2)}, {vr(y,2)} op_sel_hi:[0,1]")
    else:
        a(f"v_pk_fma_f32 {vr(d,2)}, {vr(x,2)}, {vr(y,2)}, {vr(d,2)} op_sel:[1,1,0] op_sel_hi:[1,0,1] neg_lo:[1,0,0]")

def nonce_issue(a, v, allw=False):
    uid[0] += 1; u = uid[0]
    if not allw:
        a("s_cmp_lg_u32 s24, 0")
        a(f"s_cbranch_scc1 NI{u}")
    a(f"global_load_dword v{v}, v{VZ}, {sr(P_DBG,2)}{os.environ.get('NSC', ' sc1')}")
    a.label(f"NI{u}")

def nonce_take(a, v, allw=False):
    uid[0] += 1; u = uid[0]
    if not allw:
        a("s_cmp_lg_u32 s24, 0")
        a(f"s_cbranch_scc1 ND{u}")
    a(f"s_mov_b32 s62, {POLLMAX}")
    a.label(f"NT{u}")
    a(f"v_readfirstlane_b32 s{NON}, v{v}")
    a("s_nop 1")
    a(f"s_cmp_ge_u32 s{NON}, 8")
    a(f"s_cbranch_scc1 ND{u}")
    a("s_sub_u32 s62, s62, 1")
    a(f"s_cbranch_scc1 ND{u}")
    a("s_sleep 8")
    a(f"global_load_dword v{v}, v{VZ}, {sr(P_DBG,2)} sc1")
    a("s_waitcnt vmcnt(0)")
    a(f"s_branch NT{u}")
    a.label(f"ND{u}")

def cnt_load(a, vd, soff):
    a(f"v_mov_b32 v{vd}, 0")
    a("s_mov_b64 exec, 1")
    t = a.vm(f"buffer_atomic_add v{vd}, v{VZ}, s[20:23], {soff} offen sc0 sc1")
    a("s_mov_b64 exec, -1")
    return t

def cnt_wait(a, vd, soff, target, sleep=1):
    uid[0] += 1; u = uid[0]
    a(f"s_mov_b32 s62, {POLLMAX}")
    a.label(f"FC{u}")
    a(f"v_readfirstlane_b32 s4, v{vd}")
    a("s_nop 1")
    a(f"s_cmp_eq_u32 s4, {target}")
    a(f"s_cbranch_scc1 FD{u}")
    a("s_sub_u32 s62, s62, 1")
    a(f"s_cbranch_scc1 FD{u}")
    a(f"s_sleep {sleep}")
    n0 = a.nvm
    cnt_load(a, vd, soff)
    a.nvm = n0
    a("s_waitcnt vmcnt(0)")
    a(f"s_branch FC{u}")
    a.label(f"FD{u}")

def cnt_add(a, vt, soff, va=None, mask="1"):
    a(f"v_mov_b32 v{vt}, 1")
    a(f"s_mov_b64 exec, {mask}")
    a.vm(f"buffer_atomic_add v{vt}, v{VZ if va is None else va}, s[20:23], {soff} offen sc1")
    a("s_mov_b64 exec, -1")

def late_load(a, vd, va):
    a("s_mov_b64 exec, 7")
    a(f"buffer_load_dword v{vd}, v{va}, s[20:23], 0 offen sc1")
    a("s_mov_b64 exec, -1")

def late_check(a, vd, va, vtgt):
    uid[0] += 1; u = uid[0]
    a(f"s_mov_b32 s62, {POLLMAX}")
    a.label(f"FC{u}")
    a(f"v_cmp_ne_u32 vcc, v{vd}, v{vtgt}")
    a("s_nop 1")
    a("s_and_b32 s4, vcc_lo, 7")
    a(f"s_cbranch_scc0 FD{u}")
    a("s_sub_u32 s62, s62, 1")
    a(f"s_cbranch_scc1 FD{u}")
    a("s_sleep 16")
    late_load(a, vd, va)
    a("s_waitcnt vmcnt(0)")
    a(f"s_branch FC{u}")
    a.label(f"FD{u}")

RAW = 244
XRW = 232

def gen_entry(a):
    a("s_cmp_ge_u32 s2, 512")
    a("s_cbranch_scc1 L_END")
    a.stamp(0)
    if "dblspan" in EXP: a("s_memrealtime s[100:101]")
    a("s_load_dwordx16 s[64:79], s[0:1], 0")
    a("s_load_dwordx16 s[80:95], s[0:1], 64")
    if "nopf" not in EXP:
        a("s_cmp_lt_u32 s2, 504")
        a("s_cbranch_scc1 E_NOPF")
        a("s_getpc_b64 s[4:5]")
        a.label("E_PC")
        a("v_lshlrev_b32 v4, 7, v0")
        a("v_min_u32 v4, L_END-E_PC, v4")
        a("v_mov_b32 v5, s5")
        a("v_add_co_u32 v4, vcc, s4, v4")
        a("s_nop 1")
        a("v_addc_co_u32 v5, vcc, 0, v5, vcc")
        a("global_load_dword v6, v[4:5], off")
        a.label("E_NOPF")
    a("v_lshrrev_b32 v13, 6, v0")
    a("v_and_b32 v1, 63, v0")
    a("v_lshlrev_b32 v2, 4, v1")
    a(f"v_mov_b32 v{VZ}, 0")
    a("v_readfirstlane_b32 s24, v13")
    a("s_and_b32 s31, s2, 7")
    a("s_bfe_u32 s32, s2, 0x50003")
    a("s_cmp_ge_u32 s2, 256")
    a("s_cbranch_scc1 L_A")
    a("s_and_b32 s27, s24, 1")
    a("s_cmp_ge_u32 s32, 28")
    a("s_cbranch_scc1 L_C")
    a("s_setprio 3")
    a("s_lshl_b32 s39, s32, 1")
    a("s_lshr_b32 s34, s24, 1")
    a("s_add_u32 s26, s39, s34")
    a("s_lshl_b32 s26, s26, 3")
    a("s_add_u32 s26, s26, s31")
    a("s_lshl_b32 s33, s26, 9")
    a("s_lshl_b32 s34, s27, 8")
    a("s_add_u32 s33, s33, s34")
    a("v_lshlrev_b32 v3, 2, v1")
    a("v_add_u32 v13, s33, v3")
    a("s_lshl_b32 s34, s26, 1")
    a("s_and_b32 s34, s34, -4")
    a("v_lshlrev_b32 v4, 7, v0")
    a("s_lshl_b32 s33, s2, 15")
    a(f"s_add_u32 s33, s33, {FL}")
    a("s_waitcnt lgkmcnt(0)")
    a.srd(20, P_WS, WS_SIZE)
    a("s_cmp_ge_u32 s2, 2")
    a("s_cbranch_scc1 E_NOINIT")
    a(f"buffer_store_dword v{VZ}, v4, s[20:23], s33 offen sc1")
    a.label("E_NOINIT")
    for i in range(6):
        a(f"global_load_dword v{RAW+i}, v13, {sr(P_PAR+2*i,2)}")
    a(f"s_load_dword s28, {sr(P_LDT,2)}, s34")
    a(f"s_load_dword s38, {sr(P_DSK,2)}, s34")
    a("s_branch L_B")

def gen_A(a):
    a.label("L_A")
    if "noA" in EXP: a("s_endpgm")
    a(f"s_setprio {PA}")
    if "dA" in EXP: a(f"s_sleep {DLY}")
    a("s_lshr_b32 s33, s31, 1")
    a("s_lshl_b32 s33, s33, 2")
    a("s_and_b32 s34, s32, 3")
    a("s_add_u32 s25, s33, s34")
    a("s_and_b32 s27, s31, 1")
    a("s_lshr_b32 s54, s32, 2")
    a("s_lshl_b32 s33, s27, 3")
    a("s_add_u32 s26, s33, s54")
    XR, ACC, QACC, WF, NV, PK, T = 16, 128, 128, 176, 248, 224, 240
    XL = 32768
    a("s_lshl_b32 s33, s25, 2")
    a("s_add_u32 s35, s33, s24")
    a("s_mul_i32 s33, s35, 28672")
    a("v_lshrrev_b32 v13, 3, v1")
    a("v_mul_u32_u24 v12, 896, v13")
    a("v_and_b32 v14, 7, v1")
    a("v_lshrrev_b32 v15, 4, v1")
    a("v_xor_b32 v15, v15, v14")
    a("v_lshl_add_u32 v3, v15, 4, v12")
    a("v_add_u32 v3, s33, v3")
    a("v_xor_b32 v246, 64, v3")
    a(f"v_add_u32 v244, {6144}, v246")
    a(f"v_add_u32 v245, {6144*2}, v3")
    a(f"v_add_u32 v246, {6144*3}, v246")
    a("s_mul_i32 s40, s24, 12288")
    a(f"s_add_u32 s40, s40, {XL}")
    a("s_lshl_b32 s33, s34, 1")
    a("s_add_u32 s28, s33, s54")
    a("s_sub_u32 s33, s28, 7")
    a("s_cmp_ge_u32 s28, 7")
    a("s_cselect_b32 s28, s33, s28")
    if "norot" in EXP: a("s_mov_b32 s28, 0")
    a("s_lshl_b32 s29, s28, 7")
    a("s_mul_i32 s37, s28, 172032")
    a("s_mov_b32 s39, s37")
    a("v_bfe_u32 v15, v1, 4, 1")
    a("v_lshlrev_b32 v15, 2, v15")
    a("v_xor_b32 v15, v15, v14")
    a("v_mul_u32_u24 v4, 2688, v13")
    a("v_lshl_add_u32 v4, v15, 4, v4")
    a("s_min_u32 s55, s54, 6")
    a("s_mul_i32 s33, s24, 43008")
    a("s_mul_i32 s34, s27, 896")
    a("s_add_u32 s33, s33, s34")
    a("s_lshl_b32 s34, s55, 7")
    a("s_add_u32 s33, s33, s34")
    a("s_add_u32 s33, s33, 896")
    a("v_add_u32 v4, s33, v4")
    a(f"v_add_u32 v5, {21504-1024}, v4")
    a("s_lshl_b32 s36, s24, 11")
    a("s_waitcnt lgkmcnt(0)")
    a.stamp(1)
    if "dK1" in EXP: a(f"s_sleep {DLY}")
    if "dK2" in EXP: a("s_sleep 64")
    if "dK4" in EXP: a("s_sleep 127")
    a.srd(12, P_X, X_BYTES)
    a.srd(16, P_W, W_BYTES)
    def adv(r):
        a(f"s_add_u32 s{r}, s{r}, 1")
        a(f"s_cmp_eq_u32 s{r}, 7")
        a(f"s_cselect_b32 s{r}, 0, s{r}")
    QD = int(os.environ.get("QD", "14"))
    L = []
    for s_ in range(7):
        L += [("x", s_, 0), ("x", s_, 1), ("x", s_, 2), ("x", s_, 3), ("w", s_, 0), ("w", s_, 1)]
    L += [("n", 0, 0)] + [("q", i, 0) for i in range(7)]
    tag = {}; tagxf = {}
    L0 = list(L)
    lastbar = [-1]; xfree = [-1]; light = [False]; m0 = [None]
    def setm0(base, off):
        if m0[0] != (base, off):
            a(f"s_add_u32 m0, {base}, {off}")
            m0[0] = (base, off)
            return True
        return False
    def issue():
        seen = set()
        for e in L:
            k, s_, n = e
            if k in seen: continue
            seen.add(k)
            if k in "nq" and ("x" in seen or "w" in seen): return
            need = {"x": s_ - 3, "q": 4 + (s_ >> 2)}.get(k, -1)
            if need > xfree[0]: continue
            if k == "w" and s_ >= 4 and lastbar[0] < s_ - 2: continue
            break
        else:
            return
        L.remove(e)
        if k == "x":
            ch = setm0("s40", (s_ % 3) * 4096)
            if n == 0 and s_:
                a("s_add_u32 s29, s29, 128")
                a("s_cmp_eq_u32 s29, 896")
                a("s_cselect_b32 s29, 0, s29")
            elif ch: a("s_nop 0")
            tag[e] = a.vm(f"buffer_load_dwordx4 v{3 if n == 0 else 243+n}, s[12:15], s29 offen offset:{1024*n} lds")
        elif k == "w":
            ch = setm0("s36", (s_ % 4) * 8192)
            if n == 0 and s_:
                a("s_add_u32 s37, s37, 172032")
                a(f"s_cmp_eq_u32 s37, {7*172032}")
                a("s_cselect_b32 s37, 0, s37")
            elif ch: a("s_nop 0")
            tag[e] = a.vm(f"buffer_load_dwordx4 v{4+n}, s[16:19], s37 offen offset:{1024*n} lds")
        elif k == "n":
            nonce_issue(a, NV)
        else:
            setm0("s40", 4096 + 1024 * s_)
            if s_:
                a("s_add_u32 s39, s39, 172032")
                a(f"s_cmp_eq_u32 s39, {7*172032}")
                a("s_cselect_b32 s39, 0, s39")
            else: a("s_nop 0")
            a.vm(f"buffer_load_dwordx4 v14, s[16:19], s39 offen lds")
    nvm_light = a.nvm
    a.srd(20, P_WS, WS_SIZE)
    a("s_cmp_eq_u32 s54, 7")
    a("s_cbranch_scc1 A_GO")
    for _ in range(QD): issue()
    a.label("A_GO")
    if "tlb" in EXP:
        a("s_cmp_lg_u32 s24, 0")
        a("s_cbranch_scc1 A_NOTLB")
        for i, ad in enumerate((0x1fff80, 0x3fff80, 0x5fff80, 0x680000, 0x860000, 0xA80000)):
            a(f"s_mov_b32 s33, {hex(ad)}")
            a(f"v_writelane_b32 v6, s33, {i}")
        a("s_mov_b64 exec, 63")
        a("buffer_load_dword v7, v6, s[20:23], 0 offen")
        a("s_mov_b64 exec, 1")
        a(f"global_load_dword v7, v{VZ}, {sr(P_OUT,2)}")
        a("s_mov_b64 exec, -1")
        a.label("A_NOTLB")
    if "stopA" in EXP: a.stamp(7)
    if "Aload" in EXP:
        a("s_waitcnt vmcnt(0)"); a("s_endpgm")
    a("v_and_b32 v13, 31, v1")
    a("v_bfe_u32 v14, v1, 1, 3")
    a("v_lshrrev_b32 v15, 5, v1")
    a("v_xor_b32 v14, v14, v15")
    a("v_lshlrev_b32 v13, 7, v13")
    a("v_lshl_add_u32 v8, v14, 4, v13")
    a("v_add_u32 v8, s40, v8")
    for ks in range(1, 4):
        a(f"v_xor_b32 v{8+ks}, {32*ks}, v8")
    a(f"v_bfe_u32 v{T}, v1, 2, 2")
    a(f"v_lshl_add_u32 v{T+1}, v15, 3, v{T}")
    a(f"v_bfe_u32 v{T+2}, v1, 4, 1")
    a(f"v_and_b32 v{T+3}, 3, v1")
    a(f"v_lshl_add_u32 v{PK}, v{T+2}, 2, v{T+3}")
    a(f"v_and_b32 v{PK+1}, 1, v1")
    a(f"v_bfe_u32 v{PK+2}, v1, 1, 1")
    a(f"v_lshl_add_u32 v{PK+1}, v{PK+1}, 1, v{PK+2}")
    a(f"v_lshl_add_u32 v{PK+1}, v{T+2}, 2, v{PK+1}")
    a(f"v_bfe_u32 v{T+3}, v1, 3, 1")
    a(f"v_lshlrev_b32 v{T+3}, 6, v{T+3}")
    a(f"v_lshl_add_u32 v{T+3}, v{T+1}, 7, v{T+3}")
    a("s_cmp_eq_u32 s27, 1")
    a("s_cselect_b64 vcc, -1, 0")
    a(f"v_cndmask_b32 v12, v{PK+1}, v{PK}, vcc")
    a(f"v_lshl_add_u32 v12, v12, 3, v{T+3}")
    a("v_xor_b32 v13, 64, v12")
    a(f"v_add_u32 v{PK+2}, 2, v{PK+1}")
    a(f"v_sub_u32 v{PK+3}, 7, v{PK+1}")
    a(f"v_cmp_gt_u32 vcc, 6, v{PK+1}")
    a("s_bitcmp1_b32 s26, 0")
    a("s_cselect_b64 s[4:5], -1, 0")
    a(f"v_cndmask_b32 v{PK+2}, v{PK+3}, v{PK+2}, vcc")
    a(f"v_cndmask_b32 v{PK+2}, v{PK+1}, v{PK+2}, s[4:5]")
    a(f"v_lshlrev_b32 v15, 6, v{T+1}")
    a(f"v_lshl_add_u32 v15, v{PK+2}, 3, v15")
    a(f"v_add_u32 v15, {XL + 4096}, v15")
    a("v_lshrrev_b32 v14, 2, v1")
    a("v_mul_u32_u24 v14, 2688, v14")
    a(f"v_and_b32 v{T}, 3, v1")
    a(f"v_lshl_add_u32 v14, v{T}, 4, v14")
    a("s_mul_i32 s33, s26, 56")
    a("s_and_b32 s33, s33, -16")
    a(f"s_mul_i32 s34, s24, {16*2688}")
    a("s_add_u32 s33, s33, s34")
    a("v_add_u32 v14, s33, v14")
    a("s_mul_i32 s33, s54, 2341")
    a("s_lshr_b32 s33, s33, 10")
    a(f"v_add_u32 v{PK}, s33, v1")
    a(f"v_mul_u32_u24 v{PK+1}, 28, v{PK}")
    a(f"v_lshrrev_b32 v{PK+1}, 6, v{PK+1}")
    a(f"v_cmp_ge_u32 s[56:57], s54, v{PK+1}")
    a(f"v_lshlrev_b32 v243, 11, v{PK}")
    a("s_lshl_b32 s42, s25, 7")
    a(f"s_add_u32 s42, s42, {F_KV}")
    a("s_and_b64 s[56:57], s[56:57], 15")
    a("s_cmp_eq_u32 s54, 7")
    a("s_cbranch_scc1 A_LIGHT")
    a("s_cmp_eq_u32 s27, 1")
    a("s_cbranch_scc1 A_V")

    def pass1(vtype):
        tagtr = {}
        NB = 6; TD = 3
        NIS = int(os.environ.get("NIS", "2"))
        def trload(u, t):
            s, ks = u >> 2, u & 3
            for hr in range(2):
                off = (s % 4) * 8192 + (16 * ks + 4 * hr) * 128
                tagtr[u] = a.ds(f"ds_read_b64_tr_b16 {vr(WF+(u%NB)*8+4*t+2*hr,2)}, v{12+t} offset:{off}")
        def mfma(u, t):
            wf = vr(WF + (u % NB) * 8 + 4 * t, 4); xf = vr(XR + 4 * u, 4)
            c = "0" if u == 0 else vr(ACC + 16 * t, 16)
            a(f"{MF32} {vr(ACC+16*t,16)}, {xf}, {wf}, {c}" if vtype else f"{MF32} {vr(ACC+16*t,16)}, {wf}, {xf}, {c}")
        pend = None
        for u in range(-4, 28):
            if u >= 0:
                a.wait_ds(max(tagtr[u], tagxf[u >> 2]))
                mfma(u, 0)
            issue()
            if (u + TD) % 4 == 0 and (u + TD) // 4 < 7:
                sb = (u + TD) // 4
                a.wait_vm(tag[("w", sb, 1)])
                a("s_barrier")
                lastbar[0] = sb
                if sb in (0, 6): a.stamp(2 + sb // 6)
            if 0 <= u + TD < 28: trload(u + TD, 0)
            if u >= 0: mfma(u, 1)
            if pend is not None:
                a.wait_ds(tagxf[pend]); xfree[0] = pend; pend = None
            for _ in range(NIS - 1): issue()
            if 0 <= u + TD < 28: trload(u + TD, 1)
            if u % 4 == 0 and u // 4 + 1 < 7:
                s = u // 4 + 1
                a.wait_vm(tag[("x", s, 3)])
                for ks in range(4):
                    tagxf[s] = a.ds(f"ds_read_b128 {vr(XR+16*s+4*ks,4)}, v{8+ks} offset:{(s%3)*4096}")
                pend = s
        assert not L, L
    saved = (a.nvm, a.nds, list(L), m0[0])
    a("v_mov_b32 v247, v2")
    a(f"s_mul_i32 s38, s35, {KTS}")
    a("s_lshl_b32 s33, s55, 12")
    a("s_add_u32 s38, s38, s33")
    a("s_add_u32 s41, s38, 1024")
    a("s_add_u32 s43, s38, 2048")
    a("s_add_u32 s44, s38, 3072")
    pass1(False)
    a("s_branch A_ST")
    a.label("A_V")
    a.nvm, a.nds, L[:], m0[0] = saved; lastbar[0] = -1; xfree[0] = -1
    a("v_lshrrev_b32 v247, 5, v1")
    a(f"v_mul_u32_u24 v247, {8064-512}, v247")
    a("v_add_u32 v247, v247, v2")
    a(f"s_mul_i32 s38, s35, {VTS}")
    a("s_mul_i32 s33, s55, 1152")
    a("s_add_u32 s38, s38, s33")
    a(f"s_add_u32 s38, s38, {VF}")
    a("s_add_u32 s41, s38, 16128")
    a("s_add_u32 s43, s38, 512")
    a("s_add_u32 s44, s41, 512")
    a(f"v_lshrrev_b32 v{T}, 1, v1")
    a(f"v_mul_u32_u24 v{T}, 8064, v{T}")
    a(f"v_and_b32 v{T+1}, 1, v1")
    a(f"v_lshl_add_u32 v{T}, v{T+1}, 4, v{T}")
    a(f"v_subrev_u32 v{T+1}, 1, v{T+1}")
    for i in range(4):
        a(f"v_and_b32 v{PK+i}, 0x3f803f80, v{T+1}")
    a("s_mov_b64 exec, 0xff")
    a(f"buffer_store_dwordx4 {vr(PK,4)}, v{T}, s[20:23], s38 offen offset:1024{SC}")
    a("s_mov_b64 exec, -1")
    pass1(True)
    a.label("A_ST")
    a.nop(11)
    for t in range(2):
        for r in range(0, 16, 2):
            a(f"v_cvt_pk_bf16_f32 v{PK+8*t+r//2}, v{ACC+16*t+r}, v{ACC+16*t+r+1}")
        for f in range(2):
            a(f"buffer_store_dwordx4 {vr(PK+8*t+4*f,4)}, v247, s[20:23], s{(38,41,43,44)[2*t+f]} offen{SC}")
    a("s_waitcnt vmcnt(4)")
    a("s_branch A_P2")
    a.label("A_LIGHT")
    a(f"s_setprio {os.environ.get('PLT', '2')}")
    if "dLt" in EXP: a(f"s_sleep {DLY}")
    a.nvm, a.nds = nvm_light, saved[1]; L[:] = [e for e in L0 if e[0] != 'w']; m0[0] = None; xfree[0] = -1
    for _ in range(int(os.environ.get("LQ", "8"))): issue()
    for s_ in range(7):
        a.wait_vm(tag[("x", s_, 3)])
        for ks in range(4):
            a.ds(f"ds_read_b128 {vr(XR+16*s_+4*ks,4)}, v{8+ks} offset:{(s_%3)*4096}")
        a("s_waitcnt lgkmcnt(0)")
        xfree[0] = s_
        for _ in range(int(os.environ.get("LN", "8")) if s_ < 2 else 8): issue()
    assert not L
    a("s_waitcnt vmcnt(0)")
    a.label("A_P2")
    if "dP" in EXP: a(f"s_sleep {DLY}")
    a.stamp(4)
    nonce_take(a, NV)
    a("s_barrier")
    Q, O, S, P, KB, VB, NM, MX, T2 = 16, 48, 112, 144, 160, 192, 224, 228, 232
    VK0, VK1, VV0, VV1, C1, C2 = 10, 11, 12, 13, 252, 253
    class Rec:
        def __init__(self): self.ch = []
        def __call__(self, *ins): self.ch.append(list(ins))
    c = Rec()
    c("s_mul_i32 s33, s26, 28"); c("s_lshr_b32 s44, s33, 6"); c("s_add_u32 s34, s33, 27"); c("s_lshr_b32 s34, s34, 6")
    c("s_sub_u32 s34, s34, s44"); c("s_lshl_b32 s34, s34, 1"); c("s_add_u32 s58, s34, 2")
    c("v_lshrrev_b32 v4, 5, v1")
    c("v_lshlrev_b32 v249, 9, v1"); c(f"v_mov_b32 v{NV+2}, 0")
    c("s_lshl_b32 s34, s26, 11"); c("s_lshl_b32 s36, s24, 7"); c("s_add_u32 s34, s34, s36"); c(f"s_add_u32 s53, s34, {F_KV}")
    c(f"s_mov_b32 s46, {hex(f2u(QSCALE))}"); c("s_mov_b32 s47, s46")
    c("s_lshl_b32 s36, s24, 11"); c("s_add_u32 s36, s36, 49152"); c("v_add_u32 v6, s36, v2")
    for t in range(1, 4): c(f"v_xor_b32 v{6+t}, {2048*t}, v6")
    c("s_lshr_b32 s34, s26, 1"); c("s_mul_i32 s34, s34, 3584"); c("s_and_b32 s36, s26, 1"); c("s_lshl_b32 s37, s36, 11")
    c("s_add_u32 s34, s34, s37"); c(f"v_add_u32 v{VK0}, s34, v2"); c(f"v_add_u32 v{VK1}, 1024, v{VK0}")
    c(f"s_mul_i32 s37, s36, {2048-8}")
    c("s_mov_b32 exec_lo, 0", f"v_subrev_u32 v{VK1}, s37, v{VK1}", "s_mov_b32 exec_lo, -1")
    c("v_and_b32 v5, 31, v1"); c("v_add_u32 v3, s33, v5"); c("v_lshrrev_b32 v5, 6, v3"); c("v_lshlrev_b32 v5, 7, v5")
    c(f"v_lshl_add_u32 v{VV0}, v3, 4, v5")
    c("s_mul_i32 s34, s44, 1152"); c("s_add_u32 s34, s34, 1024"); c("s_add_u32 s37, s34, 16")
    c("s_mov_b32 exec_lo, 0xf0000000", "s_mov_b32 exec_hi, 0xf0000000", f"v_mov_b32 v{VV0}, s37", "s_mov_b64 exec, -1")
    c(f"v_writelane_b32 v{VV0}, s34, 28"); c(f"v_writelane_b32 v{VV0}, s34, 60")
    c("s_movk_i32 s34, 8064"); c(f"v_mad_u32_u24 v{VV0}, v4, s34, v{VV0}"); c(f"v_add_u32 v{VV1}, 16128, v{VV0}")
    c(f"s_mul_i32 s34, s24, {4*KTS}"); c(f"s_mul_i32 s37, s24, {4*VTS}"); c(f"s_add_u32 s37, s37, {VF}")
    for d, sz, off in ((12, 52 * KTS, "s34"), (16, 52 * VTS, "s37")):
        c(f"s_add_u32 s{d}, s{P_WS}, {off}", f"s_addc_u32 s{d+1}, s{P_WS+1}, 0")
        c(f"s_mov_b32 s{d+2}, {sz}"); c(f"s_mov_b32 s{d+3}, 0x00020000")
    c("s_mov_b32 s63, 15")
    c(f"v_mov_b32 v{C1}, 0x3f803f80"); c(f"v_mov_b32 v{C2}, 0x3f80")
    for r in range(8): c(f"v_mov_b32 v{VB+24+r}, 0")
    for t in range(4): c(f"v_mov_b32 v{NM+t}, 0")
    c("s_mov_b32 s41, 0")
    c("s_cmp_eq_u32 s54, 7", "s_cselect_b32 s59, 1, s24")
    PV_ = NV + 2
    def kv_poll():
        a("s_mov_b64 exec, 15")
        a(f"buffer_atomic_umax v{PV_}, v249, s[20:23], s53 offen sc0 sc1")
        a("s_mov_b64 exec, -1")
    def kv_pick(tagname):
        a(f"s_mov_b32 s62, {POLLMAX}")
        a.label(f"KP{tagname}")
        a(f"v_cmp_eq_u32 vcc, s58, v{PV_}")
        a("s_nop 1")
        a("s_and_b32 s5, vcc_lo, s63")
        a(f"s_cbranch_scc1 KD{tagname}")
        a("s_mov_b32 s5, s63")
        a("s_sub_u32 s62, s62, 1")
        a(f"s_cbranch_scc1 KD{tagname}")
        a("s_sleep 1")
        kv_poll()
        a("s_waitcnt vmcnt(0)")
        a(f"s_branch KP{tagname}")
        a.label(f"KD{tagname}")
        a("s_ff1_i32_b32 s59, s5")
        a("s_bitset0_b32 s63, s59")
        a("s_bitset0_b32 s5, s59")
    def first_loads():
        a(f"s_mul_i32 s44, s59, {16*KTS}")
        a(f"s_mul_i32 s45, s59, {16*VTS}")
        for kt in range(4):
            for f in range(2):
                r = a.vm(f"buffer_load_dwordx4 {vr(KB+8*kt+4*f,4)}, v{VK0+f}, s[12:15], s44 offen{SC}")
            if kt < 3: a(f"s_addk_i32 s44, {KTS}")
            if kt == 0: tag = r
            if kt < 3:
                for f in range(2):
                    a.vm(f"buffer_load_dwordx4 {vr(VB+8*kt+4*f,4)}, v{VV0+f}, s[16:19], s45 offen{SC}")
                a(f"s_addk_i32 s45, {VTS}")
        return tag
    def patch(kb):
        a(f"v_mov_b32_dpp v{kb+6}, v{C1} quad_perm:[0,1,2,3] row_mask:0xc bank_mask:0xf")
        a(f"v_mov_b32_dpp v{kb+7}, v{C2} quad_perm:[0,1,2,3] row_mask:0xc bank_mask:0xf")
    tq = {}
    def trq(u):
        for hr in range(2):
            tq[u] = a.ds(f"ds_read_b64_tr_b16 {vr(WF+(u%8)*4+2*hr,2)}, v15 offset:{(u&3)*12288+(u>>2)*1024+256*hr}")
    for u in range(6): trq(u)
    for u in range(28):
        if u + 6 < 28: trq(u + 6)
        a.wait_ds(tq[u])
        cc = "0" if u == 0 else vr(QACC, 16)
        a(f"{MF32} {vr(QACC,16)}, {vr(WF+(u%8)*4,4)}, {vr(XR+4*u,4)}, {cc}")
        n = 0
        while c.ch and n < (3 if u < 22 else 5):
            for ins in c.ch.pop(0): a(ins); n += 1
    assert not c.ch, len(c.ch)
    def zero_acc():
        for t in range(4):
            a(f"{MF32} {vr(O+16*t,16)}, {vr(VB+24,4)}, {vr(VB+24,4)}, 0")
    zero_acc()
    a("s_cmp_lg_u32 s59, 0")
    a("s_waitcnt vmcnt(0)")
    a("s_barrier")
    a("s_cbranch_scc1 A_NOPUB")
    cnt_add(a, NV, "s42", 243, "s[56:57]")
    a.label("A_NOPUB")
    a(f"s_setprio {os.environ.get('PQ', '2')}")
    a.stamp(5)
    if "stopA" in EXP:
        fin(a, 6); a("s_endpgm")
    kv_poll()
    a.nop(1)
    for r in range(16):
        a(f"v_mul_f32 v{QACC+r}, s46, v{QACC+r}")
    for r in range(0, 16, 2):
        a(f"v_cvt_pk_bf16_f32 v{Q+r//2}, v{QACC+r}, v{QACC+r+1}")
    a("s_mov_b32 exec_lo, 0")
    a(f"v_mov_b32 v{Q+6}, 0")
    a(f"v_mov_b32 v{Q+7}, 0")
    a("s_mov_b32 exec_lo, -1")
    for f in range(2):
        a(f"ds_write_b128 v6, {vr(Q+4*f,4)} offset:{1024*f}")
    a("s_waitcnt lgkmcnt(0)")
    a("s_barrier")
    for t in range(1, 4):
        for f in range(2):
            a(f"ds_read_b128 {vr(Q+8*t+4*f,4)}, v{6+t} offset:{1024*f}")
    a("s_mov_b32 s42, 0x07060302")
    a("s_min_u32 s33, s32, 27")
    a("s_and_b32 s34, s33, 3")
    a("s_lshl_b32 s47, s31, 2")
    a("s_add_u32 s47, s47, s34")
    a("s_lshr_b32 s48, s33, 2")
    a("s_lshr_b32 s49, s24, 1")
    a("s_lshl_b32 s33, s47, 1")
    a("s_add_u32 s49, s49, s33")
    a("s_and_b32 s50, s24, 1")
    a("s_lshl_b32 s33, s48, 1")
    a("s_add_u32 s50, s50, s33")
    a("v_bfe_u32 v5, v1, 2, 2")
    a("v_lshlrev_b32 v9, 7, v5")
    a("v_bfe_u32 v5, v1, 4, 1")
    a("v_lshl_add_u32 v9, v5, 6, v9")
    a("v_and_b32 v5, 3, v1")
    a("v_lshl_add_u32 v9, v5, 4, v9")
    a("v_lshl_add_u32 v9, v4, 9, v9")
    for t in range(1, 4):
        a(f"s_xor_b32 s33, s24, {t}")
        a("s_mul_i32 s33, s33, 12288")
        a(f"s_add_u32 s33, s33, {(t-1)*4096}")
        a(f"v_add_u32 v{3+t}, s33, v2")
    a("s_mul_i32 s33, s24, 12288")
    a("v_add_u32 v7, s33, v2")
    a("v_or_b32 v8, 512, v7")
    a("s_lshl_b32 s33, s35, 4")
    a("s_add_u32 s33, s33, s26")
    a("s_lshl_b32 s43, s33, 11")
    a(f"s_add_u32 s43, s43, {OF}")
    a("s_lshr_b32 s51, s35, 1")
    a("s_lshl_b32 s51, s51, 9")
    a("s_lshr_b32 s33, s26, 2")
    a("s_lshl_b32 s33, s33, 7")
    a("s_add_u32 s51, s51, s33")
    a(f"s_add_u32 s51, s51, {F_O}")
    a("s_lshl_b32 s33, s50, 7")
    a(f"s_add_u32 s33, s33, {F_B}")
    a("v_mov_b32 v14, s33")
    a("v_mov_b32 v15, 64")
    a("s_lshl_b32 s33, s49, 7")
    a(f"s_add_u32 s33, s33, {F_G}")
    a("v_writelane_b32 v14, s33, 1")
    a("v_writelane_b32 v15, 2, 1")
    a("s_lshl_b32 s33, s24, 7")
    a(f"s_add_u32 s33, s33, {F_WO}")
    a("v_writelane_b32 v14, s33, 2")
    a("v_writelane_b32 v15, 16, 2")
    a("s_waitcnt vmcnt(0)")
    kv_pick("A")
    a.stamp(6)
    tagk0 = first_loads()
    kv_poll()
    a.nvm += 1
    a("s_waitcnt lgkmcnt(0)")
    a.wait_vm(tagk0)
    a.stamp(7)
    if "dL" in EXP: a(f"s_sleep {DLY}")
    TT = [S + 16, T2, P, S]
    patch(KB)
    a("s_nop 0")
    def mx(t):
        a(f"v_max3_f32 v{MX+t}, v{TT[t]}, v{TT[t]+1}, v{TT[t]+2}")
        for i in range(1, 4):
            a(f"v_max3_f32 v{MX+t}, v{MX+t}, v{TT[t]+2*i+1}, v{TT[t]+2*i+2}")
    for t in range(4):
        a(f"{MF32} {vr(TT[t],16)}, {vr(KB,4)}, {vr(Q+8*t,4)}, 0")
        a(f"{MF32} {vr(TT[t],16)}, {vr(KB+4,4)}, {vr(Q+8*t+4,4)}, {vr(TT[t],16)}")
    a.nop(6)
    mx(0); mx(1); mx(2)
    mx(3)
    a.label("A_SETMAX")
    def setm(ts):
        for t in ts: a(f"v_sub_f32 v{NM+t}, v{NM+t}, v{MX+t}")
        for t in ts: a(f"v_and_b32 v{T2+t}, 0xffff0000, v{NM+t}")
        for t in ts: a(f"v_sub_f32 v{T2+t}, v{NM+t}, v{T2+t}")
        for t in ts: a(f"v_and_b32 v{T2+4+t}, 0xffff0000, v{T2+t}")
        for t in ts: a(f"v_sub_f32 v{T2+4+t}, v{T2+t}, v{T2+4+t}")
        for t in ts:
            a(f"v_perm_b32 v{Q+8*t+6}, v{T2+t}, v{NM+t}, s42")
            a(f"v_lshrrev_b32 v{Q+8*t+7}, 16, v{T2+4+t}")
    a("s_mov_b32 exec_lo, 0")
    setm((0, 1))
    a("s_mov_b32 exec_lo, -1")
    a(f"{MF32} {vr(S,16)}, {vr(KB,4)}, {vr(Q,4)}, 0")
    a(f"{MF32} {vr(S,16)}, {vr(KB+4,4)}, {vr(Q+4,4)}, {vr(S,16)}")
    a("s_mov_b32 exec_lo, 0")
    setm((2, 3))
    a("s_mov_b32 exec_lo, -1")
    for r in range(8):
        a(f"v_mov_b32 v{P+8+r}, 0")
    a("s_mov_b32 s46, 4")
    a(f"s_movk_i32 s60, {KTS}")
    a(f"s_movk_i32 s61, {VTS}")
    a(f"s_setprio {os.environ.get('PL', '1')}")
    a.label("A_LOOP")
    sh = {}
    for kt in range(4):
        b = 4 * kt
        for f in range(2):
            sh[(b, 2 + f)] = [f"buffer_load_dwordx4 {vr(VB+8*((kt-1)&3)+4*f,4)}, v{VV0+f}, s[16:19], s45 offen{SC}"]
            sh[(b + 2, 1 + f)] = [f"buffer_load_dwordx4 {vr(KB+8*kt+4*f,4)}, v{VK0+f}, s[12:15], s44 offen{SC}"]
        sh[(b + 1, 1)] = ["s_waitcnt vmcnt(12)"]
        sh[(b + 2, 3)] = ["s_waitcnt vmcnt(12)"]
        if kt: sh[(b + 1, 0)] = ["s_add_u32 s45, s45, s61"]
        if kt < 3: sh[(b + 3, 1)] = ["s_add_u32 s44, s44, s60"]
    sh[(1, 0)] = ["s_cmp_le_u32 s5, 128"]
    sh[(1, 2)] = ["s_cbranch_scc1 A_SLOW", "A_SLOWR:"]
    sh[(1, 3)] = ["s_ff1_i32_b32 s59, s5"]
    sh[(2, 0)] = [f"s_mul_i32 s44, s59, {16*KTS}"]
    sh[(3, 0)] = [f"s_mul_i32 s45, s59, {16*VTS}"]
    sh[(3, 2)] = ["s_bitset0_b32 s63, s59"]
    sh[(3, 3)] = ["s_bitset0_b32 s5, s59"]
    sh[(4, 0)] = ["s_cmp_le_u32 s46, 2"]
    sh[(4, 1)] = ["s_cbranch_scc1 A_LLOAD", "A_LLOADR:"]
    sh[(15, 2)] = ["s_sub_u32 s46, s46, 1"]
    sh[(15, 3)] = ["s_cmp_lg_u32 s46, 0"]
    for n in range(16):
        kt, t = n >> 2, n & 3
        n1 = (n + 1) & 15; kt1, t1 = n1 >> 2, n1 & 3
        n0 = (n - 1) & 15; kt0, t0 = n0 >> 2, n0 & 3
        sc = S + 16 * (n & 1); sn = S + 16 * (n1 & 1)
        pc = P + 8 * (n & 1); pp = P + 8 * (n0 & 1)
        mf = [f"{MF32} {vr(sn,16)}, {vr(KB+8*kt1,4)}, {vr(Q+8*t1,4)}, 0",
              f"{MF32} {vr(sn,16)}, {vr(KB+8*kt1+4,4)}, {vr(Q+8*t1+4,4)}, {vr(sn,16)}",
              f"{MF32} {vr(O+16*t0,16)}, {vr(VB+8*kt0,4)}, {vr(pp,4)}, {vr(O+16*t0,16)}",
              f"{MF32} {vr(O+16*t0,16)}, {vr(VB+8*kt0+4,4)}, {vr(pp+4,4)}, {vr(O+16*t0,16)}"]
        for m in range(4):
            a(mf[m])
            for ins in sh.get((n, m), []):
                if ins.endswith(":"): a.label(ins[:-1])
                else: a(ins)
            if m == 0 and t == 3:
                patch(KB + 8 * kt1)
            for e in range(4):
                a(f"v_exp_f32 v{sc+4*m+e}, v{sc+4*m+e}")
            for c_ in range(2):
                a(f"v_cvt_pk_bf16_f32 v{pc+2*m+c_}, v{sc+4*m+2*c_}, v{sc+4*m+2*c_+1}")
    a("s_cbranch_scc1 A_LOOP")
    a.stamp(8)
    if "dT" in EXP: a(f"s_sleep {DLY}")
    a("s_nop 0")
    a(f"{MF32} {vr(O+48,16)}, {vr(VB+24,4)}, {vr(P+8,4)}, {vr(O+48,16)}")
    a(f"{MF32} {vr(O+48,16)}, {vr(VB+28,4)}, {vr(P+12,4)}, {vr(O+48,16)}")
    a("v_mov_b32 v3, 0x5f800000")
    a("s_mov_b32 exec_lo, 0")
    for t in range(3):
        a(f"v_cmp_nlt_f32 {sr(4+2*t,2)}, v{O+16*t+12}, v3")
    for t in range(1, 3):
        a(f"v_mov_b32 v{O+16*t+13}, v{NM+t}")
    a("s_mov_b32 exec_lo, -1")
    for t in range(1, 3):
        for q in range(4):
            a(f"ds_write_b128 v{3+t}, {vr(O+16*t+4*q,4)} offset:{1024*q}")
    a("s_mov_b32 exec_lo, 0")
    a(f"v_cmp_nlt_f32 vcc, v{O+48+12}, v3")
    a(f"v_mov_b32 v{O+48+13}, v{NM+3}")
    a("s_mov_b32 exec_lo, -1")
    a("s_or_b32 s5, s5, s7")
    a("s_or_b32 s5, s5, s9")
    a("s_or_b32 s5, s5, vcc_hi")
    a("s_andn2_b32 s5, s5, s41")
    a("s_cbranch_scc1 A_FALLBACK")
    for q in range(4):
        a(f"ds_write_b128 v6, {vr(O+48+4*q,4)} offset:{1024*q}")
    a(f"v_mov_b32 v{T2}, v{O+12}")
    a(f"v_mov_b32 v{T2+1}, v{O+12}")
    a(f"v_mov_b32 v{T2+8}, v{NM}")
    a("v_add_u32 v10, 4096, v2")
    a("s_lshl_b32 s33, s24, 13")
    a(f"s_add_u32 s33, s33, {WOF}")
    a("s_lshl_b32 s36, s50, 15")
    a("s_add_u32 s36, s36, s33")
    a("s_xor_b32 s37, s50, 1")
    a("s_lshl_b32 s37, s37, 15")
    a("s_add_u32 s37, s37, s33")
    a("v_lshrrev_b32 v11, 5, v1")
    a("v_lshlrev_b32 v12, 6, v11")
    a("s_lshl_b32 s38, s49, 7")
    a(f"s_add_u32 s38, s38, {GO}")
    a("v_and_b32 v13, 31, v1")
    a("v_lshlrev_b32 v3, 12, v13")
    a("v_lshl_add_u32 v3, v11, 4, v3")
    a("s_lshl_b32 s39, s50, 17")
    a("s_lshr_b32 s34, s49, 4")
    a("s_lshl_b32 s34, s34, 10")
    a("s_add_u32 s39, s39, s34")
    a("s_and_b32 s34, s49, 15")
    a("s_lshl_b32 s34, s34, 5")
    a("s_add_u32 s39, s39, s34")
    a(f"s_add_u32 s39, s39, {BT}")
    WB, GG, BB = KB, Q, Q + 16
    def wbuf(i): return WB + 8 * ((i - 1) & 7)
    def wo_load(i):
        for x in range(2):
            a(f"buffer_load_dwordx4 {vr(wbuf(i)+4*x,4)}, v{2 if i<4 else 10}, s[20:23], s{36+x} offen offset:{1024*(i&3)}{SC}")
    TE = int(os.environ.get('TE', '1'))
    def tail_loads():
        late_check(a, 248, 14, 15)
        wo_load(0)
        for i in range(4):
            a(f"buffer_load_dwordx4 {vr(GG+4*i,4)}, v12, s[20:23], s38 offen offset:{16*i}{SC}")
        for i in range(2):
            a(f"buffer_load_dwordx4 {vr(BB+4*i,4)}, v3, s[20:23], s39 offen offset:{512*i}{SC}")
        a.nvm += 8
    if TE: tail_loads()
    a("s_waitcnt lgkmcnt(0)")
    a("s_barrier")
    LM = T2 + 2
    for s in range(3):
        a(f"ds_read_b64 {vr(LM+2*s,2)}, v8 offset:{4096*s+3072}")
    RB = O + 16
    for s in range(3):
        for q in range(4):
            a(f"ds_read_b128 {vr(RB+16*s+4*q,4)}, v7 offset:{4096*s+1024*q}")
    a(f"v_permlane32_swap_b32 v{T2}, v{T2+1}")
    a(f"v_permlane32_swap_b32 v{T2+8}, v{NM}")
    a("s_waitcnt lgkmcnt(12)")
    a(f"v_min3_f32 v{MX}, v{NM}, v{LM+1}, v{LM+3}")
    a(f"v_min_f32 v{MX}, v{MX}, v{LM+5}")
    a(f"v_sub_f32 v{S}, v{MX}, v{NM}")
    for s in range(3):
        a(f"v_sub_f32 v{S+2+2*s}, v{MX}, v{LM+2*s+1}")
    for s in range(4):
        a(f"v_exp_f32 v{S+2*s}, v{S+2*s}")
    a(f"v_mul_f32 v{MX+1}, v{S}, v{T2+1}")
    for s in range(3):
        a(f"v_fmac_f32 v{MX+1}, v{S+2+2*s}, v{LM+2*s}")
    a(f"v_rcp_f32 v{MX+1}, v{MX+1}")
    a("s_nop 0")
    for s in range(4):
        a(f"v_mul_f32 v{S+2*s}, v{S+2*s}, v{MX+1}")
    for r in range(0, 16, 2):
        a(f"v_pk_mul_f32 {vr(O+r,2)}, {vr(O+r,2)}, {vr(S,2)} op_sel_hi:[1,0]")
    for s in range(3):
        a(f"s_waitcnt lgkmcnt({8-4*s})")
        for r in range(0, 16, 2):
            a(f"v_pk_fma_f32 {vr(O+r,2)}, {vr(RB+16*s+r,2)}, {vr(S+2+2*s,2)}, {vr(O+r,2)} op_sel_hi:[1,0,1]")
    for r in range(0, 16, 2):
        a(f"v_cvt_pk_bf16_f32 v{P+r//2}, v{O+r}, v{O+r+1}")
    a("s_mov_b32 exec_lo, 0")
    a(f"v_mov_b32 v{P+6}, 0")
    a(f"v_mov_b32 v{P+7}, 0")
    a("s_mov_b32 exec_lo, -1")
    a.nvm = 0
    for f in range(2):
        tagos = a.vm(f"buffer_store_dwordx4 {vr(P+4*f,4)}, v9, s[20:23], s43 offen offset:{1024*f}{SC}")
    a.stamp(9)
    if not TE: tail_loads()
    a("s_barrier")
    a("s_lshl_b32 s52, s47, 9")
    a("s_lshl_b32 s33, s24, 7")
    a("s_add_u32 s52, s52, s33")
    a(f"s_add_u32 s52, s52, {F_O}")
    a.wait_vm(tagos)
    cnt_add(a, 252, "s51")
    a("s_cmp_ge_u32 s32, 28")
    a("s_cbranch_scc1 L_END")
    a("s_cmp_eq_u32 s60, 1024")
    a("s_cbranch_scc1 A_WOK")
    for i in range(1, 8): wo_load(i)
    a.label("A_WOK")
    cnt_load(a, 250, "s52")
    a("s_lshl_b32 s33, s24, 13")
    a(f"s_add_u32 s33, s33, {OF}")
    a("s_lshl_b32 s36, s49, 15")
    a("s_add_u32 s36, s36, s33")
    a("s_xor_b32 s37, s49, 1")
    a("s_lshl_b32 s37, s37, 15")
    a("s_add_u32 s37, s37, s33")
    a.srd(12, P_OUT, X_BYTES)
    a("v_mul_u32_u24 v12, 14336, v11")
    a("v_lshl_add_u32 v12, v13, 1, v12")
    a("s_mul_i32 s44, s49, 28672")
    a("s_lshl_b32 s33, s50, 6")
    a("s_add_u32 s44, s44, s33")
    for i in range(1, 4):
        a(f"s_add_u32 s{44+i}, s44, {3584*i}")
    a("s_waitcnt vmcnt(0)")
    BU = 232
    for i in range(8):
        a(f"v_lshlrev_b32 v{BU+2*i}, 16, v{BB+i}")
        a(f"v_and_b32 v{BU+2*i+1}, 0xffff0000, v{BB+i}")
    cnt_wait(a, 250, "s52", 8)
    a.stamp(10)
    AF = O
    tags = {}
    for x in (1, 0):
        for i in range(8):
            tags[(x, i)] = a.vm(f"buffer_load_dwordx4 {vr(AF+8*i+4*x,4)}, v{2 if i<4 else 10}, s[20:23], s{36+x} offen offset:{1024*(i&3)}{SC}")
    AC = [BB, S, S + 16, P]
    wr = [f"ds_write_b128 v{3+t}, {vr(AC[t]+4*q,4)} offset:{1024*q}" for t in (3, 2) for q in range(4)]
    for sa in (1, 0):
        for i in range(8):
            a.wait_vm(tags[(sa, i)])
            for sb in (1, 0):
                t = 2 * sa + sb
                c = "0" if i == 0 else vr(AC[t], 16)
                a(f"{MF32} {vr(AC[t],16)}, {vr(AF+8*i+4*sa,4)}, {vr(wbuf(i)+4*sb,4)}, {c}")
                if sa == 0 and i >= 4: a(wr.pop(0))
    assert not wr
    a.nop(9)
    a.stamp(11)
    if "dE" in EXP: a(f"s_sleep {DLY}")
    for q in range(4):
        a(f"ds_write_b128 v4, {vr(AC[1]+4*q,4)} offset:{1024*q}")
    for r in range(0, 16, 2):
        a(f"v_pk_add_f32 {vr(AC[0]+r,2)}, {vr(AC[0]+r,2)}, {vr(BU+r,2)} neg_lo:[0,1] neg_hi:[0,1]")
    a("s_waitcnt lgkmcnt(0)")
    a("s_barrier")
    for s in range(3):
        for q in range(4):
            a(f"ds_read_b128 {vr(AF+16*s+4*q,4)}, v7 offset:{4096*s+1024*q}")
    for s in range(3):
        a(f"s_waitcnt lgkmcnt({8-4*s})")
        for r in range(0, 16, 2):
            a(f"v_pk_add_f32 {vr(AC[0]+r,2)}, {vr(AC[0]+r,2)}, {vr(AF+16*s+r,2)}")
    for r in range(0, 16, 2):
        a(f"v_pk_fma_f32 {vr(AC[0]+r,2)}, {vr(AC[0]+r,2)}, {vr(GG+r,2)}, {vr(BU+r,2)}")
    for r in range(0, 16, 2):
        a(f"v_cvt_pk_bf16_f32 v{AF+r//2}, v{AC[0]+r}, v{AC[0]+r+1}")
    for r in range(16):
        op = "buffer_store_short_d16_hi" if r & 1 else "buffer_store_short"
        a(f"{op} v{AF+r//2}, v12, s[12:15], s{44+(r>>2)} offen offset:{896*(r&3)}{os.environ.get('OST', '')}")
    fin(a, 12)
    if "dblspan" in EXP:
        sel = os.environ.get("SELX")
        if sel:
            a(f"s_cmp_lg_u32 s31, {sel}")
            a("s_cbranch_scc1 L_END")
        a("s_memrealtime s[96:97]")
        a("s_waitcnt lgkmcnt(0)")
        a("s_sub_u32 s98, s96, s100")
        a("s_add_u32 s98, s98, s96")
        a.label("DBL")
        a("s_memrealtime s[96:97]")
        a("s_waitcnt lgkmcnt(0)")
        a("s_sub_u32 s99, s96, s98")
        a("s_cmp_lt_i32 s99, 0")
        a("s_cbranch_scc1 DBL")
    a("s_endpgm")
    a.label("A_SLOW")
    a(f"s_mov_b32 s62, {POLLMAX}")
    a.label("A_SLOW1")
    a(f"v_cmp_eq_u32 vcc, s58, v{PV_}")
    a("s_nop 1")
    a("s_and_b32 s5, vcc_lo, s63")
    a("s_cmp_eq_u32 s5, s63")
    a("s_cbranch_scc1 A_SLOW2")
    kv_poll()
    a("s_cmp_lg_u32 s5, 0")
    a("s_cbranch_scc1 A_SLOWR")
    a("s_sub_u32 s62, s62, 1")
    a("s_cbranch_scc1 A_SLOW2")
    a("s_waitcnt vmcnt(0)")
    a("s_branch A_SLOW1")
    a.label("A_SLOW2")
    a("s_or_b32 s5, s63, 128")
    a("s_cmp_lg_u32 s63, 0")
    a("s_cbranch_scc1 A_SLOWR")
    a("v_readlane_b32 s4, v248, 2")
    a("s_nop 1")
    a("s_cmp_lg_u32 s4, 16")
    a("s_cbranch_scc1 A_SLOWR")
    for i in range(4):
        a(f"v_mov_b32 v{T2+12+i}, v{VK0+i}")
    a("s_lshl_b32 s4, s50, 15")
    a(f"v_add_u32 v{VK0}, s4, v2")
    a(f"v_xor_b32 v{VK1}, 32768, v{VK0}")
    a(f"v_mov_b32 v{VV0}, v{VK0}")
    a(f"v_mov_b32 v{VV1}, v{VK1}")
    a("s_lshl_b32 s4, s24, 13")
    a(f"s_add_u32 s6, s4, {WOF + 1024 - 7*16*KTS}")
    a(f"s_add_u32 s7, s4, {WOF + 5120 - 7*16*VTS}")
    a.srd(12, P_WS, 0x400000, "s6")
    a.srd(16, P_WS, 0x400000, "s7")
    a("s_movk_i32 s60, 1024")
    a("s_movk_i32 s61, 1024")
    a("s_branch A_SLOWR")
    a.label("A_LLOAD")
    late_load(a, 248, 14)
    a("s_branch A_LLOADR")
    a.label("A_FALLBACK")
    a("s_mov_b32 s41, -1")
    a("s_cmp_lg_u32 s60, 1024")
    a("s_cbranch_scc1 A_FB0")
    for i in range(4):
        a(f"v_mov_b32 v{VK0+i}, v{T2+12+i}")
    a(f"s_mul_i32 s34, s24, {4*KTS}")
    a(f"s_mul_i32 s37, s24, {4*VTS}")
    a(f"s_add_u32 s37, s37, {VF}")
    a.srd(12, P_WS, 52 * KTS, "s34")
    a.srd(16, P_WS, 52 * VTS, "s37")
    a.label("A_FB0")
    for t in range(4):
        a(f"v_mov_b32 v{MX+t}, 0xff800000")
    a("s_mov_b32 s44, 0")
    a("s_mov_b32 s45, 0")
    a("s_waitcnt vmcnt(0) lgkmcnt(0)")
    a.label("A_FBLOOP")
    for f in range(2):
        a(f"buffer_load_dwordx4 {vr(KB+4*f,4)}, v{VK0+f}, s[12:15], s44 offen{SC}")
    a("s_waitcnt vmcnt(0)")
    patch(KB)
    a("s_nop 1")
    for t in range(4):
        a(f"{MF32} {vr(O+16*t,16)}, {vr(KB,4)}, {vr(Q+8*t,4)}, 0")
        a(f"{MF32} {vr(O+16*t,16)}, {vr(KB+4,4)}, {vr(Q+8*t+4,4)}, {vr(O+16*t,16)}")
    a.nop(16)
    for i in range(8):
        for t in range(4):
            a(f"v_max3_f32 v{MX+t}, v{MX+t}, v{O+16*t+2*i}, v{O+16*t+2*i+1}")
    a(f"s_addk_i32 s44, {KTS}")
    a("s_add_u32 s45, s45, 1")
    a("s_and_b32 s4, s45, 3")
    a("s_cbranch_scc1 A_FBLOOP")
    a(f"s_add_u32 s44, s44, {12*KTS}")
    a("s_cmp_lt_u32 s45, 16")
    a("s_cbranch_scc1 A_FBLOOP")
    for t in range(4):
        a(f"v_mov_b32 v{T2+t}, v{MX+t}")
    a("s_nop 1")
    for t in range(4):
        a(f"v_permlane32_swap_b32 v{T2+t}, v{MX+t}")
    for t in range(4):
        a(f"v_max_f32 v{MX+t}, v{MX+t}, v{T2+t}")
    a("s_mov_b32 s59, 0")
    a("s_mov_b32 s63, 14")
    a("s_movk_i32 s5, 0x8e")
    a(f"v_mov_b32 v{PV_}, s58")
    for r in range(8):
        a(f"v_mov_b32 v{VB+24+r}, 0")
    first_loads()
    zero_acc()
    a("s_waitcnt vmcnt(0)")
    patch(KB)
    a("s_branch A_SETMAX")

def gen_B(a):
    a.label("L_B")
    a(f"s_setprio {PB}")
    a.stamp(1)
    if "noB" in EXP: a("s_endpgm")
    if "dB" in EXP:
        a("s_waitcnt vmcnt(0)"); a(f"s_sleep {DLY}")
    TS = 272; TW = 64 * TS
    UB = 4 * TW
    US = 4608
    SEL, ACT, INY, WY, KACC, WX = 16, 48, 112, 144, 176, 192
    Z8, Z1, Z256, TM = 236, 238, 242, 2
    FR, CT, UL = 48, 112, 192
    a(f"s_mul_i32 s29, s24, {TW}")
    a("s_mov_b32 m0, s29")
    a("v_mov_b32 v15, 0x3f80")
    a(f"ds_write_addtid_b32 v15 offset:{32*TS}")
    a("v_and_b32 v12, 1, v1")
    a("v_lshlrev_b32 v12, 4, v12")
    a("v_lshlrev_b32 v12, v12, v15" if False else "v_mov_b32 v15, 0x3f80")
    a("v_lshlrev_b32 v12, v12, v15")
    a("s_mov_b64 s[4:5], 3")
    for i in range(32):
        a(f"v_cndmask_b32 v{SEL+i}, 0, v12, s[4:5]")
        if i < 31: a("s_lshl_b64 s[4:5], s[4:5], 2")
    a("v_lshrrev_b32 v13, 5, v1")
    for r in range(4):
        a(f"v_mov_b32 v{KACC+r}, 0")
    a(f"v_mul_u32_u24 v12, {US-512}, v13")
    a("v_add_u32 v12, v12, v2")
    a(f"v_add_u32 v12, {UB}, v12")
    a(f"ds_write_b128 v12, {vr(KACC,4)}")
    a("s_and_b32 s42, s2, 31")
    a("s_lshl_b32 s42, s42, 7")
    a(f"s_add_u32 s42, s42, {F_XT}")
    a("v_lshrrev_b32 v12, 1, v1")
    a("v_and_b32 v13, 1, v1")
    a(f"v_mul_u32_u24 v3, {XTS}, v12")
    a("v_lshl_add_u32 v3, v13, 4, v3")
    a(f"s_mul_i32 s43, s24, {64*XTS}")
    a("s_mul_i32 s33, s31, 896")
    a("s_add_u32 s43, s43, s33")
    a("s_lshl_b32 s33, s39, 4")
    a("s_add_u32 s43, s43, s33")
    a(f"s_add_u32 s43, s43, {XT}")
    a(f"s_add_u32 s44, s43, {32*XTS}")
    a(f"v_mul_u32_u24 v241, {US}, v13")
    a("v_lshl_add_u32 v241, v12, 4, v241")
    a("s_lshl_b32 s33, s24, 10")
    a(f"s_add_u32 s33, s33, {UB + 512}")
    a("v_add_u32 v241, s33, v241")
    a("s_waitcnt lgkmcnt(0)")
    a("s_and_b32 s33, s26, 1")
    a("s_lshl_b32 s33, s33, 4")
    a("s_lshr_b32 s28, s28, s33")
    a("s_lshl_b32 s28, s28, 16")
    a("s_lshr_b32 s38, s38, s33")
    a("s_lshl_b32 s38, s38, 16")
    hi = float(np.float32(LOG2E)); lo = float(np.float32(LOG2E - hi))
    a(f"v_mov_b32 v13, {hex(f2u(hi))}")
    a("v_mul_f32 v14, s28, v13")
    a("v_fma_f32 v13, s28, v13, -v14")
    a(f"v_mov_b32 v15, {hex(f2u(lo))}")
    a("v_fmac_f32 v13, s28, v15")
    a("v_exp_f32 v14, v14")
    a(f"v_mul_f32 v13, {hex(f2u(math.log(2)))}, v13")
    a("v_fmac_f32 v14, v14, v13")
    a("v_cvt_pk_bf16_f32 v14, v14, v14")
    a("v_and_b32 v14, 0xffff0000, v14")
    a(f"s_mov_b32 s48, {hex(f2u(LOG2E))}")
    a(f"s_mov_b32 s49, {hex(f2u(1/(2*math.pi)))}")
    a("s_mov_b32 s47, 0x07060302")
    a("s_brev_b32 s46, 1")
    a("s_cmp_ge_u32 s2, 2")
    a("s_cbranch_scc1 B_NORDY")
    a("v_mov_b32 v4, 1")
    a("s_setprio 3")
    a("s_waitcnt vmcnt(6)")
    a("s_mov_b64 exec, 1")
    a(f"global_atomic_add v{VZ}, v4, {sr(P_DBG,2)} sc1")
    a("s_mov_b64 exec, -1")
    a(f"s_setprio {PB}")
    a.label("B_NORDY")
    a("s_waitcnt vmcnt(4)")
    a.stamp(2)
    r1 = [0, 0, 2, 4, 4, 4, 6, 8, 8]
    P_ = {}
    for r in range(9): P_[(0, r)] = r; P_[(1, r)] = 256 + r1[r]
    for i, e in enumerate((0, 4, 8)): P_[(0, 9 + i)] = 512 + e; P_[(1, 9 + i)] = 768 + e
    for i, e in enumerate((0, 8)):
        P_[(0, 12 + i)] = 1024 + e; P_[(1, 12 + i)] = 1280 + e; P_[(0, 14 + i)] = 1536 + e; P_[(1, 14 + i)] = 1792 + e
    EX = [None] * 32
    for (h, r), p in P_.items(): EX[8 * (r >> 2) + 4 * h + (r & 3)] = ("X", p)
    EY = [("Y", j) for j in range(32)]
    yops = [(("Y", 2), ("Y", 1), ("Y", 1)), (("Y", 3), ("Y", 2), ("Y", 1)), (("Y", 4), ("Y", 2), ("Y", 2))]
    yops += [(("Y", 4 + k), ("Y", 4), ("Y", k)) for k in (4, 1, 2, 3)]
    yops += [(("Y", 8 + k), ("Y", 8), ("Y", k)) for k in (8, 1, 2, 3, 4, 5, 6, 7)]
    yops += [(("Y", 16 + k), ("Y", 16), ("Y", k)) for k in range(1, 16)]
    xops = [(("X", 8), ("X", 0), ("Y", 1))]
    xops += [(("X", e + 1), ("X", e), ("Z", 1)) for e in range(7)]
    for base, es in ((256, (0, 8, 4, 2, 6)), (512, (0, 8, 4)), (768, (0, 8, 4)), (1024, (0, 8)), (1280, (0, 8)), (1536, (0, 8)), (1792, (0, 8))):
        xops += [(("X", base + e), ("X", base - 256 + e), ("Z", 256)) for e in es]
    def pass0():
        YB, XB = 48, 112
        plist = sorted(set(P_.values()))
        xreg = {p: XB + 2 * i for i, p in enumerate(plist)}
        row_of = {p: min(8 * (r >> 2) + 4 * h + (r & 3) for (h, r), pp in P_.items() if pp == p) for p in plist}
        yreg = {j: YB + 2 * j for j in range(1, 32)}
        def reg(n): return {"Y": yreg, "X": xreg, "Z": {1: Z1, 256: Z256}}[n[0]][n[1]]
        allops = xops + yops
        memo = {}
        def height(n):
            if n not in memo:
                memo[n] = max([0] + [1 + height(d) for (d, x, y) in allops if n in (x, y)])
            return memo[n]
        WB = int(os.environ.get("WB", "16")); XAT = int(os.environ.get("XAT", "6"))
        ring = list(range(WX, WX + 32))
        wq = []; ct = [0]
        def emit_write(n):
            t = ring[ct[0] % len(ring)]; ct[0] += 1
            r = reg(n)
            if n[0] == "Y":
                a(f"v_cvt_pk_bf16_f32 v{t}, v{r}, v{r+1}")
                wq.append(f"ds_write_addtid_b32 v{t} offset:{(32+n[1])*TS}")
            else:
                a(f"v_cvt_pk_bf16_f32 v{t}, v{r}, -v{r+1}")
                wq.append(f"ds_write_addtid_b32 v{t} offset:{row_of[n[1]]*TS}")
            if len(wq) >= WB:
                for ins in wq: a(ins)
                wq.clear()
        for i in range(2): a(f"v_lshlrev_b32 v{8+i}, 16, v{RAW+i}")
        a("v_pk_mul_f32 v[8:9], v[8:9], v[14:15] op_sel_hi:[1,0]")
        a("v_pk_mul_f32 v[8:9], v[8:9], s[48:49]")
        a(f"v_mul_f32 v{TM+2}, 0x41000000, v8")
        a(f"v_mul_f32 v{TM+3}, 0x41000000, v9")
        a(f"v_mul_f32 v{TM+4}, 0x43800000, v8")
        a(f"v_mul_f32 v{TM+5}, 0x43800000, v9")
        anch = [(TM + 2, yreg[1]), (8, Z1), (TM + 4, Z256)]
        for s_, d_ in anch:
            a(f"v_fract_f32 v{s_+1}, v{s_+1}")
            a(f"v_exp_f32 v{s_}, v{s_}")
        for s_, d_ in anch:
            a(f"v_cos_f32 v{d_}, v{s_+1}")
            a(f"v_sin_f32 v{d_+1}, v{s_+1}")
        a("s_nop 0")
        for s_, d_ in anch:
            a(f"v_pk_mul_f32 {vr(d_,2)}, {vr(d_,2)}, {vr(s_,2)} op_sel_hi:[1,0]")
        done = {("Y", 1), ("Z", 1), ("Z", 256)}
        towrite = [("Y", 1)]
        pending = sorted(allops, key=lambda o: -height(o[0]))
        nb = 0
        while pending:
            batch = [o for o in pending if o[1] in done and o[2] in done][:4]
            for o in batch: pending.remove(o)
            for (d, x, y) in batch: cmul(a, reg(d), reg(x), reg(y), 0)
            w = towrite; towrite = []
            for n in w[:2]: emit_write(n)
            for (d, x, y) in batch: cmul(a, reg(d), reg(x), reg(y), 1)
            for n in w[2:]: emit_write(n)
            for (d, x, y) in batch:
                done.add(d); towrite.append(d)
            nb += 1
            if nb == XAT:
                a("s_waitcnt vmcnt(0)")
                for i in range(2, 6): a(f"v_lshlrev_b32 v{8+i}, 16, v{RAW+i}")
                cmul(a, xreg[0], 12, 10, 0)
                cmul(a, xreg[0], 12, 10, 1)
                a(f"v_pk_mul_f32 {vr(xreg[0],2)}, {vr(xreg[0],2)}, v[14:15] op_sel_hi:[1,0]")
                done.add(("X", 0)); towrite.append(("X", 0))
        for n in towrite: emit_write(n)
        for ins in wq: a(ins)
    pass0()
    a.stamp(8)
    a("s_mov_b32 s45, 0")
    def u_loads():
        for i in range(2):
            a(f"buffer_load_dwordx4 {vr(UL+4*i,4)}, v3, s[20:23], s{43+i} offen{SC}")
    def try_u(tag_, prio):
        a("s_cmp_eq_u32 s45, 32")
        a(f"s_cbranch_scc1 TU2{tag_}")
        a("s_setprio 3")
        a("s_waitcnt vmcnt(0)")
        a("v_readfirstlane_b32 s45, v250")
        a("s_nop 1")
        a("s_cmp_lg_u32 s45, 32")
        a(f"s_cbranch_scc1 TU0{tag_}")
        u_loads()
        a(f"s_branch TU1{tag_}")
        a.label(f"TU0{tag_}")
        cnt_load(a, 250, "s42")
        a.label(f"TU1{tag_}")
        a(f"s_setprio {prio}")
        a.label(f"TU2{tag_}")
    loc = {("Y", 1): Z8, ("Z", 1): Z1, ("Z", 256): Z256}
    for j in range(2, 17): loc[("Y", j)] = WY + 2 * (j - 1)
    free = list(range(WX, WX + 44, 2))
    mq = []
    since = [99]
    MG = int(os.environ.get("MG", "6"))
    def v(ins):
        a(ins); since[0] += 1
        if mq and since[0] >= MG and mq[0][1] <= cnt[0] - 2:
            a(mq.pop(0)[0]); since[0] = 0; cnt[0] += 1; lastm[0] = cnt[0]
        cnt[0] += 1
    cnt = [0]; lastm = [0]
    class V:
        def __call__(self, x): v(x)
    va = V()
    NEG = {("Y", 1): 240, ("Y", 2): 251, ("Y", 4): 252, ("Y", 8): 253, ("Y", 16): WY, ("Z", 1): WY + 1, ("Z", 256): 15}
    NEG[("Z", 1)] = 251
    def smul(d, x, y, phase):
        if y not in NEG: x, y = y, x
        D, X_, Y_ = loc[d], loc[x], loc[y]
        if phase == 0:
            v(f"v_mul_f32 v{D}, v{X_}, v{Y_}")
            v(f"v_mul_f32 v{D+1}, v{X_}, v{Y_+1}")
        else:
            v(f"v_fmac_f32 v{D}, v{X_+1}, v{NEG[y]}")
            v(f"v_fmac_f32 v{D+1}, v{X_+1}, v{Y_}")
            if d in NEG: v(f"v_xor_b32 v{NEG[d]}, s46, v{D+1}")
    def table(ops, E, IN, neg, done, pre=None):
        uses = {}
        for (d, x, y) in ops:
            for n in (x, y): uses[n] = uses.get(n, 0) + 1
        for n in E: uses[n] = uses.get(n, 0) + 1
        def release(n):
            uses[n] -= 1
            if uses[n] == 0 and n in loc and WX <= loc[n] < WX + 44: free.append(loc[n])
        memo = {}
        def height(n):
            if n not in memo:
                memo[n] = max([0] + [1 + height(d) for (d, x, y) in ops if n in (x, y)])
            return memo[n]
        first = {n: i for i, n in reversed(list(enumerate(E)))}
        pending = sorted(ops, key=lambda o: (-height(o[0]), first.get(o[0], 99)))
        pairs = list(range(16)); gdone = [0] * 4; gseq = [0]
        def cvts(avail):
            for q in list(pairs):
                n0, n1 = E[2 * q], E[2 * q + 1]
                if n0 in avail and n1 in avail:
                    pairs.remove(q)
                    for part in range(2):
                        sg = "-" if (neg and part) else ""
                        s0 = (("1.0", "0")[part]) if n0 == ("Y", 0) else f"{sg}v{loc[n0]+part}"
                        v(f"v_cvt_pk_bf16_f32 v{IN+16*part+q}, {s0}, {sg}v{loc[n1]+part}")
                    release(n0); release(n1)
                    g = q >> 2; gdone[g] += 1
                    if gdone[g] == 4:
                        for hs in range(2):
                            for part in range(2):
                                acc = vr(ACT + 32 * hs + 16 * part, 16)
                                mq.append((f"{MF32} {acc}, {vr(IN+16*part+4*g,4)}, {vr(SEL+16*hs+4*g,4)}, {'0' if gseq[0] == 0 else acc}", cnt[0]))
                        gseq[0] += 1
        nb = 0
        while pending:
            batch = [o for o in pending if o[1] in done and o[2] in done][:4]
            for o in batch:
                pending.remove(o)
                if o[0] not in loc: loc[o[0]] = free.pop(0)
            for (d, x, y) in batch: smul(d, y, x, 0) if x in NEG else smul(d, x, y, 0)
            for (d, x, y) in batch: smul(d, y, x, 1) if x in NEG else smul(d, x, y, 1)
            for (d, x, y) in batch: release(x); release(y)
            if pre and pre(nb): pre = None
            if pre is None: cvts(set(done))
            for (d, x, y) in batch: done.add(d)
            nb += 1
        assert pre is None
        cvts(done)
        assert not pairs
    def packs(OUT, hs):
        for r in range(16):
            v(f"v_perm_b32 v{OUT+16*hs+r}, v{ACT+32*hs+16+r}, v{ACT+32*hs+r}, s47")
    def drain():
        while mq:
            if mq[0][1] > cnt[0] - 2: a("s_nop 1"); cnt[0] += 2
            a(mq.pop(0)[0]); cnt[0] += 1; lastm[0] = cnt[0]
    for i in range(2): v(f"v_and_b32 v{8+i}, 0xffff0000, v{RAW+i}")
    v("v_mul_f32 v8, v8, v14"); v("v_mul_f32 v9, v9, v14")
    v("v_mul_f32 v8, s48, v8"); v("v_mul_f32 v9, s49, v9")
    v(f"v_mul_f32 v{TM+2}, 0x41000000, v8")
    v(f"v_mul_f32 v{TM+3}, 0x41000000, v9")
    v(f"v_mul_f32 v{TM+4}, 0x43800000, v8")
    v(f"v_mul_f32 v{TM+5}, 0x43800000, v9")
    anchors = [(TM + 2, Z8), (8, Z1), (TM + 4, Z256)]
    for s_, d_ in anchors:
        v(f"v_fract_f32 v{s_+1}, v{s_+1}")
        v(f"v_exp_f32 v{s_}, v{s_}")
    for s_, d_ in anchors:
        v(f"v_cos_f32 v{d_}, v{s_+1}")
        v(f"v_sin_f32 v{d_+1}, v{s_+1}")
    a("s_nop 0")
    for s_, d_ in anchors:
        v(f"v_mul_f32 v{d_}, v{d_}, v{s_}")
        v(f"v_mul_f32 v{d_+1}, v{d_+1}, v{s_}")
    v(f"v_xor_b32 v{NEG[('Y',1)]}, s46, v{Z8+1}")
    v(f"v_xor_b32 v{NEG[('Z',256)]}, s46, v{Z256+1}")
    table(yops, EY, INY, False, {("Y", 0), ("Y", 1)})
    a("s_setprio 3")
    nonce_issue(a, 250, True)
    a(f"s_setprio {PB}")
    for i in range(2, 6): v(f"v_and_b32 v{8+i}, 0xffff0000, v{RAW+i}")
    loc[("X", 0)] = free.pop(0)
    X0 = loc[("X", 0)]
    v(f"v_xor_b32 v{NEG[('Z',1)]}, s46, v{Z1+1}")
    v("v_mul_f32 v10, v10, v14"); v("v_mul_f32 v11, v11, v14")
    v(f"v_mul_f32 v{X0}, v12, v10"); v(f"v_mul_f32 v{X0+1}, v12, v11")
    v(f"v_fma_f32 v{X0}, -v13, v11, v{X0}"); v(f"v_fmac_f32 v{X0+1}, v13, v10")
    def ypack(nb):
        if mq or cnt[0] - lastm[0] < 13: return False
        packs(INY, 0); packs(INY, 1)
        return True
    table(xops, EX, WY, True, {("X", 0), ("Y", 1), ("Z", 1), ("Z", 256)}, ypack)
    drain()
    a("v_and_b32 v4, 31, v1")
    a(f"v_mul_u32_u24 v4, {TS}, v4")
    a("v_lshrrev_b32 v5, 5, v1")
    a("v_lshl_add_u32 v4, v5, 4, v4")
    a("v_add_u32 v4, s29, v4")
    a("v_mov_b32 v5, v4")
    for (m, src) in ((5, 4), (12, 7), (13, 7), (20, 15)):
        a(f"s_add_u32 s33, s29, {src*TS}")
        a(f"v_writelane_b32 v5, s33, {m}")
        a("s_add_u32 s33, s33, 16")
        a(f"v_writelane_b32 v5, s33, {m+32}")
    F0 = [SEL + 8 * i for i in range(4)] + [WX + 8 + 8 * i for i in range(4)]
    for ks in range(8):
        a(f"ds_read_b128 {vr(F0[ks],4)}, v5 offset:{32*ks}")
        a(f"ds_read_b128 {vr(F0[ks]+4,4)}, v4 offset:{32*TS+32*ks}")
    a("s_setprio 3")
    a("s_waitcnt vmcnt(0)")
    nonce_take(a, 250, True)
    cnt_load(a, 250, "s42")
    a(f"s_setprio {PB}")
    MG = 4
    packs(WY, 0)
    for ks in range(4):
        mq.append((f"{MF32} {vr(KACC,16)}, {vr(WY+4*ks,4)}, {vr(INY+4*ks,4)}, {vr(KACC,16) if ks else '0'}", cnt[0]))
    packs(WY, 1)
    drain()
    a("s_waitcnt lgkmcnt(0)")
    for ks in range(8):
        a(f"{MF32} {vr(KACC,16)}, {vr(F0[ks],4)}, {vr(F0[ks]+4,4)}, {vr(KACC,16)}")
    for ks in range(4, 8):
        a(f"{MF32} {vr(KACC,16)}, {vr(WY+4*ks,4)}, {vr(INY+4*ks,4)}, {vr(KACC,16)}")
    a(f"s_setprio {PC}")
    a.stamp(3)
    a("v_add_u32 v242, s29, v2")
    a("s_xor_b32 s33, s24, 1")
    a(f"s_mul_i32 s33, s33, {TW}")
    a("v_add_u32 v243, s33, v2")
    a("s_and_b32 s33, s24, 2")
    a(f"s_mul_i32 s48, s33, {TW}")
    a("s_add_u32 s48, s48, 4096")
    a("s_mul_i32 s33, s27, 4160")
    a("s_add_u32 s49, s33, s48")
    a("v_sub_u32 v6, 63, v1")
    a("v_lshlrev_b32 v6, 4, v6")
    a("v_add_u32 v6, s49, v6")
    a("v_and_b32 v7, 1, v1")
    a("v_cmp_eq_u32 vcc, 1, v7")
    for q in range(4):
        a(f"ds_write_b128 v242, {vr(KACC+4*q,4)} offset:{1024*q}")
    a("v_lshrrev_b32 v4, 4, v1")
    a("v_and_b32 v5, 15, v1")
    a("v_add_u32 v7, 1, v5")
    a("v_lshrrev_b32 v7, 1, v7")
    a("v_lshlrev_b32 v8, 2, v4")
    a("v_sub_u32 v8, v8, v7")
    a("v_and_b32 v7, 1, v5")
    a("v_mul_u32_u24 v7, 1040, v7")
    a("v_sub_u32 v8, v8, v7")
    a(f"v_add_u32 v8, {1016 + 1040 - 48 - 128}, v8")
    a("v_lshlrev_b32 v8, 2, v8")
    a("s_lshl_b32 s33, s27, 8")
    a("s_sub_u32 s33, s48, s33")
    a("v_add_u32 v8, s33, v8")
    for i in range(1, 4):
        a(f"v_subrev_u32 v{8+i}, {1024*i}, v8")
    if os.environ.get("TUB"): try_u("b", PC)
    a("s_waitcnt lgkmcnt(0)")
    a.stamp(10)
    a("s_barrier")
    a.stamp(11)

    for q in range(4):
        a(f"ds_read_b128 {vr(FR+4*q,4)}, v243 offset:{1024*q}")
    try_u("c", PC)
    a("s_lshr_b32 s33, s24, 1")
    a(f"s_mul_i32 s36, s33, {US}")
    a(f"s_add_u32 s36, s36, {UB + 512}")
    a("v_lshlrev_b32 v12, 5, v5")
    a("v_lshl_add_u32 v13, v4, 3, v12")
    a("v_lshl_add_u32 v12, v4, 4, v12")
    a("s_lshl_b32 s33, s27, 8")
    a("s_sub_u32 s33, s36, s33")
    a(f"s_sub_u32 s33, s33, {32 + 192}")
    a("v_add_u32 v12, s33, v12")
    a("s_lshl_b32 s33, s27, 11")
    a("s_add_u32 s33, s33, s36")
    a("v_add_u32 v13, s33, v13")
    a("s_lshl_b32 s40, s26, 1")
    a("s_add_u32 s40, s40, s27")
    a("s_lshl_b32 s41, s40, 11")
    a(f"s_add_u32 s41, s41, {BT}")
    a("s_lshr_b32 s40, s26, 5")
    a("s_lshl_b32 s40, s40, 7")
    a(f"s_add_u32 s40, s40, {F_B}")
    a("s_waitcnt lgkmcnt(0)")
    for r in range(16):
        a(f"v_add_f32 v{KACC+r}, v{KACC+r}, v{FR+r}")
    K_ = KACC; W_ = FR + 16
    a(f"v_cndmask_b32 v{CT}, v{K_+12}, v{K_+13}, vcc")
    a(f"v_cndmask_b32 v{CT+1}, v{K_+14}, v{K_+15}, vcc")
    for i in range(4):
        a(f"v_mov_b32 v{W_+16+i}, 0")
    def pk(d, lo_, hi_): a(f"v_cvt_pk_bf16_f32 v{d}, v{lo_}, v{hi_}")
    a("s_cmp_eq_u32 s27, 1")
    a("s_cbranch_scc1 B_ODD")
    A_, B_, C_ = K_ + 9, K_ + 10, K_ + 11
    for i in range(4): pk(W_ + i, K_ + 7 - 2 * i, K_ + 6 - 2 * i)
    for i, (x, y) in enumerate(((C_, C_), (B_, B_), (B_, A_), (A_, A_))): pk(W_ + 4 + i, x, y)
    for sl in range(2):
        A2, C2, M2 = K_ + 12 + 2 * sl, K_ + 13 + 2 * sl, CT + sl
        for i, (x, y) in enumerate(((C2, C2), (C2, M2), (A2, A2), (A2, A2))): pk(W_ + 8 + 4 * sl + i, x, y)
    a("s_branch B_IMG")
    a.label("B_ODD")
    for i in range(4): pk(W_ + i, K_ + 8 - 2 * i, K_ + 7 - 2 * i)
    for i, (x, y) in enumerate(((C_, C_), (C_, B_), (B_, B_), (A_, A_))): pk(W_ + 4 + i, x, y)
    for sl in range(2):
        A2, C2, M2 = K_ + 12 + 2 * sl, K_ + 13 + 2 * sl, CT + sl
        for i, (x, y) in enumerate(((C2, C2), (C2, C2), (M2, A2), (A2, A2))): pk(W_ + 8 + 4 * sl + i, x, y)
    a("s_mov_b64 exec, 1")
    pk(W_ + 16, K_, VZ)
    a("s_mov_b64 exec, -1")
    a.label("B_IMG")
    for sl in range(4):
        a(f"ds_write_b128 v6, {vr(W_+4*sl,4)} offset:{(3-sl)*1024}")
    a("v_add_u32 v7, s49, v2")
    a("s_mov_b64 exec, 3")
    a(f"ds_write_b128 v7, {vr(W_+16,4)} offset:4096")
    a("s_mov_b64 exec, -1")
    a("s_cmp_eq_u32 s45, 32")
    a("s_cbranch_scc1 B_UOK")
    a("s_waitcnt vmcnt(0)")
    cnt_wait(a, 250, "s42", 32, 4)
    u_loads()
    a.label("B_UOK")
    a.stamp(7)
    a("s_waitcnt vmcnt(0)")
    for i in range(2):
        a(f"ds_write_b128 v241, {vr(UL+4*i,4)} offset:{512*i}")
    a("s_waitcnt lgkmcnt(0)")
    a("s_barrier")
    a.stamp(4)
    a(f"s_setprio {os.environ.get('PV', '0')}")
    FB, CAC = 16, 144
    a.nds = 0
    tg = {}
    def loadstep(stp):
        b = FB + 64 * (stp & 1)
        for i in range(8):
            o = 128 * (1 - (i & 1)) + 16 * (3 - stp)
            a.ds(f"ds_read2_b32 {vr(b+4*i,2)}, v{8+(i>>1)} offset0:{o} offset1:{o+1}")
            a.ds(f"ds_read2_b32 {vr(b+4*i+2,2)}, v{8+(i>>1)} offset0:{o+2} offset1:{o+3}")
            tg[(stp, i)] = a.ds(f"ds_read_b128 {vr(b+32+4*i,4)}, v12 offset:{512*i+64*(3-stp)}")
    loadstep(0)
    for stp in range(4):
        b = FB + 64 * (stp & 1)
        order = sorted([(i, tp) for i in range(8) for tp in range(8 - i)], key=lambda x: (max(x), x[0] + x[1]))
        nxt = []
        if stp < 3:
            b2 = FB + 64 * ((stp + 1) & 1)
            for i in range(8):
                o = 128 * (1 - (i & 1)) + 16 * (3 - stp - 1)
                nxt.append((None, f"ds_read2_b32 {vr(b2+4*i,2)}, v{8+(i>>1)} offset0:{o} offset1:{o+1}"))
                nxt.append((None, f"ds_read2_b32 {vr(b2+4*i+2,2)}, v{8+(i>>1)} offset0:{o+2} offset1:{o+3}"))
                nxt.append(((stp + 1, i), f"ds_read_b128 {vr(b2+32+4*i,4)}, v12 offset:{512*i+64*(3-stp-1)}"))
        waited = -1
        seen = set()
        for k, (i, tp) in enumerate(order):
            if max(i, tp) > waited:
                waited = max(i, tp)
                a.wait_ds(tg[(stp, waited)])
            t = i + tp
            c = vr(CAC + 4 * t, 4)
            if stp == 0 and t not in seen:
                c = "0"; seen.add(t)
            a(f"{MF16} {vr(CAC+4*t,4)}, {vr(b+4*i,4)}, {vr(b+32+4*tp,4)}, {c}")
            if k >= 8 and nxt:
                key, ins = nxt.pop(0)
                r = a.ds(ins)
                if key: tg[key] = r
        assert not nxt
    a.stamp(5)
    a(f"s_setprio {os.environ.get('PT', '2')}")
    RR = 16
    for tl in range(4):
        a(f"ds_read_b64 {vr(80+2*tl,2)}, v13 offset:{512*tl}")
    a("s_cmp_eq_u32 s27, 1")
    a.nop(3)
    a("s_cbranch_scc1 B_R1")
    for par in range(2):
        if par: a.label("B_R1")
        for q in range(4):
            a(f"ds_write_b128 v242, {vr(CAC+16*(1-par)+4*q,4)} offset:{1024*q}")
        a("s_waitcnt lgkmcnt(0)")
        a("s_barrier")
        for q in range(4):
            a(f"ds_read_b128 {vr(RR+4*q,4)}, v243 offset:{1024*q}")
        a("s_waitcnt lgkmcnt(0)")
        for r in range(16):
            a(f"v_add_f32 v{RR+r}, v{RR+r}, v{CAC+16*par+r}")
        if not par: a("s_branch B_R2")
    a.label("B_R2")
    for t in range(4):
        for i in range(2):
            a(f"v_lshlrev_b32 v{88+2*i}, 16, v{80+2*t+i}")
            a(f"v_and_b32 v{88+2*i+1}, 0xffff0000, v{80+2*t+i}")
        for r in range(4):
            a(f"v_fmac_f32 v{RR+4*t+r}, s38, v{88+r}")
        for i in range(2):
            a(f"v_cvt_pk_bf16_f32 v{80+2*t+i}, v{RR+4*t+2*i}, v{RR+4*t+2*i+1}")
    a("s_nop 1")
    for p in range(2):
        for i in range(2):
            a(f"v_permlane16_swap_b32 v{80+4*p+i}, v{80+4*p+2+i}")
    for p in range(2):
        a(f"buffer_store_dwordx4 {vr(80+4*p,4)}, v2, s[20:23], s41 offen offset:{1024*p}{SC}")
    a("s_waitcnt vmcnt(0)")
    cnt_add(a, 4, "s40")
    fin(a, 6)
    a("s_endpgm")

def gen_C(a):
    a.label("L_C")
    if "dC" in EXP: a(f"s_sleep {DLY}")
    a("s_setprio 3")
    R, U, GU, GW = 16, 80, 144, 160
    a("s_sub_u32 s25, s2, 224")
    a("s_lshl_b32 s26, s31, 2")
    a("s_sub_u32 s33, s32, 28")
    a("s_add_u32 s26, s26, s33")
    a("s_lshl_b32 s26, s26, 2")
    a("s_add_u32 s26, s26, s24")
    a("s_mul_i32 s36, s26, 14336")
    for i in range(1, 4):
        a(f"s_add_u32 s{36+i}, s36, {3584*i}")
    a("s_add_u32 s45, s25, s24")
    a("s_waitcnt lgkmcnt(0)")
    a.srd(20, P_WS, WS_SIZE)
    a.srd(12, P_X, X_BYTES)
    for r in range(16):
        a(f"buffer_load_dwordx4 {vr(R+4*r,4)}, v2, s[12:15], s{36+(r>>2)} offen offset:{896*(r&3)}")
    a.srd(16, P_GW, 896)
    a(f"buffer_load_dwordx4 {vr(GW,4)}, v2, s[16:19], 0 offen")
    a("v_mov_b32 v4, 1")
    a(f"s_mul_i32 s36, s26, {2*XTS}")
    a(f"s_add_u32 s36, s36, {XT}")
    a("s_add_u32 s37, s36, 3584")
    a(f"s_add_u32 s38, s36, {XTS}")
    a("s_add_u32 s39, s38, 3584")
    a("s_mov_b32 s46, 0x05040100")
    a("s_mov_b32 s47, 0x07060302")
    a("s_mov_b32 exec_hi, 0xffffff")
    for hb in range(2):
        a(f"s_waitcnt vmcnt({9 if hb == 0 else 8})")
        for cc in range(8):
            i, e = cc >> 1, cc & 1
            u = U + 32 * hb + 4 * cc
            for q in range(4):
                a(f"v_perm_b32 v{u+q}, v{R+32*hb+4*(2*q+1)+i}, v{R+32*hb+4*(2*q)+i}, s{46+e}")
            a(f"buffer_store_dwordx4 {vr(u,4)}, v2, s[20:23], s{36+2*hb+(cc>>2)} offen offset:{896*(cc&3)}{SC}")
    a.stamp(1)
    a("s_mov_b64 exec, -1")
    nonce_issue(a, 250)
    a("v_lshlrev_b32 v5, 7, v1")
    a(f"s_mov_b32 s41, {F_XT}")
    for r in range(16):
        a(f"v_mov_b32 v{GU+r}, 0")
    a("s_mov_b32 exec_hi, 0xffffff")
    for i in range(4):
        for r in range(16):
            a(f"v_dot2c_f32_bf16 v{GU+r}, v{R+4*r+i}, v{GW+i}")
    a("s_mov_b64 exec, -1")
    a("s_waitcnt vmcnt(0)")
    nonce_take(a, 250)
    a("s_barrier")
    a("s_cmp_lg_u32 s24, 0")
    a("s_cbranch_scc1 C_NOADD")
    a("s_mov_b32 exec_hi, 0")
    a("buffer_atomic_add v4, v5, s[20:23], s41 offen sc1")
    a("s_mov_b64 exec, -1")
    a.label("C_NOADD")
    a.stamp(2)
    a("s_setprio 1")
    a("s_min_u32 s45, s25, 15")
    a("s_mul_i32 s33, s45, 25088")
    a("s_mul_i32 s34, s24, 7168")
    a("s_add_u32 s33, s33, s34")
    a("v_add_u32 v3, 4096, v2")
    a.srd(12, P_WO, 448 * 896)
    a("s_mov_b32 m0, s34")
    a("s_nop 0")
    for i in range(4):
        a(f"buffer_load_dwordx4 v2, s[12:15], s33 offen offset:{1024*i} lds")
    a("s_add_u32 m0, s34, 4096")
    a("s_nop 0")
    for i in range(3):
        a(f"buffer_load_dwordx4 v3, s[12:15], s33 offen offset:{1024*i} lds")
    for sh in ("row_shr:1", "row_shr:2", "row_shr:4", "row_shr:8"):
        for r in range(16):
            a(f"v_add_f32_dpp v{GU+r}, v{GU+r}, v{GU+r} {sh} row_mask:0xf bank_mask:0xf bound_ctrl:0")
    for r in range(16):
        a(f"v_add_f32_dpp v{GU+r}, v{GU+r}, v{GU+r} row_bcast:15 row_mask:0xa bank_mask:0xf")
    for r in range(16):
        a(f"v_add_f32_dpp v{GU+r}, v{GU+r}, v{GU+r} row_bcast:31 row_mask:0xc bank_mask:0xf")
    for op in (f"v_mul_f32 vX, {hex(f2u(-LOG2E))}, vX", "v_exp_f32 vX, vX", "v_add_f32 vX, 1.0, vX", "v_rcp_f32 vX, vX"):
        for r in range(16):
            a(op.replace("vX", f"v{GU+r}"))
    a("s_lshl_b32 s35, s26, 6")
    a(f"s_add_u32 s35, s35, {GO}")
    a("s_lshr_b32 s37, s26, 1")
    a("s_lshl_b32 s37, s37, 7")
    a(f"s_add_u32 s37, s37, {F_G}")
    a("s_mov_b32 exec_lo, 0")
    a("s_mov_b32 exec_hi, 0x80000000")
    for i in range(4):
        a(f"buffer_store_dwordx4 {vr(GU+4*i,4)}, v{VZ}, s[20:23], s35 offen offset:{16*i}{SC}")
    a("s_mov_b64 exec, -1")
    a("v_lshrrev_b32 v15, 5, v1")
    a("v_bfe_u32 v13, v1, 2, 2")
    a("v_lshl_add_u32 v13, v15, 2, v13")
    a("v_mul_u32_u24 v13, 896, v13")
    a("v_bfe_u32 v14, v1, 4, 1")
    a("v_lshl_add_u32 v13, v14, 5, v13")
    a("v_and_b32 v14, 3, v1")
    a("v_lshl_add_u32 v12, v14, 3, v13")
    a("s_lshr_b32 s49, s24, 1")
    a("s_mul_i32 s36, s49, 14336")
    a("s_mul_i32 s38, s27, 448")
    a("s_add_u32 s36, s36, s38")
    a("v_add_u32 v12, s36, v12")
    a(f"s_mul_i32 s38, s27, {7*32768}")
    a("s_lshl_b32 s39, s45, 1")
    a("s_add_u32 s39, s39, s49")
    a("s_lshl_b32 s39, s39, 10")
    a("s_add_u32 s38, s38, s39")
    a(f"s_add_u32 s38, s38, {WOF}")
    a("s_lshr_b32 s40, s25, 2")
    a("s_lshl_b32 s40, s40, 7")
    a(f"s_add_u32 s40, s40, {F_WO}")
    a("s_waitcnt vmcnt(0)")
    cnt_add(a, 4, "s37")
    a("s_cmp_ge_u32 s25, 16")
    a("s_cbranch_scc1 C_END")
    a("s_barrier")
    for i in range(7):
        for hr in range(2):
            a(f"ds_read_b64_tr_b16 {vr(16+4*i+2*hr,2)}, v12 offset:{64*i+8*hr*896}")
    a("s_waitcnt lgkmcnt(0)")
    a("s_cmp_eq_u32 s49, 0")
    a("s_cbranch_scc1 C_WO2")
    a("s_mov_b32 exec_lo, 0")
    for i in range(7):
        a(f"v_mov_b32 v{16+4*i+2}, 0")
        a(f"v_mov_b32 v{16+4*i+3}, 0")
    a("s_mov_b32 exec_lo, -1")
    a.label("C_WO2")
    for i in range(7):
        a(f"buffer_store_dwordx4 {vr(16+4*i,4)}, v2, s[20:23], s38 offen{SC}")
        if i < 6: a("s_add_u32 s38, s38, 32768")
    a("s_waitcnt vmcnt(0)")
    cnt_add(a, 4, "s40")
    a.label("C_END")
    fin(a, 3)

def gen():
    a = Asm()
    gen_entry(a)
    gen_A(a)
    gen_B(a)
    gen_C(a)
    a.label("L_END")
    a("s_endpgm")
    return a.text()

HEADER = open("cdna_kernels/" + NAME + ".s.ref").read().split("; Override launch geometry")[0]

if __name__ == "__main__":
    name = NAME + "_kernel"
    out = HEADER + "; @launch grid=(512,1,1) block=(256,1,1) lds=81920\n"
    out += '.amdgcn_target "amdgcn-amd-amdhsa--gfx950"\n' + kernel_header(name) + gen() + kernel_desc(name, 256)
    dst = sys.argv[1] if len(sys.argv) > 1 else "cdna_kernels/" + NAME + ".s"
    open(dst, "w").write(out)
```

```python
import sys, math, os
import numpy as np
from dsl import *

NAME = "gated_mix__mha_block__ssm_conv_s4__prompt"
KTS = 28672; VTS = 32256; XTS = 7296
KF = 0x000000
VF = 0x200000
XT = 0x400000
GO = 0x5D0000
WOF = 0x600000
OF = 0x880000
BT = 0x690000
FL = 0x670000
F_KV = FL
F_O = FL + 256 * 128
F_XT = FL + 384 * 128
F_G = FL + 416 * 128
F_B = FL + 480 * 128
F_WO = FL + 496 * 128
WS_SIZE = 0xA90000
X_BYTES = 2048 * 896
W_BYTES = 448 * 2688
LOG2E = 1.4426950408889634
QSCALE = LOG2E * 28 ** -0.5
MF32 = "v_mfma_f32_32x32x16_bf16"
MF16 = "v_mfma_f32_16x16x32_bf16"
SC = " sc1"
NON = 60
POLLMAX = 40000
EXP = os.environ.get("EXP", "")
DLY = int(os.environ.get("DLY", "32"))
DEPTH = int(os.environ.get("DEPTH", "3"))
PA = int(os.environ.get("PA", "2")); PB = int(os.environ.get("PB", "3")); PC = int(os.environ.get("PC", "3"))
P_X, P_W, P_WO, P_PAR, P_LDT, P_DSK, P_GW, P_OUT, P_DBG, P_WS = 64, 66, 68, 72, 84, 86, 88, 90, 92, 94
VZ = 255

uid = [0]
def fin(a, idx):
    if not os.environ.get("STAMP"): return
    a("s_waitcnt vmcnt(0)")
    a.stamp(idx)
    dw = os.environ.get("DBGWG")
    if dw:
        uid[0] += 1; u = uid[0]
        a("s_lshl_b32 s96, s2, 2")
        a("s_add_u32 s96, s96, s24")
        a(f"s_cmp_lg_u32 s96, {int(dw)*4}")
        a(f"s_cbranch_scc1 DG{u}")
        a("s_mov_b64 exec, -1")
        a("v_readlane_b32 s97, v254, 1")
        a("v_mbcnt_lo_u32_b32 v0, -1, 0")
        a("v_lshlrev_b32 v1, 1, v0")
        a("v_subrev_u32 v254, s97, v254")
        a("v_and_b32 v1, -4, v1")
        a("s_mov_b32 exec_lo, 0xaaaaaaa8")
        a("s_mov_b32 exec_hi, 0")
        a(f"global_store_dword v1, v254, {sr(P_DBG,2)}")
        a.label(f"DG{u}")
        return
    a.stamp_flush(P_WS)

def cmul(a, d, x, y, phase):
    if phase == 0:
        a(f"v_pk_mul_f32 {vr(d,2)}, {vr(x,2)}, {vr(y,2)} op_sel_hi:[0,1]")
    else:
        a(f"v_pk_fma_f32 {vr(d,2)}, {vr(x,2)}, {vr(y,2)}, {vr(d,2)} op_sel:[1,1,0] op_sel_hi:[1,0,1] neg_lo:[1,0,0]")

def nonce_issue(a, v, allw=False):
    uid[0] += 1; u = uid[0]
    if not allw:
        a("s_cmp_lg_u32 s24, 0")
        a(f"s_cbranch_scc1 NI{u}")
    a(f"global_load_dword v{v}, v{VZ}, {sr(P_DBG,2)}{os.environ.get('NSC', ' sc1')}")
    a.label(f"NI{u}")

def nonce_take(a, v, allw=False):
    uid[0] += 1; u = uid[0]
    if not allw:
        a("s_cmp_lg_u32 s24, 0")
        a(f"s_cbranch_scc1 ND{u}")
    a(f"s_mov_b32 s62, {POLLMAX}")
    a.label(f"NT{u}")
    a(f"v_readfirstlane_b32 s{NON}, v{v}")
    a("s_nop 1")
    a(f"s_cmp_ge_u32 s{NON}, 8")
    a(f"s_cbranch_scc1 ND{u}")
    a("s_sub_u32 s62, s62, 1")
    a(f"s_cbranch_scc1 ND{u}")
    a("s_sleep 8")
    a(f"global_load_dword v{v}, v{VZ}, {sr(P_DBG,2)} sc1")
    a("s_waitcnt vmcnt(0)")
    a(f"s_branch NT{u}")
    a.label(f"ND{u}")

def cnt_load(a, vd, soff):
    a(f"v_mov_b32 v{vd}, 0")
    a("s_mov_b64 exec, 1")
    t = a.vm(f"buffer_atomic_add v{vd}, v{VZ}, s[20:23], {soff} offen sc0 sc1")
    a("s_mov_b64 exec, -1")
    return t

def cnt_wait(a, vd, soff, target, sleep=1):
    uid[0] += 1; u = uid[0]
    a(f"s_mov_b32 s62, {POLLMAX}")
    a.label(f"FC{u}")
    a(f"v_readfirstlane_b32 s4, v{vd}")
    a("s_nop 1")
    a(f"s_cmp_eq_u32 s4, {target}")
    a(f"s_cbranch_scc1 FD{u}")
    a("s_sub_u32 s62, s62, 1")
    a(f"s_cbranch_scc1 FD{u}")
    a(f"s_sleep {sleep}")
    n0 = a.nvm
    cnt_load(a, vd, soff)
    a.nvm = n0
    a("s_waitcnt vmcnt(0)")
    a(f"s_branch FC{u}")
    a.label(f"FD{u}")

def cnt_add(a, vt, soff, va=None, mask="1"):
    a(f"v_mov_b32 v{vt}, 1")
    a(f"s_mov_b64 exec, {mask}")
    a.vm(f"buffer_atomic_add v{vt}, v{VZ if va is None else va}, s[20:23], {soff} offen sc1")
    a("s_mov_b64 exec, -1")

def late_load(a, vd, va):
    a("s_mov_b64 exec, 7")
    a(f"buffer_load_dword v{vd}, v{va}, s[20:23], 0 offen sc1")
    a("s_mov_b64 exec, -1")

def late_check(a, vd, va, vtgt):
    uid[0] += 1; u = uid[0]
    a(f"s_mov_b32 s62, {POLLMAX}")
    a.label(f"FC{u}")
    a(f"v_cmp_ne_u32 vcc, v{vd}, v{vtgt}")
    a("s_nop 1")
    a("s_and_b32 s4, vcc_lo, 7")
    a(f"s_cbranch_scc0 FD{u}")
    a("s_sub_u32 s62, s62, 1")
    a(f"s_cbranch_scc1 FD{u}")
    a("s_sleep 16")
    late_load(a, vd, va)
    a("s_waitcnt vmcnt(0)")
    a(f"s_branch FC{u}")
    a.label(f"FD{u}")

RAW = 244
XRW = 232

def gen_entry(a):
    a("s_cmp_ge_u32 s2, 512")
    a("s_cbranch_scc1 L_END")
    a.stamp(0)
    if "dblspan" in EXP: a("s_memrealtime s[100:101]")
    a("s_load_dwordx16 s[64:79], s[0:1], 0")
    a("s_load_dwordx16 s[80:95], s[0:1], 64")
    if "nopf" not in EXP:
        a("s_cmp_lt_u32 s2, 504")
        a("s_cbranch_scc1 E_NOPF")
        a("s_getpc_b64 s[4:5]")
        a.label("E_PC")
        a("v_lshlrev_b32 v4, 7, v0")
        a("v_min_u32 v4, L_END-E_PC, v4")
        a("v_mov_b32 v5, s5")
        a("v_add_co_u32 v4, vcc, s4, v4")
        a("s_nop 1")
        a("v_addc_co_u32 v5, vcc, 0, v5, vcc")
        a("global_load_dword v6, v[4:5], off")
        a.label("E_NOPF")
    a("v_lshrrev_b32 v13, 6, v0")
    a("v_and_b32 v1, 63, v0")
    a("v_lshlrev_b32 v2, 4, v1")
    a(f"v_mov_b32 v{VZ}, 0")
    a("v_readfirstlane_b32 s24, v13")
    a("s_and_b32 s31, s2, 7")
    a("s_bfe_u32 s32, s2, 0x50003")
    a("s_cmp_ge_u32 s2, 256")
    a("s_cbranch_scc1 L_A")
    a("s_and_b32 s27, s24, 1")
    a("s_cmp_ge_u32 s32, 28")
    a("s_cbranch_scc1 L_C")
    a("s_setprio 3")
    a("s_lshl_b32 s39, s32, 1")
    a("s_lshr_b32 s34, s24, 1")
    a("s_add_u32 s26, s39, s34")
    a("s_lshl_b32 s26, s26, 3")
    a("s_add_u32 s26, s26, s31")
    a("s_lshl_b32 s33, s26, 9")
    a("s_lshl_b32 s34, s27, 8")
    a("s_add_u32 s33, s33, s34")
    a("v_lshlrev_b32 v3, 2, v1")
    a("v_add_u32 v13, s33, v3")
    a("s_lshl_b32 s34, s26, 1")
    a("s_and_b32 s34, s34, -4")
    a("v_lshlrev_b32 v4, 7, v0")
    a("s_lshl_b32 s33, s2, 15")
    a(f"s_add_u32 s33, s33, {FL}")
    a("s_waitcnt lgkmcnt(0)")
    a.srd(20, P_WS, WS_SIZE)
    a("s_cmp_ge_u32 s2, 2")
    a("s_cbranch_scc1 E_NOINIT")
    a(f"buffer_store_dword v{VZ}, v4, s[20:23], s33 offen sc1")
    a.label("E_NOINIT")
    for i in range(6):
        a(f"global_load_dword v{RAW+i}, v13, {sr(P_PAR+2*i,2)}")
    a(f"s_load_dword s28, {sr(P_LDT,2)}, s34")
    a(f"s_load_dword s38, {sr(P_DSK,2)}, s34")
    a("s_branch L_B")

def gen_A(a):
    a.label("L_A")
    if "noA" in EXP: a("s_endpgm")
    a(f"s_setprio {PA}")
    if "dA" in EXP: a(f"s_sleep {DLY}")
    a("s_lshr_b32 s33, s31, 1")
    a("s_lshl_b32 s33, s33, 2")
    a("s_and_b32 s34, s32, 3")
    a("s_add_u32 s25, s33, s34")
    a("s_and_b32 s27, s31, 1")
    a("s_lshr_b32 s54, s32, 2")
    a("s_lshl_b32 s33, s27, 3")
    a("s_add_u32 s26, s33, s54")
    XR, ACC, QACC, WF, NV, PK, T = 16, 128, 128, 176, 248, 224, 240
    XL = 32768
    a("s_lshl_b32 s33, s25, 2")
    a("s_add_u32 s35, s33, s24")
    a("s_mul_i32 s33, s35, 28672")
    a("v_lshrrev_b32 v13, 3, v1")
    a("v_mul_u32_u24 v12, 896, v13")
    a("v_and_b32 v14, 7, v1")
    a("v_lshrrev_b32 v15, 4, v1")
    a("v_xor_b32 v15, v15, v14")
    a("v_lshl_add_u32 v3, v15, 4, v12")
    a("v_add_u32 v3, s33, v3")
    a("v_xor_b32 v246, 64, v3")
    a(f"v_add_u32 v244, {6144}, v246")
    a(f"v_add_u32 v245, {6144*2}, v3")
    a(f"v_add_u32 v246, {6144*3}, v246")
    a("s_mul_i32 s40, s24, 12288")
    a(f"s_add_u32 s40, s40, {XL}")
    a("s_lshl_b32 s33, s34, 1")
    a("s_add_u32 s28, s33, s54")
    a("s_sub_u32 s33, s28, 7")
    a("s_cmp_ge_u32 s28, 7")
    a("s_cselect_b32 s28, s33, s28")
    if "norot" in EXP: a("s_mov_b32 s28, 0")
    a("s_lshl_b32 s29, s28, 7")
    a("s_mul_i32 s37, s28, 172032")
    a("s_mov_b32 s39, s37")
    a("v_bfe_u32 v15, v1, 4, 1")
    a("v_lshlrev_b32 v15, 2, v15")
    a("v_xor_b32 v15, v15, v14")
    a("v_mul_u32_u24 v4, 2688, v13")
    a("v_lshl_add_u32 v4, v15, 4, v4")
    a("s_min_u32 s55, s54, 6")
    a("s_mul_i32 s33, s24, 43008")
    a("s_mul_i32 s34, s27, 896")
    a("s_add_u32 s33, s33, s34")
    a("s_lshl_b32 s34, s55, 7")
    a("s_add_u32 s33, s33, s34")
    a("s_add_u32 s33, s33, 896")
    a("v_add_u32 v4, s33, v4")
    a(f"v_add_u32 v5, {21504-1024}, v4")
    a("s_lshl_b32 s36, s24, 11")
    a("s_waitcnt lgkmcnt(0)")
    a.stamp(1)
    if "dK1" in EXP: a(f"s_sleep {DLY}")
    if "dK2" in EXP: a("s_sleep 64")
    if "dK4" in EXP: a("s_sleep 127")
    a.srd(12, P_X, X_BYTES)
    a.srd(16, P_W, W_BYTES)
    def adv(r):
        a(f"s_add_u32 s{r}, s{r}, 1")
        a(f"s_cmp_eq_u32 s{r}, 7")
        a(f"s_cselect_b32 s{r}, 0, s{r}")
    QD = int(os.environ.get("QD", "14"))
    L = []
    for s_ in range(7):
        L += [("x", s_, 0), ("x", s_, 1), ("x", s_, 2), ("x", s_, 3), ("w", s_, 0), ("w", s_, 1)]
    L += [("n", 0, 0)] + [("q", i, 0) for i in range(7)]
    tag = {}; tagxf = {}
    L0 = list(L)
    lastbar = [-1]; xfree = [-1]; light = [False]; m0 = [None]
    def setm0(base, off):
        if m0[0] != (base, off):
            a(f"s_add_u32 m0, {base}, {off}")
            m0[0] = (base, off)
            return True
        return False
    def issue():
        seen = set()
        for e in L:
            k, s_, n = e
            if k in seen: continue
            seen.add(k)
            if k in "nq" and ("x" in seen or "w" in seen): return
            need = {"x": s_ - 3, "q": 4 + (s_ >> 2)}.get(k, -1)
            if need > xfree[0]: continue
            if k == "w" and s_ >= 4 and lastbar[0] < s_ - 2: continue
            break
        else:
            return
        L.remove(e)
        if k == "x":
            ch = setm0("s40", (s_ % 3) * 4096)
            if n == 0 and s_:
                a("s_add_u32 s29, s29, 128")
                a("s_cmp_eq_u32 s29, 896")
                a("s_cselect_b32 s29, 0, s29")
            elif ch: a("s_nop 0")
            tag[e] = a.vm(f"buffer_load_dwordx4 v{3 if n == 0 else 243+n}, s[12:15], s29 offen offset:{1024*n} lds")
        elif k == "w":
            ch = setm0("s36", (s_ % 4) * 8192)
            if n == 0 and s_:
                a("s_add_u32 s37, s37, 172032")
                a(f"s_cmp_eq_u32 s37, {7*172032}")
                a("s_cselect_b32 s37, 0, s37")
            elif ch: a("s_nop 0")
            tag[e] = a.vm(f"buffer_load_dwordx4 v{4+n}, s[16:19], s37 offen offset:{1024*n} lds")
        elif k == "n":
            nonce_issue(a, NV)
        else:
            setm0("s40", 4096 + 1024 * s_)
            if s_:
                a("s_add_u32 s39, s39, 172032")
                a(f"s_cmp_eq_u32 s39, {7*172032}")
                a("s_cselect_b32 s39, 0, s39")
            else: a("s_nop 0")
            a.vm(f"buffer_load_dwordx4 v14, s[16:19], s39 offen lds")
    nvm_light = a.nvm
    a.srd(20, P_WS, WS_SIZE)
    a("s_cmp_eq_u32 s54, 7")
    a("s_cbranch_scc1 A_GOL")
    for _ in range(QD): issue()
    a.label("A_GO")
    if "tlb" in EXP:
        a("s_cmp_lg_u32 s24, 0")
        a("s_cbranch_scc1 A_NOTLB")
        for i, ad in enumerate((0x1fff80, 0x3fff80, 0x5fff80, 0x680000, 0x860000, 0xA80000)):
            a(f"s_mov_b32 s33, {hex(ad)}")
            a(f"v_writelane_b32 v6, s33, {i}")
        a("s_mov_b64 exec, 63")
        a("buffer_load_dword v7, v6, s[20:23], 0 offen")
        a("s_mov_b64 exec, 1")
        a(f"global_load_dword v7, v{VZ}, {sr(P_OUT,2)}")
        a("s_mov_b64 exec, -1")
        a.label("A_NOTLB")
    if "stopA" in EXP: a.stamp(7)
    if "Aload" in EXP:
        a("s_waitcnt vmcnt(0)"); a("s_endpgm")
    a("v_and_b32 v13, 31, v1")
    a("v_bfe_u32 v14, v1, 1, 3")
    a("v_lshrrev_b32 v15, 5, v1")
    a("v_xor_b32 v14, v14, v15")
    a("v_lshlrev_b32 v13, 7, v13")
    a("v_lshl_add_u32 v8, v14, 4, v13")
    a("v_add_u32 v8, s40, v8")
    for ks in range(1, 4):
        a(f"v_xor_b32 v{8+ks}, {32*ks}, v8")
    a(f"v_bfe_u32 v{T}, v1, 2, 2")
    a(f"v_lshl_add_u32 v{T+1}, v15, 3, v{T}")
    a(f"v_bfe_u32 v{T+2}, v1, 4, 1")
    a(f"v_and_b32 v{T+3}, 3, v1")
    a(f"v_lshl_add_u32 v{PK}, v{T+2}, 2, v{T+3}")
    a(f"v_and_b32 v{PK+1}, 1, v1")
    a(f"v_bfe_u32 v{PK+2}, v1, 1, 1")
    a(f"v_lshl_add_u32 v{PK+1}, v{PK+1}, 1, v{PK+2}")
    a(f"v_lshl_add_u32 v{PK+1}, v{T+2}, 2, v{PK+1}")
    a(f"v_bfe_u32 v{T+3}, v1, 3, 1")
    a(f"v_lshlrev_b32 v{T+3}, 6, v{T+3}")
    a(f"v_lshl_add_u32 v{T+3}, v{T+1}, 7, v{T+3}")
    a("s_cmp_eq_u32 s27, 1")
    a("s_cselect_b64 vcc, -1, 0")
    a(f"v_cndmask_b32 v12, v{PK+1}, v{PK}, vcc")
    a(f"v_lshl_add_u32 v12, v12, 3, v{T+3}")
    a("v_xor_b32 v13, 64, v12")
    a(f"v_add_u32 v{PK+2}, 2, v{PK+1}")
    a(f"v_sub_u32 v{PK+3}, 7, v{PK+1}")
    a(f"v_cmp_gt_u32 vcc, 6, v{PK+1}")
    a("s_bitcmp1_b32 s26, 0")
    a("s_cselect_b64 s[4:5], -1, 0")
    a(f"v_cndmask_b32 v{PK+2}, v{PK+3}, v{PK+2}, vcc")
    a(f"v_cndmask_b32 v{PK+2}, v{PK+1}, v{PK+2}, s[4:5]")
    a(f"v_lshlrev_b32 v15, 6, v{T+1}")
    a(f"v_lshl_add_u32 v15, v{PK+2}, 3, v15")
    a(f"v_add_u32 v15, {XL + 4096}, v15")
    a("v_lshrrev_b32 v14, 2, v1")
    a("v_mul_u32_u24 v14, 2688, v14")
    a(f"v_and_b32 v{T}, 3, v1")
    a(f"v_lshl_add_u32 v14, v{T}, 4, v14")
    a("s_mul_i32 s33, s26, 56")
    a("s_and_b32 s33, s33, -16")
    a(f"s_mul_i32 s34, s24, {16*2688}")
    a("s_add_u32 s33, s33, s34")
    a("v_add_u32 v14, s33, v14")
    a("s_mul_i32 s33, s54, 2341")
    a("s_lshr_b32 s33, s33, 10")
    a(f"v_add_u32 v{PK}, s33, v1")
    a(f"v_mul_u32_u24 v{PK+1}, 28, v{PK}")
    a(f"v_lshrrev_b32 v{PK+1}, 6, v{PK+1}")
    a(f"v_cmp_ge_u32 s[56:57], s54, v{PK+1}")
    a(f"v_lshlrev_b32 v243, 11, v{PK}")
    a("s_lshl_b32 s42, s25, 7")
    a(f"s_add_u32 s42, s42, {F_KV}")
    a("s_and_b64 s[56:57], s[56:57], 15")
    a("s_cmp_eq_u32 s54, 7")
    a("s_cbranch_scc1 A_LIGHT")
    a("s_cmp_eq_u32 s27, 1")
    a("s_cbranch_scc1 A_V")

    def pass1(vtype):
        tagtr = {}
        NB = 6; TD = 3
        NIS = int(os.environ.get("NIS", "2"))
        def trload(u, t):
            s, ks = u >> 2, u & 3
            for hr in range(2):
                off = (s % 4) * 8192 + (16 * ks + 4 * hr) * 128
                tagtr[u] = a.ds(f"ds_read_b64_tr_b16 {vr(WF+(u%NB)*8+4*t+2*hr,2)}, v{12+t} offset:{off}")
        def mfma(u, t):
            wf = vr(WF + (u % NB) * 8 + 4 * t, 4); xf = vr(XR + 4 * u, 4)
            c = "0" if u == 0 else vr(ACC + 16 * t, 16)
            a(f"{MF32} {vr(ACC+16*t,16)}, {xf}, {wf}, {c}" if vtype else f"{MF32} {vr(ACC+16*t,16)}, {wf}, {xf}, {c}")
        pend = None
        for u in range(-4, 28):
            if u >= 0:
                a.wait_ds(max(tagtr[u], tagxf[u >> 2]))
                mfma(u, 0)
            issue()
            if (u + TD) % 4 == 0 and (u + TD) // 4 < 7:
                sb = (u + TD) // 4
                a.wait_vm(tag[("w", sb, 1)])
                a("s_barrier")
                lastbar[0] = sb
                if sb in (0, 6): a.stamp(2 + sb // 6)
            if 0 <= u + TD < 28: trload(u + TD, 0)
            if u >= 0: mfma(u, 1)
            if pend is not None:
                a.wait_ds(tagxf[pend]); xfree[0] = pend; pend = None
            for _ in range(NIS - 1): issue()
            if 0 <= u + TD < 28: trload(u + TD, 1)
            if u % 4 == 0 and u // 4 + 1 < 7:
                s = u // 4 + 1
                a.wait_vm(tag[("x", s, 3)])
                for ks in range(4):
                    tagxf[s] = a.ds(f"ds_read_b128 {vr(XR+16*s+4*ks,4)}, v{8+ks} offset:{(s%3)*4096}")
                pend = s
        assert not L, L
    saved = (a.nvm, a.nds, list(L), m0[0])
    a("v_mov_b32 v247, v2")
    a(f"s_mul_i32 s38, s35, {KTS}")
    a("s_lshl_b32 s33, s55, 12")
    a("s_add_u32 s38, s38, s33")
    a("s_add_u32 s41, s38, 1024")
    a("s_add_u32 s43, s38, 2048")
    a("s_add_u32 s44, s38, 3072")
    pass1(False)
    a("s_branch A_ST")
    a.label("A_V")
    a.nvm, a.nds, L[:], m0[0] = saved; lastbar[0] = -1; xfree[0] = -1
    a("v_lshrrev_b32 v247, 5, v1")
    a(f"v_mul_u32_u24 v247, {8064-512}, v247")
    a("v_add_u32 v247, v247, v2")
    a(f"s_mul_i32 s38, s35, {VTS}")
    a("s_mul_i32 s33, s55, 1152")
    a("s_add_u32 s38, s38, s33")
    a(f"s_add_u32 s38, s38, {VF}")
    a("s_add_u32 s41, s38, 16128")
    a("s_add_u32 s43, s38, 512")
    a("s_add_u32 s44, s41, 512")
    a(f"v_lshrrev_b32 v{T}, 1, v1")
    a(f"v_mul_u32_u24 v{T}, 8064, v{T}")
    a(f"v_and_b32 v{T+1}, 1, v1")
    a(f"v_lshl_add_u32 v{T}, v{T+1}, 4, v{T}")
    a(f"v_subrev_u32 v{T+1}, 1, v{T+1}")
    for i in range(4):
        a(f"v_and_b32 v{PK+i}, 0x3f803f80, v{T+1}")
    a("s_mov_b64 exec, 0xff")
    a(f"buffer_store_dwordx4 {vr(PK,4)}, v{T}, s[20:23], s38 offen offset:1024{SC}")
    a("s_mov_b64 exec, -1")
    pass1(True)
    a.label("A_ST")
    a.nop(11)
    for t in range(2):
        for r in range(0, 16, 2):
            a(f"v_cvt_pk_bf16_f32 v{PK+8*t+r//2}, v{ACC+16*t+r}, v{ACC+16*t+r+1}")
        for f in range(2):
            a(f"buffer_store_dwordx4 {vr(PK+8*t+4*f,4)}, v247, s[20:23], s{(38,41,43,44)[2*t+f]} offen{SC}")
    a("s_waitcnt vmcnt(4)")
    a("s_branch A_P2")
    lslot = {0: ("s40", 0), 1: ("s40", 4096), 2: ("s40", 8192), 3: ("s36", 0), 4: ("s36", 4096), 5: ("s40", 0), 6: ("s36", 0)}
    ltag = {}
    def lx(s_):
        a(f"s_add_u32 m0, {lslot[s_][0]}, {lslot[s_][1]}")
        if s_:
            a("s_add_u32 s29, s29, 128")
            a("s_cmp_eq_u32 s29, 896")
            a("s_cselect_b32 s29, 0, s29")
        else: a("s_nop 0")
        for n in range(4):
            ltag[s_] = a.vm(f"buffer_load_dwordx4 v{3 if n == 0 else 243+n}, s[12:15], s29 offen offset:{1024*n} lds")
    def lq(i):
        a(f"s_add_u32 m0, s40, {4096 + 1024*i}")
        if i:
            a("s_add_u32 s39, s39, 172032")
            a(f"s_cmp_eq_u32 s39, {7*172032}")
            a("s_cselect_b32 s39, 0, s39")
        else: a("s_nop 0")
        a.vm(f"buffer_load_dwordx4 v14, s[16:19], s39 offen lds")
    a.label("A_GOL")
    a.nvm = nvm_light
    a("s_lshl_b32 s36, s24, 13")
    LE = int(os.environ.get("LE", "2"))
    for s_ in range(LE): lx(s_)
    a("s_branch A_GO")
    a.label("A_LIGHT")
    for s_ in range(LE, 5): lx(s_)
    a("s_sub_u32 s33, s36, s40")
    LA = (4, 5, 12, 13)
    for ks in range(4):
        a(f"v_add_u32 v{LA[ks]}, s33, v{8+ks}")
    for s_ in range(7):
        a.wait_vm(ltag[s_])
        for ks in range(4):
            a(f"ds_read_b128 {vr(XR+16*s_+4*ks,4)}, v{(8+ks) if lslot[s_][0] == 's40' else LA[ks]} offset:{lslot[s_][1]}")
        if s_ < 4: a("s_waitcnt lgkmcnt(0)")
        if s_ == 0: lx(5)
        if s_ == 1:
            for i in range(4): lq(i)
        if s_ == 2:
            for i in range(4, 7): lq(i)
        if s_ == 3:
            lx(6)
            nonce_issue(a, NV)
    a("s_waitcnt vmcnt(0) lgkmcnt(0)")
    a.label("A_P2")
    if "dP" in EXP: a(f"s_sleep {DLY}")
    a.stamp(4)
    nonce_take(a, NV)
    a("s_barrier")
    Q, O, S, P, KB, VB, NM, MX, T2 = 16, 48, 112, 144, 160, 192, 224, 228, 232
    VK0, VK1, VV0, VV1, C1, C2 = 10, 11, 12, 13, 252, 253
    class Rec:
        def __init__(self): self.ch = []
        def __call__(self, *ins): self.ch.append(list(ins))
    c = Rec()
    c("s_mul_i32 s33, s26, 28"); c("s_lshr_b32 s44, s33, 6"); c("s_add_u32 s34, s33, 27"); c("s_lshr_b32 s34, s34, 6")
    c("s_sub_u32 s34, s34, s44"); c("s_lshl_b32 s34, s34, 1"); c("s_add_u32 s58, s34, 2")
    c("v_lshrrev_b32 v4, 5, v1")
    c("v_lshlrev_b32 v249, 9, v1"); c(f"v_mov_b32 v{NV+2}, 0")
    c("s_lshl_b32 s34, s26, 11"); c("s_lshl_b32 s36, s24, 7"); c("s_add_u32 s34, s34, s36"); c(f"s_add_u32 s53, s34, {F_KV}")
    c(f"s_mov_b32 s46, {hex(f2u(QSCALE))}"); c("s_mov_b32 s47, s46")
    c("s_lshl_b32 s36, s24, 11"); c("s_add_u32 s36, s36, 49152"); c("v_add_u32 v6, s36, v2")
    for t in range(1, 4): c(f"v_xor_b32 v{6+t}, {2048*t}, v6")
    c("s_lshr_b32 s34, s26, 1"); c("s_mul_i32 s34, s34, 3584"); c("s_and_b32 s36, s26, 1"); c("s_lshl_b32 s37, s36, 11")
    c("s_add_u32 s34, s34, s37"); c(f"v_add_u32 v{VK0}, s34, v2"); c(f"v_add_u32 v{VK1}, 1024, v{VK0}")
    c(f"s_mul_i32 s37, s36, {2048-8}")
    c("s_mov_b32 exec_lo, 0", f"v_subrev_u32 v{VK1}, s37, v{VK1}", "s_mov_b32 exec_lo, -1")
    c("v_and_b32 v5, 31, v1"); c("v_add_u32 v3, s33, v5"); c("v_lshrrev_b32 v5, 6, v3"); c("v_lshlrev_b32 v5, 7, v5")
    c(f"v_lshl_add_u32 v{VV0}, v3, 4, v5")
    c("s_mul_i32 s34, s44, 1152"); c("s_add_u32 s34, s34, 1024"); c("s_add_u32 s37, s34, 16")
    c("s_mov_b32 exec_lo, 0xf0000000", "s_mov_b32 exec_hi, 0xf0000000", f"v_mov_b32 v{VV0}, s37", "s_mov_b64 exec, -1")
    c(f"v_writelane_b32 v{VV0}, s34, 28"); c(f"v_writelane_b32 v{VV0}, s34, 60")
    c("s_movk_i32 s34, 8064"); c(f"v_mad_u32_u24 v{VV0}, v4, s34, v{VV0}"); c(f"v_add_u32 v{VV1}, 16128, v{VV0}")
    c(f"s_mul_i32 s34, s24, {4*KTS}"); c(f"s_mul_i32 s37, s24, {4*VTS}"); c(f"s_add_u32 s37, s37, {VF}")
    for d, sz, off in ((12, 52 * KTS, "s34"), (16, 52 * VTS, "s37")):
        c(f"s_add_u32 s{d}, s{P_WS}, {off}", f"s_addc_u32 s{d+1}, s{P_WS+1}, 0")
        c(f"s_mov_b32 s{d+2}, {sz}"); c(f"s_mov_b32 s{d+3}, 0x00020000")
    c("s_mov_b32 s63, 15")
    c(f"v_mov_b32 v{C1}, 0x3f803f80"); c(f"v_mov_b32 v{C2}, 0x3f80")
    for r in range(8): c(f"v_mov_b32 v{VB+24+r}, 0")
    for t in range(4): c(f"v_mov_b32 v{NM+t}, 0")
    c("s_mov_b32 s41, 0")
    c("s_cmp_eq_u32 s54, 7", "s_cselect_b32 s59, 1, s24")
    PV_ = NV + 2
    def kv_poll():
        a("s_mov_b64 exec, 15")
        a(f"buffer_atomic_umax v{PV_}, v249, s[20:23], s53 offen sc0 sc1")
        a("s_mov_b64 exec, -1")
    def kv_pick(tagname):
        a(f"s_mov_b32 s62, {POLLMAX}")
        a.label(f"KP{tagname}")
        a(f"v_cmp_eq_u32 vcc, s58, v{PV_}")
        a("s_nop 1")
        a("s_and_b32 s5, vcc_lo, s63")
        a(f"s_cbranch_scc1 KD{tagname}")
        a("s_mov_b32 s5, s63")
        a("s_sub_u32 s62, s62, 1")
        a(f"s_cbranch_scc1 KD{tagname}")
        a("s_sleep 1")
        kv_poll()
        a("s_waitcnt vmcnt(0)")
        a(f"s_branch KP{tagname}")
        a.label(f"KD{tagname}")
        a("s_ff1_i32_b32 s59, s5")
        a("s_bitset0_b32 s63, s59")
        a("s_bitset0_b32 s5, s59")
    def first_loads():
        a(f"s_mul_i32 s44, s59, {16*KTS}")
        a(f"s_mul_i32 s45, s59, {16*VTS}")
        for kt in range(4):
            for f in range(2):
                r = a.vm(f"buffer_load_dwordx4 {vr(KB+8*kt+4*f,4)}, v{VK0+f}, s[12:15], s44 offen{SC}")
            if kt < 3: a(f"s_addk_i32 s44, {KTS}")
            if kt == 0: tag = r
            if kt < 3:
                for f in range(2):
                    a.vm(f"buffer_load_dwordx4 {vr(VB+8*kt+4*f,4)}, v{VV0+f}, s[16:19], s45 offen{SC}")
                a(f"s_addk_i32 s45, {VTS}")
        return tag
    def patch(kb):
        a(f"v_mov_b32_dpp v{kb+6}, v{C1} quad_perm:[0,1,2,3] row_mask:0xc bank_mask:0xf")
        a(f"v_mov_b32_dpp v{kb+7}, v{C2} quad_perm:[0,1,2,3] row_mask:0xc bank_mask:0xf")
    tq = {}
    def trq(u):
        for hr in range(2):
            tq[u] = a.ds(f"ds_read_b64_tr_b16 {vr(WF+(u%8)*4+2*hr,2)}, v15 offset:{(u&3)*12288+(u>>2)*1024+256*hr}")
    for u in range(6): trq(u)
    for u in range(28):
        if u + 6 < 28: trq(u + 6)
        a.wait_ds(tq[u])
        cc = "0" if u == 0 else vr(QACC, 16)
        a(f"{MF32} {vr(QACC,16)}, {vr(WF+(u%8)*4,4)}, {vr(XR+4*u,4)}, {cc}")
        n = 0
        while c.ch and n < (3 if u < 22 else 5):
            for ins in c.ch.pop(0): a(ins); n += 1
    assert not c.ch, len(c.ch)
    def zero_acc():
        for t in range(4):
            a(f"{MF32} {vr(O+16*t,16)}, {vr(VB+24,4)}, {vr(VB+24,4)}, 0")
    zero_acc()
    a("s_cmp_lg_u32 s59, 0")
    a("s_waitcnt vmcnt(0)")
    a("s_barrier")
    a("s_cbranch_scc1 A_NOPUB")
    cnt_add(a, NV, "s42", 243, "s[56:57]")
    a.label("A_NOPUB")
    a(f"s_setprio {os.environ.get('PQ', '2')}")
    a.stamp(5)
    if "stopA" in EXP:
        fin(a, 6); a("s_endpgm")
    kv_poll()
    a.nop(1)
    for r in range(16):
        a(f"v_mul_f32 v{QACC+r}, s46, v{QACC+r}")
    for r in range(0, 16, 2):
        a(f"v_cvt_pk_bf16_f32 v{Q+r//2}, v{QACC+r}, v{QACC+r+1}")
    a("s_mov_b32 exec_lo, 0")
    a(f"v_mov_b32 v{Q+6}, 0")
    a(f"v_mov_b32 v{Q+7}, 0")
    a("s_mov_b32 exec_lo, -1")
    for f in range(2):
        a(f"ds_write_b128 v6, {vr(Q+4*f,4)} offset:{1024*f}")
    a("s_waitcnt lgkmcnt(0)")
    a("s_barrier")
    for t in range(1, 4):
        for f in range(2):
            a(f"ds_read_b128 {vr(Q+8*t+4*f,4)}, v{6+t} offset:{1024*f}")
    a("s_mov_b32 s42, 0x07060302")
    a("s_min_u32 s33, s32, 27")
    a("s_and_b32 s34, s33, 3")
    a("s_lshl_b32 s47, s31, 2")
    a("s_add_u32 s47, s47, s34")
    a("s_lshr_b32 s48, s33, 2")
    a("s_lshr_b32 s49, s24, 1")
    a("s_lshl_b32 s33, s47, 1")
    a("s_add_u32 s49, s49, s33")
    a("s_and_b32 s50, s24, 1")
    a("s_lshl_b32 s33, s48, 1")
    a("s_add_u32 s50, s50, s33")
    a("v_bfe_u32 v5, v1, 2, 2")
    a("v_lshlrev_b32 v9, 7, v5")
    a("v_bfe_u32 v5, v1, 4, 1")
    a("v_lshl_add_u32 v9, v5, 6, v9")
    a("v_and_b32 v5, 3, v1")
    a("v_lshl_add_u32 v9, v5, 4, v9")
    a("v_lshl_add_u32 v9, v4, 9, v9")
    for t in range(1, 4):
        a(f"s_xor_b32 s33, s24, {t}")
        a("s_mul_i32 s33, s33, 12288")
        a(f"s_add_u32 s33, s33, {(t-1)*4096}")
        a(f"v_add_u32 v{3+t}, s33, v2")
    a("s_mul_i32 s33, s24, 12288")
    a("v_add_u32 v7, s33, v2")
    a("v_or_b32 v8, 512, v7")
    a("s_lshl_b32 s33, s35, 4")
    a("s_add_u32 s33, s33, s26")
    a("s_lshl_b32 s43, s33, 11")
    a(f"s_add_u32 s43, s43, {OF}")
    a("s_lshr_b32 s51, s35, 1")
    a("s_lshl_b32 s51, s51, 9")
    a("s_lshr_b32 s33, s26, 2")
    a("s_lshl_b32 s33, s33, 7")
    a("s_add_u32 s51, s51, s33")
    a(f"s_add_u32 s51, s51, {F_O}")
    a("s_lshl_b32 s33, s50, 7")
    a(f"s_add_u32 s33, s33, {F_B}")
    a("v_mov_b32 v14, s33")
    a("v_mov_b32 v15, 64")
    a("s_lshl_b32 s33, s49, 7")
    a(f"s_add_u32 s33, s33, {F_G}")
    a("v_writelane_b32 v14, s33, 1")
    a("v_writelane_b32 v15, 2, 1")
    a("s_lshl_b32 s33, s24, 7")
    a(f"s_add_u32 s33, s33, {F_WO}")
    a("v_writelane_b32 v14, s33, 2")
    a("v_writelane_b32 v15, 16, 2")
    a("s_waitcnt vmcnt(0)")
    kv_pick("A")
    a.stamp(6)
    tagk0 = first_loads()
    kv_poll()
    a.nvm += 1
    a("s_waitcnt lgkmcnt(0)")
    a.wait_vm(tagk0)
    a.stamp(7)
    if "dL" in EXP: a(f"s_sleep {DLY}")
    TT = [S + 16, T2, P, S]
    patch(KB)
    a("s_nop 0")
    def mx(t):
        a(f"v_max3_f32 v{MX+t}, v{TT[t]}, v{TT[t]+1}, v{TT[t]+2}")
        for i in range(1, 4):
            a(f"v_max3_f32 v{MX+t}, v{MX+t}, v{TT[t]+2*i+1}, v{TT[t]+2*i+2}")
    for t in range(4):
        a(f"{MF32} {vr(TT[t],16)}, {vr(KB,4)}, {vr(Q+8*t,4)}, 0")
        a(f"{MF32} {vr(TT[t],16)}, {vr(KB+4,4)}, {vr(Q+8*t+4,4)}, {vr(TT[t],16)}")
    a.nop(6)
    mx(0); mx(1); mx(2)
    mx(3)
    a.label("A_SETMAX")
    def setm(ts):
        for t in ts: a(f"v_sub_f32 v{NM+t}, v{NM+t}, v{MX+t}")
        for t in ts: a(f"v_and_b32 v{T2+t}, 0xffff0000, v{NM+t}")
        for t in ts: a(f"v_sub_f32 v{T2+t}, v{NM+t}, v{T2+t}")
        for t in ts: a(f"v_and_b32 v{T2+4+t}, 0xffff0000, v{T2+t}")
        for t in ts: a(f"v_sub_f32 v{T2+4+t}, v{T2+t}, v{T2+4+t}")
        for t in ts:
            a(f"v_perm_b32 v{Q+8*t+6}, v{T2+t}, v{NM+t}, s42")
            a(f"v_lshrrev_b32 v{Q+8*t+7}, 16, v{T2+4+t}")
    a("s_mov_b32 exec_lo, 0")
    setm((0, 1))
    a("s_mov_b32 exec_lo, -1")
    a(f"{MF32} {vr(S,16)}, {vr(KB,4)}, {vr(Q,4)}, 0")
    a(f"{MF32} {vr(S,16)}, {vr(KB+4,4)}, {vr(Q+4,4)}, {vr(S,16)}")
    a("s_mov_b32 exec_lo, 0")
    setm((2, 3))
    a("s_mov_b32 exec_lo, -1")
    for r in range(8):
        a(f"v_mov_b32 v{P+8+r}, 0")
    a("s_mov_b32 s46, 4")
    a(f"s_movk_i32 s60, {KTS}")
    a(f"s_movk_i32 s61, {VTS}")
    a(f"s_setprio {os.environ.get('PL', '1')}")
    a.label("A_LOOP")
    sh = {}
    for kt in range(4):
        b = 4 * kt
        for f in range(2):
            sh[(b, 2 + f)] = [f"buffer_load_dwordx4 {vr(VB+8*((kt-1)&3)+4*f,4)}, v{VV0+f}, s[16:19], s45 offen{SC}"]
            sh[(b + 2, 1 + f)] = [f"buffer_load_dwordx4 {vr(KB+8*kt+4*f,4)}, v{VK0+f}, s[12:15], s44 offen{SC}"]
        sh[(b + 1, 1)] = ["s_waitcnt vmcnt(12)"]
        sh[(b + 2, 3)] = ["s_waitcnt vmcnt(12)"]
        if kt: sh[(b + 1, 0)] = ["s_add_u32 s45, s45, s61"]
        if kt < 3: sh[(b + 3, 1)] = ["s_add_u32 s44, s44, s60"]
    sh[(1, 0)] = ["s_cmp_le_u32 s5, 128"]
    sh[(1, 2)] = ["s_cbranch_scc1 A_SLOW", "A_SLOWR:"]
    sh[(1, 3)] = ["s_ff1_i32_b32 s59, s5"]
    sh[(2, 0)] = [f"s_mul_i32 s44, s59, {16*KTS}"]
    sh[(3, 0)] = [f"s_mul_i32 s45, s59, {16*VTS}"]
    sh[(3, 2)] = ["s_bitset0_b32 s63, s59"]
    sh[(3, 3)] = ["s_bitset0_b32 s5, s59"]
    sh[(4, 0)] = ["s_cmp_le_u32 s46, 2"]
    sh[(4, 1)] = ["s_cbranch_scc1 A_LLOAD", "A_LLOADR:"]
    sh[(15, 2)] = ["s_sub_u32 s46, s46, 1"]
    sh[(15, 3)] = ["s_cmp_lg_u32 s46, 0"]
    for n in range(16):
        kt, t = n >> 2, n & 3
        n1 = (n + 1) & 15; kt1, t1 = n1 >> 2, n1 & 3
        n0 = (n - 1) & 15; kt0, t0 = n0 >> 2, n0 & 3
        sc = S + 16 * (n & 1); sn = S + 16 * (n1 & 1)
        pc = P + 8 * (n & 1); pp = P + 8 * (n0 & 1)
        mf = [f"{MF32} {vr(sn,16)}, {vr(KB+8*kt1,4)}, {vr(Q+8*t1,4)}, 0",
              f"{MF32} {vr(sn,16)}, {vr(KB+8*kt1+4,4)}, {vr(Q+8*t1+4,4)}, {vr(sn,16)}",
              f"{MF32} {vr(O+16*t0,16)}, {vr(VB+8*kt0,4)}, {vr(pp,4)}, {vr(O+16*t0,16)}",
              f"{MF32} {vr(O+16*t0,16)}, {vr(VB+8*kt0+4,4)}, {vr(pp+4,4)}, {vr(O+16*t0,16)}"]
        for m in range(4):
            a(mf[m])
            for ins in sh.get((n, m), []):
                if ins.endswith(":"): a.label(ins[:-1])
                else: a(ins)
            if m == 0 and t == 3:
                patch(KB + 8 * kt1)
            for e in range(4):
                a(f"v_exp_f32 v{sc+4*m+e}, v{sc+4*m+e}")
            for c_ in range(2):
                a(f"v_cvt_pk_bf16_f32 v{pc+2*m+c_}, v{sc+4*m+2*c_}, v{sc+4*m+2*c_+1}")
    a("s_cbranch_scc1 A_LOOP")
    a.stamp(8)
    if "dT" in EXP: a(f"s_sleep {DLY}")
    a("s_nop 0")
    a(f"{MF32} {vr(O+48,16)}, {vr(VB+24,4)}, {vr(P+8,4)}, {vr(O+48,16)}")
    a(f"{MF32} {vr(O+48,16)}, {vr(VB+28,4)}, {vr(P+12,4)}, {vr(O+48,16)}")
    a("v_mov_b32 v3, 0x5f800000")
    a("s_mov_b32 exec_lo, 0")
    for t in range(3):
        a(f"v_cmp_nlt_f32 {sr(4+2*t,2)}, v{O+16*t+12}, v3")
    for t in range(1, 3):
        a(f"v_mov_b32 v{O+16*t+13}, v{NM+t}")
    a("s_mov_b32 exec_lo, -1")
    for t in range(1, 3):
        for q in range(4):
            a(f"ds_write_b128 v{3+t}, {vr(O+16*t+4*q,4)} offset:{1024*q}")
    a("s_mov_b32 exec_lo, 0")
    a(f"v_cmp_nlt_f32 vcc, v{O+48+12}, v3")
    a(f"v_mov_b32 v{O+48+13}, v{NM+3}")
    a("s_mov_b32 exec_lo, -1")
    a("s_or_b32 s5, s5, s7")
    a("s_or_b32 s5, s5, s9")
    a("s_or_b32 s5, s5, vcc_hi")
    a("s_andn2_b32 s5, s5, s41")
    a("s_cbranch_scc1 A_FALLBACK")
    for q in range(4):
        a(f"ds_write_b128 v6, {vr(O+48+4*q,4)} offset:{1024*q}")
    a(f"v_mov_b32 v{T2}, v{O+12}")
    a(f"v_mov_b32 v{T2+1}, v{O+12}")
    a(f"v_mov_b32 v{T2+8}, v{NM}")
    a("v_add_u32 v10, 4096, v2")
    a("s_lshl_b32 s33, s24, 13")
    a(f"s_add_u32 s33, s33, {WOF}")
    a("s_lshl_b32 s36, s50, 15")
    a("s_add_u32 s36, s36, s33")
    a("s_xor_b32 s37, s50, 1")
    a("s_lshl_b32 s37, s37, 15")
    a("s_add_u32 s37, s37, s33")
    a("v_lshrrev_b32 v11, 5, v1")
    a("v_lshlrev_b32 v12, 6, v11")
    a("s_lshl_b32 s38, s49, 7")
    a(f"s_add_u32 s38, s38, {GO}")
    a("v_and_b32 v13, 31, v1")
    a("v_lshlrev_b32 v3, 12, v13")
    a("v_lshl_add_u32 v3, v11, 4, v3")
    a("s_lshl_b32 s39, s50, 17")
    a("s_lshr_b32 s34, s49, 4")
    a("s_lshl_b32 s34, s34, 10")
    a("s_add_u32 s39, s39, s34")
    a("s_and_b32 s34, s49, 15")
    a("s_lshl_b32 s34, s34, 5")
    a("s_add_u32 s39, s39, s34")
    a(f"s_add_u32 s39, s39, {BT}")
    WB, GG, BB = KB, Q, Q + 16
    def wbuf(i): return WB + 8 * ((i - 1) & 7)
    def wo_load(i):
        for x in range(2):
            a(f"buffer_load_dwordx4 {vr(wbuf(i)+4*x,4)}, v{2 if i<4 else 10}, s[20:23], s{36+x} offen offset:{1024*(i&3)}{SC}")
    a("s_cmp_lg_u32 s60, 1024")
    a("s_cbranch_scc1 A_NOW0")
    wo_load(0)
    a.label("A_NOW0")
    a("s_waitcnt lgkmcnt(0)")
    a("s_barrier")
    LM = T2 + 2
    for s in range(3):
        a(f"ds_read_b64 {vr(LM+2*s,2)}, v8 offset:{4096*s+3072}")
    RB = O + 16
    for s in range(3):
        for q in range(4):
            a(f"ds_read_b128 {vr(RB+16*s+4*q,4)}, v7 offset:{4096*s+1024*q}")
    a(f"v_permlane32_swap_b32 v{T2}, v{T2+1}")
    a(f"v_permlane32_swap_b32 v{T2+8}, v{NM}")
    a("s_waitcnt lgkmcnt(12)")
    a(f"v_min3_f32 v{MX}, v{NM}, v{LM+1}, v{LM+3}")
    a(f"v_min_f32 v{MX}, v{MX}, v{LM+5}")
    a(f"v_sub_f32 v{S}, v{MX}, v{NM}")
    for s in range(3):
        a(f"v_sub_f32 v{S+2+2*s}, v{MX}, v{LM+2*s+1}")
    for s in range(4):
        a(f"v_exp_f32 v{S+2*s}, v{S+2*s}")
    a(f"v_mul_f32 v{MX+1}, v{S}, v{T2+1}")
    for s in range(3):
        a(f"v_fmac_f32 v{MX+1}, v{S+2+2*s}, v{LM+2*s}")
    a(f"v_rcp_f32 v{MX+1}, v{MX+1}")
    a("s_nop 0")
    for s in range(4):
        a(f"v_mul_f32 v{S+2*s}, v{S+2*s}, v{MX+1}")
    for r in range(0, 16, 2):
        a(f"v_pk_mul_f32 {vr(O+r,2)}, {vr(O+r,2)}, {vr(S,2)} op_sel_hi:[1,0]")
    for s in range(3):
        a(f"s_waitcnt lgkmcnt({8-4*s})")
        for r in range(0, 16, 2):
            a(f"v_pk_fma_f32 {vr(O+r,2)}, {vr(RB+16*s+r,2)}, {vr(S+2+2*s,2)}, {vr(O+r,2)} op_sel_hi:[1,0,1]")
    for r in range(0, 16, 2):
        a(f"v_cvt_pk_bf16_f32 v{P+r//2}, v{O+r}, v{O+r+1}")
    a("s_mov_b32 exec_lo, 0")
    a(f"v_mov_b32 v{P+6}, 0")
    a(f"v_mov_b32 v{P+7}, 0")
    a("s_mov_b32 exec_lo, -1")
    a.nvm = 0
    for f in range(2):
        tagos = a.vm(f"buffer_store_dwordx4 {vr(P+4*f,4)}, v9, s[20:23], s43 offen offset:{1024*f}{SC}")
    a.stamp(9)
    a("s_barrier")
    a("s_lshl_b32 s52, s47, 9")
    a("s_lshl_b32 s33, s24, 7")
    a("s_add_u32 s52, s52, s33")
    a(f"s_add_u32 s52, s52, {F_O}")
    a.wait_vm(tagos)
    cnt_add(a, 252, "s51")
    a("s_cmp_ge_u32 s32, 28")
    a("s_cbranch_scc1 A_XIT" if os.environ.get("STAMP") else "s_cbranch_scc1 L_END")
    a("s_cmp_eq_u32 s60, 1024")
    a("s_cbranch_scc1 A_WOK")
    late_check(a, 248, 14, 15)
    for i in range(8): wo_load(i)
    a.label("A_WOK")
    cnt_load(a, 250, "s52")
    a("s_lshl_b32 s33, s24, 13")
    a(f"s_add_u32 s33, s33, {OF}")
    a("s_lshl_b32 s36, s49, 15")
    a("s_add_u32 s36, s36, s33")
    a("s_xor_b32 s37, s49, 1")
    a("s_lshl_b32 s37, s37, 15")
    a("s_add_u32 s37, s37, s33")
    a.srd(12, P_OUT, X_BYTES)
    a("v_mul_u32_u24 v9, 14336, v11")
    a("v_lshl_add_u32 v9, v13, 1, v9")
    a("s_mul_i32 s44, s49, 28672")
    a("s_lshl_b32 s33, s50, 6")
    a("s_add_u32 s44, s44, s33")
    for i in range(1, 4):
        a(f"s_add_u32 s{44+i}, s44, {3584*i}")
    a("s_waitcnt vmcnt(0)")
    cnt_wait(a, 250, "s52", 8)
    a.stamp(10)
    AF = O
    tags = {}
    for x in (1, 0):
        for i in range(8):
            tags[(x, i)] = a.vm(f"buffer_load_dwordx4 {vr(AF+8*i+4*x,4)}, v{2 if i<4 else 10}, s[20:23], s{36+x} offen offset:{1024*(i&3)}{SC}")
    BL, BU = 232, O + 48
    late_check(a, 248, 14, 15)
    gl = [f"buffer_load_dwordx4 {vr(BL+4*i,4)}, v3, s[20:23], s39 offen offset:{512*i}{SC}" for i in range(2)]
    gl += [f"buffer_load_dwordx4 {vr(GG+4*i,4)}, v12, s[20:23], s38 offen offset:{16*i}{SC}" for i in range(4)]
    GA = int(os.environ.get("GA", "5"))
    AC = [BB, S, S + 16, P]
    wr = [f"ds_write_b128 v{3+t}, {vr(AC[t]+4*q,4)} offset:{1024*q}" for t in (3, 2) for q in range(4)]
    for sa in (1, 0):
        for i in range(8):
            a.wait_vm(tags[(sa, i)])
            for sb in (1, 0):
                t = 2 * sa + sb
                c = "0" if i == 0 else vr(AC[t], 16)
                a(f"{MF32} {vr(AC[t],16)}, {vr(AF+8*i+4*sa,4)}, {vr(wbuf(i)+4*sb,4)}, {c}")
                if sa == 0 and i >= 4: a(wr.pop(0))
                elif gl and (8 * (1 - sa) + i) >= GA: a.vm(gl.pop(0))
    assert not wr and not gl
    a.nop(9)
    a.stamp(11)
    if "dE" in EXP: a(f"s_sleep {DLY}")
    for q in range(4):
        a(f"ds_write_b128 v4, {vr(AC[1]+4*q,4)} offset:{1024*q}")
    a("s_waitcnt vmcnt(0)")
    for i in range(8):
        a(f"v_lshlrev_b32 v{BU+2*i}, 16, v{BL+i}")
        a(f"v_and_b32 v{BU+2*i+1}, 0xffff0000, v{BL+i}")
    for r in range(0, 16, 2):
        a(f"v_pk_add_f32 {vr(AC[0]+r,2)}, {vr(AC[0]+r,2)}, {vr(BU+r,2)} neg_lo:[0,1] neg_hi:[0,1]")
    a("s_waitcnt lgkmcnt(0)")
    a("s_barrier")
    for s in range(3):
        for q in range(4):
            a(f"ds_read_b128 {vr(AF+16*s+4*q,4)}, v7 offset:{4096*s+1024*q}")
    for s in range(3):
        a(f"s_waitcnt lgkmcnt({8-4*s})")
        for r in range(0, 16, 2):
            a(f"v_pk_add_f32 {vr(AC[0]+r,2)}, {vr(AC[0]+r,2)}, {vr(AF+16*s+r,2)}")
    for r in range(0, 16, 2):
        a(f"v_pk_fma_f32 {vr(AC[0]+r,2)}, {vr(AC[0]+r,2)}, {vr(GG+r,2)}, {vr(BU+r,2)}")
    for r in range(0, 16, 2):
        a(f"v_cvt_pk_bf16_f32 v{AF+r//2}, v{AC[0]+r}, v{AC[0]+r+1}")
    for r in range(16):
        op = "buffer_store_short_d16_hi" if r & 1 else "buffer_store_short"
        a(f"{op} v{AF+r//2}, v9, s[12:15], s{44+(r>>2)} offen offset:{896*(r&3)}{os.environ.get('OST', '')}")
    a.label("A_XIT")
    fin(a, 12)
    if "dblspan" in EXP:
        sel = os.environ.get("SELX")
        if sel:
            a(f"s_cmp_lg_u32 s31, {sel}")
            a("s_cbranch_scc1 L_END")
        a("s_memrealtime s[96:97]")
        a("s_waitcnt lgkmcnt(0)")
        a("s_sub_u32 s98, s96, s100")
        a("s_add_u32 s98, s98, s96")
        a.label("DBL")
        a("s_memrealtime s[96:97]")
        a("s_waitcnt lgkmcnt(0)")
        a("s_sub_u32 s99, s96, s98")
        a("s_cmp_lt_i32 s99, 0")
        a("s_cbranch_scc1 DBL")
    a("s_endpgm")
    a.label("A_SLOW")
    a(f"s_mov_b32 s62, {POLLMAX}")
    a.label("A_SLOW1")
    a(f"v_cmp_eq_u32 vcc, s58, v{PV_}")
    a("s_nop 1")
    a("s_and_b32 s5, vcc_lo, s63")
    a("s_cmp_eq_u32 s5, s63")
    a("s_cbranch_scc1 A_SLOW2")
    kv_poll()
    a("s_cmp_lg_u32 s5, 0")
    a("s_cbranch_scc1 A_SLOWR")
    a("s_sub_u32 s62, s62, 1")
    a("s_cbranch_scc1 A_SLOW2")
    a("s_waitcnt vmcnt(0)")
    a("s_branch A_SLOW1")
    a.label("A_SLOW2")
    a("s_or_b32 s5, s63, 128")
    a("s_cmp_lg_u32 s63, 0")
    a("s_cbranch_scc1 A_SLOWR")
    a("v_readlane_b32 s4, v248, 2")
    a("s_nop 1")
    a("s_cmp_lg_u32 s4, 16")
    a("s_cbranch_scc1 A_SLOWR")
    for i in range(4):
        a(f"v_mov_b32 v{T2+12+i}, v{VK0+i}")
    a("s_lshl_b32 s4, s50, 15")
    a(f"v_add_u32 v{VK0}, s4, v2")
    a(f"v_xor_b32 v{VK1}, 32768, v{VK0}")
    a(f"v_mov_b32 v{VV0}, v{VK0}")
    a(f"v_mov_b32 v{VV1}, v{VK1}")
    a("s_lshl_b32 s4, s24, 13")
    a(f"s_add_u32 s6, s4, {WOF + 1024 - 7*16*KTS}")
    a(f"s_add_u32 s7, s4, {WOF + 5120 - 7*16*VTS}")
    a.srd(12, P_WS, 0x400000, "s6")
    a.srd(16, P_WS, 0x400000, "s7")
    a("s_movk_i32 s60, 1024")
    a("s_movk_i32 s61, 1024")
    a("s_branch A_SLOWR")
    a.label("A_LLOAD")
    late_load(a, 248, 14)
    a("s_branch A_LLOADR")
    a.label("A_FALLBACK")
    a("s_mov_b32 s41, -1")
    a("s_cmp_lg_u32 s60, 1024")
    a("s_cbranch_scc1 A_FB0")
    for i in range(4):
        a(f"v_mov_b32 v{VK0+i}, v{T2+12+i}")
    a(f"s_mul_i32 s34, s24, {4*KTS}")
    a(f"s_mul_i32 s37, s24, {4*VTS}")
    a(f"s_add_u32 s37, s37, {VF}")
    a.srd(12, P_WS, 52 * KTS, "s34")
    a.srd(16, P_WS, 52 * VTS, "s37")
    a.label("A_FB0")
    for t in range(4):
        a(f"v_mov_b32 v{MX+t}, 0xff800000")
    a("s_mov_b32 s44, 0")
    a("s_mov_b32 s45, 0")
    a("s_waitcnt vmcnt(0) lgkmcnt(0)")
    a.label("A_FBLOOP")
    for f in range(2):
        a(f"buffer_load_dwordx4 {vr(KB+4*f,4)}, v{VK0+f}, s[12:15], s44 offen{SC}")
    a("s_waitcnt vmcnt(0)")
    patch(KB)
    a("s_nop 1")
    for t in range(4):
        a(f"{MF32} {vr(O+16*t,16)}, {vr(KB,4)}, {vr(Q+8*t,4)}, 0")
        a(f"{MF32} {vr(O+16*t,16)}, {vr(KB+4,4)}, {vr(Q+8*t+4,4)}, {vr(O+16*t,16)}")
    a.nop(16)
    for i in range(8):
        for t in range(4):
            a(f"v_max3_f32 v{MX+t}, v{MX+t}, v{O+16*t+2*i}, v{O+16*t+2*i+1}")
    a(f"s_addk_i32 s44, {KTS}")
    a("s_add_u32 s45, s45, 1")
    a("s_and_b32 s4, s45, 3")
    a("s_cbranch_scc1 A_FBLOOP")
    a(f"s_add_u32 s44, s44, {12*KTS}")
    a("s_cmp_lt_u32 s45, 16")
    a("s_cbranch_scc1 A_FBLOOP")
    for t in range(4):
        a(f"v_mov_b32 v{T2+t}, v{MX+t}")
    a("s_nop 1")
    for t in range(4):
        a(f"v_permlane32_swap_b32 v{T2+t}, v{MX+t}")
    for t in range(4):
        a(f"v_max_f32 v{MX+t}, v{MX+t}, v{T2+t}")
    a("s_mov_b32 s59, 0")
    a("s_mov_b32 s63, 14")
    a("s_movk_i32 s5, 0x8e")
    a(f"v_mov_b32 v{PV_}, s58")
    for r in range(8):
        a(f"v_mov_b32 v{VB+24+r}, 0")
    first_loads()
    zero_acc()
    a("s_waitcnt vmcnt(0)")
    patch(KB)
    a("s_branch A_SETMAX")

def gen_B(a):
    a.label("L_B")
    a(f"s_setprio {PB}")
    a.stamp(1)
    if "noB" in EXP: a("s_endpgm")
    if "dB" in EXP:
        a("s_waitcnt vmcnt(0)"); a(f"s_sleep {DLY}")
    TS = 272; TW = 64 * TS
    UB = 4 * TW
    US = 4608
    SEL, ACT, INY, WY, KACC, WX = 16, 48, 112, 144, 176, 192
    Z8, Z1, Z256, TM = 236, 238, 242, 2
    FR, CT, UL = 48, 112, 192
    a(f"s_mul_i32 s29, s24, {TW}")
    a("s_mov_b32 m0, s29")
    a("v_mov_b32 v15, 0x3f80")
    a(f"ds_write_addtid_b32 v15 offset:{32*TS}")
    a("v_and_b32 v12, 1, v1")
    a("v_lshlrev_b32 v12, 4, v12")
    a("v_lshlrev_b32 v12, v12, v15" if False else "v_mov_b32 v15, 0x3f80")
    a("v_lshlrev_b32 v12, v12, v15")
    a("s_mov_b64 s[4:5], 3")
    for i in range(32):
        a(f"v_cndmask_b32 v{SEL+i}, 0, v12, s[4:5]")
        if i < 31: a("s_lshl_b64 s[4:5], s[4:5], 2")
    a("v_lshrrev_b32 v13, 5, v1")
    for r in range(4):
        a(f"v_mov_b32 v{KACC+r}, 0")
    a(f"v_mul_u32_u24 v12, {US-512}, v13")
    a("v_add_u32 v12, v12, v2")
    a(f"v_add_u32 v12, {UB}, v12")
    a(f"ds_write_b128 v12, {vr(KACC,4)}")
    a("s_and_b32 s42, s2, 31")
    a("s_lshl_b32 s42, s42, 7")
    a(f"s_add_u32 s42, s42, {F_XT}")
    a("v_lshrrev_b32 v12, 1, v1")
    a("v_and_b32 v13, 1, v1")
    a(f"v_mul_u32_u24 v3, {XTS}, v12")
    a("v_lshl_add_u32 v3, v13, 4, v3")
    a(f"s_mul_i32 s43, s24, {64*XTS}")
    a("s_mul_i32 s33, s31, 896")
    a("s_add_u32 s43, s43, s33")
    a("s_lshl_b32 s33, s39, 4")
    a("s_add_u32 s43, s43, s33")
    a(f"s_add_u32 s43, s43, {XT}")
    a(f"s_add_u32 s44, s43, {32*XTS}")
    a(f"v_mul_u32_u24 v241, {US}, v13")
    a("v_lshl_add_u32 v241, v12, 4, v241")
    a("s_lshl_b32 s33, s24, 10")
    a(f"s_add_u32 s33, s33, {UB + 512}")
    a("v_add_u32 v241, s33, v241")
    a("s_waitcnt lgkmcnt(0)")
    a("s_and_b32 s33, s26, 1")
    a("s_lshl_b32 s33, s33, 4")
    a("s_lshr_b32 s28, s28, s33")
    a("s_lshl_b32 s28, s28, 16")
    a("s_lshr_b32 s38, s38, s33")
    a("s_lshl_b32 s38, s38, 16")
    hi = float(np.float32(LOG2E)); lo = float(np.float32(LOG2E - hi))
    a(f"v_mov_b32 v13, {hex(f2u(hi))}")
    a("v_mul_f32 v14, s28, v13")
    a("v_fma_f32 v13, s28, v13, -v14")
    a(f"v_mov_b32 v15, {hex(f2u(lo))}")
    a("v_fmac_f32 v13, s28, v15")
    a("v_exp_f32 v14, v14")
    a(f"v_mul_f32 v13, {hex(f2u(math.log(2)))}, v13")
    a("v_fmac_f32 v14, v14, v13")
    a("v_cvt_pk_bf16_f32 v14, v14, v14")
    a("v_and_b32 v14, 0xffff0000, v14")
    a(f"s_mov_b32 s48, {hex(f2u(LOG2E))}")
    a(f"s_mov_b32 s49, {hex(f2u(1/(2*math.pi)))}")
    a("s_mov_b32 s47, 0x07060302")
    a("s_brev_b32 s46, 1")
    a("s_cmp_ge_u32 s2, 2")
    a("s_cbranch_scc1 B_NORDY")
    a("v_mov_b32 v4, 1")
    a("s_setprio 3")
    a("s_waitcnt vmcnt(6)")
    a("s_mov_b64 exec, 1")
    a(f"global_atomic_add v{VZ}, v4, {sr(P_DBG,2)} sc1")
    a("s_mov_b64 exec, -1")
    a(f"s_setprio {PB}")
    a.label("B_NORDY")
    a("s_waitcnt vmcnt(4)")
    a.stamp(2)
    r1 = [0, 0, 2, 4, 4, 4, 6, 8, 8]
    P_ = {}
    for r in range(9): P_[(0, r)] = r; P_[(1, r)] = 256 + r1[r]
    for i, e in enumerate((0, 4, 8)): P_[(0, 9 + i)] = 512 + e; P_[(1, 9 + i)] = 768 + e
    for i, e in enumerate((0, 8)):
        P_[(0, 12 + i)] = 1024 + e; P_[(1, 12 + i)] = 1280 + e; P_[(0, 14 + i)] = 1536 + e; P_[(1, 14 + i)] = 1792 + e
    EX = [None] * 32
    for (h, r), p in P_.items(): EX[8 * (r >> 2) + 4 * h + (r & 3)] = ("X", p)
    EY = [("Y", j) for j in range(32)]
    yops = [(("Y", 2), ("Y", 1), ("Y", 1)), (("Y", 3), ("Y", 2), ("Y", 1)), (("Y", 4), ("Y", 2), ("Y", 2))]
    yops += [(("Y", 4 + k), ("Y", 4), ("Y", k)) for k in (4, 1, 2, 3)]
    yops += [(("Y", 8 + k), ("Y", 8), ("Y", k)) for k in (8, 1, 2, 3, 4, 5, 6, 7)]
    yops += [(("Y", 16 + k), ("Y", 16), ("Y", k)) for k in range(1, 16)]
    xops = [(("X", 8), ("X", 0), ("Y", 1))]
    xops += [(("X", e + 1), ("X", e), ("Z", 1)) for e in range(7)]
    for base, es in ((256, (0, 8, 4, 2, 6)), (512, (0, 8, 4)), (768, (0, 8, 4)), (1024, (0, 8)), (1280, (0, 8)), (1536, (0, 8)), (1792, (0, 8))):
        xops += [(("X", base + e), ("X", base - 256 + e), ("Z", 256)) for e in es]
    def pass0():
        YB, XB = 48, 112
        plist = sorted(set(P_.values()))
        xreg = {p: XB + 2 * i for i, p in enumerate(plist)}
        row_of = {p: min(8 * (r >> 2) + 4 * h + (r & 3) for (h, r), pp in P_.items() if pp == p) for p in plist}
        yreg = {j: YB + 2 * j for j in range(1, 32)}
        def reg(n): return {"Y": yreg, "X": xreg, "Z": {1: Z1, 256: Z256}}[n[0]][n[1]]
        allops = xops + yops
        memo = {}
        def height(n):
            if n not in memo:
                memo[n] = max([0] + [1 + height(d) for (d, x, y) in allops if n in (x, y)])
            return memo[n]
        WB = int(os.environ.get("WB", "16")); XAT = int(os.environ.get("XAT", "6"))
        ring = list(range(WX, WX + 32))
        wq = []; ct = [0]
        def emit_write(n):
            t = ring[ct[0] % len(ring)]; ct[0] += 1
            r = reg(n)
            if n[0] == "Y":
                a(f"v_cvt_pk_bf16_f32 v{t}, v{r}, v{r+1}")
                wq.append(f"ds_write_addtid_b32 v{t} offset:{(32+n[1])*TS}")
            else:
                a(f"v_cvt_pk_bf16_f32 v{t}, v{r}, -v{r+1}")
                wq.append(f"ds_write_addtid_b32 v{t} offset:{row_of[n[1]]*TS}")
            if len(wq) >= WB:
                for ins in wq: a(ins)
                wq.clear()
        for i in range(2): a(f"v_lshlrev_b32 v{8+i}, 16, v{RAW+i}")
        a("v_pk_mul_f32 v[8:9], v[8:9], v[14:15] op_sel_hi:[1,0]")
        a("v_pk_mul_f32 v[8:9], v[8:9], s[48:49]")
        a(f"v_mul_f32 v{TM+2}, 0x41000000, v8")
        a(f"v_mul_f32 v{TM+3}, 0x41000000, v9")
        a(f"v_mul_f32 v{TM+4}, 0x43800000, v8")
        a(f"v_mul_f32 v{TM+5}, 0x43800000, v9")
        anch = [(TM + 2, yreg[1]), (8, Z1), (TM + 4, Z256)]
        for s_, d_ in anch:
            a(f"v_fract_f32 v{s_+1}, v{s_+1}")
            a(f"v_exp_f32 v{s_}, v{s_}")
        for s_, d_ in anch:
            a(f"v_cos_f32 v{d_}, v{s_+1}")
            a(f"v_sin_f32 v{d_+1}, v{s_+1}")
        a("s_nop 0")
        for s_, d_ in anch:
            a(f"v_pk_mul_f32 {vr(d_,2)}, {vr(d_,2)}, {vr(s_,2)} op_sel_hi:[1,0]")
        done = {("Y", 1), ("Z", 1), ("Z", 256)}
        towrite = [("Y", 1)]
        pending = sorted(allops, key=lambda o: -height(o[0]))
        nb = 0
        while pending:
            batch = [o for o in pending if o[1] in done and o[2] in done][:4]
            for o in batch: pending.remove(o)
            for (d, x, y) in batch: cmul(a, reg(d), reg(x), reg(y), 0)
            w = towrite; towrite = []
            for n in w[:2]: emit_write(n)
            for (d, x, y) in batch: cmul(a, reg(d), reg(x), reg(y), 1)
            for n in w[2:]: emit_write(n)
            for (d, x, y) in batch:
                done.add(d); towrite.append(d)
            nb += 1
            if nb == XAT:
                a("s_waitcnt vmcnt(0)")
                for i in range(2, 6): a(f"v_lshlrev_b32 v{8+i}, 16, v{RAW+i}")
                cmul(a, xreg[0], 12, 10, 0)
                cmul(a, xreg[0], 12, 10, 1)
                a(f"v_pk_mul_f32 {vr(xreg[0],2)}, {vr(xreg[0],2)}, v[14:15] op_sel_hi:[1,0]")
                done.add(("X", 0)); towrite.append(("X", 0))
        for n in towrite: emit_write(n)
        for ins in wq: a(ins)
    pass0()
    PB1_ = int(os.environ.get("PBY", str(PB))); PB2 = int(os.environ.get("PB2", str(PB)))
    a(f"s_setprio {PB1_}")
    a.stamp(8)
    a("s_mov_b32 s45, 0")
    def u_loads():
        for i in range(2):
            a(f"buffer_load_dwordx4 {vr(UL+4*i,4)}, v3, s[20:23], s{43+i} offen{SC}")
    def try_u(tag_, prio):
        a("s_cmp_eq_u32 s45, 32")
        a(f"s_cbranch_scc1 TU2{tag_}")
        a("s_setprio 3")
        a("s_waitcnt vmcnt(0)")
        a("v_readfirstlane_b32 s45, v250")
        a("s_nop 1")
        a("s_cmp_lg_u32 s45, 32")
        a(f"s_cbranch_scc1 TU0{tag_}")
        u_loads()
        a(f"s_branch TU1{tag_}")
        a.label(f"TU0{tag_}")
        cnt_load(a, 250, "s42")
        a.label(f"TU1{tag_}")
        a(f"s_setprio {prio}")
        a.label(f"TU2{tag_}")
    loc = {("Y", 1): Z8, ("Z", 1): Z1, ("Z", 256): Z256}
    for j in range(2, 17): loc[("Y", j)] = WY + 2 * (j - 1)
    free = list(range(WX, WX + 44, 2))
    mq = []
    since = [99]
    MG = int(os.environ.get("MG", "6"))
    def v(ins):
        a(ins); since[0] += 1
        if mq and since[0] >= MG and mq[0][1] <= cnt[0] - 2:
            a(mq.pop(0)[0]); since[0] = 0; cnt[0] += 1; lastm[0] = cnt[0]
        cnt[0] += 1
    cnt = [0]; lastm = [0]
    class V:
        def __call__(self, x): v(x)
    va = V()
    NEG = {("Y", 1): 240, ("Y", 2): 251, ("Y", 4): 252, ("Y", 8): 253, ("Y", 16): WY, ("Z", 1): WY + 1, ("Z", 256): 15}
    NEG[("Z", 1)] = 251
    def smul(d, x, y, phase):
        if y not in NEG: x, y = y, x
        D, X_, Y_ = loc[d], loc[x], loc[y]
        if phase == 0:
            v(f"v_mul_f32 v{D}, v{X_}, v{Y_}")
            v(f"v_mul_f32 v{D+1}, v{X_}, v{Y_+1}")
        else:
            v(f"v_fmac_f32 v{D}, v{X_+1}, v{NEG[y]}")
            v(f"v_fmac_f32 v{D+1}, v{X_+1}, v{Y_}")
            if d in NEG: v(f"v_xor_b32 v{NEG[d]}, s46, v{D+1}")
    def table(ops, E, IN, neg, done, pre=None):
        uses = {}
        for (d, x, y) in ops:
            for n in (x, y): uses[n] = uses.get(n, 0) + 1
        for n in E: uses[n] = uses.get(n, 0) + 1
        def release(n):
            uses[n] -= 1
            if uses[n] == 0 and n in loc and WX <= loc[n] < WX + 44: free.append(loc[n])
        memo = {}
        def height(n):
            if n not in memo:
                memo[n] = max([0] + [1 + height(d) for (d, x, y) in ops if n in (x, y)])
            return memo[n]
        first = {n: i for i, n in reversed(list(enumerate(E)))}
        pending = sorted(ops, key=lambda o: (-height(o[0]), first.get(o[0], 99)))
        pairs = list(range(16)); gdone = [0] * 4; gseq = [0]
        def cvts(avail):
            for q in list(pairs):
                n0, n1 = E[2 * q], E[2 * q + 1]
                if n0 in avail and n1 in avail:
                    pairs.remove(q)
                    for part in range(2):
                        sg = "-" if (neg and part) else ""
                        s0 = (("1.0", "0")[part]) if n0 == ("Y", 0) else f"{sg}v{loc[n0]+part}"
                        v(f"v_cvt_pk_bf16_f32 v{IN+16*part+q}, {s0}, {sg}v{loc[n1]+part}")
                    release(n0); release(n1)
                    g = q >> 2; gdone[g] += 1
                    if gdone[g] == 4:
                        for hs in range(2):
                            for part in range(2):
                                acc = vr(ACT + 32 * hs + 16 * part, 16)
                                mq.append((f"{MF32} {acc}, {vr(IN+16*part+4*g,4)}, {vr(SEL+16*hs+4*g,4)}, {'0' if gseq[0] == 0 else acc}", cnt[0]))
                        gseq[0] += 1
        nb = 0
        while pending:
            batch = [o for o in pending if o[1] in done and o[2] in done][:4]
            for o in batch:
                pending.remove(o)
                if o[0] not in loc: loc[o[0]] = free.pop(0)
            for (d, x, y) in batch: smul(d, y, x, 0) if x in NEG else smul(d, x, y, 0)
            for (d, x, y) in batch: smul(d, y, x, 1) if x in NEG else smul(d, x, y, 1)
            for (d, x, y) in batch: release(x); release(y)
            if pre and pre(nb): pre = None
            if pre is None: cvts(set(done))
            for (d, x, y) in batch: done.add(d)
            nb += 1
        assert pre is None
        cvts(done)
        assert not pairs
    def packs(OUT, hs):
        for r in range(16):
            v(f"v_perm_b32 v{OUT+16*hs+r}, v{ACT+32*hs+16+r}, v{ACT+32*hs+r}, s47")
    def drain():
        while mq:
            if mq[0][1] > cnt[0] - 2: a("s_nop 1"); cnt[0] += 2
            a(mq.pop(0)[0]); cnt[0] += 1; lastm[0] = cnt[0]
    for i in range(2): v(f"v_and_b32 v{8+i}, 0xffff0000, v{RAW+i}")
    v("v_mul_f32 v8, v8, v14"); v("v_mul_f32 v9, v9, v14")
    v("v_mul_f32 v8, s48, v8"); v("v_mul_f32 v9, s49, v9")
    v(f"v_mul_f32 v{TM+2}, 0x41000000, v8")
    v(f"v_mul_f32 v{TM+3}, 0x41000000, v9")
    v(f"v_mul_f32 v{TM+4}, 0x43800000, v8")
    v(f"v_mul_f32 v{TM+5}, 0x43800000, v9")
    anchors = [(TM + 2, Z8), (8, Z1), (TM + 4, Z256)]
    for s_, d_ in anchors:
        v(f"v_fract_f32 v{s_+1}, v{s_+1}")
        v(f"v_exp_f32 v{s_}, v{s_}")
    for s_, d_ in anchors:
        v(f"v_cos_f32 v{d_}, v{s_+1}")
        v(f"v_sin_f32 v{d_+1}, v{s_+1}")
    a("s_nop 0")
    for s_, d_ in anchors:
        v(f"v_mul_f32 v{d_}, v{d_}, v{s_}")
        v(f"v_mul_f32 v{d_+1}, v{d_+1}, v{s_}")
    v(f"v_xor_b32 v{NEG[('Y',1)]}, s46, v{Z8+1}")
    v(f"v_xor_b32 v{NEG[('Z',256)]}, s46, v{Z256+1}")
    table(yops, EY, INY, False, {("Y", 0), ("Y", 1)})
    a("s_setprio 3")
    nonce_issue(a, 250, True)
    a(f"s_setprio {PB2}")
    for i in range(2, 6): v(f"v_and_b32 v{8+i}, 0xffff0000, v{RAW+i}")
    loc[("X", 0)] = free.pop(0)
    X0 = loc[("X", 0)]
    v(f"v_xor_b32 v{NEG[('Z',1)]}, s46, v{Z1+1}")
    v("v_mul_f32 v10, v10, v14"); v("v_mul_f32 v11, v11, v14")
    v(f"v_mul_f32 v{X0}, v12, v10"); v(f"v_mul_f32 v{X0+1}, v12, v11")
    v(f"v_fma_f32 v{X0}, -v13, v11, v{X0}"); v(f"v_fmac_f32 v{X0+1}, v13, v10")
    def ypack(nb):
        if mq or cnt[0] - lastm[0] < 13: return False
        packs(INY, 0); packs(INY, 1)
        return True
    table(xops, EX, WY, True, {("X", 0), ("Y", 1), ("Z", 1), ("Z", 256)}, ypack)
    drain()
    a("v_and_b32 v4, 31, v1")
    a(f"v_mul_u32_u24 v4, {TS}, v4")
    a("v_lshrrev_b32 v5, 5, v1")
    a("v_lshl_add_u32 v4, v5, 4, v4")
    a("v_add_u32 v4, s29, v4")
    a("v_mov_b32 v5, v4")
    for (m, src) in ((5, 4), (12, 7), (13, 7), (20, 15)):
        a(f"s_add_u32 s33, s29, {src*TS}")
        a(f"v_writelane_b32 v5, s33, {m}")
        a("s_add_u32 s33, s33, 16")
        a(f"v_writelane_b32 v5, s33, {m+32}")
    F0 = [SEL + 8 * i for i in range(4)] + [WX + 8 + 8 * i for i in range(4)]
    for ks in range(8):
        a(f"ds_read_b128 {vr(F0[ks],4)}, v5 offset:{32*ks}")
        a(f"ds_read_b128 {vr(F0[ks]+4,4)}, v4 offset:{32*TS+32*ks}")
    a("s_setprio 3")
    a("s_waitcnt vmcnt(0)")
    nonce_take(a, 250, True)
    cnt_load(a, 250, "s42")
    a(f"s_setprio {PB2}")
    MG = 4
    packs(WY, 0)
    for ks in range(4):
        mq.append((f"{MF32} {vr(KACC,16)}, {vr(WY+4*ks,4)}, {vr(INY+4*ks,4)}, {vr(KACC,16) if ks else '0'}", cnt[0]))
    packs(WY, 1)
    drain()
    a("s_waitcnt lgkmcnt(0)")
    for ks in range(8):
        a(f"{MF32} {vr(KACC,16)}, {vr(F0[ks],4)}, {vr(F0[ks]+4,4)}, {vr(KACC,16)}")
    for ks in range(4, 8):
        a(f"{MF32} {vr(KACC,16)}, {vr(WY+4*ks,4)}, {vr(INY+4*ks,4)}, {vr(KACC,16)}")
    a(f"s_setprio {PC}")
    a.stamp(3)
    a("v_add_u32 v242, s29, v2")
    a("s_xor_b32 s33, s24, 1")
    a(f"s_mul_i32 s33, s33, {TW}")
    a("v_add_u32 v243, s33, v2")
    a("s_and_b32 s33, s24, 2")
    a(f"s_mul_i32 s48, s33, {TW}")
    a("s_add_u32 s48, s48, 4096")
    a("s_mul_i32 s33, s27, 4160")
    a("s_add_u32 s49, s33, s48")
    a("v_sub_u32 v6, 63, v1")
    a("v_lshlrev_b32 v6, 4, v6")
    a("v_add_u32 v6, s49, v6")
    a("v_and_b32 v7, 1, v1")
    a("v_cmp_eq_u32 vcc, 1, v7")
    for q in range(4):
        a(f"ds_write_b128 v242, {vr(KACC+4*q,4)} offset:{1024*q}")
    a("v_lshrrev_b32 v4, 4, v1")
    a("v_and_b32 v5, 15, v1")
    a("v_add_u32 v7, 1, v5")
    a("v_lshrrev_b32 v7, 1, v7")
    a("v_lshlrev_b32 v8, 2, v4")
    a("v_sub_u32 v8, v8, v7")
    a("v_and_b32 v7, 1, v5")
    a("v_mul_u32_u24 v7, 1040, v7")
    a("v_sub_u32 v8, v8, v7")
    a(f"v_add_u32 v8, {1016 + 1040 - 48 - 128}, v8")
    a("v_lshlrev_b32 v8, 2, v8")
    a("s_lshl_b32 s33, s27, 8")
    a("s_sub_u32 s33, s48, s33")
    a("v_add_u32 v8, s33, v8")
    for i in range(1, 4):
        a(f"v_subrev_u32 v{8+i}, {1024*i}, v8")
    if os.environ.get("TUB"): try_u("b", PC)
    a("s_waitcnt lgkmcnt(0)")
    a.stamp(10)
    a("s_barrier")
    a.stamp(11)

    for q in range(4):
        a(f"ds_read_b128 {vr(FR+4*q,4)}, v243 offset:{1024*q}")
    try_u("c", PC)
    a("s_lshr_b32 s33, s24, 1")
    a(f"s_mul_i32 s36, s33, {US}")
    a(f"s_add_u32 s36, s36, {UB + 512}")
    a("v_lshlrev_b32 v12, 5, v5")
    a("v_lshl_add_u32 v13, v4, 3, v12")
    a("v_lshl_add_u32 v12, v4, 4, v12")
    a("s_lshl_b32 s33, s27, 8")
    a("s_sub_u32 s33, s36, s33")
    a(f"s_sub_u32 s33, s33, {32 + 192}")
    a("v_add_u32 v12, s33, v12")
    a("s_lshl_b32 s33, s27, 11")
    a("s_add_u32 s33, s33, s36")
    a("v_add_u32 v13, s33, v13")
    a("s_lshl_b32 s40, s26, 1")
    a("s_add_u32 s40, s40, s27")
    a("s_lshl_b32 s41, s40, 11")
    a(f"s_add_u32 s41, s41, {BT}")
    a("s_lshr_b32 s40, s26, 5")
    a("s_lshl_b32 s40, s40, 7")
    a(f"s_add_u32 s40, s40, {F_B}")
    a("s_waitcnt lgkmcnt(0)")
    for r in range(16):
        a(f"v_add_f32 v{KACC+r}, v{KACC+r}, v{FR+r}")
    K_ = KACC; W_ = FR + 16
    a(f"v_cndmask_b32 v{CT}, v{K_+12}, v{K_+13}, vcc")
    a(f"v_cndmask_b32 v{CT+1}, v{K_+14}, v{K_+15}, vcc")
    for i in range(4):
        a(f"v_mov_b32 v{W_+16+i}, 0")
    def pk(d, lo_, hi_): a(f"v_cvt_pk_bf16_f32 v{d}, v{lo_}, v{hi_}")
    a("s_cmp_eq_u32 s27, 1")
    a("s_cbranch_scc1 B_ODD")
    A_, B_, C_ = K_ + 9, K_ + 10, K_ + 11
    for i in range(4): pk(W_ + i, K_ + 7 - 2 * i, K_ + 6 - 2 * i)
    for i, (x, y) in enumerate(((C_, C_), (B_, B_), (B_, A_), (A_, A_))): pk(W_ + 4 + i, x, y)
    for sl in range(2):
        A2, C2, M2 = K_ + 12 + 2 * sl, K_ + 13 + 2 * sl, CT + sl
        for i, (x, y) in enumerate(((C2, C2), (C2, M2), (A2, A2), (A2, A2))): pk(W_ + 8 + 4 * sl + i, x, y)
    a("s_branch B_IMG")
    a.label("B_ODD")
    for i in range(4): pk(W_ + i, K_ + 8 - 2 * i, K_ + 7 - 2 * i)
    for i, (x, y) in enumerate(((C_, C_), (C_, B_), (B_, B_), (A_, A_))): pk(W_ + 4 + i, x, y)
    for sl in range(2):
        A2, C2, M2 = K_ + 12 + 2 * sl, K_ + 13 + 2 * sl, CT + sl
        for i, (x, y) in enumerate(((C2, C2), (C2, C2), (M2, A2), (A2, A2))): pk(W_ + 8 + 4 * sl + i, x, y)
    a("s_mov_b64 exec, 1")
    pk(W_ + 16, K_, VZ)
    a("s_mov_b64 exec, -1")
    a.label("B_IMG")
    for sl in range(4):
        a(f"ds_write_b128 v6, {vr(W_+4*sl,4)} offset:{(3-sl)*1024}")
    a("v_add_u32 v7, s49, v2")
    a("s_mov_b64 exec, 3")
    a(f"ds_write_b128 v7, {vr(W_+16,4)} offset:4096")
    a("s_mov_b64 exec, -1")
    a("s_cmp_eq_u32 s45, 32")
    a("s_cbranch_scc1 B_UOK")
    a("s_waitcnt vmcnt(0)")
    cnt_wait(a, 250, "s42", 32, 4)
    u_loads()
    a.label("B_UOK")
    a.stamp(7)
    a("s_waitcnt vmcnt(0)")
    for i in range(2):
        a(f"ds_write_b128 v241, {vr(UL+4*i,4)} offset:{512*i}")
    a("s_waitcnt lgkmcnt(0)")
    a("s_barrier")
    a.stamp(4)
    a(f"s_setprio {os.environ.get('PV', '0')}")
    FB, CAC = 16, 144
    a.nds = 0
    tg = {}
    def loadstep(stp):
        b = FB + 64 * (stp & 1)
        for i in range(8):
            o = 128 * (1 - (i & 1)) + 16 * (3 - stp)
            a.ds(f"ds_read2_b32 {vr(b+4*i,2)}, v{8+(i>>1)} offset0:{o} offset1:{o+1}")
            a.ds(f"ds_read2_b32 {vr(b+4*i+2,2)}, v{8+(i>>1)} offset0:{o+2} offset1:{o+3}")
            tg[(stp, i)] = a.ds(f"ds_read_b128 {vr(b+32+4*i,4)}, v12 offset:{512*i+64*(3-stp)}")
    loadstep(0)
    for stp in range(4):
        b = FB + 64 * (stp & 1)
        order = sorted([(i, tp) for i in range(8) for tp in range(8 - i)], key=lambda x: (max(x), x[0] + x[1]))
        nxt = []
        if stp < 3:
            b2 = FB + 64 * ((stp + 1) & 1)
            for i in range(8):
                o = 128 * (1 - (i & 1)) + 16 * (3 - stp - 1)
                nxt.append((None, f"ds_read2_b32 {vr(b2+4*i,2)}, v{8+(i>>1)} offset0:{o} offset1:{o+1}"))
                nxt.append((None, f"ds_read2_b32 {vr(b2+4*i+2,2)}, v{8+(i>>1)} offset0:{o+2} offset1:{o+3}"))
                nxt.append(((stp + 1, i), f"ds_read_b128 {vr(b2+32+4*i,4)}, v12 offset:{512*i+64*(3-stp-1)}"))
        waited = -1
        seen = set()
        for k, (i, tp) in enumerate(order):
            if max(i, tp) > waited:
                waited = max(i, tp)
                a.wait_ds(tg[(stp, waited)])
            t = i + tp
            c = vr(CAC + 4 * t, 4)
            if stp == 0 and t not in seen:
                c = "0"; seen.add(t)
            a(f"{MF16} {vr(CAC+4*t,4)}, {vr(b+4*i,4)}, {vr(b+32+4*tp,4)}, {c}")
            if k >= 8 and nxt:
                key, ins = nxt.pop(0)
                r = a.ds(ins)
                if key: tg[key] = r
        assert not nxt
    a.stamp(5)
    a(f"s_setprio {os.environ.get('PT', '2')}")
    RR = 16
    for tl in range(4):
        a(f"ds_read_b64 {vr(80+2*tl,2)}, v13 offset:{512*tl}")
    a("s_cmp_eq_u32 s27, 1")
    a.nop(3)
    a("s_cbranch_scc1 B_R1")
    for par in range(2):
        if par: a.label("B_R1")
        for q in range(4):
            a(f"ds_write_b128 v242, {vr(CAC+16*(1-par)+4*q,4)} offset:{1024*q}")
        a("s_waitcnt lgkmcnt(0)")
        a("s_barrier")
        for q in range(4):
            a(f"ds_read_b128 {vr(RR+4*q,4)}, v243 offset:{1024*q}")
        a("s_waitcnt lgkmcnt(0)")
        for r in range(16):
            a(f"v_add_f32 v{RR+r}, v{RR+r}, v{CAC+16*par+r}")
        if not par: a("s_branch B_R2")
    a.label("B_R2")
    for t in range(4):
        for i in range(2):
            a(f"v_lshlrev_b32 v{88+2*i}, 16, v{80+2*t+i}")
            a(f"v_and_b32 v{88+2*i+1}, 0xffff0000, v{80+2*t+i}")
        for r in range(4):
            a(f"v_fmac_f32 v{RR+4*t+r}, s38, v{88+r}")
        for i in range(2):
            a(f"v_cvt_pk_bf16_f32 v{80+2*t+i}, v{RR+4*t+2*i}, v{RR+4*t+2*i+1}")
    a("s_nop 1")
    for p in range(2):
        for i in range(2):
            a(f"v_permlane16_swap_b32 v{80+4*p+i}, v{80+4*p+2+i}")
    for p in range(2):
        a(f"buffer_store_dwordx4 {vr(80+4*p,4)}, v2, s[20:23], s41 offen offset:{1024*p}{SC}")
    a("s_waitcnt vmcnt(0)")
    cnt_add(a, 4, "s40")
    fin(a, 6)
    a("s_endpgm")

def gen_C(a):
    a.label("L_C")
    if "dC" in EXP: a(f"s_sleep {DLY}")
    a("s_setprio 3")
    R, U, GU, GW = 16, 80, 144, 160
    a("s_sub_u32 s25, s2, 224")
    a("s_lshl_b32 s26, s31, 2")
    a("s_sub_u32 s33, s32, 28")
    a("s_add_u32 s26, s26, s33")
    a("s_lshl_b32 s26, s26, 2")
    a("s_add_u32 s26, s26, s24")
    a("s_mul_i32 s36, s26, 14336")
    for i in range(1, 4):
        a(f"s_add_u32 s{36+i}, s36, {3584*i}")
    a("s_add_u32 s45, s25, s24")
    a("s_waitcnt lgkmcnt(0)")
    a.srd(20, P_WS, WS_SIZE)
    a.srd(12, P_X, X_BYTES)
    for r in range(16):
        a(f"buffer_load_dwordx4 {vr(R+4*r,4)}, v2, s[12:15], s{36+(r>>2)} offen offset:{896*(r&3)}")
    a.srd(16, P_GW, 896)
    a(f"buffer_load_dwordx4 {vr(GW,4)}, v2, s[16:19], 0 offen")
    a("v_mov_b32 v4, 1")
    a(f"s_mul_i32 s36, s26, {2*XTS}")
    a(f"s_add_u32 s36, s36, {XT}")
    a("s_add_u32 s37, s36, 3584")
    a(f"s_add_u32 s38, s36, {XTS}")
    a("s_add_u32 s39, s38, 3584")
    a("s_mov_b32 s46, 0x05040100")
    a("s_mov_b32 s47, 0x07060302")
    a("s_mov_b32 exec_hi, 0xffffff")
    for hb in range(2):
        a(f"s_waitcnt vmcnt({9 if hb == 0 else 8})")
        for cc in range(8):
            i, e = cc >> 1, cc & 1
            u = U + 32 * hb + 4 * cc
            for q in range(4):
                a(f"v_perm_b32 v{u+q}, v{R+32*hb+4*(2*q+1)+i}, v{R+32*hb+4*(2*q)+i}, s{46+e}")
            a(f"buffer_store_dwordx4 {vr(u,4)}, v2, s[20:23], s{36+2*hb+(cc>>2)} offen offset:{896*(cc&3)}{SC}")
    a.stamp(1)
    a("s_mov_b64 exec, -1")
    nonce_issue(a, 250)
    a("v_lshlrev_b32 v5, 7, v1")
    a(f"s_mov_b32 s41, {F_XT}")
    for r in range(16):
        a(f"v_mov_b32 v{GU+r}, 0")
    a("s_mov_b32 exec_hi, 0xffffff")
    for i in range(4):
        for r in range(16):
            a(f"v_dot2c_f32_bf16 v{GU+r}, v{R+4*r+i}, v{GW+i}")
    a("s_mov_b64 exec, -1")
    a("s_waitcnt vmcnt(0)")
    nonce_take(a, 250)
    a("s_barrier")
    a("s_cmp_lg_u32 s24, 0")
    a("s_cbranch_scc1 C_NOADD")
    a("s_mov_b32 exec_hi, 0")
    a("buffer_atomic_add v4, v5, s[20:23], s41 offen sc1")
    a("s_mov_b64 exec, -1")
    a.label("C_NOADD")
    a.stamp(2)
    a("s_setprio 1")
    a("s_min_u32 s45, s25, 15")
    a("s_mul_i32 s33, s45, 25088")
    a("s_mul_i32 s34, s24, 7168")
    a("s_add_u32 s33, s33, s34")
    a("v_add_u32 v3, 4096, v2")
    a.srd(12, P_WO, 448 * 896)
    a("s_mov_b32 m0, s34")
    a("s_nop 0")
    for i in range(4):
        a(f"buffer_load_dwordx4 v2, s[12:15], s33 offen offset:{1024*i} lds")
    a("s_add_u32 m0, s34, 4096")
    a("s_nop 0")
    for i in range(3):
        a(f"buffer_load_dwordx4 v3, s[12:15], s33 offen offset:{1024*i} lds")
    for sh in ("row_shr:1", "row_shr:2", "row_shr:4", "row_shr:8"):
        for r in range(16):
            a(f"v_add_f32_dpp v{GU+r}, v{GU+r}, v{GU+r} {sh} row_mask:0xf bank_mask:0xf bound_ctrl:0")
    for r in range(16):
        a(f"v_add_f32_dpp v{GU+r}, v{GU+r}, v{GU+r} row_bcast:15 row_mask:0xa bank_mask:0xf")
    for r in range(16):
        a(f"v_add_f32_dpp v{GU+r}, v{GU+r}, v{GU+r} row_bcast:31 row_mask:0xc bank_mask:0xf")
    for op in (f"v_mul_f32 vX, {hex(f2u(-LOG2E))}, vX", "v_exp_f32 vX, vX", "v_add_f32 vX, 1.0, vX", "v_rcp_f32 vX, vX"):
        for r in range(16):
            a(op.replace("vX", f"v{GU+r}"))
    a("s_lshl_b32 s35, s26, 6")
    a(f"s_add_u32 s35, s35, {GO}")
    a("s_lshr_b32 s37, s26, 1")
    a("s_lshl_b32 s37, s37, 7")
    a(f"s_add_u32 s37, s37, {F_G}")
    a("s_mov_b32 exec_lo, 0")
    a("s_mov_b32 exec_hi, 0x80000000")
    for i in range(4):
        a(f"buffer_store_dwordx4 {vr(GU+4*i,4)}, v{VZ}, s[20:23], s35 offen offset:{16*i}{SC}")
    a("s_mov_b64 exec, -1")
    a("v_lshrrev_b32 v15, 5, v1")
    a("v_bfe_u32 v13, v1, 2, 2")
    a("v_lshl_add_u32 v13, v15, 2, v13")
    a("v_mul_u32_u24 v13, 896, v13")
    a("v_bfe_u32 v14, v1, 4, 1")
    a("v_lshl_add_u32 v13, v14, 5, v13")
    a("v_and_b32 v14, 3, v1")
    a("v_lshl_add_u32 v12, v14, 3, v13")
    a("s_lshr_b32 s49, s24, 1")
    a("s_mul_i32 s36, s49, 14336")
    a("s_mul_i32 s38, s27, 448")
    a("s_add_u32 s36, s36, s38")
    a("v_add_u32 v12, s36, v12")
    a(f"s_mul_i32 s38, s27, {7*32768}")
    a("s_lshl_b32 s39, s45, 1")
    a("s_add_u32 s39, s39, s49")
    a("s_lshl_b32 s39, s39, 10")
    a("s_add_u32 s38, s38, s39")
    a(f"s_add_u32 s38, s38, {WOF}")
    a("s_lshr_b32 s40, s25, 2")
    a("s_lshl_b32 s40, s40, 7")
    a(f"s_add_u32 s40, s40, {F_WO}")
    a("s_waitcnt vmcnt(0)")
    cnt_add(a, 4, "s37")
    a("s_cmp_ge_u32 s25, 16")
    a("s_cbranch_scc1 C_END")
    a("s_barrier")
    for i in range(7):
        for hr in range(2):
            a(f"ds_read_b64_tr_b16 {vr(16+4*i+2*hr,2)}, v12 offset:{64*i+8*hr*896}")
    a("s_waitcnt lgkmcnt(0)")
    a("s_cmp_eq_u32 s49, 0")
    a("s_cbranch_scc1 C_WO2")
    a("s_mov_b32 exec_lo, 0")
    for i in range(7):
        a(f"v_mov_b32 v{16+4*i+2}, 0")
        a(f"v_mov_b32 v{16+4*i+3}, 0")
    a("s_mov_b32 exec_lo, -1")
    a.label("C_WO2")
    for i in range(7):
        a(f"buffer_store_dwordx4 {vr(16+4*i,4)}, v2, s[20:23], s38 offen{SC}")
        if i < 6: a("s_add_u32 s38, s38, 32768")
    a("s_waitcnt vmcnt(0)")
    cnt_add(a, 4, "s40")
    a.label("C_END")
    fin(a, 3)

def gen():
    a = Asm()
    gen_entry(a)
    gen_A(a)
    gen_B(a)
    gen_C(a)
    a.label("L_END")
    a("s_endpgm")
    return a.text()

HEADER = open("cdna_kernels/" + NAME + ".s.ref").read().split("; Override launch geometry")[0]

if __name__ == "__main__":
    name = NAME + "_kernel"
    out = HEADER + "; @launch grid=(512,1,1) block=(256,1,1) lds=81920\n"
    out += '.amdgcn_target "amdgcn-amd-amdhsa--gfx950"\n' + kernel_header(name) + gen() + kernel_desc(name, 256)
    dst = sys.argv[1] if len(sys.argv) > 1 else "cdna_kernels/" + NAME + ".s"
    open(dst, "w").write(out)
```

```python
import struct

def f2u(x):
    return struct.unpack("<I", struct.pack("<f", x))[0]

def vr(b, n=1):
    return f"v{b}" if n == 1 else f"v[{b}:{b+n-1}]"

def sr(b, n=1):
    return f"s{b}" if n == 1 else f"s[{b}:{b+n-1}]"

class Asm:
    def __init__(self):
        self.lines = []
        self.nds = 0
        self.nvm = 0
    def __call__(self, s):
        for l in s.split("\n"):
            l = l.strip()
            if l:
                self.lines.append("    " + l)
    def label(self, l):
        self.lines.append(l + ":")
    def raw(self, s):
        self.lines.append(s)
    def comment(self, s):
        self.lines.append("    ; " + s)
    def ds(self, s):
        self(s)
        self.nds += 1
        return self.nds
    def vm(self, s):
        self(s)
        self.nvm += 1
        return self.nvm
    def wait_ds(self, tag):
        n = self.nds - tag
        assert n >= 0
        self(f"s_waitcnt lgkmcnt({min(n, 15)})")
    def wait_vm(self, tag):
        n = self.nvm - tag
        assert n >= 0
        self(f"s_waitcnt vmcnt({min(n, 63)})")
    def nop(self, n):
        while n > 0:
            k = min(n, 16)
            self(f"s_nop {k-1}")
            n -= k
    def srd(self, d, base, size, off=0):
        if off == 0:
            self(f"s_mov_b32 s{d}, s{base}")
            self(f"s_mov_b32 s{d+1}, s{base+1}")
        else:
            self(f"s_add_u32 s{d}, s{base}, {off}")
            self(f"s_addc_u32 s{d+1}, s{base+1}, 0")
        self(f"s_mov_b32 s{d+2}, {size}")
        self(f"s_mov_b32 s{d+3}, 0x00020000")
    def stamp(self, idx):
        import os
        if os.environ.get("DBLK") == str(idx):
            self("s_memrealtime s[98:99]")
            self("s_waitcnt lgkmcnt(0)")
            self("s_mov_b32 s101, s98")
        if not os.environ.get("STAMP"): return
        self(f"s_memtime s[96:97]")
        self(f"s_memrealtime s[98:99]")
        self("s_waitcnt lgkmcnt(0)")
        self(f"v_writelane_b32 v254, s96, {2*idx}")
        self(f"v_writelane_b32 v254, s98, {2*idx+1}")
    def stamp_flush(self, ws_pair, wave_sgpr="s24", waves=4):
        import os
        if not os.environ.get("STAMP"): return
        self("s_mov_b32 exec_lo, -1")
        self("s_mov_b32 exec_hi, 0")
        self(f"s_mul_i32 s96, s2, {waves}")
        self(f"s_add_u32 s96, s96, {wave_sgpr}")
        self("s_lshl_b32 s96, s96, 7")
        self(f"s_add_u32 s96, s96, {0xD00000}")
        self(f"s_add_u32 s98, s{ws_pair}, s96")
        self(f"s_addc_u32 s99, s{ws_pair+1}, 0")
        self("v_mbcnt_lo_u32_b32 v0, -1, 0")
        self("v_lshlrev_b32 v0, 2, v0")
        self("global_store_dword v0, v254, s[98:99]")
    def text(self):
        return "\n".join(self.lines) + "\n"

def kernel_header(name):
    return f""".text
.globl {name}
.p2align 8
.type {name},@function
{name}:
"""

def kernel_desc(name, vgpr, sgpr=102):
    acc = (vgpr + 3) // 4 * 4
    return f""".section .rodata,"a"
.p2align 6
.amdhsa_kernel {name}
  .amdhsa_next_free_vgpr {vgpr}
  .amdhsa_next_free_sgpr {sgpr}
  .amdhsa_accum_offset {acc}
  .amdhsa_group_segment_fixed_size 0
  .amdhsa_kernarg_size 128
  .amdhsa_user_sgpr_count 2
  .amdhsa_user_sgpr_kernarg_segment_ptr 1
  .amdhsa_system_sgpr_workgroup_id_x 1
.end_amdhsa_kernel
"""
```

```python
import sys, math, os
import numpy as np
from dsl import *

NAME = "gated_mix__mha_block__ssm_conv_s4__prompt"
KTS = 28672; VTS = 32256; XTS = 7296
KF = 0x000000
VF = 0x200000
XT = 0x400000
GO = 0x5D0000
WOF = 0x600000
OF = 0x880000
BT = 0x690000
FL = 0x670000
F_KV = FL
F_O = FL + 256 * 128
F_XT = FL + 384 * 128
F_G = FL + 416 * 128
F_B = FL + 480 * 128
F_WO = FL + 496 * 128
WS_SIZE = 0xA90000
X_BYTES = 2048 * 896
W_BYTES = 448 * 2688
LOG2E = 1.4426950408889634
QSCALE = LOG2E * 28 ** -0.5
MF32 = "v_mfma_f32_32x32x16_bf16"
MF16 = "v_mfma_f32_16x16x32_bf16"
SC = " sc1"
NON = 60
POLLMAX = 40000
EXP = os.environ.get("EXP", "")
DLY = int(os.environ.get("DLY", "32"))
DEPTH = int(os.environ.get("DEPTH", "3"))
PA = int(os.environ.get("PA", "2")); PB = int(os.environ.get("PB", "3")); PC = int(os.environ.get("PC", "3"))
P_X, P_W, P_WO, P_PAR, P_LDT, P_DSK, P_GW, P_OUT, P_DBG, P_WS = 64, 66, 68, 72, 84, 86, 88, 90, 92, 94
VZ = 255

uid = [0]
def fin(a, idx):
    if not os.environ.get("STAMP"): return
    a("s_waitcnt vmcnt(0)")
    a.stamp(idx)
    dw = os.environ.get("DBGWG")
    if dw:
        uid[0] += 1; u = uid[0]
        a("s_lshl_b32 s96, s2, 2")
        a("s_add_u32 s96, s96, s24")
        a(f"s_cmp_lg_u32 s96, {int(dw)*4}")
        a(f"s_cbranch_scc1 DG{u}")
        a("s_mov_b64 exec, -1")
        a("v_readlane_b32 s97, v254, 1")
        a("v_mbcnt_lo_u32_b32 v0, -1, 0")
        a("v_lshlrev_b32 v1, 1, v0")
        a("v_subrev_u32 v254, s97, v254")
        a("v_and_b32 v1, -4, v1")
        a("s_mov_b32 exec_lo, 0xaaaaaaa8")
        a("s_mov_b32 exec_hi, 0")
        a(f"global_store_dword v1, v254, {sr(P_DBG,2)}")
        a.label(f"DG{u}")
        return
    a.stamp_flush(P_WS)

def cmul(a, d, x, y, phase):
    if phase == 0:
        a(f"v_pk_mul_f32 {vr(d,2)}, {vr(x,2)}, {vr(y,2)} op_sel_hi:[0,1]")
    else:
        a(f"v_pk_fma_f32 {vr(d,2)}, {vr(x,2)}, {vr(y,2)}, {vr(d,2)} op_sel:[1,1,0] op_sel_hi:[1,0,1] neg_lo:[1,0,0]")

def nonce_issue(a, v, allw=False):
    uid[0] += 1; u = uid[0]
    if not allw:
        a("s_cmp_lg_u32 s24, 0")
        a(f"s_cbranch_scc1 NI{u}")
    a(f"global_load_dword v{v}, v{VZ}, {sr(P_DBG,2)}{os.environ.get('NSC', ' sc1')}")
    a.label(f"NI{u}")

def nonce_take(a, v, allw=False):
    uid[0] += 1; u = uid[0]
    if not allw:
        a("s_cmp_lg_u32 s24, 0")
        a(f"s_cbranch_scc1 ND{u}")
    a(f"s_mov_b32 s62, {POLLMAX}")
    a.label(f"NT{u}")
    a(f"v_readfirstlane_b32 s{NON}, v{v}")
    a("s_nop 1")
    a(f"s_cmp_ge_u32 s{NON}, 8")
    a(f"s_cbranch_scc1 ND{u}")
    a("s_sub_u32 s62, s62, 1")
    a(f"s_cbranch_scc1 ND{u}")
    a("s_sleep 8")
    a(f"global_load_dword v{v}, v{VZ}, {sr(P_DBG,2)} sc1")
    a("s_waitcnt vmcnt(0)")
    a(f"s_branch NT{u}")
    a.label(f"ND{u}")

def cnt_load(a, vd, soff):
    a(f"v_mov_b32 v{vd}, 0")
    a("s_mov_b64 exec, 1")
    t = a.vm(f"buffer_atomic_add v{vd}, v{VZ}, s[20:23], {soff} offen sc0 sc1")
    a("s_mov_b64 exec, -1")
    return t

def cnt_wait(a, vd, soff, target, sleep=1):
    uid[0] += 1; u = uid[0]
    a(f"s_mov_b32 s62, {POLLMAX}")
    a.label(f"FC{u}")
    a(f"v_readfirstlane_b32 s4, v{vd}")
    a("s_nop 1")
    a(f"s_cmp_eq_u32 s4, {target}")
    a(f"s_cbranch_scc1 FD{u}")
    a("s_sub_u32 s62, s62, 1")
    a(f"s_cbranch_scc1 FD{u}")
    a(f"s_sleep {sleep}")
    n0 = a.nvm
    cnt_load(a, vd, soff)
    a.nvm = n0
    a("s_waitcnt vmcnt(0)")
    a(f"s_branch FC{u}")
    a.label(f"FD{u}")

def cnt_add(a, vt, soff, va=None, mask="1"):
    a(f"v_mov_b32 v{vt}, 1")
    a(f"s_mov_b64 exec, {mask}")
    a.vm(f"buffer_atomic_add v{vt}, v{VZ if va is None else va}, s[20:23], {soff} offen sc1")
    a("s_mov_b64 exec, -1")

def late_load(a, vd, va):
    a("s_mov_b64 exec, 7")
    a(f"buffer_load_dword v{vd}, v{va}, s[20:23], 0 offen sc1")
    a("s_mov_b64 exec, -1")

def late_check(a, vd, va, vtgt):
    if "nochk" in EXP: return
    uid[0] += 1; u = uid[0]
    a(f"s_mov_b32 s62, {POLLMAX}")
    a.label(f"FC{u}")
    a(f"v_cmp_ne_u32 vcc, v{vd}, v{vtgt}")
    a("s_nop 1")
    a("s_and_b32 s4, vcc_lo, 7")
    a(f"s_cbranch_scc0 FD{u}")
    a("s_sub_u32 s62, s62, 1")
    a(f"s_cbranch_scc1 FD{u}")
    a("s_sleep 16")
    late_load(a, vd, va)
    a("s_waitcnt vmcnt(0)")
    a(f"s_branch FC{u}")
    a.label(f"FD{u}")

RAW = 244
XRW = 232

def gen_entry(a):
    a("s_cmp_ge_u32 s2, 512")
    a("s_cbranch_scc1 L_END")
    a.stamp(0)
    if "dblspan" in EXP: a("s_memrealtime s[100:101]")
    a("s_load_dwordx16 s[64:79], s[0:1], 0")
    a("s_load_dwordx16 s[80:95], s[0:1], 64")
    if "nopf" not in EXP:
        a("s_cmp_lt_u32 s2, 504")
        a("s_cbranch_scc1 E_NOPF")
        a("s_getpc_b64 s[4:5]")
        a.label("E_PC")
        a("v_lshlrev_b32 v4, 7, v0")
        a("v_min_u32 v4, L_END-E_PC, v4")
        a("v_mov_b32 v5, s5")
        a("v_add_co_u32 v4, vcc, s4, v4")
        a("s_nop 1")
        a("v_addc_co_u32 v5, vcc, 0, v5, vcc")
        a("global_load_dword v6, v[4:5], off")
        a.label("E_NOPF")
    a("v_lshrrev_b32 v13, 6, v0")
    a("v_and_b32 v1, 63, v0")
    a("v_lshlrev_b32 v2, 4, v1")
    a(f"v_mov_b32 v{VZ}, 0")
    a("v_readfirstlane_b32 s24, v13")
    a("s_and_b32 s31, s2, 7")
    a("s_bfe_u32 s32, s2, 0x50003")
    a("s_cmp_ge_u32 s2, 256")
    a("s_cbranch_scc1 L_A")
    a("s_and_b32 s27, s24, 1")
    a("s_cmp_ge_u32 s32, 28")
    a("s_cbranch_scc1 L_C")
    a("s_setprio 3")
    a("s_lshl_b32 s39, s32, 1")
    a("s_and_b32 s34, s31, 3")
    a("s_mul_i32 s34, s34, 56")
    a("s_add_u32 s26, s39, s34")
    a("s_lshr_b32 s34, s24, 1")
    a("s_add_u32 s26, s26, s34")
    a("s_lshl_b32 s26, s26, 1")
    a("s_lshr_b32 s34, s31, 2")
    a("s_add_u32 s26, s26, s34")
    a("s_lshl_b32 s33, s26, 9")
    a("s_lshl_b32 s34, s27, 8")
    a("s_add_u32 s33, s33, s34")
    a("v_lshlrev_b32 v3, 2, v1")
    a("v_add_u32 v13, s33, v3")
    a("s_lshl_b32 s34, s26, 1")
    a("s_and_b32 s34, s34, -4")
    a("v_lshlrev_b32 v4, 7, v0")
    a("s_lshl_b32 s33, s2, 15")
    a(f"s_add_u32 s33, s33, {FL}")
    a("s_waitcnt lgkmcnt(0)")
    a.srd(20, P_WS, WS_SIZE)
    a("s_cmp_ge_u32 s2, 2")
    a("s_cbranch_scc1 E_NOINIT")
    a(f"buffer_store_dword v{VZ}, v4, s[20:23], s33 offen sc1")
    a.label("E_NOINIT")
    for i in range(6):
        a(f"global_load_dword v{RAW+i}, v13, {sr(P_PAR+2*i,2)}")
    a(f"s_load_dword s28, {sr(P_LDT,2)}, s34")
    a(f"s_load_dword s38, {sr(P_DSK,2)}, s34")
    a("s_branch L_B")

def gen_A(a):
    a.label("L_A")
    if "noA" in EXP: a("s_endpgm")
    a(f"s_setprio {PA}")
    if "dA" in EXP: a(f"s_sleep {DLY}")
    a("s_lshr_b32 s33, s31, 1")
    a("s_lshl_b32 s33, s33, 2")
    a("s_and_b32 s34, s32, 3")
    a("s_add_u32 s25, s33, s34")
    a("s_and_b32 s27, s31, 1")
    a("s_lshr_b32 s54, s32, 2")
    a("s_lshl_b32 s33, s27, 3")
    a("s_add_u32 s26, s33, s54")
    XR, ACC, QACC, WF, NV, PK, T = 16, 128, 128, 176, 248, 224, 240
    XL = 32768
    a("s_lshl_b32 s33, s25, 2")
    a("s_add_u32 s35, s33, s24")
    a("s_mul_i32 s33, s35, 28672")
    a("v_lshrrev_b32 v13, 3, v1")
    a("v_mul_u32_u24 v12, 896, v13")
    a("v_and_b32 v14, 7, v1")
    a("v_lshrrev_b32 v15, 4, v1")
    a("v_xor_b32 v15, v15, v14")
    a("v_lshl_add_u32 v3, v15, 4, v12")
    a("v_add_u32 v3, s33, v3")
    a("v_xor_b32 v246, 64, v3")
    a(f"v_add_u32 v244, {6144}, v246")
    a(f"v_add_u32 v245, {6144*2}, v3")
    a(f"v_add_u32 v246, {6144*3}, v246")
    a("s_mul_i32 s40, s24, 12288")
    a(f"s_add_u32 s40, s40, {XL}")
    a("s_lshl_b32 s33, s34, 1")
    a("s_add_u32 s28, s33, s54")
    a("s_sub_u32 s33, s28, 7")
    a("s_cmp_ge_u32 s28, 7")
    a("s_cselect_b32 s28, s33, s28")
    ROT = int(os.environ.get("ROT", "7"))
    if ROT == 1: a("s_mov_b32 s28, 0")
    if ROT == 2:
        a("s_add_u32 s28, s34, s54"); a("s_and_b32 s28, s28, 1"); a("s_mul_i32 s28, s28, 3")
    if ROT == 4:
        a("s_add_u32 s28, s34, s54"); a("s_and_b32 s28, s28, 3"); a("s_lshl_b32 s28, s28, 1")
    if ROT == 8:
        a("s_min_u32 s28, s31, 6")
    a("s_lshl_b32 s29, s28, 7")
    a("s_mul_i32 s37, s28, 172032")
    a("s_mov_b32 s39, s37")
    a("v_bfe_u32 v15, v1, 4, 1")
    a("v_lshlrev_b32 v15, 2, v15")
    a("v_xor_b32 v15, v15, v14")
    a("v_mul_u32_u24 v4, 2688, v13")
    a("v_lshl_add_u32 v4, v15, 4, v4")
    a("s_min_u32 s55, s54, 6")
    a("s_mul_i32 s33, s24, 43008")
    a("s_mul_i32 s34, s27, 896")
    a("s_add_u32 s33, s33, s34")
    a("s_lshl_b32 s34, s55, 7")
    a("s_add_u32 s33, s33, s34")
    a("s_add_u32 s33, s33, 896")
    a("v_add_u32 v4, s33, v4")
    a(f"v_add_u32 v5, {21504-1024}, v4")
    a("s_lshl_b32 s36, s24, 11")
    a("s_lshl_b32 s47, s25, 4")
    a("s_add_u32 s47, s47, s26")
    a("s_mul_i32 s48, s47, 7168")
    a("s_mul_i32 s33, s24, 224")
    a("s_add_u32 s48, s48, s33")
    a("s_add_u32 s49, s48, 3584")
    a("v_lshlrev_b32 v7, 2, v1")
    a("s_waitcnt lgkmcnt(0)")
    a.stamp(1)
    if "dK1" in EXP: a(f"s_sleep {DLY}")
    if "dK2" in EXP: a("s_sleep 64")
    if "dK4" in EXP: a("s_sleep 127")
    a.srd(12, P_X, X_BYTES)
    a.srd(16, P_W, W_BYTES)
    def adv(r):
        a(f"s_add_u32 s{r}, s{r}, 1")
        a(f"s_cmp_eq_u32 s{r}, 7")
        a(f"s_cselect_b32 s{r}, 0, s{r}")
    QD = int(os.environ.get("QD", "8"))
    L = []
    for s_ in range(7):
        L += [("x", s_, 0), ("x", s_, 1), ("x", s_, 2), ("x", s_, 3), ("w", s_, 0), ("w", s_, 1)]
    L += [("q", i, 0) for i in range(7)]
    tag = {}; tagxf = {}
    L0 = list(L)
    lastbar = [-1]; xfree = [-1]; light = [False]; m0 = [None]
    def setm0(base, off):
        if m0[0] != (base, off):
            a(f"s_add_u32 m0, {base}, {off}")
            m0[0] = (base, off)
            return True
        return False
    def issue():
        seen = set()
        for e in L:
            k, s_, n = e
            if k in seen: continue
            seen.add(k)
            if k in "nq" and ("x" in seen or "w" in seen): return
            need = {"x": s_ - 3, "q": 4 + (s_ >> 2)}.get(k, -1)
            if need > xfree[0]: continue
            if k == "w" and s_ >= 4 and lastbar[0] < s_ - 2: continue
            break
        else:
            return
        L.remove(e)
        if k == "x":
            ch = setm0("s40", (s_ % 3) * 4096)
            if n == 0 and s_:
                a("s_add_u32 s29, s29, 128")
                a("s_cmp_eq_u32 s29, 896")
                a("s_cselect_b32 s29, 0, s29")
            elif ch: a("s_nop 0")
            tag[e] = a.vm(f"buffer_load_dwordx4 v{3 if n == 0 else 243+n}, s[12:15], s29 offen offset:{1024*n} lds")
        elif k == "w":
            ch = setm0("s36", (s_ % 4) * 8192)
            if n == 0 and s_:
                a("s_add_u32 s37, s37, 172032")
                a(f"s_cmp_eq_u32 s37, {7*172032}")
                a("s_cselect_b32 s37, 0, s37")
            elif ch: a("s_nop 0")
            tag[e] = a.vm(f"buffer_load_dwordx4 v{4+n}, s[16:19], s37 offen offset:{1024*n} lds")
        elif k == "n":
            nonce_issue(a, NV)
        else:
            setm0("s40", 4096 + 1024 * s_)
            if s_:
                a("s_add_u32 s39, s39, 172032")
                a(f"s_cmp_eq_u32 s39, {7*172032}")
                a("s_cselect_b32 s39, 0, s39")
            else: a("s_nop 0")
            a.vm(f"buffer_load_dwordx4 v14, s[16:19], s39 offen lds")
    XL_ = int(os.environ.get("XL", "1"))
    def xt_rows():
        for r in range(8):
            a.vm(f"buffer_load_dword v{ACC+r}, v7, s[12:15], s{48+(r>>2)} offen offset:{896*(r&3)}")
        return a.nvm
    if not XL_: rowtag = xt_rows()
    nvm_light = a.nvm
    a.srd(20, P_WS, WS_SIZE)
    a("s_cmp_eq_u32 s54, 7")
    a("s_cbranch_scc1 A_GOL")
    for _ in range(QD): issue()
    a.label("A_GO")
    if XL_:
        assert QD == 8
        rowtag = xt_rows()
    if "tlb" in EXP:
        a("s_cmp_lg_u32 s24, 0")
        a("s_cbranch_scc1 A_NOTLB")
        for i, ad in enumerate((0x1fff80, 0x3fff80, 0x5fff80, 0x680000, 0x860000, 0xA80000)):
            a(f"s_mov_b32 s33, {hex(ad)}")
            a(f"v_writelane_b32 v6, s33, {i}")
        a("s_mov_b64 exec, 63")
        a("buffer_load_dword v7, v6, s[20:23], 0 offen")
        a("s_mov_b64 exec, 1")
        a(f"global_load_dword v7, v{VZ}, {sr(P_OUT,2)}")
        a("s_mov_b64 exec, -1")
        a.label("A_NOTLB")
    if "stopA" in EXP: a.stamp(7)
    if "Aload" in EXP:
        a("s_waitcnt vmcnt(0)"); a("s_endpgm")
    a("v_and_b32 v13, 31, v1")
    a("v_bfe_u32 v14, v1, 1, 3")
    a("v_lshrrev_b32 v15, 5, v1")
    a("v_xor_b32 v14, v14, v15")
    a("v_lshlrev_b32 v13, 7, v13")
    a("v_lshl_add_u32 v8, v14, 4, v13")
    a("v_add_u32 v8, s40, v8")
    for ks in range(1, 4):
        a(f"v_xor_b32 v{8+ks}, {32*ks}, v8")
    a(f"v_bfe_u32 v{T}, v1, 2, 2")
    a(f"v_lshl_add_u32 v{T+1}, v15, 3, v{T}")
    a(f"v_bfe_u32 v{T+2}, v1, 4, 1")
    a(f"v_and_b32 v{T+3}, 3, v1")
    a(f"v_lshl_add_u32 v{PK}, v{T+2}, 2, v{T+3}")
    a(f"v_and_b32 v{PK+1}, 1, v1")
    a(f"v_bfe_u32 v{PK+2}, v1, 1, 1")
    a(f"v_lshl_add_u32 v{PK+1}, v{PK+1}, 1, v{PK+2}")
    a(f"v_lshl_add_u32 v{PK+1}, v{T+2}, 2, v{PK+1}")
    a(f"v_bfe_u32 v{T+3}, v1, 3, 1")
    a(f"v_lshlrev_b32 v{T+3}, 6, v{T+3}")
    a(f"v_lshl_add_u32 v{T+3}, v{T+1}, 7, v{T+3}")
    a("s_cmp_eq_u32 s27, 1")
    a("s_cselect_b64 vcc, -1, 0")
    a(f"v_cndmask_b32 v12, v{PK+1}, v{PK}, vcc")
    a(f"v_lshl_add_u32 v12, v12, 3, v{T+3}")
    a("v_xor_b32 v13, 64, v12")
    a(f"v_add_u32 v{PK+2}, 2, v{PK+1}")
    a(f"v_sub_u32 v{PK+3}, 7, v{PK+1}")
    a(f"v_cmp_gt_u32 vcc, 6, v{PK+1}")
    a("s_bitcmp1_b32 s26, 0")
    a("s_cselect_b64 s[4:5], -1, 0")
    a(f"v_cndmask_b32 v{PK+2}, v{PK+3}, v{PK+2}, vcc")
    a(f"v_cndmask_b32 v{PK+2}, v{PK+1}, v{PK+2}, s[4:5]")
    a(f"v_lshlrev_b32 v15, 6, v{T+1}")
    a(f"v_lshl_add_u32 v15, v{PK+2}, 3, v15")
    a(f"v_add_u32 v15, {XL + 4096}, v15")
    a("v_lshrrev_b32 v14, 2, v1")
    a("v_mul_u32_u24 v14, 2688, v14")
    a(f"v_and_b32 v{T}, 3, v1")
    a(f"v_lshl_add_u32 v14, v{T}, 4, v14")
    a("s_mul_i32 s33, s26, 56")
    a("s_and_b32 s33, s33, -16")
    a(f"s_mul_i32 s34, s24, {16*2688}")
    a("s_add_u32 s33, s33, s34")
    a("v_add_u32 v14, s33, v14")
    a("s_mul_i32 s33, s54, 2341")
    a("s_lshr_b32 s33, s33, 10")
    a(f"v_add_u32 v{PK}, s33, v1")
    a(f"v_mul_u32_u24 v{PK+1}, 28, v{PK}")
    a(f"v_lshrrev_b32 v{PK+1}, 6, v{PK+1}")
    a(f"v_cmp_ge_u32 s[56:57], s54, v{PK+1}")
    a(f"v_lshlrev_b32 v243, 11, v{PK}")
    a("s_lshl_b32 s42, s25, 7")
    a(f"s_add_u32 s42, s42, {F_KV}")
    a("s_and_b64 s[56:57], s[56:57], 15")
    a(f"s_mul_i32 s48, s47, {XTS}")
    a("s_mul_i32 s33, s24, 896")
    a("s_add_u32 s48, s48, s33")
    a(f"s_add_u32 s48, s48, {XT}")
    a("s_lshr_b32 s49, s25, 2")
    a("s_lshl_b32 s49, s49, 10")
    a(f"s_add_u32 s49, s49, {F_XT}")
    a("v_lshlrev_b32 v7, 7, v1")
    a("s_mov_b32 s50, 0x05040100")
    a("s_mov_b32 s51, 0x07060302")
    def xt_store():
        a.wait_vm(rowtag)
        a("s_mov_b32 exec_hi, 0xffffff")
        for e in range(2):
            for q in range(4):
                a(f"v_perm_b32 v{ACC+8+4*e+q}, v{ACC+2*q+1}, v{ACC+2*q}, s{50+e}")
            a.vm(f"buffer_store_dwordx4 {vr(ACC+8+4*e,4)}, v2, s[20:23], s48 offen offset:{3584*e}{SC}")
        a("s_mov_b64 exec, -1")
    def xt_pub(tg_):
        nonce_take(a, NV)
        a("s_cmp_lg_u32 s24, 0")
        a(f"s_cbranch_scc1 XP{tg_}")
        n0 = a.nvm
        cnt_add(a, NV + 1, "s49", 7, "0xff")
        a.nvm = n0
        a.label(f"XP{tg_}")
    a("s_cmp_eq_u32 s54, 7")
    a("s_cbranch_scc1 A_LIGHT")
    a("s_cmp_eq_u32 s27, 1")
    a("s_cbranch_scc1 A_V")

    def pass1(vtype):
        tagtr = {}
        NB = 6; TD = 3
        NIS = int(os.environ.get("NIS", "2"))
        def trload(u, t):
            s, ks = u >> 2, u & 3
            for hr in range(2):
                off = (s % 4) * 8192 + (16 * ks + 4 * hr) * 128
                tagtr[u] = a.ds(f"ds_read_b64_tr_b16 {vr(WF+(u%NB)*8+4*t+2*hr,2)}, v{12+t} offset:{off}")
        def mfma(u, t):
            wf = vr(WF + (u % NB) * 8 + 4 * t, 4); xf = vr(XR + 4 * u, 4)
            c = "0" if u == 0 else vr(ACC + 16 * t, 16)
            a(f"{MF32} {vr(ACC+16*t,16)}, {xf}, {wf}, {c}" if vtype else f"{MF32} {vr(ACC+16*t,16)}, {wf}, {xf}, {c}")
        pend = None; ntag = [0]
        for _ in range(int(os.environ.get("QD2", "6"))): issue()
        XB_ = int(os.environ.get("XB", "3"))
        XS_ = int(os.environ.get("XS", "-2"))
        if XS_ == -5: xt_store()
        for u in range(-4, 28):
            if u >= 0:
                a.wait_ds(max(tagtr[u], tagxf[u >> 2]))
                mfma(u, 0)
            issue()
            if (u + TD) % 4 == 0 and (u + TD) // 4 < 7:
                sb = (u + TD) // 4
                a.wait_vm(max(tag[("w", sb, 1)], ntag[0] + 1) if sb == XB_ else tag[("w", sb, 1)])
                a("s_barrier")
                lastbar[0] = sb
                if sb == 0:
                    nonce_issue(a, NV); ntag[0] = a.nvm
                if sb == XB_: xt_pub("V" if vtype else "K")
                if sb in (0, 6): a.stamp(2 + sb // 6)
            if 0 <= u + TD < 28: trload(u + TD, 0)
            if u >= 0: mfma(u, 1)
            if pend is not None:
                a.wait_ds(tagxf[pend]); xfree[0] = pend; pend = None
            for _ in range(NIS - 1): issue()
            if 0 <= u + TD < 28: trload(u + TD, 1)
            if u % 4 == 0 and u // 4 + 1 < 7:
                s = u // 4 + 1
                a.wait_vm(tag[("x", s, 3)])
                for ks in range(4):
                    tagxf[s] = a.ds(f"ds_read_b128 {vr(XR+16*s+4*ks,4)}, v{8+ks} offset:{(s%3)*4096}")
                pend = s
            if u == XS_:
                xt_store(); ntag[0] = max(ntag[0], a.nvm)
        assert not L, L
    saved = (a.nvm, a.nds, list(L), m0[0])
    a("v_mov_b32 v247, v2")
    a(f"s_mul_i32 s38, s35, {KTS}")
    a("s_lshl_b32 s33, s55, 12")
    a("s_add_u32 s38, s38, s33")
    a("s_add_u32 s41, s38, 1024")
    a("s_add_u32 s43, s38, 2048")
    a("s_add_u32 s44, s38, 3072")
    pass1(False)
    a("s_branch A_ST")
    a.label("A_V")
    a.nvm, a.nds, L[:], m0[0] = saved; lastbar[0] = -1; xfree[0] = -1
    a("v_lshrrev_b32 v247, 5, v1")
    a(f"v_mul_u32_u24 v247, {8064-512}, v247")
    a("v_add_u32 v247, v247, v2")
    a(f"s_mul_i32 s38, s35, {VTS}")
    a("s_mul_i32 s33, s55, 1152")
    a("s_add_u32 s38, s38, s33")
    a(f"s_add_u32 s38, s38, {VF}")
    a("s_add_u32 s41, s38, 16128")
    a("s_add_u32 s43, s38, 512")
    a("s_add_u32 s44, s41, 512")
    a(f"v_lshrrev_b32 v{T}, 1, v1")
    a(f"v_mul_u32_u24 v{T}, 8064, v{T}")
    a(f"v_and_b32 v{T+1}, 1, v1")
    a(f"v_lshl_add_u32 v{T}, v{T+1}, 4, v{T}")
    a(f"v_subrev_u32 v{T+1}, 1, v{T+1}")
    for i in range(4):
        a(f"v_and_b32 v{PK+i}, 0x3f803f80, v{T+1}")
    a("s_mov_b64 exec, 0xff")
    a(f"buffer_store_dwordx4 {vr(PK,4)}, v{T}, s[20:23], s38 offen offset:1024{SC}")
    a("s_mov_b64 exec, -1")
    pass1(True)
    a.label("A_ST")
    a.nop(11)
    for t in range(2):
        for r in range(0, 16, 2):
            a(f"v_cvt_pk_bf16_f32 v{PK+8*t+r//2}, v{ACC+16*t+r}, v{ACC+16*t+r+1}")
        for f in range(2):
            a(f"buffer_store_dwordx4 {vr(PK+8*t+4*f,4)}, v247, s[20:23], s{(38,41,43,44)[2*t+f]} offen{SC}")
    a("s_waitcnt vmcnt(4)")
    a("s_branch A_P2")
    lslot = {0: ("s40", 0), 1: ("s40", 4096), 2: ("s40", 8192), 3: ("s36", 0), 4: ("s36", 4096), 5: ("s40", 0), 6: ("s36", 0)}
    ltag = {}
    def lx(s_):
        a(f"s_add_u32 m0, {lslot[s_][0]}, {lslot[s_][1]}")
        if s_:
            a("s_add_u32 s29, s29, 128")
            a("s_cmp_eq_u32 s29, 896")
            a("s_cselect_b32 s29, 0, s29")
        else: a("s_nop 0")
        for n in range(4):
            ltag[s_] = a.vm(f"buffer_load_dwordx4 v{3 if n == 0 else 243+n}, s[12:15], s29 offen offset:{1024*n} lds")
    def lq(i):
        a(f"s_add_u32 m0, s40, {4096 + 1024*i}")
        if i:
            a("s_add_u32 s39, s39, 172032")
            a(f"s_cmp_eq_u32 s39, {7*172032}")
            a("s_cselect_b32 s39, 0, s39")
        else: a("s_nop 0")
        a.vm(f"buffer_load_dwordx4 v14, s[16:19], s39 offen lds")
    a.label("A_GOL")
    a.nvm = nvm_light
    a("s_lshl_b32 s36, s24, 13")
    LE = int(os.environ.get("LE", "2"))
    for s_ in range(LE): lx(s_)
    a("s_branch A_GO")
    a.label("A_LIGHT")
    if XL_:
        assert LE == 2
        a.nvm += 8
    for s_ in range(LE, 5):
        if s_ == 3:
            xt_store()
            nonce_issue(a, NV)
        lx(s_)
    a("s_sub_u32 s33, s36, s40")
    LA = (4, 5, 12, 13)
    for ks in range(4):
        a(f"v_add_u32 v{LA[ks]}, s33, v{8+ks}")
    for s_ in range(7):
        a.wait_vm(ltag[s_])
        for ks in range(4):
            a(f"ds_read_b128 {vr(XR+16*s_+4*ks,4)}, v{(8+ks) if lslot[s_][0] == 's40' else LA[ks]} offset:{lslot[s_][1]}")
        if s_ < 4: a("s_waitcnt lgkmcnt(0)")
        if s_ == 0: lx(5)
        if s_ == 1:
            for i in range(4): lq(i)
        if s_ == 2:
            for i in range(4, 7): lq(i)
        if s_ == 3:
            lx(6)
            a("s_barrier")
            xt_pub("L")
    a("s_waitcnt vmcnt(0) lgkmcnt(0)")
    a.label("A_P2")
    if "dP" in EXP: a(f"s_sleep {DLY}")
    a.stamp(4)
    nonce_take(a, NV)
    a("s_barrier")
    Q, O, S, P, KB, VB, NM, MX, T2 = 16, 48, 112, 144, 160, 192, 224, 228, 232
    VK0, VK1, VV0, VV1, C1, C2 = 10, 11, 12, 13, 252, 253
    class Rec:
        def __init__(self): self.ch = []
        def __call__(self, *ins): self.ch.append(list(ins))
    c = Rec()
    c("s_mul_i32 s33, s26, 28"); c("s_lshr_b32 s44, s33, 6"); c("s_add_u32 s34, s33, 27"); c("s_lshr_b32 s34, s34, 6")
    c("s_sub_u32 s34, s34, s44"); c("s_lshl_b32 s34, s34, 1"); c("s_add_u32 s58, s34, 2")
    c("v_lshrrev_b32 v4, 5, v1")
    c("v_lshlrev_b32 v249, 9, v1"); c(f"v_mov_b32 v{NV+2}, 0")
    c("s_lshl_b32 s34, s26, 11"); c("s_lshl_b32 s36, s24, 7"); c("s_add_u32 s34, s34, s36"); c(f"s_add_u32 s53, s34, {F_KV}")
    c(f"s_mov_b32 s46, {hex(f2u(QSCALE))}"); c("s_mov_b32 s47, s46")
    c("s_lshl_b32 s36, s24, 11"); c("s_add_u32 s36, s36, 49152"); c("v_add_u32 v6, s36, v2")
    for t in range(1, 4): c(f"v_xor_b32 v{6+t}, {2048*t}, v6")
    c("s_lshr_b32 s34, s26, 1"); c("s_mul_i32 s34, s34, 3584"); c("s_and_b32 s36, s26, 1"); c("s_lshl_b32 s37, s36, 11")
    c("s_add_u32 s34, s34, s37"); c(f"v_add_u32 v{VK0}, s34, v2"); c(f"v_add_u32 v{VK1}, 1024, v{VK0}")
    c(f"s_mul_i32 s37, s36, {2048-8}")
    c("s_mov_b32 exec_lo, 0", f"v_subrev_u32 v{VK1}, s37, v{VK1}", "s_mov_b32 exec_lo, -1")
    c("v_and_b32 v5, 31, v1"); c("v_add_u32 v3, s33, v5"); c("v_lshrrev_b32 v5, 6, v3"); c("v_lshlrev_b32 v5, 7, v5")
    c(f"v_lshl_add_u32 v{VV0}, v3, 4, v5")
    c("s_mul_i32 s34, s44, 1152"); c("s_add_u32 s34, s34, 1024"); c("s_add_u32 s37, s34, 16")
    c("s_mov_b32 exec_lo, 0xf0000000", "s_mov_b32 exec_hi, 0xf0000000", f"v_mov_b32 v{VV0}, s37", "s_mov_b64 exec, -1")
    c(f"v_writelane_b32 v{VV0}, s34, 28"); c(f"v_writelane_b32 v{VV0}, s34, 60")
    c("s_movk_i32 s34, 8064"); c(f"v_mad_u32_u24 v{VV0}, v4, s34, v{VV0}"); c(f"v_add_u32 v{VV1}, 16128, v{VV0}")
    c(f"s_mul_i32 s34, s24, {4*KTS}"); c(f"s_mul_i32 s37, s24, {4*VTS}"); c(f"s_add_u32 s37, s37, {VF}")
    for d, sz, off in ((12, 52 * KTS, "s34"), (16, 52 * VTS, "s37")):
        c(f"s_add_u32 s{d}, s{P_WS}, {off}", f"s_addc_u32 s{d+1}, s{P_WS+1}, 0")
        c(f"s_mov_b32 s{d+2}, {sz}"); c(f"s_mov_b32 s{d+3}, 0x00020000")
    c("s_mov_b32 s63, 15")
    c(f"v_mov_b32 v{C1}, 0x3f803f80"); c(f"v_mov_b32 v{C2}, 0x3f80")
    for r in range(8): c(f"v_mov_b32 v{VB+24+r}, 0")
    for t in range(4): c(f"v_mov_b32 v{NM+t}, 0")
    c("s_mov_b32 s41, 0")
    c("s_cmp_eq_u32 s54, 7", "s_cselect_b32 s59, 1, s24")
    PV_ = NV + 2
    def kv_poll():
        a("s_mov_b64 exec, 15")
        a(f"buffer_atomic_umax v{PV_}, v249, s[20:23], s53 offen sc0 sc1")
        a("s_mov_b64 exec, -1")
    def kv_pick(tagname):
        a(f"s_mov_b32 s62, {POLLMAX}")
        a.label(f"KP{tagname}")
        a(f"v_cmp_eq_u32 vcc, s58, v{PV_}")
        a("s_nop 1")
        a("s_and_b32 s5, vcc_lo, s63")
        a(f"s_cbranch_scc1 KD{tagname}")
        a("s_mov_b32 s5, s63")
        a("s_sub_u32 s62, s62, 1")
        a(f"s_cbranch_scc1 KD{tagname}")
        a("s_sleep 1")
        kv_poll()
        a("s_waitcnt vmcnt(0)")
        a(f"s_branch KP{tagname}")
        a.label(f"KD{tagname}")
        a("s_ff1_i32_b32 s59, s5")
        a("s_bitset0_b32 s63, s59")
        a("s_bitset0_b32 s5, s59")
    def first_loads():
        a(f"s_mul_i32 s44, s59, {16*KTS}")
        a(f"s_mul_i32 s45, s59, {16*VTS}")
        for kt in range(4):
            for f in range(2):
                r = a.vm(f"buffer_load_dwordx4 {vr(KB+8*kt+4*f,4)}, v{VK0+f}, s[12:15], s44 offen{SC}")
            if kt < 3: a(f"s_addk_i32 s44, {KTS}")
            if kt == 0: tag = r
            if kt < 3:
                for f in range(2):
                    a.vm(f"buffer_load_dwordx4 {vr(VB+8*kt+4*f,4)}, v{VV0+f}, s[16:19], s45 offen{SC}")
                a(f"s_addk_i32 s45, {VTS}")
        return tag
    def patch(kb):
        a(f"v_mov_b32_dpp v{kb+6}, v{C1} quad_perm:[0,1,2,3] row_mask:0xc bank_mask:0xf")
        a(f"v_mov_b32_dpp v{kb+7}, v{C2} quad_perm:[0,1,2,3] row_mask:0xc bank_mask:0xf")
    tq = {}
    def trq(u):
        for hr in range(2):
            tq[u] = a.ds(f"ds_read_b64_tr_b16 {vr(WF+(u%8)*4+2*hr,2)}, v15 offset:{(u&3)*12288+(u>>2)*1024+256*hr}")
    for u in range(6): trq(u)
    for u in range(28):
        if u + 6 < 28: trq(u + 6)
        a.wait_ds(tq[u])
        cc = "0" if u == 0 else vr(QACC, 16)
        a(f"{MF32} {vr(QACC,16)}, {vr(WF+(u%8)*4,4)}, {vr(XR+4*u,4)}, {cc}")
        n = 0
        while c.ch and n < (3 if u < 22 else 5):
            for ins in c.ch.pop(0): a(ins); n += 1
    assert not c.ch, len(c.ch)
    def zero_acc():
        for t in range(4):
            a(f"{MF32} {vr(O+16*t,16)}, {vr(VB+24,4)}, {vr(VB+24,4)}, 0")
    zero_acc()
    a("s_cmp_lg_u32 s59, 0")
    a("s_waitcnt vmcnt(0)")
    a("s_barrier")
    a("s_cbranch_scc1 A_NOPUB")
    cnt_add(a, NV, "s42", 243, "s[56:57]")
    a.label("A_NOPUB")
    a(f"s_setprio {os.environ.get('PQ', '2')}")
    a.stamp(5)
    if "stopA" in EXP:
        fin(a, 6); a("s_endpgm")
    kv_poll()
    a.nop(1)
    for r in range(16):
        a(f"v_mul_f32 v{QACC+r}, s46, v{QACC+r}")
    for r in range(0, 16, 2):
        a(f"v_cvt_pk_bf16_f32 v{Q+r//2}, v{QACC+r}, v{QACC+r+1}")
    a("s_mov_b32 exec_lo, 0")
    a(f"v_mov_b32 v{Q+6}, 0")
    a(f"v_mov_b32 v{Q+7}, 0")
    a("s_mov_b32 exec_lo, -1")
    for f in range(2):
        a(f"ds_write_b128 v6, {vr(Q+4*f,4)} offset:{1024*f}")
    a("s_waitcnt lgkmcnt(0)")
    a("s_barrier")
    for t in range(1, 4):
        for f in range(2):
            a(f"ds_read_b128 {vr(Q+8*t+4*f,4)}, v{6+t} offset:{1024*f}")
    a("s_mov_b32 s42, 0x07060302")
    a("s_min_u32 s33, s32, 27")
    a("s_and_b32 s34, s33, 3")
    a("s_lshl_b32 s47, s31, 2")
    a("s_add_u32 s47, s47, s34")
    a("s_lshr_b32 s48, s33, 2")
    a("s_lshr_b32 s49, s24, 1")
    a("s_lshl_b32 s33, s47, 1")
    a("s_add_u32 s49, s49, s33")
    a("s_and_b32 s50, s24, 1")
    a("s_lshl_b32 s33, s48, 1")
    a("s_add_u32 s50, s50, s33")
    a("v_bfe_u32 v5, v1, 2, 2")
    a("v_lshlrev_b32 v9, 7, v5")
    a("v_bfe_u32 v5, v1, 4, 1")
    a("v_lshl_add_u32 v9, v5, 6, v9")
    a("v_and_b32 v5, 3, v1")
    a("v_lshl_add_u32 v9, v5, 4, v9")
    a("v_lshl_add_u32 v9, v4, 9, v9")
    for t in range(1, 4):
        a(f"s_xor_b32 s33, s24, {t}")
        a("s_mul_i32 s33, s33, 12288")
        a(f"s_add_u32 s33, s33, {(t-1)*4096}")
        a(f"v_add_u32 v{3+t}, s33, v2")
    a("s_mul_i32 s33, s24, 12288")
    a("v_add_u32 v7, s33, v2")
    a("v_or_b32 v8, 512, v7")
    a("s_lshl_b32 s33, s35, 4")
    a("s_add_u32 s33, s33, s26")
    a("s_lshl_b32 s43, s33, 11")
    a(f"s_add_u32 s43, s43, {OF}")
    a("s_lshr_b32 s51, s35, 1")
    a("s_lshl_b32 s51, s51, 9")
    a("s_lshr_b32 s33, s26, 2")
    a("s_lshl_b32 s33, s33, 7")
    a("s_add_u32 s51, s51, s33")
    a(f"s_add_u32 s51, s51, {F_O}")
    a("s_lshl_b32 s33, s50, 7")
    a(f"s_add_u32 s33, s33, {F_B}")
    a("v_mov_b32 v14, s33")
    a("v_mov_b32 v15, 64")
    a("s_lshl_b32 s33, s49, 7")
    a(f"s_add_u32 s33, s33, {F_G}")
    a("v_writelane_b32 v14, s33, 1")
    a("v_writelane_b32 v15, 2, 1")
    a("s_lshl_b32 s33, s24, 7")
    a(f"s_add_u32 s33, s33, {F_WO}")
    a("v_writelane_b32 v14, s33, 2")
    a("v_writelane_b32 v15, 16, 2")
    a("s_waitcnt vmcnt(0)")
    kv_pick("A")
    a.stamp(6)
    tagk0 = first_loads()
    kv_poll()
    a.nvm += 1
    a("s_waitcnt lgkmcnt(0)")
    a.wait_vm(tagk0)
    a.stamp(7)
    if "dL" in EXP: a(f"s_sleep {DLY}")
    TT = [S + 16, T2, P, S]
    patch(KB)
    a("s_nop 0")
    def mx(t):
        a(f"v_max3_f32 v{MX+t}, v{TT[t]}, v{TT[t]+1}, v{TT[t]+2}")
        for i in range(1, 4):
            a(f"v_max3_f32 v{MX+t}, v{MX+t}, v{TT[t]+2*i+1}, v{TT[t]+2*i+2}")
    for t in range(4):
        a(f"{MF32} {vr(TT[t],16)}, {vr(KB,4)}, {vr(Q+8*t,4)}, 0")
        a(f"{MF32} {vr(TT[t],16)}, {vr(KB+4,4)}, {vr(Q+8*t+4,4)}, {vr(TT[t],16)}")
    a.nop(6)
    mx(0); mx(1); mx(2)
    mx(3)
    a.label("A_SETMAX")
    def setm(ts):
        for t in ts: a(f"v_sub_f32 v{NM+t}, v{NM+t}, v{MX+t}")
        for t in ts: a(f"v_and_b32 v{T2+t}, 0xffff0000, v{NM+t}")
        for t in ts: a(f"v_sub_f32 v{T2+t}, v{NM+t}, v{T2+t}")
        for t in ts: a(f"v_and_b32 v{T2+4+t}, 0xffff0000, v{T2+t}")
        for t in ts: a(f"v_sub_f32 v{T2+4+t}, v{T2+t}, v{T2+4+t}")
        for t in ts:
            a(f"v_perm_b32 v{Q+8*t+6}, v{T2+t}, v{NM+t}, s42")
            a(f"v_lshrrev_b32 v{Q+8*t+7}, 16, v{T2+4+t}")
    a("s_mov_b32 exec_lo, 0")
    setm((0, 1))
    a("s_mov_b32 exec_lo, -1")
    a(f"{MF32} {vr(S,16)}, {vr(KB,4)}, {vr(Q,4)}, 0")
    a(f"{MF32} {vr(S,16)}, {vr(KB+4,4)}, {vr(Q+4,4)}, {vr(S,16)}")
    a("s_mov_b32 exec_lo, 0")
    setm((2, 3))
    a("s_mov_b32 exec_lo, -1")
    for r in range(8):
        a(f"v_mov_b32 v{P+8+r}, 0")
    a("s_mov_b32 s46, 4")
    a(f"s_movk_i32 s60, {KTS}")
    a(f"s_movk_i32 s61, {VTS}")
    a(f"s_setprio {os.environ.get('PL', '1')}")
    a.label("A_LOOP")
    sh = {}
    for kt in range(4):
        b = 4 * kt
        for f in range(2):
            sh[(b, 2 + f)] = [f"buffer_load_dwordx4 {vr(VB+8*((kt-1)&3)+4*f,4)}, v{VV0+f}, s[16:19], s45 offen{SC}"]
            sh[(b + 2, 1 + f)] = [f"buffer_load_dwordx4 {vr(KB+8*kt+4*f,4)}, v{VK0+f}, s[12:15], s44 offen{SC}"]
        sh[(b + 1, 1)] = ["s_waitcnt vmcnt(12)"]
        sh[(b + 2, 3)] = ["s_waitcnt vmcnt(12)"]
        if kt: sh[(b + 1, 0)] = ["s_add_u32 s45, s45, s61"]
        if kt < 3: sh[(b + 3, 1)] = ["s_add_u32 s44, s44, s60"]
    sh[(1, 0)] = ["s_cmp_le_u32 s5, 128"]
    sh[(1, 2)] = ["s_cbranch_scc1 A_SLOW", "A_SLOWR:"]
    sh[(1, 3)] = ["s_ff1_i32_b32 s59, s5"]
    sh[(2, 0)] = [f"s_mul_i32 s44, s59, {16*KTS}"]
    sh[(3, 0)] = [f"s_mul_i32 s45, s59, {16*VTS}"]
    sh[(3, 2)] = ["s_bitset0_b32 s63, s59"]
    sh[(3, 3)] = ["s_bitset0_b32 s5, s59"]
    sh[(4, 0)] = ["s_cmp_le_u32 s46, 2"]
    sh[(4, 1)] = ["s_cbranch_scc1 A_LLOAD", "A_LLOADR:"]
    sh[(15, 2)] = ["s_sub_u32 s46, s46, 1"]
    sh[(15, 3)] = ["s_cmp_lg_u32 s46, 0"]
    for n in range(16):
        kt, t = n >> 2, n & 3
        n1 = (n + 1) & 15; kt1, t1 = n1 >> 2, n1 & 3
        n0 = (n - 1) & 15; kt0, t0 = n0 >> 2, n0 & 3
        sc = S + 16 * (n & 1); sn = S + 16 * (n1 & 1)
        pc = P + 8 * (n & 1); pp = P + 8 * (n0 & 1)
        mf = [f"{MF32} {vr(sn,16)}, {vr(KB+8*kt1,4)}, {vr(Q+8*t1,4)}, 0",
              f"{MF32} {vr(sn,16)}, {vr(KB+8*kt1+4,4)}, {vr(Q+8*t1+4,4)}, {vr(sn,16)}",
              f"{MF32} {vr(O+16*t0,16)}, {vr(VB+8*kt0,4)}, {vr(pp,4)}, {vr(O+16*t0,16)}",
              f"{MF32} {vr(O+16*t0,16)}, {vr(VB+8*kt0+4,4)}, {vr(pp+4,4)}, {vr(O+16*t0,16)}"]
        for m in range(4):
            a(mf[m])
            for ins in sh.get((n, m), []):
                if ins.endswith(":"): a.label(ins[:-1])
                else: a(ins)
            if m == 0 and t == 3:
                patch(KB + 8 * kt1)
            for e in range(4):
                a(f"v_exp_f32 v{sc+4*m+e}, v{sc+4*m+e}")
            for c_ in range(2):
                a(f"v_cvt_pk_bf16_f32 v{pc+2*m+c_}, v{sc+4*m+2*c_}, v{sc+4*m+2*c_+1}")
    a("s_cbranch_scc1 A_LOOP")
    a.stamp(8)
    if "dT" in EXP: a(f"s_sleep {DLY}")
    a("s_nop 0")
    a(f"{MF32} {vr(O+48,16)}, {vr(VB+24,4)}, {vr(P+8,4)}, {vr(O+48,16)}")
    a(f"{MF32} {vr(O+48,16)}, {vr(VB+28,4)}, {vr(P+12,4)}, {vr(O+48,16)}")
    a("v_mov_b32 v3, 0x5f800000")
    a("s_mov_b32 exec_lo, 0")
    for t in range(3):
        a(f"v_cmp_nlt_f32 {sr(4+2*t,2)}, v{O+16*t+12}, v3")
    for t in range(1, 3):
        a(f"v_mov_b32 v{O+16*t+13}, v{NM+t}")
    a("s_mov_b32 exec_lo, -1")
    for t in range(1, 3):
        for q in range(4):
            a(f"ds_write_b128 v{3+t}, {vr(O+16*t+4*q,4)} offset:{1024*q}")
    a("s_mov_b32 exec_lo, 0")
    a(f"v_cmp_nlt_f32 vcc, v{O+48+12}, v3")
    a(f"v_mov_b32 v{O+48+13}, v{NM+3}")
    a("s_mov_b32 exec_lo, -1")
    a("s_or_b32 s5, s5, s7")
    a("s_or_b32 s5, s5, s9")
    a("s_or_b32 s5, s5, vcc_hi")
    a("s_andn2_b32 s5, s5, s41")
    a("s_cbranch_scc1 A_FALLBACK")
    for q in range(4):
        a(f"ds_write_b128 v6, {vr(O+48+4*q,4)} offset:{1024*q}")
    a(f"v_mov_b32 v{T2}, v{O+12}")
    a(f"v_mov_b32 v{T2+1}, v{O+12}")
    a(f"v_mov_b32 v{T2+8}, v{NM}")
    a("v_add_u32 v10, 4096, v2")
    a("s_lshl_b32 s33, s24, 13")
    a(f"s_add_u32 s33, s33, {WOF}")
    a("s_lshl_b32 s36, s50, 15")
    a("s_add_u32 s36, s36, s33")
    a("s_xor_b32 s37, s50, 1")
    a("s_lshl_b32 s37, s37, 15")
    a("s_add_u32 s37, s37, s33")
    a("v_lshrrev_b32 v11, 5, v1")
    a("v_lshlrev_b32 v12, 6, v11")
    a("s_lshl_b32 s38, s49, 7")
    a(f"s_add_u32 s38, s38, {GO}")
    a("v_and_b32 v13, 31, v1")
    a("v_lshlrev_b32 v3, 12, v13")
    a("v_lshl_add_u32 v3, v11, 4, v3")
    a("s_lshl_b32 s39, s50, 17")
    a("s_lshr_b32 s34, s49, 4")
    a("s_lshl_b32 s34, s34, 10")
    a("s_add_u32 s39, s39, s34")
    a("s_and_b32 s34, s49, 15")
    a("s_lshl_b32 s34, s34, 5")
    a("s_add_u32 s39, s39, s34")
    a(f"s_add_u32 s39, s39, {BT}")
    WB, GG, BB = KB, Q, Q + 16
    def wbuf(i): return WB + 8 * ((i - 1) & 7)
    def wo_load(i):
        for x in range(2):
            a(f"buffer_load_dwordx4 {vr(wbuf(i)+4*x,4)}, v{2 if i<4 else 10}, s[20:23], s{36+x} offen offset:{1024*(i&3)}{SC}")
    a("s_cmp_lg_u32 s60, 1024")
    a("s_cbranch_scc1 A_NOW0")
    wo_load(0)
    a.label("A_NOW0")
    a("s_waitcnt lgkmcnt(0)")
    a("s_barrier")
    LM = T2 + 2
    for s in range(3):
        a(f"ds_read_b64 {vr(LM+2*s,2)}, v8 offset:{4096*s+3072}")
    RB = O + 16
    for s in range(3):
        for q in range(4):
            a(f"ds_read_b128 {vr(RB+16*s+4*q,4)}, v7 offset:{4096*s+1024*q}")
    a(f"v_permlane32_swap_b32 v{T2}, v{T2+1}")
    a(f"v_permlane32_swap_b32 v{T2+8}, v{NM}")
    a("s_waitcnt lgkmcnt(12)")
    a(f"v_min3_f32 v{MX}, v{NM}, v{LM+1}, v{LM+3}")
    a(f"v_min_f32 v{MX}, v{MX}, v{LM+5}")
    a(f"v_sub_f32 v{S}, v{MX}, v{NM}")
    for s in range(3):
        a(f"v_sub_f32 v{S+2+2*s}, v{MX}, v{LM+2*s+1}")
    for s in range(4):
        a(f"v_exp_f32 v{S+2*s}, v{S+2*s}")
    a(f"v_mul_f32 v{MX+1}, v{S}, v{T2+1}")
    for s in range(3):
        a(f"v_fmac_f32 v{MX+1}, v{S+2+2*s}, v{LM+2*s}")
    a(f"v_rcp_f32 v{MX+1}, v{MX+1}")
    a("s_nop 0")
    for s in range(4):
        a(f"v_mul_f32 v{S+2*s}, v{S+2*s}, v{MX+1}")
    for r in range(0, 16, 2):
        a(f"v_pk_mul_f32 {vr(O+r,2)}, {vr(O+r,2)}, {vr(S,2)} op_sel_hi:[1,0]")
    for s in range(3):
        a(f"s_waitcnt lgkmcnt({8-4*s})")
        for r in range(0, 16, 2):
            a(f"v_pk_fma_f32 {vr(O+r,2)}, {vr(RB+16*s+r,2)}, {vr(S+2+2*s,2)}, {vr(O+r,2)} op_sel_hi:[1,0,1]")
    for r in range(0, 16, 2):
        a(f"v_cvt_pk_bf16_f32 v{P+r//2}, v{O+r}, v{O+r+1}")
    a("s_mov_b32 exec_lo, 0")
    a(f"v_mov_b32 v{P+6}, 0")
    a(f"v_mov_b32 v{P+7}, 0")
    a("s_mov_b32 exec_lo, -1")
    a.nvm = 0
    for f in range(2):
        tagos = a.vm(f"buffer_store_dwordx4 {vr(P+4*f,4)}, v9, s[20:23], s43 offen offset:{1024*f}{SC}")
    a.stamp(9)
    a("s_barrier")
    a("s_lshl_b32 s52, s47, 9")
    a("s_lshl_b32 s33, s24, 7")
    a("s_add_u32 s52, s52, s33")
    a(f"s_add_u32 s52, s52, {F_O}")
    a.wait_vm(tagos)
    cnt_add(a, 252, "s51")
    a("s_cmp_ge_u32 s32, 28")
    a("s_cbranch_scc1 A_XIT" if os.environ.get("STAMP") else "s_cbranch_scc1 L_END")
    a("s_cmp_eq_u32 s60, 1024")
    a("s_cbranch_scc1 A_WOK")
    late_check(a, 248, 14, 15)
    for i in range(8): wo_load(i)
    a.label("A_WOK")
    cnt_load(a, 250, "s52")
    a("s_lshl_b32 s33, s24, 13")
    a(f"s_add_u32 s33, s33, {OF}")
    a("s_lshl_b32 s36, s49, 15")
    a("s_add_u32 s36, s36, s33")
    a("s_xor_b32 s37, s49, 1")
    a("s_lshl_b32 s37, s37, 15")
    a("s_add_u32 s37, s37, s33")
    a.srd(12, P_OUT, X_BYTES)
    a("v_mul_u32_u24 v9, 14336, v11")
    a("v_lshl_add_u32 v9, v13, 1, v9")
    a("s_mul_i32 s44, s49, 28672")
    a("s_lshl_b32 s33, s50, 6")
    a("s_add_u32 s44, s44, s33")
    for i in range(1, 4):
        a(f"s_add_u32 s{44+i}, s44, {3584*i}")
    a("s_waitcnt vmcnt(0)")
    cnt_wait(a, 250, "s52", 8)
    a.stamp(10)
    AF = O
    tags = {}
    for x in (1, 0):
        for i in range(8):
            tags[(x, i)] = a.vm(f"buffer_load_dwordx4 {vr(AF+8*i+4*x,4)}, v{2 if i<4 else 10}, s[20:23], s{36+x} offen offset:{1024*(i&3)}{SC}")
    BL, BU = 232, O + 48
    late_check(a, 248, 14, 15)
    gl = [f"buffer_load_dwordx4 {vr(BL+4*i,4)}, v3, s[20:23], s39 offen offset:{512*i}{SC}" for i in range(2)]
    gl += [f"buffer_load_dwordx4 {vr(GG+4*i,4)}, v12, s[20:23], s38 offen offset:{16*i}{SC}" for i in range(4)]
    GA = int(os.environ.get("GA", "5"))
    AC = [BB, S, S + 16, P]
    wr = [f"ds_write_b128 v{3+t}, {vr(AC[t]+4*q,4)} offset:{1024*q}" for t in (3, 2) for q in range(4)]
    for sa in (1, 0):
        for i in range(8):
            a.wait_vm(tags[(sa, i)])
            for sb in (1, 0):
                t = 2 * sa + sb
                c = "0" if i == 0 else vr(AC[t], 16)
                a(f"{MF32} {vr(AC[t],16)}, {vr(AF+8*i+4*sa,4)}, {vr(wbuf(i)+4*sb,4)}, {c}")
                if sa == 0 and i >= 4: a(wr.pop(0))
                elif gl and (8 * (1 - sa) + i) >= GA: a.vm(gl.pop(0))
    assert not wr and not gl
    a.nop(9)
    a.stamp(11)
    if "dE" in EXP: a(f"s_sleep {DLY}")
    for q in range(4):
        a(f"ds_write_b128 v4, {vr(AC[1]+4*q,4)} offset:{1024*q}")
    a("s_waitcnt vmcnt(0)")
    for i in range(8):
        a(f"v_lshlrev_b32 v{BU+2*i}, 16, v{BL+i}")
        a(f"v_and_b32 v{BU+2*i+1}, 0xffff0000, v{BL+i}")
    for r in range(0, 16, 2):
        a(f"v_pk_add_f32 {vr(AC[0]+r,2)}, {vr(AC[0]+r,2)}, {vr(BU+r,2)} neg_lo:[0,1] neg_hi:[0,1]")
    a("s_waitcnt lgkmcnt(0)")
    a("s_barrier")
    for s in range(3):
        for q in range(4):
            a(f"ds_read_b128 {vr(AF+16*s+4*q,4)}, v7 offset:{4096*s+1024*q}")
    for s in range(3):
        a(f"s_waitcnt lgkmcnt({8-4*s})")
        for r in range(0, 16, 2):
            a(f"v_pk_add_f32 {vr(AC[0]+r,2)}, {vr(AC[0]+r,2)}, {vr(AF+16*s+r,2)}")
    for r in range(0, 16, 2):
        a(f"v_pk_fma_f32 {vr(AC[0]+r,2)}, {vr(AC[0]+r,2)}, {vr(GG+r,2)}, {vr(BU+r,2)}")
    for r in range(0, 16, 2):
        a(f"v_cvt_pk_bf16_f32 v{AF+r//2}, v{AC[0]+r}, v{AC[0]+r+1}")
    for r in range(16):
        op = "buffer_store_short_d16_hi" if r & 1 else "buffer_store_short"
        a(f"{op} v{AF+r//2}, v9, s[12:15], s{44+(r>>2)} offen offset:{896*(r&3)}{os.environ.get('OST', '')}")
    a.label("A_XIT")
    fin(a, 12)
    if "dblspan" in EXP:
        sel = os.environ.get("SELX")
        if sel:
            a(f"s_cmp_lg_u32 s31, {sel}")
            a("s_cbranch_scc1 L_END")
        a("s_memrealtime s[96:97]")
        a("s_waitcnt lgkmcnt(0)")
        a("s_sub_u32 s98, s101, s100" if os.environ.get("DBLK") else "s_sub_u32 s98, s96, s100")
        a("s_add_u32 s98, s98, s96")
        a.label("DBL")
        a("s_memrealtime s[96:97]")
        a("s_waitcnt lgkmcnt(0)")
        a("s_sub_u32 s99, s96, s98")
        a("s_cmp_lt_i32 s99, 0")
        a("s_cbranch_scc1 DBL")
    a("s_endpgm")
    a.label("A_SLOW")
    a(f"s_mov_b32 s62, {POLLMAX}")
    a.label("A_SLOW1")
    a(f"v_cmp_eq_u32 vcc, s58, v{PV_}")
    a("s_nop 1")
    a("s_and_b32 s5, vcc_lo, s63")
    a("s_cmp_eq_u32 s5, s63")
    a("s_cbranch_scc1 A_SLOW2")
    kv_poll()
    a("s_cmp_lg_u32 s5, 0")
    a("s_cbranch_scc1 A_SLOWR")
    a("s_sub_u32 s62, s62, 1")
    a("s_cbranch_scc1 A_SLOW2")
    a("s_waitcnt vmcnt(0)")
    a("s_branch A_SLOW1")
    a.label("A_SLOW2")
    a("s_or_b32 s5, s63, 128")
    a("s_cmp_lg_u32 s63, 0")
    a("s_cbranch_scc1 A_SLOWR")
    a("v_readlane_b32 s4, v248, 2")
    a("s_nop 1")
    a("s_cmp_lg_u32 s4, 16")
    a("s_cbranch_scc1 A_SLOWR")
    for i in range(4):
        a(f"v_mov_b32 v{T2+12+i}, v{VK0+i}")
    a("s_lshl_b32 s4, s50, 15")
    a(f"v_add_u32 v{VK0}, s4, v2")
    a(f"v_xor_b32 v{VK1}, 32768, v{VK0}")
    a(f"v_mov_b32 v{VV0}, v{VK0}")
    a(f"v_mov_b32 v{VV1}, v{VK1}")
    a("s_lshl_b32 s4, s24, 13")
    a(f"s_add_u32 s6, s4, {WOF + 1024 - 7*16*KTS}")
    a(f"s_add_u32 s7, s4, {WOF + 5120 - 7*16*VTS}")
    a.srd(12, P_WS, 0x400000, "s6")
    a.srd(16, P_WS, 0x400000, "s7")
    a("s_movk_i32 s60, 1024")
    a("s_movk_i32 s61, 1024")
    a("s_branch A_SLOWR")
    a.label("A_LLOAD")
    late_load(a, 248, 14)
    a("s_branch A_LLOADR")
    a.label("A_FALLBACK")
    a("s_mov_b32 s41, -1")
    a("s_cmp_lg_u32 s60, 1024")
    a("s_cbranch_scc1 A_FB0")
    for i in range(4):
        a(f"v_mov_b32 v{VK0+i}, v{T2+12+i}")
    a(f"s_mul_i32 s34, s24, {4*KTS}")
    a(f"s_mul_i32 s37, s24, {4*VTS}")
    a(f"s_add_u32 s37, s37, {VF}")
    a.srd(12, P_WS, 52 * KTS, "s34")
    a.srd(16, P_WS, 52 * VTS, "s37")
    a.label("A_FB0")
    for t in range(4):
        a(f"v_mov_b32 v{MX+t}, 0xff800000")
    a("s_mov_b32 s44, 0")
    a("s_mov_b32 s45, 0")
    a("s_waitcnt vmcnt(0) lgkmcnt(0)")
    a.label("A_FBLOOP")
    for f in range(2):
        a(f"buffer_load_dwordx4 {vr(KB+4*f,4)}, v{VK0+f}, s[12:15], s44 offen{SC}")
    a("s_waitcnt vmcnt(0)")
    patch(KB)
    a("s_nop 1")
    for t in range(4):
        a(f"{MF32} {vr(O+16*t,16)}, {vr(KB,4)}, {vr(Q+8*t,4)}, 0")
        a(f"{MF32} {vr(O+16*t,16)}, {vr(KB+4,4)}, {vr(Q+8*t+4,4)}, {vr(O+16*t,16)}")
    a.nop(16)
    for i in range(8):
        for t in range(4):
            a(f"v_max3_f32 v{MX+t}, v{MX+t}, v{O+16*t+2*i}, v{O+16*t+2*i+1}")
    a(f"s_addk_i32 s44, {KTS}")
    a("s_add_u32 s45, s45, 1")
    a("s_and_b32 s4, s45, 3")
    a("s_cbranch_scc1 A_FBLOOP")
    a(f"s_add_u32 s44, s44, {12*KTS}")
    a("s_cmp_lt_u32 s45, 16")
    a("s_cbranch_scc1 A_FBLOOP")
    for t in range(4):
        a(f"v_mov_b32 v{T2+t}, v{MX+t}")
    a("s_nop 1")
    for t in range(4):
        a(f"v_permlane32_swap_b32 v{T2+t}, v{MX+t}")
    for t in range(4):
        a(f"v_max_f32 v{MX+t}, v{MX+t}, v{T2+t}")
    a("s_mov_b32 s59, 0")
    a("s_mov_b32 s63, 14")
    a("s_movk_i32 s5, 0x8e")
    a(f"v_mov_b32 v{PV_}, s58")
    for r in range(8):
        a(f"v_mov_b32 v{VB+24+r}, 0")
    first_loads()
    zero_acc()
    a("s_waitcnt vmcnt(0)")
    patch(KB)
    a("s_branch A_SETMAX")

def gen_B(a):
    a.label("L_B")
    a(f"s_setprio {PB}")
    a.stamp(1)
    if "noB1" in EXP: a("s_endpgm")
    if "dB" in EXP:
        a("s_waitcnt vmcnt(0)"); a(f"s_sleep {DLY}")
    TS = 272; TW = 64 * TS
    UB = 4 * TW
    US = 4608
    SEL, ACT, INY, WY, KACC, WX = 16, 48, 112, 144, 176, 192
    Z8, Z1, Z256, TM = 236, 238, 242, 2
    FR, CT, UL = 48, 112, 192
    a(f"s_mul_i32 s29, s24, {TW}")
    a("s_mov_b32 m0, s29")
    a("v_mov_b32 v15, 0x3f80")
    a(f"ds_write_addtid_b32 v15 offset:{32*TS}")
    a("v_and_b32 v12, 1, v1")
    a("v_lshlrev_b32 v12, 4, v12")
    a("v_lshlrev_b32 v12, v12, v15" if False else "v_mov_b32 v15, 0x3f80")
    a("v_lshlrev_b32 v12, v12, v15")
    a("s_mov_b64 s[4:5], 3")
    for i in range(32):
        a(f"v_cndmask_b32 v{SEL+i}, 0, v12, s[4:5]")
        if i < 31: a("s_lshl_b64 s[4:5], s[4:5], 2")
    a("v_lshrrev_b32 v13, 5, v1")
    for r in range(4):
        a(f"v_mov_b32 v{KACC+r}, 0")
    a(f"v_mul_u32_u24 v12, {US-512}, v13")
    a("v_add_u32 v12, v12, v2")
    a(f"v_add_u32 v12, {UB}, v12")
    a(f"ds_write_b128 v12, {vr(KACC,4)}")
    a("s_lshl_b32 s42, s24, 3")
    a("s_add_u32 s42, s42, s31")
    a("s_lshl_b32 s42, s42, 7")
    a(f"s_add_u32 s42, s42, {F_XT}")
    a("v_lshrrev_b32 v12, 1, v1")
    a("v_and_b32 v13, 1, v1")
    a(f"v_mul_u32_u24 v3, {XTS}, v12")
    a("v_lshl_add_u32 v3, v13, 4, v3")
    a(f"s_mul_i32 s43, s24, {64*XTS}")
    a("s_mul_i32 s33, s31, 896")
    a("s_add_u32 s43, s43, s33")
    a("s_lshl_b32 s33, s39, 4")
    a("s_add_u32 s43, s43, s33")
    a(f"s_add_u32 s43, s43, {XT}")
    a(f"s_add_u32 s44, s43, {32*XTS}")
    a(f"v_mul_u32_u24 v241, {US}, v13")
    a("v_lshl_add_u32 v241, v12, 4, v241")
    a("s_lshl_b32 s33, s24, 10")
    a(f"s_add_u32 s33, s33, {UB + 512}")
    a("v_add_u32 v241, s33, v241")
    a("s_waitcnt lgkmcnt(0)")
    a("s_and_b32 s33, s26, 1")
    a("s_lshl_b32 s33, s33, 4")
    a("s_lshr_b32 s28, s28, s33")
    a("s_lshl_b32 s28, s28, 16")
    a("s_lshr_b32 s38, s38, s33")
    a("s_lshl_b32 s38, s38, 16")
    hi = float(np.float32(LOG2E)); lo = float(np.float32(LOG2E - hi))
    a(f"v_mov_b32 v13, {hex(f2u(hi))}")
    a("v_mul_f32 v14, s28, v13")
    a("v_fma_f32 v13, s28, v13, -v14")
    a(f"v_mov_b32 v15, {hex(f2u(lo))}")
    a("v_fmac_f32 v13, s28, v15")
    a("v_exp_f32 v14, v14")
    a(f"v_mul_f32 v13, {hex(f2u(math.log(2)))}, v13")
    a("v_fmac_f32 v14, v14, v13")
    a("v_cvt_pk_bf16_f32 v14, v14, v14")
    a("v_and_b32 v14, 0xffff0000, v14")
    a(f"s_mov_b32 s48, {hex(f2u(LOG2E))}")
    a(f"s_mov_b32 s49, {hex(f2u(1/(2*math.pi)))}")
    a("s_mov_b32 s47, 0x07060302")
    a("s_brev_b32 s46, 1")
    a("s_cmp_ge_u32 s2, 2")
    a("s_cbranch_scc1 B_NORDY")
    a("v_mov_b32 v4, 1")
    a("s_setprio 3")
    a("s_waitcnt vmcnt(6)")
    a("s_mov_b64 exec, 1")
    a(f"global_atomic_add v{VZ}, v4, {sr(P_DBG,2)} sc1")
    a("s_mov_b64 exec, -1")
    a(f"s_setprio {PB}")
    a.label("B_NORDY")
    if "noB2" in EXP: a("s_endpgm")
    a("s_waitcnt vmcnt(4)")
    a.stamp(2)
    r1 = [0, 0, 2, 4, 4, 4, 6, 8, 8]
    P_ = {}
    for r in range(9): P_[(0, r)] = r; P_[(1, r)] = 256 + r1[r]
    for i, e in enumerate((0, 4, 8)): P_[(0, 9 + i)] = 512 + e; P_[(1, 9 + i)] = 768 + e
    for i, e in enumerate((0, 8)):
        P_[(0, 12 + i)] = 1024 + e; P_[(1, 12 + i)] = 1280 + e; P_[(0, 14 + i)] = 1536 + e; P_[(1, 14 + i)] = 1792 + e
    EX = [None] * 32
    for (h, r), p in P_.items(): EX[8 * (r >> 2) + 4 * h + (r & 3)] = ("X", p)
    EY = [("Y", j) for j in range(32)]
    yops = [(("Y", 2), ("Y", 1), ("Y", 1)), (("Y", 3), ("Y", 2), ("Y", 1)), (("Y", 4), ("Y", 2), ("Y", 2))]
    yops += [(("Y", 4 + k), ("Y", 4), ("Y", k)) for k in (4, 1, 2, 3)]
    yops += [(("Y", 8 + k), ("Y", 8), ("Y", k)) for k in (8, 1, 2, 3, 4, 5, 6, 7)]
    yops += [(("Y", 16 + k), ("Y", 16), ("Y", k)) for k in range(1, 16)]
    xops = [(("X", 8), ("X", 0), ("Y", 1))]
    xops += [(("X", e + 1), ("X", e), ("Z", 1)) for e in range(7)]
    for base, es in ((256, (0, 8, 4, 2, 6)), (512, (0, 8, 4)), (768, (0, 8, 4)), (1024, (0, 8)), (1280, (0, 8)), (1536, (0, 8)), (1792, (0, 8))):
        xops += [(("X", base + e), ("X", base - 256 + e), ("Z", 256)) for e in es]
    def pass0():
        YB, XB = 48, 112
        plist = sorted(set(P_.values()))
        xreg = {p: XB + 2 * i for i, p in enumerate(plist)}
        row_of = {p: min(8 * (r >> 2) + 4 * h + (r & 3) for (h, r), pp in P_.items() if pp == p) for p in plist}
        yreg = {j: YB + 2 * j for j in range(1, 32)}
        def reg(n): return {"Y": yreg, "X": xreg, "Z": {1: Z1, 256: Z256}}[n[0]][n[1]]
        allops = xops + yops
        memo = {}
        def height(n):
            if n not in memo:
                memo[n] = max([0] + [1 + height(d) for (d, x, y) in allops if n in (x, y)])
            return memo[n]
        WB = int(os.environ.get("WB", "16")); XAT = int(os.environ.get("XAT", "6"))
        ring = list(range(WX, WX + 32))
        wq = []; ct = [0]
        def emit_write(n):
            t = ring[ct[0] % len(ring)]; ct[0] += 1
            r = reg(n)
            if n[0] == "Y":
                a(f"v_cvt_pk_bf16_f32 v{t}, v{r}, v{r+1}")
                wq.append(f"ds_write_addtid_b32 v{t} offset:{(32+n[1])*TS}")
            else:
                a(f"v_cvt_pk_bf16_f32 v{t}, v{r}, -v{r+1}")
                wq.append(f"ds_write_addtid_b32 v{t} offset:{row_of[n[1]]*TS}")
            if len(wq) >= WB:
                for ins in wq: a(ins)
                wq.clear()
        for i in range(2): a(f"v_lshlrev_b32 v{8+i}, 16, v{RAW+i}")
        a("v_pk_mul_f32 v[8:9], v[8:9], v[14:15] op_sel_hi:[1,0]")
        a("v_pk_mul_f32 v[8:9], v[8:9], s[48:49]")
        a(f"v_mul_f32 v{TM+2}, 0x41000000, v8")
        a(f"v_mul_f32 v{TM+3}, 0x41000000, v9")
        a(f"v_mul_f32 v{TM+4}, 0x43800000, v8")
        a(f"v_mul_f32 v{TM+5}, 0x43800000, v9")
        anch = [(TM + 2, yreg[1]), (8, Z1), (TM + 4, Z256)]
        for s_, d_ in anch:
            a(f"v_fract_f32 v{s_+1}, v{s_+1}")
            a(f"v_exp_f32 v{s_}, v{s_}")
        for s_, d_ in anch:
            a(f"v_cos_f32 v{d_}, v{s_+1}")
            a(f"v_sin_f32 v{d_+1}, v{s_+1}")
        a("s_nop 0")
        for s_, d_ in anch:
            a(f"v_pk_mul_f32 {vr(d_,2)}, {vr(d_,2)}, {vr(s_,2)} op_sel_hi:[1,0]")
        done = {("Y", 1), ("Z", 1), ("Z", 256)}
        towrite = [("Y", 1)]
        pending = sorted(allops, key=lambda o: -height(o[0]))
        nb = 0
        while pending:
            batch = [o for o in pending if o[1] in done and o[2] in done][:4]
            for o in batch: pending.remove(o)
            for (d, x, y) in batch: cmul(a, reg(d), reg(x), reg(y), 0)
            w = towrite; towrite = []
            for n in w[:2]: emit_write(n)
            for (d, x, y) in batch: cmul(a, reg(d), reg(x), reg(y), 1)
            for n in w[2:]: emit_write(n)
            for (d, x, y) in batch:
                done.add(d); towrite.append(d)
            nb += 1
            if nb == XAT:
                a("s_waitcnt vmcnt(0)")
                for i in range(2, 6): a(f"v_lshlrev_b32 v{8+i}, 16, v{RAW+i}")
                cmul(a, xreg[0], 12, 10, 0)
                cmul(a, xreg[0], 12, 10, 1)
                a(f"v_pk_mul_f32 {vr(xreg[0],2)}, {vr(xreg[0],2)}, v[14:15] op_sel_hi:[1,0]")
                done.add(("X", 0)); towrite.append(("X", 0))
        for n in towrite: emit_write(n)
        for ins in wq: a(ins)
    pass0()
    PB1_ = int(os.environ.get("PBY", str(PB))); PB2 = int(os.environ.get("PB2", "1"))
    a(f"s_setprio {PB1_}")
    a.stamp(8)
    a("s_mov_b32 s45, 0")
    def u_loads():
        for i in range(2):
            a(f"buffer_load_dwordx4 {vr(UL+4*i,4)}, v3, s[20:23], s{43+i} offen{SC}")
    def try_u(tag_, prio):
        a("s_cmp_eq_u32 s45, 64")
        a(f"s_cbranch_scc1 TU2{tag_}")
        a("s_setprio 3")
        a("s_waitcnt vmcnt(0)")
        a("v_readfirstlane_b32 s45, v250")
        a("s_nop 1")
        a("s_cmp_lg_u32 s45, 64")
        a(f"s_cbranch_scc1 TU0{tag_}")
        u_loads()
        a(f"s_branch TU1{tag_}")
        a.label(f"TU0{tag_}")
        cnt_load(a, 250, "s42")
        a.label(f"TU1{tag_}")
        a(f"s_setprio {prio}")
        a.label(f"TU2{tag_}")
    loc = {("Y", 1): Z8, ("Z", 1): Z1, ("Z", 256): Z256}
    for j in range(2, 17): loc[("Y", j)] = WY + 2 * (j - 1)
    free = list(range(WX, WX + 44, 2))
    mq = []
    since = [99]
    MG = int(os.environ.get("MG", "6"))
    def v(ins):
        a(ins); since[0] += 1
        if mq and since[0] >= MG and mq[0][1] <= cnt[0] - 2:
            a(mq.pop(0)[0]); since[0] = 0; cnt[0] += 1; lastm[0] = cnt[0]
        cnt[0] += 1
    cnt = [0]; lastm = [0]
    class V:
        def __call__(self, x): v(x)
    va = V()
    NEG = {("Y", 1): 240, ("Y", 2): 251, ("Y", 4): 252, ("Y", 8): 253, ("Y", 16): WY, ("Z", 1): WY + 1, ("Z", 256): 15}
    NEG[("Z", 1)] = 251
    def smul(d, x, y, phase):
        if y not in NEG: x, y = y, x
        D, X_, Y_ = loc[d], loc[x], loc[y]
        if phase == 0:
            v(f"v_mul_f32 v{D}, v{X_}, v{Y_}")
            v(f"v_mul_f32 v{D+1}, v{X_}, v{Y_+1}")
        else:
            v(f"v_fmac_f32 v{D}, v{X_+1}, v{NEG[y]}")
            v(f"v_fmac_f32 v{D+1}, v{X_+1}, v{Y_}")
            if d in NEG: v(f"v_xor_b32 v{NEG[d]}, s46, v{D+1}")
    def table(ops, E, IN, neg, done, pre=None):
        uses = {}
        for (d, x, y) in ops:
            for n in (x, y): uses[n] = uses.get(n, 0) + 1
        for n in E: uses[n] = uses.get(n, 0) + 1
        def release(n):
            uses[n] -= 1
            if uses[n] == 0 and n in loc and WX <= loc[n] < WX + 44: free.append(loc[n])
        memo = {}
        def height(n):
            if n not in memo:
                memo[n] = max([0] + [1 + height(d) for (d, x, y) in ops if n in (x, y)])
            return memo[n]
        first = {n: i for i, n in reversed(list(enumerate(E)))}
        pending = sorted(ops, key=lambda o: (-height(o[0]), first.get(o[0], 99)))
        pairs = list(range(16)); gdone = [0] * 4; gseq = [0]
        def cvts(avail):
            for q in list(pairs):
                n0, n1 = E[2 * q], E[2 * q + 1]
                if n0 in avail and n1 in avail:
                    pairs.remove(q)
                    for part in range(2):
                        sg = "-" if (neg and part) else ""
                        s0 = (("1.0", "0")[part]) if n0 == ("Y", 0) else f"{sg}v{loc[n0]+part}"
                        v(f"v_cvt_pk_bf16_f32 v{IN+16*part+q}, {s0}, {sg}v{loc[n1]+part}")
                    release(n0); release(n1)
                    g = q >> 2; gdone[g] += 1
                    if gdone[g] == 4:
                        for hs in range(2):
                            for part in range(2):
                                acc = vr(ACT + 32 * hs + 16 * part, 16)
                                mq.append((f"{MF32} {acc}, {vr(IN+16*part+4*g,4)}, {vr(SEL+16*hs+4*g,4)}, {'0' if gseq[0] == 0 else acc}", cnt[0]))
                        gseq[0] += 1
        nb = 0
        while pending:
            batch = [o for o in pending if o[1] in done and o[2] in done][:4]
            for o in batch:
                pending.remove(o)
                if o[0] not in loc: loc[o[0]] = free.pop(0)
            for (d, x, y) in batch: smul(d, y, x, 0) if x in NEG else smul(d, x, y, 0)
            for (d, x, y) in batch: smul(d, y, x, 1) if x in NEG else smul(d, x, y, 1)
            for (d, x, y) in batch: release(x); release(y)
            if pre and pre(nb): pre = None
            if pre is None: cvts(set(done))
            for (d, x, y) in batch: done.add(d)
            nb += 1
        assert pre is None
        cvts(done)
        assert not pairs
    def packs(OUT, hs):
        for r in range(16):
            v(f"v_perm_b32 v{OUT+16*hs+r}, v{ACT+32*hs+16+r}, v{ACT+32*hs+r}, s47")
    def drain():
        while mq:
            if mq[0][1] > cnt[0] - 2: a("s_nop 1"); cnt[0] += 2
            a(mq.pop(0)[0]); cnt[0] += 1; lastm[0] = cnt[0]
    for i in range(2): v(f"v_and_b32 v{8+i}, 0xffff0000, v{RAW+i}")
    v("v_mul_f32 v8, v8, v14"); v("v_mul_f32 v9, v9, v14")
    v("v_mul_f32 v8, s48, v8"); v("v_mul_f32 v9, s49, v9")
    v(f"v_mul_f32 v{TM+2}, 0x41000000, v8")
    v(f"v_mul_f32 v{TM+3}, 0x41000000, v9")
    v(f"v_mul_f32 v{TM+4}, 0x43800000, v8")
    v(f"v_mul_f32 v{TM+5}, 0x43800000, v9")
    anchors = [(TM + 2, Z8), (8, Z1), (TM + 4, Z256)]
    for s_, d_ in anchors:
        v(f"v_fract_f32 v{s_+1}, v{s_+1}")
        v(f"v_exp_f32 v{s_}, v{s_}")
    for s_, d_ in anchors:
        v(f"v_cos_f32 v{d_}, v{s_+1}")
        v(f"v_sin_f32 v{d_+1}, v{s_+1}")
    a("s_nop 0")
    for s_, d_ in anchors:
        v(f"v_mul_f32 v{d_}, v{d_}, v{s_}")
        v(f"v_mul_f32 v{d_+1}, v{d_+1}, v{s_}")
    v(f"v_xor_b32 v{NEG[('Y',1)]}, s46, v{Z8+1}")
    v(f"v_xor_b32 v{NEG[('Z',256)]}, s46, v{Z256+1}")
    table(yops, EY, INY, False, {("Y", 0), ("Y", 1)})
    a("s_setprio 3")
    nonce_issue(a, 250, True)
    a(f"s_setprio {PB2}")
    for i in range(2, 6): v(f"v_and_b32 v{8+i}, 0xffff0000, v{RAW+i}")
    loc[("X", 0)] = free.pop(0)
    X0 = loc[("X", 0)]
    v(f"v_xor_b32 v{NEG[('Z',1)]}, s46, v{Z1+1}")
    v("v_mul_f32 v10, v10, v14"); v("v_mul_f32 v11, v11, v14")
    v(f"v_mul_f32 v{X0}, v12, v10"); v(f"v_mul_f32 v{X0+1}, v12, v11")
    v(f"v_fma_f32 v{X0}, -v13, v11, v{X0}"); v(f"v_fmac_f32 v{X0+1}, v13, v10")
    def ypack(nb):
        if mq or cnt[0] - lastm[0] < 13: return False
        packs(INY, 0); packs(INY, 1)
        return True
    table(xops, EX, WY, True, {("X", 0), ("Y", 1), ("Z", 1), ("Z", 256)}, ypack)
    drain()
    a("v_and_b32 v4, 31, v1")
    a(f"v_mul_u32_u24 v4, {TS}, v4")
    a("v_lshrrev_b32 v5, 5, v1")
    a("v_lshl_add_u32 v4, v5, 4, v4")
    a("v_add_u32 v4, s29, v4")
    a("v_mov_b32 v5, v4")
    for (m, src) in ((5, 4), (12, 7), (13, 7), (20, 15)):
        a(f"s_add_u32 s33, s29, {src*TS}")
        a(f"v_writelane_b32 v5, s33, {m}")
        a("s_add_u32 s33, s33, 16")
        a(f"v_writelane_b32 v5, s33, {m+32}")
    F0 = [SEL + 8 * i for i in range(4)] + [WX + 8 + 8 * i for i in range(4)]
    for ks in range(8):
        a(f"ds_read_b128 {vr(F0[ks],4)}, v5 offset:{32*ks}")
        a(f"ds_read_b128 {vr(F0[ks]+4,4)}, v4 offset:{32*TS+32*ks}")
    a("s_setprio 3")
    a("s_waitcnt vmcnt(0)")
    nonce_take(a, 250, True)
    cnt_load(a, 250, "s42")
    a(f"s_setprio {PB2}")
    MG = 4
    packs(WY, 0)
    for ks in range(4):
        mq.append((f"{MF32} {vr(KACC,16)}, {vr(WY+4*ks,4)}, {vr(INY+4*ks,4)}, {vr(KACC,16) if ks else '0'}", cnt[0]))
    packs(WY, 1)
    drain()
    a("s_waitcnt lgkmcnt(0)")
    for ks in range(8):
        a(f"{MF32} {vr(KACC,16)}, {vr(F0[ks],4)}, {vr(F0[ks]+4,4)}, {vr(KACC,16)}")
    for ks in range(4, 8):
        a(f"{MF32} {vr(KACC,16)}, {vr(WY+4*ks,4)}, {vr(INY+4*ks,4)}, {vr(KACC,16)}")
    a(f"s_setprio {PC}")
    a.stamp(3)
    if "noconv" in EXP: a("s_endpgm")
    a("v_add_u32 v242, s29, v2")
    a("s_xor_b32 s33, s24, 1")
    a(f"s_mul_i32 s33, s33, {TW}")
    a("v_add_u32 v243, s33, v2")
    a("s_and_b32 s33, s24, 2")
    a(f"s_mul_i32 s48, s33, {TW}")
    a("s_add_u32 s48, s48, 4096")
    a("s_mul_i32 s33, s27, 4160")
    a("s_add_u32 s49, s33, s48")
    a("v_sub_u32 v6, 63, v1")
    a("v_lshlrev_b32 v6, 4, v6")
    a("v_add_u32 v6, s49, v6")
    a("v_and_b32 v7, 1, v1")
    a("v_cmp_eq_u32 vcc, 1, v7")
    for q in range(4):
        a(f"ds_write_b128 v242, {vr(KACC+4*q,4)} offset:{1024*q}")
    a("v_lshrrev_b32 v4, 4, v1")
    a("v_and_b32 v5, 15, v1")
    a("v_add_u32 v7, 1, v5")
    a("v_lshrrev_b32 v7, 1, v7")
    a("v_lshlrev_b32 v8, 2, v4")
    a("v_sub_u32 v8, v8, v7")
    a("v_and_b32 v7, 1, v5")
    a("v_mul_u32_u24 v7, 1040, v7")
    a("v_sub_u32 v8, v8, v7")
    a(f"v_add_u32 v8, {1016 + 1040 - 48 - 128}, v8")
    a("v_lshlrev_b32 v8, 2, v8")
    a("s_lshl_b32 s33, s27, 8")
    a("s_sub_u32 s33, s48, s33")
    a("v_add_u32 v8, s33, v8")
    for i in range(1, 4):
        a(f"v_subrev_u32 v{8+i}, {1024*i}, v8")
    if os.environ.get("TUB"): try_u("b", PC)
    a("s_waitcnt lgkmcnt(0)")
    a.stamp(10)
    a("s_barrier")
    a.stamp(11)

    for q in range(4):
        a(f"ds_read_b128 {vr(FR+4*q,4)}, v243 offset:{1024*q}")
    try_u("c", PC)
    a("s_lshr_b32 s33, s24, 1")
    a(f"s_mul_i32 s36, s33, {US}")
    a(f"s_add_u32 s36, s36, {UB + 512}")
    a("v_lshlrev_b32 v12, 5, v5")
    a("v_lshl_add_u32 v13, v4, 3, v12")
    a("v_lshl_add_u32 v12, v4, 4, v12")
    a("s_lshl_b32 s33, s27, 8")
    a("s_sub_u32 s33, s36, s33")
    a(f"s_sub_u32 s33, s33, {32 + 192}")
    a("v_add_u32 v12, s33, v12")
    a("s_lshl_b32 s33, s27, 11")
    a("s_add_u32 s33, s33, s36")
    a("v_add_u32 v13, s33, v13")
    a("s_lshl_b32 s40, s26, 1")
    a("s_add_u32 s40, s40, s27")
    a("s_lshl_b32 s41, s40, 11")
    a(f"s_add_u32 s41, s41, {BT}")
    a("s_lshr_b32 s40, s26, 5")
    a("s_lshl_b32 s40, s40, 7")
    a(f"s_add_u32 s40, s40, {F_B}")
    a("s_waitcnt lgkmcnt(0)")
    for r in range(16):
        a(f"v_add_f32 v{KACC+r}, v{KACC+r}, v{FR+r}")
    K_ = KACC; W_ = FR + 16
    a(f"v_cndmask_b32 v{CT}, v{K_+12}, v{K_+13}, vcc")
    a(f"v_cndmask_b32 v{CT+1}, v{K_+14}, v{K_+15}, vcc")
    for i in range(4):
        a(f"v_mov_b32 v{W_+16+i}, 0")
    def pk(d, lo_, hi_): a(f"v_cvt_pk_bf16_f32 v{d}, v{lo_}, v{hi_}")
    a("s_cmp_eq_u32 s27, 1")
    a("s_cbranch_scc1 B_ODD")
    A_, B_, C_ = K_ + 9, K_ + 10, K_ + 11
    for i in range(4): pk(W_ + i, K_ + 7 - 2 * i, K_ + 6 - 2 * i)
    for i, (x, y) in enumerate(((C_, C_), (B_, B_), (B_, A_), (A_, A_))): pk(W_ + 4 + i, x, y)
    for sl in range(2):
        A2, C2, M2 = K_ + 12 + 2 * sl, K_ + 13 + 2 * sl, CT + sl
        for i, (x, y) in enumerate(((C2, C2), (C2, M2), (A2, A2), (A2, A2))): pk(W_ + 8 + 4 * sl + i, x, y)
    a("s_branch B_IMG")
    a.label("B_ODD")
    for i in range(4): pk(W_ + i, K_ + 8 - 2 * i, K_ + 7 - 2 * i)
    for i, (x, y) in enumerate(((C_, C_), (C_, B_), (B_, B_), (A_, A_))): pk(W_ + 4 + i, x, y)
    for sl in range(2):
        A2, C2, M2 = K_ + 12 + 2 * sl, K_ + 13 + 2 * sl, CT + sl
        for i, (x, y) in enumerate(((C2, C2), (C2, C2), (M2, A2), (A2, A2))): pk(W_ + 8 + 4 * sl + i, x, y)
    a("s_mov_b64 exec, 1")
    pk(W_ + 16, K_, VZ)
    a("s_mov_b64 exec, -1")
    a.label("B_IMG")
    for sl in range(4):
        a(f"ds_write_b128 v6, {vr(W_+4*sl,4)} offset:{(3-sl)*1024}")
    a("v_add_u32 v7, s49, v2")
    a("s_mov_b64 exec, 3")
    a(f"ds_write_b128 v7, {vr(W_+16,4)} offset:4096")
    a("s_mov_b64 exec, -1")
    a("s_cmp_eq_u32 s45, 64")
    a("s_cbranch_scc1 B_UOK")
    a("s_waitcnt vmcnt(0)")
    cnt_wait(a, 250, "s42", 64, 4)
    u_loads()
    a.label("B_UOK")
    a.stamp(7)
    a("s_waitcnt vmcnt(0)")
    for i in range(2):
        a(f"ds_write_b128 v241, {vr(UL+4*i,4)} offset:{512*i}")
    a("s_waitcnt lgkmcnt(0)")
    a("s_barrier")
    a.stamp(4)
    a(f"s_setprio {os.environ.get('PV', '0')}")
    FB, CAC = 16, 144
    a.nds = 0
    tg = {}
    def loadstep(stp):
        b = FB + 64 * (stp & 1)
        for i in range(8):
            o = 128 * (1 - (i & 1)) + 16 * (3 - stp)
            a.ds(f"ds_read2_b32 {vr(b+4*i,2)}, v{8+(i>>1)} offset0:{o} offset1:{o+1}")
            a.ds(f"ds_read2_b32 {vr(b+4*i+2,2)}, v{8+(i>>1)} offset0:{o+2} offset1:{o+3}")
            tg[(stp, i)] = a.ds(f"ds_read_b128 {vr(b+32+4*i,4)}, v12 offset:{512*i+64*(3-stp)}")
    loadstep(0)
    for stp in range(4):
        b = FB + 64 * (stp & 1)
        order = sorted([(i, tp) for i in range(8) for tp in range(8 - i)], key=lambda x: (max(x), x[0] + x[1]))
        nxt = []
        if stp < 3:
            b2 = FB + 64 * ((stp + 1) & 1)
            for i in range(8):
                o = 128 * (1 - (i & 1)) + 16 * (3 - stp - 1)
                nxt.append((None, f"ds_read2_b32 {vr(b2+4*i,2)}, v{8+(i>>1)} offset0:{o} offset1:{o+1}"))
                nxt.append((None, f"ds_read2_b32 {vr(b2+4*i+2,2)}, v{8+(i>>1)} offset0:{o+2} offset1:{o+3}"))
                nxt.append(((stp + 1, i), f"ds_read_b128 {vr(b2+32+4*i,4)}, v12 offset:{512*i+64*(3-stp-1)}"))
        waited = -1
        seen = set()
        for k, (i, tp) in enumerate(order):
            if max(i, tp) > waited:
                waited = max(i, tp)
                a.wait_ds(tg[(stp, waited)])
            t = i + tp
            c = vr(CAC + 4 * t, 4)
            if stp == 0 and t not in seen:
                c = "0"; seen.add(t)
            a(f"{MF16} {vr(CAC+4*t,4)}, {vr(b+4*i,4)}, {vr(b+32+4*tp,4)}, {c}")
            if k >= 8 and nxt:
                key, ins = nxt.pop(0)
                r = a.ds(ins)
                if key: tg[key] = r
        assert not nxt
    a.stamp(5)
    a(f"s_setprio {os.environ.get('PT', '2')}")
    RR = 16
    for tl in range(4):
        a(f"ds_read_b64 {vr(80+2*tl,2)}, v13 offset:{512*tl}")
    a("s_cmp_eq_u32 s27, 1")
    a.nop(3)
    a("s_cbranch_scc1 B_R1")
    for par in range(2):
        if par: a.label("B_R1")
        for q in range(4):
            a(f"ds_write_b128 v242, {vr(CAC+16*(1-par)+4*q,4)} offset:{1024*q}")
        a("s_waitcnt lgkmcnt(0)")
        a("s_barrier")
        for q in range(4):
            a(f"ds_read_b128 {vr(RR+4*q,4)}, v243 offset:{1024*q}")
        a("s_waitcnt lgkmcnt(0)")
        for r in range(16):
            a(f"v_add_f32 v{RR+r}, v{RR+r}, v{CAC+16*par+r}")
        if not par: a("s_branch B_R2")
    a.label("B_R2")
    for t in range(4):
        for i in range(2):
            a(f"v_lshlrev_b32 v{88+2*i}, 16, v{80+2*t+i}")
            a(f"v_and_b32 v{88+2*i+1}, 0xffff0000, v{80+2*t+i}")
        for r in range(4):
            a(f"v_fmac_f32 v{RR+4*t+r}, s38, v{88+r}")
        for i in range(2):
            a(f"v_cvt_pk_bf16_f32 v{80+2*t+i}, v{RR+4*t+2*i}, v{RR+4*t+2*i+1}")
    a("s_nop 1")
    for p in range(2):
        for i in range(2):
            a(f"v_permlane16_swap_b32 v{80+4*p+i}, v{80+4*p+2+i}")
    for p in range(2):
        a(f"buffer_store_dwordx4 {vr(80+4*p,4)}, v2, s[20:23], s41 offen offset:{1024*p}{SC}")
    a("s_waitcnt vmcnt(0)")
    cnt_add(a, 4, "s40")
    fin(a, 6)
    a("s_endpgm")

def gen_C(a):
    a.label("L_C")
    if "dC" in EXP: a(f"s_sleep {DLY}")
    a("s_setprio 0")
    R, U, GU, GW = 16, 80, 144, 160
    a("s_sub_u32 s25, s2, 224")
    a("s_lshl_b32 s26, s31, 2")
    a("s_sub_u32 s33, s32, 28")
    a("s_add_u32 s26, s26, s33")
    a("s_lshl_b32 s26, s26, 2")
    a("s_add_u32 s26, s26, s24")
    a("s_mul_i32 s36, s26, 14336")
    for i in range(1, 4):
        a(f"s_add_u32 s{36+i}, s36, {3584*i}")
    a("s_add_u32 s45, s25, s24")
    a("s_waitcnt lgkmcnt(0)")
    a.srd(20, P_WS, WS_SIZE)
    a.srd(12, P_X, X_BYTES)
    for r in range(16):
        a(f"buffer_load_dwordx4 {vr(R+4*r,4)}, v2, s[12:15], s{36+(r>>2)} offen offset:{896*(r&3)}")
    a.srd(16, P_GW, 896)
    a(f"buffer_load_dwordx4 {vr(GW,4)}, v2, s[16:19], 0 offen")
    for r in range(16):
        a(f"v_mov_b32 v{GU+r}, 0")
    a("s_mov_b32 exec_hi, 0xffffff")
    a("s_waitcnt vmcnt(0)")
    a.stamp(1)
    for i in range(4):
        for r in range(16):
            a(f"v_dot2c_f32_bf16 v{GU+r}, v{R+4*r+i}, v{GW+i}")
    a("s_mov_b64 exec, -1")
    a.stamp(2)
    a("s_min_u32 s45, s25, 15")
    a("s_mul_i32 s33, s45, 25088")
    a("s_mul_i32 s34, s24, 7168")
    a("s_add_u32 s33, s33, s34")
    a("v_add_u32 v3, 4096, v2")
    a.srd(12, P_WO, 448 * 896)
    a("s_mov_b32 m0, s34")
    a("s_nop 0")
    for i in range(4):
        a(f"buffer_load_dwordx4 v2, s[12:15], s33 offen offset:{1024*i} lds")
    a("s_add_u32 m0, s34, 4096")
    a("s_nop 0")
    for i in range(3):
        a(f"buffer_load_dwordx4 v3, s[12:15], s33 offen offset:{1024*i} lds")
    for sh in ("row_shr:1", "row_shr:2", "row_shr:4", "row_shr:8"):
        for r in range(16):
            a(f"v_add_f32_dpp v{GU+r}, v{GU+r}, v{GU+r} {sh} row_mask:0xf bank_mask:0xf bound_ctrl:0")
    for r in range(16):
        a(f"v_add_f32_dpp v{GU+r}, v{GU+r}, v{GU+r} row_bcast:15 row_mask:0xa bank_mask:0xf")
    for r in range(16):
        a(f"v_add_f32_dpp v{GU+r}, v{GU+r}, v{GU+r} row_bcast:31 row_mask:0xc bank_mask:0xf")
    for op in (f"v_mul_f32 vX, {hex(f2u(-LOG2E))}, vX", "v_exp_f32 vX, vX", "v_add_f32 vX, 1.0, vX", "v_rcp_f32 vX, vX"):
        for r in range(16):
            a(op.replace("vX", f"v{GU+r}"))
    a("s_lshl_b32 s35, s26, 6")
    a(f"s_add_u32 s35, s35, {GO}")
    a("s_lshr_b32 s37, s26, 1")
    a("s_lshl_b32 s37, s37, 7")
    a(f"s_add_u32 s37, s37, {F_G}")
    a("s_mov_b32 exec_lo, 0")
    a("s_mov_b32 exec_hi, 0x80000000")
    for i in range(4):
        a(f"buffer_store_dwordx4 {vr(GU+4*i,4)}, v{VZ}, s[20:23], s35 offen offset:{16*i}{SC}")
    a("s_mov_b64 exec, -1")
    nonce_issue(a, 250, True)
    a("v_lshrrev_b32 v15, 5, v1")
    a("v_bfe_u32 v13, v1, 2, 2")
    a("v_lshl_add_u32 v13, v15, 2, v13")
    a("v_mul_u32_u24 v13, 896, v13")
    a("v_bfe_u32 v14, v1, 4, 1")
    a("v_lshl_add_u32 v13, v14, 5, v13")
    a("v_and_b32 v14, 3, v1")
    a("v_lshl_add_u32 v12, v14, 3, v13")
    a("s_lshr_b32 s49, s24, 1")
    a("s_mul_i32 s36, s49, 14336")
    a("s_mul_i32 s38, s27, 448")
    a("s_add_u32 s36, s36, s38")
    a("v_add_u32 v12, s36, v12")
    a(f"s_mul_i32 s38, s27, {7*32768}")
    a("s_lshl_b32 s39, s45, 1")
    a("s_add_u32 s39, s39, s49")
    a("s_lshl_b32 s39, s39, 10")
    a("s_add_u32 s38, s38, s39")
    a(f"s_add_u32 s38, s38, {WOF}")
    a("s_lshr_b32 s40, s25, 2")
    a("s_lshl_b32 s40, s40, 7")
    a(f"s_add_u32 s40, s40, {F_WO}")
    a("s_waitcnt vmcnt(0)")
    nonce_take(a, 250, True)
    cnt_add(a, 4, "s37")
    a("s_cmp_ge_u32 s25, 16")
    a("s_cbranch_scc1 C_END")
    a("s_barrier")
    for i in range(7):
        for hr in range(2):
            a(f"ds_read_b64_tr_b16 {vr(16+4*i+2*hr,2)}, v12 offset:{64*i+8*hr*896}")
    a("s_waitcnt lgkmcnt(0)")
    a("s_cmp_eq_u32 s49, 0")
    a("s_cbranch_scc1 C_WO2")
    a("s_mov_b32 exec_lo, 0")
    for i in range(7):
        a(f"v_mov_b32 v{16+4*i+2}, 0")
        a(f"v_mov_b32 v{16+4*i+3}, 0")
    a("s_mov_b32 exec_lo, -1")
    a.label("C_WO2")
    for i in range(7):
        a(f"buffer_store_dwordx4 {vr(16+4*i,4)}, v2, s[20:23], s38 offen{SC}")
        if i < 6: a("s_add_u32 s38, s38, 32768")
    a("s_waitcnt vmcnt(0)")
    cnt_add(a, 4, "s40")
    a.label("C_END")
    fin(a, 3)

def gen():
    a = Asm()
    gen_entry(a)
    gen_A(a)
    gen_B(a)
    gen_C(a)
    a.label("L_END")
    a("s_endpgm")
    return a.text()

HEADER = open("cdna_kernels/" + NAME + ".s.ref").read().split("; Override launch geometry")[0]

if __name__ == "__main__":
    name = NAME + "_kernel"
    out = HEADER + "; @launch grid=(512,1,1) block=(256,1,1) lds=81920\n"
    out += '.amdgcn_target "amdgcn-amd-amdhsa--gfx950"\n' + kernel_header(name) + gen() + kernel_desc(name, 256)
    dst = sys.argv[1] if len(sys.argv) > 1 else "cdna_kernels/" + NAME + ".s"
    open(dst, "w").write(out)
```

```python
import sys, math, os
import numpy as np
from dsl import *

NAME = "gated_mix__mha_block__ssm_conv_s4__prompt"
KTS = 28672; VTS = 32256; XTS = 7296
KF = 0x000000
VF = 0x200000
XT = 0x400000
GO = 0x5D0000
WOF = 0x600000
OF = 0x880000
BT = 0x690000
FL = 0x670000
F_KV = FL
F_O = FL + 256 * 128
F_XT = FL + 384 * 128
F_G = FL + 416 * 128
F_B = FL + 480 * 128
F_WO = FL + 496 * 128
WS_SIZE = 0xA90000
X_BYTES = 2048 * 896
W_BYTES = 448 * 2688
LOG2E = 1.4426950408889634
QSCALE = LOG2E * 28 ** -0.5
MF32 = "v_mfma_f32_32x32x16_bf16"
MF16 = "v_mfma_f32_16x16x32_bf16"
SC = " sc1"
NON = 60
POLLMAX = 40000
EXP = os.environ.get("EXP", "")
DLY = int(os.environ.get("DLY", "32"))
DEPTH = int(os.environ.get("DEPTH", "3"))
PA = int(os.environ.get("PA", "2")); PB = int(os.environ.get("PB", "3")); PC = int(os.environ.get("PC", "3"))
P_X, P_W, P_WO, P_PAR, P_LDT, P_DSK, P_GW, P_OUT, P_DBG, P_WS = 64, 66, 68, 72, 84, 86, 88, 90, 92, 94
VZ = 255

uid = [0]
def fin(a, idx):
    if not os.environ.get("STAMP"): return
    a("s_waitcnt vmcnt(0)")
    a.stamp(idx)
    dw = os.environ.get("DBGWG")
    if dw:
        uid[0] += 1; u = uid[0]
        a("s_lshl_b32 s96, s2, 2")
        a("s_add_u32 s96, s96, s24")
        a(f"s_cmp_lg_u32 s96, {int(dw)*4}")
        a(f"s_cbranch_scc1 DG{u}")
        a("s_mov_b64 exec, -1")
        a("v_readlane_b32 s97, v254, 1")
        a("v_mbcnt_lo_u32_b32 v0, -1, 0")
        a("v_lshlrev_b32 v1, 1, v0")
        a("v_subrev_u32 v254, s97, v254")
        a("v_and_b32 v1, -4, v1")
        a("s_mov_b32 exec_lo, 0xaaaaaaa8")
        a("s_mov_b32 exec_hi, 0")
        a(f"global_store_dword v1, v254, {sr(P_DBG,2)}")
        a.label(f"DG{u}")
        return
    a.stamp_flush(P_WS)

def cmul(a, d, x, y, phase):
    if phase == 0:
        a(f"v_pk_mul_f32 {vr(d,2)}, {vr(x,2)}, {vr(y,2)} op_sel_hi:[0,1]")
    else:
        a(f"v_pk_fma_f32 {vr(d,2)}, {vr(x,2)}, {vr(y,2)}, {vr(d,2)} op_sel:[1,1,0] op_sel_hi:[1,0,1] neg_lo:[1,0,0]")

def nonce_issue(a, v, allw=False):
    uid[0] += 1; u = uid[0]
    if not allw:
        a("s_cmp_lg_u32 s24, 0")
        a(f"s_cbranch_scc1 NI{u}")
    a(f"global_load_dword v{v}, v{VZ}, {sr(P_DBG,2)}{os.environ.get('NSC', ' sc1')}")
    a.label(f"NI{u}")

def nonce_take(a, v, allw=False):
    uid[0] += 1; u = uid[0]
    if not allw:
        a("s_cmp_lg_u32 s24, 0")
        a(f"s_cbranch_scc1 ND{u}")
    a(f"s_mov_b32 s62, {POLLMAX}")
    a.label(f"NT{u}")
    a(f"v_readfirstlane_b32 s{NON}, v{v}")
    a("s_nop 1")
    a(f"s_cmp_ge_u32 s{NON}, 8")
    a(f"s_cbranch_scc1 ND{u}")
    a("s_sub_u32 s62, s62, 1")
    a(f"s_cbranch_scc1 ND{u}")
    a("s_sleep 8")
    a(f"global_load_dword v{v}, v{VZ}, {sr(P_DBG,2)} sc1")
    a("s_waitcnt vmcnt(0)")
    a(f"s_branch NT{u}")
    a.label(f"ND{u}")

def cnt_load(a, vd, soff):
    a(f"v_mov_b32 v{vd}, 0")
    a("s_mov_b64 exec, 1")
    t = a.vm(f"buffer_atomic_add v{vd}, v{VZ}, s[20:23], {soff} offen sc0 sc1")
    a("s_mov_b64 exec, -1")
    return t

def cnt_wait(a, vd, soff, target, sleep=1):
    uid[0] += 1; u = uid[0]
    a(f"s_mov_b32 s62, {POLLMAX}")
    a.label(f"FC{u}")
    a(f"v_readfirstlane_b32 s4, v{vd}")
    a("s_nop 1")
    a(f"s_cmp_eq_u32 s4, {target}")
    a(f"s_cbranch_scc1 FD{u}")
    a("s_sub_u32 s62, s62, 1")
    a(f"s_cbranch_scc1 FD{u}")
    a(f"s_sleep {sleep}")
    n0 = a.nvm
    cnt_load(a, vd, soff)
    a.nvm = n0
    a("s_waitcnt vmcnt(0)")
    a(f"s_branch FC{u}")
    a.label(f"FD{u}")

def cnt_add(a, vt, soff, va=None, mask="1"):
    a(f"v_mov_b32 v{vt}, 1")
    a(f"s_mov_b64 exec, {mask}")
    a.vm(f"buffer_atomic_add v{vt}, v{VZ if va is None else va}, s[20:23], {soff} offen sc1")
    a("s_mov_b64 exec, -1")

def late_load(a, vd, va):
    a("s_mov_b64 exec, 7")
    a(f"buffer_load_dword v{vd}, v{va}, s[20:23], 0 offen sc1")
    a("s_mov_b64 exec, -1")

def late_check(a, vd, va, vtgt):
    if "nochk" in EXP: return
    uid[0] += 1; u = uid[0]
    a(f"s_mov_b32 s62, {POLLMAX}")
    a.label(f"FC{u}")
    a(f"v_cmp_ne_u32 vcc, v{vd}, v{vtgt}")
    a("s_nop 1")
    a("s_and_b32 s4, vcc_lo, 7")
    a(f"s_cbranch_scc0 FD{u}")
    a("s_sub_u32 s62, s62, 1")
    a(f"s_cbranch_scc1 FD{u}")
    a("s_sleep 16")
    late_load(a, vd, va)
    a("s_waitcnt vmcnt(0)")
    a(f"s_branch FC{u}")
    a.label(f"FD{u}")

RAW = 244
XRW = 232

def gen_entry(a):
    a("s_cmp_ge_u32 s2, 512")
    a("s_cbranch_scc1 L_END")
    a.stamp(0)
    if "dblspan" in EXP: a("s_memrealtime s[100:101]")
    a("s_load_dwordx16 s[64:79], s[0:1], 0")
    a("s_load_dwordx16 s[80:95], s[0:1], 64")
    if "nopf" not in EXP:
        a("s_cmp_lt_u32 s2, 504")
        a("s_cbranch_scc1 E_NOPF")
        a("s_getpc_b64 s[4:5]")
        a.label("E_PC")
        a("v_lshlrev_b32 v4, 7, v0")
        a("v_min_u32 v4, L_END-E_PC, v4")
        a("v_mov_b32 v5, s5")
        a("v_add_co_u32 v4, vcc, s4, v4")
        a("s_nop 1")
        a("v_addc_co_u32 v5, vcc, 0, v5, vcc")
        a("global_load_dword v6, v[4:5], off")
        a.label("E_NOPF")
    a("v_lshrrev_b32 v13, 6, v0")
    a("v_and_b32 v1, 63, v0")
    a("v_lshlrev_b32 v2, 4, v1")
    a(f"v_mov_b32 v{VZ}, 0")
    a("v_readfirstlane_b32 s24, v13")
    a("s_and_b32 s31, s2, 7")
    a("s_bfe_u32 s32, s2, 0x50003")
    a("s_cmp_ge_u32 s2, 256")
    a("s_cbranch_scc1 L_A")
    a("s_and_b32 s27, s24, 1")
    a("s_cmp_ge_u32 s32, 28")
    a("s_cbranch_scc1 L_C")
    a("s_setprio 3")
    a("s_lshl_b32 s39, s32, 1")
    a("s_and_b32 s34, s31, 3")
    a("s_mul_i32 s34, s34, 56")
    a("s_add_u32 s26, s39, s34")
    a("s_lshr_b32 s34, s24, 1")
    a("s_add_u32 s26, s26, s34")
    a("s_lshl_b32 s26, s26, 1")
    a("s_lshr_b32 s34, s31, 2")
    a("s_add_u32 s26, s26, s34")
    a("s_lshl_b32 s33, s26, 9")
    a("s_lshl_b32 s34, s27, 8")
    a("s_add_u32 s33, s33, s34")
    a("v_lshlrev_b32 v3, 2, v1")
    a("v_add_u32 v13, s33, v3")
    a("s_lshl_b32 s34, s26, 1")
    a("s_and_b32 s34, s34, -4")
    a("v_lshlrev_b32 v4, 7, v0")
    a("s_lshl_b32 s33, s2, 15")
    a(f"s_add_u32 s33, s33, {FL}")
    a("s_waitcnt lgkmcnt(0)")
    a.srd(20, P_WS, WS_SIZE)
    a("s_cmp_ge_u32 s2, 2")
    a("s_cbranch_scc1 E_NOINIT")
    a(f"buffer_store_dword v{VZ}, v4, s[20:23], s33 offen sc1")
    a.label("E_NOINIT")
    for i in range(6):
        a(f"global_load_dword v{RAW+i}, v13, {sr(P_PAR+2*i,2)}")
    a(f"s_load_dword s28, {sr(P_LDT,2)}, s34")
    a(f"s_load_dword s38, {sr(P_DSK,2)}, s34")
    a("s_branch L_B")

def gen_A(a):
    a.label("L_A")
    if "noA" in EXP: a("s_endpgm")
    a(f"s_setprio {PA}")
    if "dA" in EXP: a(f"s_sleep {DLY}")
    a("s_lshr_b32 s33, s31, 1")
    a("s_lshl_b32 s33, s33, 2")
    a("s_and_b32 s34, s32, 3")
    a("s_add_u32 s25, s33, s34")
    a("s_and_b32 s27, s31, 1")
    a("s_lshr_b32 s54, s32, 2")
    a("s_lshl_b32 s33, s27, 3")
    a("s_add_u32 s26, s33, s54")
    XR, ACC, QACC, WF, NV, PK, T = 16, 128, 128, 176, 248, 224, 240
    XL = 32768
    a("s_lshl_b32 s33, s25, 2")
    a("s_add_u32 s35, s33, s24")
    a("s_mul_i32 s33, s35, 28672")
    a("v_lshrrev_b32 v13, 3, v1")
    a("v_mul_u32_u24 v12, 896, v13")
    a("v_and_b32 v14, 7, v1")
    a("v_lshrrev_b32 v15, 4, v1")
    a("v_xor_b32 v15, v15, v14")
    a("v_lshl_add_u32 v3, v15, 4, v12")
    a("v_add_u32 v3, s33, v3")
    a("v_xor_b32 v246, 64, v3")
    a(f"v_add_u32 v244, {6144}, v246")
    a(f"v_add_u32 v245, {6144*2}, v3")
    a(f"v_add_u32 v246, {6144*3}, v246")
    a("s_mul_i32 s40, s24, 12288")
    a(f"s_add_u32 s40, s40, {XL}")
    a("s_lshl_b32 s33, s34, 1")
    a("s_add_u32 s28, s33, s54")
    a("s_sub_u32 s33, s28, 7")
    a("s_cmp_ge_u32 s28, 7")
    a("s_cselect_b32 s28, s33, s28")
    ROT = int(os.environ.get("ROT", "7"))
    if ROT == 1: a("s_mov_b32 s28, 0")
    if ROT == 2:
        a("s_add_u32 s28, s34, s54"); a("s_and_b32 s28, s28, 1"); a("s_mul_i32 s28, s28, 3")
    if ROT == 4:
        a("s_add_u32 s28, s34, s54"); a("s_and_b32 s28, s28, 3"); a("s_lshl_b32 s28, s28, 1")
    if ROT == 8:
        a("s_min_u32 s28, s31, 6")
    a("s_lshl_b32 s29, s28, 7")
    a("s_mul_i32 s37, s28, 172032")
    a("s_mov_b32 s39, s37")
    a("v_bfe_u32 v15, v1, 4, 1")
    a("v_lshlrev_b32 v15, 2, v15")
    a("v_xor_b32 v15, v15, v14")
    a("v_mul_u32_u24 v4, 2688, v13")
    a("v_lshl_add_u32 v4, v15, 4, v4")
    a("s_min_u32 s55, s54, 6")
    a("s_mul_i32 s33, s24, 43008")
    a("s_mul_i32 s34, s27, 896")
    a("s_add_u32 s33, s33, s34")
    a("s_lshl_b32 s34, s55, 7")
    a("s_add_u32 s33, s33, s34")
    a("s_add_u32 s33, s33, 896")
    a("v_add_u32 v4, s33, v4")
    a(f"v_add_u32 v5, {21504-1024}, v4")
    a("s_lshl_b32 s36, s24, 11")
    a("s_lshl_b32 s47, s25, 4")
    a("s_add_u32 s47, s47, s26")
    a("s_mul_i32 s48, s47, 7168")
    a("s_mul_i32 s33, s24, 224")
    a("s_add_u32 s48, s48, s33")
    a("s_add_u32 s49, s48, 3584")
    a("v_lshlrev_b32 v7, 2, v1")
    a("s_waitcnt lgkmcnt(0)")
    a.stamp(1)
    if "dK1" in EXP: a(f"s_sleep {DLY}")
    if "dK2" in EXP: a("s_sleep 64")
    if "dK4" in EXP: a("s_sleep 127")
    a.srd(12, P_X, X_BYTES)
    a.srd(16, P_W, W_BYTES)
    def adv(r):
        a(f"s_add_u32 s{r}, s{r}, 1")
        a(f"s_cmp_eq_u32 s{r}, 7")
        a(f"s_cselect_b32 s{r}, 0, s{r}")
    QD = int(os.environ.get("QD", "8"))
    L = []
    for s_ in range(7):
        L += [("x", s_, 0), ("x", s_, 1), ("x", s_, 2), ("x", s_, 3), ("w", s_, 0), ("w", s_, 1)]
    L += [("q", i, 0) for i in range(7)]
    tag = {}; tagxf = {}
    L0 = list(L)
    lastbar = [-1]; xfree = [-1]; light = [False]; m0 = [None]
    def setm0(base, off):
        if m0[0] != (base, off):
            a(f"s_add_u32 m0, {base}, {off}")
            m0[0] = (base, off)
            return True
        return False
    def issue():
        seen = set()
        for e in L:
            k, s_, n = e
            if k in seen: continue
            seen.add(k)
            if k in "nq" and ("x" in seen or "w" in seen): return
            need = {"x": s_ - 3, "q": 4 + (s_ >> 2)}.get(k, -1)
            if need > xfree[0]: continue
            if k == "w" and s_ >= 4 and lastbar[0] < s_ - 2: continue
            break
        else:
            return
        L.remove(e)
        if k == "x":
            ch = setm0("s40", (s_ % 3) * 4096)
            if n == 0 and s_:
                a("s_add_u32 s29, s29, 128")
                a("s_cmp_eq_u32 s29, 896")
                a("s_cselect_b32 s29, 0, s29")
            elif ch: a("s_nop 0")
            tag[e] = a.vm(f"buffer_load_dwordx4 v{3 if n == 0 else 243+n}, s[12:15], s29 offen offset:{1024*n} lds")
        elif k == "w":
            ch = setm0("s36", (s_ % 4) * 8192)
            if n == 0 and s_:
                a("s_add_u32 s37, s37, 172032")
                a(f"s_cmp_eq_u32 s37, {7*172032}")
                a("s_cselect_b32 s37, 0, s37")
            elif ch: a("s_nop 0")
            tag[e] = a.vm(f"buffer_load_dwordx4 v{4+n}, s[16:19], s37 offen offset:{1024*n} lds")
        elif k == "n":
            nonce_issue(a, NV)
        else:
            setm0("s40", 4096 + 1024 * s_)
            if s_:
                a("s_add_u32 s39, s39, 172032")
                a(f"s_cmp_eq_u32 s39, {7*172032}")
                a("s_cselect_b32 s39, 0, s39")
            else: a("s_nop 0")
            a.vm(f"buffer_load_dwordx4 v14, s[16:19], s39 offen lds")
    XL_ = int(os.environ.get("XL", "1"))
    def xt_rows():
        for r in range(8):
            a.vm(f"buffer_load_dword v{ACC+r}, v7, s[12:15], s{48+(r>>2)} offen offset:{896*(r&3)}")
        return a.nvm
    if not XL_: rowtag = xt_rows()
    nvm_light = a.nvm
    a.srd(20, P_WS, WS_SIZE)
    a("s_cmp_eq_u32 s54, 7")
    a("s_cbranch_scc1 A_GOL")
    for _ in range(QD): issue()
    a.label("A_GO")
    if XL_:
        assert QD == 8
        rowtag = xt_rows()
    if "tlb" in EXP:
        a("s_cmp_lg_u32 s24, 0")
        a("s_cbranch_scc1 A_NOTLB")
        for i, ad in enumerate((0x1fff80, 0x3fff80, 0x5fff80, 0x680000, 0x860000, 0xA80000)):
            a(f"s_mov_b32 s33, {hex(ad)}")
            a(f"v_writelane_b32 v6, s33, {i}")
        a("s_mov_b64 exec, 63")
        a("buffer_load_dword v7, v6, s[20:23], 0 offen")
        a("s_mov_b64 exec, 1")
        a(f"global_load_dword v7, v{VZ}, {sr(P_OUT,2)}")
        a("s_mov_b64 exec, -1")
        a.label("A_NOTLB")
    if "stopA" in EXP: a.stamp(7)
    if "Aload" in EXP:
        a("s_waitcnt vmcnt(0)"); a("s_endpgm")
    a("v_and_b32 v13, 31, v1")
    a("v_bfe_u32 v14, v1, 1, 3")
    a("v_lshrrev_b32 v15, 5, v1")
    a("v_xor_b32 v14, v14, v15")
    a("v_lshlrev_b32 v13, 7, v13")
    a("v_lshl_add_u32 v8, v14, 4, v13")
    a("v_add_u32 v8, s40, v8")
    for ks in range(1, 4):
        a(f"v_xor_b32 v{8+ks}, {32*ks}, v8")
    a(f"v_bfe_u32 v{T}, v1, 2, 2")
    a(f"v_lshl_add_u32 v{T+1}, v15, 3, v{T}")
    a(f"v_bfe_u32 v{T+2}, v1, 4, 1")
    a(f"v_and_b32 v{T+3}, 3, v1")
    a(f"v_lshl_add_u32 v{PK}, v{T+2}, 2, v{T+3}")
    a(f"v_and_b32 v{PK+1}, 1, v1")
    a(f"v_bfe_u32 v{PK+2}, v1, 1, 1")
    a(f"v_lshl_add_u32 v{PK+1}, v{PK+1}, 1, v{PK+2}")
    a(f"v_lshl_add_u32 v{PK+1}, v{T+2}, 2, v{PK+1}")
    a(f"v_bfe_u32 v{T+3}, v1, 3, 1")
    a(f"v_lshlrev_b32 v{T+3}, 6, v{T+3}")
    a(f"v_lshl_add_u32 v{T+3}, v{T+1}, 7, v{T+3}")
    a("s_cmp_eq_u32 s27, 1")
    a("s_cselect_b64 vcc, -1, 0")
    a(f"v_cndmask_b32 v12, v{PK+1}, v{PK}, vcc")
    a(f"v_lshl_add_u32 v12, v12, 3, v{T+3}")
    a("v_xor_b32 v13, 64, v12")
    a(f"v_add_u32 v{PK+2}, 2, v{PK+1}")
    a(f"v_sub_u32 v{PK+3}, 7, v{PK+1}")
    a(f"v_cmp_gt_u32 vcc, 6, v{PK+1}")
    a("s_bitcmp1_b32 s26, 0")
    a("s_cselect_b64 s[4:5], -1, 0")
    a(f"v_cndmask_b32 v{PK+2}, v{PK+3}, v{PK+2}, vcc")
    a(f"v_cndmask_b32 v{PK+2}, v{PK+1}, v{PK+2}, s[4:5]")
    a(f"v_lshlrev_b32 v15, 6, v{T+1}")
    a(f"v_lshl_add_u32 v15, v{PK+2}, 3, v15")
    a(f"v_add_u32 v15, {XL + 4096}, v15")
    a("v_lshrrev_b32 v14, 2, v1")
    a("v_mul_u32_u24 v14, 2688, v14")
    a(f"v_and_b32 v{T}, 3, v1")
    a(f"v_lshl_add_u32 v14, v{T}, 4, v14")
    a("s_mul_i32 s33, s26, 56")
    a("s_and_b32 s33, s33, -16")
    a(f"s_mul_i32 s34, s24, {16*2688}")
    a("s_add_u32 s33, s33, s34")
    a("v_add_u32 v14, s33, v14")
    a("s_mul_i32 s33, s54, 2341")
    a("s_lshr_b32 s33, s33, 10")
    a(f"v_add_u32 v{PK}, s33, v1")
    a(f"v_mul_u32_u24 v{PK+1}, 28, v{PK}")
    a(f"v_lshrrev_b32 v{PK+1}, 6, v{PK+1}")
    a(f"v_cmp_ge_u32 s[56:57], s54, v{PK+1}")
    a(f"v_lshlrev_b32 v243, 11, v{PK}")
    a("s_lshl_b32 s42, s25, 7")
    a(f"s_add_u32 s42, s42, {F_KV}")
    a("s_and_b64 s[56:57], s[56:57], 15")
    a(f"s_mul_i32 s48, s47, {XTS}")
    a("s_mul_i32 s33, s24, 896")
    a("s_add_u32 s48, s48, s33")
    a(f"s_add_u32 s48, s48, {XT}")
    a("s_lshr_b32 s49, s25, 2")
    a("s_lshl_b32 s49, s49, 10")
    a(f"s_add_u32 s49, s49, {F_XT}")
    a("v_lshlrev_b32 v7, 7, v1")
    a("s_mov_b32 s50, 0x05040100")
    a("s_mov_b32 s51, 0x07060302")
    def xt_store():
        a.wait_vm(rowtag)
        a("s_mov_b32 exec_hi, 0xffffff")
        for e in range(2):
            for q in range(4):
                a(f"v_perm_b32 v{ACC+8+4*e+q}, v{ACC+2*q+1}, v{ACC+2*q}, s{50+e}")
            a.vm(f"buffer_store_dwordx4 {vr(ACC+8+4*e,4)}, v2, s[20:23], s48 offen offset:{3584*e}{SC}")
        a("s_mov_b64 exec, -1")
    def xt_pub(tg_):
        nonce_take(a, NV)
        a("s_cmp_lg_u32 s24, 0")
        a(f"s_cbranch_scc1 XP{tg_}")
        n0 = a.nvm
        cnt_add(a, NV + 1, "s49", 7, "0xff")
        a.nvm = n0
        a.label(f"XP{tg_}")
    a("s_cmp_eq_u32 s54, 7")
    a("s_cbranch_scc1 A_LIGHT")
    a("s_cmp_eq_u32 s27, 1")
    a("s_cbranch_scc1 A_V")

    def pass1(vtype):
        tagtr = {}
        NB = 6; TD = 3
        NIS = int(os.environ.get("NIS", "2"))
        def trload(u, t):
            s, ks = u >> 2, u & 3
            for hr in range(2):
                off = (s % 4) * 8192 + (16 * ks + 4 * hr) * 128
                tagtr[u] = a.ds(f"ds_read_b64_tr_b16 {vr(WF+(u%NB)*8+4*t+2*hr,2)}, v{12+t} offset:{off}")
        def mfma(u, t):
            wf = vr(WF + (u % NB) * 8 + 4 * t, 4); xf = vr(XR + 4 * u, 4)
            c = "0" if u == 0 else vr(ACC + 16 * t, 16)
            a(f"{MF32} {vr(ACC+16*t,16)}, {xf}, {wf}, {c}" if vtype else f"{MF32} {vr(ACC+16*t,16)}, {wf}, {xf}, {c}")
        pend = None; ntag = [0]
        for _ in range(int(os.environ.get("QD2", "6"))): issue()
        XB_ = int(os.environ.get("XB", "3"))
        XS_ = int(os.environ.get("XS", "-2"))
        if XS_ == -5: xt_store()
        for u in range(-4, 28):
            if u >= 0:
                a.wait_ds(max(tagtr[u], tagxf[u >> 2]))
                mfma(u, 0)
            issue()
            if (u + TD) % 4 == 0 and (u + TD) // 4 < 7:
                sb = (u + TD) // 4
                a.wait_vm(max(tag[("w", sb, 1)], ntag[0] + 1) if sb == XB_ else tag[("w", sb, 1)])
                a("s_barrier")
                lastbar[0] = sb
                if sb == 0:
                    nonce_issue(a, NV); ntag[0] = a.nvm
                if sb == XB_: xt_pub("V" if vtype else "K")
                if sb in (0, 6): a.stamp(2 + sb // 6)
            if 0 <= u + TD < 28: trload(u + TD, 0)
            if u >= 0: mfma(u, 1)
            if pend is not None:
                a.wait_ds(tagxf[pend]); xfree[0] = pend; pend = None
            for _ in range(NIS - 1): issue()
            if 0 <= u + TD < 28: trload(u + TD, 1)
            if u % 4 == 0 and u // 4 + 1 < 7:
                s = u // 4 + 1
                a.wait_vm(tag[("x", s, 3)])
                for ks in range(4):
                    tagxf[s] = a.ds(f"ds_read_b128 {vr(XR+16*s+4*ks,4)}, v{8+ks} offset:{(s%3)*4096}")
                pend = s
            if u == XS_:
                xt_store(); ntag[0] = max(ntag[0], a.nvm)
        assert not L, L
    saved = (a.nvm, a.nds, list(L), m0[0])
    a("v_mov_b32 v247, v2")
    a(f"s_mul_i32 s38, s35, {KTS}")
    a("s_lshl_b32 s33, s55, 12")
    a("s_add_u32 s38, s38, s33")
    a("s_add_u32 s41, s38, 1024")
    a("s_add_u32 s43, s38, 2048")
    a("s_add_u32 s44, s38, 3072")
    pass1(False)
    a("s_branch A_ST")
    a.label("A_V")
    a.nvm, a.nds, L[:], m0[0] = saved; lastbar[0] = -1; xfree[0] = -1
    a("v_lshrrev_b32 v247, 5, v1")
    a(f"v_mul_u32_u24 v247, {8064-512}, v247")
    a("v_add_u32 v247, v247, v2")
    a(f"s_mul_i32 s38, s35, {VTS}")
    a("s_mul_i32 s33, s55, 1152")
    a("s_add_u32 s38, s38, s33")
    a(f"s_add_u32 s38, s38, {VF}")
    a("s_add_u32 s41, s38, 16128")
    a("s_add_u32 s43, s38, 512")
    a("s_add_u32 s44, s41, 512")
    a(f"v_lshrrev_b32 v{T}, 1, v1")
    a(f"v_mul_u32_u24 v{T}, 8064, v{T}")
    a(f"v_and_b32 v{T+1}, 1, v1")
    a(f"v_lshl_add_u32 v{T}, v{T+1}, 4, v{T}")
    a(f"v_subrev_u32 v{T+1}, 1, v{T+1}")
    for i in range(4):
        a(f"v_and_b32 v{PK+i}, 0x3f803f80, v{T+1}")
    a("s_mov_b64 exec, 0xff")
    a(f"buffer_store_dwordx4 {vr(PK,4)}, v{T}, s[20:23], s38 offen offset:1024{SC}")
    a("s_mov_b64 exec, -1")
    pass1(True)
    a.label("A_ST")
    a.nop(11)
    for t in range(2):
        for r in range(0, 16, 2):
            a(f"v_cvt_pk_bf16_f32 v{PK+8*t+r//2}, v{ACC+16*t+r}, v{ACC+16*t+r+1}")
        for f in range(2):
            a(f"buffer_store_dwordx4 {vr(PK+8*t+4*f,4)}, v247, s[20:23], s{(38,41,43,44)[2*t+f]} offen{SC}")
    a("s_waitcnt vmcnt(4)")
    a("s_branch A_P2")
    lslot = {0: ("s40", 0), 1: ("s40", 4096), 2: ("s40", 8192), 3: ("s36", 0), 4: ("s36", 4096), 5: ("s40", 0), 6: ("s36", 0)}
    ltag = {}
    def lx(s_):
        a(f"s_add_u32 m0, {lslot[s_][0]}, {lslot[s_][1]}")
        if s_:
            a("s_add_u32 s29, s29, 128")
            a("s_cmp_eq_u32 s29, 896")
            a("s_cselect_b32 s29, 0, s29")
        else: a("s_nop 0")
        for n in range(4):
            ltag[s_] = a.vm(f"buffer_load_dwordx4 v{3 if n == 0 else 243+n}, s[12:15], s29 offen offset:{1024*n} lds")
    def lq(i):
        a(f"s_add_u32 m0, s40, {4096 + 1024*i}")
        if i:
            a("s_add_u32 s39, s39, 172032")
            a(f"s_cmp_eq_u32 s39, {7*172032}")
            a("s_cselect_b32 s39, 0, s39")
        else: a("s_nop 0")
        a.vm(f"buffer_load_dwordx4 v14, s[16:19], s39 offen lds")
    a.label("A_GOL")
    a.nvm = nvm_light
    a("s_lshl_b32 s36, s24, 13")
    LE = int(os.environ.get("LE", "2"))
    for s_ in range(LE): lx(s_)
    a("s_branch A_GO")
    a.label("A_LIGHT")
    if XL_:
        assert LE == 2
        a.nvm += 8
    for s_ in range(LE, 5):
        if s_ == 3:
            xt_store()
            nonce_issue(a, NV)
        lx(s_)
    a("s_sub_u32 s33, s36, s40")
    LA = (4, 5, 12, 13)
    for ks in range(4):
        a(f"v_add_u32 v{LA[ks]}, s33, v{8+ks}")
    for s_ in range(7):
        a.wait_vm(ltag[s_])
        for ks in range(4):
            a(f"ds_read_b128 {vr(XR+16*s_+4*ks,4)}, v{(8+ks) if lslot[s_][0] == 's40' else LA[ks]} offset:{lslot[s_][1]}")
        if s_ < 4: a("s_waitcnt lgkmcnt(0)")
        if s_ == 0: lx(5)
        if s_ == 1:
            for i in range(4): lq(i)
        if s_ == 2:
            for i in range(4, 7): lq(i)
        if s_ == 3:
            lx(6)
            a("s_barrier")
            xt_pub("L")
    a("s_waitcnt vmcnt(0) lgkmcnt(0)")
    a.label("A_P2")
    if "dP" in EXP: a(f"s_sleep {DLY}")
    a.stamp(4)
    nonce_take(a, NV)
    a("s_barrier")
    Q, O, S, P, KB, VB, NM, MX, T2 = 16, 48, 112, 144, 160, 192, 224, 228, 232
    VK0, VK1, VV0, VV1, C1, C2 = 10, 11, 12, 13, 252, 253
    class Rec:
        def __init__(self): self.ch = []
        def __call__(self, *ins): self.ch.append(list(ins))
    c = Rec()
    c("s_cmp_eq_u32 s54, 7", "s_cselect_b32 s59, 1, s24")
    c("s_mul_i32 s33, s26, 28"); c("s_lshr_b32 s44, s33, 6"); c("s_add_u32 s34, s33, 27"); c("s_lshr_b32 s34, s34, 6")
    c("s_sub_u32 s34, s34, s44"); c("s_lshl_b32 s34, s34, 1"); c("s_add_u32 s58, s34, 2")
    c("v_lshrrev_b32 v4, 5, v1")
    c("v_lshlrev_b32 v249, 9, v1"); c(f"v_mov_b32 v{NV+2}, 0")
    c("s_lshl_b32 s34, s26, 11"); c("s_lshl_b32 s36, s24, 7"); c("s_add_u32 s34, s34, s36"); c(f"s_add_u32 s53, s34, {F_KV}")
    c(f"s_mov_b32 s46, {hex(f2u(QSCALE))}"); c("s_mov_b32 s47, s46")
    c("s_lshl_b32 s36, s24, 11"); c("s_add_u32 s36, s36, 49152"); c("v_add_u32 v6, s36, v2")
    for t in range(1, 4): c(f"v_xor_b32 v{6+t}, {2048*t}, v6")
    c("s_lshr_b32 s34, s26, 1"); c("s_mul_i32 s34, s34, 3584"); c("s_and_b32 s36, s26, 1"); c("s_lshl_b32 s37, s36, 11")
    c("s_add_u32 s34, s34, s37"); c(f"v_add_u32 v{VK0}, s34, v2"); c(f"v_add_u32 v{VK1}, 1024, v{VK0}")
    c(f"s_mul_i32 s37, s36, {2048-8}")
    c("s_mov_b32 exec_lo, 0", f"v_subrev_u32 v{VK1}, s37, v{VK1}", "s_mov_b32 exec_lo, -1")
    c("v_and_b32 v5, 31, v1"); c("v_add_u32 v3, s33, v5"); c("v_lshrrev_b32 v5, 6, v3"); c("v_lshlrev_b32 v5, 7, v5")
    c(f"v_lshl_add_u32 v{VV0}, v3, 4, v5")
    c("s_mul_i32 s34, s44, 1152"); c("s_add_u32 s34, s34, 1024"); c("s_add_u32 s37, s34, 16")
    c("s_mov_b32 exec_lo, 0xf0000000", "s_mov_b32 exec_hi, 0xf0000000", f"v_mov_b32 v{VV0}, s37", "s_mov_b64 exec, -1")
    c(f"v_writelane_b32 v{VV0}, s34, 28"); c(f"v_writelane_b32 v{VV0}, s34, 60")
    c("s_movk_i32 s34, 8064"); c(f"v_mad_u32_u24 v{VV0}, v4, s34, v{VV0}"); c(f"v_add_u32 v{VV1}, 16128, v{VV0}")
    c(f"s_mul_i32 s34, s24, {4*KTS}"); c(f"s_mul_i32 s37, s24, {4*VTS}"); c(f"s_add_u32 s37, s37, {VF}")
    for d, sz, off in ((12, 52 * KTS, "s34"), (16, 52 * VTS, "s37")):
        c(f"s_add_u32 s{d}, s{P_WS}, {off}", f"s_addc_u32 s{d+1}, s{P_WS+1}, 0")
        c(f"s_mov_b32 s{d+2}, {sz}"); c(f"s_mov_b32 s{d+3}, 0x00020000")
    c("s_mov_b32 s63, 15")
    c(f"v_mov_b32 v{C1}, 0x3f803f80"); c(f"v_mov_b32 v{C2}, 0x3f80")
    for r in range(8): c(f"v_mov_b32 v{VB+24+r}, 0")
    for t in range(4): c(f"v_mov_b32 v{NM+t}, 0")
    c("s_mov_b32 s41, 0")
    PV_ = NV + 2
    def kv_poll():
        a("s_mov_b64 exec, 15")
        a(f"buffer_atomic_umax v{PV_}, v249, s[20:23], s53 offen sc0 sc1")
        a("s_mov_b64 exec, -1")
    def kv_pick(tagname):
        a(f"s_mov_b32 s62, {POLLMAX}")
        a.label(f"KP{tagname}")
        a(f"v_cmp_eq_u32 vcc, s58, v{PV_}")
        a("s_nop 1")
        a("s_and_b32 s5, vcc_lo, s63")
        a(f"s_cbranch_scc1 KD{tagname}")
        a("s_mov_b32 s5, s63")
        a("s_sub_u32 s62, s62, 1")
        a(f"s_cbranch_scc1 KD{tagname}")
        a("s_sleep 1")
        kv_poll()
        a("s_waitcnt vmcnt(0)")
        a(f"s_branch KP{tagname}")
        a.label(f"KD{tagname}")
        a("s_ff1_i32_b32 s59, s5")
        a("s_bitset0_b32 s63, s59")
        a("s_bitset0_b32 s5, s59")
    def first_loads():
        a(f"s_mul_i32 s44, s59, {16*KTS}")
        a(f"s_mul_i32 s45, s59, {16*VTS}")
        for kt in range(4):
            for f in range(2):
                r = a.vm(f"buffer_load_dwordx4 {vr(KB+8*kt+4*f,4)}, v{VK0+f}, s[12:15], s44 offen{SC}")
            if kt < 3: a(f"s_addk_i32 s44, {KTS}")
            if kt == 0: tag = r
            if kt < 3:
                for f in range(2):
                    a.vm(f"buffer_load_dwordx4 {vr(VB+8*kt+4*f,4)}, v{VV0+f}, s[16:19], s45 offen{SC}")
                a(f"s_addk_i32 s45, {VTS}")
        return tag
    def patch(kb):
        a(f"v_mov_b32_dpp v{kb+6}, v{C1} quad_perm:[0,1,2,3] row_mask:0xc bank_mask:0xf")
        a(f"v_mov_b32_dpp v{kb+7}, v{C2} quad_perm:[0,1,2,3] row_mask:0xc bank_mask:0xf")
    tq = {}
    def trq(u):
        for hr in range(2):
            tq[u] = a.ds(f"ds_read_b64_tr_b16 {vr(WF+(u%8)*4+2*hr,2)}, v15 offset:{(u&3)*12288+(u>>2)*1024+256*hr}")
    PUBU = int(os.environ.get("PUBU", "28")); EPU = int(os.environ.get("EPU", "99"))
    def publish():
        a("s_cmp_lg_u32 s59, 0")
        a("s_waitcnt vmcnt(0)")
        a("s_barrier")
        a("s_cbranch_scc1 A_NOPUB")
        cnt_add(a, NV, "s42", 243, "s[56:57]")
        a.label("A_NOPUB")
        a(f"s_setprio {os.environ.get('PQ', '2')}")
        a.stamp(5)
    for u in range(6): trq(u)
    for u in range(28):
        if u + 6 < 28: trq(u + 6)
        a.wait_ds(tq[u])
        cc = "0" if u == 0 else vr(QACC, 16)
        a(f"{MF32} {vr(QACC,16)}, {vr(WF+(u%8)*4,4)}, {vr(XR+4*u,4)}, {cc}")
        n = 0
        while c.ch and n < (3 if u < 22 else 5):
            for ins in c.ch.pop(0): a(ins); n += 1
        if u == PUBU: publish()
        if u == EPU: kv_poll()
    assert not c.ch, len(c.ch)
    def zero_acc():
        for t in range(4):
            a(f"{MF32} {vr(O+16*t,16)}, {vr(VB+24,4)}, {vr(VB+24,4)}, 0")
    zero_acc()
    if PUBU >= 28: publish()
    else:
        a.nop(4)
        a("s_barrier")
    if "stopA" in EXP:
        fin(a, 6); a("s_endpgm")
    kv_poll()
    a.nop(1)
    for r in range(16):
        a(f"v_mul_f32 v{QACC+r}, s46, v{QACC+r}")
    for r in range(0, 16, 2):
        a(f"v_cvt_pk_bf16_f32 v{Q+r//2}, v{QACC+r}, v{QACC+r+1}")
    a("s_mov_b32 exec_lo, 0")
    a(f"v_mov_b32 v{Q+6}, 0")
    a(f"v_mov_b32 v{Q+7}, 0")
    a("s_mov_b32 exec_lo, -1")
    for f in range(2):
        a(f"ds_write_b128 v6, {vr(Q+4*f,4)} offset:{1024*f}")
    a("s_waitcnt lgkmcnt(0)")
    a("s_barrier")
    for t in range(1, 4):
        for f in range(2):
            a(f"ds_read_b128 {vr(Q+8*t+4*f,4)}, v{6+t} offset:{1024*f}")
    if EPU < 28:
        a("s_waitcnt vmcnt(1)")
        a(f"v_cmp_eq_u32 vcc, s58, v{PV_}")
        a("s_nop 1")
        a("s_and_b32 s6, vcc_lo, 15")
        a("s_cbranch_scc0 A_E0")
        kv_pick("E")
        first_loads()
        kv_poll()
        a.label("A_E0")
    a("s_mov_b32 s42, 0x07060302")
    a("s_min_u32 s33, s32, 27")
    a("s_and_b32 s34, s33, 3")
    a("s_lshl_b32 s47, s31, 2")
    a("s_add_u32 s47, s47, s34")
    a("s_lshr_b32 s48, s33, 2")
    a("s_lshr_b32 s49, s24, 1")
    a("s_lshl_b32 s33, s47, 1")
    a("s_add_u32 s49, s49, s33")
    a("s_and_b32 s50, s24, 1")
    a("s_lshl_b32 s33, s48, 1")
    a("s_add_u32 s50, s50, s33")
    a("v_bfe_u32 v5, v1, 2, 2")
    a("v_lshlrev_b32 v9, 7, v5")
    a("v_bfe_u32 v5, v1, 4, 1")
    a("v_lshl_add_u32 v9, v5, 6, v9")
    a("v_and_b32 v5, 3, v1")
    a("v_lshl_add_u32 v9, v5, 4, v9")
    a("v_lshl_add_u32 v9, v4, 9, v9")
    for t in range(1, 4):
        a(f"s_xor_b32 s33, s24, {t}")
        a("s_mul_i32 s33, s33, 12288")
        a(f"s_add_u32 s33, s33, {(t-1)*4096}")
        a(f"v_add_u32 v{3+t}, s33, v2")
    a("s_mul_i32 s33, s24, 12288")
    a("v_add_u32 v7, s33, v2")
    a("v_or_b32 v8, 512, v7")
    a("s_lshl_b32 s33, s35, 4")
    a("s_add_u32 s33, s33, s26")
    a("s_lshl_b32 s43, s33, 11")
    a(f"s_add_u32 s43, s43, {OF}")
    a("s_lshr_b32 s51, s35, 1")
    a("s_lshl_b32 s51, s51, 9")
    a("s_lshr_b32 s33, s26, 2")
    a("s_lshl_b32 s33, s33, 7")
    a("s_add_u32 s51, s51, s33")
    a(f"s_add_u32 s51, s51, {F_O}")
    a("s_lshl_b32 s33, s50, 7")
    a(f"s_add_u32 s33, s33, {F_B}")
    a("v_mov_b32 v14, s33")
    a("v_mov_b32 v15, 64")
    a("s_lshl_b32 s33, s49, 7")
    a(f"s_add_u32 s33, s33, {F_G}")
    a("v_writelane_b32 v14, s33, 1")
    a("v_writelane_b32 v15, 2, 1")
    a("s_lshl_b32 s33, s24, 7")
    a(f"s_add_u32 s33, s33, {F_WO}")
    a("v_writelane_b32 v14, s33, 2")
    a("v_writelane_b32 v15, 16, 2")
    if EPU < 28:
        a("s_cmp_lg_u32 s6, 0")
        a("s_cbranch_scc1 A_E1")
    a("s_waitcnt vmcnt(0)")
    kv_pick("A")
    tagk0 = first_loads()
    kv_poll()
    a.nvm += 1
    if EPU < 28: a.label("A_E1")
    a.stamp(6)
    a("s_waitcnt lgkmcnt(0)")
    a.wait_vm(tagk0)
    a.stamp(7)
    if "dL" in EXP: a(f"s_sleep {DLY}")
    TT = [S + 16, T2, P, S]
    patch(KB)
    a("s_nop 0")
    def mx(t):
        a(f"v_max3_f32 v{MX+t}, v{TT[t]}, v{TT[t]+1}, v{TT[t]+2}")
        for i in range(1, 4):
            a(f"v_max3_f32 v{MX+t}, v{MX+t}, v{TT[t]+2*i+1}, v{TT[t]+2*i+2}")
    for t in range(4):
        a(f"{MF32} {vr(TT[t],16)}, {vr(KB,4)}, {vr(Q+8*t,4)}, 0")
        a(f"{MF32} {vr(TT[t],16)}, {vr(KB+4,4)}, {vr(Q+8*t+4,4)}, {vr(TT[t],16)}")
    a.nop(6)
    mx(0); mx(1); mx(2)
    mx(3)
    a.label("A_SETMAX")
    def setm(ts):
        for t in ts: a(f"v_sub_f32 v{NM+t}, v{NM+t}, v{MX+t}")
        for t in ts: a(f"v_and_b32 v{T2+t}, 0xffff0000, v{NM+t}")
        for t in ts: a(f"v_sub_f32 v{T2+t}, v{NM+t}, v{T2+t}")
        for t in ts: a(f"v_and_b32 v{T2+4+t}, 0xffff0000, v{T2+t}")
        for t in ts: a(f"v_sub_f32 v{T2+4+t}, v{T2+t}, v{T2+4+t}")
        for t in ts:
            a(f"v_perm_b32 v{Q+8*t+6}, v{T2+t}, v{NM+t}, s42")
            a(f"v_lshrrev_b32 v{Q+8*t+7}, 16, v{T2+4+t}")
    a("s_mov_b32 exec_lo, 0")
    setm((0, 1))
    a("s_mov_b32 exec_lo, -1")
    a(f"{MF32} {vr(S,16)}, {vr(KB,4)}, {vr(Q,4)}, 0")
    a(f"{MF32} {vr(S,16)}, {vr(KB+4,4)}, {vr(Q+4,4)}, {vr(S,16)}")
    a("s_mov_b32 exec_lo, 0")
    setm((2, 3))
    a("s_mov_b32 exec_lo, -1")
    for r in range(8):
        a(f"v_mov_b32 v{P+8+r}, 0")
    a("s_mov_b32 s46, 4")
    a(f"s_movk_i32 s60, {KTS}")
    a(f"s_movk_i32 s61, {VTS}")
    a(f"s_setprio {os.environ.get('PL', '1')}")
    a.label("A_LOOP")
    sh = {}
    for kt in range(4):
        b = 4 * kt
        for f in range(2):
            sh[(b, 2 + f)] = [f"buffer_load_dwordx4 {vr(VB+8*((kt-1)&3)+4*f,4)}, v{VV0+f}, s[16:19], s45 offen{SC}"]
            sh[(b + 2, 1 + f)] = [f"buffer_load_dwordx4 {vr(KB+8*kt+4*f,4)}, v{VK0+f}, s[12:15], s44 offen{SC}"]
        sh[(b + 1, 1)] = ["s_waitcnt vmcnt(12)"]
        sh[(b + 2, 3)] = ["s_waitcnt vmcnt(12)"]
        if kt: sh[(b + 1, 0)] = ["s_add_u32 s45, s45, s61"]
        if kt < 3: sh[(b + 3, 1)] = ["s_add_u32 s44, s44, s60"]
    sh[(1, 0)] = ["s_cmp_le_u32 s5, 128"]
    sh[(1, 2)] = ["s_cbranch_scc1 A_SLOW", "A_SLOWR:"]
    sh[(1, 3)] = ["s_ff1_i32_b32 s59, s5"]
    sh[(2, 0)] = [f"s_mul_i32 s44, s59, {16*KTS}"]
    sh[(3, 0)] = [f"s_mul_i32 s45, s59, {16*VTS}"]
    sh[(3, 2)] = ["s_bitset0_b32 s63, s59"]
    sh[(3, 3)] = ["s_bitset0_b32 s5, s59"]
    sh[(4, 0)] = ["s_cmp_le_u32 s46, 2"]
    sh[(4, 1)] = ["s_cbranch_scc1 A_LLOAD", "A_LLOADR:"]
    sh[(15, 2)] = ["s_sub_u32 s46, s46, 1"]
    sh[(15, 3)] = ["s_cmp_lg_u32 s46, 0"]
    for n in range(16):
        kt, t = n >> 2, n & 3
        n1 = (n + 1) & 15; kt1, t1 = n1 >> 2, n1 & 3
        n0 = (n - 1) & 15; kt0, t0 = n0 >> 2, n0 & 3
        sc = S + 16 * (n & 1); sn = S + 16 * (n1 & 1)
        pc = P + 8 * (n & 1); pp = P + 8 * (n0 & 1)
        mf = [f"{MF32} {vr(sn,16)}, {vr(KB+8*kt1,4)}, {vr(Q+8*t1,4)}, 0",
              f"{MF32} {vr(sn,16)}, {vr(KB+8*kt1+4,4)}, {vr(Q+8*t1+4,4)}, {vr(sn,16)}",
              f"{MF32} {vr(O+16*t0,16)}, {vr(VB+8*kt0,4)}, {vr(pp,4)}, {vr(O+16*t0,16)}",
              f"{MF32} {vr(O+16*t0,16)}, {vr(VB+8*kt0+4,4)}, {vr(pp+4,4)}, {vr(O+16*t0,16)}"]
        for m in range(4):
            a(mf[m])
            for ins in sh.get((n, m), []):
                if ins.endswith(":"): a.label(ins[:-1])
                else: a(ins)
            if m == 0 and t == 3:
                patch(KB + 8 * kt1)
            for e in range(4):
                a(f"v_exp_f32 v{sc+4*m+e}, v{sc+4*m+e}")
            for c_ in range(2):
                a(f"v_cvt_pk_bf16_f32 v{pc+2*m+c_}, v{sc+4*m+2*c_}, v{sc+4*m+2*c_+1}")
    a("s_cbranch_scc1 A_LOOP")
    a.stamp(8)
    if "dT" in EXP: a(f"s_sleep {DLY}")
    a("s_nop 0")
    a(f"{MF32} {vr(O+48,16)}, {vr(VB+24,4)}, {vr(P+8,4)}, {vr(O+48,16)}")
    a(f"{MF32} {vr(O+48,16)}, {vr(VB+28,4)}, {vr(P+12,4)}, {vr(O+48,16)}")
    a("v_mov_b32 v3, 0x5f800000")
    a("s_mov_b32 exec_lo, 0")
    for t in range(3):
        a(f"v_cmp_nlt_f32 {sr(4+2*t,2)}, v{O+16*t+12}, v3")
    for t in range(1, 3):
        a(f"v_mov_b32 v{O+16*t+13}, v{NM+t}")
    a("s_mov_b32 exec_lo, -1")
    for t in range(1, 3):
        for q in range(4):
            a(f"ds_write_b128 v{3+t}, {vr(O+16*t+4*q,4)} offset:{1024*q}")
    a("s_mov_b32 exec_lo, 0")
    a(f"v_cmp_nlt_f32 vcc, v{O+48+12}, v3")
    a(f"v_mov_b32 v{O+48+13}, v{NM+3}")
    a("s_mov_b32 exec_lo, -1")
    a("s_or_b32 s5, s5, s7")
    a("s_or_b32 s5, s5, s9")
    a("s_or_b32 s5, s5, vcc_hi")
    a("s_andn2_b32 s5, s5, s41")
    a("s_cbranch_scc1 A_FALLBACK")
    for q in range(4):
        a(f"ds_write_b128 v6, {vr(O+48+4*q,4)} offset:{1024*q}")
    a(f"v_mov_b32 v{T2}, v{O+12}")
    a(f"v_mov_b32 v{T2+1}, v{O+12}")
    a(f"v_mov_b32 v{T2+8}, v{NM}")
    a("v_add_u32 v10, 4096, v2")
    a("s_lshl_b32 s33, s24, 13")
    a(f"s_add_u32 s33, s33, {WOF}")
    a("s_lshl_b32 s36, s50, 15")
    a("s_add_u32 s36, s36, s33")
    a("s_xor_b32 s37, s50, 1")
    a("s_lshl_b32 s37, s37, 15")
    a("s_add_u32 s37, s37, s33")
    a("v_lshrrev_b32 v11, 5, v1")
    a("v_lshlrev_b32 v12, 6, v11")
    a("s_lshl_b32 s38, s49, 7")
    a(f"s_add_u32 s38, s38, {GO}")
    a("v_and_b32 v13, 31, v1")
    a("v_lshlrev_b32 v3, 12, v13")
    a("v_lshl_add_u32 v3, v11, 4, v3")
    a("s_lshl_b32 s39, s50, 17")
    a("s_lshr_b32 s34, s49, 4")
    a("s_lshl_b32 s34, s34, 10")
    a("s_add_u32 s39, s39, s34")
    a("s_and_b32 s34, s49, 15")
    a("s_lshl_b32 s34, s34, 5")
    a("s_add_u32 s39, s39, s34")
    a(f"s_add_u32 s39, s39, {BT}")
    WB, GG, BB = KB, Q, Q + 16
    def wbuf(i): return WB + 8 * ((i - 1) & 7)
    def wo_load(i):
        for x in range(2):
            a(f"buffer_load_dwordx4 {vr(wbuf(i)+4*x,4)}, v{2 if i<4 else 10}, s[20:23], s{36+x} offen offset:{1024*(i&3)}{SC}")
    a("s_cmp_lg_u32 s60, 1024")
    a("s_cbranch_scc1 A_NOW0")
    wo_load(0)
    a.label("A_NOW0")
    a("s_waitcnt lgkmcnt(0)")
    a("s_barrier")
    LM = T2 + 2
    for s in range(3):
        a(f"ds_read_b64 {vr(LM+2*s,2)}, v8 offset:{4096*s+3072}")
    RB = O + 16
    for s in range(3):
        for q in range(4):
            a(f"ds_read_b128 {vr(RB+16*s+4*q,4)}, v7 offset:{4096*s+1024*q}")
    a(f"v_permlane32_swap_b32 v{T2}, v{T2+1}")
    a(f"v_permlane32_swap_b32 v{T2+8}, v{NM}")
    a("s_waitcnt lgkmcnt(12)")
    a(f"v_min3_f32 v{MX}, v{NM}, v{LM+1}, v{LM+3}")
    a(f"v_min_f32 v{MX}, v{MX}, v{LM+5}")
    a(f"v_sub_f32 v{S}, v{MX}, v{NM}")
    for s in range(3):
        a(f"v_sub_f32 v{S+2+2*s}, v{MX}, v{LM+2*s+1}")
    for s in range(4):
        a(f"v_exp_f32 v{S+2*s}, v{S+2*s}")
    a(f"v_mul_f32 v{MX+1}, v{S}, v{T2+1}")
    for s in range(3):
        a(f"v_fmac_f32 v{MX+1}, v{S+2+2*s}, v{LM+2*s}")
    a(f"v_rcp_f32 v{MX+1}, v{MX+1}")
    a("s_nop 0")
    for s in range(4):
        a(f"v_mul_f32 v{S+2*s}, v{S+2*s}, v{MX+1}")
    for r in range(0, 16, 2):
        a(f"v_pk_mul_f32 {vr(O+r,2)}, {vr(O+r,2)}, {vr(S,2)} op_sel_hi:[1,0]")
    for s in range(3):
        a(f"s_waitcnt lgkmcnt({8-4*s})")
        for r in range(0, 16, 2):
            a(f"v_pk_fma_f32 {vr(O+r,2)}, {vr(RB+16*s+r,2)}, {vr(S+2+2*s,2)}, {vr(O+r,2)} op_sel_hi:[1,0,1]")
    for r in range(0, 16, 2):
        a(f"v_cvt_pk_bf16_f32 v{P+r//2}, v{O+r}, v{O+r+1}")
    a("s_mov_b32 exec_lo, 0")
    a(f"v_mov_b32 v{P+6}, 0")
    a(f"v_mov_b32 v{P+7}, 0")
    a("s_mov_b32 exec_lo, -1")
    a.nvm = 0
    for f in range(2):
        tagos = a.vm(f"buffer_store_dwordx4 {vr(P+4*f,4)}, v9, s[20:23], s43 offen offset:{1024*f}{SC}")
    a.stamp(9)
    a("s_barrier")
    a("s_lshl_b32 s52, s47, 9")
    a("s_lshl_b32 s33, s24, 7")
    a("s_add_u32 s52, s52, s33")
    a(f"s_add_u32 s52, s52, {F_O}")
    a.wait_vm(tagos)
    cnt_add(a, 252, "s51")
    a("s_cmp_ge_u32 s32, 28")
    a("s_cbranch_scc1 A_XIT" if os.environ.get("STAMP") else "s_cbranch_scc1 L_END")
    a("s_cmp_eq_u32 s60, 1024")
    a("s_cbranch_scc1 A_WOK")
    late_check(a, 248, 14, 15)
    for i in range(8): wo_load(i)
    a.label("A_WOK")
    cnt_load(a, 250, "s52")
    a("s_lshl_b32 s33, s24, 13")
    a(f"s_add_u32 s33, s33, {OF}")
    a("s_lshl_b32 s36, s49, 15")
    a("s_add_u32 s36, s36, s33")
    a("s_xor_b32 s37, s49, 1")
    a("s_lshl_b32 s37, s37, 15")
    a("s_add_u32 s37, s37, s33")
    a.srd(12, P_OUT, X_BYTES)
    a("v_mul_u32_u24 v9, 14336, v11")
    a("v_lshl_add_u32 v9, v13, 1, v9")
    a("s_mul_i32 s44, s49, 28672")
    a("s_lshl_b32 s33, s50, 6")
    a("s_add_u32 s44, s44, s33")
    for i in range(1, 4):
        a(f"s_add_u32 s{44+i}, s44, {3584*i}")
    a("s_waitcnt vmcnt(0)")
    cnt_wait(a, 250, "s52", 8)
    a.stamp(10)
    AF = O
    tags = {}
    for x in (1, 0):
        for i in range(8):
            tags[(x, i)] = a.vm(f"buffer_load_dwordx4 {vr(AF+8*i+4*x,4)}, v{2 if i<4 else 10}, s[20:23], s{36+x} offen offset:{1024*(i&3)}{SC}")
    BL, BU = 232, O + 48
    late_check(a, 248, 14, 15)
    gl = [f"buffer_load_dwordx4 {vr(BL+4*i,4)}, v3, s[20:23], s39 offen offset:{512*i}{SC}" for i in range(2)]
    gl += [f"buffer_load_dwordx4 {vr(GG+4*i,4)}, v12, s[20:23], s38 offen offset:{16*i}{SC}" for i in range(4)]
    GA = int(os.environ.get("GA", "5"))
    AC = [BB, S, S + 16, P]
    wr = [f"ds_write_b128 v{3+t}, {vr(AC[t]+4*q,4)} offset:{1024*q}" for t in (3, 2) for q in range(4)]
    for sa in (1, 0):
        for i in range(8):
            a.wait_vm(tags[(sa, i)])
            for sb in (1, 0):
                t = 2 * sa + sb
                c = "0" if i == 0 else vr(AC[t], 16)
                a(f"{MF32} {vr(AC[t],16)}, {vr(AF+8*i+4*sa,4)}, {vr(wbuf(i)+4*sb,4)}, {c}")
                if sa == 0 and i >= 4: a(wr.pop(0))
                elif gl and (8 * (1 - sa) + i) >= GA: a.vm(gl.pop(0))
    assert not wr and not gl
    a.nop(9)
    a.stamp(11)
    if "dE" in EXP: a(f"s_sleep {DLY}")
    for q in range(4):
        a(f"ds_write_b128 v4, {vr(AC[1]+4*q,4)} offset:{1024*q}")
    a("s_waitcnt vmcnt(0)")
    for i in range(8):
        a(f"v_lshlrev_b32 v{BU+2*i}, 16, v{BL+i}")
        a(f"v_and_b32 v{BU+2*i+1}, 0xffff0000, v{BL+i}")
    for r in range(0, 16, 2):
        a(f"v_pk_add_f32 {vr(AC[0]+r,2)}, {vr(AC[0]+r,2)}, {vr(BU+r,2)} neg_lo:[0,1] neg_hi:[0,1]")
    a("s_waitcnt lgkmcnt(0)")
    a("s_barrier")
    for s in range(3):
        for q in range(4):
            a(f"ds_read_b128 {vr(AF+16*s+4*q,4)}, v7 offset:{4096*s+1024*q}")
    for s in range(3):
        a(f"s_waitcnt lgkmcnt({8-4*s})")
        for r in range(0, 16, 2):
            a(f"v_pk_add_f32 {vr(AC[0]+r,2)}, {vr(AC[0]+r,2)}, {vr(AF+16*s+r,2)}")
    for r in range(0, 16, 2):
        a(f"v_pk_fma_f32 {vr(AC[0]+r,2)}, {vr(AC[0]+r,2)}, {vr(GG+r,2)}, {vr(BU+r,2)}")
    for r in range(0, 16, 2):
        a(f"v_cvt_pk_bf16_f32 v{AF+r//2}, v{AC[0]+r}, v{AC[0]+r+1}")
    for r in range(16):
        op = "buffer_store_short_d16_hi" if r & 1 else "buffer_store_short"
        a(f"{op} v{AF+r//2}, v9, s[12:15], s{44+(r>>2)} offen offset:{896*(r&3)}{os.environ.get('OST', '')}")
    a.label("A_XIT")
    fin(a, 12)
    if "dblspan" in EXP:
        sel = os.environ.get("SELX")
        if sel:
            a(f"s_cmp_lg_u32 s31, {sel}")
            a("s_cbranch_scc1 L_END")
        a("s_memrealtime s[96:97]")
        a("s_waitcnt lgkmcnt(0)")
        a("s_sub_u32 s98, s101, s100" if os.environ.get("DBLK") else "s_sub_u32 s98, s96, s100")
        a("s_add_u32 s98, s98, s96")
        a.label("DBL")
        a("s_memrealtime s[96:97]")
        a("s_waitcnt lgkmcnt(0)")
        a("s_sub_u32 s99, s96, s98")
        a("s_cmp_lt_i32 s99, 0")
        a("s_cbranch_scc1 DBL")
    a("s_endpgm")
    a.label("A_SLOW")
    a(f"s_mov_b32 s62, {POLLMAX}")
    a.label("A_SLOW1")
    a(f"v_cmp_eq_u32 vcc, s58, v{PV_}")
    a("s_nop 1")
    a("s_and_b32 s5, vcc_lo, s63")
    a("s_cmp_eq_u32 s5, s63")
    a("s_cbranch_scc1 A_SLOW2")
    kv_poll()
    a("s_cmp_lg_u32 s5, 0")
    a("s_cbranch_scc1 A_SLOWR")
    a("s_sub_u32 s62, s62, 1")
    a("s_cbranch_scc1 A_SLOW2")
    a("s_waitcnt vmcnt(0)")
    a("s_branch A_SLOW1")
    a.label("A_SLOW2")
    a("s_or_b32 s5, s63, 128")
    a("s_cmp_lg_u32 s63, 0")
    a("s_cbranch_scc1 A_SLOWR")
    a("v_readlane_b32 s4, v248, 2")
    a("s_nop 1")
    a("s_cmp_lg_u32 s4, 17" if "nosw" in EXP else "s_cmp_lg_u32 s4, 16")
    a("s_cbranch_scc1 A_SLOWR")
    for i in range(4):
        a(f"v_mov_b32 v{T2+12+i}, v{VK0+i}")
    a("s_lshl_b32 s4, s50, 15")
    a(f"v_add_u32 v{VK0}, s4, v2")
    a(f"v_xor_b32 v{VK1}, 32768, v{VK0}")
    a(f"v_mov_b32 v{VV0}, v{VK0}")
    a(f"v_mov_b32 v{VV1}, v{VK1}")
    a("s_lshl_b32 s4, s24, 13")
    a(f"s_add_u32 s6, s4, {WOF + 1024 - 7*16*KTS}")
    a(f"s_add_u32 s7, s4, {WOF + 5120 - 7*16*VTS}")
    a.srd(12, P_WS, 0x400000, "s6")
    a.srd(16, P_WS, 0x400000, "s7")
    a("s_movk_i32 s60, 1024")
    a("s_movk_i32 s61, 1024")
    a("s_branch A_SLOWR")
    a.label("A_LLOAD")
    late_load(a, 248, 14)
    a("s_branch A_LLOADR")
    a.label("A_FALLBACK")
    a("s_mov_b32 s41, -1")
    a("s_cmp_lg_u32 s60, 1024")
    a("s_cbranch_scc1 A_FB0")
    for i in range(4):
        a(f"v_mov_b32 v{VK0+i}, v{T2+12+i}")
    a(f"s_mul_i32 s34, s24, {4*KTS}")
    a(f"s_mul_i32 s37, s24, {4*VTS}")
    a(f"s_add_u32 s37, s37, {VF}")
    a.srd(12, P_WS, 52 * KTS, "s34")
    a.srd(16, P_WS, 52 * VTS, "s37")
    a.label("A_FB0")
    for t in range(4):
        a(f"v_mov_b32 v{MX+t}, 0xff800000")
    a("s_mov_b32 s44, 0")
    a("s_mov_b32 s45, 0")
    a("s_waitcnt vmcnt(0) lgkmcnt(0)")
    a.label("A_FBLOOP")
    for f in range(2):
        a(f"buffer_load_dwordx4 {vr(KB+4*f,4)}, v{VK0+f}, s[12:15], s44 offen{SC}")
    a("s_waitcnt vmcnt(0)")
    patch(KB)
    a("s_nop 1")
    for t in range(4):
        a(f"{MF32} {vr(O+16*t,16)}, {vr(KB,4)}, {vr(Q+8*t,4)}, 0")
        a(f"{MF32} {vr(O+16*t,16)}, {vr(KB+4,4)}, {vr(Q+8*t+4,4)}, {vr(O+16*t,16)}")
    a.nop(16)
    for i in range(8):
        for t in range(4):
            a(f"v_max3_f32 v{MX+t}, v{MX+t}, v{O+16*t+2*i}, v{O+16*t+2*i+1}")
    a(f"s_addk_i32 s44, {KTS}")
    a("s_add_u32 s45, s45, 1")
    a("s_and_b32 s4, s45, 3")
    a("s_cbranch_scc1 A_FBLOOP")
    a(f"s_add_u32 s44, s44, {12*KTS}")
    a("s_cmp_lt_u32 s45, 16")
    a("s_cbranch_scc1 A_FBLOOP")
    for t in range(4):
        a(f"v_mov_b32 v{T2+t}, v{MX+t}")
    a("s_nop 1")
    for t in range(4):
        a(f"v_permlane32_swap_b32 v{T2+t}, v{MX+t}")
    for t in range(4):
        a(f"v_max_f32 v{MX+t}, v{MX+t}, v{T2+t}")
    a("s_mov_b32 s59, 0")
    a("s_mov_b32 s63, 14")
    a("s_movk_i32 s5, 0x8e")
    a(f"v_mov_b32 v{PV_}, s58")
    for r in range(8):
        a(f"v_mov_b32 v{VB+24+r}, 0")
    first_loads()
    zero_acc()
    a("s_waitcnt vmcnt(0)")
    patch(KB)
    a("s_branch A_SETMAX")

def gen_B(a):
    a.label("L_B")
    a(f"s_setprio {PB}")
    a.stamp(1)
    if "noB1" in EXP: a("s_endpgm")
    if "dB" in EXP:
        a("s_waitcnt vmcnt(0)")
        for _ in range(int(os.environ.get("DN", "1"))): a(f"s_sleep {DLY}")
    TS = 272; TW = 64 * TS
    UB = 4 * TW
    US = 4608
    SEL, ACT, INY, WY, KACC, WX = 16, 48, 112, 144, 176, 192
    Z8, Z1, Z256, TM = 236, 238, 242, 2
    FR, CT, UL = 48, 112, 192
    a(f"s_mul_i32 s29, s24, {TW}")
    a("s_mov_b32 m0, s29")
    a("v_mov_b32 v15, 0x3f80")
    a(f"ds_write_addtid_b32 v15 offset:{32*TS}")
    a("v_and_b32 v12, 1, v1")
    a("v_lshlrev_b32 v12, 4, v12")
    a("v_lshlrev_b32 v12, v12, v15" if False else "v_mov_b32 v15, 0x3f80")
    a("v_lshlrev_b32 v12, v12, v15")
    a("s_mov_b64 s[4:5], 3")
    for i in range(32):
        a(f"v_cndmask_b32 v{SEL+i}, 0, v12, s[4:5]")
        if i < 31: a("s_lshl_b64 s[4:5], s[4:5], 2")
    a("v_lshrrev_b32 v13, 5, v1")
    for r in range(4):
        a(f"v_mov_b32 v{KACC+r}, 0")
    a(f"v_mul_u32_u24 v12, {US-512}, v13")
    a("v_add_u32 v12, v12, v2")
    a(f"v_add_u32 v12, {UB}, v12")
    a(f"ds_write_b128 v12, {vr(KACC,4)}")
    a("s_lshl_b32 s42, s24, 3")
    a("s_add_u32 s42, s42, s31")
    a("s_lshl_b32 s42, s42, 7")
    a(f"s_add_u32 s42, s42, {F_XT}")
    a("v_lshrrev_b32 v12, 1, v1")
    a("v_and_b32 v13, 1, v1")
    a(f"v_mul_u32_u24 v3, {XTS}, v12")
    a("v_lshl_add_u32 v3, v13, 4, v3")
    a(f"s_mul_i32 s43, s24, {64*XTS}")
    a("s_mul_i32 s33, s31, 896")
    a("s_add_u32 s43, s43, s33")
    a("s_lshl_b32 s33, s39, 4")
    a("s_add_u32 s43, s43, s33")
    a(f"s_add_u32 s43, s43, {XT}")
    a(f"s_add_u32 s44, s43, {32*XTS}")
    a(f"v_mul_u32_u24 v241, {US}, v13")
    a("v_lshl_add_u32 v241, v12, 4, v241")
    a("s_lshl_b32 s33, s24, 10")
    a(f"s_add_u32 s33, s33, {UB + 512}")
    a("v_add_u32 v241, s33, v241")
    a("s_waitcnt lgkmcnt(0)")
    a("s_and_b32 s33, s26, 1")
    a("s_lshl_b32 s33, s33, 4")
    a("s_lshr_b32 s28, s28, s33")
    a("s_lshl_b32 s28, s28, 16")
    a("s_lshr_b32 s38, s38, s33")
    a("s_lshl_b32 s38, s38, 16")
    hi = float(np.float32(LOG2E)); lo = float(np.float32(LOG2E - hi))
    a(f"v_mov_b32 v13, {hex(f2u(hi))}")
    a("v_mul_f32 v14, s28, v13")
    a("v_fma_f32 v13, s28, v13, -v14")
    a(f"v_mov_b32 v15, {hex(f2u(lo))}")
    a("v_fmac_f32 v13, s28, v15")
    a("v_exp_f32 v14, v14")
    a(f"v_mul_f32 v13, {hex(f2u(math.log(2)))}, v13")
    a("v_fmac_f32 v14, v14, v13")
    a("v_cvt_pk_bf16_f32 v14, v14, v14")
    a("v_and_b32 v14, 0xffff0000, v14")
    a(f"s_mov_b32 s48, {hex(f2u(LOG2E))}")
    a(f"s_mov_b32 s49, {hex(f2u(1/(2*math.pi)))}")
    a("s_mov_b32 s47, 0x07060302")
    a("s_brev_b32 s46, 1")
    a("s_cmp_ge_u32 s2, 2")
    a("s_cbranch_scc1 B_NORDY")
    a("v_mov_b32 v4, 1")
    a("s_setprio 3")
    a("s_waitcnt vmcnt(6)")
    a("s_mov_b64 exec, 1")
    a(f"global_atomic_add v{VZ}, v4, {sr(P_DBG,2)} sc1")
    a("s_mov_b64 exec, -1")
    a(f"s_setprio {PB}")
    a.label("B_NORDY")
    if "noB2" in EXP: a("s_endpgm")
    a("s_waitcnt vmcnt(4)")
    a.stamp(2)
    r1 = [0, 0, 2, 4, 4, 4, 6, 8, 8]
    P_ = {}
    for r in range(9): P_[(0, r)] = r; P_[(1, r)] = 256 + r1[r]
    for i, e in enumerate((0, 4, 8)): P_[(0, 9 + i)] = 512 + e; P_[(1, 9 + i)] = 768 + e
    for i, e in enumerate((0, 8)):
        P_[(0, 12 + i)] = 1024 + e; P_[(1, 12 + i)] = 1280 + e; P_[(0, 14 + i)] = 1536 + e; P_[(1, 14 + i)] = 1792 + e
    EX = [None] * 32
    for (h, r), p in P_.items(): EX[8 * (r >> 2) + 4 * h + (r & 3)] = ("X", p)
    EY = [("Y", j) for j in range(32)]
    yops = [(("Y", 2), ("Y", 1), ("Y", 1)), (("Y", 3), ("Y", 2), ("Y", 1)), (("Y", 4), ("Y", 2), ("Y", 2))]
    yops += [(("Y", 4 + k), ("Y", 4), ("Y", k)) for k in (4, 1, 2, 3)]
    yops += [(("Y", 8 + k), ("Y", 8), ("Y", k)) for k in (8, 1, 2, 3, 4, 5, 6, 7)]
    yops += [(("Y", 16 + k), ("Y", 16), ("Y", k)) for k in range(1, 16)]
    xops = [(("X", 8), ("X", 0), ("Y", 1))]
    xops += [(("X", e + 1), ("X", e), ("Z", 1)) for e in range(7)]
    for base, es in ((256, (0, 8, 4, 2, 6)), (512, (0, 8, 4)), (768, (0, 8, 4)), (1024, (0, 8)), (1280, (0, 8)), (1536, (0, 8)), (1792, (0, 8))):
        xops += [(("X", base + e), ("X", base - 256 + e), ("Z", 256)) for e in es]
    def pass0():
        YB, XB = 48, 112
        plist = sorted(set(P_.values()))
        xreg = {p: XB + 2 * i for i, p in enumerate(plist)}
        row_of = {p: min(8 * (r >> 2) + 4 * h + (r & 3) for (h, r), pp in P_.items() if pp == p) for p in plist}
        yreg = {j: YB + 2 * j for j in range(1, 32)}
        def reg(n): return {"Y": yreg, "X": xreg, "Z": {1: Z1, 256: Z256}}[n[0]][n[1]]
        allops = xops + yops
        memo = {}
        def height(n):
            if n not in memo:
                memo[n] = max([0] + [1 + height(d) for (d, x, y) in allops if n in (x, y)])
            return memo[n]
        WB = int(os.environ.get("WB", "16")); XAT = int(os.environ.get("XAT", "6"))
        ring = list(range(WX, WX + 32))
        wq = []; ct = [0]
        def emit_write(n):
            t = ring[ct[0] % len(ring)]; ct[0] += 1
            r = reg(n)
            if n[0] == "Y":
                a(f"v_cvt_pk_bf16_f32 v{t}, v{r}, v{r+1}")
                wq.append(f"ds_write_addtid_b32 v{t} offset:{(32+n[1])*TS}")
            else:
                a(f"v_cvt_pk_bf16_f32 v{t}, v{r}, -v{r+1}")
                wq.append(f"ds_write_addtid_b32 v{t} offset:{row_of[n[1]]*TS}")
            if len(wq) >= WB:
                for ins in wq: a(ins)
                wq.clear()
        for i in range(2): a(f"v_lshlrev_b32 v{8+i}, 16, v{RAW+i}")
        a("v_pk_mul_f32 v[8:9], v[8:9], v[14:15] op_sel_hi:[1,0]")
        a("v_pk_mul_f32 v[8:9], v[8:9], s[48:49]")
        a(f"v_mul_f32 v{TM+2}, 0x41000000, v8")
        a(f"v_mul_f32 v{TM+3}, 0x41000000, v9")
        a(f"v_mul_f32 v{TM+4}, 0x43800000, v8")
        a(f"v_mul_f32 v{TM+5}, 0x43800000, v9")
        anch = [(TM + 2, yreg[1]), (8, Z1), (TM + 4, Z256)]
        for s_, d_ in anch:
            a(f"v_fract_f32 v{s_+1}, v{s_+1}")
            a(f"v_exp_f32 v{s_}, v{s_}")
        for s_, d_ in anch:
            a(f"v_cos_f32 v{d_}, v{s_+1}")
            a(f"v_sin_f32 v{d_+1}, v{s_+1}")
        a("s_nop 0")
        for s_, d_ in anch:
            a(f"v_pk_mul_f32 {vr(d_,2)}, {vr(d_,2)}, {vr(s_,2)} op_sel_hi:[1,0]")
        done = {("Y", 1), ("Z", 1), ("Z", 256)}
        towrite = [("Y", 1)]
        pending = sorted(allops, key=lambda o: -height(o[0]))
        nb = 0
        while pending:
            batch = [o for o in pending if o[1] in done and o[2] in done][:4]
            for o in batch: pending.remove(o)
            for (d, x, y) in batch: cmul(a, reg(d), reg(x), reg(y), 0)
            w = towrite; towrite = []
            for n in w[:2]: emit_write(n)
            for (d, x, y) in batch: cmul(a, reg(d), reg(x), reg(y), 1)
            for n in w[2:]: emit_write(n)
            for (d, x, y) in batch:
                done.add(d); towrite.append(d)
            nb += 1
            if nb == XAT:
                a("s_waitcnt vmcnt(0)")
                for i in range(2, 6): a(f"v_lshlrev_b32 v{8+i}, 16, v{RAW+i}")
                cmul(a, xreg[0], 12, 10, 0)
                cmul(a, xreg[0], 12, 10, 1)
                a(f"v_pk_mul_f32 {vr(xreg[0],2)}, {vr(xreg[0],2)}, v[14:15] op_sel_hi:[1,0]")
                done.add(("X", 0)); towrite.append(("X", 0))
        for n in towrite: emit_write(n)
        for ins in wq: a(ins)
    pass0()
    PB1_ = int(os.environ.get("PBY", str(PB))); PB2 = int(os.environ.get("PB2", "1"))
    a(f"s_setprio {PB1_}")
    a.stamp(8)
    a("s_mov_b32 s45, 0")
    def u_loads():
        for i in range(2):
            a(f"buffer_load_dwordx4 {vr(UL+4*i,4)}, v3, s[20:23], s{43+i} offen{SC}")
    def try_u(tag_, prio):
        a("s_cmp_eq_u32 s45, 64")
        a(f"s_cbranch_scc1 TU2{tag_}")
        a("s_setprio 3")
        a("s_waitcnt vmcnt(0)")
        a("v_readfirstlane_b32 s45, v250")
        a("s_nop 1")
        a("s_cmp_lg_u32 s45, 64")
        a(f"s_cbranch_scc1 TU0{tag_}")
        u_loads()
        a(f"s_branch TU1{tag_}")
        a.label(f"TU0{tag_}")
        cnt_load(a, 250, "s42")
        a.label(f"TU1{tag_}")
        a(f"s_setprio {prio}")
        a.label(f"TU2{tag_}")
    loc = {("Y", 1): Z8, ("Z", 1): Z1, ("Z", 256): Z256}
    for j in range(2, 17): loc[("Y", j)] = WY + 2 * (j - 1)
    free = list(range(WX, WX + 44, 2))
    mq = []
    since = [99]
    MG = int(os.environ.get("MG", "6"))
    def v(ins):
        a(ins); since[0] += 1
        if mq and since[0] >= MG and mq[0][1] <= cnt[0] - 2:
            a(mq.pop(0)[0]); since[0] = 0; cnt[0] += 1; lastm[0] = cnt[0]
        cnt[0] += 1
    cnt = [0]; lastm = [0]
    class V:
        def __call__(self, x): v(x)
    va = V()
    NEG = {("Y", 1): 240, ("Y", 2): 251, ("Y", 4): 252, ("Y", 8): 253, ("Y", 16): WY, ("Z", 1): WY + 1, ("Z", 256): 15}
    NEG[("Z", 1)] = 251
    def smul(d, x, y, phase):
        if y not in NEG: x, y = y, x
        D, X_, Y_ = loc[d], loc[x], loc[y]
        if phase == 0:
            v(f"v_mul_f32 v{D}, v{X_}, v{Y_}")
            v(f"v_mul_f32 v{D+1}, v{X_}, v{Y_+1}")
        else:
            v(f"v_fmac_f32 v{D}, v{X_+1}, v{NEG[y]}")
            v(f"v_fmac_f32 v{D+1}, v{X_+1}, v{Y_}")
            if d in NEG: v(f"v_xor_b32 v{NEG[d]}, s46, v{D+1}")
    def table(ops, E, IN, neg, done, pre=None):
        uses = {}
        for (d, x, y) in ops:
            for n in (x, y): uses[n] = uses.get(n, 0) + 1
        for n in E: uses[n] = uses.get(n, 0) + 1
        def release(n):
            uses[n] -= 1
            if uses[n] == 0 and n in loc and WX <= loc[n] < WX + 44: free.append(loc[n])
        memo = {}
        def height(n):
            if n not in memo:
                memo[n] = max([0] + [1 + height(d) for (d, x, y) in ops if n in (x, y)])
            return memo[n]
        first = {n: i for i, n in reversed(list(enumerate(E)))}
        pending = sorted(ops, key=lambda o: (-height(o[0]), first.get(o[0], 99)))
        pairs = list(range(16)); gdone = [0] * 4; gseq = [0]
        def cvts(avail):
            for q in list(pairs):
                n0, n1 = E[2 * q], E[2 * q + 1]
                if n0 in avail and n1 in avail:
                    pairs.remove(q)
                    for part in range(2):
                        sg = "-" if (neg and part) else ""
                        s0 = (("1.0", "0")[part]) if n0 == ("Y", 0) else f"{sg}v{loc[n0]+part}"
                        v(f"v_cvt_pk_bf16_f32 v{IN+16*part+q}, {s0}, {sg}v{loc[n1]+part}")
                    release(n0); release(n1)
                    g = q >> 2; gdone[g] += 1
                    if gdone[g] == 4:
                        for hs in range(2):
                            for part in range(2):
                                acc = vr(ACT + 32 * hs + 16 * part, 16)
                                mq.append((f"{MF32} {acc}, {vr(IN+16*part+4*g,4)}, {vr(SEL+16*hs+4*g,4)}, {'0' if gseq[0] == 0 else acc}", cnt[0]))
                        gseq[0] += 1
        nb = 0
        while pending:
            batch = [o for o in pending if o[1] in done and o[2] in done][:4]
            for o in batch:
                pending.remove(o)
                if o[0] not in loc: loc[o[0]] = free.pop(0)
            for (d, x, y) in batch: smul(d, y, x, 0) if x in NEG else smul(d, x, y, 0)
            for (d, x, y) in batch: smul(d, y, x, 1) if x in NEG else smul(d, x, y, 1)
            for (d, x, y) in batch: release(x); release(y)
            if pre and pre(nb): pre = None
            if pre is None: cvts(set(done))
            for (d, x, y) in batch: done.add(d)
            nb += 1
        assert pre is None
        cvts(done)
        assert not pairs
    def packs(OUT, hs):
        for r in range(16):
            v(f"v_perm_b32 v{OUT+16*hs+r}, v{ACT+32*hs+16+r}, v{ACT+32*hs+r}, s47")
    def drain():
        while mq:
            if mq[0][1] > cnt[0] - 2: a("s_nop 1"); cnt[0] += 2
            a(mq.pop(0)[0]); cnt[0] += 1; lastm[0] = cnt[0]
    for i in range(2): v(f"v_and_b32 v{8+i}, 0xffff0000, v{RAW+i}")
    v("v_mul_f32 v8, v8, v14"); v("v_mul_f32 v9, v9, v14")
    v("v_mul_f32 v8, s48, v8"); v("v_mul_f32 v9, s49, v9")
    v(f"v_mul_f32 v{TM+2}, 0x41000000, v8")
    v(f"v_mul_f32 v{TM+3}, 0x41000000, v9")
    v(f"v_mul_f32 v{TM+4}, 0x43800000, v8")
    v(f"v_mul_f32 v{TM+5}, 0x43800000, v9")
    anchors = [(TM + 2, Z8), (8, Z1), (TM + 4, Z256)]
    for s_, d_ in anchors:
        v(f"v_fract_f32 v{s_+1}, v{s_+1}")
        v(f"v_exp_f32 v{s_}, v{s_}")
    for s_, d_ in anchors:
        v(f"v_cos_f32 v{d_}, v{s_+1}")
        v(f"v_sin_f32 v{d_+1}, v{s_+1}")
    a("s_nop 0")
    for s_, d_ in anchors:
        v(f"v_mul_f32 v{d_}, v{d_}, v{s_}")
        v(f"v_mul_f32 v{d_+1}, v{d_+1}, v{s_}")
    v(f"v_xor_b32 v{NEG[('Y',1)]}, s46, v{Z8+1}")
    v(f"v_xor_b32 v{NEG[('Z',256)]}, s46, v{Z256+1}")
    table(yops, EY, INY, False, {("Y", 0), ("Y", 1)})
    a("s_setprio 3")
    nonce_issue(a, 250, True)
    a(f"s_setprio {PB2}")
    for i in range(2, 6): v(f"v_and_b32 v{8+i}, 0xffff0000, v{RAW+i}")
    loc[("X", 0)] = free.pop(0)
    X0 = loc[("X", 0)]
    v(f"v_xor_b32 v{NEG[('Z',1)]}, s46, v{Z1+1}")
    v("v_mul_f32 v10, v10, v14"); v("v_mul_f32 v11, v11, v14")
    v(f"v_mul_f32 v{X0}, v12, v10"); v(f"v_mul_f32 v{X0+1}, v12, v11")
    v(f"v_fma_f32 v{X0}, -v13, v11, v{X0}"); v(f"v_fmac_f32 v{X0+1}, v13, v10")
    def ypack(nb):
        if mq or cnt[0] - lastm[0] < 13: return False
        packs(INY, 0); packs(INY, 1)
        return True
    table(xops, EX, WY, True, {("X", 0), ("Y", 1), ("Z", 1), ("Z", 256)}, ypack)
    drain()
    a("v_and_b32 v4, 31, v1")
    a(f"v_mul_u32_u24 v4, {TS}, v4")
    a("v_lshrrev_b32 v5, 5, v1")
    a("v_lshl_add_u32 v4, v5, 4, v4")
    a("v_add_u32 v4, s29, v4")
    a("v_mov_b32 v5, v4")
    for (m, src) in ((5, 4), (12, 7), (13, 7), (20, 15)):
        a(f"s_add_u32 s33, s29, {src*TS}")
        a(f"v_writelane_b32 v5, s33, {m}")
        a("s_add_u32 s33, s33, 16")
        a(f"v_writelane_b32 v5, s33, {m+32}")
    F0 = [SEL + 8 * i for i in range(4)] + [WX + 8 + 8 * i for i in range(4)]
    for ks in range(8):
        a(f"ds_read_b128 {vr(F0[ks],4)}, v5 offset:{32*ks}")
        a(f"ds_read_b128 {vr(F0[ks]+4,4)}, v4 offset:{32*TS+32*ks}")
    a("s_setprio 3")
    a("s_waitcnt vmcnt(0)")
    nonce_take(a, 250, True)
    cnt_load(a, 250, "s42")
    a(f"s_setprio {PB2}")
    MG = 4
    packs(WY, 0)
    for ks in range(4):
        mq.append((f"{MF32} {vr(KACC,16)}, {vr(WY+4*ks,4)}, {vr(INY+4*ks,4)}, {vr(KACC,16) if ks else '0'}", cnt[0]))
    packs(WY, 1)
    drain()
    a("s_waitcnt lgkmcnt(0)")
    for ks in range(8):
        a(f"{MF32} {vr(KACC,16)}, {vr(F0[ks],4)}, {vr(F0[ks]+4,4)}, {vr(KACC,16)}")
    for ks in range(4, 8):
        a(f"{MF32} {vr(KACC,16)}, {vr(WY+4*ks,4)}, {vr(INY+4*ks,4)}, {vr(KACC,16)}")
    a(f"s_setprio {PC}")
    a.stamp(3)
    if "noconv" in EXP: a("s_endpgm")
    a("v_add_u32 v242, s29, v2")
    a("s_xor_b32 s33, s24, 1")
    a(f"s_mul_i32 s33, s33, {TW}")
    a("v_add_u32 v243, s33, v2")
    a("s_and_b32 s33, s24, 2")
    a(f"s_mul_i32 s48, s33, {TW}")
    a("s_add_u32 s48, s48, 4096")
    a("s_mul_i32 s33, s27, 4160")
    a("s_add_u32 s49, s33, s48")
    a("v_sub_u32 v6, 63, v1")
    a("v_lshlrev_b32 v6, 4, v6")
    a("v_add_u32 v6, s49, v6")
    a("v_and_b32 v7, 1, v1")
    a("v_cmp_eq_u32 vcc, 1, v7")
    for q in range(4):
        a(f"ds_write_b128 v242, {vr(KACC+4*q,4)} offset:{1024*q}")
    a("v_lshrrev_b32 v4, 4, v1")
    a("v_and_b32 v5, 15, v1")
    a("v_add_u32 v7, 1, v5")
    a("v_lshrrev_b32 v7, 1, v7")
    a("v_lshlrev_b32 v8, 2, v4")
    a("v_sub_u32 v8, v8, v7")
    a("v_and_b32 v7, 1, v5")
    a("v_mul_u32_u24 v7, 1040, v7")
    a("v_sub_u32 v8, v8, v7")
    a(f"v_add_u32 v8, {1016 + 1040 - 48 - 128}, v8")
    a("v_lshlrev_b32 v8, 2, v8")
    a("s_lshl_b32 s33, s27, 8")
    a("s_sub_u32 s33, s48, s33")
    a("v_add_u32 v8, s33, v8")
    for i in range(1, 4):
        a(f"v_subrev_u32 v{8+i}, {1024*i}, v8")
    if os.environ.get("TUB"): try_u("b", PC)
    a("s_waitcnt lgkmcnt(0)")
    a.stamp(10)
    a("s_barrier")
    a.stamp(11)

    for q in range(4):
        a(f"ds_read_b128 {vr(FR+4*q,4)}, v243 offset:{1024*q}")
    try_u("c", PC)
    a("s_lshr_b32 s33, s24, 1")
    a(f"s_mul_i32 s36, s33, {US}")
    a(f"s_add_u32 s36, s36, {UB + 512}")
    a("v_lshlrev_b32 v12, 5, v5")
    a("v_lshl_add_u32 v13, v4, 3, v12")
    a("v_lshl_add_u32 v12, v4, 4, v12")
    a("s_lshl_b32 s33, s27, 8")
    a("s_sub_u32 s33, s36, s33")
    a(f"s_sub_u32 s33, s33, {32 + 192}")
    a("v_add_u32 v12, s33, v12")
    a("s_lshl_b32 s33, s27, 11")
    a("s_add_u32 s33, s33, s36")
    a("v_add_u32 v13, s33, v13")
    a("s_lshl_b32 s40, s26, 1")
    a("s_add_u32 s40, s40, s27")
    a("s_lshl_b32 s41, s40, 11")
    a(f"s_add_u32 s41, s41, {BT}")
    a("s_lshr_b32 s40, s26, 5")
    a("s_lshl_b32 s40, s40, 7")
    a(f"s_add_u32 s40, s40, {F_B}")
    a("s_waitcnt lgkmcnt(0)")
    for r in range(16):
        a(f"v_add_f32 v{KACC+r}, v{KACC+r}, v{FR+r}")
    K_ = KACC; W_ = FR + 16
    a(f"v_cndmask_b32 v{CT}, v{K_+12}, v{K_+13}, vcc")
    a(f"v_cndmask_b32 v{CT+1}, v{K_+14}, v{K_+15}, vcc")
    for i in range(4):
        a(f"v_mov_b32 v{W_+16+i}, 0")
    def pk(d, lo_, hi_): a(f"v_cvt_pk_bf16_f32 v{d}, v{lo_}, v{hi_}")
    a("s_cmp_eq_u32 s27, 1")
    a("s_cbranch_scc1 B_ODD")
    A_, B_, C_ = K_ + 9, K_ + 10, K_ + 11
    for i in range(4): pk(W_ + i, K_ + 7 - 2 * i, K_ + 6 - 2 * i)
    for i, (x, y) in enumerate(((C_, C_), (B_, B_), (B_, A_), (A_, A_))): pk(W_ + 4 + i, x, y)
    for sl in range(2):
        A2, C2, M2 = K_ + 12 + 2 * sl, K_ + 13 + 2 * sl, CT + sl
        for i, (x, y) in enumerate(((C2, C2), (C2, M2), (A2, A2), (A2, A2))): pk(W_ + 8 + 4 * sl + i, x, y)
    a("s_branch B_IMG")
    a.label("B_ODD")
    for i in range(4): pk(W_ + i, K_ + 8 - 2 * i, K_ + 7 - 2 * i)
    for i, (x, y) in enumerate(((C_, C_), (C_, B_), (B_, B_), (A_, A_))): pk(W_ + 4 + i, x, y)
    for sl in range(2):
        A2, C2, M2 = K_ + 12 + 2 * sl, K_ + 13 + 2 * sl, CT + sl
        for i, (x, y) in enumerate(((C2, C2), (C2, C2), (M2, A2), (A2, A2))): pk(W_ + 8 + 4 * sl + i, x, y)
    a("s_mov_b64 exec, 1")
    pk(W_ + 16, K_, VZ)
    a("s_mov_b64 exec, -1")
    a.label("B_IMG")
    for sl in range(4):
        a(f"ds_write_b128 v6, {vr(W_+4*sl,4)} offset:{(3-sl)*1024}")
    a("v_add_u32 v7, s49, v2")
    a("s_mov_b64 exec, 3")
    a(f"ds_write_b128 v7, {vr(W_+16,4)} offset:4096")
    a("s_mov_b64 exec, -1")
    a("s_cmp_eq_u32 s45, 64")
    a("s_cbranch_scc1 B_UOK")
    a("s_waitcnt vmcnt(0)")
    cnt_wait(a, 250, "s42", 64, 4)
    u_loads()
    a.label("B_UOK")
    a.stamp(7)
    a("s_waitcnt vmcnt(0)")
    for i in range(2):
        a(f"ds_write_b128 v241, {vr(UL+4*i,4)} offset:{512*i}")
    a("s_waitcnt lgkmcnt(0)")
    a("s_barrier")
    a.stamp(4)
    a(f"s_setprio {os.environ.get('PV', '0')}")
    FB, CAC = 16, 144
    a.nds = 0
    tg = {}
    def loadstep(stp):
        b = FB + 64 * (stp & 1)
        for i in range(8):
            o = 128 * (1 - (i & 1)) + 16 * (3 - stp)
            a.ds(f"ds_read2_b32 {vr(b+4*i,2)}, v{8+(i>>1)} offset0:{o} offset1:{o+1}")
            a.ds(f"ds_read2_b32 {vr(b+4*i+2,2)}, v{8+(i>>1)} offset0:{o+2} offset1:{o+3}")
            tg[(stp, i)] = a.ds(f"ds_read_b128 {vr(b+32+4*i,4)}, v12 offset:{512*i+64*(3-stp)}")
    loadstep(0)
    for stp in range(4):
        b = FB + 64 * (stp & 1)
        order = sorted([(i, tp) for i in range(8) for tp in range(8 - i)], key=lambda x: (max(x), x[0] + x[1]))
        nxt = []
        if stp < 3:
            b2 = FB + 64 * ((stp + 1) & 1)
            for i in range(8):
                o = 128 * (1 - (i & 1)) + 16 * (3 - stp - 1)
                nxt.append((None, f"ds_read2_b32 {vr(b2+4*i,2)}, v{8+(i>>1)} offset0:{o} offset1:{o+1}"))
                nxt.append((None, f"ds_read2_b32 {vr(b2+4*i+2,2)}, v{8+(i>>1)} offset0:{o+2} offset1:{o+3}"))
                nxt.append(((stp + 1, i), f"ds_read_b128 {vr(b2+32+4*i,4)}, v12 offset:{512*i+64*(3-stp-1)}"))
        waited = -1
        seen = set()
        for k, (i, tp) in enumerate(order):
            if max(i, tp) > waited:
                waited = max(i, tp)
                a.wait_ds(tg[(stp, waited)])
            t = i + tp
            c = vr(CAC + 4 * t, 4)
            if stp == 0 and t not in seen:
                c = "0"; seen.add(t)
            a(f"{MF16} {vr(CAC+4*t,4)}, {vr(b+4*i,4)}, {vr(b+32+4*tp,4)}, {c}")
            if k >= 8 and nxt:
                key, ins = nxt.pop(0)
                r = a.ds(ins)
                if key: tg[key] = r
        assert not nxt
    a.stamp(5)
    a(f"s_setprio {os.environ.get('PT', '2')}")
    RR = 16
    for tl in range(4):
        a(f"ds_read_b64 {vr(80+2*tl,2)}, v13 offset:{512*tl}")
    a("s_cmp_eq_u32 s27, 1")
    a.nop(3)
    a("s_cbranch_scc1 B_R1")
    for par in range(2):
        if par: a.label("B_R1")
        for q in range(4):
            a(f"ds_write_b128 v242, {vr(CAC+16*(1-par)+4*q,4)} offset:{1024*q}")
        a("s_waitcnt lgkmcnt(0)")
        a("s_barrier")
        for q in range(4):
            a(f"ds_read_b128 {vr(RR+4*q,4)}, v243 offset:{1024*q}")
        a("s_waitcnt lgkmcnt(0)")
        for r in range(16):
            a(f"v_add_f32 v{RR+r}, v{RR+r}, v{CAC+16*par+r}")
        if not par: a("s_branch B_R2")
    a.label("B_R2")
    for t in range(4):
        for i in range(2):
            a(f"v_lshlrev_b32 v{88+2*i}, 16, v{80+2*t+i}")
            a(f"v_and_b32 v{88+2*i+1}, 0xffff0000, v{80+2*t+i}")
        for r in range(4):
            a(f"v_fmac_f32 v{RR+4*t+r}, s38, v{88+r}")
        for i in range(2):
            a(f"v_cvt_pk_bf16_f32 v{80+2*t+i}, v{RR+4*t+2*i}, v{RR+4*t+2*i+1}")
    a("s_nop 1")
    for p in range(2):
        for i in range(2):
            a(f"v_permlane16_swap_b32 v{80+4*p+i}, v{80+4*p+2+i}")
    for p in range(2):
        a(f"buffer_store_dwordx4 {vr(80+4*p,4)}, v2, s[20:23], s41 offen offset:{1024*p}{SC}")
    a("s_waitcnt vmcnt(0)")
    cnt_add(a, 4, "s40")
    fin(a, 6)
    a("s_endpgm")

def gen_C(a):
    a.label("L_C")
    if "dC" in EXP:
        for _ in range(int(os.environ.get("DN", "1"))): a(f"s_sleep {DLY}")
    a("s_setprio 0")
    R, U, GU, GW = 16, 80, 144, 160
    a("s_sub_u32 s25, s2, 224")
    a("s_lshl_b32 s26, s31, 2")
    a("s_sub_u32 s33, s32, 28")
    a("s_add_u32 s26, s26, s33")
    a("s_lshl_b32 s26, s26, 2")
    a("s_add_u32 s26, s26, s24")
    a("s_mul_i32 s36, s26, 14336")
    for i in range(1, 4):
        a(f"s_add_u32 s{36+i}, s36, {3584*i}")
    a("s_add_u32 s45, s25, s24")
    a("s_waitcnt lgkmcnt(0)")
    a.srd(20, P_WS, WS_SIZE)
    a.srd(12, P_X, X_BYTES)
    for r in range(16):
        a(f"buffer_load_dwordx4 {vr(R+4*r,4)}, v2, s[12:15], s{36+(r>>2)} offen offset:{896*(r&3)}")
    a.srd(16, P_GW, 896)
    a(f"buffer_load_dwordx4 {vr(GW,4)}, v2, s[16:19], 0 offen")
    for r in range(16):
        a(f"v_mov_b32 v{GU+r}, 0")
    a("s_mov_b32 exec_hi, 0xffffff")
    a("s_waitcnt vmcnt(0)")
    a.stamp(1)
    for i in range(4):
        for r in range(16):
            a(f"v_dot2c_f32_bf16 v{GU+r}, v{R+4*r+i}, v{GW+i}")
    a("s_mov_b64 exec, -1")
    a.stamp(2)
    a("s_min_u32 s45, s25, 15")
    a("s_mul_i32 s33, s45, 25088")
    a("s_mul_i32 s34, s24, 7168")
    a("s_add_u32 s33, s33, s34")
    a("v_add_u32 v3, 4096, v2")
    a.srd(12, P_WO, 448 * 896)
    a("s_mov_b32 m0, s34")
    a("s_nop 0")
    for i in range(4):
        a(f"buffer_load_dwordx4 v2, s[12:15], s33 offen offset:{1024*i} lds")
    a("s_add_u32 m0, s34, 4096")
    a("s_nop 0")
    for i in range(3):
        a(f"buffer_load_dwordx4 v3, s[12:15], s33 offen offset:{1024*i} lds")
    for sh in ("row_shr:1", "row_shr:2", "row_shr:4", "row_shr:8"):
        for r in range(16):
            a(f"v_add_f32_dpp v{GU+r}, v{GU+r}, v{GU+r} {sh} row_mask:0xf bank_mask:0xf bound_ctrl:0")
    for r in range(16):
        a(f"v_add_f32_dpp v{GU+r}, v{GU+r}, v{GU+r} row_bcast:15 row_mask:0xa bank_mask:0xf")
    for r in range(16):
        a(f"v_add_f32_dpp v{GU+r}, v{GU+r}, v{GU+r} row_bcast:31 row_mask:0xc bank_mask:0xf")
    for op in (f"v_mul_f32 vX, {hex(f2u(-LOG2E))}, vX", "v_exp_f32 vX, vX", "v_add_f32 vX, 1.0, vX", "v_rcp_f32 vX, vX"):
        for r in range(16):
            a(op.replace("vX", f"v{GU+r}"))
    a("s_lshl_b32 s35, s26, 6")
    a(f"s_add_u32 s35, s35, {GO}")
    a("s_lshr_b32 s37, s26, 1")
    a("s_lshl_b32 s37, s37, 7")
    a(f"s_add_u32 s37, s37, {F_G}")
    a("s_mov_b32 exec_lo, 0")
    a("s_mov_b32 exec_hi, 0x80000000")
    for i in range(4):
        a(f"buffer_store_dwordx4 {vr(GU+4*i,4)}, v{VZ}, s[20:23], s35 offen offset:{16*i}{SC}")
    a("s_mov_b64 exec, -1")
    nonce_issue(a, 250, True)
    a("v_lshrrev_b32 v15, 5, v1")
    a("v_bfe_u32 v13, v1, 2, 2")
    a("v_lshl_add_u32 v13, v15, 2, v13")
    a("v_mul_u32_u24 v13, 896, v13")
    a("v_bfe_u32 v14, v1, 4, 1")
    a("v_lshl_add_u32 v13, v14, 5, v13")
    a("v_and_b32 v14, 3, v1")
    a("v_lshl_add_u32 v12, v14, 3, v13")
    a("s_lshr_b32 s49, s24, 1")
    a("s_mul_i32 s36, s49, 14336")
    a("s_mul_i32 s38, s27, 448")
    a("s_add_u32 s36, s36, s38")
    a("v_add_u32 v12, s36, v12")
    a(f"s_mul_i32 s38, s27, {7*32768}")
    a("s_lshl_b32 s39, s45, 1")
    a("s_add_u32 s39, s39, s49")
    a("s_lshl_b32 s39, s39, 10")
    a("s_add_u32 s38, s38, s39")
    a(f"s_add_u32 s38, s38, {WOF}")
    a("s_lshr_b32 s40, s25, 2")
    a("s_lshl_b32 s40, s40, 7")
    a(f"s_add_u32 s40, s40, {F_WO}")
    a("s_waitcnt vmcnt(0)")
    nonce_take(a, 250, True)
    cnt_add(a, 4, "s37")
    a("s_cmp_ge_u32 s25, 16")
    a("s_cbranch_scc1 C_END")
    a("s_barrier")
    for i in range(7):
        for hr in range(2):
            a(f"ds_read_b64_tr_b16 {vr(16+4*i+2*hr,2)}, v12 offset:{64*i+8*hr*896}")
    a("s_waitcnt lgkmcnt(0)")
    a("s_cmp_eq_u32 s49, 0")
    a("s_cbranch_scc1 C_WO2")
    a("s_mov_b32 exec_lo, 0")
    for i in range(7):
        a(f"v_mov_b32 v{16+4*i+2}, 0")
        a(f"v_mov_b32 v{16+4*i+3}, 0")
    a("s_mov_b32 exec_lo, -1")
    a.label("C_WO2")
    for i in range(7):
        a(f"buffer_store_dwordx4 {vr(16+4*i,4)}, v2, s[20:23], s38 offen{SC}")
        if i < 6: a("s_add_u32 s38, s38, 32768")
    a("s_waitcnt vmcnt(0)")
    cnt_add(a, 4, "s40")
    a.label("C_END")
    fin(a, 3)

def gen():
    a = Asm()
    gen_entry(a)
    gen_A(a)
    gen_B(a)
    gen_C(a)
    a.label("L_END")
    a("s_endpgm")
    return a.text()

HEADER = open("cdna_kernels/" + NAME + ".s.ref").read().split("; Override launch geometry")[0]

DOC = """; ---------------------------------------------------------------------------------------------
; ---------------------------------------------------------------------------------------------
"""

if __name__ == "__main__":
    name = NAME + "_kernel"
    out = HEADER + "; @launch grid=(512,1,1) block=(256,1,1) lds=81920\n"
    out += '.amdgcn_target "amdgcn-amd-amdhsa--gfx950"\n' + DOC + kernel_header(name) + gen() + kernel_desc(name, 256)
    dst = sys.argv[1] if len(sys.argv) > 1 else "cdna_kernels/" + NAME + ".s"
    open(dst, "w").write(out)
```

```python
import sys, math, os
import numpy as np
from dsl import *

NAME = "gated_mix__mha_block__ssm_conv_s4__prompt"
KTS = 28672; VTS = 32256; XTS = 7296
KF = 0x000000
VF = 0x200000
XT = 0x400000
GO = 0x5D0000
WOF = 0x600000
OF = 0x880000
BT = 0x690000
FL = 0x670000
F_KV = FL
F_O = FL + 256 * 128
F_XT = FL + 384 * 128
F_G = FL + 416 * 128
F_B = FL + 480 * 128
F_WO = FL + 496 * 128
WS_SIZE = 0xA90000
X_BYTES = 2048 * 896
W_BYTES = 448 * 2688
LOG2E = 1.4426950408889634
QSCALE = LOG2E * 28 ** -0.5
MF32 = "v_mfma_f32_32x32x16_bf16"
MF16 = "v_mfma_f32_16x16x32_bf16"
SC = " sc1"
NON = 60
POLLMAX = 40000
EXP = os.environ.get("EXP", "")
DLY = int(os.environ.get("DLY", "32"))
DEPTH = int(os.environ.get("DEPTH", "3"))
PA = int(os.environ.get("PA", "2")); PB = int(os.environ.get("PB", "3")); PC = int(os.environ.get("PC", "3"))
P_X, P_W, P_WO, P_PAR, P_LDT, P_DSK, P_GW, P_OUT, P_DBG, P_WS = 64, 66, 68, 72, 84, 86, 88, 90, 92, 94
VZ = 255
PE = int(os.environ.get('PE', '6'))

uid = [0]
def fin(a, idx):
    if not os.environ.get("STAMP"): return
    a("s_waitcnt vmcnt(0)")
    a.stamp(idx)
    dw = os.environ.get("DBGWG")
    if dw:
        uid[0] += 1; u = uid[0]
        a("s_lshl_b32 s96, s2, 2")
        a("s_add_u32 s96, s96, s24")
        a(f"s_cmp_lg_u32 s96, {int(dw)*4}")
        a(f"s_cbranch_scc1 DG{u}")
        a("s_mov_b64 exec, -1")
        a("v_readlane_b32 s97, v254, 1")
        a("v_mbcnt_lo_u32_b32 v0, -1, 0")
        a("v_lshlrev_b32 v1, 1, v0")
        a("v_subrev_u32 v254, s97, v254")
        a("v_and_b32 v1, -4, v1")
        a("s_mov_b32 exec_lo, 0xaaaaaaa8")
        a("s_mov_b32 exec_hi, 0")
        a(f"global_store_dword v1, v254, {sr(P_DBG,2)}")
        a.label(f"DG{u}")
        return
    a.stamp_flush(P_WS)

def cmul(a, d, x, y, phase):
    if phase == 0:
        a(f"v_pk_mul_f32 {vr(d,2)}, {vr(x,2)}, {vr(y,2)} op_sel_hi:[0,1]")
    else:
        a(f"v_pk_fma_f32 {vr(d,2)}, {vr(x,2)}, {vr(y,2)}, {vr(d,2)} op_sel:[1,1,0] op_sel_hi:[1,0,1] neg_lo:[1,0,0]")

def nonce_issue(a, v, allw=False):
    uid[0] += 1; u = uid[0]
    if not allw:
        a("s_cmp_lg_u32 s24, 0")
        a(f"s_cbranch_scc1 NI{u}")
    a(f"global_load_dword v{v}, v{VZ}, {sr(P_DBG,2)}{os.environ.get('NSC', ' sc1')}")
    a.label(f"NI{u}")

def nonce_take(a, v, allw=False):
    uid[0] += 1; u = uid[0]
    if not allw:
        a("s_cmp_lg_u32 s24, 0")
        a(f"s_cbranch_scc1 ND{u}")
    a(f"s_mov_b32 s62, {POLLMAX}")
    a.label(f"NT{u}")
    a(f"v_readfirstlane_b32 s{NON}, v{v}")
    a("s_nop 1")
    a(f"s_cmp_ge_u32 s{NON}, 8")
    a(f"s_cbranch_scc1 ND{u}")
    a("s_sub_u32 s62, s62, 1")
    a(f"s_cbranch_scc1 ND{u}")
    a("s_sleep 8")
    a(f"global_load_dword v{v}, v{VZ}, {sr(P_DBG,2)} sc1")
    a("s_waitcnt vmcnt(0)")
    a(f"s_branch NT{u}")
    a.label(f"ND{u}")

def cnt_load(a, vd, soff):
    a(f"v_mov_b32 v{vd}, 0")
    a("s_mov_b64 exec, 1")
    t = a.vm(f"buffer_atomic_add v{vd}, v{VZ}, s[20:23], {soff} offen sc0 sc1")
    a("s_mov_b64 exec, -1")
    return t

def cnt_wait(a, vd, soff, target, sleep=1):
    uid[0] += 1; u = uid[0]
    a(f"s_mov_b32 s62, {POLLMAX}")
    a.label(f"FC{u}")
    a(f"v_readfirstlane_b32 s4, v{vd}")
    a("s_nop 1")
    a(f"s_cmp_eq_u32 s4, {target}")
    a(f"s_cbranch_scc1 FD{u}")
    a("s_sub_u32 s62, s62, 1")
    a(f"s_cbranch_scc1 FD{u}")
    a(f"s_sleep {sleep}")
    n0 = a.nvm
    cnt_load(a, vd, soff)
    a.nvm = n0
    a("s_waitcnt vmcnt(0)")
    a(f"s_branch FC{u}")
    a.label(f"FD{u}")

def cnt_add(a, vt, soff, va=None, mask="1"):
    a(f"v_mov_b32 v{vt}, 1")
    a(f"s_mov_b64 exec, {mask}")
    a.vm(f"buffer_atomic_add v{vt}, v{VZ if va is None else va}, s[20:23], {soff} offen sc1")
    a("s_mov_b64 exec, -1")

def late_load(a, vd, va):
    a("s_mov_b64 exec, 7")
    a(f"buffer_load_dword v{vd}, v{va}, s[20:23], 0 offen sc1")
    a("s_mov_b64 exec, -1")

def late_check(a, vd, va, vtgt):
    if "nochk" in EXP: return
    uid[0] += 1; u = uid[0]
    a(f"s_mov_b32 s62, {POLLMAX}")
    a.label(f"FC{u}")
    a(f"v_cmp_ne_u32 vcc, v{vd}, v{vtgt}")
    a("s_nop 1")
    a("s_and_b32 s4, vcc_lo, 7")
    a(f"s_cbranch_scc0 FD{u}")
    a("s_sub_u32 s62, s62, 1")
    a(f"s_cbranch_scc1 FD{u}")
    a("s_sleep 16")
    late_load(a, vd, va)
    a("s_waitcnt vmcnt(0)")
    a(f"s_branch FC{u}")
    a.label(f"FD{u}")

RAW = 244
XRW = 232

def gen_entry(a):
    a("s_cmp_ge_u32 s2, 512")
    a("s_cbranch_scc1 L_END")
    a.stamp(0)
    if "dblspan" in EXP: a("s_memrealtime s[100:101]")
    a("s_load_dwordx16 s[64:79], s[0:1], 0")
    a("s_load_dwordx16 s[80:95], s[0:1], 64")
    if "nopf" not in EXP:
        a("s_cmp_lt_u32 s2, 504")
        a("s_cbranch_scc1 E_NOPF")
        a("s_getpc_b64 s[4:5]")
        a.label("E_PC")
        a("v_lshlrev_b32 v4, 7, v0")
        a("v_min_u32 v4, L_END-E_PC, v4")
        a("v_mov_b32 v5, s5")
        a("v_add_co_u32 v4, vcc, s4, v4")
        a("s_nop 1")
        a("v_addc_co_u32 v5, vcc, 0, v5, vcc")
        a("global_load_dword v6, v[4:5], off")
        a.label("E_NOPF")
    a("v_lshrrev_b32 v13, 6, v0")
    a("v_and_b32 v1, 63, v0")
    a("v_lshlrev_b32 v2, 4, v1")
    a(f"v_mov_b32 v{VZ}, 0")
    a("v_readfirstlane_b32 s24, v13")
    a("s_and_b32 s31, s2, 7")
    a("s_bfe_u32 s32, s2, 0x50003")
    a("s_cmp_ge_u32 s2, 256")
    a("s_cbranch_scc1 L_A")
    a("s_and_b32 s27, s24, 1")
    a("s_cmp_ge_u32 s32, 28")
    a("s_cbranch_scc1 L_C")
    a("s_setprio 3")
    a("s_lshl_b32 s39, s32, 1")
    a("s_and_b32 s34, s31, 3")
    a("s_mul_i32 s34, s34, 56")
    a("s_add_u32 s26, s39, s34")
    a("s_lshr_b32 s34, s24, 1")
    a("s_add_u32 s26, s26, s34")
    a("s_lshl_b32 s26, s26, 1")
    a("s_lshr_b32 s34, s31, 2")
    a("s_add_u32 s26, s26, s34")
    a("s_lshl_b32 s33, s26, 9")
    a("s_lshl_b32 s34, s27, 8")
    a("s_add_u32 s33, s33, s34")
    a("v_lshlrev_b32 v3, 2, v1")
    a("v_add_u32 v13, s33, v3")
    a("s_lshl_b32 s34, s26, 1")
    a("s_and_b32 s34, s34, -4")
    a("v_lshlrev_b32 v4, 7, v0")
    a("s_lshl_b32 s33, s2, 15")
    a(f"s_add_u32 s33, s33, {FL}")
    a("s_waitcnt lgkmcnt(0)")
    a.srd(20, P_WS, WS_SIZE)
    a("s_cmp_ge_u32 s2, 2")
    a("s_cbranch_scc1 E_NOINIT")
    a(f"buffer_store_dword v{VZ}, v4, s[20:23], s33 offen sc1")
    a.label("E_NOINIT")
    for i in range(PE):
        a(f"global_load_dword v{RAW+i}, v13, {sr(P_PAR+2*i,2)}")
    a(f"s_load_dword s28, {sr(P_LDT,2)}, s34")
    a(f"s_load_dword s38, {sr(P_DSK,2)}, s34")
    a("s_branch L_B")

def gen_A(a):
    a.label("L_A")
    if "noA" in EXP: a("s_endpgm")
    a(f"s_setprio {PA}")
    if "dA" in EXP: a(f"s_sleep {DLY}")
    a("s_lshr_b32 s33, s31, 1")
    a("s_lshl_b32 s33, s33, 2")
    a("s_and_b32 s34, s32, 3")
    a("s_add_u32 s25, s33, s34")
    a("s_and_b32 s27, s31, 1")
    a("s_lshr_b32 s54, s32, 2")
    a("s_lshl_b32 s33, s27, 3")
    a("s_add_u32 s26, s33, s54")
    XR, ACC, QACC, WF, NV, PK, T = 16, 128, 128, 176, 248, 224, 240
    XL = 32768
    a("s_lshl_b32 s33, s25, 2")
    a("s_add_u32 s35, s33, s24")
    a("s_mul_i32 s33, s35, 28672")
    a("v_lshrrev_b32 v13, 3, v1")
    a("v_mul_u32_u24 v12, 896, v13")
    a("v_and_b32 v14, 7, v1")
    a("v_lshrrev_b32 v15, 4, v1")
    a("v_xor_b32 v15, v15, v14")
    a("v_lshl_add_u32 v3, v15, 4, v12")
    a("v_add_u32 v3, s33, v3")
    a("v_xor_b32 v246, 64, v3")
    a(f"v_add_u32 v244, {6144}, v246")
    a(f"v_add_u32 v245, {6144*2}, v3")
    a(f"v_add_u32 v246, {6144*3}, v246")
    a("s_mul_i32 s40, s24, 12288")
    a(f"s_add_u32 s40, s40, {XL}")
    a("s_lshl_b32 s33, s34, 1")
    a("s_add_u32 s28, s33, s54")
    a("s_sub_u32 s33, s28, 7")
    a("s_cmp_ge_u32 s28, 7")
    a("s_cselect_b32 s28, s33, s28")
    ROT = int(os.environ.get("ROT", "7"))
    if ROT == 1: a("s_mov_b32 s28, 0")
    if ROT == 2:
        a("s_add_u32 s28, s34, s54"); a("s_and_b32 s28, s28, 1"); a("s_mul_i32 s28, s28, 3")
    if ROT == 4:
        a("s_add_u32 s28, s34, s54"); a("s_and_b32 s28, s28, 3"); a("s_lshl_b32 s28, s28, 1")
    if ROT == 8:
        a("s_min_u32 s28, s31, 6")
    a("s_lshl_b32 s29, s28, 7")
    a("s_mul_i32 s37, s28, 172032")
    a("s_mov_b32 s39, s37")
    a("v_bfe_u32 v15, v1, 4, 1")
    a("v_lshlrev_b32 v15, 2, v15")
    a("v_xor_b32 v15, v15, v14")
    a("v_mul_u32_u24 v4, 2688, v13")
    a("v_lshl_add_u32 v4, v15, 4, v4")
    a("s_min_u32 s55, s54, 6")
    a("s_mul_i32 s33, s24, 43008")
    a("s_mul_i32 s34, s27, 896")
    a("s_add_u32 s33, s33, s34")
    a("s_lshl_b32 s34, s55, 7")
    a("s_add_u32 s33, s33, s34")
    a("s_add_u32 s33, s33, 896")
    a("v_add_u32 v4, s33, v4")
    a(f"v_add_u32 v5, {21504-1024}, v4")
    a("s_lshl_b32 s36, s24, 11")
    a("s_lshl_b32 s47, s25, 4")
    a("s_add_u32 s47, s47, s26")
    a("s_mul_i32 s48, s47, 7168")
    a("s_mul_i32 s33, s24, 224")
    a("s_add_u32 s48, s48, s33")
    a("s_add_u32 s49, s48, 3584")
    a("v_lshlrev_b32 v7, 2, v1")
    a("s_waitcnt lgkmcnt(0)")
    a.stamp(1)
    if "dK1" in EXP: a(f"s_sleep {DLY}")
    if "dK2" in EXP: a("s_sleep 64")
    if "dK4" in EXP: a("s_sleep 127")
    a.srd(12, P_X, X_BYTES)
    a.srd(16, P_W, W_BYTES)
    def adv(r):
        a(f"s_add_u32 s{r}, s{r}, 1")
        a(f"s_cmp_eq_u32 s{r}, 7")
        a(f"s_cselect_b32 s{r}, 0, s{r}")
    QD = int(os.environ.get("QD", "8"))
    L = []
    for s_ in range(7):
        L += [("x", s_, 0), ("x", s_, 1), ("x", s_, 2), ("x", s_, 3), ("w", s_, 0), ("w", s_, 1)]
    L += [("q", i, 0) for i in range(7)]
    tag = {}; tagxf = {}
    L0 = list(L)
    lastbar = [-1]; xfree = [-1]; light = [False]; m0 = [None]
    def setm0(base, off):
        if m0[0] != (base, off):
            a(f"s_add_u32 m0, {base}, {off}")
            m0[0] = (base, off)
            return True
        return False
    def issue():
        seen = set()
        for e in L:
            k, s_, n = e
            if k in seen: continue
            seen.add(k)
            if k in "nq" and ("x" in seen or "w" in seen): return
            need = {"x": s_ - 3, "q": 4 + (s_ >> 2)}.get(k, -1)
            if need > xfree[0]: continue
            if k == "w" and s_ >= 4 and lastbar[0] < s_ - 2: continue
            break
        else:
            return
        L.remove(e)
        if k == "x":
            ch = setm0("s40", (s_ % 3) * 4096)
            if n == 0 and s_:
                a("s_add_u32 s29, s29, 128")
                a("s_cmp_eq_u32 s29, 896")
                a("s_cselect_b32 s29, 0, s29")
            elif ch: a("s_nop 0")
            tag[e] = a.vm(f"buffer_load_dwordx4 v{3 if n == 0 else 243+n}, s[12:15], s29 offen offset:{1024*n} lds")
        elif k == "w":
            ch = setm0("s36", (s_ % 4) * 8192)
            if n == 0 and s_:
                a("s_add_u32 s37, s37, 172032")
                a(f"s_cmp_eq_u32 s37, {7*172032}")
                a("s_cselect_b32 s37, 0, s37")
            elif ch: a("s_nop 0")
            tag[e] = a.vm(f"buffer_load_dwordx4 v{4+n}, s[16:19], s37 offen offset:{1024*n} lds")
        elif k == "n":
            nonce_issue(a, NV)
        else:
            setm0("s40", 4096 + 1024 * s_)
            if s_:
                a("s_add_u32 s39, s39, 172032")
                a(f"s_cmp_eq_u32 s39, {7*172032}")
                a("s_cselect_b32 s39, 0, s39")
            else: a("s_nop 0")
            a.vm(f"buffer_load_dwordx4 v14, s[16:19], s39 offen lds")
    XL_ = int(os.environ.get("XL", "1"))
    def xt_rows():
        for r in range(8):
            a.vm(f"buffer_load_dword v{ACC+r}, v7, s[12:15], s{48+(r>>2)} offen offset:{896*(r&3)}")
        return a.nvm
    if not XL_: rowtag = xt_rows()
    nvm_light = a.nvm
    a.srd(20, P_WS, WS_SIZE)
    a("s_cmp_eq_u32 s54, 7")
    a("s_cbranch_scc1 A_GOL")
    for _ in range(QD): issue()
    a.label("A_GO")
    if XL_:
        assert QD == 8
        rowtag = xt_rows()
    if "tlb" in EXP:
        a("s_cmp_lg_u32 s24, 0")
        a("s_cbranch_scc1 A_NOTLB")
        for i, ad in enumerate((0x1fff80, 0x3fff80, 0x5fff80, 0x680000, 0x860000, 0xA80000)):
            a(f"s_mov_b32 s33, {hex(ad)}")
            a(f"v_writelane_b32 v6, s33, {i}")
        a("s_mov_b64 exec, 63")
        a("buffer_load_dword v7, v6, s[20:23], 0 offen")
        a("s_mov_b64 exec, 1")
        a(f"global_load_dword v7, v{VZ}, {sr(P_OUT,2)}")
        a("s_mov_b64 exec, -1")
        a.label("A_NOTLB")
    if "stopA" in EXP: a.stamp(7)
    if "Aload" in EXP:
        a("s_waitcnt vmcnt(0)"); a("s_endpgm")
    a("v_and_b32 v13, 31, v1")
    a("v_bfe_u32 v14, v1, 1, 3")
    a("v_lshrrev_b32 v15, 5, v1")
    a("v_xor_b32 v14, v14, v15")
    a("v_lshlrev_b32 v13, 7, v13")
    a("v_lshl_add_u32 v8, v14, 4, v13")
    a("v_add_u32 v8, s40, v8")
    for ks in range(1, 4):
        a(f"v_xor_b32 v{8+ks}, {32*ks}, v8")
    a(f"v_bfe_u32 v{T}, v1, 2, 2")
    a(f"v_lshl_add_u32 v{T+1}, v15, 3, v{T}")
    a(f"v_bfe_u32 v{T+2}, v1, 4, 1")
    a(f"v_and_b32 v{T+3}, 3, v1")
    a(f"v_lshl_add_u32 v{PK}, v{T+2}, 2, v{T+3}")
    a(f"v_and_b32 v{PK+1}, 1, v1")
    a(f"v_bfe_u32 v{PK+2}, v1, 1, 1")
    a(f"v_lshl_add_u32 v{PK+1}, v{PK+1}, 1, v{PK+2}")
    a(f"v_lshl_add_u32 v{PK+1}, v{T+2}, 2, v{PK+1}")
    a(f"v_bfe_u32 v{T+3}, v1, 3, 1")
    a(f"v_lshlrev_b32 v{T+3}, 6, v{T+3}")
    a(f"v_lshl_add_u32 v{T+3}, v{T+1}, 7, v{T+3}")
    a("s_cmp_eq_u32 s27, 1")
    a("s_cselect_b64 vcc, -1, 0")
    a(f"v_cndmask_b32 v12, v{PK+1}, v{PK}, vcc")
    a(f"v_lshl_add_u32 v12, v12, 3, v{T+3}")
    a("v_xor_b32 v13, 64, v12")
    a(f"v_add_u32 v{PK+2}, 2, v{PK+1}")
    a(f"v_sub_u32 v{PK+3}, 7, v{PK+1}")
    a(f"v_cmp_gt_u32 vcc, 6, v{PK+1}")
    a("s_bitcmp1_b32 s26, 0")
    a("s_cselect_b64 s[4:5], -1, 0")
    a(f"v_cndmask_b32 v{PK+2}, v{PK+3}, v{PK+2}, vcc")
    a(f"v_cndmask_b32 v{PK+2}, v{PK+1}, v{PK+2}, s[4:5]")
    a(f"v_lshlrev_b32 v15, 6, v{T+1}")
    a(f"v_lshl_add_u32 v15, v{PK+2}, 3, v15")
    a(f"v_add_u32 v15, {XL + 4096}, v15")
    a("v_lshrrev_b32 v14, 2, v1")
    a("v_mul_u32_u24 v14, 2688, v14")
    a(f"v_and_b32 v{T}, 3, v1")
    a(f"v_lshl_add_u32 v14, v{T}, 4, v14")
    a("s_mul_i32 s33, s26, 56")
    a("s_and_b32 s33, s33, -16")
    a(f"s_mul_i32 s34, s24, {16*2688}")
    a("s_add_u32 s33, s33, s34")
    a("v_add_u32 v14, s33, v14")
    a("s_mul_i32 s33, s54, 2341")
    a("s_lshr_b32 s33, s33, 10")
    a(f"v_add_u32 v{PK}, s33, v1")
    a(f"v_mul_u32_u24 v{PK+1}, 28, v{PK}")
    a(f"v_lshrrev_b32 v{PK+1}, 6, v{PK+1}")
    a(f"v_cmp_ge_u32 s[56:57], s54, v{PK+1}")
    a(f"v_lshlrev_b32 v243, 11, v{PK}")
    a("s_lshl_b32 s42, s25, 7")
    a(f"s_add_u32 s42, s42, {F_KV}")
    a("s_and_b64 s[56:57], s[56:57], 15")
    a(f"s_mul_i32 s48, s47, {XTS}")
    a("s_mul_i32 s33, s24, 896")
    a("s_add_u32 s48, s48, s33")
    a(f"s_add_u32 s48, s48, {XT}")
    a("s_lshr_b32 s49, s25, 2")
    a("s_lshl_b32 s49, s49, 10")
    a(f"s_add_u32 s49, s49, {F_XT}")
    a("v_lshlrev_b32 v7, 7, v1")
    a("s_mov_b32 s50, 0x05040100")
    a("s_mov_b32 s51, 0x07060302")
    def xt_store():
        a.wait_vm(rowtag)
        a("s_mov_b32 exec_hi, 0xffffff")
        for e in range(2):
            for q in range(4):
                a(f"v_perm_b32 v{ACC+8+4*e+q}, v{ACC+2*q+1}, v{ACC+2*q}, s{50+e}")
            a.vm(f"buffer_store_dwordx4 {vr(ACC+8+4*e,4)}, v2, s[20:23], s48 offen offset:{3584*e}{SC}")
        a("s_mov_b64 exec, -1")
    def xt_pub(tg_):
        nonce_take(a, NV)
        a("s_cmp_lg_u32 s24, 0")
        a(f"s_cbranch_scc1 XP{tg_}")
        n0 = a.nvm
        cnt_add(a, NV + 1, "s49", 7, "0xff")
        a.nvm = n0
        a.label(f"XP{tg_}")
    a("s_cmp_eq_u32 s54, 7")
    a("s_cbranch_scc1 A_LIGHT")
    a("s_cmp_eq_u32 s27, 1")
    a("s_cbranch_scc1 A_V")

    def pass1(vtype):
        tagtr = {}
        NB = 6; TD = 3
        NIS = int(os.environ.get("NIS", "2"))
        def trload(u, t):
            s, ks = u >> 2, u & 3
            for hr in range(2):
                off = (s % 4) * 8192 + (16 * ks + 4 * hr) * 128
                tagtr[u] = a.ds(f"ds_read_b64_tr_b16 {vr(WF+(u%NB)*8+4*t+2*hr,2)}, v{12+t} offset:{off}")
        def mfma(u, t):
            wf = vr(WF + (u % NB) * 8 + 4 * t, 4); xf = vr(XR + 4 * u, 4)
            c = "0" if u == 0 else vr(ACC + 16 * t, 16)
            a(f"{MF32} {vr(ACC+16*t,16)}, {xf}, {wf}, {c}" if vtype else f"{MF32} {vr(ACC+16*t,16)}, {wf}, {xf}, {c}")
        pend = None; ntag = [0]
        for _ in range(int(os.environ.get("QD2", "6"))): issue()
        XB_ = int(os.environ.get("XB", "3"))
        XS_ = int(os.environ.get("XS", "-2"))
        if XS_ == -5: xt_store()
        for u in range(-4, 28):
            if u >= 0:
                a.wait_ds(max(tagtr[u], tagxf[u >> 2]))
                mfma(u, 0)
            issue()
            if (u + TD) % 4 == 0 and (u + TD) // 4 < 7:
                sb = (u + TD) // 4
                a.wait_vm(max(tag[("w", sb, 1)], ntag[0] + 1) if sb == XB_ else tag[("w", sb, 1)])
                a("s_barrier")
                lastbar[0] = sb
                if sb == 0:
                    nonce_issue(a, NV); ntag[0] = a.nvm
                if sb == XB_: xt_pub("V" if vtype else "K")
                if sb in (0, 6): a.stamp(2 + sb // 6)
            if 0 <= u + TD < 28: trload(u + TD, 0)
            if u >= 0: mfma(u, 1)
            if pend is not None:
                a.wait_ds(tagxf[pend]); xfree[0] = pend; pend = None
            for _ in range(NIS - 1): issue()
            if 0 <= u + TD < 28: trload(u + TD, 1)
            if u % 4 == 0 and u // 4 + 1 < 7:
                s = u // 4 + 1
                a.wait_vm(tag[("x", s, 3)])
                for ks in range(4):
                    tagxf[s] = a.ds(f"ds_read_b128 {vr(XR+16*s+4*ks,4)}, v{8+ks} offset:{(s%3)*4096}")
                pend = s
            if u == XS_:
                xt_store(); ntag[0] = max(ntag[0], a.nvm)
        assert not L, L
    saved = (a.nvm, a.nds, list(L), m0[0])
    a("v_mov_b32 v247, v2")
    a(f"s_mul_i32 s38, s35, {KTS}")
    a("s_lshl_b32 s33, s55, 12")
    a("s_add_u32 s38, s38, s33")
    a("s_add_u32 s41, s38, 1024")
    a("s_add_u32 s43, s38, 2048")
    a("s_add_u32 s44, s38, 3072")
    pass1(False)
    a("s_branch A_ST")
    a.label("A_V")
    a.nvm, a.nds, L[:], m0[0] = saved; lastbar[0] = -1; xfree[0] = -1
    a("v_lshrrev_b32 v247, 5, v1")
    a(f"v_mul_u32_u24 v247, {8064-512}, v247")
    a("v_add_u32 v247, v247, v2")
    a(f"s_mul_i32 s38, s35, {VTS}")
    a("s_mul_i32 s33, s55, 1152")
    a("s_add_u32 s38, s38, s33")
    a(f"s_add_u32 s38, s38, {VF}")
    a("s_add_u32 s41, s38, 16128")
    a("s_add_u32 s43, s38, 512")
    a("s_add_u32 s44, s41, 512")
    a(f"v_lshrrev_b32 v{T}, 1, v1")
    a(f"v_mul_u32_u24 v{T}, 8064, v{T}")
    a(f"v_and_b32 v{T+1}, 1, v1")
    a(f"v_lshl_add_u32 v{T}, v{T+1}, 4, v{T}")
    a(f"v_subrev_u32 v{T+1}, 1, v{T+1}")
    for i in range(4):
        a(f"v_and_b32 v{PK+i}, 0x3f803f80, v{T+1}")
    a("s_mov_b64 exec, 0xff")
    a(f"buffer_store_dwordx4 {vr(PK,4)}, v{T}, s[20:23], s38 offen offset:1024{SC}")
    a("s_mov_b64 exec, -1")
    pass1(True)
    a.label("A_ST")
    a.nop(11)
    for t in range(2):
        for r in range(0, 16, 2):
            a(f"v_cvt_pk_bf16_f32 v{PK+8*t+r//2}, v{ACC+16*t+r}, v{ACC+16*t+r+1}")
        for f in range(2):
            a(f"buffer_store_dwordx4 {vr(PK+8*t+4*f,4)}, v247, s[20:23], s{(38,41,43,44)[2*t+f]} offen{SC}")
    a("s_waitcnt vmcnt(4)")
    a("s_branch A_P2")
    lslot = {0: ("s40", 0), 1: ("s40", 4096), 2: ("s40", 8192), 3: ("s36", 0), 4: ("s36", 4096), 5: ("s40", 0), 6: ("s36", 0)}
    ltag = {}
    def lx(s_):
        a(f"s_add_u32 m0, {lslot[s_][0]}, {lslot[s_][1]}")
        if s_:
            a("s_add_u32 s29, s29, 128")
            a("s_cmp_eq_u32 s29, 896")
            a("s_cselect_b32 s29, 0, s29")
        else: a("s_nop 0")
        for n in range(4):
            ltag[s_] = a.vm(f"buffer_load_dwordx4 v{3 if n == 0 else 243+n}, s[12:15], s29 offen offset:{1024*n} lds")
    def lq(i):
        a(f"s_add_u32 m0, s40, {4096 + 1024*i}")
        if i:
            a("s_add_u32 s39, s39, 172032")
            a(f"s_cmp_eq_u32 s39, {7*172032}")
            a("s_cselect_b32 s39, 0, s39")
        else: a("s_nop 0")
        a.vm(f"buffer_load_dwordx4 v14, s[16:19], s39 offen lds")
    a.label("A_GOL")
    a.nvm = nvm_light
    a("s_lshl_b32 s36, s24, 13")
    LE = int(os.environ.get("LE", "2"))
    for s_ in range(LE): lx(s_)
    a("s_branch A_GO")
    a.label("A_LIGHT")
    if XL_:
        assert LE == 2
        a.nvm += 8
    for s_ in range(LE, 5):
        if s_ == 3:
            xt_store()
            nonce_issue(a, NV)
        lx(s_)
    a("s_sub_u32 s33, s36, s40")
    LA = (4, 5, 12, 13)
    for ks in range(4):
        a(f"v_add_u32 v{LA[ks]}, s33, v{8+ks}")
    for s_ in range(7):
        a.wait_vm(ltag[s_])
        for ks in range(4):
            a(f"ds_read_b128 {vr(XR+16*s_+4*ks,4)}, v{(8+ks) if lslot[s_][0] == 's40' else LA[ks]} offset:{lslot[s_][1]}")
        if s_ < 4: a("s_waitcnt lgkmcnt(0)")
        if s_ == 0: lx(5)
        if s_ == 1:
            for i in range(4): lq(i)
        if s_ == 2:
            for i in range(4, 7): lq(i)
        if s_ == 3:
            lx(6)
            a("s_barrier")
            xt_pub("L")
    a("s_waitcnt vmcnt(0) lgkmcnt(0)")
    a.label("A_P2")
    if "dP" in EXP: a(f"s_sleep {DLY}")
    a.stamp(4)
    nonce_take(a, NV)
    a("s_barrier")
    Q, O, S, P, KB, VB, NM, MX, T2 = 16, 48, 112, 144, 160, 192, 224, 228, 232
    VK0, VK1, VV0, VV1, C1, C2 = 10, 11, 12, 13, 252, 253
    class Rec:
        def __init__(self): self.ch = []
        def __call__(self, *ins): self.ch.append(list(ins))
    c = Rec()
    c("s_cmp_eq_u32 s54, 7", "s_cselect_b32 s59, 1, s24")
    c("s_mul_i32 s33, s26, 28"); c("s_lshr_b32 s44, s33, 6"); c("s_add_u32 s34, s33, 27"); c("s_lshr_b32 s34, s34, 6")
    c("s_sub_u32 s34, s34, s44"); c("s_lshl_b32 s34, s34, 1"); c("s_add_u32 s58, s34, 2")
    c("v_lshrrev_b32 v4, 5, v1")
    c("v_lshlrev_b32 v249, 9, v1"); c(f"v_mov_b32 v{NV+2}, 0")
    c("s_lshl_b32 s34, s26, 11"); c("s_lshl_b32 s36, s24, 7"); c("s_add_u32 s34, s34, s36"); c(f"s_add_u32 s53, s34, {F_KV}")
    c(f"s_mov_b32 s46, {hex(f2u(QSCALE))}"); c("s_mov_b32 s47, s46")
    c("s_lshl_b32 s36, s24, 11"); c("s_add_u32 s36, s36, 49152"); c("v_add_u32 v6, s36, v2")
    for t in range(1, 4): c(f"v_xor_b32 v{6+t}, {2048*t}, v6")
    c("s_lshr_b32 s34, s26, 1"); c("s_mul_i32 s34, s34, 3584"); c("s_and_b32 s36, s26, 1"); c("s_lshl_b32 s37, s36, 11")
    c("s_add_u32 s34, s34, s37"); c(f"v_add_u32 v{VK0}, s34, v2"); c(f"v_add_u32 v{VK1}, 1024, v{VK0}")
    c(f"s_mul_i32 s37, s36, {2048-8}")
    c("s_mov_b32 exec_lo, 0", f"v_subrev_u32 v{VK1}, s37, v{VK1}", "s_mov_b32 exec_lo, -1")
    c("v_and_b32 v5, 31, v1"); c("v_add_u32 v3, s33, v5"); c("v_lshrrev_b32 v5, 6, v3"); c("v_lshlrev_b32 v5, 7, v5")
    c(f"v_lshl_add_u32 v{VV0}, v3, 4, v5")
    c("s_mul_i32 s34, s44, 1152"); c("s_add_u32 s34, s34, 1024"); c("s_add_u32 s37, s34, 16")
    c("s_mov_b32 exec_lo, 0xf0000000", "s_mov_b32 exec_hi, 0xf0000000", f"v_mov_b32 v{VV0}, s37", "s_mov_b64 exec, -1")
    c(f"v_writelane_b32 v{VV0}, s34, 28"); c(f"v_writelane_b32 v{VV0}, s34, 60")
    c("s_movk_i32 s34, 8064"); c(f"v_mad_u32_u24 v{VV0}, v4, s34, v{VV0}"); c(f"v_add_u32 v{VV1}, 16128, v{VV0}")
    c(f"s_mul_i32 s34, s24, {4*KTS}"); c(f"s_mul_i32 s37, s24, {4*VTS}"); c(f"s_add_u32 s37, s37, {VF}")
    for d, sz, off in ((12, 52 * KTS, "s34"), (16, 52 * VTS, "s37")):
        c(f"s_add_u32 s{d}, s{P_WS}, {off}", f"s_addc_u32 s{d+1}, s{P_WS+1}, 0")
        c(f"s_mov_b32 s{d+2}, {sz}"); c(f"s_mov_b32 s{d+3}, 0x00020000")
    c("s_mov_b32 s63, 15")
    c(f"v_mov_b32 v{C1}, 0x3f803f80"); c(f"v_mov_b32 v{C2}, 0x3f80")
    for r in range(8): c(f"v_mov_b32 v{VB+24+r}, 0")
    for t in range(4): c(f"v_mov_b32 v{NM+t}, 0")
    c("s_mov_b32 s41, 0")
    PV_ = NV + 2
    def kv_poll():
        a("s_mov_b64 exec, 15")
        a(f"buffer_atomic_umax v{PV_}, v249, s[20:23], s53 offen sc0 sc1")
        a("s_mov_b64 exec, -1")
    def kv_pick(tagname):
        a(f"s_mov_b32 s62, {POLLMAX}")
        a.label(f"KP{tagname}")
        a(f"v_cmp_eq_u32 vcc, s58, v{PV_}")
        a("s_nop 1")
        a("s_and_b32 s5, vcc_lo, s63")
        a(f"s_cbranch_scc1 KD{tagname}")
        a("s_mov_b32 s5, s63")
        a("s_sub_u32 s62, s62, 1")
        a(f"s_cbranch_scc1 KD{tagname}")
        a("s_sleep 1")
        kv_poll()
        a("s_waitcnt vmcnt(0)")
        a(f"s_branch KP{tagname}")
        a.label(f"KD{tagname}")
        a("s_ff1_i32_b32 s59, s5")
        a("s_bitset0_b32 s63, s59")
        a("s_bitset0_b32 s5, s59")
    def first_loads():
        a(f"s_mul_i32 s44, s59, {16*KTS}")
        a(f"s_mul_i32 s45, s59, {16*VTS}")
        for kt in range(4):
            for f in range(2):
                r = a.vm(f"buffer_load_dwordx4 {vr(KB+8*kt+4*f,4)}, v{VK0+f}, s[12:15], s44 offen{SC}")
            if kt < 3: a(f"s_addk_i32 s44, {KTS}")
            if kt == 0: tag = r
            if kt < 3:
                for f in range(2):
                    a.vm(f"buffer_load_dwordx4 {vr(VB+8*kt+4*f,4)}, v{VV0+f}, s[16:19], s45 offen{SC}")
                a(f"s_addk_i32 s45, {VTS}")
        return tag
    def patch(kb):
        a(f"v_mov_b32_dpp v{kb+6}, v{C1} quad_perm:[0,1,2,3] row_mask:0xc bank_mask:0xf")
        a(f"v_mov_b32_dpp v{kb+7}, v{C2} quad_perm:[0,1,2,3] row_mask:0xc bank_mask:0xf")
    tq = {}
    def trq(u):
        for hr in range(2):
            tq[u] = a.ds(f"ds_read_b64_tr_b16 {vr(WF+(u%8)*4+2*hr,2)}, v15 offset:{(u&3)*12288+(u>>2)*1024+256*hr}")
    PUBU = int(os.environ.get("PUBU", "28")); EPU = int(os.environ.get("EPU", "99"))
    def publish():
        a("s_cmp_lg_u32 s59, 0")
        a("s_waitcnt vmcnt(0)")
        a("s_barrier")
        a("s_cbranch_scc1 A_NOPUB")
        cnt_add(a, NV, "s42", 243, "s[56:57]")
        a.label("A_NOPUB")
        a(f"s_setprio {os.environ.get('PQ', '2')}")
        a.stamp(5)
    for u in range(6): trq(u)
    for u in range(28):
        if u + 6 < 28: trq(u + 6)
        a.wait_ds(tq[u])
        cc = "0" if u == 0 else vr(QACC, 16)
        a(f"{MF32} {vr(QACC,16)}, {vr(WF+(u%8)*4,4)}, {vr(XR+4*u,4)}, {cc}")
        n = 0
        while c.ch and n < (3 if u < 22 else 5):
            for ins in c.ch.pop(0): a(ins); n += 1
        if u == PUBU: publish()
        if u == EPU: kv_poll()
    assert not c.ch, len(c.ch)
    def zero_acc():
        for t in range(4):
            a(f"{MF32} {vr(O+16*t,16)}, {vr(VB+24,4)}, {vr(VB+24,4)}, 0")
    zero_acc()
    if PUBU >= 28: publish()
    else:
        a.nop(4)
        a("s_barrier")
    if "stopA" in EXP:
        fin(a, 6); a("s_endpgm")
    kv_poll()
    a.nop(1)
    for r in range(16):
        a(f"v_mul_f32 v{QACC+r}, s46, v{QACC+r}")
    for r in range(0, 16, 2):
        a(f"v_cvt_pk_bf16_f32 v{Q+r//2}, v{QACC+r}, v{QACC+r+1}")
    a("s_mov_b32 exec_lo, 0")
    a(f"v_mov_b32 v{Q+6}, 0")
    a(f"v_mov_b32 v{Q+7}, 0")
    a("s_mov_b32 exec_lo, -1")
    for f in range(2):
        a(f"ds_write_b128 v6, {vr(Q+4*f,4)} offset:{1024*f}")
    a("s_waitcnt lgkmcnt(0)")
    a("s_barrier")
    for t in range(1, 4):
        for f in range(2):
            a(f"ds_read_b128 {vr(Q+8*t+4*f,4)}, v{6+t} offset:{1024*f}")
    if EPU < 28:
        a("s_waitcnt vmcnt(1)")
        a(f"v_cmp_eq_u32 vcc, s58, v{PV_}")
        a("s_nop 1")
        a("s_and_b32 s6, vcc_lo, 15")
        a("s_cbranch_scc0 A_E0")
        kv_pick("E")
        first_loads()
        kv_poll()
        a.label("A_E0")
    a("s_mov_b32 s42, 0x07060302")
    a("s_min_u32 s33, s32, 27")
    a("s_and_b32 s34, s33, 3")
    a("s_lshl_b32 s47, s31, 2")
    a("s_add_u32 s47, s47, s34")
    a("s_lshr_b32 s48, s33, 2")
    a("s_lshr_b32 s49, s24, 1")
    a("s_lshl_b32 s33, s47, 1")
    a("s_add_u32 s49, s49, s33")
    a("s_and_b32 s50, s24, 1")
    a("s_lshl_b32 s33, s48, 1")
    a("s_add_u32 s50, s50, s33")
    a("v_bfe_u32 v5, v1, 2, 2")
    a("v_lshlrev_b32 v9, 7, v5")
    a("v_bfe_u32 v5, v1, 4, 1")
    a("v_lshl_add_u32 v9, v5, 6, v9")
    a("v_and_b32 v5, 3, v1")
    a("v_lshl_add_u32 v9, v5, 4, v9")
    a("v_lshl_add_u32 v9, v4, 9, v9")
    for t in range(1, 4):
        a(f"s_xor_b32 s33, s24, {t}")
        a("s_mul_i32 s33, s33, 12288")
        a(f"s_add_u32 s33, s33, {(t-1)*4096}")
        a(f"v_add_u32 v{3+t}, s33, v2")
    a("s_mul_i32 s33, s24, 12288")
    a("v_add_u32 v7, s33, v2")
    a("v_or_b32 v8, 512, v7")
    a("s_lshl_b32 s33, s35, 4")
    a("s_add_u32 s33, s33, s26")
    a("s_lshl_b32 s43, s33, 11")
    a(f"s_add_u32 s43, s43, {OF}")
    a("s_lshr_b32 s51, s35, 1")
    a("s_lshl_b32 s51, s51, 9")
    a("s_lshr_b32 s33, s26, 2")
    a("s_lshl_b32 s33, s33, 7")
    a("s_add_u32 s51, s51, s33")
    a(f"s_add_u32 s51, s51, {F_O}")
    a("s_lshl_b32 s33, s50, 7")
    a(f"s_add_u32 s33, s33, {F_B}")
    a("v_mov_b32 v14, s33")
    a("v_mov_b32 v15, 64")
    a("s_lshl_b32 s33, s49, 7")
    a(f"s_add_u32 s33, s33, {F_G}")
    a("v_writelane_b32 v14, s33, 1")
    a("v_writelane_b32 v15, 2, 1")
    a("s_lshl_b32 s33, s24, 7")
    a(f"s_add_u32 s33, s33, {F_WO}")
    a("v_writelane_b32 v14, s33, 2")
    a("v_writelane_b32 v15, 16, 2")
    if EPU < 28:
        a("s_cmp_lg_u32 s6, 0")
        a("s_cbranch_scc1 A_E1")
    a("s_waitcnt vmcnt(0)")
    kv_pick("A")
    tagk0 = first_loads()
    kv_poll()
    a.nvm += 1
    if EPU < 28: a.label("A_E1")
    a.stamp(6)
    a("s_waitcnt lgkmcnt(0)")
    a.wait_vm(tagk0)
    a.stamp(7)
    if "dL" in EXP: a(f"s_sleep {DLY}")
    TT = [S + 16, T2, P, S]
    patch(KB)
    a("s_nop 0")
    def mx(t):
        a(f"v_max3_f32 v{MX+t}, v{TT[t]}, v{TT[t]+1}, v{TT[t]+2}")
        for i in range(1, 4):
            a(f"v_max3_f32 v{MX+t}, v{MX+t}, v{TT[t]+2*i+1}, v{TT[t]+2*i+2}")
    for t in range(4):
        a(f"{MF32} {vr(TT[t],16)}, {vr(KB,4)}, {vr(Q+8*t,4)}, 0")
        a(f"{MF32} {vr(TT[t],16)}, {vr(KB+4,4)}, {vr(Q+8*t+4,4)}, {vr(TT[t],16)}")
    a.nop(6)
    mx(0); mx(1); mx(2)
    mx(3)
    a.label("A_SETMAX")
    def setm(ts):
        for t in ts: a(f"v_sub_f32 v{NM+t}, v{NM+t}, v{MX+t}")
        for t in ts: a(f"v_and_b32 v{T2+t}, 0xffff0000, v{NM+t}")
        for t in ts: a(f"v_sub_f32 v{T2+t}, v{NM+t}, v{T2+t}")
        for t in ts: a(f"v_and_b32 v{T2+4+t}, 0xffff0000, v{T2+t}")
        for t in ts: a(f"v_sub_f32 v{T2+4+t}, v{T2+t}, v{T2+4+t}")
        for t in ts:
            a(f"v_perm_b32 v{Q+8*t+6}, v{T2+t}, v{NM+t}, s42")
            a(f"v_lshrrev_b32 v{Q+8*t+7}, 16, v{T2+4+t}")
    a("s_mov_b32 exec_lo, 0")
    setm((0, 1))
    a("s_mov_b32 exec_lo, -1")
    a(f"{MF32} {vr(S,16)}, {vr(KB,4)}, {vr(Q,4)}, 0")
    a(f"{MF32} {vr(S,16)}, {vr(KB+4,4)}, {vr(Q+4,4)}, {vr(S,16)}")
    a("s_mov_b32 exec_lo, 0")
    setm((2, 3))
    a("s_mov_b32 exec_lo, -1")
    for r in range(8):
        a(f"v_mov_b32 v{P+8+r}, 0")
    a("s_mov_b32 s46, 4")
    a(f"s_movk_i32 s60, {KTS}")
    a(f"s_movk_i32 s61, {VTS}")
    a(f"s_setprio {os.environ.get('PL', '1')}")
    AL = os.environ.get("AL")
    if AL:
        a.raw(".p2alignl 6, 0xbf800000")
        for _ in range(int(AL)): a("s_nop 0")
    a.label("A_LOOP")
    sh = {}
    for kt in range(4):
        b = 4 * kt
        for f in range(2):
            sh[(b, 2 + f)] = [f"buffer_load_dwordx4 {vr(VB+8*((kt-1)&3)+4*f,4)}, v{VV0+f}, s[16:19], s45 offen{SC}"]
            sh[(b + 2, 1 + f)] = [f"buffer_load_dwordx4 {vr(KB+8*kt+4*f,4)}, v{VK0+f}, s[12:15], s44 offen{SC}"]
        sh[(b + 1, 1)] = ["s_waitcnt vmcnt(12)"]
        sh[(b + 2, 3)] = ["s_waitcnt vmcnt(12)"]
        if kt: sh[(b + 1, 0)] = ["s_add_u32 s45, s45, s61"]
        if kt < 3: sh[(b + 3, 1)] = ["s_add_u32 s44, s44, s60"]
    sh[(1, 0)] = ["s_cmp_le_u32 s5, 128"]
    sh[(1, 2)] = ["s_cbranch_scc1 A_SLOW", "A_SLOWR:"]
    sh[(1, 3)] = ["s_ff1_i32_b32 s59, s5"]
    sh[(2, 0)] = [f"s_mul_i32 s44, s59, {16*KTS}"]
    sh[(3, 0)] = [f"s_mul_i32 s45, s59, {16*VTS}"]
    sh[(3, 2)] = ["s_bitset0_b32 s63, s59"]
    sh[(3, 3)] = ["s_bitset0_b32 s5, s59"]
    sh[(4, 0)] = ["s_cmp_le_u32 s46, 2"]
    sh[(4, 1)] = ["s_cbranch_scc1 A_LLOAD", "A_LLOADR:"]
    sh[(15, 2)] = ["s_sub_u32 s46, s46, 1"]
    sh[(15, 3)] = ["s_cmp_lg_u32 s46, 0"]
    for n in range(16):
        kt, t = n >> 2, n & 3
        n1 = (n + 1) & 15; kt1, t1 = n1 >> 2, n1 & 3
        n0 = (n - 1) & 15; kt0, t0 = n0 >> 2, n0 & 3
        sc = S + 16 * (n & 1); sn = S + 16 * (n1 & 1)
        pc = P + 8 * (n & 1); pp = P + 8 * (n0 & 1)
        mf = [f"{MF32} {vr(sn,16)}, {vr(KB+8*kt1,4)}, {vr(Q+8*t1,4)}, 0",
              f"{MF32} {vr(sn,16)}, {vr(KB+8*kt1+4,4)}, {vr(Q+8*t1+4,4)}, {vr(sn,16)}",
              f"{MF32} {vr(O+16*t0,16)}, {vr(VB+8*kt0,4)}, {vr(pp,4)}, {vr(O+16*t0,16)}",
              f"{MF32} {vr(O+16*t0,16)}, {vr(VB+8*kt0+4,4)}, {vr(pp+4,4)}, {vr(O+16*t0,16)}"]
        for m in range(4):
            a(mf[m])
            for ins in sh.get((n, m), []):
                if ins.endswith(":"): a.label(ins[:-1])
                else: a(ins)
            if m == 0 and t == 3:
                patch(KB + 8 * kt1)
            for e in range(4):
                a(f"v_exp_f32 v{sc+4*m+e}, v{sc+4*m+e}")
            for c_ in range(2):
                a(f"v_cvt_pk_bf16_f32 v{pc+2*m+c_}, v{sc+4*m+2*c_}, v{sc+4*m+2*c_+1}")
    a("s_cbranch_scc1 A_LOOP")
    a.stamp(8)
    if "dT" in EXP: a(f"s_sleep {DLY}")
    a("s_nop 0")
    a(f"{MF32} {vr(O+48,16)}, {vr(VB+24,4)}, {vr(P+8,4)}, {vr(O+48,16)}")
    a(f"{MF32} {vr(O+48,16)}, {vr(VB+28,4)}, {vr(P+12,4)}, {vr(O+48,16)}")
    a("v_mov_b32 v3, 0x5f800000")
    a("s_mov_b32 exec_lo, 0")
    for t in range(3):
        a(f"v_cmp_nlt_f32 {sr(4+2*t,2)}, v{O+16*t+12}, v3")
    for t in range(1, 3):
        a(f"v_mov_b32 v{O+16*t+13}, v{NM+t}")
    a("s_mov_b32 exec_lo, -1")
    for t in range(1, 3):
        for q in range(4):
            a(f"ds_write_b128 v{3+t}, {vr(O+16*t+4*q,4)} offset:{1024*q}")
    a("s_mov_b32 exec_lo, 0")
    a(f"v_cmp_nlt_f32 vcc, v{O+48+12}, v3")
    a(f"v_mov_b32 v{O+48+13}, v{NM+3}")
    a("s_mov_b32 exec_lo, -1")
    a("s_or_b32 s5, s5, s7")
    a("s_or_b32 s5, s5, s9")
    a("s_or_b32 s5, s5, vcc_hi")
    a("s_andn2_b32 s5, s5, s41")
    a("s_cbranch_scc1 A_FALLBACK")
    for q in range(4):
        a(f"ds_write_b128 v6, {vr(O+48+4*q,4)} offset:{1024*q}")
    a(f"v_mov_b32 v{T2}, v{O+12}")
    a(f"v_mov_b32 v{T2+1}, v{O+12}")
    a(f"v_mov_b32 v{T2+8}, v{NM}")
    a("v_add_u32 v10, 4096, v2")
    a("s_lshl_b32 s33, s24, 13")
    a(f"s_add_u32 s33, s33, {WOF}")
    a("s_lshl_b32 s36, s50, 15")
    a("s_add_u32 s36, s36, s33")
    a("s_xor_b32 s37, s50, 1")
    a("s_lshl_b32 s37, s37, 15")
    a("s_add_u32 s37, s37, s33")
    a("v_lshrrev_b32 v11, 5, v1")
    a("v_lshlrev_b32 v12, 6, v11")
    a("s_lshl_b32 s38, s49, 7")
    a(f"s_add_u32 s38, s38, {GO}")
    a("v_and_b32 v13, 31, v1")
    a("v_lshlrev_b32 v3, 12, v13")
    a("v_lshl_add_u32 v3, v11, 4, v3")
    a("s_lshl_b32 s39, s50, 17")
    a("s_lshr_b32 s34, s49, 4")
    a("s_lshl_b32 s34, s34, 10")
    a("s_add_u32 s39, s39, s34")
    a("s_and_b32 s34, s49, 15")
    a("s_lshl_b32 s34, s34, 5")
    a("s_add_u32 s39, s39, s34")
    a(f"s_add_u32 s39, s39, {BT}")
    WB, GG, BB = KB, Q, Q + 16
    def wbuf(i): return WB + 8 * ((i - 1) & 7)
    def wo_load(i):
        for x in range(2):
            a(f"buffer_load_dwordx4 {vr(wbuf(i)+4*x,4)}, v{2 if i<4 else 10}, s[20:23], s{36+x} offen offset:{1024*(i&3)}{SC}")
    a("s_cmp_lg_u32 s60, 1024")
    a("s_cbranch_scc1 A_NOW0")
    wo_load(0)
    a.label("A_NOW0")
    a("s_waitcnt lgkmcnt(0)")
    a("s_barrier")
    LM = T2 + 2
    for s in range(3):
        a(f"ds_read_b64 {vr(LM+2*s,2)}, v8 offset:{4096*s+3072}")
    RB = O + 16
    for s in range(3):
        for q in range(4):
            a(f"ds_read_b128 {vr(RB+16*s+4*q,4)}, v7 offset:{4096*s+1024*q}")
    a(f"v_permlane32_swap_b32 v{T2}, v{T2+1}")
    a(f"v_permlane32_swap_b32 v{T2+8}, v{NM}")
    a("s_waitcnt lgkmcnt(12)")
    a(f"v_min3_f32 v{MX}, v{NM}, v{LM+1}, v{LM+3}")
    a(f"v_min_f32 v{MX}, v{MX}, v{LM+5}")
    a(f"v_sub_f32 v{S}, v{MX}, v{NM}")
    for s in range(3):
        a(f"v_sub_f32 v{S+2+2*s}, v{MX}, v{LM+2*s+1}")
    for s in range(4):
        a(f"v_exp_f32 v{S+2*s}, v{S+2*s}")
    a(f"v_mul_f32 v{MX+1}, v{S}, v{T2+1}")
    for s in range(3):
        a(f"v_fmac_f32 v{MX+1}, v{S+2+2*s}, v{LM+2*s}")
    a(f"v_rcp_f32 v{MX+1}, v{MX+1}")
    a("s_nop 0")
    for s in range(4):
        a(f"v_mul_f32 v{S+2*s}, v{S+2*s}, v{MX+1}")
    for r in range(0, 16, 2):
        a(f"v_pk_mul_f32 {vr(O+r,2)}, {vr(O+r,2)}, {vr(S,2)} op_sel_hi:[1,0]")
    for s in range(3):
        a(f"s_waitcnt lgkmcnt({8-4*s})")
        for r in range(0, 16, 2):
            a(f"v_pk_fma_f32 {vr(O+r,2)}, {vr(RB+16*s+r,2)}, {vr(S+2+2*s,2)}, {vr(O+r,2)} op_sel_hi:[1,0,1]")
    for r in range(0, 16, 2):
        a(f"v_cvt_pk_bf16_f32 v{P+r//2}, v{O+r}, v{O+r+1}")
    a("s_mov_b32 exec_lo, 0")
    a(f"v_mov_b32 v{P+6}, 0")
    a(f"v_mov_b32 v{P+7}, 0")
    a("s_mov_b32 exec_lo, -1")
    a.nvm = 0
    for f in range(2):
        tagos = a.vm(f"buffer_store_dwordx4 {vr(P+4*f,4)}, v9, s[20:23], s43 offen offset:{1024*f}{SC}")
    a.stamp(9)
    a("s_barrier")
    a("s_lshl_b32 s52, s47, 9")
    a("s_lshl_b32 s33, s24, 7")
    a("s_add_u32 s52, s52, s33")
    a(f"s_add_u32 s52, s52, {F_O}")
    a.wait_vm(tagos)
    cnt_add(a, 252, "s51")
    a("s_cmp_ge_u32 s32, 28")
    a("s_cbranch_scc1 A_XIT" if os.environ.get("STAMP") else "s_cbranch_scc1 L_END")
    a("s_cmp_eq_u32 s60, 1024")
    a("s_cbranch_scc1 A_WOK")
    late_check(a, 248, 14, 15)
    for i in range(8): wo_load(i)
    a.label("A_WOK")
    cnt_load(a, 250, "s52")
    a("s_lshl_b32 s33, s24, 13")
    a(f"s_add_u32 s33, s33, {OF}")
    a("s_lshl_b32 s36, s49, 15")
    a("s_add_u32 s36, s36, s33")
    a("s_xor_b32 s37, s49, 1")
    a("s_lshl_b32 s37, s37, 15")
    a("s_add_u32 s37, s37, s33")
    a.srd(12, P_OUT, X_BYTES)
    a("v_mul_u32_u24 v9, 14336, v11")
    a("v_lshl_add_u32 v9, v13, 1, v9")
    a("s_mul_i32 s44, s49, 28672")
    a("s_lshl_b32 s33, s50, 6")
    a("s_add_u32 s44, s44, s33")
    for i in range(1, 4):
        a(f"s_add_u32 s{44+i}, s44, {3584*i}")
    a("s_waitcnt vmcnt(0)")
    cnt_wait(a, 250, "s52", 8)
    a.stamp(10)
    AF = O
    tags = {}
    for x in (1, 0):
        for i in range(8):
            tags[(x, i)] = a.vm(f"buffer_load_dwordx4 {vr(AF+8*i+4*x,4)}, v{2 if i<4 else 10}, s[20:23], s{36+x} offen offset:{1024*(i&3)}{SC}")
    BL, BU = 232, O + 48
    late_check(a, 248, 14, 15)
    gl = [f"buffer_load_dwordx4 {vr(BL+4*i,4)}, v3, s[20:23], s39 offen offset:{512*i}{SC}" for i in range(2)]
    gl += [f"buffer_load_dwordx4 {vr(GG+4*i,4)}, v12, s[20:23], s38 offen offset:{16*i}{SC}" for i in range(4)]
    GA = int(os.environ.get("GA", "5"))
    AC = [BB, S, S + 16, P]
    wr = [f"ds_write_b128 v{3+t}, {vr(AC[t]+4*q,4)} offset:{1024*q}" for t in (3, 2) for q in range(4)]
    for sa in (1, 0):
        for i in range(8):
            a.wait_vm(tags[(sa, i)])
            for sb in (1, 0):
                t = 2 * sa + sb
                c = "0" if i == 0 else vr(AC[t], 16)
                a(f"{MF32} {vr(AC[t],16)}, {vr(AF+8*i+4*sa,4)}, {vr(wbuf(i)+4*sb,4)}, {c}")
                if sa == 0 and i >= 4: a(wr.pop(0))
                elif gl and (8 * (1 - sa) + i) >= GA: a.vm(gl.pop(0))
    assert not wr and not gl
    a.nop(9)
    a.stamp(11)
    if "dE" in EXP: a(f"s_sleep {DLY}")
    for q in range(4):
        a(f"ds_write_b128 v4, {vr(AC[1]+4*q,4)} offset:{1024*q}")
    a("s_waitcnt vmcnt(0)")
    for i in range(8):
        a(f"v_lshlrev_b32 v{BU+2*i}, 16, v{BL+i}")
        a(f"v_and_b32 v{BU+2*i+1}, 0xffff0000, v{BL+i}")
    for r in range(0, 16, 2):
        a(f"v_pk_add_f32 {vr(AC[0]+r,2)}, {vr(AC[0]+r,2)}, {vr(BU+r,2)} neg_lo:[0,1] neg_hi:[0,1]")
    a("s_waitcnt lgkmcnt(0)")
    a("s_barrier")
    for s in range(3):
        for q in range(4):
            a(f"ds_read_b128 {vr(AF+16*s+4*q,4)}, v7 offset:{4096*s+1024*q}")
    for s in range(3):
        a(f"s_waitcnt lgkmcnt({8-4*s})")
        for r in range(0, 16, 2):
            a(f"v_pk_add_f32 {vr(AC[0]+r,2)}, {vr(AC[0]+r,2)}, {vr(AF+16*s+r,2)}")
    for r in range(0, 16, 2):
        a(f"v_pk_fma_f32 {vr(AC[0]+r,2)}, {vr(AC[0]+r,2)}, {vr(GG+r,2)}, {vr(BU+r,2)}")
    for r in range(0, 16, 2):
        a(f"v_cvt_pk_bf16_f32 v{AF+r//2}, v{AC[0]+r}, v{AC[0]+r+1}")
    for r in range(16):
        op = "buffer_store_short_d16_hi" if r & 1 else "buffer_store_short"
        a(f"{op} v{AF+r//2}, v9, s[12:15], s{44+(r>>2)} offen offset:{896*(r&3)}{os.environ.get('OST', '')}")
    a.label("A_XIT")
    fin(a, 12)
    if "dblspan" in EXP:
        sel = os.environ.get("SELX")
        if sel:
            a(f"s_cmp_lg_u32 s31, {sel}")
            a("s_cbranch_scc1 L_END")
        a("s_memrealtime s[96:97]")
        a("s_waitcnt lgkmcnt(0)")
        a("s_sub_u32 s98, s101, s100" if os.environ.get("DBLK") else "s_sub_u32 s98, s96, s100")
        a("s_add_u32 s98, s98, s96")
        a.label("DBL")
        a("s_memrealtime s[96:97]")
        a("s_waitcnt lgkmcnt(0)")
        a("s_sub_u32 s99, s96, s98")
        a("s_cmp_lt_i32 s99, 0")
        a("s_cbranch_scc1 DBL")
    a("s_endpgm")
    a.label("A_SLOW")
    a(f"s_mov_b32 s62, {POLLMAX}")
    a.label("A_SLOW1")
    a(f"v_cmp_eq_u32 vcc, s58, v{PV_}")
    a("s_nop 1")
    a("s_and_b32 s5, vcc_lo, s63")
    a("s_cmp_eq_u32 s5, s63")
    a("s_cbranch_scc1 A_SLOW2")
    kv_poll()
    a("s_cmp_lg_u32 s5, 0")
    a("s_cbranch_scc1 A_SLOWR")
    a("s_sub_u32 s62, s62, 1")
    a("s_cbranch_scc1 A_SLOW2")
    a("s_waitcnt vmcnt(0)")
    a("s_branch A_SLOW1")
    a.label("A_SLOW2")
    a("s_or_b32 s5, s63, 128")
    a("s_cmp_lg_u32 s63, 0")
    a("s_cbranch_scc1 A_SLOWR")
    a("v_readlane_b32 s4, v248, 2")
    a("s_nop 1")
    a("s_cmp_lg_u32 s4, 17" if "nosw" in EXP else "s_cmp_lg_u32 s4, 16")
    a("s_cbranch_scc1 A_SLOWR")
    for i in range(4):
        a(f"v_mov_b32 v{T2+12+i}, v{VK0+i}")
    a("s_lshl_b32 s4, s50, 15")
    a(f"v_add_u32 v{VK0}, s4, v2")
    a(f"v_xor_b32 v{VK1}, 32768, v{VK0}")
    a(f"v_mov_b32 v{VV0}, v{VK0}")
    a(f"v_mov_b32 v{VV1}, v{VK1}")
    a("s_lshl_b32 s4, s24, 13")
    a(f"s_add_u32 s6, s4, {WOF + 1024 - 7*16*KTS}")
    a(f"s_add_u32 s7, s4, {WOF + 5120 - 7*16*VTS}")
    a.srd(12, P_WS, 0x400000, "s6")
    a.srd(16, P_WS, 0x400000, "s7")
    a("s_movk_i32 s60, 1024")
    a("s_movk_i32 s61, 1024")
    a("s_branch A_SLOWR")
    a.label("A_LLOAD")
    late_load(a, 248, 14)
    a("s_branch A_LLOADR")
    a.label("A_FALLBACK")
    a("s_mov_b32 s41, -1")
    a("s_cmp_lg_u32 s60, 1024")
    a("s_cbranch_scc1 A_FB0")
    for i in range(4):
        a(f"v_mov_b32 v{VK0+i}, v{T2+12+i}")
    a(f"s_mul_i32 s34, s24, {4*KTS}")
    a(f"s_mul_i32 s37, s24, {4*VTS}")
    a(f"s_add_u32 s37, s37, {VF}")
    a.srd(12, P_WS, 52 * KTS, "s34")
    a.srd(16, P_WS, 52 * VTS, "s37")
    a.label("A_FB0")
    for t in range(4):
        a(f"v_mov_b32 v{MX+t}, 0xff800000")
    a("s_mov_b32 s44, 0")
    a("s_mov_b32 s45, 0")
    a("s_waitcnt vmcnt(0) lgkmcnt(0)")
    a.label("A_FBLOOP")
    for f in range(2):
        a(f"buffer_load_dwordx4 {vr(KB+4*f,4)}, v{VK0+f}, s[12:15], s44 offen{SC}")
    a("s_waitcnt vmcnt(0)")
    patch(KB)
    a("s_nop 1")
    for t in range(4):
        a(f"{MF32} {vr(O+16*t,16)}, {vr(KB,4)}, {vr(Q+8*t,4)}, 0")
        a(f"{MF32} {vr(O+16*t,16)}, {vr(KB+4,4)}, {vr(Q+8*t+4,4)}, {vr(O+16*t,16)}")
    a.nop(16)
    for i in range(8):
        for t in range(4):
            a(f"v_max3_f32 v{MX+t}, v{MX+t}, v{O+16*t+2*i}, v{O+16*t+2*i+1}")
    a(f"s_addk_i32 s44, {KTS}")
    a("s_add_u32 s45, s45, 1")
    a("s_and_b32 s4, s45, 3")
    a("s_cbranch_scc1 A_FBLOOP")
    a(f"s_add_u32 s44, s44, {12*KTS}")
    a("s_cmp_lt_u32 s45, 16")
    a("s_cbranch_scc1 A_FBLOOP")
    for t in range(4):
        a(f"v_mov_b32 v{T2+t}, v{MX+t}")
    a("s_nop 1")
    for t in range(4):
        a(f"v_permlane32_swap_b32 v{T2+t}, v{MX+t}")
    for t in range(4):
        a(f"v_max_f32 v{MX+t}, v{MX+t}, v{T2+t}")
    a("s_mov_b32 s59, 0")
    a("s_mov_b32 s63, 14")
    a("s_movk_i32 s5, 0x8e")
    a(f"v_mov_b32 v{PV_}, s58")
    for r in range(8):
        a(f"v_mov_b32 v{VB+24+r}, 0")
    first_loads()
    zero_acc()
    a("s_waitcnt vmcnt(0)")
    patch(KB)
    a("s_branch A_SETMAX")

def gen_B(a):
    a.label("L_B")
    for i in range(PE, 6):
        a(f"global_load_dword v{RAW+i}, v13, {sr(P_PAR+2*i,2)}")
    a(f"s_setprio {PB}")
    if "bst" in EXP:
        a("s_memtime s[100:101]")
    else: a.stamp(1)
    if "noB1" in EXP: a("s_endpgm")
    if "dB" in EXP:
        a("s_waitcnt vmcnt(0)")
        for _ in range(int(os.environ.get("DN", "1"))): a(f"s_sleep {DLY}")
    TS = 272; TW = 64 * TS
    UB = 4 * TW
    US = 4608
    SEL, ACT, INY, WY, KACC, WX = 16, 48, 112, 144, 176, 192
    Z8, Z1, Z256, TM = 236, 238, 242, 2
    FR, CT, UL = 48, 112, 192
    a(f"s_mul_i32 s29, s24, {TW}")
    a("s_mov_b32 m0, s29")
    a("v_mov_b32 v15, 0x3f80")
    a(f"ds_write_addtid_b32 v15 offset:{32*TS}")
    a("v_and_b32 v12, 1, v1")
    a("v_lshlrev_b32 v12, 4, v12")
    a("v_lshlrev_b32 v12, v12, v15" if False else "v_mov_b32 v15, 0x3f80")
    a("v_lshlrev_b32 v12, v12, v15")
    a("s_mov_b64 s[4:5], 3")
    for i in range(32):
        a(f"v_cndmask_b32 v{SEL+i}, 0, v12, s[4:5]")
        if i < 31: a("s_lshl_b64 s[4:5], s[4:5], 2")
    a("v_lshrrev_b32 v13, 5, v1")
    for r in range(4):
        a(f"v_mov_b32 v{KACC+r}, 0")
    a(f"v_mul_u32_u24 v12, {US-512}, v13")
    a("v_add_u32 v12, v12, v2")
    a(f"v_add_u32 v12, {UB}, v12")
    a(f"ds_write_b128 v12, {vr(KACC,4)}")
    a("s_lshl_b32 s42, s24, 3")
    a("s_add_u32 s42, s42, s31")
    a("s_lshl_b32 s42, s42, 7")
    a(f"s_add_u32 s42, s42, {F_XT}")
    a("v_lshrrev_b32 v12, 1, v1")
    a("v_and_b32 v13, 1, v1")
    a(f"v_mul_u32_u24 v3, {XTS}, v12")
    a("v_lshl_add_u32 v3, v13, 4, v3")
    a(f"s_mul_i32 s43, s24, {64*XTS}")
    a("s_mul_i32 s33, s31, 896")
    a("s_add_u32 s43, s43, s33")
    a("s_lshl_b32 s33, s39, 4")
    a("s_add_u32 s43, s43, s33")
    a(f"s_add_u32 s43, s43, {XT}")
    a(f"s_add_u32 s44, s43, {32*XTS}")
    a(f"v_mul_u32_u24 v241, {US}, v13")
    a("v_lshl_add_u32 v241, v12, 4, v241")
    a("s_lshl_b32 s33, s24, 10")
    a(f"s_add_u32 s33, s33, {UB + 512}")
    a("v_add_u32 v241, s33, v241")
    if "bst" in EXP:
        a("s_memtime s[96:97]")
    a("s_waitcnt lgkmcnt(0)")
    if "bst" in EXP:
        a("v_writelane_b32 v254, s96, 26")
        a.stamp(14)
    a("s_and_b32 s33, s26, 1")
    a("s_lshl_b32 s33, s33, 4")
    a("s_lshr_b32 s28, s28, s33")
    a("s_lshl_b32 s28, s28, 16")
    a("s_lshr_b32 s38, s38, s33")
    a("s_lshl_b32 s38, s38, 16")
    hi = float(np.float32(LOG2E)); lo = float(np.float32(LOG2E - hi))
    a(f"v_mov_b32 v13, {hex(f2u(hi))}")
    a("v_mul_f32 v14, s28, v13")
    a("v_fma_f32 v13, s28, v13, -v14")
    a(f"v_mov_b32 v15, {hex(f2u(lo))}")
    a("v_fmac_f32 v13, s28, v15")
    a("v_exp_f32 v14, v14")
    a(f"v_mul_f32 v13, {hex(f2u(math.log(2)))}, v13")
    a("v_fmac_f32 v14, v14, v13")
    a("v_cvt_pk_bf16_f32 v14, v14, v14")
    a("v_and_b32 v14, 0xffff0000, v14")
    a(f"s_mov_b32 s48, {hex(f2u(LOG2E))}")
    a(f"s_mov_b32 s49, {hex(f2u(1/(2*math.pi)))}")
    a("s_mov_b32 s47, 0x07060302")
    a("s_brev_b32 s46, 1")
    a("s_cmp_ge_u32 s2, 2")
    a("s_cbranch_scc1 B_NORDY")
    a("v_mov_b32 v4, 1")
    a("s_setprio 3")
    a("s_waitcnt vmcnt(6)")
    a("s_mov_b64 exec, 1")
    a(f"global_atomic_add v{VZ}, v4, {sr(P_DBG,2)} sc1")
    a("s_mov_b64 exec, -1")
    a(f"s_setprio {PB}")
    a.label("B_NORDY")
    if "bst" in EXP:
        a("v_writelane_b32 v254, s100, 2")
        a.stamp(15)
    if "noB2" in EXP: a("s_endpgm")
    a("s_waitcnt vmcnt(4)")
    a.stamp(2)
    r1 = [0, 0, 2, 4, 4, 4, 6, 8, 8]
    P_ = {}
    for r in range(9): P_[(0, r)] = r; P_[(1, r)] = 256 + r1[r]
    for i, e in enumerate((0, 4, 8)): P_[(0, 9 + i)] = 512 + e; P_[(1, 9 + i)] = 768 + e
    for i, e in enumerate((0, 8)):
        P_[(0, 12 + i)] = 1024 + e; P_[(1, 12 + i)] = 1280 + e; P_[(0, 14 + i)] = 1536 + e; P_[(1, 14 + i)] = 1792 + e
    EX = [None] * 32
    for (h, r), p in P_.items(): EX[8 * (r >> 2) + 4 * h + (r & 3)] = ("X", p)
    EY = [("Y", j) for j in range(32)]
    yops = [(("Y", 2), ("Y", 1), ("Y", 1)), (("Y", 3), ("Y", 2), ("Y", 1)), (("Y", 4), ("Y", 2), ("Y", 2))]
    yops += [(("Y", 4 + k), ("Y", 4), ("Y", k)) for k in (4, 1, 2, 3)]
    yops += [(("Y", 8 + k), ("Y", 8), ("Y", k)) for k in (8, 1, 2, 3, 4, 5, 6, 7)]
    yops += [(("Y", 16 + k), ("Y", 16), ("Y", k)) for k in range(1, 16)]
    xops = [(("X", 8), ("X", 0), ("Y", 1))]
    xops += [(("X", e + 1), ("X", e), ("Z", 1)) for e in range(7)]
    for base, es in ((256, (0, 8, 4, 2, 6)), (512, (0, 8, 4)), (768, (0, 8, 4)), (1024, (0, 8)), (1280, (0, 8)), (1536, (0, 8)), (1792, (0, 8))):
        xops += [(("X", base + e), ("X", base - 256 + e), ("Z", 256)) for e in es]
    def pass0():
        YB, XB = 48, 112
        plist = sorted(set(P_.values()))
        xreg = {p: XB + 2 * i for i, p in enumerate(plist)}
        row_of = {p: min(8 * (r >> 2) + 4 * h + (r & 3) for (h, r), pp in P_.items() if pp == p) for p in plist}
        yreg = {j: YB + 2 * j for j in range(1, 32)}
        def reg(n): return {"Y": yreg, "X": xreg, "Z": {1: Z1, 256: Z256}}[n[0]][n[1]]
        allops = xops + yops
        memo = {}
        def height(n):
            if n not in memo:
                memo[n] = max([0] + [1 + height(d) for (d, x, y) in allops if n in (x, y)])
            return memo[n]
        WB = int(os.environ.get("WB", "16")); XAT = int(os.environ.get("XAT", "6"))
        ring = list(range(WX, WX + 32))
        wq = []; ct = [0]
        def emit_write(n):
            t = ring[ct[0] % len(ring)]; ct[0] += 1
            r = reg(n)
            if n[0] == "Y":
                a(f"v_cvt_pk_bf16_f32 v{t}, v{r}, v{r+1}")
                wq.append(f"ds_write_addtid_b32 v{t} offset:{(32+n[1])*TS}")
            else:
                a(f"v_cvt_pk_bf16_f32 v{t}, v{r}, -v{r+1}")
                wq.append(f"ds_write_addtid_b32 v{t} offset:{row_of[n[1]]*TS}")
            if len(wq) >= WB:
                for ins in wq: a(ins)
                wq.clear()
        for i in range(2): a(f"v_lshlrev_b32 v{8+i}, 16, v{RAW+i}")
        a("v_pk_mul_f32 v[8:9], v[8:9], v[14:15] op_sel_hi:[1,0]")
        a("v_pk_mul_f32 v[8:9], v[8:9], s[48:49]")
        a(f"v_mul_f32 v{TM+2}, 0x41000000, v8")
        a(f"v_mul_f32 v{TM+3}, 0x41000000, v9")
        a(f"v_mul_f32 v{TM+4}, 0x43800000, v8")
        a(f"v_mul_f32 v{TM+5}, 0x43800000, v9")
        anch = [(TM + 2, yreg[1]), (8, Z1), (TM + 4, Z256)]
        for s_, d_ in anch:
            a(f"v_fract_f32 v{s_+1}, v{s_+1}")
            a(f"v_exp_f32 v{s_}, v{s_}")
        for s_, d_ in anch:
            a(f"v_cos_f32 v{d_}, v{s_+1}")
            a(f"v_sin_f32 v{d_+1}, v{s_+1}")
        a("s_nop 0")
        for s_, d_ in anch:
            a(f"v_pk_mul_f32 {vr(d_,2)}, {vr(d_,2)}, {vr(s_,2)} op_sel_hi:[1,0]")
        done = {("Y", 1), ("Z", 1), ("Z", 256)}
        towrite = [("Y", 1)]
        pending = sorted(allops, key=lambda o: -height(o[0]))
        nb = 0
        while pending:
            batch = [o for o in pending if o[1] in done and o[2] in done][:4]
            for o in batch: pending.remove(o)
            for (d, x, y) in batch: cmul(a, reg(d), reg(x), reg(y), 0)
            w = towrite; towrite = []
            for n in w[:2]: emit_write(n)
            for (d, x, y) in batch: cmul(a, reg(d), reg(x), reg(y), 1)
            for n in w[2:]: emit_write(n)
            for (d, x, y) in batch:
                done.add(d); towrite.append(d)
            nb += 1
            if nb == XAT:
                a("s_waitcnt vmcnt(0)")
                for i in range(2, 6): a(f"v_lshlrev_b32 v{8+i}, 16, v{RAW+i}")
                cmul(a, xreg[0], 12, 10, 0)
                cmul(a, xreg[0], 12, 10, 1)
                a(f"v_pk_mul_f32 {vr(xreg[0],2)}, {vr(xreg[0],2)}, v[14:15] op_sel_hi:[1,0]")
                done.add(("X", 0)); towrite.append(("X", 0))
        for n in towrite: emit_write(n)
        for ins in wq: a(ins)
    pass0()
    PB1_ = int(os.environ.get("PBY", str(PB))); PB2 = int(os.environ.get("PB2", "1"))
    a(f"s_setprio {PB1_}")
    a.stamp(8)
    a("s_mov_b32 s45, 0")
    def u_loads():
        for i in range(2):
            a(f"buffer_load_dwordx4 {vr(UL+4*i,4)}, v3, s[20:23], s{43+i} offen{SC}")
    def try_u(tag_, prio):
        a("s_cmp_eq_u32 s45, 64")
        a(f"s_cbranch_scc1 TU2{tag_}")
        a("s_setprio 3")
        a("s_waitcnt vmcnt(0)")
        a("v_readfirstlane_b32 s45, v250")
        a("s_nop 1")
        a("s_cmp_lg_u32 s45, 64")
        a(f"s_cbranch_scc1 TU0{tag_}")
        u_loads()
        a(f"s_branch TU1{tag_}")
        a.label(f"TU0{tag_}")
        cnt_load(a, 250, "s42")
        a.label(f"TU1{tag_}")
        a(f"s_setprio {prio}")
        a.label(f"TU2{tag_}")
    loc = {("Y", 1): Z8, ("Z", 1): Z1, ("Z", 256): Z256}
    for j in range(2, 17): loc[("Y", j)] = WY + 2 * (j - 1)
    free = list(range(WX, WX + 44, 2))
    mq = []
    since = [99]
    MG = int(os.environ.get("MG", "6"))
    def v(ins):
        a(ins); since[0] += 1
        if mq and since[0] >= MG and mq[0][1] <= cnt[0] - 2:
            a(mq.pop(0)[0]); since[0] = 0; cnt[0] += 1; lastm[0] = cnt[0]
        cnt[0] += 1
    cnt = [0]; lastm = [0]
    class V:
        def __call__(self, x): v(x)
    va = V()
    NEG = {("Y", 1): 240, ("Y", 2): 251, ("Y", 4): 252, ("Y", 8): 253, ("Y", 16): WY, ("Z", 1): WY + 1, ("Z", 256): 15}
    NEG[("Z", 1)] = 251
    def smul(d, x, y, phase):
        if y not in NEG: x, y = y, x
        D, X_, Y_ = loc[d], loc[x], loc[y]
        if phase == 0:
            v(f"v_mul_f32 v{D}, v{X_}, v{Y_}")
            v(f"v_mul_f32 v{D+1}, v{X_}, v{Y_+1}")
        else:
            v(f"v_fmac_f32 v{D}, v{X_+1}, v{NEG[y]}")
            v(f"v_fmac_f32 v{D+1}, v{X_+1}, v{Y_}")
            if d in NEG: v(f"v_xor_b32 v{NEG[d]}, s46, v{D+1}")
    def table(ops, E, IN, neg, done, pre=None):
        uses = {}
        for (d, x, y) in ops:
            for n in (x, y): uses[n] = uses.get(n, 0) + 1
        for n in E: uses[n] = uses.get(n, 0) + 1
        def release(n):
            uses[n] -= 1
            if uses[n] == 0 and n in loc and WX <= loc[n] < WX + 44: free.append(loc[n])
        memo = {}
        def height(n):
            if n not in memo:
                memo[n] = max([0] + [1 + height(d) for (d, x, y) in ops if n in (x, y)])
            return memo[n]
        first = {n: i for i, n in reversed(list(enumerate(E)))}
        pending = sorted(ops, key=lambda o: (-height(o[0]), first.get(o[0], 99)))
        pairs = list(range(16)); gdone = [0] * 4; gseq = [0]
        def cvts(avail):
            for q in list(pairs):
                n0, n1 = E[2 * q], E[2 * q + 1]
                if n0 in avail and n1 in avail:
                    pairs.remove(q)
                    for part in range(2):
                        sg = "-" if (neg and part) else ""
                        s0 = (("1.0", "0")[part]) if n0 == ("Y", 0) else f"{sg}v{loc[n0]+part}"
                        v(f"v_cvt_pk_bf16_f32 v{IN+16*part+q}, {s0}, {sg}v{loc[n1]+part}")
                    release(n0); release(n1)
                    g = q >> 2; gdone[g] += 1
                    if gdone[g] == 4:
                        for hs in range(2):
                            for part in range(2):
                                acc = vr(ACT + 32 * hs + 16 * part, 16)
                                mq.append((f"{MF32} {acc}, {vr(IN+16*part+4*g,4)}, {vr(SEL+16*hs+4*g,4)}, {'0' if gseq[0] == 0 else acc}", cnt[0]))
                        gseq[0] += 1
        nb = 0
        while pending:
            batch = [o for o in pending if o[1] in done and o[2] in done][:4]
            for o in batch:
                pending.remove(o)
                if o[0] not in loc: loc[o[0]] = free.pop(0)
            for (d, x, y) in batch: smul(d, y, x, 0) if x in NEG else smul(d, x, y, 0)
            for (d, x, y) in batch: smul(d, y, x, 1) if x in NEG else smul(d, x, y, 1)
            for (d, x, y) in batch: release(x); release(y)
            if pre and pre(nb): pre = None
            if pre is None: cvts(set(done))
            for (d, x, y) in batch: done.add(d)
            nb += 1
        assert pre is None
        cvts(done)
        assert not pairs
    def packs(OUT, hs):
        for r in range(16):
            v(f"v_perm_b32 v{OUT+16*hs+r}, v{ACT+32*hs+16+r}, v{ACT+32*hs+r}, s47")
    def drain():
        while mq:
            if mq[0][1] > cnt[0] - 2: a("s_nop 1"); cnt[0] += 2
            a(mq.pop(0)[0]); cnt[0] += 1; lastm[0] = cnt[0]
    for i in range(2): v(f"v_and_b32 v{8+i}, 0xffff0000, v{RAW+i}")
    v("v_mul_f32 v8, v8, v14"); v("v_mul_f32 v9, v9, v14")
    v("v_mul_f32 v8, s48, v8"); v("v_mul_f32 v9, s49, v9")
    v(f"v_mul_f32 v{TM+2}, 0x41000000, v8")
    v(f"v_mul_f32 v{TM+3}, 0x41000000, v9")
    v(f"v_mul_f32 v{TM+4}, 0x43800000, v8")
    v(f"v_mul_f32 v{TM+5}, 0x43800000, v9")
    anchors = [(TM + 2, Z8), (8, Z1), (TM + 4, Z256)]
    for s_, d_ in anchors:
        v(f"v_fract_f32 v{s_+1}, v{s_+1}")
        v(f"v_exp_f32 v{s_}, v{s_}")
    for s_, d_ in anchors:
        v(f"v_cos_f32 v{d_}, v{s_+1}")
        v(f"v_sin_f32 v{d_+1}, v{s_+1}")
    a("s_nop 0")
    for s_, d_ in anchors:
        v(f"v_mul_f32 v{d_}, v{d_}, v{s_}")
        v(f"v_mul_f32 v{d_+1}, v{d_+1}, v{s_}")
    v(f"v_xor_b32 v{NEG[('Y',1)]}, s46, v{Z8+1}")
    v(f"v_xor_b32 v{NEG[('Z',256)]}, s46, v{Z256+1}")
    table(yops, EY, INY, False, {("Y", 0), ("Y", 1)})
    a("s_setprio 3")
    nonce_issue(a, 250, True)
    a(f"s_setprio {PB2}")
    for i in range(2, 6): v(f"v_and_b32 v{8+i}, 0xffff0000, v{RAW+i}")
    loc[("X", 0)] = free.pop(0)
    X0 = loc[("X", 0)]
    v(f"v_xor_b32 v{NEG[('Z',1)]}, s46, v{Z1+1}")
    v("v_mul_f32 v10, v10, v14"); v("v_mul_f32 v11, v11, v14")
    v(f"v_mul_f32 v{X0}, v12, v10"); v(f"v_mul_f32 v{X0+1}, v12, v11")
    v(f"v_fma_f32 v{X0}, -v13, v11, v{X0}"); v(f"v_fmac_f32 v{X0+1}, v13, v10")
    def ypack(nb):
        if mq or cnt[0] - lastm[0] < 13: return False
        packs(INY, 0); packs(INY, 1)
        return True
    table(xops, EX, WY, True, {("X", 0), ("Y", 1), ("Z", 1), ("Z", 256)}, ypack)
    drain()
    a("v_and_b32 v4, 31, v1")
    a(f"v_mul_u32_u24 v4, {TS}, v4")
    a("v_lshrrev_b32 v5, 5, v1")
    a("v_lshl_add_u32 v4, v5, 4, v4")
    a("v_add_u32 v4, s29, v4")
    a("v_mov_b32 v5, v4")
    for (m, src) in ((5, 4), (12, 7), (13, 7), (20, 15)):
        a(f"s_add_u32 s33, s29, {src*TS}")
        a(f"v_writelane_b32 v5, s33, {m}")
        a("s_add_u32 s33, s33, 16")
        a(f"v_writelane_b32 v5, s33, {m+32}")
    F0 = [SEL + 8 * i for i in range(4)] + [WX + 8 + 8 * i for i in range(4)]
    for ks in range(8):
        a(f"ds_read_b128 {vr(F0[ks],4)}, v5 offset:{32*ks}")
        a(f"ds_read_b128 {vr(F0[ks]+4,4)}, v4 offset:{32*TS+32*ks}")
    a("s_setprio 3")
    a("s_waitcnt vmcnt(0)")
    nonce_take(a, 250, True)
    cnt_load(a, 250, "s42")
    a(f"s_setprio {PB2}")
    MG = 4
    packs(WY, 0)
    for ks in range(4):
        mq.append((f"{MF32} {vr(KACC,16)}, {vr(WY+4*ks,4)}, {vr(INY+4*ks,4)}, {vr(KACC,16) if ks else '0'}", cnt[0]))
    packs(WY, 1)
    drain()
    a("s_waitcnt lgkmcnt(0)")
    for ks in range(8):
        a(f"{MF32} {vr(KACC,16)}, {vr(F0[ks],4)}, {vr(F0[ks]+4,4)}, {vr(KACC,16)}")
    for ks in range(4, 8):
        a(f"{MF32} {vr(KACC,16)}, {vr(WY+4*ks,4)}, {vr(INY+4*ks,4)}, {vr(KACC,16)}")
    a(f"s_setprio {PC}")
    a.stamp(3)
    if "noconv" in EXP: a("s_endpgm")
    a("v_add_u32 v242, s29, v2")
    a("s_xor_b32 s33, s24, 1")
    a(f"s_mul_i32 s33, s33, {TW}")
    a("v_add_u32 v243, s33, v2")
    a("s_and_b32 s33, s24, 2")
    a(f"s_mul_i32 s48, s33, {TW}")
    a("s_add_u32 s48, s48, 4096")
    a("s_mul_i32 s33, s27, 4160")
    a("s_add_u32 s49, s33, s48")
    a("v_sub_u32 v6, 63, v1")
    a("v_lshlrev_b32 v6, 4, v6")
    a("v_add_u32 v6, s49, v6")
    a("v_and_b32 v7, 1, v1")
    a("v_cmp_eq_u32 vcc, 1, v7")
    for q in range(4):
        a(f"ds_write_b128 v242, {vr(KACC+4*q,4)} offset:{1024*q}")
    a("v_lshrrev_b32 v4, 4, v1")
    a("v_and_b32 v5, 15, v1")
    a("v_add_u32 v7, 1, v5")
    a("v_lshrrev_b32 v7, 1, v7")
    a("v_lshlrev_b32 v8, 2, v4")
    a("v_sub_u32 v8, v8, v7")
    a("v_and_b32 v7, 1, v5")
    a("v_mul_u32_u24 v7, 1040, v7")
    a("v_sub_u32 v8, v8, v7")
    a(f"v_add_u32 v8, {1016 + 1040 - 48 - 128}, v8")
    a("v_lshlrev_b32 v8, 2, v8")
    a("s_lshl_b32 s33, s27, 8")
    a("s_sub_u32 s33, s48, s33")
    a("v_add_u32 v8, s33, v8")
    for i in range(1, 4):
        a(f"v_subrev_u32 v{8+i}, {1024*i}, v8")
    if os.environ.get("TUB"): try_u("b", PC)
    a("s_waitcnt lgkmcnt(0)")
    a.stamp(10)
    a("s_barrier")
    a.stamp(11)

    for q in range(4):
        a(f"ds_read_b128 {vr(FR+4*q,4)}, v243 offset:{1024*q}")
    try_u("c", PC)
    a("s_lshr_b32 s33, s24, 1")
    a(f"s_mul_i32 s36, s33, {US}")
    a(f"s_add_u32 s36, s36, {UB + 512}")
    a("v_lshlrev_b32 v12, 5, v5")
    a("v_lshl_add_u32 v13, v4, 3, v12")
    a("v_lshl_add_u32 v12, v4, 4, v12")
    a("s_lshl_b32 s33, s27, 8")
    a("s_sub_u32 s33, s36, s33")
    a(f"s_sub_u32 s33, s33, {32 + 192}")
    a("v_add_u32 v12, s33, v12")
    a("s_lshl_b32 s33, s27, 11")
    a("s_add_u32 s33, s33, s36")
    a("v_add_u32 v13, s33, v13")
    a("s_lshl_b32 s40, s26, 1")
    a("s_add_u32 s40, s40, s27")
    a("s_lshl_b32 s41, s40, 11")
    a(f"s_add_u32 s41, s41, {BT}")
    a("s_lshr_b32 s40, s26, 5")
    a("s_lshl_b32 s40, s40, 7")
    a(f"s_add_u32 s40, s40, {F_B}")
    a("s_waitcnt lgkmcnt(0)")
    for r in range(16):
        a(f"v_add_f32 v{KACC+r}, v{KACC+r}, v{FR+r}")
    K_ = KACC; W_ = FR + 16
    a(f"v_cndmask_b32 v{CT}, v{K_+12}, v{K_+13}, vcc")
    a(f"v_cndmask_b32 v{CT+1}, v{K_+14}, v{K_+15}, vcc")
    for i in range(4):
        a(f"v_mov_b32 v{W_+16+i}, 0")
    def pk(d, lo_, hi_): a(f"v_cvt_pk_bf16_f32 v{d}, v{lo_}, v{hi_}")
    a("s_cmp_eq_u32 s27, 1")
    a("s_cbranch_scc1 B_ODD")
    A_, B_, C_ = K_ + 9, K_ + 10, K_ + 11
    for i in range(4): pk(W_ + i, K_ + 7 - 2 * i, K_ + 6 - 2 * i)
    for i, (x, y) in enumerate(((C_, C_), (B_, B_), (B_, A_), (A_, A_))): pk(W_ + 4 + i, x, y)
    for sl in range(2):
        A2, C2, M2 = K_ + 12 + 2 * sl, K_ + 13 + 2 * sl, CT + sl
        for i, (x, y) in enumerate(((C2, C2), (C2, M2), (A2, A2), (A2, A2))): pk(W_ + 8 + 4 * sl + i, x, y)
    a("s_branch B_IMG")
    a.label("B_ODD")
    for i in range(4): pk(W_ + i, K_ + 8 - 2 * i, K_ + 7 - 2 * i)
    for i, (x, y) in enumerate(((C_, C_), (C_, B_), (B_, B_), (A_, A_))): pk(W_ + 4 + i, x, y)
    for sl in range(2):
        A2, C2, M2 = K_ + 12 + 2 * sl, K_ + 13 + 2 * sl, CT + sl
        for i, (x, y) in enumerate(((C2, C2), (C2, C2), (M2, A2), (A2, A2))): pk(W_ + 8 + 4 * sl + i, x, y)
    a("s_mov_b64 exec, 1")
    pk(W_ + 16, K_, VZ)
    a("s_mov_b64 exec, -1")
    a.label("B_IMG")
    for sl in range(4):
        a(f"ds_write_b128 v6, {vr(W_+4*sl,4)} offset:{(3-sl)*1024}")
    a("v_add_u32 v7, s49, v2")
    a("s_mov_b64 exec, 3")
    a(f"ds_write_b128 v7, {vr(W_+16,4)} offset:4096")
    a("s_mov_b64 exec, -1")
    a("s_cmp_eq_u32 s45, 64")
    a("s_cbranch_scc1 B_UOK")
    a("s_waitcnt vmcnt(0)")
    cnt_wait(a, 250, "s42", 64, 4)
    u_loads()
    a.label("B_UOK")
    a.stamp(7)
    a("s_waitcnt vmcnt(0)")
    for i in range(2):
        a(f"ds_write_b128 v241, {vr(UL+4*i,4)} offset:{512*i}")
    a("s_waitcnt lgkmcnt(0)")
    a("s_barrier")
    a.stamp(4)
    a(f"s_setprio {os.environ.get('PV', '0')}")
    FB, CAC = 16, 144
    a.nds = 0
    tg = {}
    def loadstep(stp):
        b = FB + 64 * (stp & 1)
        for i in range(8):
            o = 128 * (1 - (i & 1)) + 16 * (3 - stp)
            a.ds(f"ds_read2_b32 {vr(b+4*i,2)}, v{8+(i>>1)} offset0:{o} offset1:{o+1}")
            a.ds(f"ds_read2_b32 {vr(b+4*i+2,2)}, v{8+(i>>1)} offset0:{o+2} offset1:{o+3}")
            tg[(stp, i)] = a.ds(f"ds_read_b128 {vr(b+32+4*i,4)}, v12 offset:{512*i+64*(3-stp)}")
    loadstep(0)
    for stp in range(4):
        b = FB + 64 * (stp & 1)
        order = sorted([(i, tp) for i in range(8) for tp in range(8 - i)], key=lambda x: (max(x), x[0] + x[1]))
        nxt = []
        if stp < 3:
            b2 = FB + 64 * ((stp + 1) & 1)
            for i in range(8):
                o = 128 * (1 - (i & 1)) + 16 * (3 - stp - 1)
                nxt.append((None, f"ds_read2_b32 {vr(b2+4*i,2)}, v{8+(i>>1)} offset0:{o} offset1:{o+1}"))
                nxt.append((None, f"ds_read2_b32 {vr(b2+4*i+2,2)}, v{8+(i>>1)} offset0:{o+2} offset1:{o+3}"))
                nxt.append(((stp + 1, i), f"ds_read_b128 {vr(b2+32+4*i,4)}, v12 offset:{512*i+64*(3-stp-1)}"))
        waited = -1
        seen = set()
        for k, (i, tp) in enumerate(order):
            if max(i, tp) > waited:
                waited = max(i, tp)
                a.wait_ds(tg[(stp, waited)])
            t = i + tp
            c = vr(CAC + 4 * t, 4)
            if stp == 0 and t not in seen:
                c = "0"; seen.add(t)
            a(f"{MF16} {vr(CAC+4*t,4)}, {vr(b+4*i,4)}, {vr(b+32+4*tp,4)}, {c}")
            if k >= 8 and nxt:
                key, ins = nxt.pop(0)
                r = a.ds(ins)
                if key: tg[key] = r
        assert not nxt
    a.stamp(5)
    a(f"s_setprio {os.environ.get('PT', '2')}")
    RR = 16
    for tl in range(4):
        a(f"ds_read_b64 {vr(80+2*tl,2)}, v13 offset:{512*tl}")
    a("s_cmp_eq_u32 s27, 1")
    a.nop(3)
    a("s_cbranch_scc1 B_R1")
    for par in range(2):
        if par: a.label("B_R1")
        for q in range(4):
            a(f"ds_write_b128 v242, {vr(CAC+16*(1-par)+4*q,4)} offset:{1024*q}")
        a("s_waitcnt lgkmcnt(0)")
        a("s_barrier")
        for q in range(4):
            a(f"ds_read_b128 {vr(RR+4*q,4)}, v243 offset:{1024*q}")
        a("s_waitcnt lgkmcnt(0)")
        for r in range(16):
            a(f"v_add_f32 v{RR+r}, v{RR+r}, v{CAC+16*par+r}")
        if not par: a("s_branch B_R2")
    a.label("B_R2")
    for t in range(4):
        for i in range(2):
            a(f"v_lshlrev_b32 v{88+2*i}, 16, v{80+2*t+i}")
            a(f"v_and_b32 v{88+2*i+1}, 0xffff0000, v{80+2*t+i}")
        for r in range(4):
            a(f"v_fmac_f32 v{RR+4*t+r}, s38, v{88+r}")
        for i in range(2):
            a(f"v_cvt_pk_bf16_f32 v{80+2*t+i}, v{RR+4*t+2*i}, v{RR+4*t+2*i+1}")
    a("s_nop 1")
    for p in range(2):
        for i in range(2):
            a(f"v_permlane16_swap_b32 v{80+4*p+i}, v{80+4*p+2+i}")
    for p in range(2):
        a(f"buffer_store_dwordx4 {vr(80+4*p,4)}, v2, s[20:23], s41 offen offset:{1024*p}{SC}")
    a("s_waitcnt vmcnt(0)")
    cnt_add(a, 4, "s40")
    fin(a, 6)
    a("s_endpgm")

def gen_C(a):
    a.label("L_C")
    if "dC" in EXP:
        for _ in range(int(os.environ.get("DN", "1"))): a(f"s_sleep {DLY}")
    a("s_setprio 0")
    R, U, GU, GW = 16, 80, 144, 160
    a("s_sub_u32 s25, s2, 224")
    a("s_lshl_b32 s26, s31, 2")
    a("s_sub_u32 s33, s32, 28")
    a("s_add_u32 s26, s26, s33")
    a("s_lshl_b32 s26, s26, 2")
    a("s_add_u32 s26, s26, s24")
    a("s_mul_i32 s36, s26, 14336")
    for i in range(1, 4):
        a(f"s_add_u32 s{36+i}, s36, {3584*i}")
    a("s_add_u32 s45, s25, s24")
    a("s_waitcnt lgkmcnt(0)")
    a.srd(20, P_WS, WS_SIZE)
    a.srd(12, P_X, X_BYTES)
    for r in range(16):
        a(f"buffer_load_dwordx4 {vr(R+4*r,4)}, v2, s[12:15], s{36+(r>>2)} offen offset:{896*(r&3)}")
    a.srd(16, P_GW, 896)
    a(f"buffer_load_dwordx4 {vr(GW,4)}, v2, s[16:19], 0 offen")
    for r in range(16):
        a(f"v_mov_b32 v{GU+r}, 0")
    a("s_mov_b32 exec_hi, 0xffffff")
    a("s_waitcnt vmcnt(0)")
    a.stamp(1)
    for i in range(4):
        for r in range(16):
            a(f"v_dot2c_f32_bf16 v{GU+r}, v{R+4*r+i}, v{GW+i}")
    a("s_mov_b64 exec, -1")
    a.stamp(2)
    a("s_min_u32 s45, s25, 15")
    a("s_mul_i32 s33, s45, 25088")
    a("s_mul_i32 s34, s24, 7168")
    a("s_add_u32 s33, s33, s34")
    a("v_add_u32 v3, 4096, v2")
    a.srd(12, P_WO, 448 * 896)
    a("s_mov_b32 m0, s34")
    a("s_nop 0")
    for i in range(4):
        a(f"buffer_load_dwordx4 v2, s[12:15], s33 offen offset:{1024*i} lds")
    a("s_add_u32 m0, s34, 4096")
    a("s_nop 0")
    for i in range(3):
        a(f"buffer_load_dwordx4 v3, s[12:15], s33 offen offset:{1024*i} lds")
    for sh in ("row_shr:1", "row_shr:2", "row_shr:4", "row_shr:8"):
        for r in range(16):
            a(f"v_add_f32_dpp v{GU+r}, v{GU+r}, v{GU+r} {sh} row_mask:0xf bank_mask:0xf bound_ctrl:0")
    for r in range(16):
        a(f"v_add_f32_dpp v{GU+r}, v{GU+r}, v{GU+r} row_bcast:15 row_mask:0xa bank_mask:0xf")
    for r in range(16):
        a(f"v_add_f32_dpp v{GU+r}, v{GU+r}, v{GU+r} row_bcast:31 row_mask:0xc bank_mask:0xf")
    for op in (f"v_mul_f32 vX, {hex(f2u(-LOG2E))}, vX", "v_exp_f32 vX, vX", "v_add_f32 vX, 1.0, vX", "v_rcp_f32 vX, vX"):
        for r in range(16):
            a(op.replace("vX", f"v{GU+r}"))
    a("s_lshl_b32 s35, s26, 6")
    a(f"s_add_u32 s35, s35, {GO}")
    a("s_lshr_b32 s37, s26, 1")
    a("s_lshl_b32 s37, s37, 7")
    a(f"s_add_u32 s37, s37, {F_G}")
    a("s_mov_b32 exec_lo, 0")
    a("s_mov_b32 exec_hi, 0x80000000")
    for i in range(4):
        a(f"buffer_store_dwordx4 {vr(GU+4*i,4)}, v{VZ}, s[20:23], s35 offen offset:{16*i}{SC}")
    a("s_mov_b64 exec, -1")
    nonce_issue(a, 250, True)
    a("v_lshrrev_b32 v15, 5, v1")
    a("v_bfe_u32 v13, v1, 2, 2")
    a("v_lshl_add_u32 v13, v15, 2, v13")
    a("v_mul_u32_u24 v13, 896, v13")
    a("v_bfe_u32 v14, v1, 4, 1")
    a("v_lshl_add_u32 v13, v14, 5, v13")
    a("v_and_b32 v14, 3, v1")
    a("v_lshl_add_u32 v12, v14, 3, v13")
    a("s_lshr_b32 s49, s24, 1")
    a("s_mul_i32 s36, s49, 14336")
    a("s_mul_i32 s38, s27, 448")
    a("s_add_u32 s36, s36, s38")
    a("v_add_u32 v12, s36, v12")
    a(f"s_mul_i32 s38, s27, {7*32768}")
    a("s_lshl_b32 s39, s45, 1")
    a("s_add_u32 s39, s39, s49")
    a("s_lshl_b32 s39, s39, 10")
    a("s_add_u32 s38, s38, s39")
    a(f"s_add_u32 s38, s38, {WOF}")
    a("s_lshr_b32 s40, s25, 2")
    a("s_lshl_b32 s40, s40, 7")
    a(f"s_add_u32 s40, s40, {F_WO}")
    a("s_waitcnt vmcnt(0)")
    nonce_take(a, 250, True)
    cnt_add(a, 4, "s37")
    a("s_cmp_ge_u32 s25, 16")
    a("s_cbranch_scc1 C_END")
    a("s_barrier")
    for i in range(7):
        for hr in range(2):
            a(f"ds_read_b64_tr_b16 {vr(16+4*i+2*hr,2)}, v12 offset:{64*i+8*hr*896}")
    a("s_waitcnt lgkmcnt(0)")
    a("s_cmp_eq_u32 s49, 0")
    a("s_cbranch_scc1 C_WO2")
    a("s_mov_b32 exec_lo, 0")
    for i in range(7):
        a(f"v_mov_b32 v{16+4*i+2}, 0")
        a(f"v_mov_b32 v{16+4*i+3}, 0")
    a("s_mov_b32 exec_lo, -1")
    a.label("C_WO2")
    for i in range(7):
        a(f"buffer_store_dwordx4 {vr(16+4*i,4)}, v2, s[20:23], s38 offen{SC}")
        if i < 6: a("s_add_u32 s38, s38, 32768")
    a("s_waitcnt vmcnt(0)")
    cnt_add(a, 4, "s40")
    a.label("C_END")
    fin(a, 3)

def gen():
    a = Asm()
    gen_entry(a)
    gen_A(a)
    gen_B(a)
    gen_C(a)
    a.label("L_END")
    a("s_endpgm")
    return a.text()

HEADER = open("cdna_kernels/" + NAME + ".s.ref").read().split("; Override launch geometry")[0]

DOC = """; ---------------------------------------------------------------------------------------------
; ---------------------------------------------------------------------------------------------
"""

if __name__ == "__main__":
    name = NAME + "_kernel"
    out = HEADER + "; @launch grid=(512,1,1) block=(256,1,1) lds=81920\n"
    out += '.amdgcn_target "amdgcn-amd-amdhsa--gfx950"\n' + DOC + kernel_header(name) + gen() + kernel_desc(name, 256)
    dst = sys.argv[1] if len(sys.argv) > 1 else "cdna_kernels/" + NAME + ".s"
    open(dst, "w").write(out)
```
